```python
import torch

def _softmax(x, axis=-1):
    return torch.softmax(x, dim=axis)
def _gelu(x):
    return torch.nn.functional.gelu(x, approximate="tanh")
def _silu(x):
    return torch.nn.functional.silu(x)
def _sigmoid(x):
    return torch.sigmoid(x)
def _layernorm(x, axis=-1, eps=1e-5):
    m = x.mean(dim=axis, keepdim=True)
    v = x.var(dim=axis, keepdim=True, unbiased=False)
    return (x - m) / torch.sqrt(v + eps)
def _scatter_add(tgt, idx, src, axis=0):
    return tgt.clone().index_add_(axis, idx, src)
def _segment_sum(src, seg, n):
    out = torch.zeros((n,) + src.shape[1:], dtype=src.dtype)
    return out.index_add_(0, seg, src)
def _pad(x, pw):
    flat = tuple(v for pair in reversed(pw) for v in pair)
    return torch.nn.functional.pad(x, flat)

kernel_name = 'sequential_preLN__mha_block__dense_activation_squared_relu__prompt'

def setup_inputs():

    _w = (lambda a: (lambda t: t.to(torch.bfloat16) if t.is_floating_point() else t)(torch.as_tensor(a)))
    def _A_setup():
        B, S, D, H = 1, 2048, 448, 16
        return {
            "x": _w((lambda *s: torch.randn(*s, dtype=torch.bfloat16) * 0.05)(B, S, D)),
            "wqkv": _w((lambda *s: torch.randn(*s, dtype=torch.bfloat16) * 0.05)(D, 3 * D)),
            "wo": _w((lambda *s: torch.randn(*s, dtype=torch.bfloat16) * 0.05)(D, D)),
        }
    _A_in = _A_setup()

    def _B_setup():
        B, S, D, F = 1, 2048, 448, 1792
        return {
            "x": _w((lambda *s: torch.randn(*s, dtype=torch.bfloat16) * 0.05)(B, S, D)),
            "w1": _w((lambda *s: torch.randn(*s, dtype=torch.bfloat16) * 0.05)(D, F)),
            "b1": _w((lambda *s: torch.randn(*s, dtype=torch.bfloat16) * 0.2)(F)),
            "w2": _w((lambda *s: torch.randn(*s, dtype=torch.bfloat16) * 0.05)(F, D)),
            "b2": _w((lambda *s: torch.randn(*s, dtype=torch.bfloat16) * 0.8)(D)),
        }
    _B_in = _B_setup()

    return {
        "A_x": _A_in["x"],
        "A_wqkv": _A_in["wqkv"],
        "A_wo": _A_in["wo"],
        "B_x": _B_in["x"],
        "B_w1": _B_in["w1"],
        "B_b1": _B_in["b1"],
        "B_w2": _B_in["w2"],
        "B_b2": _B_in["b2"],
    }

def reference(A_x, A_wqkv, A_wo, B_x, B_w1, B_b1, B_w2, B_b2):
    def _A_ref(x, wqkv, wo):
        B, S, D = x.shape
        H = 16
        Dh = D // H
        qkv = (lambda x, *d: x.permute(*d))((x @ wqkv).reshape(B, S, 3, H, Dh), 2, 0, 3, 1, 4)
        q, k, v = qkv[0], qkv[1], qkv[2]
        scores = torch.einsum("bhqd,bhkd->bhqk", q, k) * (Dh ** -0.5)
        p = _softmax(scores, axis=-1)
        o = torch.einsum("bhqk,bhkd->bhqd", p, v)
        return (lambda x, *d: x.permute(*d))(o, 0, 2, 1, 3).reshape(B, S, D) @ wo

    def _B_ref(x, w1, b1, w2, b2):
        h = torch.einsum("bsd,df->bsf", x, w1) + b1
        zero = torch.zeros_like(h)
        r = torch.where(h > zero, h, zero)
        h = r * r
        out = torch.einsum("bsf,fd->bsd", h, w2) + b2
        return out

    x = A_x
    h = x + _A_ref(_layernorm(x, axis=-1), A_wqkv, A_wo)
    h2 = h + _B_ref(_layernorm(h, axis=-1), B_w1, B_b1, B_w2, B_b2)
    return h2
```

```python
import re

REG = re.compile(r'^(-?)(abs\()?\|?([vas])(?:\[(\d+):(\d+)\]|(\d+))\|?\)?$')
TRANS = ('v_exp_f32', 'v_log_f32', 'v_rcp_f32', 'v_rsq_f32', 'v_sqrt_f32', 'v_sin_f32', 'v_cos_f32', 'v_rcp_iflag_f32')


def regs_of(op):
    op = op.strip()
    if op == 'vcc':
        return {('s', 'vcc')}
    if op == 'exec':
        return {('s', 'exec')}
    if op == 'm0':
        return {('s', 'm0')}
    m = REG.match(op)
    if not m:
        return set()
    k = m.group(3)
    if m.group(6) is not None:
        return {(k, int(m.group(6)))}
    return {(k, i) for i in range(int(m.group(4)), int(m.group(5)) + 1)}


class Ins:
    def __init__(self, text):
        self.text = text
        t = text.split(';')[0].strip()
        self.label = t.endswith(':')
        self.directive = t.startswith('.') and not self.label
        self.empty = (t == '')
        self.op = ''
        self.w = set(); self.r = set()
        self.kind = None
        self.states = 1
        if self.label or self.directive or self.empty:
            self.states = 0
            return
        parts = t.split(None, 1)
        op = self.op = parts[0]
        rest = parts[1] if len(parts) > 1 else ''
        ops = [o.strip() for o in rest.split(',')]
        last = ops[-1].split()
        mods = last[1:] if last else []
        if last:
            ops[-1] = last[0]
        self.ops = ops; self.mods = mods
        R = [regs_of(o) for o in ops]
        U = lambda l: set().union(*l) if l else set()
        if op == 's_nop':
            self.kind = 'nop'; self.states = int(ops[0], 0) + 1
        elif op.startswith('v_mfma') or op.startswith('v_smfmac'):
            self.kind = 'mfma'
            self.passes = 8 if '32x32' in op else 4
            self.w = R[0]
            self.ab = R[1] | R[2]
            if op.startswith('v_smfmac'):
                self.c = R[0]; self.ab |= R[3]
            else:
                self.c = R[3]
            self.r = self.ab | self.c
        elif op.startswith('v_'):
            self.kind = 'valu'
            base = op.replace('_e32', '').replace('_e64', '')
            self.trans = base in TRANS
            self.dl = base.startswith('v_dot')
            if base.startswith('v_permlane') and 'swap' in base:
                self.w = R[0] | R[1]; self.r = R[0] | R[1]
            elif base.startswith(('v_add_co', 'v_sub_co', 'v_addc_co', 'v_subb_co', 'v_subrev_co')):
                self.w = R[0] | R[1]; self.r = U(R[2:])
            else:
                self.w = R[0]; self.r = U(R[1:])
                if base.startswith(('v_fmac', 'v_dot2c', 'v_writelane')) or 'UNUSED_PRESERVE' in t:
                    self.r |= R[0]
            self.sel = ('sdwa' in op) or any(m.startswith('op_sel:') and not base.startswith('v_pk') for m in mods)
            self.dpp = any(m.startswith(('row_', 'quad_perm', 'wave_')) for m in mods) or 'dpp' in op
        elif op.startswith('ds_'):
            self.kind = 'ds'
            if op.startswith(('ds_read', 'ds_bpermute', 'ds_permute', 'ds_swizzle')):
                self.w = R[0]; self.r = U(R[1:])
            else:
                self.r = U(R)
        elif op.startswith(('buffer_', 'global_')):
            self.kind = 'vmem'
            self.lds = ('lds' in mods) or ('_lds_' in op)
            self.wide = False
            if self.lds:
                self.r = U(R) | {('s', 'm0')}
            elif 'load' in op:
                self.w = R[0]; self.r = U(R[1:])
            elif 'atomic' in op:
                self.r = U(R)
                if 'sc0' in mods: self.w = R[0]
            else:
                self.r = U(R)
                if op.endswith(('x3', 'x4')):
                    self.wide = True
                    self.data = R[0] if op.startswith('buffer_') else R[1]
        elif op.startswith('s_'):
            self.kind = 'salu'
            if op.startswith(('s_cmp', 's_cbranch', 's_branch', 's_waitcnt', 's_barrier', 's_endpgm', 's_setprio', 's_sleep', 's_bitcmp')):
                self.r = U(R)
            else:
                self.w = R[0] if R else set(); self.r = U(R[1:])
                if 'saveexec' in op: self.w |= {('s', 'exec')}
        else:
            raise ValueError('unknown instruction: ' + text)


def vec(s):
    return {x for x in s if x[0] in 'va'}


def sca(s):
    return {x for x in s if x[0] == 's'}


def need(p, c):
    n = 0
    if p.kind == 'mfma':
        big = {8: 12, 4: 8}[p.passes]
        if c.kind == 'mfma':
            if p.w & c.ab: n = max(n, big)
            if p.w & c.c and not (p.w == c.c and p.passes == c.passes): n = max(n, big - 2)
            if p.w & c.w and not (p.w & c.c): n = max(n, big - 2 if p.w != c.w else 0)
        elif c.kind in ('valu', 'ds', 'vmem'):
            if p.w & (c.r | c.w): n = max(n, big)
            if c.kind == 'valu' and (p.c & c.w): n = max(n, {8: 7, 4: 3}[p.passes])
    elif p.kind == 'valu':
        vw = vec(p.w); sw = sca(p.w)
        if c.kind == 'mfma' and vw & c.r: n = max(n, 3 if p.dl else 2)
        if c.kind == 'valu':
            if p.trans and not c.trans and vw & c.r: n = max(n, 1)
            if p.dl and vw & (c.r | c.w):
                same_c = (c.op == p.op and not (vw & set().union(*[regs_of(o) for o in c.ops[1:3]])))
                if not same_c: n = max(n, 3)
            if c.op.startswith('v_permlane') and vw & c.r: n = max(n, 2)
            if c.op.startswith(('v_readlane', 'v_readfirstlane')) and vw & c.r: n = max(n, 1)
            if c.dpp and vw & c.r: n = max(n, 2)
            if p.sel and vw & (c.r | c.w): n = max(n, 1)
            if sw & c.r:
                n = max(n, 4 if c.op.startswith(('v_readlane', 'v_writelane')) else 2)
        if c.kind in ('ds', 'vmem') and p.dl and vw & c.r: n = max(n, 3)
        if c.kind in ('ds', 'vmem') and p.trans and vw & c.r: n = max(n, 1)
        if c.kind == 'vmem' and sw & c.r: n = max(n, 5)
        if c.kind == 'salu' and sw & c.r and not c.op.startswith('s_cbranch'): n = max(n, 1)
    elif p.kind == 'vmem':
        if p.wide and p.data & c.w: n = max(n, 2)
    elif p.kind == 'salu':
        if ('s', 'm0') in p.w and ((c.kind == 'vmem' and c.lds) or (c.kind == 'ds' and 'addtid' in c.op)): n = max(n, 1)
    return n


class Asm:
    def __init__(self):
        self.ins = []
        self.nops = 0

    def __call__(self, text):
        for line in text.split('\n'):
            if line.strip():
                self.ins.append(Ins(line.strip()))

    def fix(self, verbose=False):
        out = []
        for c in self.ins:
            if c.kind is not None and c.kind != 'nop':
                dist = 0; short = 0
                for p in reversed(out):
                    if dist >= 12: break
                    if p.kind is not None and p.kind != 'nop':
                        short = max(short, need(p, c) - dist)
                    dist += p.states
                if short > 0:
                    out.append(Ins(f's_nop {short-1}'))
                    self.nops += 1
                    if verbose: print('nop', short, 'before', c.text)
            out.append(c)
        self.ins = out

    def text(self):
        return '\n'.join((i.text if (i.label or i.directive) else '    ' + i.text) for i in self.ins) + '\n'


def vr(b, n=1, k='v'):
    return f'{k}{b}' if n == 1 else f'{k}[{b}:{b+n-1}]'


def ar(b, n=1):
    return vr(b, n, 'a')


def sr(b, n=1):
    return vr(b, n, 's')


def interleave(main, fill, per=None):
    out = []
    n = len(main); k = len(fill); j = 0
    for i, m in enumerate(main):
        out.append(m)
        upto = (k * (i + 1) + n - 1) // n if per is None else min(k, j + per[i])
        out += fill[j:upto]; j = upto
    out += fill[j:]
    return out
```

```python
import sys, math, struct
from asmlib import *

NAME = 'sequential_preLN__mha_block__dense_activation_squared_relu__prompt'
WS_QK, WS_V, WS_O, WS_H, WS_H1 = 0, 0x400000, 0x600000, 0x800000, 0xA00000
WS_BYTES = 0x1200000
MF = 'v_mfma_f32_32x32x16_bf16'
SM = 'v_smfmac_f32_32x32x32_bf16'
def f32(x): return '0x%08x' % struct.unpack('<I', struct.pack('<f', x))[0]
QSCALE = math.log2(math.e) / math.sqrt(28.0)

def srd(e, d, src, nbytes):
    e(f's_mov_b32 s{d}, s{src}\ns_mov_b32 s{d+1}, s{src+1}\ns_mov_b32 s{d+2}, {nbytes}\ns_mov_b32 s{d+3}, 0x00020000')

def swap23(e, d, s, t):
    e(f'''v_and_b32 v{d}, 0x33, v{s}
v_and_b32 v{t}, 4, v{s}
v_lshl_or_b32 v{d}, v{t}, 1, v{d}
v_lshrrev_b32 v{t}, 1, v{s}
v_and_or_b32 v{d}, v{t}, 4, v{d}''')

def halves_sum(e, r, t):
    e(f'v_mov_b32 v{t}, v{r}\nv_permlane32_swap_b32 v{r}, v{t}\nv_add_f32 v{r}, v{r}, v{t}')

def tr_lane_part(e, d, lane, pitch, t0, t1):
    e(f'''v_bfe_u32 v{t0}, v{lane}, 2, 2
v_lshrrev_b32 v{t1}, 5, v{lane}
v_lshl_add_u32 v{t0}, v{t1}, 3, v{t0}
v_mul_u32_u24 v{d}, {pitch}, v{t0}
v_bfe_u32 v{t0}, v{lane}, 4, 1
v_lshl_add_u32 v{d}, v{t0}, 5, v{d}
v_and_b32 v{t0}, 1, v{lane}
v_lshl_add_u32 v{d}, v{t0}, 4, v{d}
v_bfe_u32 v{t0}, v{lane}, 1, 1
v_lshl_add_u32 v{d}, v{t0}, 3, v{d}''')

def ln_stats(e, vs, vq, t, mean, rstd, sig=None):
    halves_sum(e, vs, t); halves_sum(e, vq, t)
    e(f'''v_mul_f32 v{mean}, {f32(1/448)}, v{vs}
v_mul_f32 v{t}, v{mean}, v{mean}
v_mov_b32 v{rstd}, {f32(1/448)}
v_fma_f32 v{t}, v{vq}, v{rstd}, -v{t}
v_max_f32 v{t}, 0, v{t}
v_add_f32 v{t}, {f32(1e-5)}, v{t}
v_rsq_f32 v{rstd}, v{t}''')
    if sig is not None:
        e(f'v_mul_f32 v{sig}, v{t}, v{rstd}')

def rot_offsets(e, srot, n, dsts_muls_bases, st):
    for it in range(n):
        for dst, mul, base in dsts_muls_bases:
            e(f's_mul_i32 s{dst+it}, s{srot}, {mul}')
            if base is not None:
                e(f's_add_u32 s{dst+it}, s{dst+it}, s{base}')
        if it < n - 1:
            e(f's_add_u32 s{srot}, s{srot}, 1\ns_cmp_eq_u32 s{srot}, {n}\ns_cselect_b32 s{srot}, 0, s{srot}')

def k_qkv():
    e = Asm()
    XR = 86016; CSB = XR + 65536
    e('''s_cmp_ge_u32 s2, 224
s_cbranch_scc1 L1_end
s_load_dwordx4 s[40:43], s[0:1], 0
s_load_dwordx2 s[44:45], s[0:1], 80
v_lshrrev_b32 v2, 6, v0
v_and_b32 v1, 63, v0
v_readfirstlane_b32 s16, v2
s_and_b32 s46, s2, 7
s_lshr_b32 s47, s2, 3
s_mul_i32 s48, s47, 37
s_lshr_b32 s48, s48, 8         ; rb' = i/7
s_mul_i32 s49, s48, 7
s_sub_u32 s49, s47, s49        ; cw'
s_lshr_b32 s17, s46, 1
s_lshl_b32 s17, s17, 2
s_add_u32 s17, s17, s48        ; rb
s_and_b32 s18, s46, 1
s_mul_i32 s18, s18, 7
s_add_u32 s18, s18, s49        ; cw
s_lshl_b32 s50, s48, 1
s_add_u32 s50, s50, s49
s_cmp_ge_u32 s50, 7
s_cselect_b32 s51, 7, 0
s_sub_u32 s50, s50, s51        ; rot
s_lshl_b32 s19, s17, 2
s_add_u32 s19, s19, s16        ; tt
''')
    e(f'''s_mul_i32 s52, s19, {32*896}
s_mul_i32 s53, s16, {16*2688}
s_mul_i32 s54, s18, 192
s_add_u32 s53, s53, s54
s_lshl_b32 s36, s16, 14
s_add_u32 s36, s36, {XR}
s_mul_i32 s37, s16, 3072''')
    rot_offsets(e, 50, 7, [(20, 128, 52), (28, 64*2688, 53)], 55)
    e('''v_lshrrev_b32 v24, 3, v1
v_mul_u32_u24 v24, 896, v24
v_lshrrev_b32 v25, 4, v1
v_and_b32 v26, 7, v1
v_xor_b32 v25, v25, v26
v_lshl_add_u32 v2, v25, 4, v24
v_xor_b32 v3, 64, v2
v_add_u32 v3, 6144, v3
v_add_u32 v4, 12288, v2
v_add_u32 v5, 12288, v3''')
    for j in range(3):
        e(f'''v_add_u32 v24, {64*j}, v1
v_mul_u32_u24 v25, 5462, v24
v_lshrrev_b32 v25, 16, v25
v_mul_u32_u24 v26, {2688-192}, v25
v_lshl_add_u32 v{6+j}, v1, 4, v26''')
    e('s_waitcnt lgkmcnt(0)')
    srd(e, 4, 40, 2048*896); srd(e, 8, 42, 448*2688); srd(e, 12, 44, WS_BYTES)

    def loads(it):
        l = [f's_add_u32 m0, s36, {(it&3)*4096}']
        l += [f'buffer_load_dwordx4 v{2+i}, s[4:7], s{20+it} offen offset:{1024*i} lds' for i in range(4)]
        l += [f's_add_u32 m0, s37, {it*12288}']
        l += [f'buffer_load_dwordx4 v{6+j}, s[8:11], s{28+it} offen offset:{1024*j} lds' for j in range(3)]
        return l
    for it in range(3):
        e('\n'.join(loads(it)))
    e('''v_and_b32 v24, 31, v1
v_lshrrev_b32 v25, 1, v24
v_lshrrev_b32 v26, 5, v1
v_xor_b32 v25, v25, v26
v_and_b32 v25, 7, v25
v_lshlrev_b32 v25, 4, v25
v_lshl_add_u32 v25, v24, 7, v25
v_add_u32 v25, s36, v25''')
    tr_lane_part(e, 27, 1, 192, 24, 26)
    for kk in range(4):
        e(f'''s_xor_b32 s55, s16, {kk}
s_lshl_b32 s56, s55, 5
s_mul_i32 s57, s55, 3072
v_xor_b32 v{9+kk}, s56, v25
v_add_u32 v{13+kk}, s57, v27
v_add_u32 v{112+kk}, {5*12288}, v{13+kk}''')
    e('v_mov_b32 v17, 0x3f803f80')
    for r in range(18, 24): e(f'v_mov_b32 v{r}, 0')
    e('s_cmp_lt_u32 s18, 9\ns_cbranch_scc1 L1_qqq\ns_cmp_eq_u32 s18, 9\ns_cbranch_scc1 L1_qvv')

    ACC, WF, XF = 32, 80, 104
    def reads(s):
        it, kk = divmod(s, 4); b = s & 1
        l = [f'ds_read_b128 {vr(XF+4*b,4)}, v{9+kk} offset:{(it&3)*4096}']
        base, off = (13+kk, it*12288) if it < 5 else (112+kk, (it-5)*12288)
        for j in range(3):
            for rd in range(2):
                l.append(f'ds_read_b64_tr_b16 {vr(WF+12*b+4*j+2*rd,2)}, v{base} offset:{off + rd*768 + j*64}')
        return l
    def variant(types, lab):
        if lab: e(f'{lab}:')
        e('s_waitcnt vmcnt(14)\ns_barrier')
        e('\n'.join(reads(0)))
        for s in range(28):
            it, kk = divmod(s, 4); b = s & 1
            x = vr(XF+4*b, 4)
            mf = []
            for j in range(3):
                w = vr(WF+12*b+4*j, 4); a = vr(ACC+16*j, 16); c = a if s else '0'
                mf.append(f'{MF} {a}, {w}, {x}, {c}' if types[j] == 'q' else f'{MF} {a}, {x}, {w}, {c}')
            pre = []
            if kk == 3 and s < 27:
                nxt = it + 1
                inflight = 7 * max(0, min(6, it + 3) - nxt)
                pre = [f's_waitcnt vmcnt({inflight})', 's_barrier']
            rd = reads(s+1) if s < 27 else []
            dots = []
            for r in range(4):
                dots += [f'v_dot2c_f32_bf16 v18, v{XF+4*b+r}, v17', f'v_dot2c_f32_bf16 v19, v{XF+4*b+r}, v{XF+4*b+r}']
            if kk == 0:
                for r in range(4):
                    for j in range(3):
                        dots.append(f'v_dot2c_f32_bf16 v{20+j}, v{WF+12*b+4*j+r}, v17')
            ld = []
            if it + 3 <= 6:
                L = loads(it + 3)
                ld = {0: [], 1: L[:5], 2: L[5:], 3: []}[kk]
            e('s_waitcnt lgkmcnt(0)')
            e(mf[0]); e('\n'.join(pre + rd[:4]))
            e(mf[1]); e('\n'.join(rd[4:] + ld[:3] + dots[:len(dots)//2]))
            e(mf[2]); e('\n'.join(ld[3:] + dots[len(dots)//2:]))
        for j in range(3): halves_sum(e, 20+j, 24)
        e(f'''v_and_b32 v24, 31, v1
v_lshlrev_b32 v24, 4, v24
v_add_u32 v24, {CSB}, v24
s_lshl_b32 s55, s16, 9
v_add_u32 v25, s55, v24
ds_write_b128 v25, v[20:23]''')
        ln_stats(e, 18, 19, 26, 28, 30)
        e('s_waitcnt lgkmcnt(0)\ns_barrier')
        for w in range(4): e(f'ds_read_b128 {vr(80+4*w,4)}, v24 offset:{512*w}')
        e('''v_cmp_gt_u32 vcc, 32, v1
v_sub_f32 v28, 0, v28
v_cndmask_b32 v28, 0, v28, vcc
v_and_b32 v26, 0xffff0000, v28
v_sub_f32 v27, v28, v26
v_cvt_pk_bf16_f32 v104, v26, v26
v_cvt_pk_bf16_f32 v105, v27, 0
v_mov_b32 v106, 0
v_mov_b32 v107, 0''')
        if 'v' in types:
            e(f'''v_cndmask_b32 v29, 0, v30, vcc
v_and_b32 v26, 0xffff0000, v29
v_sub_f32 v27, v29, v26
v_cvt_pk_bf16_f32 v108, v26, v27
v_mov_b32 v109, 0
v_mov_b32 v110, 0
v_mov_b32 v111, 0
v_mov_b32 v116, v17
v_mov_b32 v117, v17
v_mov_b32 v118, v17
v_mov_b32 v119, v17
{MF} v[128:143], v[108:111], v[116:119], 0''')
        e('s_waitcnt lgkmcnt(0)')
        for j in range(3):
            e(f'''v_add_f32 v{80+j}, v{80+j}, v{84+j}
v_add_f32 v{88+j}, v{88+j}, v{92+j}
v_add_f32 v{80+j}, v{80+j}, v{88+j}
v_and_b32 v26, 0xffff0000, v{80+j}
v_sub_f32 v27, v{80+j}, v26
v_cvt_pk_bf16_f32 v{144+4*j}, v26, v27
v_lshrrev_b32 v{145+4*j}, 16, v{80+j}
v_mov_b32 v{146+4*j}, 0
v_mov_b32 v{147+4*j}, 0''')
            a = vr(ACC+16*j, 16); w = vr(144+4*j, 4)
            e(f'{MF} {a}, {w}, v[104:107], {a}' if types[j] == 'q' else f'{MF} {a}, v[104:107], {w}, {a}')
        e('v_lshlrev_b32 v24, 4, v1\ns_mul_i32 s56, s18, 3')
        if 'v' in types:
            e('v_and_b32 v26, 31, v1')
            swap23(e, 25, 26, 27)
            e('v_and_b32 v29, 32, v1\nv_lshlrev_b32 v29, 4, v29')
        for j in range(3):
            A = ACC + 16*j
            if types[j] == 'q':
                e(f'''s_add_u32 s57, s56, {j}
s_cmp_lt_u32 s57, 14
s_cselect_b32 s58, {f32(QSCALE)}, 1.0
v_mul_f32 v120, s58, v30
s_lshl_b32 s57, s57, 11
s_mul_i32 s58, s19, 57344
s_add_u32 s57, s57, s58''')
                for p in range(8):
                    e(f'v_pk_mul_f32 {vr(A+2*p,2)}, {vr(A+2*p,2)}, v[120:121] op_sel_hi:[1,0]')
                    e(f'v_cvt_pk_bf16_f32 v{A+p}, v{A+2*p}, v{A+2*p+1}')
                for t in range(2):
                    e(f'buffer_store_dwordx4 {vr(A+4*t,4)}, v24, s[12:15], s57 offen offset:{1024*t}')
            else:
                e(f'''s_add_u32 s57, s56, {j}
s_sub_u32 s57, s57, 28
s_lshl_b32 s57, s57, 5
v_add_u32 v26, s57, v25
v_mul_u32_u24 v27, 2341, v26
v_lshrrev_b32 v27, 16, v27
v_mul_u32_u24 v27, {131072-448}, v27
v_lshl_add_u32 v27, v26, 4, v27
v_add_u32 v{122+j}, v27, v29
s_lshl_b32 s57, s19, 11
s_add_u32 s57, s57, {WS_V}''')
                for p in range(8):
                    e(f'v_pk_mul_f32 {vr(A+2*p,2)}, {vr(A+2*p,2)}, {vr(128+2*p,2)}')
                    e(f'v_cvt_pk_bf16_f32 v{A+p}, v{A+2*p}, v{A+2*p+1}')
                for t in range(2):
                    e(f'buffer_store_dwordx4 {vr(A+4*t,4)}, v{122+j}, s[12:15], s57 offen offset:{1024*t}')
        if types == 'qvv':
            e('''v_lshrrev_b32 v26, 2, v1
v_lshlrev_b32 v26, 17, v26
v_and_b32 v27, 3, v1
v_lshl_add_u32 v26, v27, 9, v26
buffer_store_dwordx4 v[116:119], v26, s[12:15], s57 offen offset:448''')
        e('s_endpgm')
    variant('vvv', None); variant('qqq', 'L1_qqq'); variant('qvv', 'L1_qvv')
    e('L1_end:')
    return e, dict(grid=224, lds=CSB + 2048, vgpr=160, accum=160)

def k_attn():
    e = Asm()
    Q, O, S, NM = 16, 48, 112, 160
    FLAG = 49152; MXB = FLAG + 64
    e('''s_cmp_ge_u32 s2, 256
s_cbranch_scc1 L2_end
s_load_dwordx2 s[44:45], s[0:1], 80
v_lshrrev_b32 v2, 6, v0
v_and_b32 v1, 63, v0
v_readfirstlane_b32 s16, v2
s_and_b32 s46, s2, 7
s_bfe_u32 s47, s2, 0x10003
s_lshr_b32 s17, s2, 4          ; qb
s_lshl_b32 s18, s46, 1
s_add_u32 s18, s18, s47        ; head
s_mul_i32 s19, s46, 7
s_mul_i32 s48, s47, 3
s_add_u32 s19, s19, s48
s_lshl_b32 s19, s19, 9         ; c0*512
s_lshl_b32 s49, s16, 4
''')
    e(f'''s_add_u32 s50, s19, {WS_QK + 56*512}
s_lshl_b32 s51, s18, 17
s_add_u32 s51, s51, {WS_V}''')
    for j in range(16):
        e(f'''s_add_u32 s48, s17, {j}
s_and_b32 s48, s48, 15
s_add_u32 s48, s48, s49
s_mul_i32 s{52+j}, s48, 57344
s_add_u32 s{52+j}, s{52+j}, s50
s_lshl_b32 s48, s48, 11
s_add_u32 s{68+j}, s48, s51''')
    for s in range(4):
        e(f'''s_xor_b32 s48, s16, {3-s}
s_lshl_b32 s{20+s}, s17, 2
s_add_u32 s48, s48, s{20+s}
s_mul_i32 s{20+s}, s48, 57344
s_add_u32 s{20+s}, s{20+s}, s19''')
    swap23(e, 3, 1, 4)
    e('''v_lshlrev_b32 v3, 4, v3
v_lshlrev_b32 v2, 4, v1        ; lane*16
s_mov_b32 s30, 0
s_waitcnt lgkmcnt(0)''')
    srd(e, 12, 44, WS_BYTES)
    for r in range(64): e(f'v_mov_b32 v{NM+r}, 0') if False else None
    def kvloads(j):
        return [f'buffer_load_dwordx4 {ar(16*j,4)}, v3, s[12:15], s{52+j} offen',
                f'buffer_load_dwordx4 {ar(16*j+4,4)}, v3, s[12:15], s{52+j} offen offset:1024',
                f'buffer_load_dwordx4 {ar(16*j+8,4)}, v3, s[12:15], s{68+j} offen',
                f'buffer_load_dwordx4 {ar(16*j+12,4)}, v3, s[12:15], s{68+j} offen offset:1024']
    def qloads(s):
        return [f'buffer_load_dwordx4 {vr(Q+8*s+4*t,4)}, v2, s[12:15], s{20+s} offen offset:{1024*t}' for t in range(2)]
    PF = 3
    e('L2_restart:')
    for s in range(4): e('\n'.join(qloads(s)))
    for j in range(PF): e('\n'.join(kvloads(j)))
    e('''v_cmp_gt_u32 vcc, 32, v1
s_cmp_eq_u32 s47, 0
s_cselect_b32 s48, -1, 0
v_cndmask_b32 v6, 0, -1, vcc
v_not_b32 v4, v6
v_or_b32 v4, s48, v4
s_not_b32 s48, s48
v_or_b32 v5, s48, v6
v_mov_b32 v7, 0xdddd''')
    for r in range(64): e(f'v_mov_b32 v{O+r}, 0')
    e('s_cmp_lg_u32 s30, 0\ns_cbranch_scc1 L2_havemax')
    for r in range(64): e(f'v_mov_b32 v{NM+r}, 0')
    e(f'v_mov_b32 v8, {FLAG}\nds_write_b32 v8, v{NM}')
    e('L2_havemax:')
    for s in range(3):
        e(f'''s_xor_b32 s48, s16, {3-s}
s_mul_i32 s48, s48, 12288
v_add_u32 v{9+s}, s48, v2''')
    e('s_mul_i32 s48, s16, 12288\nv_add_u32 v12, s48, v2')
    e(f's_waitcnt vmcnt({4*PF})')
    for s in range(4):
        e(f'''v_and_b32 v{Q+8*s}, v4, v{Q+8*s}
v_and_b32 v{Q+8*s+1}, v4, v{Q+8*s+1}
v_and_b32 v{Q+8*s+6}, v5, v{Q+8*s+6}
v_and_b32 v{Q+8*s+7}, v5, v{Q+8*s+7}''')
    steps = [(s, j) for j in range(16) for s in range(3)] + [(3, j) for j in range(16)]
    N = len(steps)
    def qk(i, t):
        s, j = steps[i]; d = vr(S + 16*(i % 3), 16)
        return f'{MF} {d}, {ar(16*j+4*t,4)}, {vr(Q+8*s+4*t,4)}, ' + (vr(NM+16*s, 16) if t == 0 else d)
    def pv(i, t):
        s, j = steps[i]
        return f'{SM} {vr(O+16*s,16)}, {ar(16*j+8+4*t,4)}, {vr(S+16*(i%3)+8*t,8)}, v7'
    extra = {}
    def add(i, sl, l): extra.setdefault((i, sl), []).extend(l)
    before = {}
    for j in range(16):
        i0 = 3*j
        if j + PF < 16:
            L = kvloads(j + PF)
            add(i0, 0, L[:1]); add(i0, 2, L[1:2]); add(i0+1, 0, L[2:3]); add(i0+1, 2, L[3:])
        if j + 1 < 16:
            issued = min(16, j + PF + 1)
            before[i0+2] = [f's_waitcnt vmcnt({4*(issued - (j+2))})']
    k = 0
    for s in range(3):
        for q in range(4):
            add(50 + k//2, 1 + 2*(k % 2) - 1, [f'ds_write_b128 v{9+s}, {vr(O+16*s+4*q,4)} offset:{s*4096 + q*1024}']); k += 1
    add(57, 0, ['s_waitcnt lgkmcnt(0)', 's_barrier'])
    k = 0
    for s in range(3):
        for q in range(4):
            add(58 + k//3, k % 3, [f'ds_read_b128 {vr(O+16*s+4*q,4)}, v12 offset:{s*4096 + q*1024}']); k += 1
    e(f's_waitcnt vmcnt({4*(PF-1)})')
    e(qk(0, 0)); e(qk(0, 1))
    for i in range(N):
        b = S + 16*(i % 3)
        mf = [qk(i+1, 0) if i+1 < N else None, qk(i+1, 1) if i+1 < N else None, pv(i-1, 1) if i > 0 else None, pv(i, 0)]
        e('\n'.join(before.get(i, [])))
        for sl in range(4):
            if mf[sl]: e(mf[sl])
            e('\n'.join(extra.get((i, sl), [])))
            for r in range(4): e(f'v_exp_f32 v{b+4*sl+r}, v{b+4*sl+r}')
    e(pv(N-1, 1))
    e('s_waitcnt lgkmcnt(0)')
    for p in range(8): e(f'v_pk_add_f32 {vr(O+2*p,2)}, {vr(O+2*p,2)}, {vr(O+16+2*p,2)}')
    for p in range(8): e(f'v_pk_add_f32 {vr(O+2*p,2)}, {vr(O+2*p,2)}, {vr(O+32+2*p,2)}')
    for p in [6, 0, 1, 2, 3, 4, 5, 7]: e(f'v_pk_add_f32 {vr(O+2*p,2)}, {vr(O+2*p,2)}, {vr(O+48+2*p,2)}')
    e(f'''v_mov_b32 v13, v{O+12}
v_mov_b32 v14, v{O+12}
v_permlane32_swap_b32 v13, v14
v_rcp_f32 v224, v14
v_cmp_nle_f32 vcc, {f32(2.0**-40)}, v14
s_mov_b64 s[26:27], vcc
v_cmp_nge_f32 vcc, {f32(2.0**40)}, v14
s_lshl_b32 s48, s17, 2
s_add_u32 s48, s48, s16
s_lshl_b32 s48, s48, 4
s_add_u32 s48, s48, s18
s_lshl_b32 s48, s48, 11
s_add_u32 s48, s48, {WS_O}''')
    for p in range(8):
        e(f'v_pk_mul_f32 {vr(O+2*p,2)}, {vr(O+2*p,2)}, v[224:225] op_sel_hi:[1,0]')
        e(f'v_cvt_pk_bf16_f32 v{O+p}, v{O+2*p}, v{O+2*p+1}')
    e(f'''v_and_b32 v{O+6}, v6, v{O+6}
v_and_b32 v{O+7}, v6, v{O+7}
buffer_store_dwordx4 {vr(O,4)}, v2, s[12:15], s48 offen
buffer_store_dwordx4 {vr(O+4,4)}, v2, s[12:15], s48 offen offset:1024
s_cmp_lg_u32 s30, 0
s_cbranch_scc1 L2_end
s_or_b64 vcc, vcc, s[26:27]
s_cbranch_scc0 L2_ok
ds_write_b32 v8, v7
L2_ok:
s_waitcnt lgkmcnt(0)
s_barrier
ds_read_b32 v13, v8
s_waitcnt lgkmcnt(0)
v_cmp_ne_u32 vcc, 0, v13
s_cbranch_vccz L2_end''')
    e('s_mov_b32 s30, 1\ns_waitcnt vmcnt(0)')
    for s in range(4):
        e(f'v_mov_b32 v{226+s}, 0xff800000')
        for j in range(16):
            d = vr(S, 16)
            e(f'{MF} {d}, {ar(16*j,4)}, {vr(Q+8*s,4)}, 0\n{MF} {d}, {ar(16*j+4,4)}, {vr(Q+8*s+4,4)}, {d}')
            for p in range(8): e(f'v_max3_f32 v{226+s}, v{S+2*p}, v{S+2*p+1}, v{226+s}')
        e(f'''v_mov_b32 v13, v{226+s}
v_permlane32_swap_b32 v{226+s}, v13
v_max_f32 v{226+s}, v{226+s}, v13
s_xor_b32 s48, s16, {3-s}
s_lshl_b32 s48, s48, 9
s_add_u32 s48, s48, {MXB}
v_and_b32 v13, 31, v1
v_lshlrev_b32 v13, 4, v13
v_add_u32 v{230+s}, s48, v13
s_lshl_b32 s48, s16, 2
v_add_u32 v13, s48, v{230+s}
ds_write_b32 v13, v{226+s}''')
    e('s_waitcnt lgkmcnt(0)\ns_barrier')
    for s in range(4):
        e(f'''ds_read_b128 {vr(S,4)}, v{230+s}
s_waitcnt lgkmcnt(0)
v_max3_f32 v13, v{S}, v{S+1}, v{S+2}
v_max_f32 v13, v13, v{S+3}''')
        for r in range(16): e(f'v_sub_f32 v{NM+16*s+r}, 0, v13')
    e('s_branch L2_restart')
    e('L2_end:')
    return e, dict(grid=256, lds=MXB + 2048, vgpr=512, accum=256)

def post_ids(e):
    e('''v_lshrrev_b32 v2, 6, v0
v_and_b32 v1, 63, v0
v_readfirstlane_b32 s16, v2
s_and_b32 s46, s2, 7
s_lshr_b32 s47, s2, 3
s_cmp_ge_u32 s47, 14
s_cselect_b32 s48, 1, 0        ; rb'
s_mul_i32 s49, s48, 14
s_sub_u32 s18, s47, s49        ; j
s_lshl_b32 s17, s46, 1
s_add_u32 s17, s17, s48        ; rb''')

def k_ksplit(which):
    e = Asm()
    wo = which == 'wo'
    P = 'L3' if wo else 'L5'
    NS = 8 if wo else 28
    e(f's_cmp_ge_u32 s2, 224\ns_cbranch_scc1 {P}_end')
    if wo:
        e('s_load_dwordx2 s[40:41], s[0:1], 16\ns_load_dwordx2 s[42:43], s[0:1], 0')
    else:
        e('s_load_dwordx4 s[40:43], s[0:1], 48\ns_load_dwordx2 s[38:39], s[0:1], 64')
    e('s_load_dwordx2 s[44:45], s[0:1], 80')
    post_ids(e)
    apitch = 32768 if wo else 114688
    e(f'''s_and_b32 s50, s18, 1          ; th
s_lshr_b32 s51, s18, 1         ; fb
s_lshl_b32 s52, s17, 1
s_add_u32 s52, s52, s50
s_lshl_b32 s52, s52, 1
s_lshr_b32 s53, s16, 1
s_add_u32 s19, s52, s53
s_xor_b32 s54, s19, 1
s_mul_i32 s55, s16, {NS*1024}
s_add_u32 s55, s55, {WS_O if wo else WS_H1}
s_mul_i32 s56, s19, {apitch}
s_add_u32 s56, s56, s55
s_mul_i32 s57, s54, {apitch}
s_add_u32 s57, s57, s55
v_lshlrev_b32 v2, 4, v1
v_add_u32 v3, s56, v2
v_add_u32 v4, s57, v2
s_mul_i32 s58, s16, {(112 if wo else 448)*896}
s_lshl_b32 s59, s51, 7
s_add_u32 s58, s58, s59        ; W base
s_lshl_b32 s36, s16, 14
v_lshrrev_b32 v24, 3, v1
v_mul_u32_u24 v24, 896, v24
v_bfe_u32 v25, v1, 4, 1
v_lshlrev_b32 v25, 2, v25
v_and_b32 v26, 7, v1
v_xor_b32 v25, v25, v26
v_lshl_add_u32 v5, v25, 4, v24
v_add_u32 v6, 6144, v5''')
    if not wo:
        e('''s_lshl_b32 s60, s48, 1
s_add_u32 s60, s60, s50
s_lshl_b32 s60, s60, 1
s_add_u32 s60, s60, s51
s_cmp_ge_u32 s60, 7
s_cselect_b32 s61, 7, 0
s_sub_u32 s60, s60, s61''')
        rot_offsets(e, 60, 7, [(20, 4096, None), (28, 64*896, 58)], 61)
    e('s_waitcnt lgkmcnt(0)')
    srd(e, 8, 40, (448 if wo else 1792)*896); srd(e, 12, 44, WS_BYTES)
    if wo: srd(e, 4, 42, 2048*896)
    else: srd(e, 4, 42, 896); srd(e, 64, 38, 2048*896)
    ACC, AF, WF, RES = 32, 96, 160, 176
    def loads(s):
        slot = s & 7
        if wo:
            l = [f's_add_u32 m0, s36, {slot*2048}', f's_add_u32 s61, s58, {s*14336}']
            so = '0' if s < 4 else 's62'; off = (s & 3)*1024
        else:
            it, kk = divmod(s, 4)
            l = [f's_add_u32 m0, s36, {slot*2048}', f's_add_u32 s61, s{28+it}, {kk*14336}']
            so = f's{20+it}'; off = kk*1024
        l += ['buffer_load_dwordx4 v5, s[8:11], s61 offen lds', 'buffer_load_dwordx4 v6, s[8:11], s61 offen offset:1024 lds']
        l += [f'buffer_load_dwordx4 {vr(AF+8*slot+4*a,4)}, v{3+a}, s[12:15], {so} offen offset:{off}' for a in range(2)]
        return l
    D = 8 if wo else 4
    if wo: e('s_mov_b32 s62, 4096')
    for s in range(D): e('\n'.join(loads(s)))
    e(f'''s_and_b32 s53, s16, 1
s_lshl_b32 s63, s51, 1
s_add_u32 s63, s63, s53
v_and_b32 v24, 31, v1
v_mul_u32_u24 v24, 896, v24
v_lshrrev_b32 v25, 5, v1
v_lshlrev_b32 v25, 4, v25
v_add_u32 v10, v24, v25
s_mul_i32 s68, s19, {32*896}
s_lshl_b32 s69, s63, 6
s_add_u32 s68, s68, s69
s_lshl_b32 s70, s63, 11
s_mul_i32 s71, s19, 28672
s_add_u32 s70, s70, s71
s_add_u32 s70, s70, {WS_H}''')
    def resloads():
        if wo:
            return [f'buffer_load_dwordx4 {vr(RES+4*t,4)}, v10, s[4:7], s68 offen offset:{32*t}' for t in range(2)]
        return [f'buffer_load_dwordx4 {vr(RES+4*t,4)}, v2, s[12:15], s70 offen offset:{1024*t}' for t in range(2)] + \
               [f'buffer_load_dwordx4 {vr(RES+8+4*t,4)}, v25, s[4:7], s69 offen offset:{32*t}' for t in range(2)]
    tr_lane_part(e, 7, 1, 128, 24, 26)
    e('''v_bfe_u32 v24, v1, 3, 1
v_xor_b32 v24, s53, v24
v_lshl_add_u32 v7, v24, 6, v7
v_add_u32 v7, s36, v7
v_xor_b32 v8, 64, v7''')
    def reads(s):
        b = s & 1
        if wo: off = (28*(s >> 1) + 16*(s & 1))*128
        else: off = (s & 7)*2048
        return [f'ds_read_b64_tr_b16 {vr(WF+8*b+4*f+2*rd,2)}, v{7+f} offset:{off + rd*512}' for f in range(2) for rd in range(2)]
    nres = len(resloads())
    def vm_after(s_needed, s_issued, res):
        return 4*(s_issued - s_needed) + (nres if res else 0)
    res_at = NS - D if not wo else -1
    if wo: e('\n'.join(resloads()))
    e(f's_waitcnt vmcnt({vm_after(0, D-1, wo)})')
    e('\n'.join(reads(0)))
    for s in range(NS):
        b = s & 1; slot = s & 7
        mf = []
        for a in range(2):
            for f in range(2):
                acc = vr(ACC + 16*(2*a+f), 16)
                mf.append(f'{MF} {acc}, {vr(WF+8*b+4*f,4)}, {vr(AF+8*slot+4*a,4)}, ' + (acc if s else '0'))
        issued = min(NS-1, s + D - 1)
        e('s_waitcnt lgkmcnt(0)')
        e(mf[0])
        if s + 1 < NS:
            e(f's_waitcnt vmcnt({vm_after(s+1, issued, s > res_at)})')
            e('\n'.join(reads(s+1)))
        L = loads(s + D) if s + D < NS else (resloads() if s == res_at else [])
        e(mf[1]); e('\n'.join(L[:3])); e(mf[2]); e('\n'.join(L[3:5])); e(mf[3]); e('\n'.join(L[5:]))
    RB = 65536
    for s in range(1, 4):
        e(f's_xor_b32 s61, s16, {s}\ns_mul_i32 s61, s61, 12288\ns_add_u32 s61, s61, {RB}\nv_add_u32 v{11+s}, s61, v2')
    e(f's_mul_i32 s61, s16, 12288\ns_add_u32 s61, s61, {RB}\nv_add_u32 v11, s61, v2')
    for s in range(1, 4):
        for q in range(4):
            e(f'ds_write_b128 v{11+s}, {vr(ACC+16*s+4*q,4)} offset:{(s-1)*4096 + q*1024}')
    e('s_waitcnt vmcnt(0)')
    for r in range(8):
        e(f'v_lshlrev_b32 v{AF+2*r}, 16, v{RES+r}\nv_and_b32 v{AF+2*r+1}, 0xffff0000, v{RES+r}')
    for p in range(8): e(f'v_pk_add_f32 {vr(ACC+2*p,2)}, {vr(ACC+2*p,2)}, {vr(AF+2*p,2)}')
    if not wo:
        for r in range(8):
            e(f'v_lshlrev_b32 v{AF+2*r}, 16, v{RES+8+r}\nv_and_b32 v{AF+2*r+1}, 0xffff0000, v{RES+8+r}')
        for p in range(8): e(f'v_pk_add_f32 {vr(ACC+2*p,2)}, {vr(ACC+2*p,2)}, {vr(AF+2*p,2)}')
    e('s_waitcnt lgkmcnt(0)\ns_barrier')
    for s in range(1, 4):
        for q in range(4):
            e(f'ds_read_b128 {vr(ACC+16*s+4*q,4)}, v11 offset:{(s-1)*4096 + q*1024}')
    for s in range(1, 4):
        e(f's_waitcnt lgkmcnt({4*(3-s)})')
        for p in range(8): e(f'v_pk_add_f32 {vr(ACC+2*p,2)}, {vr(ACC+2*p,2)}, {vr(ACC+16*s+2*p,2)}')
    for p in range(8): e(f'v_cvt_pk_bf16_f32 v{ACC+p}, v{ACC+2*p}, v{ACC+2*p+1}')
    for t in range(2):
        if wo: e(f'buffer_store_dwordx4 {vr(ACC+4*t,4)}, v2, s[12:15], s70 offen offset:{1024*t}')
        else: e(f'buffer_store_dwordx4 {vr(ACC+4*t,4)}, v10, s[64:67], s68 offen offset:{32*t}')
    e(f'{P}_end:')
    return e, dict(grid=224, lds=RB + 49152, vgpr=192, accum=192)

def k_ffn1():
    e = Asm()
    CSB = 114688
    e('''s_cmp_ge_u32 s2, 224
s_cbranch_scc1 L4_end
s_load_dwordx4 s[40:43], s[0:1], 32
s_load_dwordx2 s[44:45], s[0:1], 80''')
    post_ids(e)
    e(f'''s_lshl_b32 s19, s17, 2
s_add_u32 s19, s19, s16        ; tt
s_mul_i32 s52, s19, 28672
s_add_u32 s52, s52, {WS_H}
s_mul_i32 s53, s16, {16*3584}
s_lshl_b32 s54, s18, 8
s_add_u32 s53, s53, s54
s_lshl_b32 s37, s16, 12
s_mul_i32 s50, s48, 3
s_add_u32 s50, s50, s18
s_mul_i32 s51, s50, 37
s_lshr_b32 s51, s51, 8
s_mul_i32 s51, s51, 7
s_sub_u32 s50, s50, s51        ; rot''')
    rot_offsets(e, 50, 7, [(20, 4096, 52), (28, 64*3584, 53)], 55)
    e('''v_lshlrev_b32 v2, 4, v1
v_lshrrev_b32 v24, 4, v1
v_lshlrev_b32 v25, 2, v24
v_and_b32 v26, 15, v1
v_xor_b32 v25, v25, v26
v_mul_u32_u24 v24, 3584, v24
v_lshl_add_u32 v3, v25, 4, v24''')
    for i in range(1, 4): e(f'v_add_u32 v{3+i}, {i*(4*3584-1024)}, v3')
    e('s_waitcnt lgkmcnt(0)')
    srd(e, 8, 40, 448*3584); srd(e, 4, 42, 3584); srd(e, 12, 44, WS_BYTES)
    ACC, WF, HF = 32, 96, 128
    def loads(it):
        l = [f's_add_u32 m0, s37, {it*16384}']
        l += [f'buffer_load_dwordx4 v{3+i}, s[8:11], s{28+it} offen offset:{1024*i} lds' for i in range(4)]
        l += [f'buffer_load_dwordx4 {vr(HF+16*it+4*kk,4)}, v2, s[12:15], s{20+it} offen offset:{1024*kk}' for kk in range(4)]
        return l
    e('v_and_b32 v26, 31, v1')
    swap23(e, 25, 26, 27)
    e('v_lshlrev_b32 v25, 1, v25')
    for b in range(4):
        e(f's_xor_b32 s55, s16, {b}\ns_lshl_b32 s55, s55, 6\ns_add_u32 s55, s55, s54\nbuffer_load_ushort v{240+b}, v25, s[4:7], s55 offen')
    PF = 3
    for it in range(PF): e('\n'.join(loads(it)))
    tr_lane_part(e, 27, 1, 256, 24, 26)
    e('v_bfe_u32 v24, v1, 2, 2\nv_xor_b32 v24, s16, v24\nv_lshl_add_u32 v7, v24, 6, v27')
    for b in range(1, 4): e(f'v_xor_b32 v{7+b}, {64*b}, v7')
    for b in range(4): e(f'v_add_u32 v{11+b}, 0x10000, v{7+b}')
    e('v_mov_b32 v17, 0x3f803f80\nv_mov_b32 v18, 0\nv_mov_b32 v19, 0\nv_mov_b32 v20, 0')
    def reads(s):
        it, kk = divmod(s, 4); bb = s & 1
        base = 7 if it < 4 else 11
        off = (it & 3)*16384 + kk*4096
        return [f'ds_read_b64_tr_b16 {vr(WF+16*bb+4*f+2*rd,2)}, v{base+f} offset:{off + rd*1024}' for f in range(4) for rd in range(2)]
    e(f's_waitcnt vmcnt({8*(PF-1)})\ns_barrier')
    e('\n'.join(reads(0)))
    for s in range(28):
        it, kk = divmod(s, 4); bb = s & 1
        h = HF + 4*s
        mf = []
        for f in range(4):
            acc = vr(ACC+16*f, 16)
            mf.append(f'{MF} {acc}, {vr(WF+16*bb+4*f,4)}, {vr(h,4)}, ' + (acc if s else '0'))
        pre = []
        if kk == 3 and s < 27:
            pre = [f's_waitcnt vmcnt({8*max(0, min(6, it+PF) - (it+1))})', 's_barrier']
        rd = reads(s+1) if s < 27 else []
        dots = []
        for r in range(4):
            dots += [f'v_dot2c_f32_bf16 v18, v{h+r}, v17', f'v_dot2c_f32_bf16 v19, v{h+r}, v{h+r}', f'v_dot2c_f32_bf16 v20, v{WF+16*bb+r}, v17']
        ld = []
        if it + PF <= 6:
            L = loads(it + PF)
            ld = {0: L[:3], 1: L[3:6], 2: L[6:], 3: []}[kk]
        e('s_waitcnt lgkmcnt(0)')
        e(mf[0]); e('\n'.join(pre + rd[:5]))
        e(mf[1]); e('\n'.join(rd[5:] + ld[:2] + dots[:2]))
        e(mf[2]); e('\n'.join(ld[2:] + dots[2:7]))
        e(mf[3]); e('\n'.join(dots[7:]))
    halves_sum(e, 20, 24)
    e(f'''v_and_b32 v24, 31, v1
v_lshlrev_b32 v24, 2, v24
s_lshl_b32 s55, s16, 7
s_add_u32 s55, s55, {CSB}
v_add_u32 v24, s55, v24
ds_write_b32 v24, v20''')
    ln_stats(e, 18, 19, 26, 28, 30, 29)
    for b in range(1, 4): e(f'v_xor_b32 v{20+b}, {128*b}, v24')
    e('s_waitcnt lgkmcnt(0)\ns_barrier')
    for b in range(1, 4): e(f'ds_read_b32 v{20+b}, v{20+b}')
    e('''v_cmp_gt_u32 vcc, 32, v1
v_sub_f32 v28, 0, v28
v_cndmask_b32 v28, 0, v28, vcc
v_cndmask_b32 v29, 0, v29, vcc
v_and_b32 v26, 0xffff0000, v28
v_sub_f32 v27, v28, v26
v_cvt_pk_bf16_f32 v128, v26, v26
v_and_b32 v26, 0xffff0000, v29
v_cvt_pk_bf16_f32 v129, v27, v26
v_sub_f32 v27, v29, v26
v_cvt_pk_bf16_f32 v130, v27, 0
v_mov_b32 v131, 0
v_mul_f32 v30, v30, v30
s_waitcnt lgkmcnt(0)''')
    for b in range(4):
        F = WF + 4*b
        e(f'''v_and_b32 v26, 0xffff0000, v{20+b}
v_sub_f32 v27, v{20+b}, v26
v_cvt_pk_bf16_f32 v{F}, v26, v27
v_lshrrev_b32 v26, 16, v26
v_lshl_or_b32 v{F+1}, v{240+b}, 16, v26
v_mov_b32 v{F+2}, v{240+b}
v_mov_b32 v{F+3}, 0''')
        acc = vr(ACC+16*b, 16)
        e(f'{MF} {acc}, {vr(F,4)}, v[128:131], {acc}')
    e(f's_mul_i32 s56, s19, 114688\ns_add_u32 s56, s56, {WS_H1}\ns_lshl_b32 s57, s18, 13\ns_add_u32 s56, s56, s57')
    for b in range(4):
        A = ACC + 16*b
        e(f's_xor_b32 s57, s16, {b}\ns_lshl_b32 s57, s57, 11\ns_add_u32 s57, s57, s56')
        for p in range(8):
            e(f'''v_max_f32 v{A+2*p}, 0, v{A+2*p}
v_max_f32 v{A+2*p+1}, 0, v{A+2*p+1}
v_pk_mul_f32 {vr(A+2*p,2)}, {vr(A+2*p,2)}, {vr(A+2*p,2)}
v_pk_mul_f32 {vr(A+2*p,2)}, {vr(A+2*p,2)}, v[30:31] op_sel_hi:[1,0]
v_cvt_pk_bf16_f32 v{A+p}, v{A+2*p}, v{A+2*p+1}''')
        for t in range(2):
            e(f'buffer_store_dwordx4 {vr(A+4*t,4)}, v2, s[12:15], s57 offen offset:{1024*t}')
    e('L4_end:')
    return e, dict(grid=224, lds=CSB + 512, vgpr=248, accum=248)

def build(kernels, path):
    head = open(f'cdna_kernels/{NAME}.s.ref').read().split('\n')
    out = [l for l in head[:12]]
    for name, (e, cfg) in kernels:
        out.append(f"; @launch kernel={name} grid=({cfg['grid']},1,1) block=(256,1,1) lds={cfg['lds']}")
    out.append('.amdgcn_target "amdgcn-amd-amdhsa--gfx950"\n.text')
    seen = []
    for name, (e, cfg) in kernels:
        if name in seen: continue
        seen.append(name)
        e.fix('-v' in sys.argv)
        out.append(f'.globl {name}\n.p2align 8\n.type {name},@function\n{name}:')
        out.append(e.text() + '    s_endpgm')
    out.append('.section .rodata,"a"')
    seen = []
    for name, (e, cfg) in kernels:
        if name in seen: continue
        seen.append(name)
        out.append(f""".p2align 6
.amdhsa_kernel {name}
  .amdhsa_next_free_vgpr {cfg['vgpr']}
  .amdhsa_next_free_sgpr 102
  .amdhsa_accum_offset {cfg['accum']}
  .amdhsa_group_segment_fixed_size 0
  .amdhsa_kernarg_size 88
  .amdhsa_user_sgpr_count 2
  .amdhsa_user_sgpr_kernarg_segment_ptr 1
  .amdhsa_system_sgpr_workgroup_id_x 1
.end_amdhsa_kernel""")
    open(path, 'w').write('\n'.join(out) + '\n')

if __name__ == '__main__':
    ks = [('qkv_kernel', k_qkv()), ('attn_kernel', k_attn()), ('wo_kernel', k_ksplit('wo')), ('ffn1_kernel', k_ffn1()), ('ffn2_kernel', k_ksplit('w2'))]
    build(ks, f'cdna_kernels/{NAME}.s')
```

```python
import re

REG = re.compile(r'^(-?)(abs\()?\|?([vas])(?:\[(\d+):(\d+)\]|(\d+))\|?\)?$')
TRANS = ('v_exp_f32', 'v_log_f32', 'v_rcp_f32', 'v_rsq_f32', 'v_sqrt_f32', 'v_sin_f32', 'v_cos_f32', 'v_rcp_iflag_f32')


def regs_of(op):
    op = op.strip()
    if op in ('vcc', 'vcc_hi', 'vcc_lo'):
        return {('s', 'vcc')}
    if op == 'exec':
        return {('s', 'exec')}
    if op == 'm0':
        return {('s', 'm0')}
    m = REG.match(op)
    if not m:
        return set()
    k = m.group(3)
    if m.group(6) is not None:
        return {(k, int(m.group(6)))}
    return {(k, i) for i in range(int(m.group(4)), int(m.group(5)) + 1)}


class Ins:
    def __init__(self, text):
        self.text = text
        t = text.split(';')[0].strip()
        self.label = t.endswith(':')
        self.directive = t.startswith('.') and not self.label
        self.empty = (t == '')
        self.op = ''
        self.w = set(); self.r = set()
        self.kind = None
        self.states = 1
        if self.label or self.directive or self.empty:
            self.states = 0
            return
        parts = t.split(None, 1)
        op = self.op = parts[0]
        rest = parts[1] if len(parts) > 1 else ''
        ops = [o.strip() for o in rest.split(',')]
        last = ops[-1].split()
        mods = last[1:] if last else []
        if last:
            ops[-1] = last[0]
        self.ops = ops; self.mods = mods
        R = [regs_of(o) for o in ops]
        U = lambda l: set().union(*l) if l else set()
        if op == 's_nop':
            self.kind = 'nop'; self.states = int(ops[0], 0) + 1
        elif op.startswith('v_mfma') or op.startswith('v_smfmac'):
            self.kind = 'mfma'
            self.passes = 8 if '32x32' in op else 4
            self.w = R[0]
            self.ab = R[1] | R[2]
            if op.startswith('v_smfmac'):
                self.c = R[0]; self.ab |= R[3]
            else:
                self.c = R[3]
            self.r = self.ab | self.c
        elif op.startswith('v_'):
            self.kind = 'valu'
            base = op.replace('_e32', '').replace('_e64', '')
            self.trans = base in TRANS
            self.dl = base.startswith('v_dot')
            if base.startswith('v_permlane') and 'swap' in base:
                self.w = R[0] | R[1]; self.r = R[0] | R[1]
            elif base.startswith(('v_add_co', 'v_sub_co', 'v_addc_co', 'v_subb_co', 'v_subrev_co')):
                self.w = R[0] | R[1]; self.r = U(R[2:])
            else:
                self.w = R[0]; self.r = U(R[1:])
                if base.startswith(('v_fmac', 'v_dot2c', 'v_writelane')) or 'UNUSED_PRESERVE' in t:
                    self.r |= R[0]
            self.sel = ('sdwa' in op) or any(m.startswith('op_sel:') and not base.startswith('v_pk') for m in mods)
            self.dpp = any(m.startswith(('row_', 'quad_perm', 'wave_')) for m in mods) or 'dpp' in op
        elif op.startswith('ds_'):
            self.kind = 'ds'
            if op.startswith(('ds_read', 'ds_bpermute', 'ds_permute', 'ds_swizzle')):
                self.w = R[0]; self.r = U(R[1:])
            else:
                self.r = U(R)
        elif op.startswith(('buffer_', 'global_')):
            self.kind = 'vmem'
            self.lds = ('lds' in mods) or ('_lds_' in op)
            self.wide = False
            if self.lds:
                self.r = U(R) | {('s', 'm0')}
            elif 'load' in op:
                self.w = R[0]; self.r = U(R[1:])
            elif 'atomic' in op:
                self.r = U(R)
                if 'sc0' in mods: self.w = R[0]
            else:
                self.r = U(R)
                if op.endswith(('x3', 'x4')):
                    self.wide = True
                    self.data = R[0] if op.startswith('buffer_') else R[1]
        elif op.startswith('s_'):
            self.kind = 'salu'
            if op.startswith(('s_cmp', 's_cbranch', 's_branch', 's_waitcnt', 's_barrier', 's_endpgm', 's_setprio', 's_sleep', 's_bitcmp')):
                self.r = U(R)
            else:
                self.w = R[0] if R else set(); self.r = U(R[1:])
                if 'saveexec' in op: self.w |= {('s', 'exec')}
        else:
            raise ValueError('unknown instruction: ' + text)


def vec(s):
    return {x for x in s if x[0] in 'va'}


def sca(s):
    return {x for x in s if x[0] == 's'}


def need(p, c):
    n = 0
    if p.kind == 'mfma':
        big = {8: 12, 4: 8}[p.passes]
        if c.kind == 'mfma':
            if p.w & c.ab: n = max(n, big)
            if p.w & c.c and not (p.w == c.c and p.passes == c.passes): n = max(n, big - 2)
            if p.w & c.w and not (p.w & c.c): n = max(n, big - 2 if p.w != c.w else 0)
        elif c.kind in ('valu', 'ds', 'vmem'):
            if p.w & (c.r | c.w): n = max(n, big)
            if c.kind == 'valu' and (p.c & c.w): n = max(n, {8: 7, 4: 3}[p.passes])
    elif p.kind == 'valu':
        vw = vec(p.w); sw = sca(p.w)
        if c.kind == 'mfma' and vw & c.r: n = max(n, 3 if p.dl else 2)
        if c.kind == 'valu':
            if p.trans and not c.trans and vw & c.r: n = max(n, 1)
            if p.dl and vw & (c.r | c.w):
                same_c = (c.op == p.op and not (vw & set().union(*[regs_of(o) for o in c.ops[1:3]])))
                if not same_c: n = max(n, 3)
            if c.op.startswith('v_permlane') and vw & c.r: n = max(n, 2)
            if c.op.startswith(('v_readlane', 'v_readfirstlane')) and vw & c.r: n = max(n, 1)
            if c.dpp and vw & c.r: n = max(n, 2)
            if p.sel and vw & (c.r | c.w): n = max(n, 1)
            if sw & c.r:
                n = max(n, 4 if c.op.startswith(('v_readlane', 'v_writelane')) else 2)
        if c.kind in ('ds', 'vmem') and p.dl and vw & c.r: n = max(n, 3)
        if c.kind in ('ds', 'vmem') and p.trans and vw & c.r: n = max(n, 1)
        if c.kind == 'vmem' and sw & c.r: n = max(n, 5)
        if c.kind == 'salu' and sw & c.r and not c.op.startswith('s_cbranch'): n = max(n, 1)
    elif p.kind == 'vmem':
        if p.wide and p.data & c.w: n = max(n, 2)
    elif p.kind == 'salu':
        if ('s', 'm0') in p.w and ((c.kind == 'vmem' and c.lds) or (c.kind == 'ds' and 'addtid' in c.op)): n = max(n, 1)
    return n


class Asm:
    def __init__(self):
        self.ins = []
        self.nops = 0

    def __call__(self, text):
        for line in text.split('\n'):
            if line.strip():
                self.ins.append(Ins(line.strip()))

    def fix(self, verbose=False):
        out = []
        for c in self.ins:
            if c.kind is not None and c.kind != 'nop':
                dist = 0; short = 0
                for p in reversed(out):
                    if dist >= 12: break
                    if p.kind is not None and p.kind != 'nop':
                        short = max(short, need(p, c) - dist)
                    dist += p.states
                if short > 0:
                    out.append(Ins(f's_nop {short-1}'))
                    self.nops += 1
                    if verbose: print('nop', short, 'before', c.text)
            out.append(c)
        self.ins = out

    def text(self):
        return '\n'.join((i.text if (i.label or i.directive) else '    ' + i.text) for i in self.ins) + '\n'


def vr(b, n=1, k='v'):
    return f'{k}{b}' if n == 1 else f'{k}[{b}:{b+n-1}]'


def ar(b, n=1):
    return vr(b, n, 'a')


def sr(b, n=1):
    return vr(b, n, 's')


def interleave(main, fill, per=None):
    out = []
    n = len(main); k = len(fill); j = 0
    for i, m in enumerate(main):
        out.append(m)
        upto = (k * (i + 1) + n - 1) // n if per is None else min(k, j + per[i])
        out += fill[j:upto]; j = upto
    out += fill[j:]
    return out


class VM:
    def __init__(self, e):
        self.e = e; self.seq = []; self.done = 0

    def op(self, text, tag):
        self.e(text); self.seq.append(tag)

    def count(self, tag):
        idx = [i for i, t in enumerate(self.seq) if t == tag]
        assert idx, tag
        return idx[-1], len(self.seq) - 1 - idx[-1]

    def wait(self, tag, extra=''):
        i, n = self.count(tag)
        if i < self.done:
            if extra: self.e('s_waitcnt ' + extra)
            return
        self.done = i + 1
        self.e(f's_waitcnt vmcnt({min(n, 63)}) {extra}')

    def drain(self):
        self.done = len(self.seq)
```

```python
import sys, math, struct
from asmlib import *

NAME = 'sequential_preLN__mha_block__dense_activation_squared_relu__prompt'
WS_QK, WS_V, WS_O, WS_H, WS_H1 = 0, 0x400000, 0x600000, 0x800000, 0xA00000
WS_BYTES = 0x1200000
MF = 'v_mfma_f32_32x32x16_bf16'
SM = 'v_smfmac_f32_32x32x32_bf16'
def f32(x): return '0x%08x' % struct.unpack('<I', struct.pack('<f', x))[0]
QSCALE = math.log2(math.e) / math.sqrt(28.0)

def srd(e, d, src, nbytes):
    e(f's_mov_b32 s{d}, s{src}\ns_mov_b32 s{d+1}, s{src+1}\ns_mov_b32 s{d+2}, {nbytes}\ns_mov_b32 s{d+3}, 0x00020000')

def swap23(e, d, s, t):
    e(f'''v_and_b32 v{d}, 0x33, v{s}
v_and_b32 v{t}, 4, v{s}
v_lshl_or_b32 v{d}, v{t}, 1, v{d}
v_lshrrev_b32 v{t}, 1, v{s}
v_and_or_b32 v{d}, v{t}, 4, v{d}''')

def halves_sum(e, r, t):
    e(f'v_mov_b32 v{t}, v{r}\nv_permlane32_swap_b32 v{r}, v{t}\nv_add_f32 v{r}, v{r}, v{t}')

def tr_lane_part(e, d, lane, pitch, t0, t1):
    e(f'''v_bfe_u32 v{t0}, v{lane}, 2, 2
v_lshrrev_b32 v{t1}, 5, v{lane}
v_lshl_add_u32 v{t0}, v{t1}, 3, v{t0}
v_mul_u32_u24 v{d}, {pitch}, v{t0}
v_bfe_u32 v{t0}, v{lane}, 4, 1
v_lshl_add_u32 v{d}, v{t0}, 5, v{d}
v_and_b32 v{t0}, 1, v{lane}
v_lshl_add_u32 v{d}, v{t0}, 4, v{d}
v_bfe_u32 v{t0}, v{lane}, 1, 1
v_lshl_add_u32 v{d}, v{t0}, 3, v{d}''')

def ln_stats(e, vs, vq, t, mean, rstd, sig=None):
    halves_sum(e, vs, t); halves_sum(e, vq, t)
    e(f'''v_mul_f32 v{mean}, {f32(1/448)}, v{vs}
v_mul_f32 v{t}, v{mean}, v{mean}
v_mov_b32 v{rstd}, {f32(1/448)}
v_fma_f32 v{t}, v{vq}, v{rstd}, -v{t}
v_max_f32 v{t}, 0, v{t}
v_add_f32 v{t}, {f32(1e-5)}, v{t}
v_rsq_f32 v{rstd}, v{t}''')
    if sig is not None:
        e(f'v_mul_f32 v{sig}, v{t}, v{rstd}')

def rot_offsets(e, srot, n, dsts_muls_bases, st):
    for it in range(n):
        for dst, mul, base in dsts_muls_bases:
            e(f's_mul_i32 s{dst+it}, s{srot}, {mul}')
            if base is not None:
                e(f's_add_u32 s{dst+it}, s{dst+it}, s{base}')
        if it < n - 1:
            e(f's_add_u32 s{srot}, s{srot}, 1\ns_cmp_eq_u32 s{srot}, {n}\ns_cselect_b32 s{srot}, 0, s{srot}')

STAMP = '--stamp' in sys.argv
WS_ST = 0x1100000
def stamp(e, i):
    if STAMP:
        e(f's_memtime s[{84+2*i}:{85+2*i}]')
        if i == 0: e('s_memrealtime s[98:99]')
def stamp_out(e, kid, n, drain=True):
    if not STAMP: return
    if drain: e('s_waitcnt vmcnt(0)')
    stamp(e, n-1)
    e('s_memrealtime s[100:101]\ns_waitcnt lgkmcnt(0)')
    e(f's_lshl_b32 s3, s2, 2\ns_add_u32 s3, s3, s16\ns_lshl_b32 s3, s3, 6\ns_add_u32 s3, s3, {WS_ST + kid*65536}\nv_mov_b32 v1, 0')
    for i in range(n):
        e(f'v_mov_b32 v0, s{84+2*i}\nbuffer_store_dword v0, v1, s[12:15], s3 offen offset:{4*i}')
    e('v_mov_b32 v0, s98\nbuffer_store_dword v0, v1, s[12:15], s3 offen offset:56\nv_mov_b32 v0, s100\nbuffer_store_dword v0, v1, s[12:15], s3 offen offset:60')

def k_qkv():
    e = Asm()
    XR = 86016; CSB = XR + 65536
    stamp(e, 0)
    e('''s_cmp_ge_u32 s2, 224
s_cbranch_scc1 L1_end
s_load_dwordx4 s[40:43], s[0:1], 0
s_load_dwordx2 s[44:45], s[0:1], 80
v_lshrrev_b32 v2, 6, v0
v_and_b32 v1, 63, v0
v_readfirstlane_b32 s16, v2
s_and_b32 s46, s2, 7
s_lshr_b32 s47, s2, 3
s_mul_i32 s48, s47, 37
s_lshr_b32 s48, s48, 8         ; rb' = i/7
s_mul_i32 s49, s48, 7
s_sub_u32 s49, s47, s49        ; cw'
s_lshr_b32 s17, s46, 1
s_lshl_b32 s17, s17, 2
s_add_u32 s17, s17, s48        ; rb
s_and_b32 s18, s46, 1
s_mul_i32 s18, s18, 7
s_add_u32 s18, s18, s49        ; cw
s_lshl_b32 s50, s48, 1
s_add_u32 s50, s50, s49
s_cmp_ge_u32 s50, 7
s_cselect_b32 s51, 7, 0
s_sub_u32 s50, s50, s51        ; rot
s_lshl_b32 s19, s17, 2
s_add_u32 s19, s19, s16        ; tt
''')
    e(f'''s_mul_i32 s52, s19, {32*896}
s_mul_i32 s53, s16, {16*2688}
s_mul_i32 s54, s18, 192
s_add_u32 s53, s53, s54
s_lshl_b32 s36, s16, 14
s_add_u32 s36, s36, {XR}
s_mul_i32 s37, s16, 3072''')
    rot_offsets(e, 50, 7, [(20, 128, 52), (28, 64*2688, 53)], 55)
    e('''v_lshrrev_b32 v24, 3, v1
v_mul_u32_u24 v24, 896, v24
v_lshrrev_b32 v25, 4, v1
v_and_b32 v26, 7, v1
v_xor_b32 v25, v25, v26
v_lshl_add_u32 v2, v25, 4, v24
v_xor_b32 v3, 64, v2
v_add_u32 v3, 6144, v3
v_add_u32 v4, 12288, v2
v_add_u32 v5, 12288, v3''')
    for j in range(3):
        e(f'''v_add_u32 v24, {64*j}, v1
v_mul_u32_u24 v25, 5462, v24
v_lshrrev_b32 v25, 16, v25
v_mul_u32_u24 v26, {2688-192}, v25
v_lshl_add_u32 v{6+j}, v1, 4, v26''')
    e('s_waitcnt lgkmcnt(0)')
    srd(e, 4, 40, 2048*896); srd(e, 8, 42, 448*2688); srd(e, 12, 44, WS_BYTES)

    def loads(it):
        l = [f's_add_u32 m0, s36, {(it&3)*4096}']
        l += [f'buffer_load_dwordx4 v{2+i}, s[4:7], s{20+it} offen offset:{1024*i} lds' for i in range(4)]
        l += [f's_add_u32 m0, s37, {it*12288}']
        l += [f'buffer_load_dwordx4 v{6+j}, s[8:11], s{28+it} offen offset:{1024*j} lds' for j in range(3)]
        return l
    stamp(e, 1)
    for it in range(3):
        e('\n'.join(loads(it)))
    e('''v_and_b32 v24, 31, v1
v_lshrrev_b32 v25, 1, v24
v_lshrrev_b32 v26, 5, v1
v_xor_b32 v25, v25, v26
v_and_b32 v25, 7, v25
v_lshlrev_b32 v25, 4, v25
v_lshl_add_u32 v25, v24, 7, v25
v_add_u32 v25, s36, v25''')
    tr_lane_part(e, 27, 1, 192, 24, 26)
    for kk in range(4):
        e(f'''s_xor_b32 s55, s16, {kk}
s_lshl_b32 s56, s55, 5
s_mul_i32 s57, s55, 3072
v_xor_b32 v{9+kk}, s56, v25
v_add_u32 v{13+kk}, s57, v27
v_add_u32 v{112+kk}, {5*12288}, v{13+kk}''')
    e('v_mov_b32 v17, 0x3f803f80')
    for r in range(18, 24): e(f'v_mov_b32 v{r}, 0')
    e('s_cmp_lt_u32 s18, 9\ns_cbranch_scc1 L1_qqq\ns_cmp_eq_u32 s18, 9\ns_cbranch_scc1 L1_qvv')

    ACC, WF, XF = 32, 80, 104
    def reads(s):
        it, kk = divmod(s, 4); b = s & 1
        l = [f'ds_read_b128 {vr(XF+4*b,4)}, v{9+kk} offset:{(it&3)*4096}']
        base, off = (13+kk, it*12288) if it < 5 else (112+kk, (it-5)*12288)
        for j in range(3):
            for rd in range(2):
                l.append(f'ds_read_b64_tr_b16 {vr(WF+12*b+4*j+2*rd,2)}, v{base} offset:{off + rd*768 + j*64}')
        return l
    def variant(types, lab):
        if lab: e(f'{lab}:')
        e('s_waitcnt vmcnt(14)\ns_barrier')
        stamp(e, 2)
        e('\n'.join(reads(0)))
        for s in range(28):
            it, kk = divmod(s, 4); b = s & 1
            x = vr(XF+4*b, 4)
            mf = []
            for j in range(3):
                w = vr(WF+12*b+4*j, 4); a = vr(ACC+16*j, 16); c = a if s else '0'
                mf.append(f'{MF} {a}, {w}, {x}, {c}' if types[j] == 'q' else f'{MF} {a}, {x}, {w}, {c}')
            pre = []
            if kk == 3 and s < 27:
                nxt = it + 1
                inflight = 7 * max(0, min(6, it + 3) - nxt)
                pre = [f's_waitcnt vmcnt({inflight})', 's_barrier']
            rd = reads(s+1) if s < 27 else []
            dots = []
            for r in range(4):
                dots += [f'v_dot2c_f32_bf16 v18, v{XF+4*b+r}, v17', f'v_dot2c_f32_bf16 v19, v{XF+4*b+r}, v{XF+4*b+r}']
            if kk == 0:
                for r in range(4):
                    for j in range(3):
                        dots.append(f'v_dot2c_f32_bf16 v{20+j}, v{WF+12*b+4*j+r}, v17')
            ld = []
            if it + 3 <= 6:
                L = loads(it + 3)
                ld = {0: [], 1: L[:5], 2: L[5:], 3: []}[kk]
            e('s_waitcnt lgkmcnt(0)')
            e(mf[0]); e('\n'.join(pre + rd[:4]))
            e(mf[1]); e('\n'.join(rd[4:] + ld[:3] + dots[:len(dots)//2]))
            e(mf[2]); e('\n'.join(ld[3:] + dots[len(dots)//2:]))
        stamp(e, 3)
        for j in range(3): halves_sum(e, 20+j, 24)
        e(f'''v_and_b32 v24, 31, v1
v_lshlrev_b32 v24, 4, v24
v_add_u32 v24, {CSB}, v24
s_lshl_b32 s55, s16, 9
v_add_u32 v25, s55, v24
ds_write_b128 v25, v[20:23]''')
        ln_stats(e, 18, 19, 26, 28, 30)
        e('s_waitcnt lgkmcnt(0)\ns_barrier')
        for w in range(4): e(f'ds_read_b128 {vr(80+4*w,4)}, v24 offset:{512*w}')
        e('''v_cmp_gt_u32 vcc, 32, v1
v_sub_f32 v28, 0, v28
v_cndmask_b32 v28, 0, v28, vcc
v_and_b32 v26, 0xffff0000, v28
v_sub_f32 v27, v28, v26
v_cvt_pk_bf16_f32 v104, v26, v26
v_cvt_pk_bf16_f32 v105, v27, 0
v_mov_b32 v106, 0
v_mov_b32 v107, 0''')
        if 'v' in types:
            e(f'''v_cndmask_b32 v29, 0, v30, vcc
v_and_b32 v26, 0xffff0000, v29
v_sub_f32 v27, v29, v26
v_cvt_pk_bf16_f32 v108, v26, v27
v_mov_b32 v109, 0
v_mov_b32 v110, 0
v_mov_b32 v111, 0
v_mov_b32 v116, v17
v_mov_b32 v117, v17
v_mov_b32 v118, v17
v_mov_b32 v119, v17
{MF} v[128:143], v[108:111], v[116:119], 0''')
        e('s_waitcnt lgkmcnt(0)')
        for j in range(3):
            e(f'''v_add_f32 v{80+j}, v{80+j}, v{84+j}
v_add_f32 v{88+j}, v{88+j}, v{92+j}
v_add_f32 v{80+j}, v{80+j}, v{88+j}
v_and_b32 v26, 0xffff0000, v{80+j}
v_sub_f32 v27, v{80+j}, v26
v_cvt_pk_bf16_f32 v{144+4*j}, v26, v27
v_lshrrev_b32 v{145+4*j}, 16, v{80+j}
v_mov_b32 v{146+4*j}, 0
v_mov_b32 v{147+4*j}, 0''')
            a = vr(ACC+16*j, 16); w = vr(144+4*j, 4)
            e(f'{MF} {a}, {w}, v[104:107], {a}' if types[j] == 'q' else f'{MF} {a}, v[104:107], {w}, {a}')
        e('v_lshlrev_b32 v24, 4, v1\ns_mul_i32 s56, s18, 3')
        if 'v' in types:
            e('v_and_b32 v26, 31, v1')
            swap23(e, 25, 26, 27)
            e('v_and_b32 v29, 32, v1\nv_lshlrev_b32 v29, 4, v29')
        for j in range(3):
            A = ACC + 16*j
            if types[j] == 'q':
                e(f'''s_add_u32 s57, s56, {j}
s_cmp_lt_u32 s57, 14
s_cselect_b32 s58, {f32(QSCALE)}, 1.0
v_mul_f32 v120, s58, v30
s_lshl_b32 s57, s57, 11
s_mul_i32 s58, s19, 57344
s_add_u32 s57, s57, s58''')
                for p in range(8):
                    e(f'v_pk_mul_f32 {vr(A+2*p,2)}, {vr(A+2*p,2)}, v[120:121] op_sel_hi:[1,0]')
                    e(f'v_cvt_pk_bf16_f32 v{A+p}, v{A+2*p}, v{A+2*p+1}')
                for t in range(2):
                    e(f'buffer_store_dwordx4 {vr(A+4*t,4)}, v24, s[12:15], s57 offen offset:{1024*t}')
            else:
                e(f'''s_add_u32 s57, s56, {j}
s_sub_u32 s57, s57, 28
s_lshl_b32 s57, s57, 5
v_add_u32 v26, s57, v25
v_mul_u32_u24 v27, 2341, v26
v_lshrrev_b32 v27, 16, v27
v_mul_u32_u24 v27, {131072-448}, v27
v_lshl_add_u32 v27, v26, 4, v27
v_add_u32 v{122+j}, v27, v29
s_lshl_b32 s57, s19, 11
s_add_u32 s57, s57, {WS_V}''')
                for p in range(8):
                    e(f'v_pk_mul_f32 {vr(A+2*p,2)}, {vr(A+2*p,2)}, {vr(128+2*p,2)}')
                    e(f'v_cvt_pk_bf16_f32 v{A+p}, v{A+2*p}, v{A+2*p+1}')
                for t in range(2):
                    e(f'buffer_store_dwordx4 {vr(A+4*t,4)}, v{122+j}, s[12:15], s57 offen offset:{1024*t}')
        if types == 'qvv':
            e('''v_lshrrev_b32 v26, 2, v1
v_lshlrev_b32 v26, 17, v26
v_and_b32 v27, 3, v1
v_lshl_add_u32 v26, v27, 9, v26
buffer_store_dwordx4 v[116:119], v26, s[12:15], s57 offen offset:448''')
        stamp(e, 4)
        stamp_out(e, 0, 6)
        e('s_endpgm')
    variant('vvv', None); variant('qqq', 'L1_qqq'); variant('qvv', 'L1_qvv')
    e('L1_end:')
    return e, dict(grid=224, lds=CSB + 2048, vgpr=160, accum=160)

def k_attn():
    e = Asm()
    Q, O, S, NM = 16, 48, 112, 160
    FLAG = 49152; MXB = FLAG + 64
    stamp(e, 0)
    e('''s_cmp_ge_u32 s2, 256
s_cbranch_scc1 L2_end
s_load_dwordx2 s[44:45], s[0:1], 80
v_lshrrev_b32 v2, 6, v0
v_and_b32 v1, 63, v0
v_readfirstlane_b32 s16, v2
s_and_b32 s46, s2, 7
s_bfe_u32 s47, s2, 0x10003
s_lshr_b32 s17, s2, 4          ; qb
s_lshl_b32 s18, s46, 1
s_add_u32 s18, s18, s47        ; head
s_mul_i32 s19, s46, 7
s_mul_i32 s48, s47, 3
s_add_u32 s19, s19, s48
s_lshl_b32 s19, s19, 9         ; c0*512
s_lshl_b32 s49, s16, 4
''')
    e(f'''s_add_u32 s50, s19, {WS_QK + 56*512}
s_lshl_b32 s51, s18, 17
s_add_u32 s51, s51, {WS_V}''')
    for j in range(16):
        e(f'''s_add_u32 s48, s17, {j}
s_and_b32 s48, s48, 15
s_add_u32 s48, s48, s49
s_mul_i32 s{52+j}, s48, 57344
s_add_u32 s{52+j}, s{52+j}, s50
s_lshl_b32 s48, s48, 11
s_add_u32 s{68+j}, s48, s51''')
    for s in range(4):
        e(f'''s_xor_b32 s48, s16, {3-s}
s_lshl_b32 s{20+s}, s17, 2
s_add_u32 s48, s48, s{20+s}
s_mul_i32 s{20+s}, s48, 57344
s_add_u32 s{20+s}, s{20+s}, s19''')
    swap23(e, 3, 1, 4)
    e('''v_lshlrev_b32 v3, 4, v3
v_lshlrev_b32 v2, 4, v1        ; lane*16
s_mov_b32 s30, 0
s_waitcnt lgkmcnt(0)''')
    srd(e, 12, 44, WS_BYTES)
    for r in range(64): e(f'v_mov_b32 v{NM+r}, 0') if False else None
    def kvloads(j):
        return [f'buffer_load_dwordx4 {ar(16*j,4)}, v3, s[12:15], s{52+j} offen',
                f'buffer_load_dwordx4 {ar(16*j+4,4)}, v3, s[12:15], s{52+j} offen offset:1024',
                f'buffer_load_dwordx4 {ar(16*j+8,4)}, v3, s[12:15], s{68+j} offen',
                f'buffer_load_dwordx4 {ar(16*j+12,4)}, v3, s[12:15], s{68+j} offen offset:1024']
    def qloads(s):
        return [f'buffer_load_dwordx4 {vr(Q+8*s+4*t,4)}, v2, s[12:15], s{20+s} offen offset:{1024*t}' for t in range(2)]
    PF = 3
    e('L2_restart:')
    stamp(e, 1)
    for s in range(4): e('\n'.join(qloads(s)))
    for j in range(PF): e('\n'.join(kvloads(j)))
    e('''v_cmp_gt_u32 vcc, 32, v1
s_cmp_eq_u32 s47, 0
s_cselect_b32 s48, -1, 0
v_cndmask_b32 v6, 0, -1, vcc
v_not_b32 v4, v6
v_or_b32 v4, s48, v4
s_not_b32 s48, s48
v_or_b32 v5, s48, v6
v_mov_b32 v7, 0xdddd''')
    for r in range(64): e(f'v_mov_b32 v{O+r}, 0')
    e('s_cmp_lg_u32 s30, 0\ns_cbranch_scc1 L2_havemax')
    for r in range(64): e(f'v_mov_b32 v{NM+r}, 0')
    e(f'v_mov_b32 v8, {FLAG}\nds_write_b32 v8, v{NM}')
    e('L2_havemax:')
    for s in range(3):
        e(f'''s_xor_b32 s48, s16, {3-s}
s_mul_i32 s48, s48, 12288
v_add_u32 v{9+s}, s48, v2''')
    e('s_mul_i32 s48, s16, 12288\nv_add_u32 v12, s48, v2')
    e(f's_waitcnt vmcnt({4*PF})')
    for s in range(4):
        e(f'''v_and_b32 v{Q+8*s}, v4, v{Q+8*s}
v_and_b32 v{Q+8*s+1}, v4, v{Q+8*s+1}
v_and_b32 v{Q+8*s+6}, v5, v{Q+8*s+6}
v_and_b32 v{Q+8*s+7}, v5, v{Q+8*s+7}''')
    steps = [(s, j) for j in range(16) for s in range(3)] + [(3, j) for j in range(16)]
    N = len(steps)
    def qk(i, t):
        s, j = steps[i]; d = vr(S + 16*(i % 3), 16)
        return f'{MF} {d}, {ar(16*j+4*t,4)}, {vr(Q+8*s+4*t,4)}, ' + (vr(NM+16*s, 16) if t == 0 else d)
    def pv(i, t):
        s, j = steps[i]
        return f'{SM} {vr(O+16*s,16)}, {ar(16*j+8+4*t,4)}, {vr(S+16*(i%3)+8*t,8)}, v7'
    extra = {}
    def add(i, sl, l): extra.setdefault((i, sl), []).extend(l)
    before = {}
    for j in range(16):
        i0 = 3*j
        if j + PF < 16:
            L = kvloads(j + PF)
            add(i0, 0, L[:1]); add(i0, 2, L[1:2]); add(i0+1, 0, L[2:3]); add(i0+1, 2, L[3:])
        if j + 1 < 16:
            issued = min(16, j + PF + 1)
            before[i0+2] = [f's_waitcnt vmcnt({4*(issued - (j+2))})']
    k = 0
    for s in range(3):
        for q in range(4):
            add(50 + k//2, 1 + 2*(k % 2) - 1, [f'ds_write_b128 v{9+s}, {vr(O+16*s+4*q,4)} offset:{s*4096 + q*1024}']); k += 1
    add(57, 0, ['s_waitcnt lgkmcnt(0)', 's_barrier'])
    k = 0
    for s in range(3):
        for q in range(4):
            add(58 + k//3, k % 3, [f'ds_read_b128 {vr(O+16*s+4*q,4)}, v12 offset:{s*4096 + q*1024}']); k += 1
    e(f's_waitcnt vmcnt({4*(PF-1)})')
    stamp(e, 2)
    e(qk(0, 0)); e(qk(0, 1))
    for i in range(N):
        if i == 48: stamp(e, 3)
        b = S + 16*(i % 3)
        mf = [qk(i+1, 0) if i+1 < N else None, qk(i+1, 1) if i+1 < N else None, pv(i-1, 1) if i > 0 else None, pv(i, 0)]
        e('\n'.join(before.get(i, [])))
        for sl in range(4):
            if mf[sl]: e(mf[sl])
            e('\n'.join(extra.get((i, sl), [])))
            for r in range(4): e(f'v_exp_f32 v{b+4*sl+r}, v{b+4*sl+r}')
    e(pv(N-1, 1))
    stamp(e, 4)
    e('s_waitcnt lgkmcnt(0)')
    for p in range(8): e(f'v_pk_add_f32 {vr(O+2*p,2)}, {vr(O+2*p,2)}, {vr(O+16+2*p,2)}')
    for p in range(8): e(f'v_pk_add_f32 {vr(O+2*p,2)}, {vr(O+2*p,2)}, {vr(O+32+2*p,2)}')
    for p in [6, 0, 1, 2, 3, 4, 5, 7]: e(f'v_pk_add_f32 {vr(O+2*p,2)}, {vr(O+2*p,2)}, {vr(O+48+2*p,2)}')
    e(f'''v_mov_b32 v13, v{O+12}
v_mov_b32 v14, v{O+12}
v_permlane32_swap_b32 v13, v14
v_rcp_f32 v224, v14
v_cmp_nle_f32 vcc, {f32(2.0**-40)}, v14
s_mov_b64 s[26:27], vcc
v_cmp_nge_f32 vcc, {f32(2.0**40)}, v14
s_lshl_b32 s48, s17, 2
s_add_u32 s48, s48, s16
s_lshl_b32 s48, s48, 4
s_add_u32 s48, s48, s18
s_lshl_b32 s48, s48, 11
s_add_u32 s48, s48, {WS_O}''')
    for p in range(8):
        e(f'v_pk_mul_f32 {vr(O+2*p,2)}, {vr(O+2*p,2)}, v[224:225] op_sel_hi:[1,0]')
        e(f'v_cvt_pk_bf16_f32 v{O+p}, v{O+2*p}, v{O+2*p+1}')
    e(f'''v_and_b32 v{O+6}, v6, v{O+6}
v_and_b32 v{O+7}, v6, v{O+7}
buffer_store_dwordx4 {vr(O,4)}, v2, s[12:15], s48 offen
buffer_store_dwordx4 {vr(O+4,4)}, v2, s[12:15], s48 offen offset:1024''')
    stamp(e, 5)
    stamp_out(e, 1, 7)
    e(f'''s_cmp_lg_u32 s30, 0
s_cbranch_scc1 L2_end
s_or_b64 vcc, vcc, s[26:27]
s_cbranch_scc0 L2_ok
ds_write_b32 v8, v7
L2_ok:
s_waitcnt lgkmcnt(0)
s_barrier
ds_read_b32 v13, v8
s_waitcnt lgkmcnt(0)
v_cmp_ne_u32 vcc, 0, v13
s_cbranch_vccz L2_end''')
    e('s_mov_b32 s30, 1\ns_waitcnt vmcnt(0)')
    for s in range(4):
        e(f'v_mov_b32 v{226+s}, 0xff800000')
        for j in range(16):
            d = vr(S, 16)
            e(f'{MF} {d}, {ar(16*j,4)}, {vr(Q+8*s,4)}, 0\n{MF} {d}, {ar(16*j+4,4)}, {vr(Q+8*s+4,4)}, {d}')
            for p in range(8): e(f'v_max3_f32 v{226+s}, v{S+2*p}, v{S+2*p+1}, v{226+s}')
        e(f'''v_mov_b32 v13, v{226+s}
v_permlane32_swap_b32 v{226+s}, v13
v_max_f32 v{226+s}, v{226+s}, v13
s_xor_b32 s48, s16, {3-s}
s_lshl_b32 s48, s48, 9
s_add_u32 s48, s48, {MXB}
v_and_b32 v13, 31, v1
v_lshlrev_b32 v13, 4, v13
v_add_u32 v{230+s}, s48, v13
s_lshl_b32 s48, s16, 2
v_add_u32 v13, s48, v{230+s}
ds_write_b32 v13, v{226+s}''')
    e('s_waitcnt lgkmcnt(0)\ns_barrier')
    for s in range(4):
        e(f'''ds_read_b128 {vr(S,4)}, v{230+s}
s_waitcnt lgkmcnt(0)
v_max3_f32 v13, v{S}, v{S+1}, v{S+2}
v_max_f32 v13, v13, v{S+3}''')
        for r in range(16): e(f'v_sub_f32 v{NM+16*s+r}, 0, v13')
    e('s_branch L2_restart')
    e('L2_end:')
    return e, dict(grid=256, lds=MXB + 2048, vgpr=512, accum=256)

def post_ids(e):
    e('''v_lshrrev_b32 v2, 6, v0
v_and_b32 v1, 63, v0
v_readfirstlane_b32 s16, v2
s_and_b32 s46, s2, 7
s_lshr_b32 s47, s2, 3
s_cmp_ge_u32 s47, 14
s_cselect_b32 s48, 1, 0        ; rb'
s_mul_i32 s49, s48, 14
s_sub_u32 s18, s47, s49        ; j
s_lshl_b32 s17, s46, 1
s_add_u32 s17, s17, s48        ; rb''')

def k_ksplit(which):
    e = Asm()
    wo = which == 'wo'
    P = 'L3' if wo else 'L5'
    NS = 8 if wo else 28
    stamp(e, 0)
    e(f's_cmp_ge_u32 s2, 224\ns_cbranch_scc1 {P}_end')
    if wo:
        e('s_load_dwordx2 s[40:41], s[0:1], 16\ns_load_dwordx2 s[42:43], s[0:1], 0')
    else:
        e('s_load_dwordx4 s[40:43], s[0:1], 48\ns_load_dwordx2 s[38:39], s[0:1], 64')
    e('s_load_dwordx2 s[44:45], s[0:1], 80')
    post_ids(e)
    apitch = 32768 if wo else 114688
    e(f'''s_and_b32 s50, s18, 1          ; th
s_lshr_b32 s51, s18, 1         ; fb
s_lshl_b32 s52, s17, 1
s_add_u32 s52, s52, s50
s_lshl_b32 s52, s52, 1
s_lshr_b32 s53, s16, 1
s_add_u32 s19, s52, s53
s_xor_b32 s54, s19, 1
s_mul_i32 s55, s16, {NS*1024}
s_add_u32 s55, s55, {WS_O if wo else WS_H1}
s_mul_i32 s56, s19, {apitch}
s_add_u32 s56, s56, s55
s_mul_i32 s57, s54, {apitch}
s_add_u32 s57, s57, s55
v_lshlrev_b32 v2, 4, v1
v_add_u32 v3, s56, v2
v_add_u32 v4, s57, v2
s_mul_i32 s58, s16, {(112 if wo else 448)*896}
s_lshl_b32 s59, s51, 7
s_add_u32 s58, s58, s59        ; W base
s_lshl_b32 s36, s16, 14
v_lshrrev_b32 v24, 3, v1
v_mul_u32_u24 v24, 896, v24
v_bfe_u32 v25, v1, 4, 1
v_lshlrev_b32 v25, 2, v25
v_and_b32 v26, 7, v1
v_xor_b32 v25, v25, v26
v_lshl_add_u32 v5, v25, 4, v24
v_add_u32 v6, 6144, v5''')
    if not wo:
        e('''s_lshl_b32 s60, s48, 1
s_add_u32 s60, s60, s50
s_lshl_b32 s60, s60, 1
s_add_u32 s60, s60, s51
s_cmp_ge_u32 s60, 7
s_cselect_b32 s61, 7, 0
s_sub_u32 s60, s60, s61''')
        rot_offsets(e, 60, 7, [(20, 4096, None), (28, 64*896, 58)], 61)
    e('s_waitcnt lgkmcnt(0)')
    srd(e, 8, 40, (448 if wo else 1792)*896); srd(e, 12, 44, WS_BYTES)
    if wo: srd(e, 4, 42, 2048*896)
    else: srd(e, 4, 42, 896); srd(e, 64, 38, 2048*896)
    ACC, AF, WF, RES = 32, 96, 160, 176
    def loads(s):
        slot = s & 7
        if wo:
            l = [f's_add_u32 m0, s36, {slot*2048}', f's_add_u32 s61, s58, {s*14336}']
            so = '0' if s < 4 else 's62'; off = (s & 3)*1024
        else:
            it, kk = divmod(s, 4)
            l = [f's_add_u32 m0, s36, {slot*2048}', f's_add_u32 s61, s{28+it}, {kk*14336}']
            so = f's{20+it}'; off = kk*1024
        l += ['buffer_load_dwordx4 v5, s[8:11], s61 offen lds', 'buffer_load_dwordx4 v6, s[8:11], s61 offen offset:1024 lds']
        l += [f'buffer_load_dwordx4 {vr(AF+8*slot+4*a,4)}, v{3+a}, s[12:15], {so} offen offset:{off}' for a in range(2)]
        return l
    D = 8 if wo else 4
    if wo: e('s_mov_b32 s62, 4096')
    stamp(e, 1)
    for s in range(D): e('\n'.join(loads(s)))
    e(f'''s_and_b32 s53, s16, 1
s_lshl_b32 s63, s51, 1
s_add_u32 s63, s63, s53
v_and_b32 v24, 31, v1
v_mul_u32_u24 v24, 896, v24
v_lshrrev_b32 v25, 5, v1
v_lshlrev_b32 v25, 4, v25
v_add_u32 v10, v24, v25
s_mul_i32 s68, s19, {32*896}
s_lshl_b32 s69, s63, 6
s_add_u32 s68, s68, s69
s_lshl_b32 s70, s63, 11
s_mul_i32 s71, s19, 28672
s_add_u32 s70, s70, s71
s_add_u32 s70, s70, {WS_H}''')
    def resloads():
        if wo:
            return [f'buffer_load_dwordx4 {vr(RES+4*t,4)}, v10, s[4:7], s68 offen offset:{32*t}' for t in range(2)]
        return [f'buffer_load_dwordx4 {vr(RES+4*t,4)}, v2, s[12:15], s70 offen offset:{1024*t}' for t in range(2)] + \
               [f'buffer_load_dwordx4 {vr(RES+8+4*t,4)}, v25, s[4:7], s69 offen offset:{32*t}' for t in range(2)]
    tr_lane_part(e, 7, 1, 128, 24, 26)
    e('''v_bfe_u32 v24, v1, 3, 1
v_xor_b32 v24, s53, v24
v_lshl_add_u32 v7, v24, 6, v7
v_add_u32 v7, s36, v7
v_xor_b32 v8, 64, v7''')
    def reads(s):
        b = s & 1
        if wo: off = (28*(s >> 1) + 16*(s & 1))*128
        else: off = (s & 7)*2048
        return [f'ds_read_b64_tr_b16 {vr(WF+8*b+4*f+2*rd,2)}, v{7+f} offset:{off + rd*512}' for f in range(2) for rd in range(2)]
    nres = len(resloads())
    def vm_after(s_needed, s_issued, res):
        return 4*(s_issued - s_needed) + (nres if res else 0)
    res_at = NS - D if not wo else -1
    if wo: e('\n'.join(resloads()))
    e(f's_waitcnt vmcnt({vm_after(0, D-1, wo)})')
    stamp(e, 2)
    e('\n'.join(reads(0)))
    for s in range(NS):
        b = s & 1; slot = s & 7
        mf = []
        for a in range(2):
            for f in range(2):
                acc = vr(ACC + 16*(2*a+f), 16)
                mf.append(f'{MF} {acc}, {vr(WF+8*b+4*f,4)}, {vr(AF+8*slot+4*a,4)}, ' + (acc if s else '0'))
        issued = min(NS-1, s + D - 1)
        e('s_waitcnt lgkmcnt(0)')
        e(mf[0])
        if s + 1 < NS:
            e(f's_waitcnt vmcnt({vm_after(s+1, issued, s > res_at)})')
            e('\n'.join(reads(s+1)))
        L = loads(s + D) if s + D < NS else (resloads() if s == res_at else [])
        e(mf[1]); e('\n'.join(L[:3])); e(mf[2]); e('\n'.join(L[3:5])); e(mf[3]); e('\n'.join(L[5:]))
    RB = 65536
    stamp(e, 3)
    for s in range(1, 4):
        e(f's_xor_b32 s61, s16, {s}\ns_mul_i32 s61, s61, 12288\ns_add_u32 s61, s61, {RB}\nv_add_u32 v{11+s}, s61, v2')
    e(f's_mul_i32 s61, s16, 12288\ns_add_u32 s61, s61, {RB}\nv_add_u32 v11, s61, v2')
    for s in range(1, 4):
        for q in range(4):
            e(f'ds_write_b128 v{11+s}, {vr(ACC+16*s+4*q,4)} offset:{(s-1)*4096 + q*1024}')
    e('s_waitcnt vmcnt(0)')
    for r in range(8):
        e(f'v_lshlrev_b32 v{AF+2*r}, 16, v{RES+r}\nv_and_b32 v{AF+2*r+1}, 0xffff0000, v{RES+r}')
    for p in range(8): e(f'v_pk_add_f32 {vr(ACC+2*p,2)}, {vr(ACC+2*p,2)}, {vr(AF+2*p,2)}')
    if not wo:
        for r in range(8):
            e(f'v_lshlrev_b32 v{AF+2*r}, 16, v{RES+8+r}\nv_and_b32 v{AF+2*r+1}, 0xffff0000, v{RES+8+r}')
        for p in range(8): e(f'v_pk_add_f32 {vr(ACC+2*p,2)}, {vr(ACC+2*p,2)}, {vr(AF+2*p,2)}')
    e('s_waitcnt lgkmcnt(0)\ns_barrier')
    for s in range(1, 4):
        for q in range(4):
            e(f'ds_read_b128 {vr(ACC+16*s+4*q,4)}, v11 offset:{(s-1)*4096 + q*1024}')
    for s in range(1, 4):
        e(f's_waitcnt lgkmcnt({4*(3-s)})')
        for p in range(8): e(f'v_pk_add_f32 {vr(ACC+2*p,2)}, {vr(ACC+2*p,2)}, {vr(ACC+16*s+2*p,2)}')
    for p in range(8): e(f'v_cvt_pk_bf16_f32 v{ACC+p}, v{ACC+2*p}, v{ACC+2*p+1}')
    for t in range(2):
        if wo: e(f'buffer_store_dwordx4 {vr(ACC+4*t,4)}, v2, s[12:15], s70 offen offset:{1024*t}')
        else: e(f'buffer_store_dwordx4 {vr(ACC+4*t,4)}, v10, s[64:67], s68 offen offset:{32*t}')
    stamp(e, 4)
    stamp_out(e, 2 if wo else 4, 6)
    e(f'{P}_end:')
    return e, dict(grid=224, lds=RB + 49152, vgpr=192, accum=192)

def k_ffn1():
    e = Asm()
    CSB = 114688
    stamp(e, 0)
    e('''s_cmp_ge_u32 s2, 224
s_cbranch_scc1 L4_end
s_load_dwordx4 s[40:43], s[0:1], 32
s_load_dwordx2 s[44:45], s[0:1], 80''')
    post_ids(e)
    e(f'''s_lshl_b32 s19, s17, 2
s_add_u32 s19, s19, s16        ; tt
s_mul_i32 s52, s19, 28672
s_add_u32 s52, s52, {WS_H}
s_mul_i32 s53, s16, {16*3584}
s_lshl_b32 s54, s18, 8
s_add_u32 s53, s53, s54
s_lshl_b32 s37, s16, 12
s_mul_i32 s50, s48, 3
s_add_u32 s50, s50, s18
s_mul_i32 s51, s50, 37
s_lshr_b32 s51, s51, 8
s_mul_i32 s51, s51, 7
s_sub_u32 s50, s50, s51        ; rot''')
    rot_offsets(e, 50, 7, [(20, 4096, 52), (28, 64*3584, 53)], 55)
    e('''v_lshlrev_b32 v2, 4, v1
v_lshrrev_b32 v24, 4, v1
v_lshlrev_b32 v25, 2, v24
v_and_b32 v26, 15, v1
v_xor_b32 v25, v25, v26
v_mul_u32_u24 v24, 3584, v24
v_lshl_add_u32 v3, v25, 4, v24''')
    for i in range(1, 4): e(f'v_add_u32 v{3+i}, {i*(4*3584-1024)}, v3')
    e('s_waitcnt lgkmcnt(0)')
    srd(e, 8, 40, 448*3584); srd(e, 4, 42, 3584); srd(e, 12, 44, WS_BYTES)
    ACC, WF, HF = 32, 96, 128
    def loads(it):
        l = [f's_add_u32 m0, s37, {it*16384}']
        l += [f'buffer_load_dwordx4 v{3+i}, s[8:11], s{28+it} offen offset:{1024*i} lds' for i in range(4)]
        l += [f'buffer_load_dwordx4 {vr(HF+16*it+4*kk,4)}, v2, s[12:15], s{20+it} offen offset:{1024*kk}' for kk in range(4)]
        return l
    stamp(e, 1)
    e('v_and_b32 v26, 31, v1')
    swap23(e, 25, 26, 27)
    e('v_lshlrev_b32 v25, 1, v25')
    for b in range(4):
        e(f's_xor_b32 s55, s16, {b}\ns_lshl_b32 s55, s55, 6\ns_add_u32 s55, s55, s54\nbuffer_load_ushort v{240+b}, v25, s[4:7], s55 offen')
    PF = 3
    for it in range(PF): e('\n'.join(loads(it)))
    tr_lane_part(e, 27, 1, 256, 24, 26)
    e('v_bfe_u32 v24, v1, 2, 2\nv_xor_b32 v24, s16, v24\nv_lshl_add_u32 v7, v24, 6, v27')
    for b in range(1, 4): e(f'v_xor_b32 v{7+b}, {64*b}, v7')
    for b in range(4): e(f'v_add_u32 v{11+b}, 0x10000, v{7+b}')
    e('v_mov_b32 v17, 0x3f803f80\nv_mov_b32 v18, 0\nv_mov_b32 v19, 0\nv_mov_b32 v20, 0')
    def reads(s):
        it, kk = divmod(s, 4); bb = s & 1
        base = 7 if it < 4 else 11
        off = (it & 3)*16384 + kk*4096
        return [f'ds_read_b64_tr_b16 {vr(WF+16*bb+4*f+2*rd,2)}, v{base+f} offset:{off + rd*1024}' for f in range(4) for rd in range(2)]
    e(f's_waitcnt vmcnt({8*(PF-1)})\ns_barrier')
    stamp(e, 2)
    e('\n'.join(reads(0)))
    for s in range(28):
        it, kk = divmod(s, 4); bb = s & 1
        h = HF + 4*s
        mf = []
        for f in range(4):
            acc = vr(ACC+16*f, 16)
            mf.append(f'{MF} {acc}, {vr(WF+16*bb+4*f,4)}, {vr(h,4)}, ' + (acc if s else '0'))
        pre = []
        if kk == 3 and s < 27:
            pre = [f's_waitcnt vmcnt({8*max(0, min(6, it+PF) - (it+1))})', 's_barrier']
        rd = reads(s+1) if s < 27 else []
        dots = []
        for r in range(4):
            dots += [f'v_dot2c_f32_bf16 v18, v{h+r}, v17', f'v_dot2c_f32_bf16 v19, v{h+r}, v{h+r}', f'v_dot2c_f32_bf16 v20, v{WF+16*bb+r}, v17']
        ld = []
        if it + PF <= 6:
            L = loads(it + PF)
            ld = {0: L[:3], 1: L[3:6], 2: L[6:], 3: []}[kk]
        e('s_waitcnt lgkmcnt(0)')
        e(mf[0]); e('\n'.join(pre + rd[:5]))
        e(mf[1]); e('\n'.join(rd[5:] + ld[:2] + dots[:2]))
        e(mf[2]); e('\n'.join(ld[2:] + dots[2:7]))
        e(mf[3]); e('\n'.join(dots[7:]))
    stamp(e, 3)
    halves_sum(e, 20, 24)
    e(f'''v_and_b32 v24, 31, v1
v_lshlrev_b32 v24, 2, v24
s_lshl_b32 s55, s16, 7
s_add_u32 s55, s55, {CSB}
v_add_u32 v24, s55, v24
ds_write_b32 v24, v20''')
    ln_stats(e, 18, 19, 26, 28, 30, 29)
    for b in range(1, 4): e(f'v_xor_b32 v{20+b}, {128*b}, v24')
    e('s_waitcnt lgkmcnt(0)\ns_barrier')
    for b in range(1, 4): e(f'ds_read_b32 v{20+b}, v{20+b}')
    e('''v_cmp_gt_u32 vcc, 32, v1
v_sub_f32 v28, 0, v28
v_cndmask_b32 v28, 0, v28, vcc
v_cndmask_b32 v29, 0, v29, vcc
v_and_b32 v26, 0xffff0000, v28
v_sub_f32 v27, v28, v26
v_cvt_pk_bf16_f32 v128, v26, v26
v_and_b32 v26, 0xffff0000, v29
v_cvt_pk_bf16_f32 v129, v27, v26
v_sub_f32 v27, v29, v26
v_cvt_pk_bf16_f32 v130, v27, 0
v_mov_b32 v131, 0
v_mul_f32 v30, v30, v30
s_waitcnt lgkmcnt(0)''')
    for b in range(4):
        F = WF + 4*b
        e(f'''v_and_b32 v26, 0xffff0000, v{20+b}
v_sub_f32 v27, v{20+b}, v26
v_cvt_pk_bf16_f32 v{F}, v26, v27
v_lshrrev_b32 v26, 16, v26
v_lshl_or_b32 v{F+1}, v{240+b}, 16, v26
v_mov_b32 v{F+2}, v{240+b}
v_mov_b32 v{F+3}, 0''')
        acc = vr(ACC+16*b, 16)
        e(f'{MF} {acc}, {vr(F,4)}, v[128:131], {acc}')
    e(f's_mul_i32 s56, s19, 114688\ns_add_u32 s56, s56, {WS_H1}\ns_lshl_b32 s57, s18, 13\ns_add_u32 s56, s56, s57')
    for b in range(4):
        A = ACC + 16*b
        e(f's_xor_b32 s57, s16, {b}\ns_lshl_b32 s57, s57, 11\ns_add_u32 s57, s57, s56')
        for p in range(8):
            e(f'''v_max_f32 v{A+2*p}, 0, v{A+2*p}
v_max_f32 v{A+2*p+1}, 0, v{A+2*p+1}
v_pk_mul_f32 {vr(A+2*p,2)}, {vr(A+2*p,2)}, {vr(A+2*p,2)}
v_pk_mul_f32 {vr(A+2*p,2)}, {vr(A+2*p,2)}, v[30:31] op_sel_hi:[1,0]
v_cvt_pk_bf16_f32 v{A+p}, v{A+2*p}, v{A+2*p+1}''')
        for t in range(2):
            e(f'buffer_store_dwordx4 {vr(A+4*t,4)}, v2, s[12:15], s57 offen offset:{1024*t}')
    stamp(e, 4)
    stamp_out(e, 3, 6)
    e('L4_end:')
    return e, dict(grid=224, lds=CSB + 512, vgpr=248, accum=248)

def build(kernels, path):
    head = open(f'cdna_kernels/{NAME}.s.ref').read().split('\n')
    out = [l for l in head[:12]]
    for name, (e, cfg) in kernels:
        out.append(f"; @launch kernel={name} grid=({cfg['grid']},1,1) block=(256,1,1) lds={cfg['lds']}")
    out.append('.amdgcn_target "amdgcn-amd-amdhsa--gfx950"\n.text')
    seen = []
    for name, (e, cfg) in kernels:
        if name in seen: continue
        seen.append(name)
        e.fix('-v' in sys.argv)
        out.append(f'.globl {name}\n.p2align 8\n.type {name},@function\n{name}:')
        out.append(e.text() + '    s_endpgm')
    out.append('.section .rodata,"a"')
    seen = []
    for name, (e, cfg) in kernels:
        if name in seen: continue
        seen.append(name)
        out.append(f""".p2align 6
.amdhsa_kernel {name}
  .amdhsa_next_free_vgpr {cfg['vgpr']}
  .amdhsa_next_free_sgpr 102
  .amdhsa_accum_offset {cfg['accum']}
  .amdhsa_group_segment_fixed_size 0
  .amdhsa_kernarg_size 88
  .amdhsa_user_sgpr_count 2
  .amdhsa_user_sgpr_kernarg_segment_ptr 1
  .amdhsa_system_sgpr_workgroup_id_x 1
.end_amdhsa_kernel""")
    open(path, 'w').write('\n'.join(out) + '\n')

if __name__ == '__main__':
    ks = [('qkv_kernel', k_qkv()), ('attn_kernel', k_attn()), ('wo_kernel', k_ksplit('wo')), ('ffn1_kernel', k_ffn1()), ('ffn2_kernel', k_ksplit('w2'))]
    build(ks, 'stamp.s' if STAMP else f'cdna_kernels/{NAME}.s')
```

```python
import sys, math, struct
from asmlib import *
from gen1 import NAME, MF, SM, f32, QSCALE, swap23, halves_sum, tr_lane_part, ln_stats, build

TTP = 90112
WS_O, WS_H, WS_S, WS_H1, WS_WF, WS_FL, WS_ST = 0x600000, 0x800000, 0x9E0000, 0xA40000, 0x1200000, 0x1400000, 0x1500000
WS_BYTES = 0x1600000
WFP = 144*2048
POLL_MAX = 1 << 18
STAMP = '--stamp' in sys.argv
def knob(name, d):
    for a in sys.argv:
        if a.startswith(name + '='): return int(a.split('=')[1])
    return d

def srd2(e, d, nbytes):
    e(f's_mov_b32 s{d+2}, {nbytes}\ns_mov_b32 s{d+3}, 0x00020000')

def stamp(e, i):
    if STAMP: e(('s_memtime' if '--cyc' in sys.argv else 's_memrealtime') + f' s[{68+2*i}:{69+2*i}]')
def stamp_out(e, kid, n):
    if not STAMP: return
    e('s_waitcnt vmcnt(0)')
    stamp(e, n-1)
    e('s_waitcnt lgkmcnt(0)')
    e(f's_lshl_b32 s3, s2, 2\ns_add_u32 s3, s3, s16\ns_lshl_b32 s3, s3, 6\ns_add_u32 s3, s3, {WS_ST + kid*65536}\nv_mov_b32 v1, 0')
    for i in range(n):
        e(f'v_mov_b32 v0, s{68+2*i}\nbuffer_store_dword v0, v1, s[12:15], s3 offen offset:{4*i}')

def k_a():
    e = Asm()
    XR = 86016; CSB = XR + 65536
    ROT = knob('rot', 7); PF = knob('pfa', 2)
    stamp(e, 0)
    e('''s_cmp_ge_u32 s2, 256
s_cbranch_scc1 LA_end
s_load_dwordx2 s[4:5], s[0:1], 0
s_load_dwordx2 s[8:9], s[0:1], 8
s_load_dwordx2 s[12:13], s[0:1], 80
s_load_dwordx2 s[40:41], s[0:1], 16
s_load_dwordx2 s[42:43], s[0:1], 48
s_load_dwordx2 s[60:61], s[0:1], 32
v_lshrrev_b32 v2, 6, v0
v_and_b32 v1, 63, v0
v_readfirstlane_b32 s16, v2
s_and_b32 s46, s2, 7
s_lshr_b32 s47, s2, 3
s_mul_i32 s48, s47, 37
s_lshr_b32 s48, s48, 8         ; rb' = i/7
s_mul_i32 s49, s48, 7
s_sub_u32 s49, s47, s49        ; cw'
s_lshr_b32 s17, s46, 1
s_lshl_b32 s17, s17, 2
s_add_u32 s17, s17, s48        ; rb
s_and_b32 s18, s46, 1
s_mul_i32 s18, s18, 7
s_add_u32 s18, s18, s49        ; cw''')
    if ROT == 7:
        e('''s_lshl_b32 s50, s48, 1
s_add_u32 s50, s50, s49
s_cmp_ge_u32 s50, 7
s_cselect_b32 s51, 7, 0
s_sub_u32 s50, s50, s51        ; rot''')
    elif ROT == 1:
        e('s_mov_b32 s50, 0')
    elif ROT == 2:
        e('s_add_u32 s50, s48, s49\ns_and_b32 s50, s50, 1\ns_mul_i32 s50, s50, 4')
    elif ROT == 4:
        e('s_add_u32 s50, s48, s49\ns_and_b32 s50, s50, 3\ns_lshl_b32 s50, s50, 1')
    e(f'''s_lshl_b32 s19, s17, 2
s_add_u32 s19, s19, s16        ; tt
s_mul_i32 s52, s19, {32*896}
s_mul_i32 s53, s16, {16*2688}
s_mul_i32 s54, s18, 192
s_add_u32 s53, s53, s54
s_lshl_b32 s36, s16, 14
s_add_u32 s36, s36, {XR}
s_mul_i32 s37, s16, 3072''')
    def offs(it):
        e(f's_lshl_b32 s{20+it}, s50, 7\ns_add_u32 s{20+it}, s{20+it}, s52\ns_mul_i32 s{28+it}, s50, {64*2688}\ns_add_u32 s{28+it}, s{28+it}, s53')
        if it < 6: e('s_add_u32 s50, s50, 1\ns_cmp_eq_u32 s50, 7\ns_cselect_b32 s50, 0, s50')
    offs(0)
    srd2(e, 4, 2048*896); srd2(e, 8, 448*2688); srd2(e, 12, WS_BYTES)
    e('''v_lshrrev_b32 v24, 3, v1
v_mul_u32_u24 v28, 896, v24
v_lshrrev_b32 v25, 4, v1
v_and_b32 v26, 7, v1
v_xor_b32 v25, v25, v26
v_lshl_add_u32 v2, v25, 4, v28
v_xor_b32 v3, 64, v2
v_add_u32 v3, 6144, v3
v_add_u32 v4, 12288, v2
v_add_u32 v5, 12288, v3''')
    for j in range(3):
        e(f'''v_add_u32 v24, {64*j}, v1
v_mul_u32_u24 v25, 5462, v24
v_lshrrev_b32 v25, 16, v25
v_mul_u32_u24 v26, {2688-192}, v25
v_lshl_add_u32 v{6+j}, v1, 4, v26''')
    def unit_setup():
        e(f'''s_lshl_b32 s55, s2, 2
s_add_u32 s55, s55, s16
s_mul_i32 s56, s55, 9363
s_lshr_b32 s56, s56, 16        ; ks'
s_mul_i32 s57, s56, 7
s_sub_u32 s57, s55, s57        ; fb
s_mul_i32 s59, s57, {WFP}
s_lshl_b32 s58, s56, 11
s_add_u32 s59, s59, s58
s_add_u32 s59, s59, {WS_WF}
s_cmp_lt_u32 s56, 144
s_cselect_b32 s59, s59, {WS_BYTES}
s_sub_u32 s58, s56, 112
s_lshr_b32 s62, s58, 1
s_mul_i32 s62, s62, 28
s_and_b32 s58, s58, 1
s_lshl_b32 s58, s58, 4
s_add_u32 s62, s62, s58
s_lshl_b32 s58, s56, 4         ; W2 row
s_cmp_lt_u32 s56, 112
s_cselect_b32 s58, s58, s62
s_cselect_b32 s64, s42, s40
s_cselect_b32 s65, s43, s41
s_mov_b32 s66, {448*896}
s_cselect_b32 s66, {1792*896}, s66
s_mov_b32 s67, 0x00020000
s_mul_i32 s58, s58, 896
s_lshl_b32 s57, s57, 7
s_add_u32 s58, s58, s57
v_bfe_u32 v25, v1, 4, 1
v_lshlrev_b32 v25, 2, v25
v_and_b32 v26, 7, v1
v_xor_b32 v25, v25, v26
v_lshl_add_u32 v156, v25, 4, v28
v_add_u32 v157, 6144, v156''')
        tr_lane_part(e, 158, 1, 128, 24, 26)
        e('''v_bfe_u32 v24, v1, 3, 1
v_lshl_add_u32 v158, v24, 6, v158
v_add_u32 v158, s36, v158
v_xor_b32 v159, 64, v158''')
    unit_dma = ['s_add_u32 m0, s36, 12288', 'buffer_load_dwordx4 v156, s[64:67], s58 offen lds', 'buffer_load_dwordx4 v157, s[64:67], s58 offen offset:1024 lds']
    unit_rd = [f'ds_read_b64_tr_b16 {vr(160+4*f+2*rd,2)}, v{158+f} offset:{12288 + rd*512}' for f in range(2) for rd in range(2)]
    unit_st = [f'buffer_store_dwordx4 {vr(160+4*f,4)}, v168, s[12:15], s59 offen offset:{1024*f}' for f in range(2)]
    e('s_cmp_ge_u32 s47, 28\ns_waitcnt lgkmcnt(0)\ns_cbranch_scc1 LA_idle')
    stamp(e, 1)
    def loads(it):
        l = [f's_add_u32 m0, s37, {it*12288}']
        l += [f'buffer_load_dwordx4 v{6+j}, s[8:11], s{28+it} offen offset:{1024*j} lds' for j in range(3)]
        l += [f's_add_u32 m0, s36, {(it&3)*4096}']
        l += [f'buffer_load_dwordx4 v{2+i}, s[4:7], s{20+it} offen offset:{1024*i} lds' for i in range(4)]
        return l
    e('\n'.join(loads(0)))
    for it in range(1, 7): offs(it)
    for it in range(1, PF): e('\n'.join(loads(it)))
    e('''v_and_b32 v24, 31, v1
v_lshrrev_b32 v25, 1, v24
v_lshrrev_b32 v26, 5, v1
v_xor_b32 v25, v25, v26
v_and_b32 v25, 7, v25
v_lshlrev_b32 v25, 4, v25
v_lshl_add_u32 v25, v24, 7, v25
v_add_u32 v25, s36, v25''')
    tr_lane_part(e, 27, 1, 192, 24, 26)
    for kk in range(4):
        e(f'''s_xor_b32 s55, s16, {kk}
s_lshl_b32 s56, s55, 5
s_mul_i32 s57, s55, 3072
v_xor_b32 v{9+kk}, s56, v25
v_add_u32 v{13+kk}, s57, v27
v_add_u32 v{120+kk}, {5*12288}, v{13+kk}''')
    e('v_mov_b32 v17, 0x3f803f80\nv_lshlrev_b32 v168, 4, v1')
    for r in range(18, 24): e(f'v_mov_b32 v{r}, 0')
    unit_setup()
    e('s_cmp_lt_u32 s18, 9\ns_cbranch_scc1 LA_qqq\ns_cmp_eq_u32 s18, 9\ns_cbranch_scc1 LA_qvv')

    ACC, WF, XF = 32, 80, 104
    def reads(s):
        it, kk = divmod(s, 4); b = s & 1
        l = [f'ds_read_b128 {vr(XF+4*kk,4)}, v{9+kk} offset:{(it&3)*4096}']
        base, off = (13+kk, it*12288) if it < 5 else (120+kk, (it-5)*12288)
        for j in range(3):
            for rd in range(2):
                l.append(f'ds_read_b64_tr_b16 {vr(WF+12*b+4*j+2*rd,2)}, v{base} offset:{off + rd*768 + j*64}')
        return l
    def variant(types, lab):
        if lab: e(f'{lab}:')
        vm = VM(e); vm.seq = [it for it in range(PF) for _ in range(7)]
        def emit(l, tag):
            for x in l:
                if x.startswith('buffer'): vm.op(x, tag)
                else: e(x)
        vm.wait(0); e('s_barrier')
        stamp(e, 2)
        e('\n'.join(reads(0)))
        for s in range(28):
            it, kk = divmod(s, 4); b = s & 1
            x = vr(XF+4*kk, 4)
            mf = []
            for j in range(3):
                w = vr(WF+12*b+4*j, 4); a = vr(ACC+16*j, 16); c = a if s else '0'
                mf.append(f'{MF} {a}, {w}, {x}, {c}' if types[j] == 'q' else f'{MF} {a}, {x}, {w}, {c}')
            rd = reads(s+1) if s < 27 else []
            ld = []; tag = it + PF
            if it + PF <= 6:
                L = loads(it + PF)
                ld = {0: L[:4], 1: L[4:7], 2: L[7:], 3: []}[kk]
            if s == 20: ld = ld + unit_dma; tag = 'u'
            e('s_waitcnt lgkmcnt(0)')
            if kk == 3:
                for k2 in range(4):
                    for r in range(4):
                        e(f'v_dot2c_f32_bf16 v18, v{XF+4*k2+r}, v17\nv_dot2c_f32_bf16 v19, v{XF+4*k2+r}, v{XF+4*k2+r}')
                for r in range(4):
                    for j in range(3): e(f'v_dot2c_f32_bf16 v{20+j}, v{WF+12*b+4*j+r}, v17')
                if s < 27:
                    vm.wait(it + 1); e('s_barrier')
                    e('\n'.join(rd[:4])); rd = rd[4:]
                else:
                    for j in range(3): halves_sum(e, 20+j, 24)
                    e(f'''v_and_b32 v24, 31, v1
v_lshlrev_b32 v24, 4, v24
v_add_u32 v24, {CSB}, v24
s_lshl_b32 s55, s16, 9
v_add_u32 v25, s55, v24
ds_write_b128 v25, v[20:23]''')
            e(mf[0]); e('\n'.join(rd[:4]))
            if s == 27: ln_stats(e, 18, 19, 26, 28, 30)
            e(mf[1]); e('\n'.join(rd[4:])); emit(ld[:2], tag)
            if s == 27:
                vm.wait('u', 'lgkmcnt(0)'); e('s_barrier')
                for w in range(4): e(f'ds_read_b128 {vr(124+4*w,4)}, v24 offset:{512*w}')
                e('\n'.join(unit_rd))
            e(mf[2]); emit(ld[2:], tag)
        stamp(e, 3)
        e('''v_cmp_gt_u32 vcc, 32, v1
v_sub_f32 v28, 0, v28
v_mov_b32 v106, 0
v_cndmask_b32 v28, 0, v28, vcc
v_and_b32 v26, 0xffff0000, v28
v_sub_f32 v27, v28, v26
v_cvt_pk_bf16_f32 v104, v26, v26
v_cvt_pk_bf16_f32 v105, v27, 0
v_mov_b32 v107, 0''')
        if 'v' in types:
            e(f'''v_cndmask_b32 v29, 0, v30, vcc
v_and_b32 v26, 0xffff0000, v29
v_sub_f32 v27, v29, v26
v_cvt_pk_bf16_f32 v108, v26, v27
v_mov_b32 v109, 0
v_mov_b32 v110, 0
v_mov_b32 v111, 0
v_mov_b32 v112, v17
v_mov_b32 v113, v17
v_mov_b32 v114, v17
v_mov_b32 v115, v17
{MF} v[80:95], v[108:111], v[112:115], 0''')
        e('s_waitcnt lgkmcnt(0)')
        for j in range(3):
            e(f'''v_add_f32 v{124+j}, v{124+j}, v{128+j}
v_add_f32 v{132+j}, v{132+j}, v{136+j}
v_add_f32 v{124+j}, v{124+j}, v{132+j}
v_and_b32 v26, 0xffff0000, v{124+j}
v_sub_f32 v27, v{124+j}, v26
v_cvt_pk_bf16_f32 v{144+4*j}, v26, v27
v_lshrrev_b32 v{145+4*j}, 16, v{124+j}
v_mov_b32 v{146+4*j}, 0
v_mov_b32 v{147+4*j}, 0''')
            a = vr(ACC+16*j, 16); w = vr(144+4*j, 4)
            e(f'{MF} {a}, {w}, v[104:107], {a}' if types[j] == 'q' else f'{MF} {a}, v[104:107], {w}, {a}')
        e('\n'.join(unit_st))
        e(f's_mul_i32 s56, s18, 3\ns_mul_i32 s62, s19, {TTP}')
        if 'v' in types:
            e('v_and_b32 v26, 31, v1')
            swap23(e, 25, 26, 27)
            e('v_and_b32 v29, 32, v1\nv_lshlrev_b32 v29, 4, v29\ns_add_u32 s63, s62, 57344')
        for j in range(3):
            A = ACC + 16*j
            if types[j] == 'q':
                e(f'''s_add_u32 s57, s56, {j}
s_cmp_lt_u32 s57, 14
s_cselect_b32 s58, {f32(QSCALE)}, 1.0
v_mul_f32 v140, s58, v30
s_lshl_b32 s57, s57, 11
s_add_u32 s57, s57, s62''')
                for p in range(8):
                    e(f'v_pk_mul_f32 {vr(A+2*p,2)}, {vr(A+2*p,2)}, v[140:141] op_sel_hi:[1,0]')
                    e(f'v_cvt_pk_bf16_f32 v{A+p}, v{A+2*p}, v{A+2*p+1}')
                for t in range(2):
                    e(f'buffer_store_dwordx4 {vr(A+4*t,4)}, v168, s[12:15], s57 offen offset:{1024*t}')
            else:
                e(f'''s_add_u32 s57, s56, {j}
s_sub_u32 s57, s57, 28
s_lshl_b32 s57, s57, 5
v_add_u32 v26, s57, v25
v_mul_u32_u24 v27, 2341, v26
v_lshrrev_b32 v27, 16, v27
v_mul_u32_u24 v27, {2048-448}, v27
v_lshl_add_u32 v27, v26, 4, v27
v_add_u32 v{141+j}, v27, v29''')
                for p in range(8):
                    e(f'v_pk_mul_f32 {vr(A+2*p,2)}, {vr(A+2*p,2)}, {vr(80+2*p,2)}')
                    e(f'v_cvt_pk_bf16_f32 v{A+p}, v{A+2*p}, v{A+2*p+1}')
                for t in range(2):
                    e(f'buffer_store_dwordx4 {vr(A+4*t,4)}, v{141+j}, s[12:15], s63 offen offset:{1024*t}')
        if types == 'qvv':
            e('v_lshlrev_b32 v26, 9, v1\nbuffer_store_dwordx4 v[112:115], v26, s[12:15], s63 offen offset:448')
        stamp(e, 4)
        stamp_out(e, 0, 6)
        e('s_endpgm')
    variant('vvv', None); variant('qqq', 'LA_qqq'); variant('qvv', 'LA_qvv')
    e('LA_idle:')
    e(f'''s_lshl_b32 s55, s46, 2
s_add_u32 s55, s55, s47
s_sub_u32 s55, s55, 28         ; 0..31
s_lshl_b32 s56, s55, 11
s_add_u32 s56, s56, {WS_FL}
v_lshlrev_b32 v10, 3, v0
v_mov_b32 v12, 0
v_mov_b32 v13, 0
buffer_store_dwordx2 v[12:13], v10, s[12:15], s56 offen
s_lshl_b32 s38, s55, 16
v_lshlrev_b32 v168, 4, v1''')
    unit_setup()
    e('\n'.join(unit_dma))
    e('s_waitcnt vmcnt(0)')
    e('\n'.join(unit_rd))
    srd2(e, 60, 448*3584)
    e('''v_lshlrev_b32 v10, 7, v0
v_add_u32 v11, 0x8000, v10
buffer_load_dword v14, v10, s[60:63], s38 offen
buffer_load_dword v15, v11, s[60:63], s38 offen
s_waitcnt lgkmcnt(0)''')
    e('\n'.join(unit_st))
    e('s_waitcnt vmcnt(0)')
    e('LA_end:')
    return e, dict(grid=256, lds=CSB + 2048, vgpr=176, accum=176)

def k_b():
    e = Asm(); vm = VM(e); slow = []
    SCR = 114688
    Q, O, S, WOF, NM = 16, 48, 112, 160, 224
    stamp(e, 0)
    e(f'''s_cmp_ge_u32 s2, 256
s_cbranch_scc1 LB_end
s_load_dwordx2 s[12:13], s[0:1], 80
s_load_dwordx2 s[4:5], s[0:1], 0
s_load_dwordx2 s[8:9], s[0:1], 32
s_load_dwordx2 s[32:33], s[0:1], 40
s_load_dwordx2 s[36:37], s[0:1], 56
s_load_dwordx2 s[40:41], s[0:1], 64
v_lshrrev_b32 v2, 6, v0
v_and_b32 v1, 63, v0
v_readfirstlane_b32 s16, v2
s_and_b32 s48, s2, 7
s_bfe_u32 s28, s2, 0x10003
s_lshr_b32 s17, s2, 4          ; qb
s_lshl_b32 s18, s48, 1
s_lshr_b32 s19, s2, 7
s_add_u32 s19, s19, s18        ; rb
s_add_u32 s18, s18, s28        ; head
s_bfe_u32 s20, s2, 0x40003     ; j
s_mul_i32 s49, s48, 7
s_mul_i32 s50, s28, 3
s_add_u32 s49, s49, s50
s_lshl_b32 s49, s49, 9         ; c0*512''')
    swap23(e, 3, 1, 4)
    e(f'''v_lshlrev_b32 v3, 4, v3
s_lshl_b32 s50, s18, 11
s_add_u32 s50, s50, 57344
v_add_u32 v4, s50, v3
s_add_u32 s50, s49, {56*512}
v_add_u32 v3, s50, v3
v_lshlrev_b32 v2, 4, v1        ; lane*16
s_lshl_b32 s51, s16, 4''')
    def kvoff(j):
        e(f's_add_u32 s50, s17, {j}\ns_and_b32 s50, s50, 15\ns_add_u32 s50, s50, s51\ns_mul_i32 s{52+j}, s50, {TTP}')
    for s in range(4):
        e(f's_xor_b32 s50, s16, {3-s}\ns_lshl2_add_u32 s50, s17, s50\ns_mul_i32 s{44+s}, s50, {TTP}\ns_add_u32 s{44+s}, s{44+s}, s49')
    kvoff(0); kvoff(1); kvoff(2)
    srd2(e, 12, WS_BYTES)
    e('s_waitcnt lgkmcnt(0)')
    stamp(e, 1)
    def kl(j, t): vm.op(f'buffer_load_dwordx4 {ar(16*j+4*t,4)}, v3, s[12:15], s{52+j} offen offset:{1024*t}', f'K{j}')
    def vl(j, t): vm.op(f'buffer_load_dwordx4 {ar(16*j+8+4*t,4)}, v4, s[12:15], s{52+j} offen offset:{1024*t}', f'V{j}')
    def ql(s, t): vm.op(f'buffer_load_dwordx4 {vr(Q+8*s+4*t,4)}, v2, s[12:15], s{44+s} offen offset:{1024*t}', f'Q{s}')
    ql(0, 0); kl(0, 0); ql(0, 1); kl(0, 1); ql(1, 0); ql(1, 1); vl(0, 0); vl(0, 1); ql(2, 0); ql(2, 1)
    kl(1, 0); kl(1, 1); vl(1, 0); vl(1, 1)
    for j in range(3, 16): kvoff(j)
    srd2(e, 4, 2048*896); srd2(e, 32, 3584); srd2(e, 36, 896); srd2(e, 40, 2048*896)
    e(f'''s_cmp_lt_u32 s20, 14
s_cselect_b32 s10, {448*3584}, 0
s_mov_b32 s11, 0x00020000
s_and_b32 s21, s20, 1          ; th
s_lshr_b32 s22, s20, 1         ; fb
s_lshl1_add_u32 s23, s19, s21
s_lshr_b32 s50, s16, 1
s_lshl1_add_u32 s23, s23, s50
s_and_b32 s50, s16, 1
s_lshl1_add_u32 s24, s22, s50
s_lshl_b32 s25, s19, 12
s_add_u32 s25, s25, {WS_FL}
s_getreg_b32 s50, hwreg(HW_REG_XCC_ID, 0, 4)
s_lshl_b32 s26, s50, 2
s_lshl_b32 s29, 14, s26
s_lshl_b32 s26, 1, s26
s_cmp_lt_u32 s50, 8
s_cselect_b32 s26, s26, 0
s_cmp_lt_u32 s20, 14
s_cselect_b32 s26, s26, 0
s_cmp_eq_u32 s16, 0
s_cselect_b32 s27, 1, 0
s_mov_b32 s30, 0
v_mov_b32 v8, s26
v_mov_b32 v9, {24*128}
v_mov_b32 v10, {WS_BYTES}
v_cmp_gt_u32 vcc, s27, v1
v_mov_b32 v7, 0xdddd
v_cndmask_b32 v9, v10, v9, vcc''')
    vm.op('buffer_atomic_add v8, v9, s[12:15], s25 offen sc1', 'census')
    e('''v_cmp_gt_u32 vcc, 32, v1
s_cmp_eq_u32 s28, 0
s_cselect_b32 s50, -1, 0
v_cndmask_b32 v6, 0, -1, vcc
v_not_b32 v14, v6
v_or_b32 v14, s50, v14
s_not_b32 s50, s50
v_or_b32 v5, s50, v6''')
    for r in range(64): e(f'v_mov_b32 v{O+r}, 0')
    for s in range(3):
        e(f's_xor_b32 s50, s16, {3-s}\ns_mul_i32 s50, s50, 12288\ns_add_u32 s50, s50, {SCR}\nv_add_u32 v{9+s}, s50, v2')
    e(f's_mul_i32 s50, s16, 12288\ns_add_u32 s50, s50, {SCR}\nv_add_u32 v12, s50, v2')
    e(f'''v_lshrrev_b32 v13, 4, v1
v_lshlrev_b32 v15, 2, v13
v_and_b32 v8, 15, v1
v_xor_b32 v15, v15, v8
v_mul_u32_u24 v13, 3584, v13
v_lshl_add_u32 v252, v15, 4, v13
s_mul_i32 s48, s16, {16*3584}
s_lshl_b32 s50, s20, 8
s_add_u32 s48, s48, s50
s_lshl_b32 s49, s16, 12''')
    for i in range(1, 4): e(f'v_add_u32 v{252+i}, {i*(4*3584-1024)}, v252')
    e(f'''v_lshlrev_b32 v240, 7, v1
s_mul_i32 s50, s23, 28672
s_lshl_b32 s26, s24, 11
s_add_u32 s50, s50, s26
s_add_u32 s50, s50, {WS_H}
v_add_u32 v241, s50, v240
s_lshl_b32 s50, s23, 12
s_lshl_b32 s26, s22, 9
s_add_u32 s50, s50, s26
s_add_u32 s50, s50, {WS_S - 16*128}
v_add_u32 v8, s50, v240
v_cmp_gt_u32 vcc, 16, v1
v_mov_b32 v13, {WS_BYTES}
s_lshr_b32 s50, s2, 3
v_cndmask_b32 v241, v8, v241, vcc
v_cmp_gt_u32 vcc, 20, v1
s_lshl2_add_u32 s50, s50, s16
s_lshl_b32 s3, s50, 14
v_cndmask_b32 v241, v13, v241, vcc
s_add_u32 s3, s3, {WS_WF}''')
    def qmask(s):
        vm.wait(f'Q{s}')
        e(f'''v_and_b32 v{Q+8*s}, v14, v{Q+8*s}
v_and_b32 v{Q+8*s+1}, v14, v{Q+8*s+1}
v_and_b32 v{Q+8*s+6}, v5, v{Q+8*s+6}
v_and_b32 v{Q+8*s+7}, v5, v{Q+8*s+7}''')
    steps = [(s, j) for j in range(16) for s in range(3)] + [(3, j) for j in range(16)]
    N = len(steps)
    def qk(i, t):
        s, j = steps[i]; d = vr(S + 16*(i % 3), 16)
        return f'{MF} {d}, {ar(16*j+4*t,4)}, {vr(Q+8*s+4*t,4)}, ' + ('0' if t == 0 else d)
    def pv(i, t):
        s, j = steps[i]
        return f'{SM} {vr(O+16*s,16)}, {ar(16*j+8+4*t,4)}, {vr(S+16*(i%3)+8*t,8)}, v7'
    pre, post = {}, {}
    def P(d, i, sl, f): d.setdefault((i, sl), []).append(f)
    seq = [(f, j, t) for j in range(2, 16) for f in (kl, vl) for t in range(2)]
    for n, (f, j, t) in enumerate(seq): P(post, n // 2, 2*(n % 2), (lambda f=f, j=j, t=t: f(j, t)))
    P(post, 28, 0, lambda: ql(3, 0)); P(post, 28, 2, lambda: ql(3, 1))
    W1S = knob('w1s', 29)
    for n in range(28):
        it, i = divmod(n, 4)
        if i == 0: P(post, W1S + n, 0, (lambda it=it: e(f's_add_u32 m0, s49, {it*16384}\ns_add_u32 s50, s48, {it*64*3584}')))
        P(post, W1S + n, 1, (lambda i=i: vm.op(f'buffer_load_dwordx4 v{252+i}, s[8:11], s50 offen offset:{1024*i} lds', 'W1')))
    T0, T1, T2 = knob('t0', 36), knob('t1', 46), knob('t2', 56)
    if T0: P(post, T0, 3, lambda: vm.op('buffer_load_dword v242, v240, s[12:15], s3 offen sc1', 'T'))
    if T1: P(post, T1, 2, lambda: e('s_add_u32 s3, s3, 8192')); P(post, T1, 3, lambda: vm.op('buffer_load_dword v242, v240, s[12:15], s3 offen sc1', 'T'))
    if T2: P(post, T2, 3, lambda: vm.op('buffer_load_dword v242, v241, s[12:15], 0 offen sc1', 'T'))
    P(pre, 0, 0, lambda: qmask(1)); P(pre, 0, 3, lambda: vm.wait('V0')); P(pre, 1, 0, lambda: qmask(2))
    for j in range(1, 16): P(pre, 3*j - 1, 0, (lambda j=j: vm.wait(f'V{j}')))
    P(pre, 46, 0, lambda: qmask(3))
    def pwr(s, q): return f'ds_write_b128 v{9+s}, {vr(O+16*s+4*q,4)} offset:{s*4096 + q*1024}'
    def prd(s, q): return f'ds_read_b128 {vr(O+16*s+4*q,4)}, v12 offset:{s*4096 + q*1024}'
    for k in range(12): P(post, 50 + k//2, 2*(k % 2), (lambda k=k: e(pwr(k//4, k % 4))))
    P(post, 59, 0, lambda: e('s_waitcnt lgkmcnt(0)\ns_barrier'))
    for k in range(12): P(post, 60 + k//4, k % 4, (lambda k=k: e(prd(k//4, k % 4))))
    qmask(0); vm.wait('K0')
    stamp(e, 2)
    e(qk(0, 0)); e(qk(0, 1))
    for i in range(N):
        if i == 48: stamp(e, 3)
        b = S + 16*(i % 3)
        mf = [qk(i+1, 0) if i+1 < N else None, qk(i+1, 1) if i+1 < N else None, pv(i-1, 1) if i > 0 else None, pv(i, 0)]
        for sl in range(4):
            for f in pre.get((i, sl), []): f()
            if mf[sl]: e(mf[sl])
            for f in post.get((i, sl), []): f()
            for r in range(4): e(f'v_exp_f32 v{b+4*sl+r}, v{b+4*sl+r}')
    e(pv(N-1, 1))
    e('LB_combine:')
    stamp(e, 4)
    e('s_waitcnt lgkmcnt(0)')
    for p in range(8): e(f'v_pk_add_f32 {vr(O+2*p,2)}, {vr(O+2*p,2)}, {vr(O+16+2*p,2)}')
    for p in range(8): e(f'v_pk_add_f32 {vr(O+2*p,2)}, {vr(O+2*p,2)}, {vr(O+32+2*p,2)}')
    for p in [6, 0, 1, 2, 3, 4, 5, 7]: e(f'v_pk_add_f32 {vr(O+2*p,2)}, {vr(O+2*p,2)}, {vr(O+48+2*p,2)}')
    e(f'''v_mov_b32 v13, v{O+12}
v_mov_b32 v15, v{O+12}
s_lshl2_add_u32 s50, s17, s16
s_lshl4_add_u32 s50, s50, s18
v_permlane32_swap_b32 v13, v15
v_rcp_f32 v112, v15
v_cmp_nle_f32 vcc, {f32(2.0**-40)}, v15
s_lshl_b32 s50, s50, 11
s_mov_b64 s[26:27], vcc
v_cmp_nge_f32 vcc, {f32(2.0**40)}, v15
s_add_u32 s50, s50, {WS_O}''')
    for p in range(8):
        e(f'v_pk_mul_f32 {vr(O+2*p,2)}, {vr(O+2*p,2)}, v[112:113] op_sel_hi:[1,0]')
        e(f'v_cvt_pk_bf16_f32 v{O+p}, v{O+2*p}, v{O+2*p+1}')
        if p == 3: vm.op(f'buffer_store_dwordx4 {vr(O,4)}, v2, s[12:15], s50 offen sc1', 'Ost')
    e(f'v_and_b32 v{O+6}, v6, v{O+6}\nv_and_b32 v{O+7}, v6, v{O+7}')
    vm.op(f'buffer_store_dwordx4 {vr(O+4,4)}, v2, s[12:15], s50 offen offset:1024 sc1', 'Ost')
    e(f'''s_or_b64 vcc, vcc, s[26:27]
s_cselect_b32 s26, 1, 0
s_andn2_b32 s26, s26, s30
v_mov_b32 v13, s26
ds_write_b32 v12, v13
s_mul_i32 s44, s22, {WFP}
s_add_u32 s44, s44, {WS_WF}
s_mul_i32 s45, s16, {28*2048}
s_add_u32 s45, s45, s44
s_lshl_b32 s46, s16, 14
s_add_u32 s44, s44, s46
s_add_u32 s44, s44, {112*2048}
s_and_b32 s46, s16, 1
s_lshl_b32 s46, s46, 10
v_add_u32 v3, s46, v2
v_xor_b32 v4, 1024, v3''')
    def wol(ks, f):
        if f == 0 and ks % 2 == 0: e(f's_add_u32 s47, s44, {ks*2048}')
        vm.op(f'buffer_load_dwordx4 {vr(WOF+8*ks+4*f,4)}, v{3+f}, s[12:15], s47 offen offset:{(ks%2)*2048}', 'Wo')
    w2n = [0]
    def w2l(n=1):
        for _ in range(n):
            if w2n[0] >= 56: return
            ks, f = divmod(w2n[0], 2); w2n[0] += 1
            if f == 0 and ks % 2 == 0: e(f's_add_u32 s51, s45, {ks*2048}')
            vm.op(f'buffer_load_dwordx4 {ar(8*ks+4*f,4)}, v{3+f}, s[12:15], s51 offen offset:{(ks%2)*2048}', 'W2')
    for ks in range(4): wol(ks, 0); wol(ks, 1)
    e(f'''v_and_b32 v13, 3, v1
v_mul_u32_u24 v13, 12288, v13
v_add_u32 v13, {SCR}, v13
v_mov_b32 v15, {WS_BYTES}
s_cmp_eq_u32 s16, 0
s_cselect_b32 s26, 14, 0
v_cmp_gt_u32 vcc, s26, v1
v_mov_b32 v8, 1
s_lshl_b32 s27, s17, 12
v_cndmask_b32 v15, v15, v240, vcc
s_add_u32 s27, s27, {WS_FL}''')
    vm.wait('Ost', 'lgkmcnt(0)')
    e('''s_barrier
ds_read_b32 v13, v13
s_waitcnt lgkmcnt(0)
v_cmp_ne_u32 vcc, 0, v13
s_cbranch_vccnz LB_fallback''')
    vm.op('buffer_atomic_add v8, v15, s[12:15], s27 offen sc1', 'sig2')
    stamp(e, 5)
    e('s_cmp_ge_u32 s20, 14\ns_cbranch_scc1 LB_end')
    e(f'''v_and_b32 v13, 31, v1
v_mul_u32_u24 v15, 896, v13
v_lshrrev_b32 v8, 5, v1
v_lshlrev_b32 v8, 4, v8
v_add_u32 v5, v15, v8
s_mul_i32 s52, s23, {32*896}
s_lshl_b32 s53, s24, 6
s_add_u32 s52, s52, s53
v_mov_b32 v15, {24*128}''')
    vm.op('buffer_load_dword v243, v15, s[12:15], s25 offen sc1', 'cen')
    for t in range(2): vm.op(f'buffer_load_dwordx4 {vr(224+4*t,4)}, v5, s[4:7], s52 offen offset:{32*t}', 'x')
    for t in range(2): vm.op(f'buffer_load_dwordx4 {vr(144+4*t,4)}, v8, s[36:39], s53 offen offset:{32*t}', 'b2')
    swap23(e, 15, 13, 14)
    e('v_lshlrev_b32 v15, 1, v15\ns_lshl_b32 s54, s20, 8')
    for b in range(4):
        e(f's_xor_b32 s55, s16, {b}\ns_lshl_b32 s55, s55, 6\ns_add_u32 s55, s55, s54')
        vm.op(f'buffer_load_ushort v{152+b}, v15, s[32:35], s55 offen', 'b1')
    WA = 244
    tr_lane_part(e, WA, 1, 256, 13, 14)
    e(f'v_bfe_u32 v13, v1, 2, 2\nv_xor_b32 v13, s16, v13\nv_lshl_add_u32 v{WA}, v13, 6, v{WA}')
    for b in range(1, 4): e(f'v_xor_b32 v{WA+b}, {64*b}, v{WA}')
    for b in range(4): e(f'v_add_u32 v{WA+4+b}, 0x10000, v{WA+b}')
    def w1rd(dst, s, b):
        base = WA + b + (4 if s >= 16 else 0); off = (s & 15)*4096
        return [f'ds_read_b64_tr_b16 {vr(dst+2*rd,2)}, v{base} offset:{off + rd*1024}' for rd in range(2)]
    e('v_mov_b32 v14, 0x3f803f80\nv_mov_b32 v156, 0\nv_mov_b32 v157, 0')
    B1 = knob('b1', 12)
    rest = [(lambda ks=ks, f=f: wol(ks, f)) for ks in range(4, 8) for f in range(2)] + [w2l]*B1
    for g in range(7):
        for k in range(4): e('\n'.join(w1rd(16 + 16*(g & 1) + 4*k, 4*g + k, 0)))
        for f in rest[3*g:3*g+3]: f()
        if g:
            e('s_waitcnt lgkmcnt(8)')
            for r in range(16): e(f'v_dot2c_f32_bf16 v{156 + (r & 1)}, v{16 + 16*((g-1) & 1) + r}, v14')
    for f in rest[21:]: f()
    e('s_waitcnt lgkmcnt(0)')
    for r in range(16): e(f'v_dot2c_f32_bf16 v{156 + (r & 1)}, v{16 + r}, v14')
    e('v_add_f32 v156, v156, v157')
    halves_sum(e, 156, 157)
    e(f'''v_and_b32 v13, 31, v1
v_lshlrev_b32 v13, 2, v13
s_mul_i32 s55, s16, 12288
s_add_u32 s55, s55, {SCR + 1024}
v_add_u32 v157, s55, v13
ds_write_b32 v157, v156''')
    for b in range(1, 4):
        e(f's_xor_b32 s55, s16, {b}\ns_mul_i32 s55, s55, 12288\ns_add_u32 s55, s55, {SCR + 1024}\nv_add_u32 v{156+b}, s55, v13') if b > 1 else None
    e(f's_xor_b32 s55, s16, 1\ns_mul_i32 s55, s55, 12288\ns_add_u32 s55, s55, {SCR + 1024}\nv_add_u32 v15, s55, v13')
    ACC3 = 80
    vm.wait('b1')
    for r in range(8):
        e(f'v_lshlrev_b32 v{ACC3+2*r}, 16, v{224+r}\nv_and_b32 v{ACC3+2*r+1}, 0xffff0000, v{224+r}')
    e(f'''v_readfirstlane_b32 s31, v243
s_mul_i32 s56, s23, 32768
s_lshl_b32 s55, s16, 13
s_add_u32 s55, s55, {WS_O}
s_add_u32 s56, s56, s55
s_xor_b32 s57, s56, 32768
s_add_u32 s58, s56, 4096
s_add_u32 s59, s57, 4096
s_cmp_eq_u32 s31, s29
s_cselect_b32 s31, 1, 0
s_lshl_b32 s55, s20, 7
v_mov_b32 v13, s55''')
    if knob('nolocal', 0): e('s_mov_b32 s31, 0')
    stamp(e, 6)
    e(f'''s_cmp_lg_u32 s16, 0
s_cbranch_scc1 LB_s2done
s_mov_b32 s26, {POLL_MAX}
LB_s2poll:
buffer_load_dword v8, v13, s[12:15], s25 offen sc1
s_sub_u32 s26, s26, 1
s_cbranch_scc1 LB_s2done
s_waitcnt vmcnt(0)
v_cmp_gt_u32 vcc, 16, v8
s_cbranch_vccnz LB_s2poll
LB_s2done:
s_waitcnt lgkmcnt(0)
s_barrier''')
    stamp(e, 7)
    AF = 16
    for a in (1, 0):
        for ks in range(8):
            vm.op(f'buffer_load_dwordx4 {vr(AF+32*a+4*ks,4)}, v2, s[12:15], s{56 + a + (2 if ks >= 4 else 0)} offen offset:{(ks&3)*1024} sc1', f'O{a}{ks}')
    e('ds_read_b32 v157, v15\nds_read_b32 v158, v158\nds_read_b32 v159, v159\ns_waitcnt lgkmcnt(0)\ns_barrier')
    for b in range(4):
        e(f'''v_and_b32 v13, 0xffff0000, v{156+b}
v_sub_f32 v15, v{156+b}, v13
v_cvt_pk_bf16_f32 v15, v13, v15
v_lshrrev_b32 v13, 16, v13
v_lshl_or_b32 v13, v{152+b}, 16, v13
v_accvgpr_write_b32 a{224+4*b}, v15
v_accvgpr_write_b32 a{225+4*b}, v13
v_accvgpr_write_b32 a{226+4*b}, v{152+b}
v_accvgpr_write_b32 a{227+4*b}, 0''')
    def rwr(s, A, q): return f'ds_write_b128 v{12-s}, {vr(A+16*s+4*q,4)} offset:{(3-s)*4096 + q*1024}'
    def rrd(s, A, q): return f'ds_read_b128 {vr(A+16*s+4*q,4)}, v12 offset:{(3-s)*4096 + q*1024}'
    B2 = knob('b2', 8)
    for a in (1, 0):
        for ks in range(8):
            vm.wait(f'O{a}{ks}')
            for f in (1, 0):
                acc = vr(ACC3 + 16*(2*a+f), 16)
                e(f'{MF} {acc}, {vr(WOF+8*ks+4*f,4)}, {vr(AF+32*a+4*ks,4)}, ' + (acc if (ks or (a, f) == (0, 0)) else '0'))
                if a == 0 and 2 <= ks < 6: e(rwr(2 + (ks-2)//2, ACC3, 2*((ks-2) % 2) + (1-f)))
                if a == 1 and f == 0 and ks < B2: w2l()
    for q in range(4): e(rwr(1, ACC3, q))
    for r in range(8):
        e(f'v_lshlrev_b32 v{224+2*r}, 16, v{144+r}\nv_and_b32 v{225+2*r}, 0xffff0000, v{144+r}')
    e('s_waitcnt lgkmcnt(0)\ns_barrier')
    for s in (3, 2, 1):
        for q in range(4): e(rrd(s, ACC3, q))
    e(f'''s_mul_i32 s56, s23, 28672
s_lshl_b32 s55, s24, 11
s_add_u32 s56, s56, s55
s_add_u32 s56, s56, {WS_H}
s_lshl_b32 s57, s23, 12
s_lshl_b32 s55, s22, 9
s_add_u32 s57, s57, s55
s_and_b32 s55, s16, 1
s_lshl3_add_u32 s57, s55, s57
s_add_u32 s57, s57, {WS_S}
v_and_b32 v15, 0x1f0, v2''')
    for n, s in enumerate((3, 2, 1)):
        e(f's_waitcnt lgkmcnt({4*(2-n)})')
        for p in range(8): e(f'v_pk_add_f32 {vr(ACC3+2*p,2)}, {vr(ACC3+2*p,2)}, {vr(ACC3+16*s+2*p,2)}')
    for p in range(8): e(f'v_cvt_pk_bf16_f32 v{16+p}, v{ACC3+2*p}, v{ACC3+2*p+1}')
    def dual(lines, tag, lab):
        e(f's_cmp_lg_u32 s31, 0\ns_cbranch_scc0 {lab}_s')
        for l in lines: vm.op(l, tag)
        e(f'{lab}_d:')
        slow.append(f'{lab}_s:\ns_nop 1\n' + '\n'.join(l + ' sc1' for l in lines) + f'\ns_nop 1\ns_branch {lab}_d')
    dual([f'buffer_store_dwordx4 {vr(16+4*t,4)}, v2, s[12:15], s56 offen offset:{1024*t}' for t in range(2)], 'hst', 'LB_h')
    e(f'v_pk_mul_f32 v[26:27], {vr(ACC3,2)}, {vr(ACC3,2)}\nv_pk_add_f32 v[24:25], {vr(ACC3,2)}, {vr(ACC3+2,2)}\nv_pk_fma_f32 v[26:27], {vr(ACC3+2,2)}, {vr(ACC3+2,2)}, v[26:27]')
    for p in range(2, 8):
        e(f'v_pk_add_f32 v[24:25], v[24:25], {vr(ACC3+2*p,2)}\nv_pk_fma_f32 v[26:27], {vr(ACC3+2*p,2)}, {vr(ACC3+2*p,2)}, v[26:27]')
    e('''v_add_f32 v24, v24, v25
v_add_f32 v25, v26, v27
v_mov_b32 v26, v24
v_mov_b32 v27, v25
v_permlane32_swap_b32 v24, v26
v_permlane32_swap_b32 v25, v27
v_pk_add_f32 v[24:25], v[24:25], v[26:27]''')
    dual(['buffer_store_dwordx2 v[24:25], v15, s[12:15], s57 offen'], 'hst', 'LB_s')
    w2l(knob('b3', 6))
    for p in range(8): e(f'v_pk_add_f32 {vr(224+2*p,2)}, {vr(224+2*p,2)}, {vr(ACC3+2*p,2)}')
    e(f'''s_and_b32 s55, s23, 3
s_lshl_b32 s55, s55, 5
s_add_u32 s55, s55, s24
s_lshl_b32 s55, s55, 2
s_add_u32 s55, s55, {16*128}
v_mov_b32 v13, s55
v_mov_b32 v8, 1
v_min_u32 v15, 13, v1
v_lshlrev_b32 v15, 2, v15
s_lshl_b32 s55, s16, 7
s_add_u32 s55, s55, s25
s_add_u32 s55, s55, {16*128}
s_lshl2_add_u32 s60, s19, s16
s_mul_i32 s56, s60, 28672
s_add_u32 s56, s56, {WS_H}
s_lshl_b32 s57, s60, 12
s_add_u32 s57, s57, {WS_S}''')
    vm.wait('hst')
    dual(['buffer_store_dword v8, v13, s[12:15], s25 offen'], 'f3', 'LB_f3')
    stamp(e, 8)
    def poll(lab, addr, so):
        e(f'''s_mov_b32 s26, {POLL_MAX}
{lab}:
buffer_load_dword v13, {addr}, s[12:15], {so} offen sc1
s_sub_u32 s26, s26, 1
s_cbranch_scc1 {lab}_x
s_waitcnt vmcnt(0)
v_cmp_ne_u32 vcc, 1, v13
s_cbranch_vccnz {lab}
{lab}_x:''')
    poll('LB_p3', 'v15', 's55')
    stamp(e, 9)
    HF, ACC4, WF, STT = 16, 128, 192, 208
    def hl(s):
        if s and s % 4 == 0: e('s_add_u32 s56, s56, 4096')
        vm.op(f'buffer_load_dwordx4 {vr(HF+4*s,4)}, v2, s[12:15], s56 offen offset:{(s&3)*1024} sc1', f'h{s}')
    HP = knob('hp', 8)
    sched = [(s, (0, 1)) for s in range(28)] + [(s, (2,)) for s in range(28)] + [(s, (3,)) for s in range(28)]
    def rds(n):
        s, bs = sched[n]
        if len(bs) == 2: return w1rd(WF + 8*(n & 1), s, 0) + w1rd(WF + 8*(n & 1) + 4, s, 1)
        return w1rd(WF + 4*(n & 3), s, bs[0])
    hl(0); hl(1)
    e('\n'.join(rds(0)))
    for s in range(2, HP): hl(s)
    for p in range(4): vm.op(f'buffer_load_dwordx4 {vr(STT+4*p,4)}, v2, s[12:15], s57 offen offset:{1024*p} sc1', 'st')
    e(f'''s_mul_i32 s58, s60, 114688
s_lshl_b32 s59, s20, 13
s_add_u32 s58, s58, s59
s_add_u32 s58, s58, {WS_H1}''')
    fill = []
    st = [lambda: vm.wait('st'),
          f'v_and_b32 v{STT+12}, v6, v{STT+12}', f'v_and_b32 v{STT+13}, v6, v{STT+13}', f'v_and_b32 v{STT+14}, v6, v{STT+14}', f'v_and_b32 v{STT+15}, v6, v{STT+15}']
    for k in range(1, 8): st += [f'v_add_f32 v{STT}, v{STT}, v{STT+2*k}', f'v_add_f32 v{STT+1}, v{STT+1}, v{STT+2*k+1}']
    tmp = Asm(); ln_stats(tmp, STT, STT+1, STT+2, STT+3, STT+4, STT+5)
    st += [i.text for i in tmp.ins]
    XB = STT + 8
    st += f'''v_sub_f32 v{STT+3}, 0, v{STT+3}
v_and_b32 v{STT+3}, v6, v{STT+3}
v_and_b32 v{STT+5}, v6, v{STT+5}
v_and_b32 v{STT+6}, 0xffff0000, v{STT+3}
v_sub_f32 v{STT+7}, v{STT+3}, v{STT+6}
v_cvt_pk_bf16_f32 v{XB}, v{STT+6}, v{STT+6}
v_and_b32 v{STT+6}, 0xffff0000, v{STT+5}
v_cvt_pk_bf16_f32 v{XB+1}, v{STT+7}, v{STT+6}
v_sub_f32 v{STT+7}, v{STT+5}, v{STT+6}
v_cvt_pk_bf16_f32 v{XB+2}, v{STT+7}, 0
v_mov_b32 v{XB+3}, 0'''.split('\n')
    RS = STT + 4
    lab = [0]
    def epi(b, packed=False):
        A = ACC4 + 16*b; l = [f's_xor_b32 s59, s16, {b}', 's_lshl_b32 s59, s59, 11', 's_add_u32 s59, s59, s58']
        for p in range(8):
            if packed:
                l += [f'v_pk_mul_f32 {vr(A+2*p,2)}, {vr(A+2*p,2)}, {vr(RS,2)} op_sel_hi:[1,0]']
            else:
                l += [f'v_mul_f32 v{A+2*p}, v{RS}, v{A+2*p}', f'v_mul_f32 v{A+2*p+1}, v{RS}, v{A+2*p+1}']
            l += [f'v_mul_f32 v{A+2*p}, v{A+2*p}, abs(v{A+2*p})', f'v_mul_f32 v{A+2*p+1}, v{A+2*p+1}, abs(v{A+2*p+1})',
                  f'v_cvt_pk_bf16_f32 v{A+p}, v{A+2*p}, v{A+2*p+1}', f'v_pk_max_i16 v{A+p}, v{A+p}, 0']
        def stores():
            lab[0] += 1
            dual([f'buffer_store_dwordx4 {vr(A+4*t,4)}, v2, s[12:15], s59 offen offset:{1024*t}' for t in range(2)], 'h1st', f'LB_e{lab[0]}')
        return l + [stores]
    queue = []
    def drainq(k):
        for _ in range(k):
            if not queue: return
            x = queue.pop(0)
            e(x) if isinstance(x, str) else x()
    for n, (s, bs) in enumerate(sched):
        two = len(bs) == 2
        if n == 10: queue += st
        if n == 31: queue += epi(0) + epi(1)
        if n == 59: queue += epi(2)
        ahead = 1 if two else 2
        nxt = []
        if two:
            if n + 1 < 28: nxt = rds(n+1)
            else: nxt = rds(28) + rds(29)
            vm.wait(f'h{s}', 'lgkmcnt(0)')
        else:
            if n == 28: nxt = rds(30) + rds(31); e('s_waitcnt lgkmcnt(2)')
            else:
                if n + 3 < len(sched): nxt = rds(n+3)
                e(f's_waitcnt lgkmcnt({2*min(2, len(sched) - 1 - n)})')
        for k, b in enumerate(bs):
            acc = vr(ACC4 + 16*b, 16)
            w = vr(WF + 8*(n & 1) + 4*k, 4) if two else vr(WF + 4*(n & 3), 4)
            e(f'{MF} {acc}, {w}, {vr(HF+4*s,4)}, ' + (acc if s else '0'))
            if k == 0: e('\n'.join(nxt))
            if two and k == 1:
                if s + HP < 28: hl(s + HP)
                elif s + HP == 28 and knob('t3', 1): vm.op('buffer_load_dword v13, v240, s[12:15], s58 offen sc1', 'T')
                else: w2l()
                drainq(3)
            if not two:
                if n % 2 == 0: w2l()
                drainq(3 if n % 2 else 2)
        if s == 27:
            if two: drainq(99)
            for b in bs: e(f'{MF} {vr(ACC4+16*b,16)}, {ar(224+4*b,4)}, {vr(XB,4)}, {vr(ACC4+16*b,16)}')
    stamp(e, 10)
    drainq(999)
    assert w2n[0] == 56, w2n
    e(f'''s_lshl_b32 s55, s16, 5
s_add_u32 s55, s55, s20
s_lshl_b32 s55, s55, 2
s_add_u32 s55, s55, {20*128}
v_mov_b32 v14, s55
s_mul_i32 s55, s16, 7
s_lshr_b32 s55, s55, 1
v_and_b32 v15, 3, v1
v_add_u32 v15, s55, v15
v_bfe_u32 v13, v1, 2, 1
v_lshl_add_u32 v15, v13, 5, v15
v_lshlrev_b32 v15, 2, v15
s_lshl_b32 s55, s21, 8
s_add_u32 s55, s55, s25
s_add_u32 s55, s55, {20*128}''')
    queue += epi(3, True); drainq(999)
    e(f'''s_mul_i32 s56, s23, 114688
s_xor_b32 s57, s23, 1
s_mul_i32 s57, s57, 114688
s_mul_i32 s59, s16, {28*1024}
s_add_u32 s59, s59, {WS_H1}
s_add_u32 s56, s56, s59
s_add_u32 s57, s57, s59''')
    vm.wait('h1st')
    dual(['buffer_store_dword v8, v14, s[12:15], s25 offen'], 'f4', 'LB_f4')
    stamp(e, 11)
    poll('LB_p4', 'v15', 's55')
    stamp(e, 12)
    GF, ACC5, RING = 16, 144, 32
    GP = knob('gp', 12)
    s5 = [(a, ks) for a in (1, 0) for ks in range(28)]
    def gl(n):
        a, ks = s5[n]
        if ks and ks % 4 == 0: e(f's_add_u32 s{56+a}, s{56+a}, 4096')
        vm.op(f'buffer_load_dwordx4 {vr(GF+4*(n%RING),4)}, v2, s[12:15], s{56+a} offen offset:{(ks&3)*1024} sc1', f'g{n}')
    for n in range(GP): gl(n)
    for n, (a, ks) in enumerate(s5):
        vm.wait(f'g{n}')
        for f in (1, 0):
            acc = vr(ACC5 + 16*(2*a+f), 16)
            c = acc if ks else (vr(224, 16) if (a, f) == (0, 0) else '0')
            e(f'{MF} {acc}, {ar(8*ks+4*f,4)}, {vr(GF+4*(n%RING),4)}, {c}')
            if f == 1 and n + GP < 56: gl(n + GP)
            if a == 0 and f == 0:
                if 3 <= ks < 11: e(rwr(2 + (ks-3)//4, ACC5, (ks-3) % 4))
                if ks == 14: e('s_waitcnt lgkmcnt(0)\ns_barrier')
                if 15 <= ks < 19: e(rrd(2, ACC5, ks-15) + '\n' + rrd(3, ACC5, ks-15))
                if ks == 21: e('s_waitcnt lgkmcnt(0)')
                if 21 <= ks < 25:
                    for r in range(4): e(f'v_add_f32 v{ACC5+32+4*(ks-21)+r}, v{ACC5+32+4*(ks-21)+r}, v{ACC5+48+4*(ks-21)+r}')
    stamp(e, 13)
    for q in range(4): e(rwr(1, ACC5, q))
    for p in range(8): e(f'v_pk_add_f32 {vr(ACC5+2*p,2)}, {vr(ACC5+2*p,2)}, {vr(ACC5+32+2*p,2)}')
    e('s_waitcnt lgkmcnt(0)\ns_barrier')
    for q in range(4): e(rrd(1, ACC5, q))
    for t in range(2):
        e(f's_waitcnt lgkmcnt({2-2*t})')
        for p in range(4*t, 4*t+4):
            e(f'v_pk_add_f32 {vr(ACC5+2*p,2)}, {vr(ACC5+2*p,2)}, {vr(ACC5+16+2*p,2)}')
            e(f'v_cvt_pk_bf16_f32 v{16+p}, v{ACC5+2*p}, v{ACC5+2*p+1}')
        e(f'buffer_store_dwordx4 {vr(16+4*t,4)}, v5, s[40:43], s52 offen offset:{32*t}')
    stamp(e, 14)
    stamp_out(e, 1, 16)
    e('s_endpgm')
    for x in slow: e(x)
    e('LB_fallback:\ns_mov_b32 s30, 1\ns_waitcnt vmcnt(0)\ns_barrier')
    MXB = SCR
    d = vr(S, 16)
    for s in range(4):
        e(f'v_mov_b32 v{128+s}, 0xff800000')
        for j in range(16):
            e(f'{MF} {d}, {ar(16*j,4)}, {vr(Q+8*s,4)}, 0\n{MF} {d}, {ar(16*j+4,4)}, {vr(Q+8*s+4,4)}, {d}')
            for p in range(8): e(f'v_max3_f32 v{128+s}, v{S+2*p}, v{S+2*p+1}, v{128+s}')
        e(f'''v_mov_b32 v13, v{128+s}
v_permlane32_swap_b32 v{128+s}, v13
v_max_f32 v{128+s}, v{128+s}, v13
s_xor_b32 s50, s16, {3-s}
s_lshl_b32 s50, s50, 9
s_add_u32 s50, s50, {MXB}
v_and_b32 v13, 31, v1
v_lshlrev_b32 v13, 4, v13
v_add_u32 v{132+s}, s50, v13
s_lshl_b32 s50, s16, 2
v_add_u32 v13, s50, v{132+s}
ds_write_b32 v13, v{128+s}''')
    e('s_waitcnt lgkmcnt(0)\ns_barrier')
    for s in range(4): e(f'ds_read_b128 {vr(136+4*s,4)}, v{132+s}')
    e('s_waitcnt lgkmcnt(0)\ns_barrier')
    for s in range(4):
        e(f'v_max3_f32 v13, v{136+4*s}, v{137+4*s}, v{138+4*s}\nv_max_f32 v13, v13, v{139+4*s}')
        for r in range(16): e(f'v_sub_f32 v{NM+r}, 0, v13\nv_mov_b32 v{O+16*s+r}, 0')
        for j in range(16):
            e(f'{MF} {d}, {ar(16*j,4)}, {vr(Q+8*s,4)}, {vr(NM,16)}\n{MF} {d}, {ar(16*j+4,4)}, {vr(Q+8*s+4,4)}, {d}')
            for r in range(16): e(f'v_exp_f32 v{S+r}, v{S+r}')
            for t in range(2): e(f'{SM} {vr(O+16*s,16)}, {ar(16*j+8+4*t,4)}, {vr(S+8*t,8)}, v7')
            e('s_nop 7')
        e('s_nop 7')
    for k in range(12): e(pwr(k//4, k % 4))
    e('s_waitcnt lgkmcnt(0)\ns_barrier')
    for k in range(12): e(prd(k//4, k % 4))
    e('s_branch LB_combine')
    e('LB_end:')
    return e, dict(grid=256, lds=163840, vgpr=512, accum=256)

if __name__ == '__main__':
    ks = [('qkv_kernel', k_a()), ('block_kernel', k_b())]
    outs = [a for a in sys.argv[1:] if a.endswith('.s')]
    build(ks, outs[0] if outs else ('stamp2.s' if STAMP else 'v2.s'))
```

```python
import sys, math, struct
from asmlib import *
from gen1 import NAME, MF, SM, f32, QSCALE, swap23, halves_sum, tr_lane_part, ln_stats

TTP = 90112
WS_O, WS_H, WS_S, WS_H1, WS_WF, WS_FL, WS_ST = 0x600000, 0x800000, 0x9E0000, 0xA40000, 0x1200000, 0x1400000, 0x1500000
WS_F1 = WS_FL + 0x10000
WS_BYTES = 0x1600000
WFP = 144*2048
POLL_MAX = 1 << 18
STAMP = '--stamp' in sys.argv
def knob(name, d):
    for a in sys.argv:
        if a.startswith(name + '='): return int(a.split('=')[1])
    return d
STSET = knob('st', 0)
ST_NAMES = [['start', 'p1ld', 'p1go', 'p1end', 'p1st', 's1sig', 's1done', 'a0', 'aB', 'comb', 's2sig', 's2done', 'p3end', 'p4end', 's4done', 'end'],
            ['comb', 's2sig', 's2win', 's2done', 'p3mf', 'p3st', 'p3end', 's3done', 'p4a', 'p4mf', 'p4end', 's4done', 'p5a', 'p5mf', 'p5st', 'end']][STSET]

def srd2(e, d, nbytes):
    e(f's_mov_b32 s{d+2}, {nbytes}\ns_mov_b32 s{d+3}, 0x00020000')
def stamp(e, name):
    if STAMP and name in ST_NAMES:
        i = ST_NAMES.index(name)
        e(('s_memtime' if '--cyc' in sys.argv else 's_memrealtime') + f' s[{68+2*i}:{69+2*i}]')
def stamp_out(e):
    if not STAMP: return
    e('s_waitcnt vmcnt(0)')
    stamp(e, 'end')
    e('s_waitcnt lgkmcnt(0)')
    e(f's_lshl_b32 s3, s2, 2\ns_add_u32 s3, s3, s16\ns_lshl_b32 s3, s3, 6\ns_add_u32 s3, s3, {WS_ST}\nv_mov_b32 v1, 0')
    for i in range(16):
        e(f'v_mov_b32 v0, s{68+2*i}\nbuffer_store_dword v0, v1, s[12:15], s3 offen offset:{4*i}')

def phase1(e):
    XR = 86016; CSB = XR + 65536
    ROT = knob('rot', 7); PF = knob('pfa', 2)
    stamp(e, 'start')
    e('''s_cmp_ge_u32 s2, 256
s_cbranch_scc1 L_end
s_load_dwordx2 s[4:5], s[0:1], 0
s_load_dwordx2 s[8:9], s[0:1], 8
s_load_dwordx2 s[12:13], s[0:1], 80
s_load_dwordx2 s[40:41], s[0:1], 16
s_load_dwordx2 s[42:43], s[0:1], 48
s_load_dwordx2 s[60:61], s[0:1], 32
s_load_dwordx2 s[100:101], s[0:1], 72
v_lshrrev_b32 v2, 6, v0
v_and_b32 v1, 63, v0
v_readfirstlane_b32 s16, v2
s_and_b32 s46, s2, 7
s_lshr_b32 s47, s2, 3
s_mul_i32 s48, s47, 37
s_lshr_b32 s48, s48, 8         ; rb' = i/7
s_mul_i32 s49, s48, 7
s_sub_u32 s49, s47, s49        ; cw'
s_lshr_b32 s17, s46, 1
s_lshl2_add_u32 s17, s17, s48  ; rb
s_and_b32 s18, s46, 1
s_mul_i32 s18, s18, 7
s_add_u32 s18, s18, s49        ; cw''')
    if ROT == 7:
        e('''s_lshl1_add_u32 s50, s48, s49
s_cmp_ge_u32 s50, 7
s_cselect_b32 s51, 7, 0
s_sub_u32 s50, s50, s51        ; rot''')
    elif ROT == 1: e('s_mov_b32 s50, 0')
    elif ROT == 2: e('s_add_u32 s50, s48, s49\ns_and_b32 s50, s50, 1\ns_mul_i32 s50, s50, 4')
    elif ROT == 4: e('s_add_u32 s50, s48, s49\ns_and_b32 s50, s50, 3\ns_lshl_b32 s50, s50, 1')
    e(f'''s_lshl2_add_u32 s19, s17, s16  ; tt
s_mul_i32 s52, s19, {32*896}
s_mul_i32 s53, s16, {16*2688}
s_mul_i32 s54, s18, 192
s_add_u32 s53, s53, s54
s_lshl_b32 s36, s16, 14
s_add_u32 s36, s36, {XR}
s_mul_i32 s37, s16, 3072''')
    def offs(it):
        e(f's_lshl_b32 s{20+it}, s50, 7\ns_add_u32 s{20+it}, s{20+it}, s52\ns_mul_i32 s{28+it}, s50, {64*2688}\ns_add_u32 s{28+it}, s{28+it}, s53')
        if it < 6: e('s_add_u32 s50, s50, 1\ns_cmp_eq_u32 s50, 7\ns_cselect_b32 s50, 0, s50')
    offs(0)
    srd2(e, 4, 2048*896); srd2(e, 8, 448*2688); srd2(e, 12, WS_BYTES)
    e('''v_lshrrev_b32 v24, 3, v1
v_mul_u32_u24 v28, 896, v24
v_lshrrev_b32 v25, 4, v1
v_and_b32 v26, 7, v1
v_xor_b32 v25, v25, v26
v_lshl_add_u32 v2, v25, 4, v28
v_xor_b32 v3, 64, v2
v_add_u32 v3, 6144, v3
v_add_u32 v4, 12288, v2
v_add_u32 v5, 12288, v3''')
    for j in range(3):
        e(f'''v_add_u32 v24, {64*j}, v1
v_mul_u32_u24 v25, 5462, v24
v_lshrrev_b32 v25, 16, v25
v_mul_u32_u24 v26, {2688-192}, v25
v_lshl_add_u32 v{6+j}, v1, 4, v26''')
    UB = CSB + 2048
    def unit_setup():
        e(f'''s_lshl2_add_u32 s55, s2, s16
s_mul_i32 s56, s55, 9363
s_lshr_b32 s56, s56, 16        ; ks'
s_mul_i32 s57, s56, 7
s_sub_u32 s57, s55, s57        ; fb
s_mul_i32 s59, s57, {WFP}
s_lshl_b32 s58, s56, 11
s_add_u32 s59, s59, s58
s_add_u32 s59, s59, {WS_WF}
s_cmp_lt_u32 s56, 144
s_cselect_b32 s59, s59, {WS_BYTES}
s_sub_u32 s58, s56, 112
s_lshr_b32 s62, s58, 1
s_mul_i32 s62, s62, 28
s_and_b32 s58, s58, 1
s_lshl4_add_u32 s62, s58, s62
s_lshl_b32 s58, s56, 4         ; W2 row
s_cmp_lt_u32 s56, 112
s_cselect_b32 s58, s58, s62
s_cselect_b32 s64, s42, s40
s_cselect_b32 s65, s43, s41
s_mov_b32 s66, {448*896}
s_cselect_b32 s66, {1792*896}, s66
s_mov_b32 s67, 0x00020000
s_mul_i32 s58, s58, 896
s_lshl_b32 s57, s57, 7
s_add_u32 s58, s58, s57
s_lshl_b32 s39, s16, 11
s_add_u32 s39, s39, {UB}
v_bfe_u32 v25, v1, 4, 1
v_lshlrev_b32 v25, 2, v25
v_and_b32 v26, 7, v1
v_xor_b32 v25, v25, v26
v_lshl_add_u32 v176, v25, 4, v28
v_add_u32 v177, 6144, v176''')
        tr_lane_part(e, 178, 1, 128, 24, 26)
        e('''v_bfe_u32 v24, v1, 3, 1
v_lshl_add_u32 v178, v24, 6, v178
v_add_u32 v178, s39, v178
v_xor_b32 v179, 64, v178
v_lshlrev_b32 v188, 4, v1
v_mov_b32 v189, 0''')
    unit_dma = ['s_mov_b32 m0, s39', 'buffer_load_dwordx4 v176, s[64:67], s58 offen lds', 'buffer_load_dwordx4 v177, s[64:67], s58 offen offset:1024 lds']
    unit_rd = [f'ds_read_b64_tr_b16 {vr(180+4*f+2*rd,2)}, v{178+f} offset:{rd*512}' for f in range(2) for rd in range(2)]
    unit_st = [f'buffer_store_dwordx4 {vr(180+4*f,4)}, v188, s[12:15], s59 offen offset:{1024*f} sc1' for f in range(2)]
    rdy_ld = 'global_load_dword v190, v189, s[100:101] sc1'
    e('s_cmp_ge_u32 s47, 28\ns_waitcnt lgkmcnt(0)\ns_cbranch_scc1 L_idle')
    stamp(e, 'p1ld')
    def loads(it):
        l = [f's_add_u32 m0, s37, {it*12288}']
        l += [f'buffer_load_dwordx4 v{6+j}, s[8:11], s{28+it} offen offset:{1024*j} lds' for j in range(3)]
        l += [f's_add_u32 m0, s36, {(it&3)*4096}']
        l += [f'buffer_load_dwordx4 v{2+i}, s[4:7], s{20+it} offen offset:{1024*i} lds' for i in range(4)]
        return l
    e('\n'.join(loads(0)))
    for it in range(1, 7): offs(it)
    e('''v_and_b32 v24, 31, v1
v_lshrrev_b32 v25, 1, v24
v_lshrrev_b32 v26, 5, v1
v_xor_b32 v25, v25, v26
v_and_b32 v25, 7, v25
v_lshlrev_b32 v25, 4, v25
v_lshl_add_u32 v25, v24, 7, v25
v_add_u32 v25, s36, v25''')
    tr_lane_part(e, 27, 1, 192, 24, 26)
    for kk in range(4):
        e(f'''s_xor_b32 s55, s16, {kk}
s_lshl_b32 s56, s55, 5
s_mul_i32 s57, s55, 3072
v_xor_b32 v{9+kk}, s56, v25
v_add_u32 v{13+kk}, s57, v27
v_add_u32 v{148+kk}, {5*12288}, v{13+kk}''')
    e('v_mov_b32 v17, 0x3f803f80')
    for r in range(18, 24): e(f'v_mov_b32 v{r}, 0')
    unit_setup()
    e(f'''v_and_b32 v24, 31, v1
v_lshlrev_b32 v191, 4, v24
v_add_u32 v191, {CSB}, v191
s_lshl_b32 s55, s16, 9
v_add_u32 v192, s55, v191
s_mul_i32 s56, s18, 3
s_mul_i32 s62, s19, {TTP}
s_add_u32 s63, s62, 86016''')
    swap23(e, 25, 24, 27)
    e('v_lshrrev_b32 v29, 5, v1\nv_mul_u32_u24 v29, 7168, v29\nv_lshl_add_u32 v193, v25, 4, v29\nv_add_u32 v194, 14336, v193')
    for j in range(3):
        e(f'''s_add_u32 s57, s56, {j}
s_cmp_lt_u32 s57, 14
s_cselect_b32 s{47+j}, {f32(QSCALE)}, 1.0
s_lshl_b32 s{44+j}, s57, 11
s_lshl_b32 s55, s57, 9
s_add_u32 s55, s55, {57344 - 28*512}
s_cmp_lt_u32 s57, 28
s_cselect_b32 s{44+j}, s{44+j}, s55
s_add_u32 s{44+j}, s{44+j}, s62''')
    for r in (154, 155, 157, 158, 159, 166, 167, 170, 171, 174, 175): e(f'v_mov_b32 v{r}, 0')
    for r in range(160, 164): e(f'v_mov_b32 v{r}, v17')
    for it in range(1, PF): e('\n'.join(loads(it)))
    e('s_cmp_lt_u32 s18, 9\ns_cbranch_scc1 L_qqq\ns_cmp_eq_u32 s18, 9\ns_cbranch_scc1 L_qvv')

    ACC, WF, XF = 32, 80, 116
    def reads(s):
        it, kk = divmod(s, 4); b = s % 3
        l = [f'ds_read_b128 {vr(XF+4*(s&7),4)}, v{9+kk} offset:{(it&3)*4096}']
        base, off = (13+kk, it*12288) if it < 5 else (148+kk, (it-5)*12288)
        for j in range(3):
            for rd in range(2):
                l.append(f'ds_read_b64_tr_b16 {vr(WF+12*b+4*j+2*rd,2)}, v{base} offset:{off + rd*768 + j*64}')
        return l
    def xdots(s):
        for r in range(4):
            x = XF + 4*(s & 7) + r
            e(f'v_dot2c_f32_bf16 v18, v{x}, v17\nv_dot2c_f32_bf16 v19, v{x}, v{x}')
    def variant(types, lab):
        if lab: e(f'{lab}:')
        vm = VM(e); vm.seq = [it for it in range(PF) for _ in range(7)]
        def emit(l, tag):
            for x in l:
                if x.startswith(('buffer', 'global')): vm.op(x, tag)
                else: e(x)
        vm.wait(0); e('s_barrier')
        stamp(e, 'p1go')
        e('\n'.join(reads(0) + reads(1)))
        US = 4*(7 - PF)
        for s in range(28):
            it, kk = divmod(s, 4); b = s % 3
            x = vr(XF+4*(s & 7), 4)
            mf = []
            for j in range(3):
                w = vr(WF+12*b+4*j, 4); a = vr(ACC+16*j, 16); c = a if s else '0'
                mf.append(f'{MF} {a}, {w}, {x}, {c}' if types[j] == 'q' else f'{MF} {a}, {x}, {w}, {c}')
            rd = reads(s+2) if s < 26 else []
            ld = []; tag = it + PF
            if it + PF <= 6:
                L = loads(it + PF)
                ld = {0: L[:3], 1: L[3:6], 2: L[6:8], 3: L[8:]}[kk]
            if s == US: ld = unit_dma + [rdy_ld]; tag = 'u'
            if s < 27: e(f's_waitcnt lgkmcnt({7 if s < 26 else 0})')
            if kk == 2:
                for r in range(4):
                    for j in range(3): e(f'v_dot2c_f32_bf16 v{20+j}, v{WF+12*b+4*j+r}, v17')
                for s2 in range(max(0, s-3), s + (2 if s == 26 else 1)): xdots(s2)
                if s < 26:
                    vm.wait(it + 1); e('s_barrier')
            e(mf[0]); e('\n'.join(rd[:3]))
            if s == 26:
                for j in range(3): halves_sum(e, 20+j, 24)
                e('ds_write_b128 v192, v[20:23]')
            if s == 27:
                e('''v_cmp_gt_u32 vcc, 32, v1
v_sub_f32 v28, 0, v28
v_cndmask_b32 v28, 0, v28, vcc
v_and_b32 v26, 0xffff0000, v28
v_sub_f32 v27, v28, v26
v_cvt_pk_bf16_f32 v152, v26, v26
v_cvt_pk_bf16_f32 v153, v27, 0''')
            e(mf[1]); e('\n'.join(rd[3:5])); emit(ld[:2], tag)
            if s == 26:
                ln_stats(e, 18, 19, 26, 28, 30)
            if s == 27 and 'v' in types:
                e('''v_cndmask_b32 v29, 0, v30, vcc
v_and_b32 v26, 0xffff0000, v29
v_sub_f32 v27, v29, v26
v_cvt_pk_bf16_f32 v156, v26, v27''')
            e(mf[2]); e('\n'.join(rd[5:])); emit(ld[2:], tag)
            if s == 26:
                vm.wait('u', 'lgkmcnt(0)'); e('s_barrier')
                for w in range(4): e(f'ds_read_b128 {vr(196+4*w,4)}, v191 offset:{512*w}')
                e('\n'.join(unit_rd))
        stamp(e, 'p1end')
        if 'v' in types: e(f'{MF} v[92:107], v[156:159], v[160:163], 0')
        e('s_waitcnt lgkmcnt(0)')
        for j in range(3):
            e(f'''v_add_f32 v{196+j}, v{196+j}, v{200+j}
v_add_f32 v{204+j}, v{204+j}, v{208+j}
v_add_f32 v{196+j}, v{196+j}, v{204+j}
v_and_b32 v26, 0xffff0000, v{196+j}
v_sub_f32 v27, v{196+j}, v26
v_cvt_pk_bf16_f32 v{164+4*j}, v26, v27
v_lshrrev_b32 v{165+4*j}, 16, v{196+j}''')
            if types[j] == 'q': e(f'v_mul_f32 v{212+2*j}, s{47+j}, v30')
            a = vr(ACC+16*j, 16); w = vr(164+4*j, 4)
            e(f'{MF} {a}, {w}, v[152:155], {a}' if types[j] == 'q' else f'{MF} {a}, v[152:155], {w}, {a}')
        e('\n'.join(unit_st))
        if types == 'qvv':
            e('s_mov_b64 exec, 0xff\nbuffer_store_dwordx4 v[160:163], v188, s[12:15], s63 offen sc1\ns_mov_b64 exec, -1')
        for j in range(3):
            A = ACC + 16*j
            for p in range(8):
                if types[j] == 'q': e(f'v_pk_mul_f32 {vr(A+2*p,2)}, {vr(A+2*p,2)}, {vr(212+2*j,2)} op_sel_hi:[1,0]')
                else: e(f'v_pk_mul_f32 {vr(A+2*p,2)}, {vr(A+2*p,2)}, {vr(92+2*p,2)}')
                e(f'v_cvt_pk_bf16_f32 v{A+p}, v{A+2*p}, v{A+2*p+1}')
                if p % 4 == 3:
                    t = p // 4
                    if types[j] == 'q': e(f'buffer_store_dwordx4 {vr(A+4*t,4)}, v188, s[12:15], s{44+j} offen offset:{1024*t} sc1')
                    else: e(f'buffer_store_dwordx4 {vr(A+4*t,4)}, v{193+t}, s[12:15], s{44+j} offen sc1')
        if types != 'qqq': e('s_branch L_s1')
    def idle():
        e('L_idle:')
        e(f'''s_lshl2_add_u32 s55, s46, s47
s_sub_u32 s55, s55, 28         ; 0..31
s_lshl_b32 s56, s55, 12
s_add_u32 s56, s56, {WS_FL}
v_lshlrev_b32 v10, 4, v0
v_mov_b32 v12, 0
v_mov_b32 v13, 0
v_mov_b32 v14, 0
v_mov_b32 v15, 0
buffer_store_dwordx4 v[12:15], v10, s[12:15], s56 offen sc1''')
        unit_setup()
        e('\n'.join(unit_dma))
        e('''v_mov_b32 v11, 1
s_waitcnt vmcnt(2)
s_barrier
s_cmp_lg_u32 s16, 0
s_cbranch_scc1 L_idle2
s_mov_b64 exec, 1
global_atomic_add v189, v11, s[100:101] sc1
s_mov_b64 exec, -1
L_idle2:
s_waitcnt vmcnt(0)''')
        e('\n'.join(unit_rd))
        srd2(e, 60, 448*3584)
        e(f'''v_lshlrev_b32 v10, 7, v0
s_sub_u32 s55, s47, 28
s_mul_i32 s55, s55, {112*3584}
s_mul_i32 s56, s46, 3
s_lshr_b32 s56, s56, 1
s_waitcnt lgkmcnt(0)''')
        e('\n'.join(unit_st))
        for r in range(knob('w1r', 5)):
            e(f'''s_lshl_b32 s57, s56, 15
s_add_u32 s57, s57, s55
buffer_load_dword v14, v10, s[60:63], s57 offen sc1
s_add_u32 s56, s56, 1
s_cmp_eq_u32 s56, 13
s_cselect_b32 s56, 0, s56''')
        e(rdy_ld)
        for n in ('p1ld', 'p1go', 'p1end'): stamp(e, n)
        e('s_branch L_s1')
    variant('vvv', None); idle(); variant('qvv', 'L_qvv'); variant('qqq', 'L_qqq')

def phase2_5(e):
    vm = VM(e); slow = []
    vm.seq = ['p1']
    SCR = 114688
    Q, O, S, WOF, NM = 16, 48, 112, 160, 176
    e('L_s1:')
    stamp(e, 'p1st')
    e(f'''s_load_dwordx2 s[32:33], s[0:1], 40
s_load_dwordx2 s[36:37], s[0:1], 56
s_load_dwordx2 s[40:41], s[0:1], 64
s_bfe_u32 s20, s2, 0x40003     ; j
s_mov_b32 s8, s60
s_mov_b32 s9, s61
s_cmp_lt_u32 s20, 14
s_cselect_b32 s10, {448*3584}, 0
v_lshrrev_b32 v13, 4, v1
v_lshlrev_b32 v15, 2, v13
v_and_b32 v8, 15, v1
v_xor_b32 v15, v15, v8
v_mul_u32_u24 v13, 3584, v13
v_lshl_add_u32 v252, v15, 4, v13
s_mul_i32 s48, s16, {16*3584}
s_lshl_b32 s50, s20, 8
s_add_u32 s48, s48, s50
s_lshl_b32 s49, s16, 12''')
    for i in range(1, 4): e(f'v_add_u32 v{252+i}, {i*(4*3584-1024)}, v252')
    w1n = [0]
    def w1set():
        it = w1n[0] // 4
        e(f's_add_u32 m0, s49, {it*16384}\ns_add_u32 s31, s48, {it*64*3584}')
    def w1l(n=1, auto=True):
        for _ in range(n):
            i = w1n[0] % 4
            if i == 0 and auto: w1set()
            vm.op(f'buffer_load_dwordx4 v{252+i}, s[8:11], s31 offen offset:{1024*i} lds', 'W1'); w1n[0] += 1
    WA_, WB_ = knob('w1a', 8), knob('w1b', 8)
    w1l(WA_)
    e(f'''s_and_b32 s51, s2, 7
s_bfe_u32 s28, s2, 0x10003
s_lshr_b32 s17, s2, 4          ; qb
s_lshl_b32 s18, s51, 1
s_lshr_b32 s19, s2, 7
s_add_u32 s19, s19, s18        ; rb
s_add_u32 s18, s18, s28        ; head
s_lshl_b32 s25, s19, 12
s_add_u32 s25, s25, {WS_FL}
s_getreg_b32 s50, hwreg(HW_REG_XCC_ID, 0, 4)
s_lshl_b32 s26, s50, 2
s_lshl_b32 s29, 14, s26
s_lshl_b32 s26, 1, s26
s_cmp_lt_u32 s50, 8
s_cselect_b32 s26, s26, 0
s_cmp_lt_u32 s20, 14
s_cselect_b32 s26, s26, 0
v_lshlrev_b32 v240, 7, v1      ; lane*128
s_lshl_b32 s50, s17, 7
s_add_u32 s50, s50, {WS_F1}
v_lshl_add_u32 v9, v240, 4, s50
v_mov_b32 v8, 1
s_add_u32 s50, s25, {24*128}
v_writelane_b32 v9, s50, 8
v_writelane_b32 v8, s26, 8''')
    vm.wait('p1')
    e(f'''s_barrier
s_cmp_lg_u32 s16, 0
s_cbranch_scc1 L_s1b
v_cmp_ne_u32 vcc, 32, v190
s_cbranch_vccnz L_rdy
L_rdyd:
s_mov_b64 exec, 0x1ff
buffer_atomic_add v8, v9, s[12:15], 0 offen sc1
s_mov_b64 exec, -1
L_s1b:''')
    slow.append(f'''L_rdy:
s_mov_b32 s26, {POLL_MAX}
L_rdyp:
global_load_dword v190, v189, s[100:101] sc1
s_sub_u32 s26, s26, 1
s_cbranch_scc1 L_rdyd
s_waitcnt vmcnt(0)
v_cmp_ne_u32 vcc, 32, v190
s_cbranch_vccnz L_rdyp
s_branch L_rdyd''')
    stamp(e, 's1sig')
    e(f'''s_and_b32 s21, s20, 1          ; th
s_lshr_b32 s22, s20, 1         ; fb
s_lshl1_add_u32 s23, s19, s21
s_lshr_b32 s50, s16, 1
s_lshl1_add_u32 s23, s23, s50
s_and_b32 s50, s16, 1
s_lshl1_add_u32 s24, s22, s50
v_and_b32 v13, 31, v1
v_mul_u32_u24 v15, 896, v13
v_lshrrev_b32 v8, 5, v1
v_lshlrev_b32 v8, 4, v8
v_add_u32 v0, v15, v8
s_mul_i32 s27, s23, {32*896}
s_lshl_b32 s50, s24, 6
s_add_u32 s27, s27, s50
s_waitcnt lgkmcnt(0)''')
    srd2(e, 32, 3584); srd2(e, 36, 896); srd2(e, 40, 2048*896)
    for t in range(2): vm.op(f'buffer_load_dwordx4 {vr(224+4*t,4)}, v0, s[4:7], s27 offen offset:{32*t}', 'x')
    for t in range(2): vm.op(f'buffer_load_dwordx4 {vr(232+4*t,4)}, v8, s[36:39], s50 offen offset:{32*t}', 'b2')
    swap23(e, 15, 13, 14)
    e('v_lshlrev_b32 v15, 1, v15\ns_lshl_b32 s54, s20, 8')
    for b in range(4):
        e(f's_xor_b32 s55, s16, {b}\ns_lshl_b32 s55, s55, 6\ns_add_u32 s55, s55, s54')
        vm.op(f'buffer_load_ushort v{244+b}, v15, s[32:35], s55 offen', 'b1')
    w1l(WB_)
    e(f'''s_mul_i32 s26, s51, 7
s_mul_i32 s50, s28, 3
s_add_u32 s26, s26, s50
s_lshl_b32 s26, s26, 9         ; c0*512''')
    swap23(e, 3, 1, 4)
    e(f'''v_lshlrev_b32 v3, 4, v3
s_mul_i32 s50, s18, 448
s_add_u32 s50, s50, 57344
v_lshrrev_b32 v4, 5, v1
v_mul_u32_u24 v4, {7168-512}, v4
v_add3_u32 v4, v4, v3, s50
v_add_u32 v248, 14336, v4
v_and_b32 v8, 31, v1
v_cmp_gt_u32 vcc, 28, v8
v_mov_b32 v8, 86016
s_add_u32 s50, s26, {56*512}
v_cndmask_b32 v4, v8, v4, vcc
v_cndmask_b32 v248, v8, v248, vcc
v_add_u32 v3, s50, v3
v_lshlrev_b32 v2, 4, v1        ; lane*16''')
    for s in range(4):
        e(f's_xor_b32 s50, s16, {3-s}\ns_lshl2_add_u32 s50, s17, s50\ns_mul_i32 s{44+s}, s50, {TTP}\ns_add_u32 s{44+s}, s{44+s}, s26')
    for j in range(16):
        e(f's_add_u32 s50, s17, {j}\ns_and_b32 s50, s50, 15\ns_lshl4_add_u32 s50, s16, s50\ns_mul_i32 s{52+j}, s50, {TTP}')
    e('''v_cmp_gt_u32 vcc, 32, v1
s_cmp_eq_u32 s28, 0
s_cselect_b32 s50, -1, 0
v_cndmask_b32 v6, 0, -1, vcc
v_not_b32 v14, v6
v_or_b32 v14, s50, v14
s_not_b32 s50, s50
v_or_b32 v5, s50, v6
v_mov_b32 v7, 0xdddd
s_mov_b32 s30, 0''')
    for r in range(64): e(f'v_mov_b32 v{O+r}, 0')
    for s in range(3):
        e(f's_xor_b32 s50, s16, {3-s}\ns_mul_i32 s50, s50, 12288\ns_add_u32 s50, s50, {SCR}\nv_add_u32 v{9+s}, s50, v2')
    e(f's_mul_i32 s50, s16, 12288\ns_add_u32 s50, s50, {SCR}\nv_add_u32 v12, s50, v2')
    e(f'''s_mul_i32 s50, s23, 28672
s_lshl_b32 s26, s24, 11
s_add_u32 s50, s50, s26
s_add_u32 s50, s50, {WS_H}
v_add_u32 v241, s50, v240
s_lshl_b32 s50, s23, 12
s_lshl_b32 s26, s22, 9
s_add_u32 s50, s50, s26
s_add_u32 s50, s50, {WS_S - 16*128}
v_add_u32 v8, s50, v240
v_cmp_gt_u32 vcc, 16, v1
v_mov_b32 v13, {WS_BYTES}
s_lshr_b32 s50, s2, 3
v_cndmask_b32 v241, v8, v241, vcc
v_cmp_gt_u32 vcc, 20, v1
s_lshl2_add_u32 s50, s50, s16
s_lshl_b32 s3, s50, 14
v_cndmask_b32 v241, v13, v241, vcc
s_add_u32 s3, s3, {WS_WF}
s_add_u32 s50, s25, {24*128}
v_writelane_b32 v241, s50, 20
s_lshl2_add_u32 s50, s19, s16
s_mul_i32 s101, s50, 114688
s_lshl_b32 s50, s20, 13
s_add_u32 s101, s101, s50
s_add_u32 s101, s101, {WS_H1}
s_add_u32 s100, s3, 8192
v_and_b32 v13, 0x780, v240
s_lshl_b32 s50, s51, 11
s_add_u32 s50, s50, {WS_F1}
s_cmp_lg_u32 s16, 0
s_cbranch_scc1 L_s1done
s_mov_b32 s26, {POLL_MAX}
L_s1poll:
buffer_load_dword v8, v13, s[12:15], s50 offen sc1
s_sub_u32 s26, s26, 1
s_cbranch_scc1 L_s1done
s_waitcnt vmcnt(0)
v_cmp_gt_u32 vcc, 16, v8
s_cbranch_vccnz L_s1poll
L_s1done:
s_barrier''')
    stamp(e, 's1done')
    def kl(j, t): vm.op(f'buffer_load_dwordx4 {ar(16*j+4*t,4)}, v3, s[12:15], s{52+j} offen offset:{1024*t} sc1', f'K{j}')
    def vl(j, t): vm.op(f'buffer_load_dwordx4 {ar(16*j+8+4*t,4)}, v{248 if t else 4}, s[12:15], s{52+j} offen sc1', f'V{j}')
    def ql(s, t): vm.op(f'buffer_load_dwordx4 {vr(Q+8*s+4*t,4)}, v2, s[12:15], s{44+s} offen offset:{1024*t} sc1', f'Q{s}')
    ql(0, 0); kl(0, 0); ql(0, 1); kl(0, 1); ql(1, 0); ql(1, 1); vl(0, 0); vl(0, 1); ql(2, 0); ql(2, 1)
    kl(1, 0); kl(1, 1)
    def qmask(s):
        vm.wait(f'Q{s}')
        e(f'''v_and_b32 v{Q+8*s}, v14, v{Q+8*s}
v_and_b32 v{Q+8*s+1}, v14, v{Q+8*s+1}
v_and_b32 v{Q+8*s+6}, v5, v{Q+8*s+6}
v_and_b32 v{Q+8*s+7}, v5, v{Q+8*s+7}''')
    steps = [(s, j) for j in range(16) for s in range(3)] + [(3, j) for j in range(16)]
    N = len(steps)
    def qk(i, t):
        s, j = steps[i]; d = vr(S + 16*(i % 3), 16)
        return f'{MF} {d}, {ar(16*j+4*t,4)}, {vr(Q+8*s+4*t,4)}, ' + ('0' if t == 0 else d)
    def pv(i, t):
        s, j = steps[i]
        return f'{SM} {vr(O+16*s,16)}, {ar(16*j+8+4*t,4)}, {vr(S+16*(i%3)+8*t,8)}, v7'
    pre, post = {}, {}
    def P(d, i, sl, f): d.setdefault((i, sl), []).append(f)
    seq = [(f, j, t) for j in range(2, 16) for f in (kl, vl) for t in range(2)] + [(ql, 3, 0), (ql, 3, 1)]
    for n, (f, j, t) in enumerate(seq): P(post, n // 2, 2*(n % 2), (lambda f=f, j=j, t=t: f(j, t)))
    i0 = 29
    for n in range(WA_ + WB_, 28):
        if n % 4 == 0: P(post, i0, 0, w1set)
        P(post, i0, 1, lambda: w1l(1, False)); i0 += 1
    TM = knob('tm', 15); i0 = max(i0, knob('ts', 0))
    if TM & 1: P(post, i0, 0, lambda: vm.op('buffer_load_dword v242, v240, s[12:15], s101 offen sc1', 'T'))
    P(post, i0, 2, lambda: vm.op('buffer_load_dword v243, v241, s[12:15], 0 offen sc1', 'T'))
    if TM & 4: P(post, i0+1, 0, lambda: vm.op('buffer_load_dword v242, v240, s[12:15], s3 offen sc1', 'T'))
    if TM & 8: P(post, i0+1, 2, lambda: vm.op('buffer_load_dword v242, v240, s[12:15], s100 offen sc1', 'T'))
    P(pre, 0, 0, lambda: qmask(1)); P(pre, 0, 3, lambda: vm.wait('V0')); P(pre, 1, 0, lambda: qmask(2))
    P(pre, 2, 0, lambda: vm.wait('K1')); P(pre, 3, 3, lambda: vm.wait('V1'))
    for j in range(2, 16):
        if j < 6 or j % 2 == 0: P(pre, 3*j - 1, 0, (lambda j=j: vm.wait(f'V{j if j < 6 else j+1}')))
    P(pre, 46, 0, lambda: qmask(3))
    def pwr(s, q): return f'ds_write_b128 v{9+s}, {vr(O+16*s+4*q,4)} offset:{s*4096 + q*1024}'
    def prd(s, q): return f'ds_read_b128 {vr(O+16*s+4*q,4)}, v12 offset:{s*4096 + q*1024}'
    for k in range(12): P(post, 50 + k//2, 2*(k % 2), (lambda k=k: e(pwr(k//4, k % 4))))
    P(post, 59, 0, lambda: e('s_waitcnt lgkmcnt(0)\ns_barrier'))
    for k in range(12): P(post, 60 + k//4, k % 4, (lambda k=k: e(prd(k//4, k % 4))))
    qmask(0); vm.wait('K0')
    stamp(e, 'a0')
    e(qk(0, 0)); vl(1, 0); e(qk(0, 1)); vl(1, 1)
    for i in range(N):
        if i == 48: stamp(e, 'aB')
        b = S + 16*(i % 3)
        mf = [qk(i+1, 0) if i+1 < N else None, qk(i+1, 1) if i+1 < N else None, pv(i-1, 1) if i > 0 else None, pv(i, 0)]
        for sl in range(4):
            for f in pre.get((i, sl), []): f()
            if mf[sl]: e(mf[sl])
            for f in post.get((i, sl), []): f()
            for r in range(4): e(f'v_exp_f32 v{b+4*sl+r}, v{b+4*sl+r}')
    e(pv(N-1, 1))
    assert w1n[0] == 28
    e('L_combine:')
    stamp(e, 'comb')
    e('s_waitcnt lgkmcnt(0)')
    for r in range(16): e(f'v_add_f32 v{O+r}, v{O+r}, v{O+16+r}')
    for p in range(8): e(f'v_pk_add_f32 {vr(O+2*p,2)}, {vr(O+2*p,2)}, {vr(O+32+2*p,2)}')
    for p in [6, 0, 1, 2, 3, 4, 5, 7]:
        e(f'v_pk_add_f32 {vr(O+2*p,2)}, {vr(O+2*p,2)}, {vr(O+48+2*p,2)}')
        if p == 6: e(f'v_mov_b32 v13, v{O+12}\nv_mov_b32 v15, v{O+12}')
        if p == 1: e('v_permlane32_swap_b32 v13, v15')
        if p == 2: e('v_rcp_f32 v112, v15')
    e(f'''s_lshl2_add_u32 s50, s17, s16
s_lshl4_add_u32 s50, s50, s18
s_lshl_b32 s50, s50, 11
s_add_u32 s50, s50, {WS_O}''')
    for p in range(8):
        e(f'v_pk_mul_f32 {vr(O+2*p,2)}, {vr(O+2*p,2)}, v[112:113] op_sel_hi:[1,0]')
        e(f'v_cvt_pk_bf16_f32 v{O+p}, v{O+2*p}, v{O+2*p+1}')
        if p == 3: vm.op(f'buffer_store_dwordx4 {vr(O,4)}, v2, s[12:15], s50 offen sc1', 'Ost')
    e(f'v_and_b32 v{O+6}, v6, v{O+6}\nv_and_b32 v{O+7}, v6, v{O+7}')
    vm.op(f'buffer_store_dwordx4 {vr(O+4,4)}, v2, s[12:15], s50 offen offset:1024 sc1', 'Ost')
    e(f'''v_cmp_nle_f32 vcc, {f32(2.0**-40)}, v15
s_mul_i32 s44, s22, {WFP}
s_mov_b64 s[46:47], vcc
v_cmp_nge_f32 vcc, {f32(2.0**40)}, v15
s_add_u32 s44, s44, {WS_WF}
s_or_b64 vcc, vcc, s[46:47]
s_cselect_b32 s26, 1, 0
s_andn2_b32 s26, s26, s30
v_mov_b32 v13, s26
ds_write_b32 v12, v13
s_mul_i32 s45, s16, {28*2048}
s_add_u32 s45, s45, s44
s_lshl_b32 s46, s16, 14
s_add_u32 s44, s44, s46
s_add_u32 s44, s44, {112*2048}
s_and_b32 s46, s16, 1
s_lshl_b32 s46, s46, 10
v_add_u32 v3, s46, v2
v_xor_b32 v4, 1024, v3''')
    def wol(ks, f):
        if f == 0 and ks % 2 == 0: e(f's_add_u32 s47, s44, {ks*2048}')
        vm.op(f'buffer_load_dwordx4 {vr(WOF+8*ks+4*f,4)}, v{3+f}, s[12:15], s47 offen offset:{(ks%2)*2048} sc1', 'Wo')
    w2n = [0]
    def w2l(n=1):
        for _ in range(n):
            if w2n[0] >= 56: return
            ks, f = divmod(w2n[0], 2); w2n[0] += 1
            if f == 0 and ks % 2 == 0: e(f's_add_u32 s51, s45, {ks*2048}')
            vm.op(f'buffer_load_dwordx4 {ar(8*ks+4*f,4)}, v{3+f}, s[12:15], s51 offen offset:{(ks%2)*2048} sc1', 'W2')
    for ks in range(4): wol(ks, 0); wol(ks, 1)
    e(f'''v_and_b32 v13, 3, v1
v_mul_u32_u24 v13, 12288, v13
v_add_u32 v13, {SCR}, v13
v_mov_b32 v15, {WS_BYTES}
s_cmp_eq_u32 s16, 0
s_cselect_b32 s26, 14, 0
v_cmp_gt_u32 vcc, s26, v1
v_mov_b32 v8, 1
s_lshl_b32 s50, s17, 12
v_cndmask_b32 v15, v15, v240, vcc
s_add_u32 s50, s50, {WS_FL}''')
    WA = 248
    tr_lane_part(e, WA, 1, 256, 14, 5)
    e(f'v_bfe_u32 v14, v1, 2, 2\nv_xor_b32 v14, s16, v14\nv_lshl_add_u32 v{WA}, v14, 6, v{WA}')
    for b in range(1, 4): e(f'v_xor_b32 v{WA+b}, {64*b}, v{WA}')
    for b in range(4): e(f'v_add_u32 v{WA+4+b}, 0x10000, v{WA+b}')
    vm.wait('Ost', 'lgkmcnt(0)')
    e('''s_barrier
ds_read_b32 v13, v13
s_waitcnt lgkmcnt(0)
v_cmp_ne_u32 vcc, 0, v13
s_cbranch_vccnz L_fallback''')
    vm.op('buffer_atomic_add v8, v15, s[12:15], s50 offen sc1', 'sig2')
    stamp(e, 's2sig')
    e('s_cmp_ge_u32 s20, 14\ns_cbranch_scc1 L_end')
    def w1rd(dst, s, b, k='v'):
        base = WA + b + (4 if s >= 16 else 0); off = (s & 15)*4096
        return [f'ds_read_b64_tr_b16 {vr(dst+2*rd,2,k)}, v{base} offset:{off + rd*1024}' for rd in range(2)]
    e('v_mov_b32 v14, 0x3f803f80\nv_mov_b32 v156, 0\nv_mov_b32 v157, 0')
    B1 = knob('b1', 6)
    rest = [(lambda ks=ks, f=f: wol(ks, f)) for ks in range(4, 8) for f in range(2)] + [w2l]*B1
    per = (len(rest) + 6) // 7
    for g in range(7):
        for k in range(4): e('\n'.join(w1rd(16 + 16*(g & 1) + 4*k, 4*g + k, 0)))
        for f in rest[per*g:per*g+per]: f()
        if g:
            e('s_waitcnt lgkmcnt(8)')
            for r in range(16): e(f'v_dot2c_f32_bf16 v{156 + (r & 1)}, v{16 + 16*((g-1) & 1) + r}, v14')
    ACC3 = 80
    for r in range(8):
        e(f'v_lshlrev_b32 v{ACC3+2*r}, 16, v{224+r}\nv_and_b32 v{ACC3+2*r+1}, 0xffff0000, v{224+r}')
    e('s_waitcnt lgkmcnt(0)')
    for r in range(16): e(f'v_dot2c_f32_bf16 v{156 + (r & 1)}, v{16 + r}, v14')
    e(f'''v_and_b32 v13, 31, v1
v_lshlrev_b32 v13, 2, v13
v_sub_u32 v13, v13, v2
v_add_f32 v156, v156, v157''')
    halves_sum(e, 156, 157)
    e('''v_add_u32 v5, v12, v13
ds_write_b32 v5, v156 offset:1024
v_add_u32 v157, v11, v13
v_add_u32 v158, v10, v13
v_add_u32 v159, v9, v13''')
    e(f'''v_readlane_b32 s31, v243, 20
s_mul_i32 s56, s23, 32768
s_lshl_b32 s55, s16, 13
s_add_u32 s55, s55, {WS_O}
s_add_u32 s56, s56, s55
s_xor_b32 s57, s56, 32768
s_add_u32 s58, s56, 4096
s_add_u32 s59, s57, 4096
s_cmp_eq_u32 s31, s29
s_cselect_b32 s31, 1, 0
s_lshl_b32 s55, s20, 7
v_mov_b32 v13, s55''')
    if knob('nolocal', 0): e('s_mov_b32 s31, 0')
    stamp(e, 's2win')
    e(f'''s_cmp_lg_u32 s16, 0
s_cbranch_scc1 L_s2done
s_mov_b32 s26, {POLL_MAX}
L_s2poll:
buffer_load_dword v15, v13, s[12:15], s25 offen sc1
s_sub_u32 s26, s26, 1
s_cbranch_scc1 L_s2done
s_waitcnt vmcnt(0)
v_cmp_gt_u32 vcc, 16, v15
s_cbranch_vccnz L_s2poll
L_s2done:
s_waitcnt lgkmcnt(0)
s_barrier''')
    stamp(e, 's2done')
    AF = 16
    def ol(a, ks): vm.op(f'buffer_load_dwordx4 {vr(AF+32*a+4*ks,4)}, v2, s[12:15], s{56 + a + (2 if ks >= 4 else 0)} offen offset:{(ks&3)*1024} sc1', f'O{a}{ks}')
    for ks in range(8): ol(1, ks)
    e('ds_read_b32 v157, v157 offset:1024\nds_read_b32 v158, v158 offset:1024\nds_read_b32 v159, v159 offset:1024')
    for ks in range(4): ol(0, ks)
    e('s_waitcnt lgkmcnt(0)\ns_barrier')
    for b in range(4):
        e(f'''v_and_b32 v13, 0xffff0000, v{156+b}
v_sub_f32 v15, v{156+b}, v13
v_cvt_pk_bf16_f32 v15, v13, v15
v_lshrrev_b32 v13, 16, v13
v_lshl_or_b32 v13, v{244+b}, 16, v13
v_accvgpr_write_b32 a{224+4*b}, v15
v_accvgpr_write_b32 a{225+4*b}, v13
v_accvgpr_write_b32 a{226+4*b}, v{244+b}
v_accvgpr_write_b32 a{227+4*b}, 0''')
    for r in range(8):
        e(f'v_lshlrev_b32 v{144+2*r}, 16, v{232+r}\nv_and_b32 v{145+2*r}, 0xffff0000, v{232+r}')
    e(f'''s_mul_i32 s60, s23, 28672
s_lshl_b32 s55, s24, 11
s_add_u32 s60, s60, s55
s_add_u32 s60, s60, {WS_H}
s_lshl_b32 s61, s23, 12
s_lshl_b32 s55, s22, 9
s_add_u32 s61, s61, s55
s_and_b32 s55, s16, 1
s_lshl3_add_u32 s61, s55, s61
s_add_u32 s61, s61, {WS_S}
v_and_b32 v15, 0x1f0, v2
s_and_b32 s55, s23, 3
s_lshl_b32 s55, s55, 5
s_add_u32 s55, s55, s24
s_lshl_b32 s55, s55, 2
s_add_u32 s55, s55, {16*128}
v_mov_b32 v14, s55
v_min_u32 v5, 13, v1
v_lshlrev_b32 v5, 2, v5
s_lshl_b32 s62, s16, 7
s_add_u32 s62, s62, s25
s_add_u32 s62, s62, {16*128}
s_lshl2_add_u32 s55, s19, s16
s_mul_i32 s63, s55, 28672
s_add_u32 s63, s63, {WS_H}
s_lshl_b32 s64, s55, 12
s_add_u32 s64, s64, {WS_S}''')
    for ks in range(4, 8): ol(0, ks)
    def rwr(s, A, q): return f'ds_write_b128 v{12-s}, {vr(A+16*s+4*q,4)} offset:{(3-s)*4096 + q*1024}'
    def rrd(s, A, q): return f'ds_read_b128 {vr(A+16*s+4*q,4)}, v12 offset:{(3-s)*4096 + q*1024}'
    B2 = knob('b2', 6)
    for a in (1, 0):
        for ks in range(8):
            vm.wait(f'O{a}{ks}')
            for f in (1, 0):
                acc = vr(ACC3 + 16*(2*a+f), 16)
                e(f'{MF} {acc}, {vr(WOF+8*ks+4*f,4)}, {vr(AF+32*a+4*ks,4)}, ' + (acc if (ks or (a, f) == (0, 0)) else '0'))
                if a == 0 and 2 <= ks < 6: e(rwr(3 - (ks-2)//2, ACC3, 2*((ks-2) % 2) + (1-f)))
                if a == 1 and f == 0 and ks >= 8 - B2: w2l()
    stamp(e, 'p3mf')
    e('s_waitcnt lgkmcnt(0)\ns_barrier')
    for q in range(4): e(rrd(3, ACC3, q))
    for q in range(4): e(rwr(1, ACC3, q))
    for q in range(4): e(rrd(2, ACC3, q))
    e('s_waitcnt lgkmcnt(4)\ns_barrier')
    for q in range(4): e(rrd(1, ACC3, q))
    for n, s in enumerate((3, 2, 1)):
        if n: e(f's_waitcnt lgkmcnt({4*(2-n)})')
        for p in range(8): e(f'v_pk_add_f32 {vr(ACC3+2*p,2)}, {vr(ACC3+2*p,2)}, {vr(ACC3+16*s+2*p,2)}')
    for p in range(8): e(f'v_cvt_pk_bf16_f32 v{16+p}, v{ACC3+2*p}, v{ACC3+2*p+1}')
    def dual(lines, tag, lab):
        e(f's_cmp_lg_u32 s31, 0\ns_cbranch_scc0 {lab}_s')
        for l in lines: vm.op(l, tag)
        e(f'{lab}_d:')
        slow.append(f'{lab}_s:\ns_nop 1\n' + '\n'.join(l + ' sc1' for l in lines) + f'\ns_nop 1\ns_branch {lab}_d')
    dual([f'buffer_store_dwordx4 {vr(16+4*t,4)}, v2, s[12:15], s60 offen offset:{1024*t}' for t in range(2)], 'hst', 'L_h')
    e(f'v_pk_mul_f32 v[26:27], {vr(ACC3,2)}, {vr(ACC3,2)}\nv_pk_add_f32 v[24:25], {vr(ACC3,2)}, {vr(ACC3+2,2)}\nv_pk_fma_f32 v[26:27], {vr(ACC3+2,2)}, {vr(ACC3+2,2)}, v[26:27]')
    for p in range(2, 8):
        e(f'v_pk_add_f32 v[24:25], v[24:25], {vr(ACC3+2*p,2)}\nv_pk_fma_f32 v[26:27], {vr(ACC3+2*p,2)}, {vr(ACC3+2*p,2)}, v[26:27]')
    e('''v_add_f32 v24, v24, v25
v_add_f32 v25, v26, v27
v_mov_b32 v26, v24
v_mov_b32 v27, v25
v_permlane32_swap_b32 v24, v26
v_permlane32_swap_b32 v25, v27
v_pk_add_f32 v[24:25], v[24:25], v[26:27]''')
    dual(['buffer_store_dwordx2 v[24:25], v15, s[12:15], s61 offen'], 'hst', 'L_s')
    stamp(e, 'p3st')
    w2l(knob('b3', 6))
    for p in range(8): e(f'v_pk_add_f32 {vr(224+2*p,2)}, {vr(144+2*p,2)}, {vr(ACC3+2*p,2)}')
    HF, ACC4, WF, STT = 16, 128, 192, 208
    sched = [(s, (0, 1)) for s in range(28)] + [(s, (2,)) for s in range(28)] + [(s, (3,)) for s in range(28)]
    mlist = [(s, b) for s, bs in sched for b in bs]
    def wreg(m): return ('v', WF + 4*(m & 7)) if (m & 7) < 4 else ('a', 240 + 4*((m & 7) - 4))
    def rds(m):
        s, b = mlist[m]; k, r = wreg(m)
        return w1rd(r, s, b, k)
    LD = 6
    for m in range(LD): e('\n'.join(rds(m)))
    vm.wait('hst')
    dual(['buffer_store_dword v8, v14, s[12:15], s25 offen'], 'f3', 'L_f3')
    stamp(e, 'p3end')
    def poll(lab, addr, so):
        e(f'''s_mov_b32 s26, {POLL_MAX}
{lab}:
buffer_load_dword v13, {addr}, s[12:15], {so} offen sc1
s_sub_u32 s26, s26, 1
s_cbranch_scc1 {lab}_x
s_waitcnt vmcnt(0)
v_cmp_ne_u32 vcc, 1, v13
s_cbranch_vccnz {lab}
{lab}_x:''')
    poll('L_p3', 'v5', 's62')
    stamp(e, 's3done')
    def hl(s):
        if s and s % 4 == 0: e('s_add_u32 s63, s63, 4096')
        vm.op(f'buffer_load_dwordx4 {vr(HF+4*s,4)}, v2, s[12:15], s63 offen offset:{(s&3)*1024} sc1', f'h{s}')
    HP = knob('hp', 11)
    for s in range(HP): hl(s)
    stl = [(lambda p=p: vm.op(f'buffer_load_dwordx4 {vr(STT+4*p,4)}, v2, s[12:15], s64 offen offset:{1024*p} sc1', 'st')) for p in range(4)]
    vq = [(lambda s=s: hl(s)) for s in range(HP, 28)]
    vq = vq[:2] + stl[:1] + vq[2:4] + stl[1:2] + vq[4:6] + stl[2:3] + vq[6:8] + stl[3:] + vq[8:]
    if not TM & 1: vq.append(lambda: vm.op('buffer_load_dword v13, v240, s[12:15], s101 offen sc1', 'T'))
    st = [lambda: vm.wait('st'),
          f'v_and_b32 v{STT+12}, v6, v{STT+12}', f'v_and_b32 v{STT+13}, v6, v{STT+13}', f'v_and_b32 v{STT+14}, v6, v{STT+14}', f'v_and_b32 v{STT+15}, v6, v{STT+15}']
    for k in range(1, 8): st += [f'v_add_f32 v{STT}, v{STT}, v{STT+2*k}', f'v_add_f32 v{STT+1}, v{STT+1}, v{STT+2*k+1}']
    tmp = Asm(); ln_stats(tmp, STT, STT+1, STT+2, STT+3, STT+4, STT+5)
    st += [i.text for i in tmp.ins]
    XB = STT + 8
    st += f'''v_sub_f32 v{STT+3}, 0, v{STT+3}
v_and_b32 v{STT+3}, v6, v{STT+3}
v_and_b32 v{STT+5}, v6, v{STT+5}
v_and_b32 v{STT+6}, 0xffff0000, v{STT+3}
v_sub_f32 v{STT+7}, v{STT+3}, v{STT+6}
v_cvt_pk_bf16_f32 v{XB}, v{STT+6}, v{STT+6}
v_and_b32 v{STT+6}, 0xffff0000, v{STT+5}
v_cvt_pk_bf16_f32 v{XB+1}, v{STT+7}, v{STT+6}
v_sub_f32 v{STT+7}, v{STT+5}, v{STT+6}
v_cvt_pk_bf16_f32 v{XB+2}, v{STT+7}, 0
v_mov_b32 v{XB+3}, 0
v_mul_f32 v242, v{STT+4}, v{STT+4}'''.split('\n')
    lab = [0]
    def epi(b):
        A = ACC4 + 16*b; l = [f's_xor_b32 s59, s16, {b}', 's_lshl_b32 s59, s59, 11', 's_add_u32 s59, s59, s101']
        for p in range(8):
            l += [f'v_mul_f32 v{A+2*p}, v{A+2*p}, abs(v{A+2*p})', f'v_mul_f32 v{A+2*p+1}, v{A+2*p+1}, abs(v{A+2*p+1})',
                  f'v_cvt_pk_bf16_f32 v{A+p}, v{A+2*p}, v{A+2*p+1}', f'v_pk_max_i16 v{A+p}, v{A+p}, 0']
        def stores():
            lab[0] += 1
            dual([f'buffer_store_dwordx4 {vr(A+4*t,4)}, v2, s[12:15], s59 offen offset:{1024*t}' for t in range(2)], 'h1st', f'L_e{lab[0]}')
        return l + [stores]
    queue = []
    def drainq(k):
        for _ in range(k):
            if not queue: return
            x = queue.pop(0)
            e(x) if isinstance(x, str) else x()
    M = len(mlist)
    misc = f'''s_lshl_b32 s55, s16, 5
s_add_u32 s55, s55, s20
s_lshl_b32 s55, s55, 2
s_add_u32 s55, s55, {20*128}
v_mov_b32 v14, s55
s_mul_i32 s55, s16, 7
s_lshr_b32 s55, s55, 1
v_and_b32 v15, 3, v1
v_add_u32 v15, s55, v15
v_bfe_u32 v13, v1, 2, 1
v_lshl_add_u32 v15, v13, 5, v15
v_lshlrev_b32 v15, 2, v15
s_lshl_b32 s62, s21, 8
s_add_u32 s62, s62, s25
s_add_u32 s62, s62, {20*128}
s_mul_i32 s56, s23, 114688
s_xor_b32 s57, s23, 1
s_mul_i32 s57, s57, 114688
s_mul_i32 s55, s16, {28*1024}
s_add_u32 s55, s55, {WS_H1}
s_add_u32 s56, s56, s55
s_add_u32 s57, s57, s55'''.split('\n')
    queue += misc
    for m, (s, b) in enumerate(mlist):
        if m == 30: queue += st
        if m == 56: stamp(e, 'p4a')
        if m == 59: queue += epi(0) + epi(1)
        if m == 87: queue += epi(2)
        if m % 2 == 0:
            lg = f'lgkmcnt({2*max(0, min(LD-2, M-2-m))})'
            if m < 56: vm.wait(f'h{s}', lg)
            else: e('s_waitcnt ' + lg)
        acc = vr(ACC4 + 16*b, 16); k, r = wreg(m)
        e(f'{MF} {acc}, {vr(r,4,k)}, {vr(HF+4*s,4)}, ' + (acc if s else '0'))
        if m + LD < M: e('\n'.join(rds(m + LD)))
        if m % 2 == 1:
            if vq: vq.pop(0)()
            elif w2n[0] < 56: w2l()
            else: drainq(2)
            drainq(1 if m < 56 else 0)
        else: drainq(3)
        if s == 27:
            if m == 55:
                drainq(99)
                for b2 in (0, 1): e(f'{MF} {vr(ACC4+16*b2,16)}, {ar(224+4*b2,4)}, {vr(XB,4)}, {vr(ACC4+16*b2,16)}')
            elif m > 55: e(f'{MF} {acc}, {ar(224+4*b,4)}, {vr(XB,4)}, {acc}')
    stamp(e, 'p4mf')
    drainq(999)
    w2l(56)
    queue += epi(3); drainq(999)
    vm.wait('h1st')
    dual(['buffer_store_dword v8, v14, s[12:15], s25 offen'], 'f4', 'L_f4')
    stamp(e, 'p4end')
    e(f'''s_barrier
v_lshrrev_b32 v5, 2, v2
s_lshl_b32 s55, s16, 8
v_add_u32 v13, s55, v5
ds_write_b32 v13, v242
s_and_b32 s55, s23, 3
s_lshl_b32 s55, s55, 8
v_add_u32 v5, s55, v5''')
    poll('L_p4', 'v15', 's62')
    stamp(e, 's4done')
    GF, ACC5, RING = 16, 144, 32
    GP = knob('gp', 12)
    s5 = [(a, ks) for a in (1, 0) for ks in range(28)]
    def gl(n):
        a, ks = s5[n]
        if ks and ks % 4 == 0: e(f's_add_u32 s{56+a}, s{56+a}, 4096')
        vm.op(f'buffer_load_dwordx4 {vr(GF+4*(n%RING),4)}, v2, s[12:15], s{56+a} offen offset:{(ks&3)*1024} sc1', f'g{n}')
    for n in range(GP): gl(n)
    for n, (a, ks) in enumerate(s5):
        if n == 28: stamp(e, 'p5a')
        vm.wait(f'g{n}')
        for f in (1, 0):
            acc = vr(ACC5 + 16*(2*a+f), 16)
            e(f'{MF} {acc}, {ar(8*ks+4*f,4)}, {vr(GF+4*(n%RING),4)}, ' + (acc if ks else '0'))
            if f == 1 and n + GP < 56: gl(n + GP)
            if a == 0 and f == 0:
                if 3 <= ks < 11: e(rwr(2 + (ks-3)//4, ACC5, (ks-3) % 4))
                if ks == 14: e('s_waitcnt lgkmcnt(0)\ns_barrier\nds_read_b32 v242, v5')
                if 15 <= ks < 19: e(rrd(2, ACC5, ks-15) + '\n' + rrd(3, ACC5, ks-15))
                if ks == 20: e('s_waitcnt lgkmcnt(0)')
            if a == 0 and 20 <= ks < 28 and (ks, f) != (20, 1):
                i = 2*(ks-20) + (1-f) - 1
                if i < 8:
                    for r in (2*i, 2*i+1):
                        e(f'v_add_f32 v{ACC5+32+r}, v{ACC5+32+r}, v{ACC5+48+r}\nv_fmac_f32 v{224+r}, v242, v{ACC5+32+r}')
    stamp(e, 'p5mf')
    for q in range(4): e(rwr(1, ACC5, q))
    for p in range(8): e(f'v_pk_fma_f32 {vr(224+2*p,2)}, {vr(ACC5+2*p,2)}, v[242:243], {vr(224+2*p,2)} op_sel_hi:[1,0,1]')
    e('s_waitcnt lgkmcnt(0)\ns_barrier')
    for q in range(4): e(rrd(1, ACC5, q))
    for t in range(2):
        e(f's_waitcnt lgkmcnt({2-2*t})')
        for p in range(4*t, 4*t+4):
            e(f'v_pk_fma_f32 {vr(224+2*p,2)}, {vr(ACC5+16+2*p,2)}, v[242:243], {vr(224+2*p,2)} op_sel_hi:[1,0,1]')
            e(f'v_cvt_pk_bf16_f32 v{16+p}, v{224+2*p}, v{225+2*p}')
        e(f'buffer_store_dwordx4 {vr(16+4*t,4)}, v0, s[40:43], s27 offen offset:{32*t}')
    stamp(e, 'p5st')
    stamp_out(e)
    e('s_endpgm')
    for x in slow: e(x)
    e('L_fallback:\ns_mov_b32 s30, 1\ns_waitcnt vmcnt(0)\ns_barrier')
    MXB = SCR
    d = vr(S, 16)
    for s in range(4):
        e(f'v_mov_b32 v{128+s}, 0xff800000')
        for j in range(16):
            e(f'{MF} {d}, {ar(16*j,4)}, {vr(Q+8*s,4)}, 0\n{MF} {d}, {ar(16*j+4,4)}, {vr(Q+8*s+4,4)}, {d}')
            for p in range(8): e(f'v_max3_f32 v{128+s}, v{S+2*p}, v{S+2*p+1}, v{128+s}')
        e(f'''v_mov_b32 v13, v{128+s}
v_permlane32_swap_b32 v{128+s}, v13
v_max_f32 v{128+s}, v{128+s}, v13
s_xor_b32 s50, s16, {3-s}
s_lshl_b32 s50, s50, 9
s_add_u32 s50, s50, {MXB}
v_and_b32 v13, 31, v1
v_lshlrev_b32 v13, 4, v13
v_add_u32 v{132+s}, s50, v13
s_lshl_b32 s50, s16, 2
v_add_u32 v13, s50, v{132+s}
ds_write_b32 v13, v{128+s}''')
    e('s_waitcnt lgkmcnt(0)\ns_barrier')
    for s in range(4): e(f'ds_read_b128 {vr(136+4*s,4)}, v{132+s}')
    e('s_waitcnt lgkmcnt(0)\ns_barrier')
    for s in range(4):
        e(f'v_max3_f32 v13, v{136+4*s}, v{137+4*s}, v{138+4*s}\nv_max_f32 v13, v13, v{139+4*s}')
        for r in range(16): e(f'v_sub_f32 v{NM+r}, 0, v13\nv_mov_b32 v{O+16*s+r}, 0')
        for j in range(16):
            e(f'{MF} {d}, {ar(16*j,4)}, {vr(Q+8*s,4)}, {vr(NM,16)}\n{MF} {d}, {ar(16*j+4,4)}, {vr(Q+8*s+4,4)}, {d}')
            for r in range(16): e(f'v_exp_f32 v{S+r}, v{S+r}')
            for t in range(2): e(f'{SM} {vr(O+16*s,16)}, {ar(16*j+8+4*t,4)}, {vr(S+8*t,8)}, v7')
            e('s_nop 7')
        e('s_nop 7')
    for k in range(12): e(pwr(k//4, k % 4))
    e('s_waitcnt lgkmcnt(0)\ns_barrier')
    for k in range(12): e(prd(k//4, k % 4))
    e('s_branch L_combine')
    e('L_end:')

def build1(e, path):
    head = open(f'cdna_kernels/{NAME}.s.ref').read().split('\n')
    name = NAME + '_kernel'
    out = head[:12] + ['; @launch grid=(256,1,1) block=(256,1,1) lds=163840', '.amdgcn_target "amdgcn-amd-amdhsa--gfx950"\n.text']
    e.fix('-v' in sys.argv)
    out.append(f'.globl {name}\n.p2align 8\n.type {name},@function\n{name}:')
    out.append(e.text() + '    s_endpgm')
    out.append(f""".section .rodata,"a"
.p2align 6
.amdhsa_kernel {name}
  .amdhsa_next_free_vgpr 512
  .amdhsa_next_free_sgpr 102
  .amdhsa_accum_offset 256
  .amdhsa_group_segment_fixed_size 0
  .amdhsa_kernarg_size 88
  .amdhsa_user_sgpr_count 2
  .amdhsa_user_sgpr_kernarg_segment_ptr 1
  .amdhsa_system_sgpr_workgroup_id_x 1
.end_amdhsa_kernel""")
    open(path, 'w').write('\n'.join(out) + '\n')

if __name__ == '__main__':
    e = Asm(); phase1(e); phase2_5(e)
    outs = [a for a in sys.argv[1:] if a.endswith('.s')]
    build1(e, outs[0] if outs else 'v3.s')
```

```python
import sys, math, struct
from asmlib import *
from gen1 import NAME, MF, SM, f32, QSCALE, swap23, halves_sum, tr_lane_part, ln_stats

KP, VP, ONE = 0, 28672, 57344
TTP = 57600
WS_O, WS_H, WS_S, WS_H1, WS_WF, WS_FL, WS_ST = 0x600000, 0x800000, 0x9E0000, 0xA40000, 0x1200000, 0x1400000, 0x1500000
WS_F1 = WS_FL + 0x10000
WS_F2 = WS_FL + 0x14000
WS_BYTES = 0x1600000
WFP = 144*2048
POLL_MAX = 1 << 18
STAMP = '--stamp' in sys.argv
def knob(name, d):
    for a in sys.argv:
        if a.startswith(name + '='): return int(a.split('=')[1])
    return d
STSET = knob('st', 0)
ST_NAMES = ['start p1go p1st s1sig s1done a0 comb end', 'comb s2sig s2done p3end s3done p4end s4done end',
            'p1go p1end p1st s1sig s1win s1done a0 aB', 's2sig s2win s2done p3mf p3st p3end s3done p4a',
            's3done p4a p4mf p4end s4done p5a p5mf p5st'][STSET].split()

def srd2(e, d, nbytes):
    e(f's_mov_b32 s{d+2}, {nbytes}\ns_mov_b32 s{d+3}, 0x00020000')
def stamp(e, name):
    if STAMP and name in ST_NAMES:
        i = ST_NAMES.index(name)
        e(('s_memtime' if '--cyc' in sys.argv else 's_memrealtime') + f' s[{84+2*i}:{85+2*i}]')
def stamp_out(e):
    if not STAMP: return
    e('s_waitcnt vmcnt(0)')
    stamp(e, 'end')
    e('s_waitcnt lgkmcnt(0)')
    e(f's_lshl_b32 s3, s2, 2\ns_add_u32 s3, s3, s16\ns_lshl_b32 s3, s3, 6\ns_add_u32 s3, s3, {WS_ST}\nv_mov_b32 v1, 0')
    for i in range(8):
        e(f'v_mov_b32 v0, s{84+2*i}\nbuffer_store_dword v0, v1, s[12:15], s3 offen offset:{4*i}')

def kernel(e):
    vm = VM(e); slow = []
    XR, WQ, CSB, QX, UB = 57344, 114688, 143360, 147456, 155648
    SCR = 114688
    PF = 2; MAP = knob('map', 8)
    Q, O, S, WOF, NM = 16, 48, 112, 160, 176
    KVO = 68
    stamp(e, 'start')
    e("""s_cmp_ge_u32 s2, 256
s_cbranch_scc1 L_end
s_load_dwordx2 s[4:5], s[0:1], 0
s_load_dwordx2 s[8:9], s[0:1], 8
s_load_dwordx2 s[12:13], s[0:1], 80
s_load_dwordx2 s[40:41], s[0:1], 16
s_load_dwordx2 s[42:43], s[0:1], 48
s_load_dwordx2 s[60:61], s[0:1], 32
s_load_dwordx2 s[100:101], s[0:1], 72
s_getpc_b64 s[20:21]
L_pc0:
s_lshr_b32 s26, s2, 3
s_lshl_b32 s22, s26, 11
v_lshrrev_b32 v10, 4, v0
v_lshl_add_u32 v10, v10, 7, s22
v_min_u32 v10, L_fallback-L_pc0, v10""")
    vm.op('global_load_dword v31, v10, s[20:21]', 'T')
    e("""v_lshrrev_b32 v2, 6, v0
v_and_b32 v1, 63, v0
v_readfirstlane_b32 s16, v2
s_and_b32 s51, s2, 7""")
    if MAP == 4:
        e("""s_lshr_b32 s17, s51, 1
s_lshr_b32 s59, s26, 3
s_lshl2_add_u32 s17, s17, s59  ; qb
s_and_b32 s18, s51, 1
s_and_b32 s62, s26, 7
s_lshl3_add_u32 s18, s18, s62  ; head
s_lshl1_add_u32 s59, s59, s62""")
    elif MAP == 2:
        e("""s_lshr_b32 s59, s26, 4
s_lshl1_add_u32 s17, s51, s59  ; qb
s_and_b32 s18, s26, 15         ; head
s_mul_i32 s59, s59, 3
s_add_u32 s59, s59, s18""")
    elif MAP == 8:
        e("""s_lshr_b32 s17, s51, 2
s_lshr_b32 s59, s26, 2
s_lshl3_add_u32 s17, s17, s59  ; qb
s_and_b32 s18, s51, 3
s_and_b32 s62, s26, 3
s_lshl2_add_u32 s18, s18, s62  ; head
s_lshl1_add_u32 s59, s62, s59""")
    e(f"""s_mul_i32 s62, s59, 37
s_lshr_b32 s62, s62, 8
s_mul_i32 s62, s62, 7
s_sub_u32 s59, s59, s62
s_lshl2_add_u32 s63, s17, s16
s_mul_i32 s64, s63, {32*896}
s_mul_i32 s65, s16, {16*2688}
s_lshl_b32 s62, s18, 7
s_add_u32 s62, s62, s65
s_add_u32 s62, s62, 896
s_mul_i32 s66, s16, 12288
s_add_u32 s66, s66, {XR}
s_lshl_b32 s67, s16, 11
v_lshrrev_b32 v240, 3, v1
v_lshrrev_b32 v241, 4, v1
v_and_b32 v242, 7, v1
v_xor_b32 v243, v241, v242
v_mul_u32_u24 v244, 896, v240
v_lshl_add_u32 v2, v243, 4, v244
v_add_u32 v2, s64, v2
v_xor_b32 v3, 64, v2
v_add_u32 v3, 6144, v3
v_add_u32 v4, 12288, v2
v_add_u32 v5, 12288, v3
v_and_b32 v243, 1, v241
v_lshlrev_b32 v243, 2, v243
v_xor_b32 v245, v243, v242
v_mul_u32_u24 v243, 2688, v240
v_lshl_add_u32 v6, v245, 4, v243
v_add_u32 v6, s62, v6
v_add_u32 v7, {8*2688-1024}, v6
s_cmp_lt_u32 s18, 14
s_cselect_b32 s10, {448*2688}, 0
s_mov_b32 s11, 0x00020000""")
    def offs(it):
        e(f's_lshl_b32 s{44+it}, s59, 7\ns_mul_i32 s{52+it}, s59, {64*2688}')
        if it < 6: e('s_add_u32 s59, s59, 1\ns_cmp_eq_u32 s59, 7\ns_cselect_b32 s59, 0, s59')
    offs(0)
    srd2(e, 4, 2048*896); srd2(e, 12, WS_BYTES)
    e('s_waitcnt lgkmcnt(0)')
    def loads(it):
        l = [f's_add_u32 m0, s67, {it*8192}']
        l += [f'buffer_load_dwordx4 v{6+j}, s[8:11], s{52+it} offen offset:{1024*j} lds' for j in range(2)]
        l += [f's_add_u32 m0, s66, {(it%3)*4096}']
        l += [f'buffer_load_dwordx4 v{2+i}, s[4:7], s{44+it} offen offset:{1024*i} lds' for i in range(4)]
        return l
    def emit(l, tag):
        for x in l:
            if x.startswith(('buffer', 'global')): vm.op(x, tag)
            else: e(x)
    emit(loads(0), 0)
    e(f"""s_lshl1_add_u32 s30, s17, s18
s_sub_u32 s30, s30, 14
s_lshl_b32 s62, s30, 12
s_add_u32 s62, s62, {WS_FL}
s_mul_i32 s26, s30, {14*2688}
s_cmp_lt_u32 s18, 14
s_cselect_b32 s62, {WS_BYTES}, s62
s_cselect_b32 s26, {WS_BYTES}, s26
s_mov_b32 s36, s8
s_mov_b32 s37, s9
v_lshlrev_b32 v246, 4, v0
v_lshrrev_b32 v247, 4, v0
v_min_u32 v247, 13, v247
v_mul_u32_u24 v247, 2688, v247
v_bfe_u32 v248, v0, 1, 3
v_min_u32 v248, 6, v248
v_lshl_add_u32 v247, v248, 7, v247""")
    srd2(e, 36, 448*2688)
    for r in range(216, 220): e(f'v_mov_b32 v{r}, 0')
    vm.op('buffer_store_dwordx4 v[216:219], v246, s[12:15], s62 offen sc1', 0)
    vm.op('buffer_load_dword v31, v247, s[36:39], s26 offen', 'T')
    for it in range(1, 7): offs(it)
    emit(loads(1), 1)
    for r in range(220, 236): e(f'v_mov_b32 v{r}, 0')
    e("""v_and_b32 v246, 31, v1
v_lshrrev_b32 v247, 1, v246
v_lshrrev_b32 v248, 5, v1
v_xor_b32 v247, v247, v248
v_and_b32 v247, 7, v247
v_lshlrev_b32 v247, 4, v247
v_lshl_add_u32 v247, v246, 7, v247
v_add_u32 v247, s66, v247
s_lshl_b32 s62, s16, 5
v_xor_b32 v9, s62, v247""")
    for kk in range(1, 4): e(f'v_xor_b32 v{9+kk}, {32*kk}, v9')
    tr_lane_part(e, 249, 1, 128, 247, 248)
    e('v_bfe_u32 v247, v1, 3, 1\nv_lshl_add_u32 v249, v247, 6, v249\nv_add_u32 v13, s67, v249')
    for n in range(1, 8): e(f'v_xor_b32 v{13+n}, {2048*(n >> 1) + 64*(n & 1)}, v13')
    tr_lane_part(e, 21, 1, 64, 247, 248)
    e(f's_lshl_b32 s26, s16, 10\ns_add_u32 s26, s26, {WQ}\nv_add_u32 v21, s26, v21')
    for kk in range(1, 4): e(f'v_xor_b32 v{21+kk}, {1024*kk}, v21')
    e(f"""v_mov_b32 v25, 0x3f803f80
v_mov_b32 v26, 0
v_mov_b32 v27, 0
v_mov_b32 v28, 0
v_mov_b32 v29, 0
v_mov_b32 v30, 0
s_and_b32 s28, s18, 1
s_lshr_b32 s62, s18, 1
s_mul_i32 s62, s62, 7
s_mul_i32 s31, s28, 3
s_add_u32 s31, s62, s31
s_lshl4_add_u32 s62, s31, s65
v_lshrrev_b32 v247, 2, v1
v_mul_u32_u24 v247, 2688, v247
v_and_b32 v248, 3, v1
v_lshl_add_u32 v8, v248, 4, v247
v_add_u32 v8, s62, v8""")
    e(f"""s_lshl2_add_u32 s19, s2, s16
s_mul_i32 s20, s19, 9363
s_lshr_b32 s20, s20, 16        ; ks'
s_mul_i32 s21, s20, 7
s_sub_u32 s21, s19, s21        ; fb
s_mul_i32 s64, s21, {WFP}
s_lshl_b32 s22, s20, 11
s_add_u32 s64, s64, s22
s_add_u32 s64, s64, {WS_WF}
s_cmp_lt_u32 s20, 144
s_cselect_b32 s64, s64, {WS_BYTES}
s_sub_u32 s22, s20, 112
s_lshr_b32 s62, s22, 1
s_mul_i32 s62, s62, 28
s_and_b32 s22, s22, 1
s_lshl4_add_u32 s62, s22, s62
s_lshl_b32 s22, s20, 4         ; W2 row
s_cmp_lt_u32 s20, 112
s_cselect_b32 s22, s22, s62
s_cselect_b32 s32, s42, s40
s_cselect_b32 s33, s43, s41
s_mov_b32 s34, {448*896}
s_cselect_b32 s34, {1792*896}, s34
s_mov_b32 s35, 0x00020000
s_mul_i32 s22, s22, 896
s_lshl_b32 s21, s21, 7
s_add_u32 s59, s22, s21
v_lshl_add_u32 v250, v245, 4, v244
v_add_u32 v251, 6144, v250
v_add_u32 v252, {UB}, v13
v_xor_b32 v253, 64, v252
v_lshlrev_b32 v254, 4, v1""")
    swap23(e, 247, 246, 248)
    e(f"""v_lshrrev_b32 v248, 5, v1
v_mul_u32_u24 v248, 7168, v248
v_lshl_add_u32 v240, v247, 4, v248
v_add_u32 v241, 14336, v240
v_lshlrev_b32 v242, 3, v246
v_add_u32 v242, {CSB}, v242
s_lshl_b32 s62, s16, 8
v_add_u32 v243, s62, v242
s_mul_i32 s43, s63, {TTP}
s_lshl_b32 s65, s18, 12
s_lshl_b32 s62, s18, 10
s_add_u32 s62, s62, {VP - 7*1024}
s_cmp_lt_u32 s18, 7
s_cselect_b32 s65, s65, s62
s_add_u32 s65, s65, s43
s_add_u32 s43, s43, {ONE}
s_cmp_eq_u32 s18, 13
s_cselect_b32 s43, s43, {WS_BYTES}
v_min_u32 v244, 0x70, v254""")
    for r in range(236, 240): e(f'v_mov_b32 v{r}, v25')
    park = []
    def prk(dst, src): e(f'v_accvgpr_write_b32 a{len(park)}, v{src}'); park.append(dst)
    e(f"""s_bfe_u32 s20, s2, 0x40003     ; j
s_lshr_b32 s19, s2, 7
s_lshl1_add_u32 s19, s51, s19  ; rb
s_lshl_b32 s25, s19, 12
s_add_u32 s25, s25, {WS_FL}
s_getreg_b32 s40, hwreg(HW_REG_XCC_ID, 0, 4)
s_lshl_b32 s41, s40, 2
s_lshl_b32 s29, 14, s41
s_lshl_b32 s41, 1, s41
s_cmp_lt_u32 s40, 8
s_cselect_b32 s41, s41, 0
s_cmp_lt_u32 s20, 14
s_cselect_b32 s41, s41, 0
v_lshlrev_b32 v32, 7, v1
s_lshl_b32 s40, s17, 7
s_add_u32 s40, s40, {WS_F1}
v_lshl_add_u32 v255, v32, 4, s40
v_add_u32 v33, {WS_F2 - WS_F1}, v255
v_mov_b32 v34, 1
s_add_u32 s40, s25, {24*128}
v_writelane_b32 v33, s40, 8
v_writelane_b32 v34, s41, 8""")
    prk(240, 32); prk(14, 33); prk(8, 34)
    e(f"""s_and_b32 s21, s20, 1          ; th
s_lshr_b32 s22, s20, 1         ; fb
s_lshl1_add_u32 s23, s19, s21
s_lshr_b32 s40, s16, 1
s_lshl1_add_u32 s23, s23, s40
s_and_b32 s40, s16, 1
s_lshl1_add_u32 s24, s22, s40
v_mul_u32_u24 v33, 896, v246
v_lshrrev_b32 v34, 5, v1
v_lshlrev_b32 v35, 4, v34
v_add_u32 v33, v33, v35
s_mul_i32 s27, s23, {32*896}
s_lshl_b32 s40, s24, 6
s_add_u32 s27, s27, s40
v_add_u32 v35, s40, v35
s_lshl_b32 s40, s20, 8
s_lshl_b32 s41, s16, 6
s_add_u32 s41, s41, s40
v_lshl_add_u32 v36, v247, 1, s41""")
    prk(0, 33); prk(160, 35); prk(161, 36)
    for b in range(1, 4): e(f'v_xor_b32 v33, {64*b}, v36'); prk(161 + b, 33)
    e(f"""v_lshlrev_b32 v33, 4, v247
v_lshl_add_u32 v33, v34, 9, v33
s_lshl_b32 s41, s31, 9
v_add_u32 v33, s41, v33
s_mul_i32 s41, s18, 448
s_add_u32 s41, s41, {VP}
v_add_u32 v35, s41, v240
v_add_u32 v36, s41, v241
v_cmp_gt_u32 vcc, 28, v246
v_mov_b32 v37, {ONE}
s_mul_i32 s31, s16, {16*3584}
v_cndmask_b32 v35, v37, v35, vcc
v_cndmask_b32 v36, v37, v36, vcc
s_add_u32 s31, s31, s40""")
    prk(3, 33); prk(4, 35); prk(248, 36)
    e(f"""v_cmp_gt_u32 vcc, 32, v1
s_cmp_eq_u32 s28, 0
s_cselect_b32 s40, -1, 0
v_cndmask_b32 v33, 0, -1, vcc
v_not_b32 v35, v33
v_or_b32 v35, s40, v35
s_not_b32 s40, s40
v_or_b32 v36, s40, v33
s_add_u32 s40, s67, {QX}
v_add_u32 v37, s40, v254""")
    early = len(park)
    prk(6, 33); prk(13, 35); prk(5, 36); prk(15, 37)
    early = (early, len(park))
    for s in range(4):
        e(f's_xor_b32 s40, s16, {3-s}\ns_mul_i32 s40, s40, 12288\ns_add_u32 s40, s40, {SCR}\nv_add_u32 v33, s40, v254'); prk(9 + s, 33)
    e(f"""v_lshrrev_b32 v33, 4, v1
v_lshlrev_b32 v35, 2, v33
v_and_b32 v36, 15, v1
v_xor_b32 v35, v35, v36
v_mul_u32_u24 v33, 3584, v33
v_lshl_add_u32 v33, v35, 4, v33""")
    w1p = len(park); prk(165, 33)
    e(f"""s_mul_i32 s40, s23, 28672
s_lshl_b32 s41, s24, 11
s_add_u32 s40, s40, s41
s_add_u32 s40, s40, {WS_H}
v_add_u32 v33, s40, v32
s_lshl_b32 s40, s23, 12
s_lshl_b32 s41, s22, 9
s_add_u32 s40, s40, s41
s_add_u32 s40, s40, {WS_S - 16*128}
v_add_u32 v35, s40, v32
v_cmp_gt_u32 vcc, 16, v1
v_mov_b32 v36, {WS_BYTES}
s_lshr_b32 s40, s2, 3
v_cndmask_b32 v33, v35, v33, vcc
v_cmp_gt_u32 vcc, 20, v1
s_lshl2_add_u32 s40, s40, s16
s_lshl_b32 s3, s40, 14
v_cndmask_b32 v33, v36, v33, vcc
s_lshl_b32 s51, s51, 11
s_add_u32 s40, s51, {WS_F2 - 48*128}
v_add_u32 v35, s40, v32
v_cmp_gt_u32 vcc, 48, v1
s_add_u32 s3, s3, {WS_WF}
s_add_u32 s40, s25, {24*128}
v_cndmask_b32 v33, v35, v33, vcc
v_writelane_b32 v33, s40, 20
s_add_u32 s51, s51, {WS_F1}
s_lshl2_add_u32 s40, s19, s16
s_mul_i32 s28, s40, 114688
s_lshl_b32 s40, s20, 13
s_add_u32 s28, s28, s40
s_add_u32 s28, s28, {WS_H1}
s_bfe_u32 s40, s2, 0x20003
s_lshl2_add_u32 s40, s40, s16
s_lshl_b32 s40, s40, 11
v_and_b32 v35, 0x780, v32
v_add_u32 v36, s40, v35
v_min_u32 v36, L_fallback-L_pc1, v36
s_and_b32 s41, s17, {knob("kvm", 7)}
s_lshl_b32 s41, s41, {knob("kvs", 1)}""")
    prk(241, 33); prk(169, 35); prk(170, 36)
    for j in range(16):
        e(f's_add_u32 s40, s41, {j}\ns_and_b32 s40, s40, 15\ns_lshl4_add_u32 s40, s16, s40\ns_mul_i32 s{KVO+j}, s40, {TTP}')
    srd2(e, 60, 448*3584)
    ACC, QA, WF, XF = 32, 64, 80, 104
    XM, RM, CF, ON = 216, 220, 224, 236
    def reads(s, ty):
        it, kk = divmod(s, 4); b = s % 3
        l = [f'ds_read_b128 {vr(XF+4*s,4)}, v{9+kk} offset:{(it%3)*4096}']
        if ty != 'l':
            for f in range(2):
                for rd in range(2):
                    l.append(f'ds_read_b64_tr_b16 {vr(WF+8*b+4*f+2*rd,2)}, v{13+2*kk+f} offset:{it*8192 + rd*512}')
        return l
    def xdots(s):
        for r in range(4):
            x = XF + 4*s + r
            e(f'v_dot2c_f32_bf16 v26, v{x}, v25\nv_dot2c_f32_bf16 v27, v{x}, v{x}')
    late = []
    for it in range(7): late += [[f's_add_u32 m0, s26, {it*4096}', f'buffer_load_dwordx4 v8, s[36:39], s{52+it} offen lds']]
    WQE = knob('wqe', 4)
    late2 = late[WQE:]; late = late[:WQE] + [['global_load_dword v245, v219, s[100:101] sc1']]
    vm.wait(0)
    e('s_barrier')
    stamp(e, 'p1go')
    e('s_cmp_lt_u32 s18, 7\ns_cbranch_scc1 L_kk\ns_cmp_lt_u32 s18, 14\ns_cbranch_scc0 L_light')
    vm0 = (list(vm.seq), vm.done)
    def xm_frag():
        e(f"""v_cmp_gt_u32 vcc, 32, v1
v_sub_f32 v247, 0, v247
v_cndmask_b32 v247, 0, v247, vcc
v_and_b32 v26, 0xffff0000, v247
v_sub_f32 v27, v247, v26
v_cvt_pk_bf16_f32 v{XM}, v26, v26
v_cvt_pk_bf16_f32 v{XM+1}, v27, 0""")
    def variant(ty, lab):
        if lab: e(f'{lab}:')
        vm.seq, vm.done = list(vm0[0]), vm0[1]
        lt = list(late)
        e('\n'.join(reads(0, ty) + reads(1, ty)))
        for s in range(28):
            it, kk = divmod(s, 4); b = s % 3
            x = vr(XF+4*s, 4)
            mf = []
            for f in range(2):
                w = vr(WF+8*b+4*f, 4); a = vr(ACC+16*f, 16); c = a if s else '0'
                mf.append(f'{MF} {a}, {w}, {x}, {c}' if ty == 'k' else f'{MF} {a}, {x}, {w}, {c}')
            rd = reads(s+2, ty) if s < 26 else []
            if it + PF <= 6:
                L = loads(it + PF); tag = it + PF
                ld = {0: (L[:2], L[2:3]), 1: (L[3:5], L[5:6]), 2: ([], L[6:7]), 3: ([], L[7:])}[kk]
            else:
                tag = 'wq'
                ld = (lt.pop(0) if lt and len(lt) > 26 - s else [], lt.pop(0) if lt else [])
            if s < 27: e(f's_waitcnt lgkmcnt({5 if s < 26 else 0})')
            if kk == 2:
                for r in range(4):
                    for f in range(2): e(f'v_dot2c_f32_bf16 v{28+f}, v{WF+8*b+4*f+r}, v25')
                for s2 in range(max(0, s-3), s + (2 if s == 26 else 1)): xdots(s2)
                if s < 26:
                    vm.wait(it + 1); e('s_barrier')
                else:
                    for f in range(2): halves_sum(e, 28+f, 246)
                    e('ds_write_b64 v243, v[28:29]')
            e(mf[0]); e('\n'.join(rd[:3])); emit(ld[0], tag)
            if s == 26: ln_stats(e, 26, 27, 246, 247, 248)
            if s == 27: xm_frag()
            e(mf[1]); e('\n'.join(rd[3:])); emit(ld[1], tag)
            if s == 26:
                e('s_waitcnt lgkmcnt(0)\ns_barrier')
                for w in range(4): e(f'ds_read_b64 {vr(QA+2*w,2)}, v242 offset:{256*w}')
        assert not lt
        stamp(e, 'p1end')
        if ty == 'v':
            e(f"""v_cndmask_b32 v246, 0, v248, vcc
v_and_b32 v26, 0xffff0000, v246
v_sub_f32 v27, v246, v26
v_cvt_pk_bf16_f32 v{RM}, v26, v27
{MF} v[88:103], {vr(RM,4)}, {vr(ON,4)}, 0""")
        e('s_waitcnt lgkmcnt(0)')
        for f in range(2):
            e(f"""v_add_f32 v{QA+f}, v{QA+f}, v{QA+2+f}
v_add_f32 v{QA+4+f}, v{QA+4+f}, v{QA+6+f}
v_add_f32 v{QA+f}, v{QA+f}, v{QA+4+f}
v_and_b32 v26, 0xffff0000, v{QA+f}
v_sub_f32 v27, v{QA+f}, v26
v_cvt_pk_bf16_f32 v{CF+4*f}, v26, v27
v_lshrrev_b32 v{CF+4*f+1}, 16, v{QA+f}""")
            a = vr(ACC+16*f, 16); w = vr(CF+4*f, 4)
            e(f'{MF} {a}, {w}, {vr(XM,4)}, {a}' if ty == 'k' else f'{MF} {a}, {vr(XM,4)}, {w}, {a}')
        vm.op(f'buffer_store_dwordx4 {vr(ON,4)}, v244, s[12:15], s43 offen sc1', 'kv')
        for f in range(2):
            A = ACC + 16*f
            for p in range(8):
                if ty == 'k': e(f'v_pk_mul_f32 {vr(A+2*p,2)}, {vr(A+2*p,2)}, v[248:249] op_sel_hi:[1,0]')
                else: e(f'v_pk_mul_f32 {vr(A+2*p,2)}, {vr(A+2*p,2)}, {vr(88+2*p,2)}')
                e(f'v_cvt_pk_bf16_f32 v{A+p}, v{A+2*p}, v{A+2*p+1}')
                if p % 4 == 3:
                    t = p // 4
                    if ty == 'k': vm.op(f'buffer_store_dwordx4 {vr(A+4*t,4)}, v254, s[12:15], s65 offen offset:{2048*f + 1024*t} sc1', 'kv')
                    else: vm.op(f'buffer_store_dwordx4 {vr(A+4*t,4)}, v{240+t}, s[12:15], s65 offen offset:{512*f} sc1', 'kv')
        if ty == 'v': e('s_branch L_q')
    def light():
        e("""L_light:
s_cmp_lg_u32 s16, 0
s_cbranch_scc1 L_light2
v_mov_b32 v32, 1
s_mov_b64 exec, 1
global_atomic_add v219, v32, s[100:101] sc1
s_mov_b64 exec, -1
L_light2:""")
        vm.seq, vm.done = list(vm0[0]), vm0[1]
        e(f"""v_lshlrev_b32 v33, 7, v0
s_mul_i32 s40, s30, {392*128}
s_add_u32 s41, s40, {196*128}
v_min_u32 v33, {195*128}, v33
v_mov_b32 v255, {WS_BYTES}""")
        for it in range(7):
            if it: vm.wait(it)
            for kk in range(4): e('\n'.join(reads(4*it + kk, 'l')))
            if it + 2 <= 6: emit(loads(it + 2)[3:], it + 2)
            if it == knob('lt0', 9): vm.op('buffer_load_dword v31, v33, s[60:63], s40 offen', 'T')
            if it == knob('lt1', 9): vm.op('buffer_load_dword v31, v33, s[60:63], s41 offen', 'T')
            if it == 5:
                for l in late: emit(l, 'wq')
            e('s_waitcnt lgkmcnt(0)')
            for kk in range(4): xdots(4*it + kk)
        ln_stats(e, 26, 27, 246, 247, 248)
        xm_frag()
        stamp(e, 'p1end')
        e('s_waitcnt vmcnt(0)\ns_branch L_q')
    variant('v', None); light(); variant('k', 'L_kk')
    e('L_q:')
    stamp(e, 'p1st')
    for l in late2: emit(l, 'kv')
    vm.wait('wq'); e('s_barrier')
    def qrd(s):
        it, kk = divmod(s, 4)
        return [f'ds_read_b64_tr_b16 {vr(ACC+4*(s&7)+2*rd,2)}, v{21+kk} offset:{it*4096 + rd*256}' for rd in range(2)]
    for s in range(4): e('\n'.join(qrd(s)))
    emit([f's_add_u32 m0, s67, {UB}', 'buffer_load_dwordx4 v250, s[32:35], s59 offen lds', 'buffer_load_dwordx4 v251, s[32:35], s59 offen offset:1024 lds'], 'u')
    W1O = 16
    e(f"""v_accvgpr_read_b32 v16, a{w1p}
s_mov_b32 s8, s60
s_mov_b32 s9, s61
s_cmp_lt_u32 s20, 14
s_cselect_b32 s10, {448*3584}, 0
s_lshl_b32 s49, s16, 12
s_mov_b32 s30, 0
v_mov_b32 v14, 1""")
    for i in range(1, 4): e(f'v_add_u32 v{16+i}, {i*(4*3584-1024)}, v16')
    w1n = [0]; w1o = [16]
    def w1set():
        it = w1n[0] // 4
        e(f's_add_u32 m0, s49, {it*16384}\ns_add_u32 s47, s31, {it*64*3584}')
    def w1l(n=1, auto=True):
        for _ in range(n):
            i = w1n[0] % 4
            if i == 0 and auto: w1set()
            vm.op(f'buffer_load_dwordx4 v{w1o[0]+i}, s[8:11], s47 offen offset:{1024*i} lds', 'W1'); w1n[0] += 1
    WA_, WB_ = knob('w1a', 0), knob('w1b', 0)
    unit_rd = [f'ds_read_b64_tr_b16 {vr(80+4*f+2*rd,2)}, v{252+f} offset:{rd*512}' for f in range(2) for rd in range(2)]
    queue = []
    def drainq(k):
        for _ in range(k):
            if not queue: return
            x = queue.pop(0)
            e(x) if isinstance(x, str) else x()
    QS = WQE
    def s1signal():
        vm.wait('kv')
        e(f"""s_barrier
s_cmp_lg_u32 s16, 0
s_cbranch_scc1 L_s1b
v_cmp_gt_u32 vcc, 32, v245
s_cbranch_vccnz L_rdy
L_rdyd:
s_mov_b64 exec, 0xff
buffer_atomic_add v14, v255, s[12:15], 0 offen sc1
s_mov_b64 exec, -1
L_s1b:""")
        slow.append(f"""L_rdy:
s_mov_b32 s50, {POLL_MAX}
L_rdyp:
global_load_dword v245, v219, s[100:101] sc1
s_sub_u32 s50, s50, 1
s_cbranch_scc1 L_rdyd
s_waitcnt vmcnt(0)
v_cmp_gt_u32 vcc, 32, v245
s_cbranch_vccnz L_rdyp
s_branch L_rdyd""")
        stamp(e, 's1sig')
    for g in range(7):
        for k in range(4):
            s = 4*g + k
            e(f's_waitcnt lgkmcnt({2*min(3, 27-s, (4*QS-1-s) if g < QS else 3)})')
            e(f'{MF} {vr(QA,16)}, {vr(ACC+4*(s&7),4)}, {vr(XF+4*s,4)}, ' + (vr(QA, 16) if s else '0'))
            if s + 4 < 28 and g + 1 != QS: e('\n'.join(qrd(s+4)))
            if k % 2 == 0 and w1n[0] < WA_: w1l()
        for r in range(16): e(f'v_dot2c_f32_bf16 v30, v{ACC + 16*(g & 1) + r}, v25')
        if g + 1 == QS:
            s1signal()
            for s in range(4*QS, min(28, 4*QS+4)): e('\n'.join(qrd(s)))
    w1l(WA_ - w1n[0])
    e('s_load_dwordx2 s[32:33], s[0:1], 40\ns_load_dwordx2 s[36:37], s[0:1], 56\ns_load_dwordx2 s[40:41], s[0:1], 64')
    halves_sum(e, 30, 246)
    e(f"""v_and_b32 v26, 0xffff0000, v30
v_sub_f32 v27, v30, v26
v_cvt_pk_bf16_f32 v{CF+8}, v26, v27
v_lshrrev_b32 v{CF+9}, 16, v30
v_mul_f32 v246, {f32(QSCALE)}, v248
v_mov_b32 v2, v254
{MF} {vr(QA,16)}, {vr(CF+8,4)}, {vr(XM,4)}, {vr(QA,16)}""")
    for n, dst in enumerate(park): e(f'v_accvgpr_read_b32 v{dst}, a{n}')
    for p in range(8):
        e(f'v_pk_mul_f32 {vr(QA+2*p,2)}, {vr(QA+2*p,2)}, v[246:247] op_sel_hi:[1,0]')
        e(f'v_cvt_pk_bf16_f32 v{Q+24+p}, v{QA+2*p}, v{QA+2*p+1}')
    e(f"""v_and_b32 v{Q+24}, v13, v{Q+24}
v_and_b32 v{Q+25}, v13, v{Q+25}
v_and_b32 v{Q+30}, v5, v{Q+30}
v_and_b32 v{Q+31}, v5, v{Q+31}
ds_write_b128 v15, {vr(Q+24,4)}
ds_write_b128 v15, {vr(Q+28,4)} offset:1024
v_xor_b32 v249, {3*2048}, v15
v_xor_b32 v250, {2*2048}, v15
v_xor_b32 v251, {1*2048}, v15
v_mov_b32 v{RM}, 0
v_mov_b32 v7, 0xdddd
v_mov_b32 v166, v17
v_mov_b32 v167, v18
v_mov_b32 v168, v19""")
    w1o[0] = 165
    vm.wait('u')
    e('\n'.join(unit_rd))
    e('s_getpc_b64 s[44:45]\nL_pc1:')
    vm.op('global_load_dword v242, v170, s[44:45]', 'T')
    e('s_waitcnt lgkmcnt(0)')
    for f in range(2): vm.op(f'buffer_store_dwordx4 {vr(80+4*f,4)}, v2, s[12:15], s64 offen offset:{1024*f} sc1', 'ust')
    w1l(WB_)
    srd2(e, 32, 3584); srd2(e, 36, 896); srd2(e, 40, 2048*896)
    e('s_add_u32 s100, s3, 8192\ns_mov_b32 s101, s28')
    for s in range(4): e(f'{MF} {vr(O+16*s,16)}, {vr(RM,4)}, {vr(RM,4)}, 0')
    stamp(e, 's1win')
    e(f"""s_cmp_lg_u32 s16, 0
s_cbranch_scc1 L_s1done
s_mov_b32 s26, {POLL_MAX}
L_s1poll:
buffer_load_dword v15, v169, s[12:15], s51 offen sc1
s_sub_u32 s26, s26, 1
s_cbranch_scc1 L_s1done
s_waitcnt vmcnt(0)
v_cmp_gt_u32 vcc, 14, v15
s_cbranch_vccnz L_s1poll
L_s1done:
s_barrier""")
    stamp(e, 's1done')
    def kl(j, t): vm.op(f'buffer_load_dwordx4 {ar(16*j+4*t,4)}, v3, s[12:15], s{KVO+j} offen offset:{1024*t} sc1', f'K{j}')
    def vl(j, t): vm.op(f'buffer_load_dwordx4 {ar(16*j+8+4*t,4)}, v{248 if t else 4}, s[12:15], s{KVO+j} offen sc1', f'V{j}')
    KV0 = knob('kv0', 2)
    for j in range(KV0): kl(j, 0); kl(j, 1); vl(j, 0); vl(j, 1)
    for s in range(3):
        for t in range(2): e(f'ds_read_b128 {vr(Q+8*s+4*t,4)}, v{249+s} offset:{1024*t}')
    steps = [(s, j) for j in range(16) for s in range(3)] + [(3, j) for j in range(16)]
    N = len(steps)
    def qk(i, t):
        s, j = steps[i]; d = vr(S + 16*(i % 3), 16)
        return f'{MF} {d}, {ar(16*j+4*t,4)}, {vr(Q+8*s+4*t,4)}, ' + ('0' if t == 0 else d)
    def pv(i, t):
        s, j = steps[i]
        return f'{SM} {vr(O+16*s,16)}, {ar(16*j+8+4*t,4)}, {vr(S+16*(i%3)+8*t,8)}, v7'
    pre, post = {}, {}
    def P(d, i, sl, f): d.setdefault((i, sl), []).append(f)
    seq = [(f, j, t) for j in range(KV0, 16) for f in (kl, vl) for t in range(2)]
    KR = knob('kr', 4)
    for n, (f, j, t) in enumerate(seq):
        pos = n * 8 // KR
        P(post, pos // 4, pos % 4, (lambda f=f, j=j, t=t: f(j, t)))
    i0 = isml = (len(seq) - 1) * 8 // KR // 4 + 1
    W1S, W1R = knob('w1s', i0), knob('w1r', 4)
    for n in range(WA_ + WB_, 28):
        pos = 4*W1S + (n - WA_ - WB_)*W1R + 1
        if n % 4 == 0: P(post, (pos-1) // 4, (pos-1) % 4, w1set)
        P(post, pos // 4, pos % 4, lambda: w1l(1, False)); i0 = max(i0, pos // 4 + 1)
    small = [f'buffer_load_dwordx4 {vr(224+4*t,4)}, v0, s[4:7], s27 offen offset:{32*t}' for t in range(2)] + \
            [f'buffer_load_dwordx4 {vr(232+4*t,4)}, v160, s[36:39], 0 offen offset:{32*t}' for t in range(2)] + \
            [f'buffer_load_ushort v{244+b}, v{161+b}, s[32:35], 0 offen' for b in range(4)]
    for n, l in enumerate(small): P(post, isml + n, 3, (lambda l=l: vm.op(l, 'sm')))
    TM = knob('tm', 1); i0 = max(i0, isml + 8, knob('ts', 0))
    TD = knob('td', 0)
    P(post, i0, 0, lambda: vm.op('buffer_load_dword v243, v241, s[12:15], 0 offen sc1', 'T0'))
    for bit, so in ((1, 's101'), (4, 's3'), (8, 's100')):
        if TM & bit:
            P(post, i0, 2, (lambda so=so: vm.op(f'buffer_load_dword v242, v240, s[12:15], {so} offen sc1', 'T'))); i0 += max(TD, 1)
    P(pre, 0, 3, lambda: vm.wait('V0'))
    for j in range(1, 16):
        if j < 6 or KR < 4: P(pre, 3*j - 1, 0, (lambda j=j: vm.wait(f'V{j}')))
        elif j % 2 == 0: P(pre, 3*j - 1, 0, (lambda j=j: vm.wait(f'V{j+1}')))
    def pwr(s, q): return f'ds_write_b128 v{9+s}, {vr(O+16*s+4*q,4)} offset:{s*4096 + q*1024}'
    def prd(s, q): return f'ds_read_b128 {vr(O+16*s+4*q,4)}, v12 offset:{s*4096 + q*1024}'
    for k in range(12): P(post, 50 + k//2, 2*(k % 2), (lambda k=k: e(pwr(k//4, k % 4))))
    P(post, 59, 0, lambda: e('s_waitcnt lgkmcnt(0)\ns_barrier'))
    for k in range(12): P(post, 60 + k//4, k % 4, (lambda k=k: e(prd(k//4, k % 4))))
    vm.wait('ust', 'lgkmcnt(0)')
    e('''s_barrier
s_cmp_lg_u32 s16, 0
s_cbranch_scc1 L_s1c
s_mov_b64 exec, 0x1ff
buffer_atomic_add v8, v14, s[12:15], 0 offen sc1
s_mov_b64 exec, -1
L_s1c:''')
    vm.wait('K0')
    stamp(e, 'a0')
    e(qk(0, 0)); e(qk(0, 1))
    for i in range(N):
        if i == 48: stamp(e, 'aB')
        b = S + 16*(i % 3)
        mf = [qk(i+1, 0) if i+1 < N else None, qk(i+1, 1) if i+1 < N else None, pv(i-1, 1) if i > 0 else None, pv(i, 0)]
        for sl in range(4):
            for f in pre.get((i, sl), []): f()
            if mf[sl]: e(mf[sl])
            for f in post.get((i, sl), []): f()
            for r in range(4): e(f'v_exp_f32 v{b+4*sl+r}, v{b+4*sl+r}')
    e(pv(N-1, 1))
    assert w1n[0] == 28
    e('L_combine:')
    stamp(e, 'comb')
    e('s_waitcnt lgkmcnt(0)')
    for r in range(16): e(f'v_add_f32 v{O+r}, v{O+r}, v{O+16+r}')
    for p in range(8): e(f'v_pk_add_f32 {vr(O+2*p,2)}, {vr(O+2*p,2)}, {vr(O+32+2*p,2)}')
    for p in [6, 0, 1, 2, 3, 4, 5, 7]:
        e(f'v_pk_add_f32 {vr(O+2*p,2)}, {vr(O+2*p,2)}, {vr(O+48+2*p,2)}')
        if p == 6: e(f'v_mov_b32 v13, v{O+12}\nv_mov_b32 v15, v{O+12}')
        if p == 1: e('v_permlane32_swap_b32 v13, v15')
        if p == 2: e('v_rcp_f32 v112, v15')
    e(f'''s_lshl2_add_u32 s50, s17, s16
s_lshl4_add_u32 s50, s50, s18
s_lshl_b32 s50, s50, 11
s_add_u32 s50, s50, {WS_O}''')
    for p in range(8):
        e(f'v_pk_mul_f32 {vr(O+2*p,2)}, {vr(O+2*p,2)}, v[112:113] op_sel_hi:[1,0]')
        e(f'v_cvt_pk_bf16_f32 v{O+p}, v{O+2*p}, v{O+2*p+1}')
        if p == 3: vm.op(f'buffer_store_dwordx4 {vr(O,4)}, v2, s[12:15], s50 offen sc1', 'Ost')
    e(f'v_and_b32 v{O+6}, v6, v{O+6}\nv_and_b32 v{O+7}, v6, v{O+7}')
    vm.op(f'buffer_store_dwordx4 {vr(O+4,4)}, v2, s[12:15], s50 offen offset:1024 sc1', 'Ost')
    e(f'''v_cmp_nle_f32 vcc, {f32(2.0**-40)}, v15
s_mul_i32 s44, s22, {WFP}
s_mov_b64 s[46:47], vcc
v_cmp_nge_f32 vcc, {f32(2.0**40)}, v15
s_add_u32 s44, s44, {WS_WF}
s_or_b64 vcc, vcc, s[46:47]
s_cselect_b32 s26, 1, 0
s_andn2_b32 s26, s26, s30
v_mov_b32 v13, s26
ds_write_b32 v12, v13
s_mul_i32 s45, s16, {28*2048}
s_add_u32 s45, s45, s44
s_lshl_b32 s46, s16, 14
s_add_u32 s44, s44, s46
s_add_u32 s44, s44, {112*2048}
s_and_b32 s46, s16, 1
s_lshl_b32 s46, s46, 10
v_add_u32 v3, s46, v2
v_xor_b32 v4, 1024, v3''')
    def wol(ks, f):
        if f == 0 and ks % 2 == 0: e(f's_add_u32 s47, s44, {ks*2048}')
        vm.op(f'buffer_load_dwordx4 {vr(WOF+8*ks+4*f,4)}, v{3+f}, s[12:15], s47 offen offset:{(ks%2)*2048} sc1', 'Wo')
    w2n = [0]
    def w2l(n=1):
        for _ in range(n):
            if w2n[0] >= 56: return
            ks, f = divmod(w2n[0], 2); w2n[0] += 1
            if f == 0 and ks % 2 == 0: e(f's_add_u32 s51, s45, {ks*2048}')
            vm.op(f'buffer_load_dwordx4 {ar(8*ks+4*f,4)}, v{3+f}, s[12:15], s51 offen offset:{(ks%2)*2048} sc1', 'W2')
    vm.wait('T0')
    e('''v_cmp_gt_u32 vcc, 16, v243
s_lshr_b32 s46, vcc_hi, 16
s_cbranch_scc1 L_wf
L_wfd:''')
    slow.append(f'''L_wf:
s_mov_b32 s26, {POLL_MAX}
L_wfp:
buffer_load_dword v243, v241, s[12:15], 0 offen sc1
s_sub_u32 s26, s26, 1
s_cbranch_scc1 L_wfd
s_waitcnt vmcnt(0)
v_cmp_gt_u32 vcc, 16, v243
s_nop 1
s_lshr_b32 s46, vcc_hi, 16
s_cbranch_scc1 L_wfp
s_branch L_wfd''')
    for ks in range(4): wol(ks, 0); wol(ks, 1)
    e(f'''v_and_b32 v13, 3, v1
v_mul_u32_u24 v13, 12288, v13
v_add_u32 v13, {SCR}, v13
v_mov_b32 v15, {WS_BYTES}
s_cmp_eq_u32 s16, 0
s_cselect_b32 s26, 14, 0
v_cmp_gt_u32 vcc, s26, v1
v_mov_b32 v8, 1
s_lshl_b32 s50, s17, 12
v_cndmask_b32 v15, v15, v240, vcc
s_add_u32 s50, s50, {WS_FL}''')
    WA = 248
    tr_lane_part(e, WA, 1, 256, 14, 5)
    e(f'v_bfe_u32 v14, v1, 2, 2\nv_xor_b32 v14, s16, v14\nv_lshl_add_u32 v{WA}, v14, 6, v{WA}')
    for b in range(1, 4): e(f'v_xor_b32 v{WA+b}, {64*b}, v{WA}')
    for b in range(4): e(f'v_add_u32 v{WA+4+b}, 0x10000, v{WA+b}')
    vm.wait('Ost', 'lgkmcnt(0)')
    e('''s_barrier
ds_read_b32 v13, v13
s_waitcnt lgkmcnt(0)
v_cmp_ne_u32 vcc, 0, v13
s_cbranch_vccnz L_fallback''')
    vm.op('buffer_atomic_add v8, v15, s[12:15], s50 offen sc1', 'sig2')
    stamp(e, 's2sig')
    e('s_cmp_ge_u32 s20, 14\ns_cbranch_scc1 L_end')
    def w1rd(dst, s, b, k='v'):
        base = WA + b + (4 if s >= 16 else 0); off = (s & 15)*4096
        return [f'ds_read_b64_tr_b16 {vr(dst+2*rd,2,k)}, v{base} offset:{off + rd*1024}' for rd in range(2)]
    e('v_mov_b32 v14, 0x3f803f80\nv_mov_b32 v156, 0\nv_mov_b32 v157, 0')
    B1 = knob('b1', 6)
    rest = [(lambda ks=ks, f=f: wol(ks, f)) for ks in range(4, 8) for f in range(2)] + [w2l]*B1
    per = (len(rest) + 6) // 7
    for g in range(7):
        for k in range(4): e('\n'.join(w1rd(16 + 16*(g & 1) + 4*k, 4*g + k, 0)))
        for f in rest[per*g:per*g+per]: f()
        if g:
            e('s_waitcnt lgkmcnt(8)')
            for r in range(16): e(f'v_dot2c_f32_bf16 v{156 + (r & 1)}, v{16 + 16*((g-1) & 1) + r}, v14')
    ACC3 = 80
    for r in range(8):
        e(f'v_lshlrev_b32 v{ACC3+2*r}, 16, v{224+r}\nv_and_b32 v{ACC3+2*r+1}, 0xffff0000, v{224+r}')
    e('s_waitcnt lgkmcnt(0)')
    for r in range(16): e(f'v_dot2c_f32_bf16 v{156 + (r & 1)}, v{16 + r}, v14')
    e(f'''v_and_b32 v13, 31, v1
v_lshlrev_b32 v13, 2, v13
v_sub_u32 v13, v13, v2
v_add_f32 v156, v156, v157''')
    halves_sum(e, 156, 157)
    e('''v_add_u32 v5, v12, v13
ds_write_b32 v5, v156 offset:1024
v_add_u32 v157, v11, v13
v_add_u32 v158, v10, v13
v_add_u32 v159, v9, v13''')
    e(f'''v_readlane_b32 s31, v243, 20
s_mul_i32 s56, s23, 32768
s_lshl_b32 s55, s16, 13
s_add_u32 s55, s55, {WS_O}
s_add_u32 s56, s56, s55
s_xor_b32 s57, s56, 32768
s_add_u32 s58, s56, 4096
s_add_u32 s59, s57, 4096
s_cmp_eq_u32 s31, s29
s_cselect_b32 s31, 1, 0
s_lshl_b32 s55, s20, 7
v_mov_b32 v13, s55''')
    if knob('nolocal', 0): e('s_mov_b32 s31, 0')
    stamp(e, 's2win')
    e(f'''s_cmp_lg_u32 s16, 0
s_cbranch_scc1 L_s2done
s_mov_b32 s26, {POLL_MAX}
L_s2poll:
buffer_load_dword v15, v13, s[12:15], s25 offen sc1
s_sub_u32 s26, s26, 1
s_cbranch_scc1 L_s2done
s_waitcnt vmcnt(0)
v_cmp_gt_u32 vcc, 16, v15
s_cbranch_vccnz L_s2poll
L_s2done:
s_waitcnt lgkmcnt(0)
s_barrier''')
    stamp(e, 's2done')
    AF = 16
    def ol(a, ks): vm.op(f'buffer_load_dwordx4 {vr(AF+32*a+4*ks,4)}, v2, s[12:15], s{56 + a + (2 if ks >= 4 else 0)} offen offset:{(ks&3)*1024} sc1', f'O{a}{ks}')
    for ks in range(8): ol(1, ks)
    e('ds_read_b32 v157, v157 offset:1024\nds_read_b32 v158, v158 offset:1024\nds_read_b32 v159, v159 offset:1024')
    for ks in range(4): ol(0, ks)
    e('s_waitcnt lgkmcnt(0)\ns_barrier')
    for b in range(4):
        e(f'''v_and_b32 v13, 0xffff0000, v{156+b}
v_sub_f32 v15, v{156+b}, v13
v_cvt_pk_bf16_f32 v15, v13, v15
v_lshrrev_b32 v13, 16, v13
v_lshl_or_b32 v13, v{244+b}, 16, v13
v_accvgpr_write_b32 a{224+4*b}, v15
v_accvgpr_write_b32 a{225+4*b}, v13
v_accvgpr_write_b32 a{226+4*b}, v{244+b}
v_accvgpr_write_b32 a{227+4*b}, 0''')
    for r in range(8):
        e(f'v_lshlrev_b32 v{144+2*r}, 16, v{232+r}\nv_and_b32 v{145+2*r}, 0xffff0000, v{232+r}')
    e(f'''s_mul_i32 s60, s23, 28672
s_lshl_b32 s55, s24, 11
s_add_u32 s60, s60, s55
s_add_u32 s60, s60, {WS_H}
s_lshl_b32 s61, s23, 12
s_lshl_b32 s55, s22, 9
s_add_u32 s61, s61, s55
s_and_b32 s55, s16, 1
s_lshl3_add_u32 s61, s55, s61
s_add_u32 s61, s61, {WS_S}
v_and_b32 v15, 0x1f0, v2
s_and_b32 s55, s23, 3
s_lshl_b32 s55, s55, 5
s_add_u32 s55, s55, s24
s_lshl_b32 s55, s55, 2
s_add_u32 s55, s55, {16*128}
v_mov_b32 v14, s55
v_min_u32 v5, 13, v1
v_lshlrev_b32 v5, 2, v5
s_lshl_b32 s62, s16, 7
s_add_u32 s62, s62, s25
s_add_u32 s62, s62, {16*128}
s_lshl2_add_u32 s55, s19, s16
s_mul_i32 s63, s55, 28672
s_add_u32 s63, s63, {WS_H}
s_lshl_b32 s64, s55, 12
s_add_u32 s64, s64, {WS_S}''')
    for ks in range(4, 8): ol(0, ks)
    def rwr(s, A, q): return f'ds_write_b128 v{12-s}, {vr(A+16*s+4*q,4)} offset:{(3-s)*4096 + q*1024}'
    def rrd(s, A, q): return f'ds_read_b128 {vr(A+16*s+4*q,4)}, v12 offset:{(3-s)*4096 + q*1024}'
    B2 = knob('b2', 6)
    for a in (1, 0):
        for ks in range(8):
            vm.wait(f'O{a}{ks}')
            for f in (1, 0):
                acc = vr(ACC3 + 16*(2*a+f), 16)
                e(f'{MF} {acc}, {vr(WOF+8*ks+4*f,4)}, {vr(AF+32*a+4*ks,4)}, ' + (acc if (ks or (a, f) == (0, 0)) else '0'))
                if a == 0 and 2 <= ks < 6: e(rwr(3 - (ks-2)//2, ACC3, 2*((ks-2) % 2) + (1-f)))
                if a == 1 and f == 0 and ks >= 8 - B2: w2l()
    stamp(e, 'p3mf')
    e('s_waitcnt lgkmcnt(0)\ns_barrier')
    for q in range(4): e(rrd(3, ACC3, q))
    for q in range(4): e(rwr(1, ACC3, q))
    for q in range(4): e(rrd(2, ACC3, q))
    e('s_waitcnt lgkmcnt(4)\ns_barrier')
    for q in range(4): e(rrd(1, ACC3, q))
    for n, s in enumerate((3, 2, 1)):
        if n: e(f's_waitcnt lgkmcnt({4*(2-n)})')
        for p in range(8): e(f'v_pk_add_f32 {vr(ACC3+2*p,2)}, {vr(ACC3+2*p,2)}, {vr(ACC3+16*s+2*p,2)}')
    for p in range(8): e(f'v_cvt_pk_bf16_f32 v{16+p}, v{ACC3+2*p}, v{ACC3+2*p+1}')
    def dual(lines, tag, lab):
        e(f's_cmp_lg_u32 s31, 0\ns_cbranch_scc0 {lab}_s')
        for l in lines: vm.op(l, tag)
        e(f'{lab}_d:')
        slow.append(f'{lab}_s:\ns_nop 1\n' + '\n'.join(l + ' sc1' for l in lines) + f'\ns_nop 1\ns_branch {lab}_d')
    dual([f'buffer_store_dwordx4 {vr(16+4*t,4)}, v2, s[12:15], s60 offen offset:{1024*t}' for t in range(2)], 'hst', 'L_h')
    e(f'v_pk_mul_f32 v[26:27], {vr(ACC3,2)}, {vr(ACC3,2)}\nv_pk_add_f32 v[24:25], {vr(ACC3,2)}, {vr(ACC3+2,2)}\nv_pk_fma_f32 v[26:27], {vr(ACC3+2,2)}, {vr(ACC3+2,2)}, v[26:27]')
    for p in range(2, 8):
        e(f'v_pk_add_f32 v[24:25], v[24:25], {vr(ACC3+2*p,2)}\nv_pk_fma_f32 v[26:27], {vr(ACC3+2*p,2)}, {vr(ACC3+2*p,2)}, v[26:27]')
    e('''v_add_f32 v24, v24, v25
v_add_f32 v25, v26, v27
v_mov_b32 v26, v24
v_mov_b32 v27, v25
v_permlane32_swap_b32 v24, v26
v_permlane32_swap_b32 v25, v27
v_pk_add_f32 v[24:25], v[24:25], v[26:27]''')
    dual(['buffer_store_dwordx2 v[24:25], v15, s[12:15], s61 offen'], 'hst', 'L_s')
    stamp(e, 'p3st')
    w2l(knob('b3', 6))
    for p in range(8): e(f'v_pk_add_f32 {vr(224+2*p,2)}, {vr(144+2*p,2)}, {vr(ACC3+2*p,2)}')
    HF, ACC4, WF, STT = 16, 128, 192, 208
    sched = [(s, (0, 1)) for s in range(28)] + [(s, (2,)) for s in range(28)] + [(s, (3,)) for s in range(28)]
    mlist = [(s, b) for s, bs in sched for b in bs]
    def wreg(m): return ('v', WF + 4*(m & 7)) if (m & 7) < 4 else ('a', 240 + 4*((m & 7) - 4))
    def rds(m):
        s, b = mlist[m]; k, r = wreg(m)
        return w1rd(r, s, b, k)
    LD = 6
    for m in range(LD): e('\n'.join(rds(m)))
    vm.wait('hst')
    dual(['buffer_store_dword v8, v14, s[12:15], s25 offen'], 'f3', 'L_f3')
    stamp(e, 'p3end')
    def poll(lab, addr, so):
        e(f'''s_mov_b32 s26, {POLL_MAX}
{lab}:
buffer_load_dword v13, {addr}, s[12:15], {so} offen sc1
s_sub_u32 s26, s26, 1
s_cbranch_scc1 {lab}_x
s_waitcnt vmcnt(0)
v_cmp_ne_u32 vcc, 1, v13
s_cbranch_vccnz {lab}
{lab}_x:''')
    poll('L_p3', 'v5', 's62')
    stamp(e, 's3done')
    def hl(s):
        if s and s % 4 == 0: e('s_add_u32 s63, s63, 4096')
        vm.op(f'buffer_load_dwordx4 {vr(HF+4*s,4)}, v2, s[12:15], s63 offen offset:{(s&3)*1024} sc1', f'h{s}')
    HP = knob('hp', 11)
    for s in range(HP): hl(s)
    stl = [(lambda p=p: vm.op(f'buffer_load_dwordx4 {vr(STT+4*p,4)}, v2, s[12:15], s64 offen offset:{1024*p} sc1', 'st')) for p in range(4)]
    vq = [(lambda s=s: hl(s)) for s in range(HP, 28)]
    vq = vq[:2] + stl[:1] + vq[2:4] + stl[1:2] + vq[4:6] + stl[2:3] + vq[6:8] + stl[3:] + vq[8:]
    H1W = knob('h1w', 0)
    if not TM & 1 and not H1W: vq.append(lambda: vm.op('buffer_load_dword v13, v240, s[12:15], s101 offen sc1', 'T'))
    st = [lambda: vm.wait('st'),
          f'v_and_b32 v{STT+12}, v6, v{STT+12}', f'v_and_b32 v{STT+13}, v6, v{STT+13}', f'v_and_b32 v{STT+14}, v6, v{STT+14}', f'v_and_b32 v{STT+15}, v6, v{STT+15}']
    for k in range(1, 8): st += [f'v_add_f32 v{STT}, v{STT}, v{STT+2*k}', f'v_add_f32 v{STT+1}, v{STT+1}, v{STT+2*k+1}']
    tmp = Asm(); ln_stats(tmp, STT, STT+1, STT+2, STT+3, STT+4, STT+5)
    st += [i.text for i in tmp.ins]
    XB = STT + 8
    st += f'''v_sub_f32 v{STT+3}, 0, v{STT+3}
v_and_b32 v{STT+3}, v6, v{STT+3}
v_and_b32 v{STT+5}, v6, v{STT+5}
v_and_b32 v{STT+6}, 0xffff0000, v{STT+3}
v_sub_f32 v{STT+7}, v{STT+3}, v{STT+6}
v_cvt_pk_bf16_f32 v{XB}, v{STT+6}, v{STT+6}
v_and_b32 v{STT+6}, 0xffff0000, v{STT+5}
v_cvt_pk_bf16_f32 v{XB+1}, v{STT+7}, v{STT+6}
v_sub_f32 v{STT+7}, v{STT+5}, v{STT+6}
v_cvt_pk_bf16_f32 v{XB+2}, v{STT+7}, 0
v_mov_b32 v{XB+3}, 0
v_mul_f32 v242, v{STT+4}, v{STT+4}'''.split('\n')
    lab = [0]
    def epi(b):
        A = ACC4 + 16*b; l = [f's_xor_b32 s59, s16, {b}', 's_lshl_b32 s59, s59, 11', 's_add_u32 s59, s59, s101']
        for p in range(8):
            l += [f'v_mul_f32 v{A+2*p}, v{A+2*p}, abs(v{A+2*p})', f'v_mul_f32 v{A+2*p+1}, v{A+2*p+1}, abs(v{A+2*p+1})',
                  f'v_cvt_pk_bf16_f32 v{A+p}, v{A+2*p}, v{A+2*p+1}', f'v_pk_max_i16 v{A+p}, v{A+p}, 0']
        def stores():
            lab[0] += 1
            L = [f'buffer_store_dwordx4 {vr(A+4*t,4)}, v2, s[12:15], s59 offen offset:{1024*t}' for t in range(2)]
            if H1W:
                for x in L: vm.op(x + ' sc1', 'h1st')
            else: dual(L, 'h1st', f'L_e{lab[0]}')
        return l + [stores]
    M = len(mlist)
    misc = f'''s_lshl_b32 s55, s16, 5
s_add_u32 s55, s55, s20
s_lshl_b32 s55, s55, 2
s_add_u32 s55, s55, {20*128}
v_mov_b32 v14, s55
s_mul_i32 s55, s16, 7
s_lshr_b32 s55, s55, 1
v_and_b32 v15, 3, v1
v_add_u32 v15, s55, v15
v_bfe_u32 v13, v1, 2, 1
v_lshl_add_u32 v15, v13, 5, v15
v_lshlrev_b32 v15, 2, v15
s_lshl_b32 s62, s21, 8
s_add_u32 s62, s62, s25
s_add_u32 s62, s62, {20*128}
s_mul_i32 s56, s23, 114688
s_xor_b32 s57, s23, 1
s_mul_i32 s57, s57, 114688
s_mul_i32 s55, s16, {28*1024}
s_add_u32 s55, s55, {WS_H1}
s_add_u32 s56, s56, s55
s_add_u32 s57, s57, s55'''.split('\n')
    queue += misc
    for m, (s, b) in enumerate(mlist):
        if m == 30: queue += st
        if m == 56: stamp(e, 'p4a')
        if m == 59: queue += epi(0) + epi(1)
        if m == 87: queue += epi(2)
        if m % 2 == 0:
            lg = f'lgkmcnt({2*max(0, min(LD-2, M-2-m))})'
            if m < 56: vm.wait(f'h{s}', lg)
            else: e('s_waitcnt ' + lg)
        acc = vr(ACC4 + 16*b, 16); k, r = wreg(m)
        e(f'{MF} {acc}, {vr(r,4,k)}, {vr(HF+4*s,4)}, ' + (acc if s else '0'))
        if m + LD < M: e('\n'.join(rds(m + LD)))
        if m % 2 == 1:
            if vq: vq.pop(0)()
            elif w2n[0] < 56: w2l()
            else: drainq(2)
            drainq(1 if m < 56 else 0)
        else: drainq(3)
        if s == 27:
            if m == 55:
                drainq(99)
                for b2 in (0, 1): e(f'{MF} {vr(ACC4+16*b2,16)}, {ar(224+4*b2,4)}, {vr(XB,4)}, {vr(ACC4+16*b2,16)}')
            elif m > 55: e(f'{MF} {acc}, {ar(224+4*b,4)}, {vr(XB,4)}, {acc}')
    stamp(e, 'p4mf')
    drainq(999)
    w2l(56)
    queue += epi(3); drainq(999)
    vm.wait('h1st')
    dual(['buffer_store_dword v8, v14, s[12:15], s25 offen'], 'f4', 'L_f4')
    stamp(e, 'p4end')
    e(f'''s_barrier
v_lshrrev_b32 v5, 2, v2
s_lshl_b32 s55, s16, 8
v_add_u32 v13, s55, v5
ds_write_b32 v13, v242
s_and_b32 s55, s23, 3
s_lshl_b32 s55, s55, 8
v_add_u32 v5, s55, v5''')
    poll('L_p4', 'v15', 's62')
    stamp(e, 's4done')
    GF, ACC5, RING = 16, 144, 32
    GP = knob('gp', 12)
    s5 = [(a, ks) for a in (1, 0) for ks in range(28)]
    def gl(n):
        a, ks = s5[n]
        if ks and ks % 4 == 0: e(f's_add_u32 s{56+a}, s{56+a}, 4096')
        vm.op(f'buffer_load_dwordx4 {vr(GF+4*(n%RING),4)}, v2, s[12:15], s{56+a} offen offset:{(ks&3)*1024} sc1', f'g{n}')
    for n in range(GP): gl(n)
    for n, (a, ks) in enumerate(s5):
        if n == 28: stamp(e, 'p5a')
        vm.wait(f'g{n}')
        for f in (1, 0):
            acc = vr(ACC5 + 16*(2*a+f), 16)
            e(f'{MF} {acc}, {ar(8*ks+4*f,4)}, {vr(GF+4*(n%RING),4)}, ' + (acc if ks else '0'))
            if f == 1 and n + GP < 56: gl(n + GP)
            if a == 0 and f == 0:
                if 3 <= ks < 11: e(rwr(2 + (ks-3)//4, ACC5, (ks-3) % 4))
                if ks == 14: e('s_waitcnt lgkmcnt(0)\ns_barrier\nds_read_b32 v242, v5')
                if 15 <= ks < 19: e(rrd(2, ACC5, ks-15) + '\n' + rrd(3, ACC5, ks-15))
                if ks == 20: e('s_waitcnt lgkmcnt(0)')
            if a == 0 and 20 <= ks < 28 and (ks, f) != (20, 1):
                i = 2*(ks-20) + (1-f) - 1
                if i < 8:
                    for r in (2*i, 2*i+1):
                        e(f'v_add_f32 v{ACC5+32+r}, v{ACC5+32+r}, v{ACC5+48+r}\nv_fmac_f32 v{224+r}, v242, v{ACC5+32+r}')
    stamp(e, 'p5mf')
    for q in range(4): e(rwr(1, ACC5, q))
    for p in range(8): e(f'v_pk_fma_f32 {vr(224+2*p,2)}, {vr(ACC5+2*p,2)}, v[242:243], {vr(224+2*p,2)} op_sel_hi:[1,0,1]')
    e('s_waitcnt lgkmcnt(0)\ns_barrier')
    for q in range(4): e(rrd(1, ACC5, q))
    for t in range(2):
        e(f's_waitcnt lgkmcnt({2-2*t})')
        for p in range(4*t, 4*t+4):
            e(f'v_pk_fma_f32 {vr(224+2*p,2)}, {vr(ACC5+16+2*p,2)}, v[242:243], {vr(224+2*p,2)} op_sel_hi:[1,0,1]')
            e(f'v_cvt_pk_bf16_f32 v{16+p}, v{224+2*p}, v{225+2*p}')
        e(f'buffer_store_dwordx4 {vr(16+4*t,4)}, v0, s[40:43], s27 offen offset:{32*t}')
    stamp(e, 'p5st')
    stamp_out(e)
    e('s_endpgm')
    for x in slow: e(x)
    e('L_fallback:\ns_mov_b32 s30, 1\ns_waitcnt vmcnt(0)\ns_barrier')
    MXB = SCR
    d = vr(S, 16)
    for s in range(4):
        e(f'v_mov_b32 v{128+s}, 0xff800000')
        for j in range(16):
            e(f'{MF} {d}, {ar(16*j,4)}, {vr(Q+8*s,4)}, 0\n{MF} {d}, {ar(16*j+4,4)}, {vr(Q+8*s+4,4)}, {d}')
            for p in range(8): e(f'v_max3_f32 v{128+s}, v{S+2*p}, v{S+2*p+1}, v{128+s}')
        e(f'''v_mov_b32 v13, v{128+s}
v_permlane32_swap_b32 v{128+s}, v13
v_max_f32 v{128+s}, v{128+s}, v13
s_xor_b32 s50, s16, {3-s}
s_lshl_b32 s50, s50, 9
s_add_u32 s50, s50, {MXB}
v_and_b32 v13, 31, v1
v_lshlrev_b32 v13, 4, v13
v_add_u32 v{132+s}, s50, v13
s_lshl_b32 s50, s16, 2
v_add_u32 v13, s50, v{132+s}
ds_write_b32 v13, v{128+s}''')
    e('s_waitcnt lgkmcnt(0)\ns_barrier')
    for s in range(4): e(f'ds_read_b128 {vr(136+4*s,4)}, v{132+s}')
    e('s_waitcnt lgkmcnt(0)\ns_barrier')
    for s in range(4):
        e(f'v_max3_f32 v13, v{136+4*s}, v{137+4*s}, v{138+4*s}\nv_max_f32 v13, v13, v{139+4*s}')
        for r in range(16): e(f'v_sub_f32 v{NM+r}, 0, v13\nv_mov_b32 v{O+16*s+r}, 0')
        for j in range(16):
            e(f'{MF} {d}, {ar(16*j,4)}, {vr(Q+8*s,4)}, {vr(NM,16)}\n{MF} {d}, {ar(16*j+4,4)}, {vr(Q+8*s+4,4)}, {d}')
            for r in range(16): e(f'v_exp_f32 v{S+r}, v{S+r}')
            for t in range(2): e(f'{SM} {vr(O+16*s,16)}, {ar(16*j+8+4*t,4)}, {vr(S+8*t,8)}, v7')
            e('s_nop 7')
        e('s_nop 7')
    for k in range(12): e(pwr(k//4, k % 4))
    e('s_waitcnt lgkmcnt(0)\ns_barrier')
    for k in range(12): e(prd(k//4, k % 4))
    e('s_branch L_combine')
    e('L_end:')

def build1(e, path):
    head = open(f'cdna_kernels/{NAME}.s.ref').read().split('\n')
    name = NAME + '_kernel'
    out = head[:12] + (['; stamps: ' + ' '.join(ST_NAMES)] if STAMP else []) + ['; @launch grid=(256,1,1) block=(256,1,1) lds=163840', '.amdgcn_target "amdgcn-amd-amdhsa--gfx950"\n.text']
    e.fix('-v' in sys.argv)
    out.append(f'.globl {name}\n.p2align 8\n.type {name},@function\n{name}:')
    out.append(e.text() + '    s_endpgm')
    out.append(f""".section .rodata,"a"
.p2align 6
.amdhsa_kernel {name}
  .amdhsa_next_free_vgpr 512
  .amdhsa_next_free_sgpr 102
  .amdhsa_accum_offset 256
  .amdhsa_group_segment_fixed_size 0
  .amdhsa_kernarg_size 88
  .amdhsa_user_sgpr_count 2
  .amdhsa_user_sgpr_kernarg_segment_ptr 1
  .amdhsa_system_sgpr_workgroup_id_x 1
.end_amdhsa_kernel""")
    open(path, 'w').write('\n'.join(out) + '\n')

if __name__ == '__main__':
    e = Asm(); kernel(e)
    outs = [a for a in sys.argv[1:] if a.endswith('.s')]
    build1(e, outs[0] if outs else 'v5.s')
```

```python
import sys, math, struct
from asmlib import *
from gen1 import NAME, MF, SM, f32, QSCALE, swap23, halves_sum, tr_lane_part, ln_stats

KP, VP, ONE = 0, 28672, 57344
TTP = 57600
WS_O, WS_H, WS_S, WS_H1, WS_WF, WS_FL, WS_ST = 0x600000, 0x800000, 0x9E0000, 0xA40000, 0x1200000, 0x1400000, 0x1500000
WS_F1 = WS_FL + 0x10000
WS_F2 = WS_FL + 0x14000
HINT = 0x8000
WS_BYTES = 0x1600000
WFP = 144*2048
POLL_MAX = 1 << 18
STAMP = '--stamp' in sys.argv
def knob(name, d):
    for a in sys.argv:
        if a.startswith(name + '='): return int(a.split('=')[1])
    return d
STSET = knob('st', 0)
ST_NAMES = ['start p1go p1st s1sig s1done a0 comb end', 'comb s2sig s2done p3end s3done p4end s4done end',
            'p1go p1end p1st s1sig s1win s1done a0 aB', 's2sig s2win s2done p3mf p3st p3end s3done p4a',
            's3done p4a p4mf p4end s4done p5a p5mf p5st', 'a0 a6 a16 a28 a38 aB a58 comb'][STSET].split()

def srd2(e, d, nbytes):
    e(f's_mov_b32 s{d+2}, {nbytes}\ns_mov_b32 s{d+3}, 0x00020000')
def stamp(e, name):
    if STAMP and name in ST_NAMES:
        i = ST_NAMES.index(name)
        e(('s_memtime' if '--cyc' in sys.argv else 's_memrealtime') + f' s[{84+2*i}:{85+2*i}]')
def stamp_out(e):
    if not STAMP: return
    e('s_waitcnt vmcnt(0)')
    stamp(e, 'end')
    e('s_waitcnt lgkmcnt(0)')
    e(f's_lshl_b32 s3, s2, 2\ns_add_u32 s3, s3, s16\ns_lshl_b32 s3, s3, 6\ns_add_u32 s3, s3, {WS_ST}\nv_mov_b32 v1, 0')
    for i in range(8):
        e(f'v_mov_b32 v0, s{84+2*i}\nbuffer_store_dword v0, v1, s[12:15], s3 offen offset:{4*i}')

def kernel(e):
    vm = VM(e); slow = []
    XR, WQ, CSB, QX, UB = 57344, 114688, 143360, 147456, 155648
    SCR = 114688
    PF = 2; MAP = knob('map', 8)
    Q, O, S, WOF, NM = 16, 48, 112, 160, 144
    KVO = 68
    stamp(e, 'start')
    e("""s_cmp_ge_u32 s2, 256
s_cbranch_scc1 L_end
s_load_dwordx2 s[4:5], s[0:1], 0
s_load_dwordx2 s[8:9], s[0:1], 8
s_load_dwordx2 s[12:13], s[0:1], 80
s_load_dwordx2 s[40:41], s[0:1], 16
s_load_dwordx2 s[42:43], s[0:1], 48
s_load_dwordx2 s[60:61], s[0:1], 32
s_load_dwordx2 s[100:101], s[0:1], 72
s_getpc_b64 s[20:21]
L_pc0:
s_lshr_b32 s26, s2, 3
s_lshl_b32 s22, s26, 11
v_lshrrev_b32 v10, 4, v0
v_lshl_add_u32 v10, v10, 7, s22
v_min_u32 v10, L_fallback-L_pc0, v10""")
    vm.op('global_load_dword v31, v10, s[20:21]', 'T')
    e("""v_lshrrev_b32 v2, 6, v0
v_and_b32 v1, 63, v0
v_readfirstlane_b32 s16, v2
s_and_b32 s51, s2, 7""")
    if MAP == 4:
        e("""s_lshr_b32 s17, s51, 1
s_lshr_b32 s59, s26, 3
s_lshl2_add_u32 s17, s17, s59  ; qb
s_and_b32 s18, s51, 1
s_and_b32 s62, s26, 7
s_lshl3_add_u32 s18, s18, s62  ; head
s_lshl1_add_u32 s59, s59, s62""")
    elif MAP == 2:
        e("""s_lshr_b32 s59, s26, 4
s_lshl1_add_u32 s17, s51, s59  ; qb
s_and_b32 s18, s26, 15         ; head
s_mul_i32 s59, s59, 3
s_add_u32 s59, s59, s18""")
    elif MAP == 8:
        e("""s_lshr_b32 s17, s51, 2
s_lshr_b32 s59, s26, 2
s_lshl3_add_u32 s17, s17, s59  ; qb
s_and_b32 s18, s51, 3
s_and_b32 s62, s26, 3
s_lshl2_add_u32 s18, s18, s62  ; head
s_lshl1_add_u32 s59, s62, s59""")
    ROT = knob('rot', 7)
    if ROT == 7: e('s_mul_i32 s62, s59, 37\ns_lshr_b32 s62, s62, 8\ns_mul_i32 s62, s62, 7\ns_sub_u32 s59, s59, s62')
    elif ROT == 1: e('s_mov_b32 s59, 0')
    elif ROT == 2: e('s_add_u32 s59, s17, s18\ns_and_b32 s59, s59, 1\ns_lshl_b32 s59, s59, 2')
    elif ROT == 21: e('s_add_u32 s59, s17, s18\ns_and_b32 s59, s59, 1')
    elif ROT == 22: e('s_add_u32 s59, s17, s18\ns_and_b32 s59, s59, 1\ns_lshl_b32 s59, s59, 1')
    elif ROT == 4: e('s_add_u32 s59, s17, s18\ns_and_b32 s59, s59, 3\ns_lshl_b32 s59, s59, 1')
    elif ROT == 8: e('s_min_u32 s59, s51, 6')
    e(f"""s_lshl2_add_u32 s63, s17, s16
s_mul_i32 s64, s63, {32*896}
s_mul_i32 s65, s16, {16*2688}
s_lshl_b32 s62, s18, 7
s_add_u32 s62, s62, s65
s_add_u32 s62, s62, 896
s_mul_i32 s66, s16, 12288
s_add_u32 s66, s66, {XR}
s_lshl_b32 s67, s16, 11
v_lshrrev_b32 v240, 3, v1
v_lshrrev_b32 v241, 4, v1
v_and_b32 v242, 7, v1
v_xor_b32 v243, v241, v242
v_mul_u32_u24 v244, 896, v240
v_lshl_add_u32 v2, v243, 4, v244
v_add_u32 v2, s64, v2
v_xor_b32 v3, 64, v2
v_add_u32 v3, 6144, v3
v_add_u32 v4, 12288, v2
v_add_u32 v5, 12288, v3
v_and_b32 v243, 1, v241
v_lshlrev_b32 v243, 2, v243
v_xor_b32 v245, v243, v242
v_mul_u32_u24 v243, 2688, v240
v_lshl_add_u32 v6, v245, 4, v243
v_add_u32 v6, s62, v6
v_add_u32 v7, {8*2688-1024}, v6
s_cmp_lt_u32 s18, 14
s_cselect_b32 s10, {448*2688}, 0
s_mov_b32 s11, 0x00020000""")
    def offs(it):
        e(f's_lshl_b32 s{44+it}, s59, 7\ns_mul_i32 s{52+it}, s59, {64*2688}')
        if it < 6: e('s_add_u32 s59, s59, 1\ns_cmp_eq_u32 s59, 7\ns_cselect_b32 s59, 0, s59')
    offs(0)
    srd2(e, 4, 2048*896); srd2(e, 12, WS_BYTES)
    e(f"""s_lshl1_add_u32 s30, s17, s18
s_sub_u32 s30, s30, 14
s_lshl_b32 s62, s30, 12
s_add_u32 s62, s62, {WS_FL}
s_cmp_lt_u32 s18, 14
s_cselect_b32 s62, {WS_BYTES}, s62
v_lshlrev_b32 v246, 4, v0""")
    for r in range(216, 220): e(f'v_mov_b32 v{r}, 0')
    e('s_waitcnt lgkmcnt(0)')
    def loads(it):
        l = [f's_add_u32 m0, s67, {it*8192}']
        l += [f'buffer_load_dwordx4 v{6+j}, s[8:11], s{52+it} offen offset:{1024*j} lds' for j in range(2)]
        l += [f's_add_u32 m0, s66, {(it%3)*4096}']
        l += [f'buffer_load_dwordx4 v{2+i}, s[4:7], s{44+it} offen offset:{1024*i} lds' for i in range(4)]
        return l
    def emit(l, tag):
        for x in l:
            if x.startswith(('buffer', 'global')): vm.op(x, tag)
            else: e(x)
    e('s_cbranch_scc1 L_nz')
    vm.op('buffer_store_dwordx4 v[216:219], v246, s[12:15], s62 offen sc1', 'z')
    e('L_nz:')
    emit(loads(0), 0)
    e('s_mov_b32 s36, s8\ns_mov_b32 s37, s9')
    srd2(e, 36, 448*2688)
    for it in range(1, 7): offs(it)
    emit(loads(1), 1)
    LDS_ = knob('lds', 1)
    e('s_cmp_lt_u32 s18, 14\ns_cbranch_scc0 L_rdyadd\nL_rdyaddd:')
    slow.append(f'''L_rdyadd:
s_waitcnt vmcnt({vm.count('z')[1]})
s_barrier
s_cmp_lg_u32 s16, 0
s_cbranch_scc1 L_rdyaddd
v_mov_b32 v32, 1
s_mov_b64 exec, 1
global_atomic_add v219, v32, s[100:101] sc1
s_mov_b64 exec, -1
s_branch L_rdyaddd''')
    for r in range(220, 236): e(f'v_mov_b32 v{r}, 0')
    e("""v_and_b32 v246, 31, v1
v_lshrrev_b32 v247, 1, v246
v_lshrrev_b32 v248, 5, v1
v_xor_b32 v247, v247, v248
v_and_b32 v247, 7, v247
v_lshlrev_b32 v247, 4, v247
v_lshl_add_u32 v247, v246, 7, v247
v_add_u32 v247, s66, v247
s_lshl_b32 s62, s16, 5
v_xor_b32 v9, s62, v247""")
    for kk in range(1, 4): e(f'v_xor_b32 v{9+kk}, {32*kk}, v9')
    tr_lane_part(e, 249, 1, 128, 247, 248)
    e('v_bfe_u32 v247, v1, 3, 1\nv_lshl_add_u32 v249, v247, 6, v249\nv_add_u32 v13, s67, v249')
    for n in range(1, 8): e(f'v_xor_b32 v{13+n}, {2048*(n >> 1) + 64*(n & 1)}, v13')
    tr_lane_part(e, 21, 1, 64, 247, 248)
    e(f's_lshl_b32 s26, s16, 10\ns_add_u32 s26, s26, {WQ}\nv_add_u32 v21, s26, v21')
    for kk in range(1, 4): e(f'v_xor_b32 v{21+kk}, {1024*kk}, v21')
    e(f"""v_mov_b32 v25, 0x3f803f80
v_mov_b32 v26, 0
v_mov_b32 v27, 0
v_mov_b32 v28, 0
v_mov_b32 v29, 0
v_mov_b32 v30, 0
s_and_b32 s28, s18, 1
s_lshr_b32 s62, s18, 1
s_mul_i32 s62, s62, 7
s_mul_i32 s31, s28, 3
s_add_u32 s31, s62, s31
s_lshl4_add_u32 s62, s31, s65
v_lshrrev_b32 v247, 2, v1
v_mul_u32_u24 v247, 2688, v247
v_and_b32 v248, 3, v1
v_lshl_add_u32 v8, v248, 4, v247
v_add_u32 v8, s62, v8""")
    e(f"""s_lshl2_add_u32 s19, s2, s16
s_mul_i32 s20, s19, 9363
s_lshr_b32 s20, s20, 16        ; ks'
s_mul_i32 s21, s20, 7
s_sub_u32 s21, s19, s21        ; fb
s_mul_i32 s64, s21, {WFP}
s_lshl_b32 s22, s20, 11
s_add_u32 s64, s64, s22
s_add_u32 s64, s64, {WS_WF}
s_cmp_lt_u32 s20, 144
s_cselect_b32 s64, s64, {WS_BYTES}
s_sub_u32 s22, s20, 112
s_lshr_b32 s62, s22, 1
s_mul_i32 s62, s62, 28
s_and_b32 s22, s22, 1
s_lshl4_add_u32 s62, s22, s62
s_lshl_b32 s22, s20, 4         ; W2 row
s_cmp_lt_u32 s20, 112
s_cselect_b32 s22, s22, s62
s_cselect_b32 s32, s42, s40
s_cselect_b32 s33, s43, s41
s_mov_b32 s34, {448*896}
s_cselect_b32 s34, {1792*896}, s34
s_mov_b32 s35, 0x00020000
s_mul_i32 s22, s22, 896
s_lshl_b32 s21, s21, 7
s_add_u32 s59, s22, s21
v_lshl_add_u32 v250, v245, 4, v244
v_add_u32 v251, 6144, v250
v_add_u32 v252, {UB}, v13
v_xor_b32 v253, 64, v252
v_lshlrev_b32 v254, 4, v1""")
    swap23(e, 247, 246, 248)
    e(f"""v_lshrrev_b32 v248, 5, v1
v_mul_u32_u24 v248, 7168, v248
v_lshl_add_u32 v240, v247, 4, v248
v_add_u32 v241, 14336, v240
v_lshlrev_b32 v242, 3, v246
v_add_u32 v242, {CSB}, v242
s_lshl_b32 s62, s16, 8
v_add_u32 v243, s62, v242
s_mul_i32 s43, s63, {TTP}
s_lshl_b32 s65, s18, 12
s_lshl_b32 s62, s18, 10
s_add_u32 s62, s62, {VP - 7*1024}
s_cmp_lt_u32 s18, 7
s_cselect_b32 s65, s65, s62
s_add_u32 s65, s65, s43
s_add_u32 s43, s43, {ONE}
s_cmp_eq_u32 s18, 13
s_cselect_b32 s43, s43, {WS_BYTES}
v_min_u32 v244, 0x70, v254""")
    for r in range(236, 240): e(f'v_mov_b32 v{r}, v25')
    park = []
    def prk(dst, src): e(f'v_accvgpr_write_b32 a{len(park)}, v{src}'); park.append(dst)
    e(f"""s_bfe_u32 s20, s2, 0x40003     ; j
s_lshr_b32 s19, s2, 7
s_lshl1_add_u32 s19, s51, s19  ; rb
s_lshl_b32 s25, s19, 12
s_add_u32 s25, s25, {WS_FL}
s_getreg_b32 s40, hwreg(HW_REG_XCC_ID, 0, 4)
s_lshl_b32 s41, s40, 2
s_lshl_b32 s29, 14, s41
s_lshl_b32 s41, 1, s41
s_cmp_lt_u32 s40, 8
s_cselect_b32 s41, s41, 0
s_cmp_lt_u32 s20, 14
s_cselect_b32 s41, s41, 0
v_lshlrev_b32 v32, 7, v1
s_lshl_b32 s40, s17, 7
s_add_u32 s40, s40, {WS_F1}
v_lshl_add_u32 v255, v32, 4, s40
v_add_u32 v33, {WS_F2 - WS_F1}, v255
v_mov_b32 v34, 1
s_add_u32 s40, s25, {24*128}
v_writelane_b32 v33, s40, 8
v_writelane_b32 v34, s41, 8""")
    prk(240, 32); prk(14, 33); prk(8, 34)
    e(f"""s_and_b32 s21, s20, 1          ; th
s_lshr_b32 s22, s20, 1         ; fb
s_lshl1_add_u32 s23, s19, s21
s_lshr_b32 s40, s16, 1
s_and_b32 s41, s22, {knob('flip', 1)}
s_xor_b32 s40, s40, s41
s_lshl1_add_u32 s23, s23, s40
s_and_b32 s40, s16, 1
s_lshl1_add_u32 s24, s22, s40
v_mul_u32_u24 v33, 896, v246
v_lshrrev_b32 v34, 5, v1
v_lshlrev_b32 v35, 4, v34
v_add_u32 v33, v33, v35
s_mul_i32 s27, s23, {32*896}
s_lshl_b32 s40, s24, 6
s_add_u32 s27, s27, s40
v_add_u32 v35, s40, v35
s_lshl_b32 s40, s20, 8
s_lshl_b32 s41, s16, 6
s_add_u32 s41, s41, s40
v_lshl_add_u32 v36, v247, 1, s41""")
    prk(0, 33); prk(160, 35); prk(161, 36)
    for b in range(1, 4): e(f'v_xor_b32 v33, {64*b}, v36'); prk(161 + b, 33)
    e(f"""v_lshlrev_b32 v33, 4, v247
v_lshl_add_u32 v33, v34, 9, v33
s_lshl_b32 s41, s31, 9
v_add_u32 v33, s41, v33
s_mul_i32 s41, s18, 448
s_add_u32 s41, s41, {VP}
v_add_u32 v35, s41, v240
v_add_u32 v36, s41, v241
v_cmp_gt_u32 vcc, 28, v246
v_mov_b32 v37, {ONE}
s_mul_i32 s31, s16, {16*3584}
v_cndmask_b32 v35, v37, v35, vcc
v_cndmask_b32 v36, v37, v36, vcc
s_add_u32 s31, s31, s40""")
    prk(3, 33); prk(4, 35); prk(248, 36)
    e(f"""v_cmp_gt_u32 vcc, 32, v1
s_cmp_eq_u32 s28, 0
s_cselect_b32 s40, -1, 0
v_cndmask_b32 v33, 0, -1, vcc
v_not_b32 v35, v33
v_or_b32 v35, s40, v35
s_not_b32 s40, s40
v_or_b32 v36, s40, v33
s_add_u32 s40, s67, {QX}
v_add_u32 v37, s40, v254""")
    early = len(park)
    prk(6, 33); prk(13, 35); prk(5, 36); prk(15, 37)
    early = (early, len(park))
    for s in range(4):
        e(f's_xor_b32 s40, s16, {3-s}\ns_mul_i32 s40, s40, 12288\ns_add_u32 s40, s40, {SCR}\nv_add_u32 v33, s40, v254'); prk(9 + s, 33)
    e(f"""v_lshrrev_b32 v33, 4, v1
v_lshlrev_b32 v35, 2, v33
v_and_b32 v36, 15, v1
v_xor_b32 v35, v35, v36
v_mul_u32_u24 v33, 3584, v33
v_lshl_add_u32 v33, v35, 4, v33""")
    w1p = len(park); prk(165, 33)
    e(f"""s_mul_i32 s40, s23, 28672
s_lshl_b32 s41, s24, 11
s_add_u32 s40, s40, s41
s_add_u32 s40, s40, {WS_H}
v_add_u32 v33, s40, v32
s_lshl_b32 s40, s23, 12
s_lshl_b32 s41, s22, 9
s_add_u32 s40, s40, s41
s_add_u32 s40, s40, {WS_S - 16*128}
v_add_u32 v35, s40, v32
v_cmp_gt_u32 vcc, 16, v1
v_mov_b32 v36, {WS_BYTES}
v_cndmask_b32 v33, v35, v33, vcc
v_cmp_gt_u32 vcc, 20, v1
v_cndmask_b32 v33, v36, v33, vcc
s_lshl_b32 s51, s51, 11
s_add_u32 s40, s51, {WS_F2 - 48*128}
v_add_u32 v35, s40, v32
v_cmp_gt_u32 vcc, 48, v1
s_add_u32 s40, s25, {24*128}
v_cndmask_b32 v33, v35, v33, vcc
v_writelane_b32 v33, s40, 20
s_add_u32 s51, s51, {WS_F1}
s_lshl2_add_u32 s40, s19, s16
s_mul_i32 s28, s40, 114688
s_lshl_b32 s40, s20, 13
s_add_u32 s28, s28, s40
s_add_u32 s28, s28, {WS_H1}
s_bfe_u32 s40, s2, 0x20003
s_lshl2_add_u32 s40, s40, s16
s_lshl_b32 s40, s40, 11
v_and_b32 v35, 0x780, v32
v_add_u32 v36, s40, v35
v_min_u32 v36, L_fallback-L_pc1, v36
s_and_b32 s41, s17, {knob("kvm", 1)}
s_lshl_b32 s41, s41, {knob("kvs", 3)}""")
    prk(241, 33); prk(169, 35); prk(170, 36)
    for j in range(16):
        e(f's_add_u32 s40, s41, {j}\ns_and_b32 s40, s40, 15\ns_lshl4_add_u32 s40, s16, s40\ns_mul_i32 s{KVO+j}, s40, {TTP}')
    ACC, QA, WF, XF = 32, 64, 80, 104
    XM, RM, CF, ON = 216, 220, 224, 236
    def reads(s, ty):
        it, kk = divmod(s, 4); b = s % 3
        l = [f'ds_read_b128 {vr(XF+4*s,4)}, v{9+kk} offset:{(it%3)*4096}']
        if ty != 'l':
            for f in range(2):
                for rd in range(2):
                    l.append(f'ds_read_b64_tr_b16 {vr(WF+8*b+4*f+2*rd,2)}, v{13+2*kk+f} offset:{it*8192 + rd*512}')
        return l
    def xdots(s):
        for r in range(4):
            x = XF + 4*s + r
            e(f'v_dot2c_f32_bf16 v26, v{x}, v25\nv_dot2c_f32_bf16 v27, v{x}, v{x}')
    late = []
    for it in range(7): late += [[f's_add_u32 m0, s26, {it*4096}', f'buffer_load_dwordx4 v8, s[36:39], s{52+it} offen lds']]
    WQS = [int(c) for c in str(knob('wqs', 13)) if c != '0']
    WQE = knob('wqe', 7)
    early = {c - 1: late[n] for n, c in enumerate(WQS)}
    unit_dma = [[f's_add_u32 m0, s67, {UB}', 'buffer_load_dwordx4 v250, s[32:35], s59 offen lds'], ['buffer_load_dwordx4 v251, s[32:35], s59 offen offset:1024 lds']]
    rdy = 'global_load_dword v245, v219, s[100:101] sc1'
    late2 = late[WQE:] + unit_dma
    lateall = late[:WQE] + [[rdy]]
    late = late[len(WQS):WQE]
    def rdycheck(lab, hint):
        e(f'''s_cmp_lg_u32 s16, 0
s_cbranch_scc1 {lab}x
v_cmp_gt_u32 vcc, 32, v245
v_mov_b32 v31, 1
s_cbranch_vccnz {lab}p
{lab}d:''')
        if hint: e(f's_mov_b32 s40, {HINT}\ns_mov_b64 exec, 0xff\nbuffer_atomic_add v31, v255, s[12:15], s40 offen sc1\ns_mov_b64 exec, -1')
        e(f'{lab}x:')
        slow.append(f'''{lab}p:
s_mov_b32 s40, {POLL_MAX}
{lab}l:
global_load_dword v245, v219, s[100:101] sc1
s_sub_u32 s40, s40, 1
s_cbranch_scc1 {lab}d
s_waitcnt vmcnt(0)
v_cmp_gt_u32 vcc, 32, v245
s_cbranch_vccnz {lab}l
s_branch {lab}d''')
    vm.wait(0)
    e('s_barrier')
    stamp(e, 'p1go')
    e('s_cmp_lt_u32 s18, 7\ns_cbranch_scc1 L_kk\ns_cmp_lt_u32 s18, 14\ns_cbranch_scc0 L_light')
    vm0 = (list(vm.seq), vm.done)
    def xm_frag():
        e(f"""v_cmp_gt_u32 vcc, 32, v1
v_sub_f32 v247, 0, v247
v_cndmask_b32 v247, 0, v247, vcc
v_and_b32 v26, 0xffff0000, v247
v_sub_f32 v27, v247, v26
v_cvt_pk_bf16_f32 v{XM}, v26, v26
v_cvt_pk_bf16_f32 v{XM+1}, v27, 0""")
    def variant(ty, lab):
        if lab: e(f'{lab}:')
        vm.seq, vm.done = list(vm0[0]), vm0[1]
        lt = list(late)
        e('\n'.join(reads(0, ty) + reads(1, ty)))
        if LDS_: emit(loads(2)[:3], 2)
        for s in range(28):
            it, kk = divmod(s, 4); b = s % 3
            x = vr(XF+4*s, 4)
            mf = []
            for f in range(2):
                w = vr(WF+8*b+4*f, 4); a = vr(ACC+16*f, 16); c = a if s else '0'
                mf.append(f'{MF} {a}, {w}, {x}, {c}' if ty == 'k' else f'{MF} {a}, {x}, {w}, {c}')
            rd = reads(s+2, ty) if s < 26 else []
            if LDS_ == 0 and it + PF <= 6:
                L = loads(it + PF); tag = it + PF
                ld = {0: (L[:2], L[2:3]), 1: (L[3:5], L[5:6]), 2: ([], L[6:7]), 3: ([], L[7:])}[kk]
                if it in early and kk == 3: ld = (L[7:], [])
            elif LDS_ == 1 and s < 18:
                if kk < 2: L = loads(it + 2); tag = it + 2; ld = {0: (L[3:5], L[5:6]), 1: (L[6:7], L[7:])}[kk]
                else: L = loads(it + 3); tag = it + 3; ld = {2: ([], L[:2]), 3: (L[2:3], [])}[kk]
            else:
                tag = 'wq'
                ld = (lt.pop(0) if lt and len(lt) > 26 - s else [], lt.pop(0) if lt else [])
            if s < 27: e(f's_waitcnt lgkmcnt({5 if s < 26 else 0})')
            if kk == 2:
                for r in range(4):
                    for f in range(2): e(f'v_dot2c_f32_bf16 v{28+f}, v{WF+8*b+4*f+r}, v25')
                for s2 in range(max(0, s-3), s + (2 if s == 26 else 1)): xdots(s2)
                if s < 26:
                    vm.wait(it + 1); e('s_barrier')
                else:
                    for f in range(2): halves_sum(e, 28+f, 246)
                    e('ds_write_b64 v243, v[28:29]')
            e(mf[0]); e('\n'.join(rd[:3])); emit(ld[0], tag)
            if s == 26: ln_stats(e, 26, 27, 246, 247, 248)
            if s == 27: xm_frag()
            e(mf[1]); e('\n'.join(rd[3:])); emit(ld[1], tag)
            if it in early and kk == 3: emit(early[it], 'wq')
            if s == 15: vm.op(rdy, 'rdy')
            if s == 26:
                e('s_waitcnt lgkmcnt(0)\ns_barrier')
                for w in range(4): e(f'ds_read_b64 {vr(QA+2*w,2)}, v242 offset:{256*w}')
        assert not lt
        stamp(e, 'p1end')
        if ty == 'v':
            e(f"""v_cndmask_b32 v246, 0, v248, vcc
v_and_b32 v26, 0xffff0000, v246
v_sub_f32 v27, v246, v26
v_cvt_pk_bf16_f32 v{RM}, v26, v27
{MF} v[88:103], {vr(RM,4)}, {vr(ON,4)}, 0""")
        e('s_waitcnt lgkmcnt(0)')
        for f in range(2):
            e(f"""v_add_f32 v{QA+f}, v{QA+f}, v{QA+2+f}
v_add_f32 v{QA+4+f}, v{QA+4+f}, v{QA+6+f}
v_add_f32 v{QA+f}, v{QA+f}, v{QA+4+f}
v_and_b32 v26, 0xffff0000, v{QA+f}
v_sub_f32 v27, v{QA+f}, v26
v_cvt_pk_bf16_f32 v{CF+4*f}, v26, v27
v_lshrrev_b32 v{CF+4*f+1}, 16, v{QA+f}""")
            a = vr(ACC+16*f, 16); w = vr(CF+4*f, 4)
            e(f'{MF} {a}, {w}, {vr(XM,4)}, {a}' if ty == 'k' else f'{MF} {a}, {vr(XM,4)}, {w}, {a}')
        vm.op(f'buffer_store_dwordx4 {vr(ON,4)}, v244, s[12:15], s43 offen sc1', 'kv')
        if knob('h1p', 1) == 0: vm.wait('rdy'); rdycheck(f'L_r{ty}', True)
        for f in range(2):
            A = ACC + 16*f
            for p in range(8):
                if ty == 'k': e(f'v_pk_mul_f32 {vr(A+2*p,2)}, {vr(A+2*p,2)}, v[248:249] op_sel_hi:[1,0]')
                else: e(f'v_pk_mul_f32 {vr(A+2*p,2)}, {vr(A+2*p,2)}, {vr(88+2*p,2)}')
                e(f'v_cvt_pk_bf16_f32 v{A+p}, v{A+2*p}, v{A+2*p+1}')
                if p % 4 == 3:
                    t = p // 4
                    if ty == 'k': vm.op(f'buffer_store_dwordx4 {vr(A+4*t,4)}, v254, s[12:15], s65 offen offset:{2048*f + 1024*t} sc1', 'kv')
                    else: vm.op(f'buffer_store_dwordx4 {vr(A+4*t,4)}, v{240+t}, s[12:15], s65 offen offset:{512*f} sc1', 'kv')
        if knob('h1p', 1) == 1: vm.wait('rdy'); rdycheck(f'L_r{ty}', True)
        if ty == 'v': e('s_branch L_q')
    def light():
        e(f'L_light:\nv_mov_b32 v255, {WS_BYTES}')
        vm.seq, vm.done = list(vm0[0]), vm0[1]
        for it in range(7):
            if it: vm.wait(it)
            for kk in range(4): e('\n'.join(reads(4*it + kk, 'l')))
            if it + 2 <= 6: emit(loads(it + 2)[3:], it + 2)
            if it == 5:
                for l in lateall: emit(l, 'wq')
            e('s_waitcnt lgkmcnt(0)')
            for kk in range(4): xdots(4*it + kk)
        ln_stats(e, 26, 27, 246, 247, 248)
        xm_frag()
        stamp(e, 'p1end')
        e('s_waitcnt vmcnt(0)')
        rdycheck('L_rl', False)
        e('s_branch L_q')
    variant('v', None); light(); variant('k', 'L_kk')
    e('L_q:')
    stamp(e, 'p1st')
    for l in late2: emit(l, 'wq2')
    vm.wait('wq'); e('s_barrier')
    def qrd(s, dst=None):
        it, kk = divmod(s, 4)
        if dst is None: dst = ACC + 4*(s & 7)
        return [f'ds_read_b64_tr_b16 {vr(dst+2*rd,2)}, v{21+kk} offset:{it*4096 + rd*256}' for rd in range(2)]
    w1n = [0]; w1o = [16]
    def w1set():
        it = w1n[0] // 4
        e(f's_add_u32 m0, s49, {it*16384}\ns_add_u32 s47, s31, {it*64*3584}')
    def w1l(n=1, auto=True):
        for _ in range(n):
            i = w1n[0] % 4
            if i == 0 and auto: w1set()
            vm.op(f'buffer_load_dwordx4 v{w1o[0]+i}, s[8:11], s47 offen offset:{1024*i} lds', 'W1'); w1n[0] += 1
    WA_, WB_ = knob('w1a', 0), knob('w1b', 0)
    queue = []
    def drainq(k):
        for _ in range(k):
            if not queue: return
            x = queue.pop(0)
            if isinstance(x, str): e(x)
            else: x()
    QS = knob('qs', 5)
    assert (3 <= WQE <= 4 and QS <= WQE) or WQE == 7
    def s1signal():
        vm.wait('kv')
        e("""s_barrier
s_cmp_lg_u32 s16, 0
s_cbranch_scc1 L_s1b
s_mov_b64 exec, 0xff
buffer_atomic_add v31, v255, s[12:15], 0 offen sc1
s_mov_b64 exec, -1
L_s1b:""")
        stamp(e, 's1sig')
    def qcs(g0, g1):
        for g in range(g0, g1): e('\n'.join(qrd(4*g, 80 + 4*(g - g0))))
        for s in range(4*g0, 4*g0 + 3): e('\n'.join(qrd(s)))
        e('s_waitcnt lgkmcnt(6)')
        e('\n'.join(qrd(4*g0 + 3)))
        for r in range(4*(g1 - g0)): e(f'v_dot2c_f32_bf16 v30, v{80+r}, v25')
    lateprk = [n for n, d in enumerate(park) if XF <= d < XF + 112]
    queue += [f'v_mul_f32 v26, {f32(QSCALE)}, v248', 'v_mov_b32 v2, v254', f'v_accvgpr_read_b32 v16, a{w1p}']
    queue += [f'v_add_u32 v{16+i}, {i*(4*3584-1024)}, v16' for i in range(1, 4)]
    queue += [f's_mov_b32 s8, s60\ns_mov_b32 s9, s61', f's_cmp_lt_u32 s20, 14\ns_cselect_b32 s10, {448*3584}, 0', 's_lshl_b32 s49, s16, 12', 's_mov_b32 s30, 0']
    queue += [f'v_accvgpr_read_b32 v{d}, a{n}' for n, d in enumerate(park) if n not in lateprk]
    queue += f"""v_xor_b32 v249, {3*2048}, v15
v_xor_b32 v250, {2*2048}, v15
v_xor_b32 v251, {1*2048}, v15
v_mov_b32 v{RM}, 0
v_mov_b32 v7, 0xdddd
s_mul_i32 s44, s22, {WFP}
s_add_u32 s44, s44, {WS_WF}""".split('\n')
    queue += [f's_cmp_lt_u32 s20, 14\ns_cselect_b32 s44, s44, {WS_BYTES}']
    queue += f"""s_mul_i32 s45, s16, {28*2048}
s_add_u32 s45, s45, s44
s_lshl_b32 s46, s16, 14
s_add_u32 s44, s44, s46
s_add_u32 s44, s44, {112*2048}
s_lshl2_add_u32 s3, s17, s16
s_lshl4_add_u32 s3, s3, s18
s_lshl_b32 s3, s3, 11
s_add_u32 s3, s3, {WS_O}
s_mov_b32 s34, 3584
s_mov_b32 s38, 896
s_mov_b32 s42, {2048*896}
s_mov_b32 s43, 0x00020000""".split('\n')
    if WQE < 7:
        qcs(0, WQE)
        for g in range(7):
            for k in range(4):
                s = 4*g + k
                e(f's_waitcnt lgkmcnt({2*min(3, 27-s, (4*WQE-1-s) if g < WQE else 3)})')
                e(f'{MF} {vr(QA,16)}, {vr(ACC+4*(s&7),4)}, {vr(XF+4*s,4)}, ' + (vr(QA, 16) if s else '0'))
                if s + 4 < 28 and g + 1 != WQE: e('\n'.join(qrd(s+4)))
                if g >= WQE and w1n[0] < WA_: w1l()
                drainq(4 if g < 6 else 6)
            if g + 1 == QS: s1signal()
            if g + 1 == WQE:
                vm.wait('wq2'); e('s_barrier')
                for f in range(2):
                    for rd in range(2): e(f'ds_read_b64_tr_b16 {vr(96+4*f+2*rd,2)}, v{252+f} offset:{rd*512}')
                e('s_waitcnt lgkmcnt(0)')
                for f in range(2): vm.op(f'buffer_store_dwordx4 {vr(96+4*f,4)}, v2, s[12:15], s64 offen offset:{1024*f} sc1', 'ust')
                qcs(WQE, 7)
                halves_sum(e, 30, 246)
                e('ds_write_b32 v243, v30')
            if g == WQE:
                e('s_barrier')
                for w in range(4): e(f'ds_read_b32 v{96+w}, v242 offset:{256*w}')
            if g == 4:
                queue += [f'v_accvgpr_read_b32 v{park[n]}, a{n}' for n in lateprk] + ['v_mov_b32 v166, v17', 'v_mov_b32 v167, v18', 'v_mov_b32 v168, v19']
                queue += ['s_and_b32 s46, s16, 1', 's_lshl_b32 s46, s46, 10', 'v_add_u32 v252, s46, v2', 'v_xor_b32 v253, 1024, v252']
            if g == 5:
                queue += f"""v_add_f32 v96, v96, v97
v_add_f32 v98, v98, v99
v_add_f32 v30, v96, v98
v_and_b32 v28, 0xffff0000, v30
v_sub_f32 v29, v30, v28
v_cvt_pk_bf16_f32 v{CF+8}, v28, v29
v_lshrrev_b32 v{CF+9}, 16, v30""".split('\n')
    else:
        for g in range(7): e('\n'.join(qrd(4*g, 76 + 4*g)))
        e('s_waitcnt lgkmcnt(6)')
        for s in range(4): e('\n'.join(qrd(s)))
        for r in range(16): e(f'v_dot2c_f32_bf16 v30, v{76+r}, v25')
        e('s_waitcnt lgkmcnt(8)')
        for r in range(16, 28): e(f'v_dot2c_f32_bf16 v30, v{76+r}, v25')
        halves_sum(e, 30, 246)
        e('ds_write_b32 v243, v30')
        for g in range(7):
            for k in range(4):
                s = 4*g + k
                e(f's_waitcnt lgkmcnt({2*min(3, 27-s)})')
                e(f'{MF} {vr(QA,16)}, {vr(ACC+4*(s&7),4)}, {vr(XF+4*s,4)}, ' + (vr(QA, 16) if s else '0'))
                if s + 4 < 28: e('\n'.join(qrd(s+4)))
                if g >= QS and w1n[0] < WA_: w1l()
                drainq(3 if g < 6 else 5)
            if g == 1:
                e('s_barrier')
                for w in range(4): e(f'ds_read_b32 v{96+w}, v242 offset:{256*w}')
            if g == 4:
                queue += [f'v_accvgpr_read_b32 v{park[n]}, a{n}' for n in lateprk] + ['v_mov_b32 v166, v17', 'v_mov_b32 v167, v18', 'v_mov_b32 v168, v19']
                queue += f"""v_add_f32 v96, v96, v97
v_add_f32 v98, v98, v99
v_add_f32 v30, v96, v98
v_and_b32 v28, 0xffff0000, v30
v_sub_f32 v29, v30, v28
v_cvt_pk_bf16_f32 v{CF+8}, v28, v29
v_lshrrev_b32 v{CF+9}, 16, v30""".split('\n')
            if g + 1 == QS: s1signal()
            if g + 1 == knob('us', 6):
                vm.wait('wq2')
                for f in range(2):
                    for rd in range(2): e(f'ds_read_b64_tr_b16 {vr(80+4*f+2*rd,2)}, v{252+f} offset:{rd*512}')
                e('s_waitcnt lgkmcnt(0)')
                for f in range(2): vm.op(f'buffer_store_dwordx4 {vr(80+4*f,4)}, v2, s[12:15], s64 offen offset:{1024*f} sc1', 'ust')
                queue += ['s_and_b32 s46, s16, 1', 's_lshl_b32 s46, s46, 10', 'v_add_u32 v252, s46, v2', 'v_xor_b32 v253, 1024, v252']
    drainq(999)
    w1l(WA_ - w1n[0]); w1o[0] = 165
    e(f"""{MF} {vr(QA,16)}, {vr(CF+8,4)}, {vr(XM,4)}, {vr(QA,16)}
s_load_dwordx2 s[32:33], s[0:1], 40
s_load_dwordx2 s[36:37], s[0:1], 56
s_load_dwordx2 s[40:41], s[0:1], 64
s_getpc_b64 s[52:53]
L_pc1:""")
    vm.op('global_load_dword v242, v170, s[52:53]', 'T')
    for s in (0, 2, 3): e(f'{MF} {vr(O+16*s,16)}, {vr(RM,4)}, {vr(RM,4)}, 0')
    w1l(WB_)
    for p in range(8):
        e(f'v_mul_f32 v{QA+2*p}, v26, v{QA+2*p}\nv_mul_f32 v{QA+2*p+1}, v26, v{QA+2*p+1}')
        e(f'v_cvt_pk_bf16_f32 v{Q+24+p}, v{QA+2*p}, v{QA+2*p+1}')
    e(f"""v_and_b32 v{Q+24}, v13, v{Q+24}
v_and_b32 v{Q+25}, v13, v{Q+25}
v_and_b32 v{Q+30}, v5, v{Q+30}
v_and_b32 v{Q+31}, v5, v{Q+31}
ds_write_b128 v15, {vr(Q+24,4)}
ds_write_b128 v15, {vr(Q+28,4)} offset:1024
{MF} {vr(O+16,16)}, {vr(RM,4)}, {vr(RM,4)}, 0""")
    stamp(e, 's1win')
    e(f"""s_cmp_lg_u32 s16, 0
s_cbranch_scc1 L_s1done
s_mov_b32 s26, {POLL_MAX}
s_add_u32 s50, s51, {HINT}
{'s_branch L_s1poll' if knob('nh', 2) & 1 else ''}
L_s1hint:
buffer_load_dword v15, v169, s[12:15], s50 offen sc1
s_sub_u32 s26, s26, 1
s_cbranch_scc1 L_s1done
s_waitcnt vmcnt(0)
v_cmp_gt_u32 vcc, 14, v15
s_cbranch_vccnz L_s1hint
L_s1poll:
buffer_load_dword v15, v169, s[12:15], s51 offen sc1
s_sub_u32 s26, s26, 1
s_cbranch_scc1 L_s1done
s_waitcnt vmcnt(0)
v_cmp_gt_u32 vcc, 14, v15
s_cbranch_vccnz L_s1poll
L_s1done:
s_waitcnt lgkmcnt(0)
s_barrier""")
    stamp(e, 's1done')
    def kl(j, t): vm.op(f'buffer_load_dwordx4 {ar(16*j+4*t,4)}, v3, s[12:15], s{KVO+j} offen offset:{1024*t} sc1', f'K{j}')
    def vl(j, t): vm.op(f'buffer_load_dwordx4 {ar(16*j+8+4*t,4)}, v{248 if t else 4}, s[12:15], s{KVO+j} offen sc1', f'V{j}')
    KV0 = knob('kv0', 2)
    for j in range(KV0): kl(j, 0); kl(j, 1); vl(j, 0); vl(j, 1)
    for s in range(3):
        for t in range(2): e(f'ds_read_b128 {vr(Q+8*s+4*t,4)}, v{249+s} offset:{1024*t}')
    steps = [(s, j) for j in range(16) for s in range(3)] + [(3, j) for j in range(16)]
    N = len(steps)
    def qk(i, t):
        s, j = steps[i]; d = vr(S + 16*(i % 3), 16)
        return f'{MF} {d}, {ar(16*j+4*t,4)}, {vr(Q+8*s+4*t,4)}, ' + ('0' if t == 0 else d)
    def pv(i, t):
        s, j = steps[i]
        return f'{SM} {vr(O+16*s,16)}, {ar(16*j+8+4*t,4)}, {vr(S+16*(i%3)+8*t,8)}, v7'
    pre, post = {}, {}
    def P(d, i, sl, f): d.setdefault((i, sl), []).append(f)
    def wo_txt(n):
        ks, f = divmod(n, 2)
        return ([f's_add_u32 s46, s44, {ks*2048}'] if n % 4 == 0 else []) + \
               [f'buffer_load_dwordx4 {vr(WOF+8*ks+4*f,4)}, v{252+f}, s[12:15], s46 offen offset:{(ks%2)*2048} sc1']
    def w2_txt(n):
        ks, f = divmod(n, 2)
        return ([f's_add_u32 s48, s45, {ks*2048}'] if n % 4 == 0 else []) + \
               [f'buffer_load_dwordx4 {ar(8*ks+4*f,4)}, v{252+f}, s[12:15], s48 offen offset:{(ks%2)*2048} sc1']
    w2n = [0]
    def w2l(n=1):
        for _ in range(n):
            if w2n[0] >= 56: return
            emit(w2_txt(w2n[0]), 'W2'); w2n[0] += 1
    def wfcheck():
        vm.wait('T0')
        e('v_cmp_gt_u32 vcc, 16, v243\ns_lshr_b32 s26, vcc_hi, 16\ns_cbranch_scc1 L_wf\nL_wfd:')
        slow.append(f"""L_wf:
s_mov_b32 s26, {POLL_MAX}
L_wfp:
buffer_load_dword v243, v241, s[12:15], 0 offen sc1
s_sub_u32 s26, s26, 1
s_cbranch_scc1 L_wfd
s_waitcnt vmcnt(0)
v_cmp_gt_u32 vcc, 16, v243
s_nop 1
s_lshr_b32 s50, vcc_hi, 16
s_cbranch_scc1 L_wfp
s_branch L_wfd""")
    vq = [((lambda f=f, j=j, t=t: f(j, t)), 1 + (f is vl and t == 1 and j < knob('kvg', 0))) for j in range(KV0, 16) for f in (kl, vl) for t in range(2)]
    vq += [(lambda: vm.op('buffer_load_dword v243, v241, s[12:15], 0 offen sc1', 'T0'), 2)]
    vq += [((lambda t=t: vm.op(f'buffer_load_dwordx4 {vr(224+4*t,4)}, v0, s[4:7], s27 offen offset:{32*t}', 'sm')), 1) for t in range(2)]
    vq += [((lambda t=t: vm.op(f'buffer_load_dwordx4 {vr(232+4*t,4)}, v160, s[36:39], 0 offen offset:{32*t}', 'sm')), 1) for t in range(2)]
    vq += [((lambda b=b: vm.op(f'buffer_load_ushort v{244+b}, v{161+b}, s[32:35], 0 offen', 'sm')), 1) for b in range(4)]
    vq += [(w1l, 1 + (n % knob('w1g', 99) == 0)) for n in range(WA_ + WB_, 28)]
    hs = 0
    for f, d in vq:
        P(post, hs // 2, 2*(hs % 2), f); hs += d
    hs += hs % 2
    P(pre, hs // 2, 0, wfcheck)
    for n in range(16):
        P(post, hs // 2, 2*(hs % 2), (lambda n=n: emit(wo_txt(n), 'Wo'))); hs += 1
    hs = max(hs, 100)
    assert hs <= 124
    W2A = min(knob('w2a', 24), 126 - hs) // 4 * 4
    for n in range(W2A):
        P(post, hs // 2, 2*(hs % 2), w2l); hs += 1
    H2P = knob('h2p', 64)
    def hint2(): vm.op('buffer_atomic_add v8, v250, s[12:15], 0 offen offset:128 sc1', 'sig')
    if H2P < 64: P(post, H2P, 3, hint2)
    P(pre, 0, 3, lambda: vm.wait('V0'))
    for j in range(1, 16):
        if j < max(6, knob('kvg', 0) + 2 & ~1): P(pre, 3*j - 1, 0, (lambda j=j: vm.wait(f'V{j}')))
        elif j % 2 == 0: P(pre, 3*j - 1, 0, (lambda j=j: vm.wait(f'V{j+1}')))
    def pwr(s, q): return f'ds_write_b128 v{9+s}, {vr(O+16*s+4*q,4)} offset:{s*4096 + q*1024}'
    def prd(s, q): return f'ds_read_b128 {vr(O+16*s+4*q,4)}, v12 offset:{s*4096 + q*1024}'
    for k in range(12): P(post, 50 + k//2, 1 + 2*(k % 2), (lambda k=k: e(pwr(k//4, k % 4))))
    P(post, 59, 1, lambda: (vm.wait('W1', 'lgkmcnt(0)'), e('s_barrier')))
    for k in range(12): P(post, 60 + k//4, k % 4, (lambda k=k: e(prd(k//4, k % 4))))
    vm.wait('ust', 'lgkmcnt(0)')
    e("""s_barrier
s_cmp_lg_u32 s16, 0
s_cbranch_scc1 L_s1c
s_mov_b64 exec, 0x1ff
buffer_atomic_add v8, v14, s[12:15], 0 offen sc1
s_mov_b64 exec, -1
L_s1c:""")
    tr_lane_part(e, 249, 1, 256, 13, 5)
    e(f"""v_bfe_u32 v13, v1, 2, 2
v_xor_b32 v13, s16, v13
v_lshl_add_u32 v249, v13, 6, v249
v_add_u32 v254, 0x10000, v249
v_and_b32 v251, 3, v1
v_mul_u32_u24 v251, 12288, v251
v_add_u32 v251, {SCR}, v251
s_cmp_eq_u32 s16, 0
s_cselect_b32 s26, 1, 0
v_cmp_gt_u32 vcc, s26, v1
s_lshl_b32 s50, s17, 12
s_add_u32 s50, s50, {WS_FL}
v_add_u32 v250, s50, v240
v_mov_b32 v13, {WS_BYTES}
v_cndmask_b32 v250, v13, v250, vcc
v_mov_b32 v8, 1
v_mov_b32 v14, 0x3f803f80
v_and_b32 v5, 31, v1
v_lshlrev_b32 v5, 2, v5
v_sub_u32 v5, v5, v2""")
    vm.wait('K0')
    stamp(e, 'a0')
    e(qk(0, 0)); e(qk(0, 1))
    for i in range(N):
        if i == 48: stamp(e, 'aB')
        if i: stamp(e, f'a{i}')
        b = S + 16*(i % 3)
        mf = [qk(i+1, 0) if i+1 < N else None, qk(i+1, 1) if i+1 < N else None, pv(i-1, 1) if i > 0 else None, pv(i, 0)]
        for sl in range(4):
            for f in pre.get((i, sl), []): f()
            if mf[sl]: e(mf[sl])
            for f in post.get((i, sl), []): f()
            for r in range(4): e(f'v_exp_f32 v{b+4*sl+r}, v{b+4*sl+r}')
    e(pv(N-1, 1))
    if H2P == 64: hint2()
    assert w1n[0] == 28
    e('L_combine:')
    stamp(e, 'comb')
    e('s_waitcnt lgkmcnt(0)')
    for r in range(16): e(f'v_add_f32 v{O+r}, v{O+r}, v{O+16+r}')
    for p in range(8): e(f'v_pk_add_f32 {vr(O+2*p,2)}, {vr(O+2*p,2)}, {vr(O+32+2*p,2)}')
    for p in [6, 0, 1, 2, 3, 4, 5, 7]:
        e(f'v_pk_add_f32 {vr(O+2*p,2)}, {vr(O+2*p,2)}, {vr(O+48+2*p,2)}')
        if p == 6: e(f'v_mov_b32 v13, v{O+12}\nv_mov_b32 v15, v{O+12}')
        if p == 1: e('v_permlane32_swap_b32 v13, v15')
        if p == 2: e('v_rcp_f32 v158, v15')
    for p in range(8):
        e(f'v_pk_mul_f32 {vr(O+2*p,2)}, {vr(O+2*p,2)}, v[158:159] op_sel_hi:[1,0]')
        e(f'v_cvt_pk_bf16_f32 v{O+p}, v{O+2*p}, v{O+2*p+1}')
        if p == 3: vm.op(f'buffer_store_dwordx4 {vr(O,4)}, v2, s[12:15], s3 offen sc1', 'Ost')
    e(f'v_and_b32 v{O+6}, v6, v{O+6}\nv_and_b32 v{O+7}, v6, v{O+7}')
    vm.op(f'buffer_store_dwordx4 {vr(O+4,4)}, v2, s[12:15], s3 offen offset:1024 sc1', 'Ost')
    def csrd(dst, s):
        return [f'ds_read_b64_tr_b16 {vr(dst+2*rd,2)}, v{254 if s >= 16 else 249} offset:{(s & 15)*4096 + rd*1024}' for rd in range(2)]
    for k in range(4): e('\n'.join(csrd(S + 4*k, k)))
    e(f"""v_cmp_nle_f32 vcc, {f32(2.0**-40)}, v15
v_mov_b32 v156, 0
v_mov_b32 v157, 0
s_mov_b64 s[52:53], vcc
v_cmp_nge_f32 vcc, {f32(2.0**40)}, v15
v_add_u32 v15, v12, v5
s_or_b64 vcc, vcc, s[52:53]
s_cselect_b32 s26, 1, 0
s_andn2_b32 s26, s26, s30
v_mov_b32 v13, s26""")
    B0 = knob('b0', 8); CS = knob('cs', 4)
    def csgroup(g):
        if g < 7:
            for k in range(4): e('\n'.join(csrd(S + 16*(g & 1) + 4*k, 4*g + k)))
        if g <= CS: w2l(B0*g//CS - B0*(g-1)//CS)
        e(f's_waitcnt lgkmcnt({8 if g < 7 else 0})')
        for r in range(16): e(f'v_dot2c_f32_bf16 v{156 + (r & 1)}, v{S + 16*((g-1) & 1) + r}, v14')
    for g in range(1, CS + 1): csgroup(g)
    e('ds_write_b32 v12, v13')
    vm.wait('Ost', 'lgkmcnt(0)')
    e("""s_barrier
ds_read_b32 v13, v251
s_waitcnt lgkmcnt(0)
v_cmp_ne_u32 vcc, 0, v13
s_cbranch_vccnz L_fallback""")
    vm.op('buffer_atomic_add v8, v250, s[12:15], 0 offen sc1', 'sig2')
    stamp(e, 's2sig')
    e('s_cmp_ge_u32 s20, 14\ns_cbranch_scc1 L_end')
    B1 = min(knob('b1', 14), 56 - w2n[0])
    for g in range(CS + 1, 8):
        w2l(2); B1 -= 2
        csgroup(g)
    e('v_add_f32 v156, v156, v157')
    halves_sum(e, 156, 157)
    e("""ds_write_b32 v15, v156 offset:8192
v_add_u32 v157, v11, v5
v_add_u32 v158, v10, v5
v_add_u32 v159, v9, v5""")
    ACC3, AF = 80, 16
    WA = 240
    win = ['v_readlane_b32 s31, v243, 20']
    for r in range(8): win += [f'v_lshlrev_b32 v{ACC3+2*r}, 16, v{224+r}', f'v_and_b32 v{ACC3+2*r+1}, 0xffff0000, v{224+r}']
    win2 = ['s_waitcnt lgkmcnt(0)']
    for b in range(4):
        win2 += f"""v_and_b32 v13, 0xffff0000, v{156+b}
v_sub_f32 v15, v{156+b}, v13
v_cvt_pk_bf16_f32 v15, v13, v15
v_lshrrev_b32 v13, 16, v13
v_lshl_or_b32 v13, v{244+b}, 16, v13
v_accvgpr_write_b32 a{224+4*b}, v15
v_accvgpr_write_b32 a{225+4*b}, v13
v_accvgpr_write_b32 a{226+4*b}, v{244+b}
v_accvgpr_write_b32 a{227+4*b}, 0""".split('\n')
    for r in range(8): win2 += [f'v_lshlrev_b32 v{144+2*r}, 16, v{232+r}', f'v_and_b32 v{145+2*r}, 0xffff0000, v{232+r}']
    for b in range(4): win2 += [f'v_xor_b32 v{WA+b}, {64*b}, v249', f'v_xor_b32 v{WA+4+b}, {64*b}, v254']
    win += f"""s_mul_i32 s56, s23, 32768
s_lshl_b32 s55, s16, 13
s_add_u32 s55, s55, {WS_O}
s_add_u32 s56, s56, s55
s_xor_b32 s57, s56, 32768
s_add_u32 s58, s56, 4096
s_add_u32 s59, s57, 4096
s_mul_i32 s60, s23, 28672
s_lshl_b32 s55, s24, 11
s_add_u32 s60, s60, s55
s_add_u32 s60, s60, {WS_H}
s_lshl_b32 s61, s23, 12
s_lshl_b32 s55, s22, 9
s_add_u32 s61, s61, s55
s_and_b32 s55, s16, 1
s_lshl3_add_u32 s61, s55, s61
s_add_u32 s61, s61, {WS_S}
v_and_b32 v3, 0x1f0, v2
s_and_b32 s55, s23, 3
s_lshl_b32 s55, s55, 5
s_add_u32 s55, s55, s24
s_lshl_b32 s55, s55, 2
s_add_u32 s55, s55, {16*128}
v_mov_b32 v4, s55
v_min_u32 v5, 13, v1
v_lshlrev_b32 v5, 2, v5
s_lshl_b32 s62, s16, 7
s_add_u32 s62, s62, s25
s_add_u32 s62, s62, {16*128}
s_lshl2_add_u32 s55, s19, s16
s_mul_i32 s63, s55, 28672
s_add_u32 s63, s63, {WS_H}
s_lshl_b32 s64, s55, 12
s_add_u32 s64, s64, {WS_S}
s_lshl_b32 s55, s16, 5
s_add_u32 s55, s55, s20
s_lshl_b32 s55, s55, 2
s_add_u32 s55, s55, {20*128}
v_mov_b32 v14, s55
s_mul_i32 s55, s16, 7
s_lshr_b32 s55, s55, 1
v_and_b32 v7, 3, v1
v_add_u32 v7, s55, v7
v_bfe_u32 v13, v1, 2, 1
v_lshl_add_u32 v7, v13, 5, v7
v_lshlrev_b32 v7, 2, v7
s_lshl_b32 s65, s21, 8
s_add_u32 s65, s65, s25
s_add_u32 s65, s65, {20*128}
s_mul_i32 s66, s23, 114688
s_xor_b32 s67, s23, 1
s_mul_i32 s67, s67, 114688
s_mul_i32 s55, s16, {28*1024}
s_add_u32 s55, s55, {WS_H1}
s_add_u32 s66, s66, s55
s_add_u32 s67, s67, s55
v_lshrrev_b32 v250, 2, v2
s_lshl_b32 s55, s16, 8
v_add_u32 v251, s55, v250
s_and_b32 s55, s23, 3
s_lshl_b32 s55, s55, 8
v_add_u32 v250, s55, v250""".split('\n')
    for b in range(4): win += [f's_xor_b32 s{68+b}, s16, {b}', f's_lshl_b32 s{68+b}, s{68+b}, 11', f's_add_u32 s{68+b}, s{68+b}, s28']
    B1 = max(0, min(B1, 56 - w2n[0]))
    WS_ = knob('wsp', 55)
    for n, l in enumerate(win[:WS_]):
        if B1 and n*B1 // WS_ != (n-1)*B1 // WS_: w2l()
        e(l)
    e('s_cmp_eq_u32 s31, s29\ns_cselect_b32 s31, 1, 0\nv_mov_b32 v13, 0')
    if knob('nolocal', 0): e('s_mov_b32 s31, 0')
    stamp(e, 's2win')
    e(f"""s_cmp_lg_u32 s16, 0
s_cbranch_scc1 L_s2done
s_mov_b32 s26, {POLL_MAX}
{'s_branch L_s2poll' if knob('nh', 2) & 2 else ''}
L_s2hint:
buffer_load_dword v15, v13, s[12:15], s25 offen offset:128 sc1
s_sub_u32 s26, s26, 1
s_cbranch_scc1 L_s2done
s_waitcnt vmcnt(0)
v_cmp_gt_u32 vcc, 16, v15
s_cbranch_vccnz L_s2hint
L_s2poll:
buffer_load_dword v15, v13, s[12:15], s25 offen sc1
s_sub_u32 s26, s26, 1
s_cbranch_scc1 L_s2done
s_waitcnt vmcnt(0)
v_cmp_gt_u32 vcc, 16, v15
s_cbranch_vccnz L_s2poll
L_s2done:
s_waitcnt lgkmcnt(0)
s_barrier""")
    stamp(e, 's2done')
    def ol(a, ks): vm.op(f'buffer_load_dwordx4 {vr(AF+32*a+4*ks,4)}, v2, s[12:15], s{56 + a + (2 if ks >= 4 else 0)} offen offset:{(ks&3)*1024} sc1', f'O{a}{ks}')
    for ks in range(8): ol(1, ks)
    e('ds_read_b32 v157, v157 offset:8192\nds_read_b32 v158, v158 offset:8192\nds_read_b32 v159, v159 offset:8192')
    for ks in range(4): ol(0, ks)
    e('\n'.join(win2 + win[WS_:]))
    for ks in range(4, 8): ol(0, ks)
    def rwr(s, A, q): return f'ds_write_b128 v{12-s}, {vr(A+16*s+4*q,4)} offset:{(3-s)*4096 + q*1024}'
    def rrd(s, A, q): return f'ds_read_b128 {vr(A+16*s+4*q,4)}, v12 offset:{(3-s)*4096 + q*1024}'
    def m3(a, f, ks):
        acc = vr(ACC3 + 16*(2*a+f), 16)
        e(f'{MF} {acc}, {vr(WOF+8*ks+4*f,4)}, {vr(AF+32*a+4*ks,4)}, ' + (acc if (ks or (a, f) == (0, 0)) else '0'))
    B2 = knob('b2', 8)
    for ks in range(8):
        vm.wait(f'O1{ks}'); m3(1, 1, ks); m3(1, 0, ks)
        if ks >= 8 - B2: w2l()
    LAG = 2
    for ks in range(8):
        vm.wait(f'O0{ks}'); m3(0, 1, ks)
        if 1 <= ks < 5: e(rwr(3 - (ks-1)//2, ACC3, 2*((ks-1) % 2)))
        if ks >= LAG: m3(0, 0, ks - LAG)
        if 1 <= ks < 5: e(rwr(3 - (ks-1)//2, ACC3, 2*((ks-1) % 2) + 1))
        if ks == knob('p3b', 5):
            e('s_waitcnt lgkmcnt(0)\ns_barrier')
            for q in range(4): e(rrd(3, ACC3, q) + '\n' + rrd(2, ACC3, q))
    stamp(e, 'p3mf')
    e('s_waitcnt lgkmcnt(0)')
    for ks in range(8 - LAG, 8):
        m3(0, 0, ks)
        for r in range(4*(ks - 8 + LAG), 4*(ks - 7 + LAG)): e(f'v_add_f32 v{ACC3+32+r}, v{ACC3+32+r}, v{ACC3+48+r}')
    for q in range(4):
        e(rwr(1, ACC3, q))
        for r in range(8 + 2*q, 10 + 2*q): e(f'v_add_f32 v{ACC3+32+r}, v{ACC3+32+r}, v{ACC3+48+r}')
    for p in range(8): e(f'v_pk_add_f32 {vr(ACC3+2*p,2)}, {vr(ACC3+2*p,2)}, {vr(ACC3+32+2*p,2)}')
    e('s_waitcnt lgkmcnt(0)\ns_barrier')
    for q in range(4): e(rrd(1, ACC3, q))
    def dual(lines, tag, lab):
        e(f's_cmp_lg_u32 s31, 0\ns_cbranch_scc0 {lab}_s')
        for l in lines: vm.op(l, tag)
        e(f'{lab}_d:')
        slow.append(f'{lab}_s:\ns_nop 1\n' + '\n'.join(l + ' sc1' for l in lines) + f'\ns_nop 1\ns_branch {lab}_d')
    for q in range(4):
        e(f's_waitcnt lgkmcnt({3-q})')
        for p in (2*q, 2*q+1):
            e(f'v_pk_add_f32 {vr(ACC3+2*p,2)}, {vr(ACC3+2*p,2)}, {vr(ACC3+16+2*p,2)}')
            e(f'v_cvt_pk_bf16_f32 v{16+p}, v{ACC3+2*p}, v{ACC3+2*p+1}')
    dual([f'buffer_store_dwordx4 {vr(16+4*t,4)}, v2, s[12:15], s60 offen offset:{1024*t}' for t in range(2)], 'hst', 'L_h')
    e(f'v_pk_mul_f32 v[26:27], {vr(ACC3,2)}, {vr(ACC3,2)}\nv_pk_add_f32 v[24:25], {vr(ACC3,2)}, {vr(ACC3+2,2)}\nv_pk_fma_f32 v[26:27], {vr(ACC3+2,2)}, {vr(ACC3+2,2)}, v[26:27]')
    for p in range(2, 8):
        e(f'v_pk_add_f32 v[24:25], v[24:25], {vr(ACC3+2*p,2)}\nv_pk_fma_f32 v[26:27], {vr(ACC3+2*p,2)}, {vr(ACC3+2*p,2)}, v[26:27]')
    e("""v_add_f32 v24, v24, v25
v_add_f32 v25, v26, v27
v_mov_b32 v26, v24
v_mov_b32 v27, v25
v_permlane32_swap_b32 v24, v26
v_permlane32_swap_b32 v25, v27
v_pk_add_f32 v[24:25], v[24:25], v[26:27]""")
    dual(['buffer_store_dwordx2 v[24:25], v3, s[12:15], s61 offen'], 'hst', 'L_s')
    stamp(e, 'p3st')
    w2l(knob('b3', 0))
    for p in range(8): e(f'v_pk_add_f32 {vr(224+2*p,2)}, {vr(144+2*p,2)}, {vr(ACC3+2*p,2)}')
    HF, ACC4, WF, STT = 16, 128, 192, 208
    def w1rd(dst, s, b, k='v'):
        base = WA + b + (4 if s >= 16 else 0); off = (s & 15)*4096
        return [f'ds_read_b64_tr_b16 {vr(dst+2*rd,2,k)}, v{base} offset:{off + rd*1024}' for rd in range(2)]
    T2 = knob('t2', 2)
    mlist = []; n2 = 0
    for s in range(28):
        mlist += [(s, 0), (s, 1)]
        if T2 and s % T2 == T2 - 1: mlist.append((n2, 2)); n2 += 1
    M1 = len(mlist)
    mlist += [(s, 2) for s in range(n2, 28)]
    M2 = len(mlist)
    mlist += [(s, 3) for s in range(28)]
    M = len(mlist)
    def wreg(m): return ('v', WF + 4*(m & 7)) if (m & 7) < 4 else ('a', 240 + 4*((m & 7) - 4))
    def rds(m):
        s, b = mlist[m]; k, r = wreg(m)
        return w1rd(r, s, b, k)
    LD = 6
    for m in range(LD): e('\n'.join(rds(m)))
    vm.wait('hst')
    dual(['buffer_store_dword v8, v4, s[12:15], s25 offen'], 'f3', 'L_f3')
    stamp(e, 'p3end')
    def poll(lab, addr, so):
        e(f"""s_mov_b32 s26, {POLL_MAX}
{lab}:
buffer_load_dword v13, {addr}, s[12:15], {so} offen sc1
s_sub_u32 s26, s26, 1
s_cbranch_scc1 {lab}_x
s_waitcnt vmcnt(0)
v_cmp_ne_u32 vcc, 1, v13
s_cbranch_vccnz {lab}
{lab}_x:""")
    poll('L_p3', 'v5', 's62')
    stamp(e, 's3done')
    def hl(s):
        if s and s % 4 == 0: e('s_add_u32 s63, s63, 4096')
        vm.op(f'buffer_load_dwordx4 {vr(HF+4*s,4)}, v2, s[12:15], s63 offen offset:{(s&3)*1024} sc1', f'h{s}')
    HP = knob('hp', 8)
    for s in range(HP): hl(s)
    stl = [(lambda p=p: vm.op(f'buffer_load_dwordx4 {vr(STT+4*p,4)}, v2, s[12:15], s64 offen offset:{1024*p} sc1', 'st')) for p in range(4)]
    vq = [(lambda s=s: hl(s)) for s in range(HP, 28)]
    vq = vq[:3] + stl[:1] + vq[3:6] + stl[1:2] + vq[6:9] + stl[2:3] + vq[9:12] + stl[3:] + vq[12:]
    st = [lambda: vm.wait('st'),
          f'v_and_b32 v{STT+12}, v6, v{STT+12}', f'v_and_b32 v{STT+13}, v6, v{STT+13}', f'v_and_b32 v{STT+14}, v6, v{STT+14}', f'v_and_b32 v{STT+15}, v6, v{STT+15}']
    for k in range(1, 8): st += [f'v_add_f32 v{STT}, v{STT}, v{STT+2*k}', f'v_add_f32 v{STT+1}, v{STT+1}, v{STT+2*k+1}']
    tmp = Asm(); ln_stats(tmp, STT, STT+1, STT+2, STT+3, STT+4, STT+5)
    st += [i.text for i in tmp.ins]
    XB = STT + 8
    st += f"""v_sub_f32 v{STT+3}, 0, v{STT+3}
v_and_b32 v{STT+3}, v6, v{STT+3}
v_and_b32 v{STT+5}, v6, v{STT+5}
v_and_b32 v{STT+6}, 0xffff0000, v{STT+3}
v_sub_f32 v{STT+7}, v{STT+3}, v{STT+6}
v_cvt_pk_bf16_f32 v{XB}, v{STT+6}, v{STT+6}
v_and_b32 v{STT+6}, 0xffff0000, v{STT+5}
v_cvt_pk_bf16_f32 v{XB+1}, v{STT+7}, v{STT+6}
v_sub_f32 v{STT+7}, v{STT+5}, v{STT+6}
v_cvt_pk_bf16_f32 v{XB+2}, v{STT+7}, 0
v_mov_b32 v{XB+3}, 0
v_mul_f32 v248, v{STT+4}, v{STT+4}""".split('\n')
    def epi(b):
        A = ACC4 + 16*b; l = []
        for p in range(8):
            l += [f'v_mul_f32 v{A+2*p}, v{A+2*p}, abs(v{A+2*p})', f'v_mul_f32 v{A+2*p+1}, v{A+2*p+1}, abs(v{A+2*p+1})',
                  f'v_cvt_pk_bf16_f32 v{A+p}, v{A+2*p}, v{A+2*p+1}', f'v_pk_max_i16 v{A+p}, v{A+p}, 0']
            if p % 4 == 3:
                l.append(lambda t=p//4: vm.op(f'buffer_store_dwordx4 {vr(A+4*t,4)}, v2, s[12:15], s{68+b} offen offset:{1024*t} sc1', 'h1st'))
        return l
    def xk(b): e(f'{MF} {vr(ACC4+16*b,16)}, {ar(224+4*b,4)}, {vr(XB,4)}, {vr(ACC4+16*b,16)}')
    for m, (s, b) in enumerate(mlist):
        if m == M1 - 26: queue += st
        if m == M1: stamp(e, 'p4a')
        if m == M1 + 3: queue += epi(0) + epi(1)
        if m == M2 + 3: queue += epi(2)
        lg = f'lgkmcnt({2*max(0, min(LD-2, M-2-m))})' if m % 2 == 0 else ''
        vm.wait(f'h{s}', lg)
        acc = vr(ACC4 + 16*b, 16); k, r = wreg(m)
        first = (s == 0 and b < 3)
        if (s, b) == (0, 3): e(f'{MF} {acc}, {ar(236,4)}, {vr(XB,4)}, 0')
        e(f'{MF} {acc}, {vr(r,4,k)}, {vr(HF+4*s,4)}, ' + ('0' if first else acc))
        if m + LD < M: e('\n'.join(rds(m + LD)))
        if m % 2 == 1 and vq: vq.pop(0)(); drainq(1)
        elif m % 2 == 1 and w2n[0] < 56: w2l()
        else: drainq(3 if m % 2 else 2)
        if m == M1 - 1: drainq(99); xk(0); xk(1); xk(2)
    stamp(e, 'p4mf')
    drainq(999)
    w2l(56)
    queue += epi(3); drainq(999)
    e('s_barrier\nds_write_b32 v251, v248')
    vm.wait('h1st')
    dual(['buffer_store_dword v8, v14, s[12:15], s25 offen'], 'f4', 'L_f4')
    stamp(e, 'p4end')
    poll('L_p4', 'v7', 's65')
    stamp(e, 's4done')
    GF, ACC5, RING = 16, 144, 32
    GP = knob('gp', 12)
    s5 = [(a, ks) for a in (1, 0) for ks in range(28)]
    def gl(n):
        a, ks = s5[n]
        if ks and ks % 4 == 0: e(f's_add_u32 s{66+a}, s{66+a}, 4096')
        vm.op(f'buffer_load_dwordx4 {vr(GF+4*(n%RING),4)}, v2, s[12:15], s{66+a} offen offset:{(ks&3)*1024} sc1', f'g{n}')
    def m5(a, f, ks):
        acc = vr(ACC5 + 16*(2*a+f), 16); n = ks + 28*(1-a)
        e(f'{MF} {acc}, {ar(8*ks+4*f,4)}, {vr(GF+4*(n%RING),4)}, ' + (acc if ks else '0'))
    for n in range(GP): gl(n)
    for n, (a, ks) in enumerate(s5):
        if n == 28: stamp(e, 'p5a')
        vm.wait(f'g{n}')
        m5(a, 1, ks)
        if n + GP < 56: gl(n + GP)
        if a == 0 and 21 <= ks < 25:
            for r in range(4*(ks-21), 4*(ks-21)+2): e(f'v_add_f32 v{ACC5+32+r}, v{ACC5+32+r}, v{ACC5+48+r}\nv_fmac_f32 v{224+r}, v248, v{ACC5+32+r}')
        if a == 1: m5(1, 0, ks)
        elif ks >= LAG: m5(0, 0, ks - LAG)
        if a == 0:
            if 3 <= ks < 11: e(rwr(2 + (ks-3)//4, ACC5, (ks-3) % 4))
            if ks == 14: e('s_waitcnt lgkmcnt(0)\ns_barrier\nds_read_b32 v248, v250')
            if 15 <= ks < 19: e(rrd(2, ACC5, ks-15) + '\n' + rrd(3, ACC5, ks-15))
            if ks == 20: e('s_waitcnt lgkmcnt(0)')
            if 21 <= ks < 25:
                for r in range(4*(ks-21)+2, 4*(ks-21)+4): e(f'v_add_f32 v{ACC5+32+r}, v{ACC5+32+r}, v{ACC5+48+r}\nv_fmac_f32 v{224+r}, v248, v{ACC5+32+r}')
    stamp(e, 'p5mf')
    for ks in range(28 - LAG, 28): m5(0, 0, ks)
    for q in range(4): e(rwr(1, ACC5, q))
    for p in range(8): e(f'v_pk_fma_f32 {vr(224+2*p,2)}, {vr(ACC5+2*p,2)}, v[248:249], {vr(224+2*p,2)} op_sel_hi:[1,0,1]')
    e('s_waitcnt lgkmcnt(0)\ns_barrier')
    for q in range(4): e(rrd(1, ACC5, q))
    OF = ['', ' sc1', ' nt', ' sc0 sc1'][knob('of', 0)]
    for t in range(2):
        e(f's_waitcnt lgkmcnt({2-2*t})')
        for p in range(4*t, 4*t+4):
            e(f'v_pk_fma_f32 {vr(224+2*p,2)}, {vr(ACC5+16+2*p,2)}, v[248:249], {vr(224+2*p,2)} op_sel_hi:[1,0,1]')
            e(f'v_cvt_pk_bf16_f32 v{16+p}, v{224+2*p}, v{225+2*p}')
        e(f'buffer_store_dwordx4 {vr(16+4*t,4)}, v0, s[40:43], s27 offen offset:{32*t}' + OF)
    stamp(e, 'p5st')
    stamp_out(e)
    e('s_endpgm')
    for x in slow: e(x)
    e('L_fallback:\ns_mov_b32 s30, 1\ns_waitcnt vmcnt(0) lgkmcnt(0)\ns_barrier')
    for j in range(16):
        kl(j, 0); kl(j, 1); vl(j, 0); vl(j, 1)
        if j == 7: e('s_waitcnt vmcnt(0)')
    e('s_waitcnt vmcnt(0)')
    MXB = SCR
    d = vr(S, 16)
    for s in range(4):
        e(f'v_mov_b32 v{128+s}, 0xff800000')
        for j in range(16):
            e(f'{MF} {d}, {ar(16*j,4)}, {vr(Q+8*s,4)}, 0\n{MF} {d}, {ar(16*j+4,4)}, {vr(Q+8*s+4,4)}, {d}')
            for p in range(8): e(f'v_max3_f32 v{128+s}, v{S+2*p}, v{S+2*p+1}, v{128+s}')
        e(f"""v_mov_b32 v13, v{128+s}
v_permlane32_swap_b32 v{128+s}, v13
v_max_f32 v{128+s}, v{128+s}, v13
s_xor_b32 s50, s16, {3-s}
s_lshl_b32 s50, s50, 9
s_add_u32 s50, s50, {MXB}
v_and_b32 v13, 31, v1
v_lshlrev_b32 v13, 4, v13
v_add_u32 v{132+s}, s50, v13
s_lshl_b32 s50, s16, 2
v_add_u32 v13, s50, v{132+s}
ds_write_b32 v13, v{128+s}""")
    e('s_waitcnt lgkmcnt(0)\ns_barrier')
    for s in range(4): e(f'ds_read_b128 {vr(S+4*s,4)}, v{132+s}')
    e('s_waitcnt lgkmcnt(0)\ns_barrier')
    for s in range(4):
        e(f'v_max3_f32 v{128+s}, v{S+4*s}, v{S+1+4*s}, v{S+2+4*s}\nv_max_f32 v{128+s}, v{128+s}, v{S+3+4*s}')
    for s in range(4):
        for r in range(16): e(f'v_sub_f32 v{NM+r}, 0, v{128+s}\nv_mov_b32 v{O+16*s+r}, 0')
        for j in range(16):
            e(f'{MF} {d}, {ar(16*j,4)}, {vr(Q+8*s,4)}, {vr(NM,16)}\n{MF} {d}, {ar(16*j+4,4)}, {vr(Q+8*s+4,4)}, {d}')
            for r in range(16): e(f'v_exp_f32 v{S+r}, v{S+r}')
            for t in range(2): e(f'{SM} {vr(O+16*s,16)}, {ar(16*j+8+4*t,4)}, {vr(S+8*t,8)}, v7')
            e('s_nop 7')
        e('s_nop 7')
    for k in range(12): e(pwr(k//4, k % 4))
    for n in range(W2A): e('\n'.join(w2_txt(n)))
    e('s_waitcnt vmcnt(0) lgkmcnt(0)\ns_barrier')
    for k in range(12): e(prd(k//4, k % 4))
    e('s_branch L_combine')
    e('L_end:')

def build1(e, path):
    head = open(f'cdna_kernels/{NAME}.s.ref').read().split('\n')
    name = NAME + '_kernel'
    out = head[:12] + (['; stamps: ' + ' '.join(ST_NAMES)] if STAMP else []) + ['; @launch grid=(256,1,1) block=(256,1,1) lds=163840', '.amdgcn_target "amdgcn-amd-amdhsa--gfx950"\n.text']
    e.fix('-v' in sys.argv)
    out.append(f'.globl {name}\n.p2align 8\n.type {name},@function\n{name}:')
    out.append(e.text() + '    s_endpgm')
    out.append(f""".section .rodata,"a"
.p2align 6
.amdhsa_kernel {name}
  .amdhsa_next_free_vgpr 512
  .amdhsa_next_free_sgpr 102
  .amdhsa_accum_offset 256
  .amdhsa_group_segment_fixed_size 0
  .amdhsa_kernarg_size 88
  .amdhsa_user_sgpr_count 2
  .amdhsa_user_sgpr_kernarg_segment_ptr 1
  .amdhsa_system_sgpr_workgroup_id_x 1
.end_amdhsa_kernel""")
    open(path, 'w').write('\n'.join(out) + '\n')

if __name__ == '__main__':
    e = Asm(); kernel(e)
    outs = [a for a in sys.argv[1:] if a.endswith('.s')]
    build1(e, outs[0] if outs else 'v7.s')
```

```python
import sys, math, struct
from asmlib import *
from gen1 import NAME, MF, SM, f32, QSCALE, swap23, halves_sum, tr_lane_part, ln_stats

KP, VP, ONE = 0, 28672, 57344
TTP = 57600
WS_O, WS_H, WS_S, WS_H1, WS_WF, WS_FL, WS_ST = 0x600000, 0x800000, 0x9E0000, 0xA40000, 0x1200000, 0x1400000, 0x1500000
WS_F1 = WS_FL + 0x10000
WS_F2 = WS_FL + 0x14000
HINT = 0x8000
WS_BYTES = 0x1600000
WFP = 144*2048
POLL_MAX = 1 << 18
STAMP = '--stamp' in sys.argv
def knob(name, d):
    for a in sys.argv:
        if a.startswith(name + '='): return int(a.split('=')[1])
    return d
STSET = knob('st', 0)
ST_NAMES = ['start p1go p1st s1sig s1done a0 comb end', 'comb s2sig s2done p3end s3done p4end s4done end',
            'p1go p1end p1st s1sig s1win s1done a0 aB', 's2sig s2win s2done p3mf p3st p3end s3done p4a',
            's3done p4a p4mf p4end s4done p5a p5mf p5st', 'a0 a6 a16 a28 a38 aB a58 comb'][STSET].split()

def srd2(e, d, nbytes):
    e(f's_mov_b32 s{d+2}, {nbytes}\ns_mov_b32 s{d+3}, 0x00020000')
def stamp(e, name):
    if STAMP and name in ST_NAMES:
        i = ST_NAMES.index(name)
        e(('s_memtime' if '--cyc' in sys.argv else 's_memrealtime') + f' s[{84+2*i}:{85+2*i}]')
def stamp_out(e):
    if not STAMP: return
    if knob('dwg', -1) >= 0:
        stamp(e, 'end')
        k = knob('dst', 0)
        e(f'''s_cmp_lg_u32 s2, {knob('dwg', 0)}
s_cbranch_scc1 L_dgx
s_waitcnt lgkmcnt(0)
s_mov_b32 s10, 100000
L_dgl:
s_sub_u32 s10, s10, 1
s_cbranch_scc1 L_dgx
s_memrealtime s[8:9]
s_waitcnt lgkmcnt(0)
s_sub_u32 s8, s8, s{84+2*k}
s_cmp_lt_u32 s8, 5000
s_cbranch_scc1 L_dgl
L_dgx:''')
        return
    e('s_waitcnt vmcnt(0)')
    stamp(e, 'end')
    e('s_waitcnt lgkmcnt(0)')
    e(f's_lshl_b32 s3, s2, 2\ns_add_u32 s3, s3, s16\ns_lshl_b32 s3, s3, 6\ns_add_u32 s3, s3, {WS_ST}\nv_mov_b32 v1, 0')
    for i in range(8):
        e(f'v_mov_b32 v0, s{84+2*i}\nbuffer_store_dword v0, v1, s[12:15], s3 offen offset:{4*i}')

def kernel(e):
    vm = VM(e); slow = []
    XR, WQ, CSB, QX, UB = 57344, 114688, 143360, 147456, 155648
    SCR = 114688
    PF = 2; MAP = knob('map', 8)
    Q, O, S, WOF, NM = 16, 48, 112, 160, 144
    KVO = 68
    stamp(e, 'start')
    e("""s_cmp_ge_u32 s2, 256
s_cbranch_scc1 L_end
s_load_dwordx2 s[4:5], s[0:1], 0
s_load_dwordx2 s[8:9], s[0:1], 8
s_load_dwordx2 s[12:13], s[0:1], 80
s_load_dwordx2 s[40:41], s[0:1], 16
s_load_dwordx2 s[42:43], s[0:1], 48
s_load_dwordx2 s[60:61], s[0:1], 32
s_load_dwordx2 s[100:101], s[0:1], 72
s_getpc_b64 s[20:21]
L_pc0:
s_lshr_b32 s26, s2, 3
s_lshl_b32 s22, s26, 11
v_lshrrev_b32 v10, 4, v0
v_lshl_add_u32 v10, v10, 7, s22
v_min_u32 v10, L_fallback-L_pc0, v10""")
    vm.op('global_load_dword v31, v10, s[20:21]', 'T')
    e("""v_lshrrev_b32 v2, 6, v0
v_and_b32 v1, 63, v0
v_readfirstlane_b32 s16, v2
s_and_b32 s51, s2, 7""")
    if MAP == 4:
        e("""s_lshr_b32 s17, s51, 1
s_lshr_b32 s59, s26, 3
s_lshl2_add_u32 s17, s17, s59  ; qb
s_and_b32 s18, s51, 1
s_and_b32 s62, s26, 7
s_lshl3_add_u32 s18, s18, s62  ; head
s_lshl1_add_u32 s59, s59, s62""")
    elif MAP == 2:
        e("""s_lshr_b32 s59, s26, 4
s_lshl1_add_u32 s17, s51, s59  ; qb
s_and_b32 s18, s26, 15         ; head
s_mul_i32 s59, s59, 3
s_add_u32 s59, s59, s18""")
    elif MAP == 8:
        e("""s_lshr_b32 s17, s51, 2
s_lshr_b32 s59, s26, 2
s_lshl3_add_u32 s17, s17, s59  ; qb
s_and_b32 s18, s51, 3
s_and_b32 s62, s26, 3
s_lshl2_add_u32 s18, s18, s62  ; head
s_lshl1_add_u32 s59, s62, s59""")
    ROT = knob('rot', 7)
    if ROT == 7: e('s_mul_i32 s62, s59, 37\ns_lshr_b32 s62, s62, 8\ns_mul_i32 s62, s62, 7\ns_sub_u32 s59, s59, s62')
    elif ROT == 1: e('s_mov_b32 s59, 0')
    elif ROT == 2: e('s_add_u32 s59, s17, s18\ns_and_b32 s59, s59, 1\ns_lshl_b32 s59, s59, 2')
    elif ROT == 21: e('s_add_u32 s59, s17, s18\ns_and_b32 s59, s59, 1')
    elif ROT == 22: e('s_add_u32 s59, s17, s18\ns_and_b32 s59, s59, 1\ns_lshl_b32 s59, s59, 1')
    elif ROT == 4: e('s_add_u32 s59, s17, s18\ns_and_b32 s59, s59, 3\ns_lshl_b32 s59, s59, 1')
    elif ROT == 8: e('s_min_u32 s59, s51, 6')
    e(f"""s_lshl2_add_u32 s63, s17, s16
s_mul_i32 s64, s63, {32*896}
s_mul_i32 s65, s16, {16*2688}
s_lshl_b32 s62, s18, 7
s_add_u32 s62, s62, s65
s_add_u32 s62, s62, 896
s_mul_i32 s66, s16, 12288
s_add_u32 s66, s66, {XR}
s_lshl_b32 s67, s16, 11
v_lshrrev_b32 v240, 3, v1
v_lshrrev_b32 v241, 4, v1
v_and_b32 v242, 7, v1
v_xor_b32 v243, v241, v242
v_mul_u32_u24 v244, 896, v240
v_lshl_add_u32 v2, v243, 4, v244
v_add_u32 v2, s64, v2
v_xor_b32 v3, 64, v2
v_add_u32 v3, 6144, v3
v_add_u32 v4, 12288, v2
v_add_u32 v5, 12288, v3
v_and_b32 v243, 1, v241
v_lshlrev_b32 v243, 2, v243
v_xor_b32 v245, v243, v242
v_mul_u32_u24 v243, 2688, v240
v_lshl_add_u32 v6, v245, 4, v243
v_add_u32 v6, s62, v6
v_add_u32 v7, {8*2688-1024}, v6
s_cmp_lt_u32 s18, 14
s_cselect_b32 s10, {448*2688}, 0
s_mov_b32 s11, 0x00020000""")
    def offs(it):
        e(f's_lshl_b32 s{44+it}, s59, 7\ns_mul_i32 s{52+it}, s59, {64*2688}')
        if it < 6: e('s_add_u32 s59, s59, 1\ns_cmp_eq_u32 s59, 7\ns_cselect_b32 s59, 0, s59')
    offs(0)
    srd2(e, 4, 2048*896); srd2(e, 12, WS_BYTES)
    e(f"""s_lshl1_add_u32 s30, s17, s18
s_sub_u32 s30, s30, 14
s_lshl_b32 s62, s30, 12
s_add_u32 s62, s62, {WS_FL}
s_cmp_lt_u32 s18, 14
s_cselect_b32 s62, {WS_BYTES}, s62
v_lshlrev_b32 v246, 4, v0""")
    for r in range(216, 220): e(f'v_mov_b32 v{r}, 0')
    e('s_waitcnt lgkmcnt(0)')
    def loads(it):
        l = [f's_add_u32 m0, s67, {it*8192}']
        l += [f'buffer_load_dwordx4 v{6+j}, s[8:11], s{52+it} offen offset:{1024*j} lds' for j in range(2)]
        l += [f's_add_u32 m0, s66, {(it%3)*4096}']
        l += [f'buffer_load_dwordx4 v{2+i}, s[4:7], s{44+it} offen offset:{1024*i} lds' for i in range(4)]
        return l
    def emit(l, tag):
        for x in l:
            if x.startswith(('buffer', 'global')): vm.op(x, tag)
            else: e(x)
    e('s_cbranch_scc1 L_nz')
    vm.op('buffer_store_dwordx4 v[216:219], v246, s[12:15], s62 offen sc1', 'z')
    e('L_nz:')
    emit(loads(0), 0)
    e('s_mov_b32 s36, s8\ns_mov_b32 s37, s9')
    srd2(e, 36, 448*2688)
    for it in range(1, 7): offs(it)
    emit(loads(1), 1)
    LDS_ = knob('lds', 1)
    e('s_cmp_lt_u32 s18, 14\ns_cbranch_scc0 L_rdyadd\nL_rdyaddd:')
    slow.append(f'''L_rdyadd:
s_waitcnt vmcnt({vm.count('z')[1]})
s_barrier
s_cmp_lg_u32 s16, 0
s_cbranch_scc1 L_rdyaddd
v_mov_b32 v32, 1
s_mov_b64 exec, 1
global_atomic_add v219, v32, s[100:101] sc1
s_mov_b64 exec, -1
s_branch L_rdyaddd''')
    for r in range(220, 236): e(f'v_mov_b32 v{r}, 0')
    e("""v_and_b32 v246, 31, v1
v_lshrrev_b32 v247, 1, v246
v_lshrrev_b32 v248, 5, v1
v_xor_b32 v247, v247, v248
v_and_b32 v247, 7, v247
v_lshlrev_b32 v247, 4, v247
v_lshl_add_u32 v247, v246, 7, v247
v_add_u32 v247, s66, v247
s_lshl_b32 s62, s16, 5
v_xor_b32 v9, s62, v247""")
    for kk in range(1, 4): e(f'v_xor_b32 v{9+kk}, {32*kk}, v9')
    tr_lane_part(e, 249, 1, 128, 247, 248)
    e('v_bfe_u32 v247, v1, 3, 1\nv_lshl_add_u32 v249, v247, 6, v249\nv_add_u32 v13, s67, v249')
    for n in range(1, 8): e(f'v_xor_b32 v{13+n}, {2048*(n >> 1) + 64*(n & 1)}, v13')
    tr_lane_part(e, 21, 1, 64, 247, 248)
    e(f's_lshl_b32 s26, s16, 10\ns_add_u32 s26, s26, {WQ}\nv_add_u32 v21, s26, v21')
    for kk in range(1, 4): e(f'v_xor_b32 v{21+kk}, {1024*kk}, v21')
    e(f"""v_mov_b32 v25, 0x3f803f80
v_mov_b32 v26, 0
v_mov_b32 v27, 0
v_mov_b32 v28, 0
v_mov_b32 v29, 0
v_mov_b32 v30, 0
s_and_b32 s28, s18, 1
s_lshr_b32 s62, s18, 1
s_mul_i32 s62, s62, 7
s_mul_i32 s31, s28, 3
s_add_u32 s31, s62, s31
s_lshl4_add_u32 s62, s31, s65
v_lshrrev_b32 v247, 2, v1
v_mul_u32_u24 v247, 2688, v247
v_and_b32 v248, 3, v1
v_lshl_add_u32 v8, v248, 4, v247
v_add_u32 v8, s62, v8""")
    e(f"""s_lshl2_add_u32 s19, s2, s16
s_mul_i32 s20, s19, 9363
s_lshr_b32 s20, s20, 16        ; ks'
s_mul_i32 s21, s20, 7
s_sub_u32 s21, s19, s21        ; fb
s_mul_i32 s64, s21, {WFP}
s_lshl_b32 s22, s20, 11
s_add_u32 s64, s64, s22
s_add_u32 s64, s64, {WS_WF}
s_cmp_lt_u32 s20, 144
s_cselect_b32 s64, s64, {WS_BYTES}
s_sub_u32 s22, s20, 112
s_lshr_b32 s62, s22, 1
s_mul_i32 s62, s62, 28
s_and_b32 s22, s22, 1
s_lshl4_add_u32 s62, s22, s62
s_lshl_b32 s22, s20, 4         ; W2 row
s_cmp_lt_u32 s20, 112
s_cselect_b32 s22, s22, s62
s_cselect_b32 s32, s42, s40
s_cselect_b32 s33, s43, s41
s_mov_b32 s34, {448*896}
s_cselect_b32 s34, {1792*896}, s34
s_mov_b32 s35, 0x00020000
s_mul_i32 s22, s22, 896
s_lshl_b32 s21, s21, 7
s_add_u32 s59, s22, s21
v_lshl_add_u32 v250, v245, 4, v244
v_add_u32 v251, 6144, v250
v_add_u32 v252, {UB}, v13
v_xor_b32 v253, 64, v252
v_lshlrev_b32 v254, 4, v1""")
    swap23(e, 247, 246, 248)
    e(f"""v_lshrrev_b32 v248, 5, v1
v_mul_u32_u24 v248, 7168, v248
v_lshl_add_u32 v240, v247, 4, v248
v_add_u32 v241, 14336, v240
v_lshlrev_b32 v242, 3, v246
v_add_u32 v242, {CSB}, v242
s_lshl_b32 s62, s16, 8
v_add_u32 v243, s62, v242
s_mul_i32 s43, s63, {TTP}
s_lshl_b32 s65, s18, 12
s_lshl_b32 s62, s18, 10
s_add_u32 s62, s62, {VP - 7*1024}
s_cmp_lt_u32 s18, 7
s_cselect_b32 s65, s65, s62
s_add_u32 s65, s65, s43
s_add_u32 s43, s43, {ONE}
s_cmp_eq_u32 s18, 13
s_cselect_b32 s43, s43, {WS_BYTES}
v_min_u32 v244, 0x70, v254""")
    for r in range(236, 240): e(f'v_mov_b32 v{r}, v25')
    park = []
    def prk(dst, src): e(f'v_accvgpr_write_b32 a{len(park)}, v{src}'); park.append(dst)
    e(f"""s_bfe_u32 s20, s2, 0x40003     ; j
s_lshr_b32 s19, s2, 7
s_lshl1_add_u32 s19, s51, s19  ; rb
s_lshl_b32 s25, s19, 12
s_add_u32 s25, s25, {WS_FL}
s_getreg_b32 s40, hwreg(HW_REG_XCC_ID, 0, 4)
s_lshl_b32 s41, s40, 2
s_lshl_b32 s29, 14, s41
s_lshl_b32 s41, 1, s41
s_cmp_lt_u32 s40, 8
s_cselect_b32 s41, s41, 0
s_cmp_lt_u32 s20, 14
s_cselect_b32 s41, s41, 0
v_lshlrev_b32 v32, 7, v1
s_lshl_b32 s40, s17, 7
s_add_u32 s40, s40, {WS_F1}
v_lshl_add_u32 v255, v32, 4, s40
v_add_u32 v33, {WS_F2 - WS_F1}, v255
v_mov_b32 v34, 1
s_add_u32 s40, s25, {24*128}
v_writelane_b32 v33, s40, 8
v_writelane_b32 v34, s41, 8""")
    prk(240, 32); prk(14, 33); prk(8, 34)
    e(f"""s_and_b32 s21, s20, 1          ; th
s_lshr_b32 s22, s20, 1         ; fb
s_lshl1_add_u32 s23, s19, s21
s_lshr_b32 s40, s16, 1
s_and_b32 s41, s22, {knob('flip', 1)}
s_xor_b32 s40, s40, s41
s_lshl1_add_u32 s23, s23, s40
s_and_b32 s40, s16, 1
s_lshl1_add_u32 s24, s22, s40
v_mul_u32_u24 v33, 896, v246
v_lshrrev_b32 v34, 5, v1
v_lshlrev_b32 v35, 4, v34
v_add_u32 v33, v33, v35
s_mul_i32 s27, s23, {32*896}
s_lshl_b32 s40, s24, 6
s_add_u32 s27, s27, s40
v_add_u32 v35, s40, v35
s_lshl_b32 s40, s20, 8
s_lshl_b32 s41, s16, 6
s_add_u32 s41, s41, s40
v_lshl_add_u32 v36, v247, 1, s41""")
    prk(0, 33); prk(160, 35); prk(161, 36)
    for b in range(1, 4): e(f'v_xor_b32 v33, {64*b}, v36'); prk(161 + b, 33)
    e(f"""v_lshlrev_b32 v33, 4, v247
v_lshl_add_u32 v33, v34, 9, v33
s_lshl_b32 s41, s31, 9
v_add_u32 v33, s41, v33
s_mul_i32 s41, s18, 448
s_add_u32 s41, s41, {VP}
v_add_u32 v35, s41, v240
v_add_u32 v36, s41, v241
v_cmp_gt_u32 vcc, 28, v246
v_mov_b32 v37, {ONE}
s_mul_i32 s31, s16, {16*3584}
v_cndmask_b32 v35, v37, v35, vcc
v_cndmask_b32 v36, v37, v36, vcc
s_add_u32 s31, s31, s40""")
    prk(3, 33); prk(4, 35); prk(248, 36)
    e(f"""v_cmp_gt_u32 vcc, 32, v1
s_cmp_eq_u32 s28, 0
s_cselect_b32 s40, -1, 0
v_cndmask_b32 v33, 0, -1, vcc
v_not_b32 v35, v33
v_or_b32 v35, s40, v35
s_not_b32 s40, s40
v_or_b32 v36, s40, v33
s_add_u32 s40, s67, {QX}
v_add_u32 v37, s40, v254""")
    early = len(park)
    prk(6, 33); prk(13, 35); prk(5, 36); prk(15, 37)
    early = (early, len(park))
    for s in range(4):
        e(f's_xor_b32 s40, s16, {3-s}\ns_mul_i32 s40, s40, 12288\ns_add_u32 s40, s40, {SCR}\nv_add_u32 v33, s40, v254'); prk(9 + s, 33)
    e(f"""v_lshrrev_b32 v33, 4, v1
v_lshlrev_b32 v35, 2, v33
v_and_b32 v36, 15, v1
v_xor_b32 v35, v35, v36
v_mul_u32_u24 v33, 3584, v33
v_lshl_add_u32 v33, v35, 4, v33""")
    w1p = len(park); prk(165, 33)
    e(f"""s_mul_i32 s40, s23, 28672
s_lshl_b32 s41, s24, 11
s_add_u32 s40, s40, s41
s_add_u32 s40, s40, {WS_H}
v_add_u32 v33, s40, v32
s_lshl_b32 s40, s23, 12
s_lshl_b32 s41, s22, 9
s_add_u32 s40, s40, s41
s_add_u32 s40, s40, {WS_S - 16*128}
v_add_u32 v35, s40, v32
v_cmp_gt_u32 vcc, 16, v1
v_mov_b32 v36, {WS_BYTES}
v_cndmask_b32 v33, v35, v33, vcc
v_cmp_gt_u32 vcc, 20, v1
v_cndmask_b32 v33, v36, v33, vcc
s_lshl_b32 s51, s51, 11
s_add_u32 s40, s51, {WS_F2 - 48*128}
v_add_u32 v35, s40, v32
v_cmp_gt_u32 vcc, 48, v1
s_add_u32 s40, s25, {24*128}
v_cndmask_b32 v33, v35, v33, vcc
v_writelane_b32 v33, s40, 20
s_add_u32 s51, s51, {WS_F1}
s_lshl2_add_u32 s40, s19, s16
s_mul_i32 s28, s40, 114688
s_lshl_b32 s40, s20, 13
s_add_u32 s28, s28, s40
s_add_u32 s28, s28, {WS_H1}
s_bfe_u32 s40, s2, 0x20003
s_lshl2_add_u32 s40, s40, s16
s_lshl_b32 s40, s40, 11
v_and_b32 v35, 0x780, v32
v_add_u32 v36, s40, v35
v_min_u32 v36, L_fallback-L_pc1, v36
s_and_b32 s41, s17, {knob("kvm", 1)}
s_lshl_b32 s41, s41, {knob("kvs", 3)}""")
    prk(241, 33); prk(169, 35); prk(170, 36)
    for j in range(16):
        e(f's_add_u32 s40, s41, {j}\ns_and_b32 s40, s40, 15\ns_lshl4_add_u32 s40, s16, s40\ns_mul_i32 s{KVO+j}, s40, {TTP}')
    ACC, QA, WF, XF = 32, 64, 80, 104
    XM, RM, CF, ON = 216, 220, 224, 236
    def reads(s, ty):
        it, kk = divmod(s, 4); b = s % 3
        l = [f'ds_read_b128 {vr(XF+4*s,4)}, v{9+kk} offset:{(it%3)*4096}']
        if ty != 'l':
            for f in range(2):
                for rd in range(2):
                    l.append(f'ds_read_b64_tr_b16 {vr(WF+8*b+4*f+2*rd,2)}, v{13+2*kk+f} offset:{it*8192 + rd*512}')
        return l
    def xdots(s):
        for r in range(4):
            x = XF + 4*s + r
            e(f'v_dot2c_f32_bf16 v26, v{x}, v25\nv_dot2c_f32_bf16 v27, v{x}, v{x}')
    late = []
    for it in range(7): late += [[f's_add_u32 m0, s26, {it*4096}', f'buffer_load_dwordx4 v8, s[36:39], s{52+it} offen lds']]
    WQS = [int(c) for c in str(knob('wqs', 13)) if c != '0']
    WQE = knob('wqe', 7)
    early = {c - 1: late[n] for n, c in enumerate(WQS)}
    unit_dma = [[f's_add_u32 m0, s67, {UB}', 'buffer_load_dwordx4 v250, s[32:35], s59 offen lds'], ['buffer_load_dwordx4 v251, s[32:35], s59 offen offset:1024 lds']]
    rdy = 'global_load_dword v245, v219, s[100:101] sc1'
    late2 = late[WQE:] + unit_dma
    lateall = late[:WQE] + [[rdy]]
    late = late[len(WQS):WQE]
    def rdycheck(lab, hint):
        e(f'''s_cmp_lg_u32 s16, 0
s_cbranch_scc1 {lab}x
v_cmp_gt_u32 vcc, 32, v245
v_mov_b32 v31, 1
s_cbranch_vccnz {lab}p
{lab}d:''')
        if hint: e(f's_mov_b32 s40, {HINT}\ns_mov_b64 exec, 0xff\nbuffer_atomic_add v31, v255, s[12:15], s40 offen sc1\ns_mov_b64 exec, -1')
        e(f'{lab}x:')
        slow.append(f'''{lab}p:
s_mov_b32 s40, {POLL_MAX}
{lab}l:
global_load_dword v245, v219, s[100:101] sc1
s_sub_u32 s40, s40, 1
s_cbranch_scc1 {lab}d
s_waitcnt vmcnt(0)
v_cmp_gt_u32 vcc, 32, v245
s_cbranch_vccnz {lab}l
s_branch {lab}d''')
    vm.wait(0)
    e('s_barrier')
    stamp(e, 'p1go')
    e('s_cmp_lt_u32 s18, 7\ns_cbranch_scc1 L_kk\ns_cmp_lt_u32 s18, 14\ns_cbranch_scc0 L_light')
    vm0 = (list(vm.seq), vm.done)
    def xm_frag():
        e(f"""v_cmp_gt_u32 vcc, 32, v1
v_sub_f32 v247, 0, v247
v_cndmask_b32 v247, 0, v247, vcc
v_and_b32 v26, 0xffff0000, v247
v_sub_f32 v27, v247, v26
v_cvt_pk_bf16_f32 v{XM}, v26, v26
v_cvt_pk_bf16_f32 v{XM+1}, v27, 0""")
    def variant(ty, lab):
        if lab: e(f'{lab}:')
        vm.seq, vm.done = list(vm0[0]), vm0[1]
        lt = list(late)
        e('\n'.join(reads(0, ty) + reads(1, ty)))
        if LDS_: emit(loads(2)[:3], 2)
        for s in range(28):
            it, kk = divmod(s, 4); b = s % 3
            x = vr(XF+4*s, 4)
            mf = []
            for f in range(2):
                w = vr(WF+8*b+4*f, 4); a = vr(ACC+16*f, 16); c = a if s else '0'
                mf.append(f'{MF} {a}, {w}, {x}, {c}' if ty == 'k' else f'{MF} {a}, {x}, {w}, {c}')
            rd = reads(s+2, ty) if s < 26 else []
            if LDS_ == 0 and it + PF <= 6:
                L = loads(it + PF); tag = it + PF
                ld = {0: (L[:2], L[2:3]), 1: (L[3:5], L[5:6]), 2: ([], L[6:7]), 3: ([], L[7:])}[kk]
                if it in early and kk == 3: ld = (L[7:], [])
            elif LDS_ == 1 and s < 18:
                if kk < 2: L = loads(it + 2); tag = it + 2; ld = {0: (L[3:5], L[5:6]), 1: (L[6:7], L[7:])}[kk]
                else: L = loads(it + 3); tag = it + 3; ld = {2: ([], L[:2]), 3: (L[2:3], [])}[kk]
            else:
                tag = 'wq'
                ld = (lt.pop(0) if lt and len(lt) > 26 - s else [], lt.pop(0) if lt else [])
            if s < 27: e(f's_waitcnt lgkmcnt({5 if s < 26 else 0})')
            if kk == 2:
                for r in range(4):
                    for f in range(2): e(f'v_dot2c_f32_bf16 v{28+f}, v{WF+8*b+4*f+r}, v25')
                for s2 in range(max(0, s-3), s + (2 if s == 26 else 1)): xdots(s2)
                if s < 26:
                    vm.wait(it + 1); e('s_barrier')
                else:
                    for f in range(2): halves_sum(e, 28+f, 246)
                    e('ds_write_b64 v243, v[28:29]')
            e(mf[0]); e('\n'.join(rd[:3])); emit(ld[0], tag)
            if s == 26: ln_stats(e, 26, 27, 246, 247, 248)
            if s == 27: xm_frag()
            e(mf[1]); e('\n'.join(rd[3:])); emit(ld[1], tag)
            if it in early and kk == 3: emit(early[it], 'wq')
            if s == 15: vm.op(rdy, 'rdy')
            if s == 26:
                e('s_waitcnt lgkmcnt(0)\ns_barrier')
                for w in range(4): e(f'ds_read_b64 {vr(QA+2*w,2)}, v242 offset:{256*w}')
        assert not lt
        stamp(e, 'p1end')
        if ty == 'v':
            e(f"""v_cndmask_b32 v246, 0, v248, vcc
v_and_b32 v26, 0xffff0000, v246
v_sub_f32 v27, v246, v26
v_cvt_pk_bf16_f32 v{RM}, v26, v27
{MF} v[88:103], {vr(RM,4)}, {vr(ON,4)}, 0""")
        e('s_waitcnt lgkmcnt(0)')
        for f in range(2):
            e(f"""v_add_f32 v{QA+f}, v{QA+f}, v{QA+2+f}
v_add_f32 v{QA+4+f}, v{QA+4+f}, v{QA+6+f}
v_add_f32 v{QA+f}, v{QA+f}, v{QA+4+f}
v_and_b32 v26, 0xffff0000, v{QA+f}
v_sub_f32 v27, v{QA+f}, v26
v_cvt_pk_bf16_f32 v{CF+4*f}, v26, v27
v_lshrrev_b32 v{CF+4*f+1}, 16, v{QA+f}""")
            a = vr(ACC+16*f, 16); w = vr(CF+4*f, 4)
            e(f'{MF} {a}, {w}, {vr(XM,4)}, {a}' if ty == 'k' else f'{MF} {a}, {vr(XM,4)}, {w}, {a}')
        vm.op(f'buffer_store_dwordx4 {vr(ON,4)}, v244, s[12:15], s43 offen sc1', 'kv')
        if knob('h1p', 1) == 0: vm.wait('rdy'); rdycheck(f'L_r{ty}', True)
        for f in range(2):
            A = ACC + 16*f
            for p in range(8):
                if ty == 'k': e(f'v_pk_mul_f32 {vr(A+2*p,2)}, {vr(A+2*p,2)}, v[248:249] op_sel_hi:[1,0]')
                else: e(f'v_pk_mul_f32 {vr(A+2*p,2)}, {vr(A+2*p,2)}, {vr(88+2*p,2)}')
                e(f'v_cvt_pk_bf16_f32 v{A+p}, v{A+2*p}, v{A+2*p+1}')
                if p % 4 == 3:
                    t = p // 4
                    if ty == 'k': vm.op(f'buffer_store_dwordx4 {vr(A+4*t,4)}, v254, s[12:15], s65 offen offset:{2048*f + 1024*t} sc1', 'kv')
                    else: vm.op(f'buffer_store_dwordx4 {vr(A+4*t,4)}, v{240+t}, s[12:15], s65 offen offset:{512*f} sc1', 'kv')
        if knob('h1p', 1) == 1: vm.wait('rdy'); rdycheck(f'L_r{ty}', True)
        if ty == 'v': e('s_branch L_q')
    def light():
        e(f'L_light:\nv_mov_b32 v255, {WS_BYTES}')
        vm.seq, vm.done = list(vm0[0]), vm0[1]
        for it in range(7):
            if it: vm.wait(it)
            for kk in range(4): e('\n'.join(reads(4*it + kk, 'l')))
            if it + 2 <= 6: emit(loads(it + 2)[3:], it + 2)
            if it == 5:
                for l in lateall: emit(l, 'wq')
            e('s_waitcnt lgkmcnt(0)')
            for kk in range(4): xdots(4*it + kk)
        ln_stats(e, 26, 27, 246, 247, 248)
        xm_frag()
        stamp(e, 'p1end')
        e('s_waitcnt vmcnt(0)')
        rdycheck('L_rl', False)
        e('s_branch L_q')
    variant('v', None); light(); variant('k', 'L_kk')
    e('L_q:')
    stamp(e, 'p1st')
    for l in late2: emit(l, 'wq2')
    vm.wait('wq'); e('s_barrier')
    def qrd(s, dst=None):
        it, kk = divmod(s, 4)
        if dst is None: dst = ACC + 4*(s & 7)
        return [f'ds_read_b64_tr_b16 {vr(dst+2*rd,2)}, v{21+kk} offset:{it*4096 + rd*256}' for rd in range(2)]
    w1n = [0]; w1o = [16]
    def w1set():
        it = w1n[0] // 4
        e(f's_add_u32 m0, s49, {it*16384}\ns_add_u32 s47, s31, {it*64*3584}')
    def w1l(n=1, auto=True):
        for _ in range(n):
            i = w1n[0] % 4
            if i == 0 and auto: w1set()
            vm.op(f'buffer_load_dwordx4 v{w1o[0]+i}, s[8:11], s47 offen offset:{1024*i} lds', 'W1'); w1n[0] += 1
    WA_, WB_ = knob('w1a', 0), knob('w1b', 0)
    queue = []
    def drainq(k):
        for _ in range(k):
            if not queue: return
            x = queue.pop(0)
            if isinstance(x, str): e(x)
            else: x()
    QS = knob('qs', 5)
    assert (3 <= WQE <= 4 and QS <= WQE) or WQE == 7
    def s1signal():
        vm.wait('kv')
        e("""s_barrier
s_cmp_lg_u32 s16, 0
s_cbranch_scc1 L_s1b
s_mov_b64 exec, 0xff
buffer_atomic_add v31, v255, s[12:15], 0 offen sc1
s_mov_b64 exec, -1
L_s1b:""")
        stamp(e, 's1sig')
    def qcs(g0, g1):
        for g in range(g0, g1): e('\n'.join(qrd(4*g, 80 + 4*(g - g0))))
        for s in range(4*g0, 4*g0 + 3): e('\n'.join(qrd(s)))
        e('s_waitcnt lgkmcnt(6)')
        e('\n'.join(qrd(4*g0 + 3)))
        for r in range(4*(g1 - g0)): e(f'v_dot2c_f32_bf16 v30, v{80+r}, v25')
    lateprk = [n for n, d in enumerate(park) if XF <= d < XF + 112]
    queue += [f'v_mul_f32 v26, {f32(QSCALE)}, v248', 'v_mov_b32 v2, v254', f'v_accvgpr_read_b32 v16, a{w1p}']
    queue += [f'v_add_u32 v{16+i}, {i*(4*3584-1024)}, v16' for i in range(1, 4)]
    queue += [f's_mov_b32 s8, s60\ns_mov_b32 s9, s61', f's_cmp_lt_u32 s20, 14\ns_cselect_b32 s10, {448*3584}, 0', 's_lshl_b32 s49, s16, 12', 's_mov_b32 s30, 0']
    queue += [f'v_accvgpr_read_b32 v{d}, a{n}' for n, d in enumerate(park) if n not in lateprk]
    queue += f"""v_xor_b32 v249, {3*2048}, v15
v_xor_b32 v250, {2*2048}, v15
v_xor_b32 v251, {1*2048}, v15
v_mov_b32 v{RM}, 0
v_mov_b32 v7, 0xdddd
s_mul_i32 s44, s22, {WFP}
s_add_u32 s44, s44, {WS_WF}""".split('\n')
    queue += [f's_cmp_lt_u32 s20, 14\ns_cselect_b32 s44, s44, {WS_BYTES}']
    queue += f"""s_mul_i32 s45, s16, {28*2048}
s_add_u32 s45, s45, s44
s_lshl_b32 s46, s16, 14
s_add_u32 s44, s44, s46
s_add_u32 s44, s44, {112*2048}
s_lshl2_add_u32 s3, s17, s16
s_lshl4_add_u32 s3, s3, s18
s_lshl_b32 s3, s3, 11
s_add_u32 s3, s3, {WS_O}
s_mov_b32 s34, 3584
s_mov_b32 s38, 896
s_mov_b32 s42, {2048*896}
s_mov_b32 s43, 0x00020000""".split('\n')
    if WQE < 7:
        qcs(0, WQE)
        for g in range(7):
            for k in range(4):
                s = 4*g + k
                e(f's_waitcnt lgkmcnt({2*min(3, 27-s, (4*WQE-1-s) if g < WQE else 3)})')
                e(f'{MF} {vr(QA,16)}, {vr(ACC+4*(s&7),4)}, {vr(XF+4*s,4)}, ' + (vr(QA, 16) if s else '0'))
                if s + 4 < 28 and g + 1 != WQE: e('\n'.join(qrd(s+4)))
                if g >= WQE and w1n[0] < WA_: w1l()
                drainq(4 if g < 6 else 6)
            if g + 1 == QS: s1signal()
            if g + 1 == WQE:
                vm.wait('wq2'); e('s_barrier')
                for f in range(2):
                    for rd in range(2): e(f'ds_read_b64_tr_b16 {vr(96+4*f+2*rd,2)}, v{252+f} offset:{rd*512}')
                e('s_waitcnt lgkmcnt(0)')
                for f in range(2): vm.op(f'buffer_store_dwordx4 {vr(96+4*f,4)}, v2, s[12:15], s64 offen offset:{1024*f} sc1', 'ust')
                qcs(WQE, 7)
                halves_sum(e, 30, 246)
                e('ds_write_b32 v243, v30')
            if g == WQE:
                e('s_barrier')
                for w in range(4): e(f'ds_read_b32 v{96+w}, v242 offset:{256*w}')
            if g == 4:
                queue += [f'v_accvgpr_read_b32 v{park[n]}, a{n}' for n in lateprk] + ['v_mov_b32 v166, v17', 'v_mov_b32 v167, v18', 'v_mov_b32 v168, v19']
                queue += ['s_and_b32 s46, s16, 1', 's_lshl_b32 s46, s46, 10', 'v_add_u32 v252, s46, v2', 'v_xor_b32 v253, 1024, v252']
            if g == 5:
                queue += f"""v_add_f32 v96, v96, v97
v_add_f32 v98, v98, v99
v_add_f32 v30, v96, v98
v_and_b32 v28, 0xffff0000, v30
v_sub_f32 v29, v30, v28
v_cvt_pk_bf16_f32 v{CF+8}, v28, v29
v_lshrrev_b32 v{CF+9}, 16, v30""".split('\n')
    else:
        for g in range(7): e('\n'.join(qrd(4*g, 76 + 4*g)))
        e('s_waitcnt lgkmcnt(6)')
        for s in range(4): e('\n'.join(qrd(s)))
        for r in range(16): e(f'v_dot2c_f32_bf16 v30, v{76+r}, v25')
        e('s_waitcnt lgkmcnt(8)')
        for r in range(16, 28): e(f'v_dot2c_f32_bf16 v30, v{76+r}, v25')
        halves_sum(e, 30, 246)
        e('ds_write_b32 v243, v30')
        for g in range(7):
            for k in range(4):
                s = 4*g + k
                e(f's_waitcnt lgkmcnt({2*min(3, 27-s)})')
                e(f'{MF} {vr(QA,16)}, {vr(ACC+4*(s&7),4)}, {vr(XF+4*s,4)}, ' + (vr(QA, 16) if s else '0'))
                if s + 4 < 28: e('\n'.join(qrd(s+4)))
                if g >= QS and w1n[0] < WA_: w1l()
                drainq(3 if g < 6 else 5)
            if g == 1:
                e('s_barrier')
                for w in range(4): e(f'ds_read_b32 v{96+w}, v242 offset:{256*w}')
            if g == 4:
                queue += [f'v_accvgpr_read_b32 v{park[n]}, a{n}' for n in lateprk] + ['v_mov_b32 v166, v17', 'v_mov_b32 v167, v18', 'v_mov_b32 v168, v19']
                queue += f"""v_add_f32 v96, v96, v97
v_add_f32 v98, v98, v99
v_add_f32 v30, v96, v98
v_and_b32 v28, 0xffff0000, v30
v_sub_f32 v29, v30, v28
v_cvt_pk_bf16_f32 v{CF+8}, v28, v29
v_lshrrev_b32 v{CF+9}, 16, v30""".split('\n')
            if g + 1 == QS: s1signal()
            if g + 1 == knob('us', 6):
                vm.wait('wq2')
                for f in range(2):
                    for rd in range(2): e(f'ds_read_b64_tr_b16 {vr(80+4*f+2*rd,2)}, v{252+f} offset:{rd*512}')
                e('s_waitcnt lgkmcnt(0)')
                for f in range(2): vm.op(f'buffer_store_dwordx4 {vr(80+4*f,4)}, v2, s[12:15], s64 offen offset:{1024*f} sc1', 'ust')
                queue += ['s_and_b32 s46, s16, 1', 's_lshl_b32 s46, s46, 10', 'v_add_u32 v252, s46, v2', 'v_xor_b32 v253, 1024, v252']
    drainq(999)
    w1l(WA_ - w1n[0]); w1o[0] = 165
    e(f"""{MF} {vr(QA,16)}, {vr(CF+8,4)}, {vr(XM,4)}, {vr(QA,16)}
s_load_dwordx2 s[32:33], s[0:1], 40
s_load_dwordx2 s[36:37], s[0:1], 56
s_load_dwordx2 s[40:41], s[0:1], 64
s_getpc_b64 s[52:53]
L_pc1:""")
    vm.op('global_load_dword v242, v170, s[52:53]', 'T')
    for s in (0, 2, 3): e(f'{MF} {vr(O+16*s,16)}, {vr(RM,4)}, {vr(RM,4)}, 0')
    w1l(WB_)
    for p in range(8):
        e(f'v_mul_f32 v{QA+2*p}, v26, v{QA+2*p}\nv_mul_f32 v{QA+2*p+1}, v26, v{QA+2*p+1}')
        e(f'v_cvt_pk_bf16_f32 v{Q+24+p}, v{QA+2*p}, v{QA+2*p+1}')
    e(f"""v_and_b32 v{Q+24}, v13, v{Q+24}
v_and_b32 v{Q+25}, v13, v{Q+25}
v_and_b32 v{Q+30}, v5, v{Q+30}
v_and_b32 v{Q+31}, v5, v{Q+31}
ds_write_b128 v15, {vr(Q+24,4)}
ds_write_b128 v15, {vr(Q+28,4)} offset:1024
{MF} {vr(O+16,16)}, {vr(RM,4)}, {vr(RM,4)}, 0""")
    stamp(e, 's1win')
    e(f"""s_cmp_lg_u32 s16, 0
s_cbranch_scc1 L_s1done
s_mov_b32 s26, {POLL_MAX}
s_add_u32 s50, s51, {HINT}
{'s_branch L_s1poll' if knob('nh', 2) & 1 else ''}
L_s1hint:
buffer_load_dword v15, v169, s[12:15], s50 offen sc1
s_sub_u32 s26, s26, 1
s_cbranch_scc1 L_s1done
s_waitcnt vmcnt(0)
v_cmp_gt_u32 vcc, 14, v15
s_cbranch_vccnz L_s1hint
L_s1poll:
buffer_load_dword v15, v169, s[12:15], s51 offen sc1
s_sub_u32 s26, s26, 1
s_cbranch_scc1 L_s1done
s_waitcnt vmcnt(0)
v_cmp_gt_u32 vcc, 14, v15
s_cbranch_vccnz L_s1poll
L_s1done:
s_waitcnt lgkmcnt(0)
s_barrier""")
    stamp(e, 's1done')
    def kl(j, t): vm.op(f'buffer_load_dwordx4 {ar(16*j+4*t,4)}, v3, s[12:15], s{KVO+j} offen offset:{1024*t} sc1', f'K{j}')
    def vl(j, t): vm.op(f'buffer_load_dwordx4 {ar(16*j+8+4*t,4)}, v{248 if t else 4}, s[12:15], s{KVO+j} offen sc1', f'V{j}')
    KV0 = knob('kv0', 2)
    for j in range(KV0): kl(j, 0); kl(j, 1); vl(j, 0); vl(j, 1)
    for s in range(3):
        for t in range(2): e(f'ds_read_b128 {vr(Q+8*s+4*t,4)}, v{249+s} offset:{1024*t}')
    steps = [(s, j) for j in range(16) for s in range(3)] + [(3, j) for j in range(16)]
    N = len(steps)
    def qk(i, t):
        s, j = steps[i]; d = vr(S + 16*(i % 3), 16)
        return f'{MF} {d}, {ar(16*j+4*t,4)}, {vr(Q+8*s+4*t,4)}, ' + ('0' if t == 0 else d)
    def pv(i, t):
        s, j = steps[i]
        return f'{SM} {vr(O+16*s,16)}, {ar(16*j+8+4*t,4)}, {vr(S+16*(i%3)+8*t,8)}, v7'
    pre, post = {}, {}
    def P(d, i, sl, f): d.setdefault((i, sl), []).append(f)
    def wo_txt(n):
        ks, f = divmod(n, 2)
        return ([f's_add_u32 s46, s44, {ks*2048}'] if n % 4 == 0 else []) + \
               [f'buffer_load_dwordx4 {vr(WOF+8*ks+4*f,4)}, v{252+f}, s[12:15], s46 offen offset:{(ks%2)*2048} sc1']
    def w2_txt(n):
        ks, f = divmod(n, 2)
        return ([f's_add_u32 s48, s45, {ks*2048}'] if n % 4 == 0 else []) + \
               [f'buffer_load_dwordx4 {ar(8*ks+4*f,4)}, v{252+f}, s[12:15], s48 offen offset:{(ks%2)*2048} sc1']
    w2n = [0]
    def w2l(n=1):
        for _ in range(n):
            if w2n[0] >= 56: return
            emit(w2_txt(w2n[0]), 'W2'); w2n[0] += 1
    def wfcheck():
        vm.wait('T0')
        e('v_cmp_gt_u32 vcc, 16, v243\ns_lshr_b32 s26, vcc_hi, 16\ns_cbranch_scc1 L_wf\nL_wfd:')
        slow.append(f"""L_wf:
s_mov_b32 s26, {POLL_MAX}
L_wfp:
buffer_load_dword v243, v241, s[12:15], 0 offen sc1
s_sub_u32 s26, s26, 1
s_cbranch_scc1 L_wfd
s_waitcnt vmcnt(0)
v_cmp_gt_u32 vcc, 16, v243
s_nop 1
s_lshr_b32 s50, vcc_hi, 16
s_cbranch_scc1 L_wfp
s_branch L_wfd""")
    vq = [((lambda f=f, j=j, t=t: f(j, t)), 1 + (f is vl and t == 1 and j < knob('kvg', 0))) for j in range(KV0, 16) for f in (kl, vl) for t in range(2)]
    vq += [(lambda: vm.op('buffer_load_dword v243, v241, s[12:15], 0 offen sc1', 'T0'), 2)]
    vq += [((lambda t=t: vm.op(f'buffer_load_dwordx4 {vr(224+4*t,4)}, v0, s[4:7], s27 offen offset:{32*t}', 'sm')), 1) for t in range(2)]
    vq += [((lambda t=t: vm.op(f'buffer_load_dwordx4 {vr(232+4*t,4)}, v160, s[36:39], 0 offen offset:{32*t}', 'sm')), 1) for t in range(2)]
    vq += [((lambda b=b: vm.op(f'buffer_load_ushort v{244+b}, v{161+b}, s[32:35], 0 offen', 'sm')), 1) for b in range(4)]
    vq += [(w1l, 1 + (n % knob('w1g', 99) == 0)) for n in range(WA_ + WB_, 28)]
    hs = 0
    for f, d in vq:
        P(post, hs // 2, 2*(hs % 2), f); hs += d
    hs += hs % 2
    P(pre, hs // 2, 0, wfcheck)
    for n in range(16):
        P(post, hs // 2, 2*(hs % 2), (lambda n=n: emit(wo_txt(n), 'Wo'))); hs += 1
    hs = max(hs, 100)
    assert hs <= 124
    W2A = min(knob('w2a', 24), 126 - hs) // 4 * 4
    for n in range(W2A):
        P(post, hs // 2, 2*(hs % 2), w2l); hs += 1
    H2P = knob('h2p', 64)
    def hint2(): vm.op('buffer_atomic_add v8, v250, s[12:15], 0 offen offset:128 sc1', 'sig')
    if H2P < 64: P(post, H2P, 3, hint2)
    P(pre, 0, 3, lambda: vm.wait('V0'))
    for j in range(1, 16):
        if j < max(6, knob('kvg', 0) + 2 & ~1): P(pre, 3*j - 1, 0, (lambda j=j: vm.wait(f'V{j}')))
        elif j % 2 == 0: P(pre, 3*j - 1, 0, (lambda j=j: vm.wait(f'V{j+1}')))
    def pwr(s, q): return f'ds_write_b128 v{9+s}, {vr(O+16*s+4*q,4)} offset:{s*4096 + q*1024}'
    def prd(s, q): return f'ds_read_b128 {vr(O+16*s+4*q,4)}, v12 offset:{s*4096 + q*1024}'
    for k in range(12): P(post, 50 + k//2, 1 + 2*(k % 2), (lambda k=k: e(pwr(k//4, k % 4))))
    P(post, 59, 1, lambda: (vm.wait('W1', 'lgkmcnt(0)'), e('s_barrier')))
    for k in range(12): P(post, 60 + k//4, k % 4, (lambda k=k: e(prd(k//4, k % 4))))
    vm.wait('ust', 'lgkmcnt(0)')
    e("""s_barrier
s_cmp_lg_u32 s16, 0
s_cbranch_scc1 L_s1c
s_mov_b64 exec, 0x1ff
buffer_atomic_add v8, v14, s[12:15], 0 offen sc1
s_mov_b64 exec, -1
L_s1c:""")
    tr_lane_part(e, 249, 1, 256, 13, 5)
    e(f"""v_bfe_u32 v13, v1, 2, 2
v_xor_b32 v13, s16, v13
v_lshl_add_u32 v249, v13, 6, v249
v_add_u32 v254, 0x10000, v249
v_and_b32 v251, 3, v1
v_mul_u32_u24 v251, 12288, v251
v_add_u32 v251, {SCR}, v251
s_cmp_eq_u32 s16, 0
s_cselect_b32 s26, 1, 0
v_cmp_gt_u32 vcc, s26, v1
s_lshl_b32 s50, s17, 12
s_add_u32 s50, s50, {WS_FL}
v_add_u32 v250, s50, v240
v_mov_b32 v13, {WS_BYTES}
v_cndmask_b32 v250, v13, v250, vcc
v_mov_b32 v8, 1
v_mov_b32 v14, 0x3f803f80
v_and_b32 v5, 31, v1
v_lshlrev_b32 v5, 2, v5
v_sub_u32 v5, v5, v2""")
    vm.wait('K0')
    stamp(e, 'a0')
    e(qk(0, 0)); e(qk(0, 1))
    for i in range(N):
        if i == 48: stamp(e, 'aB')
        if i: stamp(e, f'a{i}')
        b = S + 16*(i % 3)
        mf = [qk(i+1, 0) if i+1 < N else None, qk(i+1, 1) if i+1 < N else None, pv(i-1, 1) if i > 0 else None, pv(i, 0)]
        for sl in range(4):
            for f in pre.get((i, sl), []): f()
            if mf[sl]: e(mf[sl])
            for f in post.get((i, sl), []): f()
            for r in range(4): e(f'v_exp_f32 v{b+4*sl+r}, v{b+4*sl+r}')
    e(pv(N-1, 1))
    if H2P == 64: hint2()
    assert w1n[0] == 28
    e('L_combine:')
    stamp(e, 'comb')
    e('s_waitcnt lgkmcnt(0)')
    for r in range(16): e(f'v_add_f32 v{O+r}, v{O+r}, v{O+16+r}')
    for p in range(8): e(f'v_pk_add_f32 {vr(O+2*p,2)}, {vr(O+2*p,2)}, {vr(O+32+2*p,2)}')
    for p in [6, 0, 1, 2, 3, 4, 5, 7]:
        e(f'v_pk_add_f32 {vr(O+2*p,2)}, {vr(O+2*p,2)}, {vr(O+48+2*p,2)}')
        if p == 6: e(f'v_mov_b32 v13, v{O+12}\nv_mov_b32 v15, v{O+12}')
        if p == 1: e('v_permlane32_swap_b32 v13, v15')
        if p == 2: e('v_rcp_f32 v158, v15')
    for p in range(8):
        e(f'v_pk_mul_f32 {vr(O+2*p,2)}, {vr(O+2*p,2)}, v[158:159] op_sel_hi:[1,0]')
        e(f'v_cvt_pk_bf16_f32 v{O+p}, v{O+2*p}, v{O+2*p+1}')
        if p == 3: vm.op(f'buffer_store_dwordx4 {vr(O,4)}, v2, s[12:15], s3 offen sc1', 'Ost')
    e(f'v_and_b32 v{O+6}, v6, v{O+6}\nv_and_b32 v{O+7}, v6, v{O+7}')
    vm.op(f'buffer_store_dwordx4 {vr(O+4,4)}, v2, s[12:15], s3 offen offset:1024 sc1', 'Ost')
    def csrd(dst, s):
        return [f'ds_read_b64_tr_b16 {vr(dst+2*rd,2)}, v{254 if s >= 16 else 249} offset:{(s & 15)*4096 + rd*1024}' for rd in range(2)]
    for k in range(4): e('\n'.join(csrd(S + 4*k, k)))
    e(f"""v_cmp_nle_f32 vcc, {f32(2.0**-40)}, v15
v_mov_b32 v156, 0
v_mov_b32 v157, 0
s_mov_b64 s[52:53], vcc
v_cmp_nge_f32 vcc, {f32(2.0**40)}, v15
v_add_u32 v15, v12, v5
s_or_b64 vcc, vcc, s[52:53]
s_cselect_b32 s26, 1, 0
s_andn2_b32 s26, s26, s30
v_mov_b32 v13, s26""")
    B0 = knob('b0', 8); CS = knob('cs', 4)
    def csgroup(g):
        if g < 7:
            for k in range(4): e('\n'.join(csrd(S + 16*(g & 1) + 4*k, 4*g + k)))
        if g <= CS: w2l(B0*g//CS - B0*(g-1)//CS)
        e(f's_waitcnt lgkmcnt({8 if g < 7 else 0})')
        for r in range(16): e(f'v_dot2c_f32_bf16 v{156 + (r & 1)}, v{S + 16*((g-1) & 1) + r}, v14')
    for g in range(1, CS + 1): csgroup(g)
    e('ds_write_b32 v12, v13')
    vm.wait('Ost', 'lgkmcnt(0)')
    e("""s_barrier
ds_read_b32 v13, v251
s_waitcnt lgkmcnt(0)
v_cmp_ne_u32 vcc, 0, v13
s_cbranch_vccnz L_fallback""")
    vm.op('buffer_atomic_add v8, v250, s[12:15], 0 offen sc1', 'sig2')
    stamp(e, 's2sig')
    e('s_cmp_ge_u32 s20, 14\ns_cbranch_scc1 L_end')
    B1 = min(knob('b1', 14), 56 - w2n[0])
    for g in range(CS + 1, 8):
        w2l(2); B1 -= 2
        csgroup(g)
    e('v_add_f32 v156, v156, v157')
    halves_sum(e, 156, 157)
    e("""ds_write_b32 v15, v156 offset:8192
v_add_u32 v157, v11, v5
v_add_u32 v158, v10, v5
v_add_u32 v159, v9, v5""")
    ACC3, AF = 80, 16
    WA = 240
    win = ['v_readlane_b32 s31, v243, 20']
    for r in range(8): win += [f'v_lshlrev_b32 v{ACC3+2*r}, 16, v{224+r}', f'v_and_b32 v{ACC3+2*r+1}, 0xffff0000, v{224+r}']
    win2 = ['s_waitcnt lgkmcnt(0)']
    for b in range(4):
        win2 += f"""v_and_b32 v13, 0xffff0000, v{156+b}
v_sub_f32 v15, v{156+b}, v13
v_cvt_pk_bf16_f32 v15, v13, v15
v_lshrrev_b32 v13, 16, v13
v_lshl_or_b32 v13, v{244+b}, 16, v13
v_accvgpr_write_b32 a{224+4*b}, v15
v_accvgpr_write_b32 a{225+4*b}, v13
v_accvgpr_write_b32 a{226+4*b}, v{244+b}
v_accvgpr_write_b32 a{227+4*b}, 0""".split('\n')
    for r in range(8): win2 += [f'v_lshlrev_b32 v{144+2*r}, 16, v{232+r}', f'v_and_b32 v{145+2*r}, 0xffff0000, v{232+r}']
    for b in range(4): win2 += [f'v_xor_b32 v{WA+b}, {64*b}, v249', f'v_xor_b32 v{WA+4+b}, {64*b}, v254']
    win += f"""s_mul_i32 s56, s23, 32768
s_lshl_b32 s55, s16, 13
s_add_u32 s55, s55, {WS_O}
s_add_u32 s56, s56, s55
s_xor_b32 s57, s56, 32768
s_add_u32 s58, s56, 4096
s_add_u32 s59, s57, 4096
s_mul_i32 s60, s23, 28672
s_lshl_b32 s55, s24, 11
s_add_u32 s60, s60, s55
s_add_u32 s60, s60, {WS_H}
s_lshl_b32 s61, s23, 12
s_lshl_b32 s55, s22, 9
s_add_u32 s61, s61, s55
s_and_b32 s55, s16, 1
s_lshl3_add_u32 s61, s55, s61
s_add_u32 s61, s61, {WS_S}
v_and_b32 v3, 0x1f0, v2
s_and_b32 s55, s23, 3
s_lshl_b32 s55, s55, 5
s_add_u32 s55, s55, s24
s_lshl_b32 s55, s55, 2
s_add_u32 s55, s55, {16*128}
v_mov_b32 v4, s55
v_min_u32 v5, 13, v1
v_lshlrev_b32 v5, 2, v5
s_lshl_b32 s62, s16, 7
s_add_u32 s62, s62, s25
s_add_u32 s62, s62, {16*128}
s_lshl2_add_u32 s55, s19, s16
s_mul_i32 s63, s55, 28672
s_add_u32 s63, s63, {WS_H}
s_lshl_b32 s64, s55, 12
s_add_u32 s64, s64, {WS_S}
s_lshl_b32 s55, s16, 5
s_add_u32 s55, s55, s20
s_lshl_b32 s55, s55, 2
s_add_u32 s55, s55, {20*128}
v_mov_b32 v14, s55
s_mul_i32 s55, s16, 7
s_lshr_b32 s55, s55, 1
v_and_b32 v7, 3, v1
v_add_u32 v7, s55, v7
v_bfe_u32 v13, v1, 2, 1
v_lshl_add_u32 v7, v13, 5, v7
v_lshlrev_b32 v7, 2, v7
s_lshl_b32 s65, s21, 8
s_add_u32 s65, s65, s25
s_add_u32 s65, s65, {20*128}
s_mul_i32 s66, s23, 114688
s_xor_b32 s67, s23, 1
s_mul_i32 s67, s67, 114688
s_mul_i32 s55, s16, {28*1024}
s_add_u32 s55, s55, {WS_H1}
s_add_u32 s66, s66, s55
s_add_u32 s67, s67, s55
v_lshrrev_b32 v250, 2, v2
s_lshl_b32 s55, s16, 8
v_add_u32 v251, s55, v250
s_and_b32 s55, s23, 3
s_lshl_b32 s55, s55, 8
v_add_u32 v250, s55, v250""".split('\n')
    for b in range(4): win += [f's_xor_b32 s{68+b}, s16, {b}', f's_lshl_b32 s{68+b}, s{68+b}, 11', f's_add_u32 s{68+b}, s{68+b}, s28']
    B1 = max(0, min(B1, 56 - w2n[0]))
    WS_ = knob('wsp', 55)
    for n, l in enumerate(win[:WS_]):
        if B1 and n*B1 // WS_ != (n-1)*B1 // WS_: w2l()
        e(l)
    e('s_cmp_eq_u32 s31, s29\ns_cselect_b32 s31, 1, 0\nv_mov_b32 v13, 0')
    if knob('nolocal', 0): e('s_mov_b32 s31, 0')
    stamp(e, 's2win')
    e(f"""s_cmp_lg_u32 s16, 0
s_cbranch_scc1 L_s2done
s_mov_b32 s26, {POLL_MAX}
{'s_branch L_s2poll' if knob('nh', 2) & 2 else ''}
L_s2hint:
buffer_load_dword v15, v13, s[12:15], s25 offen offset:128 sc1
s_sub_u32 s26, s26, 1
s_cbranch_scc1 L_s2done
s_waitcnt vmcnt(0)
v_cmp_gt_u32 vcc, 16, v15
s_cbranch_vccnz L_s2hint
L_s2poll:
buffer_load_dword v15, v13, s[12:15], s25 offen sc1
s_sub_u32 s26, s26, 1
s_cbranch_scc1 L_s2done
s_waitcnt vmcnt(0)
v_cmp_gt_u32 vcc, 16, v15
s_cbranch_vccnz L_s2poll
L_s2done:
s_waitcnt lgkmcnt(0)
s_barrier""")
    stamp(e, 's2done')
    def ol(a, ks): vm.op(f'buffer_load_dwordx4 {vr(AF+32*a+4*ks,4)}, v2, s[12:15], s{56 + a + (2 if ks >= 4 else 0)} offen offset:{(ks&3)*1024} sc1', f'O{a}{ks}')
    for ks in range(8): ol(1, ks)
    e('ds_read_b32 v157, v157 offset:8192\nds_read_b32 v158, v158 offset:8192\nds_read_b32 v159, v159 offset:8192')
    for ks in range(4): ol(0, ks)
    e('\n'.join(win2 + win[WS_:]))
    for ks in range(4, 8): ol(0, ks)
    def rwr(s, A, q): return f'ds_write_b128 v{12-s}, {vr(A+16*s+4*q,4)} offset:{(3-s)*4096 + q*1024}'
    def rrd(s, A, q): return f'ds_read_b128 {vr(A+16*s+4*q,4)}, v12 offset:{(3-s)*4096 + q*1024}'
    def m3(a, f, ks):
        acc = vr(ACC3 + 16*(2*a+f), 16)
        e(f'{MF} {acc}, {vr(WOF+8*ks+4*f,4)}, {vr(AF+32*a+4*ks,4)}, ' + (acc if (ks or (a, f) == (0, 0)) else '0'))
    B2 = knob('b2', 8)
    for ks in range(8):
        vm.wait(f'O1{ks}'); m3(1, 1, ks); m3(1, 0, ks)
        if ks >= 8 - B2: w2l()
    LAG = 2
    for ks in range(8):
        vm.wait(f'O0{ks}'); m3(0, 1, ks)
        if 1 <= ks < 5: e(rwr(3 - (ks-1)//2, ACC3, 2*((ks-1) % 2)))
        if ks >= LAG: m3(0, 0, ks - LAG)
        if 1 <= ks < 5: e(rwr(3 - (ks-1)//2, ACC3, 2*((ks-1) % 2) + 1))
        if ks == knob('p3b', 5):
            e('s_waitcnt lgkmcnt(0)\ns_barrier')
            for q in range(4): e(rrd(3, ACC3, q) + '\n' + rrd(2, ACC3, q))
    stamp(e, 'p3mf')
    e('s_waitcnt lgkmcnt(0)')
    for ks in range(8 - LAG, 8):
        m3(0, 0, ks)
        for r in range(4*(ks - 8 + LAG), 4*(ks - 7 + LAG)): e(f'v_add_f32 v{ACC3+32+r}, v{ACC3+32+r}, v{ACC3+48+r}')
    for q in range(4):
        e(rwr(1, ACC3, q))
        for r in range(8 + 2*q, 10 + 2*q): e(f'v_add_f32 v{ACC3+32+r}, v{ACC3+32+r}, v{ACC3+48+r}')
    for p in range(8): e(f'v_pk_add_f32 {vr(ACC3+2*p,2)}, {vr(ACC3+2*p,2)}, {vr(ACC3+32+2*p,2)}')
    e('s_waitcnt lgkmcnt(0)\ns_barrier')
    for q in range(4): e(rrd(1, ACC3, q))
    def dual(lines, tag, lab):
        e(f's_cmp_lg_u32 s31, 0\ns_cbranch_scc0 {lab}_s')
        for l in lines: vm.op(l, tag)
        e(f'{lab}_d:')
        slow.append(f'{lab}_s:\ns_nop 1\n' + '\n'.join(l + ' sc1' for l in lines) + f'\ns_nop 1\ns_branch {lab}_d')
    for q in range(4):
        e(f's_waitcnt lgkmcnt({3-q})')
        for p in (2*q, 2*q+1):
            e(f'v_pk_add_f32 {vr(ACC3+2*p,2)}, {vr(ACC3+2*p,2)}, {vr(ACC3+16+2*p,2)}')
            e(f'v_cvt_pk_bf16_f32 v{16+p}, v{ACC3+2*p}, v{ACC3+2*p+1}')
    dual([f'buffer_store_dwordx4 {vr(16+4*t,4)}, v2, s[12:15], s60 offen offset:{1024*t}' for t in range(2)], 'hst', 'L_h')
    e(f'v_pk_mul_f32 v[26:27], {vr(ACC3,2)}, {vr(ACC3,2)}\nv_pk_add_f32 v[24:25], {vr(ACC3,2)}, {vr(ACC3+2,2)}\nv_pk_fma_f32 v[26:27], {vr(ACC3+2,2)}, {vr(ACC3+2,2)}, v[26:27]')
    for p in range(2, 8):
        e(f'v_pk_add_f32 v[24:25], v[24:25], {vr(ACC3+2*p,2)}\nv_pk_fma_f32 v[26:27], {vr(ACC3+2*p,2)}, {vr(ACC3+2*p,2)}, v[26:27]')
    e("""v_add_f32 v24, v24, v25
v_add_f32 v25, v26, v27
v_mov_b32 v26, v24
v_mov_b32 v27, v25
v_permlane32_swap_b32 v24, v26
v_permlane32_swap_b32 v25, v27
v_pk_add_f32 v[24:25], v[24:25], v[26:27]""")
    dual(['buffer_store_dwordx2 v[24:25], v3, s[12:15], s61 offen'], 'hst', 'L_s')
    stamp(e, 'p3st')
    w2l(knob('b3', 0))
    for p in range(8): e(f'v_pk_add_f32 {vr(224+2*p,2)}, {vr(144+2*p,2)}, {vr(ACC3+2*p,2)}')
    HF, ACC4, WF, STT = 16, 128, 192, 208
    def w1rd(dst, s, b, k='v'):
        base = WA + b + (4 if s >= 16 else 0); off = (s & 15)*4096
        return [f'ds_read_b64_tr_b16 {vr(dst+2*rd,2,k)}, v{base} offset:{off + rd*1024}' for rd in range(2)]
    T2 = knob('t2', 2)
    mlist = []; n2 = 0
    for s in range(28):
        mlist += [(s, 0), (s, 1)]
        if T2 and s % T2 == T2 - 1: mlist.append((n2, 2)); n2 += 1
    M1 = len(mlist)
    mlist += [(s, 2) for s in range(n2, 28)]
    M2 = len(mlist)
    mlist += [(s, 3) for s in range(28)]
    M = len(mlist)
    def wreg(m): return ('v', WF + 4*(m & 7)) if (m & 7) < 4 else ('a', 240 + 4*((m & 7) - 4))
    def rds(m):
        s, b = mlist[m]; k, r = wreg(m)
        return w1rd(r, s, b, k)
    LD = 6
    for m in range(LD): e('\n'.join(rds(m)))
    vm.wait('hst')
    dual(['buffer_store_dword v8, v4, s[12:15], s25 offen'], 'f3', 'L_f3')
    stamp(e, 'p3end')
    def poll(lab, addr, so):
        e(f"""s_mov_b32 s26, {POLL_MAX}
{lab}:
buffer_load_dword v13, {addr}, s[12:15], {so} offen sc1
s_sub_u32 s26, s26, 1
s_cbranch_scc1 {lab}_x
s_waitcnt vmcnt(0)
v_cmp_ne_u32 vcc, 1, v13
s_cbranch_vccnz {lab}
{lab}_x:""")
    poll('L_p3', 'v5', 's62')
    stamp(e, 's3done')
    def hl(s):
        if s and s % 4 == 0: e('s_add_u32 s63, s63, 4096')
        vm.op(f'buffer_load_dwordx4 {vr(HF+4*s,4)}, v2, s[12:15], s63 offen offset:{(s&3)*1024} sc1', f'h{s}')
    HP = knob('hp', 8)
    for s in range(HP): hl(s)
    stl = [(lambda p=p: vm.op(f'buffer_load_dwordx4 {vr(STT+4*p,4)}, v2, s[12:15], s64 offen offset:{1024*p} sc1', 'st')) for p in range(4)]
    vq = [(lambda s=s: hl(s)) for s in range(HP, 28)]
    vq = vq[:3] + stl[:1] + vq[3:6] + stl[1:2] + vq[6:9] + stl[2:3] + vq[9:12] + stl[3:] + vq[12:]
    st = [lambda: vm.wait('st'),
          f'v_and_b32 v{STT+12}, v6, v{STT+12}', f'v_and_b32 v{STT+13}, v6, v{STT+13}', f'v_and_b32 v{STT+14}, v6, v{STT+14}', f'v_and_b32 v{STT+15}, v6, v{STT+15}']
    for k in range(1, 8): st += [f'v_add_f32 v{STT}, v{STT}, v{STT+2*k}', f'v_add_f32 v{STT+1}, v{STT+1}, v{STT+2*k+1}']
    tmp = Asm(); ln_stats(tmp, STT, STT+1, STT+2, STT+3, STT+4, STT+5)
    st += [i.text for i in tmp.ins]
    XB = STT + 8
    st += f"""v_sub_f32 v{STT+3}, 0, v{STT+3}
v_and_b32 v{STT+3}, v6, v{STT+3}
v_and_b32 v{STT+5}, v6, v{STT+5}
v_and_b32 v{STT+6}, 0xffff0000, v{STT+3}
v_sub_f32 v{STT+7}, v{STT+3}, v{STT+6}
v_cvt_pk_bf16_f32 v{XB}, v{STT+6}, v{STT+6}
v_and_b32 v{STT+6}, 0xffff0000, v{STT+5}
v_cvt_pk_bf16_f32 v{XB+1}, v{STT+7}, v{STT+6}
v_sub_f32 v{STT+7}, v{STT+5}, v{STT+6}
v_cvt_pk_bf16_f32 v{XB+2}, v{STT+7}, 0
v_mov_b32 v{XB+3}, 0
v_mul_f32 v248, v{STT+4}, v{STT+4}""".split('\n')
    def epi(b):
        A = ACC4 + 16*b; l = []
        for p in range(8):
            l += [f'v_mul_f32 v{A+2*p}, v{A+2*p}, abs(v{A+2*p})', f'v_mul_f32 v{A+2*p+1}, v{A+2*p+1}, abs(v{A+2*p+1})',
                  f'v_cvt_pk_bf16_f32 v{A+p}, v{A+2*p}, v{A+2*p+1}', f'v_pk_max_i16 v{A+p}, v{A+p}, 0']
            if p % 4 == 3:
                l.append(lambda t=p//4: vm.op(f'buffer_store_dwordx4 {vr(A+4*t,4)}, v2, s[12:15], s{68+b} offen offset:{1024*t} sc1', 'h1st'))
        return l
    def xk(b): e(f'{MF} {vr(ACC4+16*b,16)}, {ar(224+4*b,4)}, {vr(XB,4)}, {vr(ACC4+16*b,16)}')
    for m, (s, b) in enumerate(mlist):
        if m == M1 - 26: queue += st
        if m == M1: stamp(e, 'p4a')
        if m == M1 + 3: queue += epi(0) + epi(1)
        if m == M2 + 3: queue += epi(2)
        lg = f'lgkmcnt({2*max(0, min(LD-2, M-2-m))})' if m % 2 == 0 else ''
        vm.wait(f'h{s}', lg)
        acc = vr(ACC4 + 16*b, 16); k, r = wreg(m)
        first = (s == 0 and b < 3)
        if (s, b) == (0, 3): e(f'{MF} {acc}, {ar(236,4)}, {vr(XB,4)}, 0')
        e(f'{MF} {acc}, {vr(r,4,k)}, {vr(HF+4*s,4)}, ' + ('0' if first else acc))
        if m + LD < M: e('\n'.join(rds(m + LD)))
        if m % 2 == 1 and vq: vq.pop(0)(); drainq(1)
        elif m % 2 == 1 and w2n[0] < 56: w2l()
        else: drainq(3 if m % 2 else 2)
        if m == M1 - 1: drainq(99); xk(0); xk(1); xk(2)
    stamp(e, 'p4mf')
    drainq(999)
    w2l(56)
    queue += epi(3); drainq(999)
    e('s_barrier\nds_write_b32 v251, v248')
    vm.wait('h1st')
    dual(['buffer_store_dword v8, v14, s[12:15], s25 offen'], 'f4', 'L_f4')
    stamp(e, 'p4end')
    poll('L_p4', 'v7', 's65')
    stamp(e, 's4done')
    GF, ACC5, RING = 16, 144, 32
    GP = knob('gp', 12)
    s5 = [(a, ks) for a in (1, 0) for ks in range(28)]
    def gl(n):
        a, ks = s5[n]
        if ks and ks % 4 == 0: e(f's_add_u32 s{66+a}, s{66+a}, 4096')
        vm.op(f'buffer_load_dwordx4 {vr(GF+4*(n%RING),4)}, v2, s[12:15], s{66+a} offen offset:{(ks&3)*1024} sc1', f'g{n}')
    def m5(a, f, ks):
        acc = vr(ACC5 + 16*(2*a+f), 16); n = ks + 28*(1-a)
        e(f'{MF} {acc}, {ar(8*ks+4*f,4)}, {vr(GF+4*(n%RING),4)}, ' + (acc if ks else '0'))
    for n in range(GP): gl(n)
    for n, (a, ks) in enumerate(s5):
        if n == 28: stamp(e, 'p5a')
        vm.wait(f'g{n}')
        m5(a, 1, ks)
        if n + GP < 56: gl(n + GP)
        if a == 0 and 21 <= ks < 25:
            for r in range(4*(ks-21), 4*(ks-21)+2): e(f'v_add_f32 v{ACC5+32+r}, v{ACC5+32+r}, v{ACC5+48+r}\nv_fmac_f32 v{224+r}, v248, v{ACC5+32+r}')
        if a == 1: m5(1, 0, ks)
        elif ks >= LAG: m5(0, 0, ks - LAG)
        if a == 0:
            if 3 <= ks < 11: e(rwr(2 + (ks-3)//4, ACC5, (ks-3) % 4))
            if ks == 14: e('s_waitcnt lgkmcnt(0)\ns_barrier\nds_read_b32 v248, v250')
            if 15 <= ks < 19: e(rrd(2, ACC5, ks-15) + '\n' + rrd(3, ACC5, ks-15))
            if ks == 20: e('s_waitcnt lgkmcnt(0)')
            if 21 <= ks < 25:
                for r in range(4*(ks-21)+2, 4*(ks-21)+4): e(f'v_add_f32 v{ACC5+32+r}, v{ACC5+32+r}, v{ACC5+48+r}\nv_fmac_f32 v{224+r}, v248, v{ACC5+32+r}')
    stamp(e, 'p5mf')
    for ks in range(28 - LAG, 28): m5(0, 0, ks)
    for q in range(4): e(rwr(1, ACC5, q))
    for p in range(8): e(f'v_pk_fma_f32 {vr(224+2*p,2)}, {vr(ACC5+2*p,2)}, v[248:249], {vr(224+2*p,2)} op_sel_hi:[1,0,1]')
    e('s_waitcnt lgkmcnt(0)\ns_barrier')
    for q in range(4): e(rrd(1, ACC5, q))
    OF = ['', ' sc1', ' nt', ' sc0 sc1'][knob('of', 0)]
    for t in range(2):
        e(f's_waitcnt lgkmcnt({2-2*t})')
        for p in range(4*t, 4*t+4):
            e(f'v_pk_fma_f32 {vr(224+2*p,2)}, {vr(ACC5+16+2*p,2)}, v[248:249], {vr(224+2*p,2)} op_sel_hi:[1,0,1]')
            e(f'v_cvt_pk_bf16_f32 v{16+p}, v{224+2*p}, v{225+2*p}')
        e(f'buffer_store_dwordx4 {vr(16+4*t,4)}, v0, s[40:43], s27 offen offset:{32*t}' + OF)
    stamp(e, 'p5st')
    stamp_out(e)
    e('s_endpgm')
    for x in slow: e(x)
    e('L_fallback:\ns_mov_b32 s30, 1\ns_waitcnt vmcnt(0) lgkmcnt(0)\ns_barrier')
    for j in range(16):
        kl(j, 0); kl(j, 1); vl(j, 0); vl(j, 1)
        if j == 7: e('s_waitcnt vmcnt(0)')
    e('s_waitcnt vmcnt(0)')
    MXB = SCR
    d = vr(S, 16)
    for s in range(4):
        e(f'v_mov_b32 v{128+s}, 0xff800000')
        for j in range(16):
            e(f'{MF} {d}, {ar(16*j,4)}, {vr(Q+8*s,4)}, 0\n{MF} {d}, {ar(16*j+4,4)}, {vr(Q+8*s+4,4)}, {d}')
            for p in range(8): e(f'v_max3_f32 v{128+s}, v{S+2*p}, v{S+2*p+1}, v{128+s}')
        e(f"""v_mov_b32 v13, v{128+s}
v_permlane32_swap_b32 v{128+s}, v13
v_max_f32 v{128+s}, v{128+s}, v13
s_xor_b32 s50, s16, {3-s}
s_lshl_b32 s50, s50, 9
s_add_u32 s50, s50, {MXB}
v_and_b32 v13, 31, v1
v_lshlrev_b32 v13, 4, v13
v_add_u32 v{132+s}, s50, v13
s_lshl_b32 s50, s16, 2
v_add_u32 v13, s50, v{132+s}
ds_write_b32 v13, v{128+s}""")
    e('s_waitcnt lgkmcnt(0)\ns_barrier')
    for s in range(4): e(f'ds_read_b128 {vr(S+4*s,4)}, v{132+s}')
    e('s_waitcnt lgkmcnt(0)\ns_barrier')
    for s in range(4):
        e(f'v_max3_f32 v{128+s}, v{S+4*s}, v{S+1+4*s}, v{S+2+4*s}\nv_max_f32 v{128+s}, v{128+s}, v{S+3+4*s}')
    for s in range(4):
        for r in range(16): e(f'v_sub_f32 v{NM+r}, 0, v{128+s}\nv_mov_b32 v{O+16*s+r}, 0')
        for j in range(16):
            e(f'{MF} {d}, {ar(16*j,4)}, {vr(Q+8*s,4)}, {vr(NM,16)}\n{MF} {d}, {ar(16*j+4,4)}, {vr(Q+8*s+4,4)}, {d}')
            for r in range(16): e(f'v_exp_f32 v{S+r}, v{S+r}')
            for t in range(2): e(f'{SM} {vr(O+16*s,16)}, {ar(16*j+8+4*t,4)}, {vr(S+8*t,8)}, v7')
            e('s_nop 7')
        e('s_nop 7')
    for k in range(12): e(pwr(k//4, k % 4))
    for n in range(W2A): e('\n'.join(w2_txt(n)))
    e('s_waitcnt vmcnt(0) lgkmcnt(0)\ns_barrier')
    for k in range(12): e(prd(k//4, k % 4))
    e('s_branch L_combine')
    e('L_end:')

def build1(e, path):
    head = open(f'cdna_kernels/{NAME}.s.ref').read().split('\n')
    name = NAME + '_kernel'
    out = head[:12] + (['; stamps: ' + ' '.join(ST_NAMES)] if STAMP else []) + ['; @launch grid=(256,1,1) block=(256,1,1) lds=163840', '.amdgcn_target "amdgcn-amd-amdhsa--gfx950"\n.text']
    e.fix('-v' in sys.argv)
    out.append(f'.globl {name}\n.p2align 8\n.type {name},@function\n{name}:')
    out.append(e.text() + '    s_endpgm')
    out.append(f""".section .rodata,"a"
.p2align 6
.amdhsa_kernel {name}
  .amdhsa_next_free_vgpr 512
  .amdhsa_next_free_sgpr 102
  .amdhsa_accum_offset 256
  .amdhsa_group_segment_fixed_size 0
  .amdhsa_kernarg_size 88
  .amdhsa_user_sgpr_count 2
  .amdhsa_user_sgpr_kernarg_segment_ptr 1
  .amdhsa_system_sgpr_workgroup_id_x 1
.end_amdhsa_kernel""")
    open(path, 'w').write('\n'.join(out) + '\n')

if __name__ == '__main__':
    e = Asm(); kernel(e)
    outs = [a for a in sys.argv[1:] if a.endswith('.s')]
    build1(e, outs[0] if outs else 'v7.s')
```

```python
import re

REG = re.compile(r'^(-?)(abs\()?\|?([vas])(?:\[(\d+):(\d+)\]|(\d+))\|?\)?$')
TRANS = ('v_exp_f32', 'v_log_f32', 'v_rcp_f32', 'v_rsq_f32', 'v_sqrt_f32', 'v_sin_f32', 'v_cos_f32', 'v_rcp_iflag_f32')


def regs_of(op):
    op = op.strip()
    if op in ('vcc', 'vcc_hi', 'vcc_lo'):
        return {('s', 'vcc')}
    if op in ('exec', 'exec_lo', 'exec_hi'):
        return {('s', 'exec')}
    if op == 'm0':
        return {('s', 'm0')}
    m = REG.match(op)
    if not m:
        return set()
    k = m.group(3)
    if m.group(6) is not None:
        return {(k, int(m.group(6)))}
    return {(k, i) for i in range(int(m.group(4)), int(m.group(5)) + 1)}


class Ins:
    def __init__(self, text):
        self.text = text
        t = text.split(';')[0].strip()
        self.label = t.endswith(':')
        self.directive = t.startswith('.') and not self.label
        self.empty = (t == '')
        self.op = ''
        self.w = set(); self.r = set()
        self.kind = None
        self.states = 1
        if self.label or self.directive or self.empty:
            self.states = 0
            return
        parts = t.split(None, 1)
        op = self.op = parts[0]
        rest = parts[1] if len(parts) > 1 else ''
        ops = [o.strip() for o in rest.split(',')]
        last = ops[-1].split()
        mods = last[1:] if last else []
        if last:
            ops[-1] = last[0]
        self.ops = ops; self.mods = mods
        R = [regs_of(o) for o in ops]
        U = lambda l: set().union(*l) if l else set()
        if op == 's_nop':
            self.kind = 'nop'; self.states = int(ops[0], 0) + 1
        elif op.startswith('v_mfma') or op.startswith('v_smfmac'):
            self.kind = 'mfma'
            self.passes = 8 if '32x32' in op else 4
            self.w = R[0]
            self.ab = R[1] | R[2]
            if op.startswith('v_smfmac'):
                self.c = R[0]; self.ab |= R[3]
            else:
                self.c = R[3]
            self.r = self.ab | self.c
        elif op.startswith('v_'):
            self.kind = 'valu'
            base = op.replace('_e32', '').replace('_e64', '')
            self.trans = base in TRANS
            self.dl = base.startswith('v_dot')
            if base.startswith('v_permlane') and 'swap' in base:
                self.w = R[0] | R[1]; self.r = R[0] | R[1]
            elif base.startswith(('v_add_co', 'v_sub_co', 'v_addc_co', 'v_subb_co', 'v_subrev_co')):
                self.w = R[0] | R[1]; self.r = U(R[2:])
            else:
                self.w = R[0]; self.r = U(R[1:])
                if base.startswith(('v_fmac', 'v_dot2c', 'v_writelane')) or 'UNUSED_PRESERVE' in t:
                    self.r |= R[0]
            self.sel = ('sdwa' in op) or any(m.startswith('op_sel:') and not base.startswith('v_pk') for m in mods)
            self.dpp = any(m.startswith(('row_', 'quad_perm', 'wave_')) for m in mods) or 'dpp' in op
        elif op.startswith('ds_'):
            self.kind = 'ds'
            if op.startswith(('ds_read', 'ds_bpermute', 'ds_permute', 'ds_swizzle')):
                self.w = R[0]; self.r = U(R[1:])
            else:
                self.r = U(R)
        elif op.startswith(('buffer_', 'global_')):
            self.kind = 'vmem'
            self.lds = ('lds' in mods) or ('_lds_' in op)
            self.wide = False
            if op.startswith('buffer_wbl2'):
                pass
            elif self.lds:
                self.r = U(R) | {('s', 'm0')}
            elif 'load' in op:
                self.w = R[0]; self.r = U(R[1:])
            elif 'atomic' in op:
                self.r = U(R)
                if 'sc0' in mods: self.w = R[0]
            else:
                self.r = U(R)
                if op.endswith(('x3', 'x4')):
                    self.wide = True
                    self.data = R[0] if op.startswith('buffer_') else R[1]
        elif op.startswith('s_'):
            self.kind = 'salu'
            if op.startswith(('s_cmp', 's_cbranch', 's_branch', 's_waitcnt', 's_barrier', 's_endpgm', 's_setprio', 's_sleep', 's_bitcmp')):
                self.r = U(R)
            else:
                self.w = R[0] if R else set(); self.r = U(R[1:])
                if 'saveexec' in op: self.w |= {('s', 'exec')}
        else:
            raise ValueError('unknown instruction: ' + text)


def vec(s):
    return {x for x in s if x[0] in 'va'}


def sca(s):
    return {x for x in s if x[0] == 's'}


def need(p, c):
    n = 0
    if p.kind == 'mfma':
        big = {8: 12, 4: 8}[p.passes]
        if c.kind == 'mfma':
            if p.w & c.ab: n = max(n, big)
            if p.w & c.c and not (p.w == c.c and p.passes == c.passes): n = max(n, big - 2)
            if p.w & c.w and not (p.w & c.c): n = max(n, big - 2 if p.w != c.w else 0)
        elif c.kind in ('valu', 'ds', 'vmem'):
            if p.w & (c.r | c.w): n = max(n, big)
            if c.kind == 'valu' and (p.c & c.w): n = max(n, {8: 7, 4: 3}[p.passes])
    elif p.kind == 'valu':
        vw = vec(p.w); sw = sca(p.w)
        if c.kind == 'mfma' and vw & c.r: n = max(n, 3 if p.dl else 2)
        if c.kind == 'valu':
            if p.trans and not c.trans and vw & c.r: n = max(n, 1)
            if p.dl and vw & (c.r | c.w):
                same_c = (c.op == p.op and not (vw & set().union(*[regs_of(o) for o in c.ops[1:3]])))
                if not same_c: n = max(n, 3)
            if c.op.startswith('v_permlane') and vw & c.r: n = max(n, 2)
            if c.op.startswith(('v_readlane', 'v_readfirstlane')) and vw & c.r: n = max(n, 1)
            if c.dpp and vw & c.r: n = max(n, 2)
            if p.sel and vw & (c.r | c.w): n = max(n, 1)
            if sw & c.r:
                n = max(n, 4 if c.op.startswith(('v_readlane', 'v_writelane')) else 2)
        if c.kind in ('ds', 'vmem') and p.dl and vw & c.r: n = max(n, 3)
        if c.kind in ('ds', 'vmem') and p.trans and vw & c.r: n = max(n, 1)
        if c.kind == 'vmem' and sw & c.r: n = max(n, 5)
        if c.kind == 'salu' and sw & c.r and not c.op.startswith('s_cbranch'): n = max(n, 1)
    elif p.kind == 'vmem':
        if p.wide and p.data & c.w: n = max(n, 2)
    elif p.kind == 'salu':
        if ('s', 'm0') in p.w and ((c.kind == 'vmem' and (c.lds or ('s', 'm0') in c.r)) or (c.kind == 'ds' and 'addtid' in c.op)): n = max(n, 1)
    return n


class Asm:
    def __init__(self):
        self.ins = []
        self.nops = 0

    def __call__(self, text):
        for line in text.split('\n'):
            if line.strip():
                self.ins.append(Ins(line.strip()))

    def fix(self, verbose=False):
        out = []
        for c in self.ins:
            if c.kind is not None and c.kind != 'nop':
                dist = 0; short = 0
                for p in reversed(out):
                    if dist >= 12: break
                    if p.kind is not None and p.kind != 'nop':
                        short = max(short, need(p, c) - dist)
                    dist += p.states
                if short > 0:
                    out.append(Ins(f's_nop {short-1}'))
                    self.nops += 1
                    if verbose: print('nop', short, 'before', c.text)
            out.append(c)
        self.ins = out

    def text(self):
        return '\n'.join((i.text if (i.label or i.directive) else '    ' + i.text) for i in self.ins) + '\n'


def vr(b, n=1, k='v'):
    return f'{k}{b}' if n == 1 else f'{k}[{b}:{b+n-1}]'


def ar(b, n=1):
    return vr(b, n, 'a')


def sr(b, n=1):
    return vr(b, n, 's')


def interleave(main, fill, per=None):
    out = []
    n = len(main); k = len(fill); j = 0
    for i, m in enumerate(main):
        out.append(m)
        upto = (k * (i + 1) + n - 1) // n if per is None else min(k, j + per[i])
        out += fill[j:upto]; j = upto
    out += fill[j:]
    return out


class VM:
    def __init__(self, e):
        self.e = e; self.seq = []; self.done = 0

    def op(self, text, tag):
        self.e(text); self.seq.append(tag)

    def count(self, tag):
        idx = [i for i, t in enumerate(self.seq) if t == tag]
        assert idx, tag
        return idx[-1], len(self.seq) - 1 - idx[-1]

    def wait(self, tag, extra=''):
        i, n = self.count(tag)
        if i < self.done:
            if extra: self.e('s_waitcnt ' + extra)
            return
        self.done = i + 1
        self.e(f's_waitcnt vmcnt({min(n, 63)}) {extra}')

    def drain(self):
        self.done = len(self.seq)
```

```python
import sys, math, struct
from asmlib import *

NAME = 'sequential_preLN__mha_block__dense_activation_squared_relu__prompt'
MF = 'v_mfma_f32_32x32x16_bf16'
MH = 'v_mfma_f32_16x16x32_bf16'
SM = 'v_smfmac_f32_32x32x32_bf16'
def f32(x): return '0x%08x' % struct.unpack('<I', struct.pack('<f', x))[0]
QSCALE = math.log2(math.e) / math.sqrt(28.0)

VP, ONE, TTP = 28672, 57344, 57600
WS_O, WS_H, WS_S, WS_H1, WS_WF, WS_FL, WS_ST = 0x600000, 0x800000, 0x9E0000, 0xA40000, 0x1200000, 0x1400000, 0x1500000
WS_F1, WS_F2, HINT = WS_FL + 0x10000, WS_FL + 0x14000, 0x8000
WS_BYTES = 0x1600000
WFP = 144*2048
POLL_MAX = 1 << 18
STAMP = '--stamp' in sys.argv
def knob(name, d):
    for a in sys.argv:
        if a.startswith(name + '='): return int(a.split('=')[1])
    return d
ST_NAMES = ['start p1go p1st s1sig s1done a0 comb end', 'comb s2sig s2done p3end s3done p4end s4done end',
            'p1go p1end p1st s1sig s1win s1done a0 aB', 's2sig s2win s2done p3mf p3st p3end s3done p4a',
            's3done p4a p4mf p4end s4done p5a p5mf p5st', 'a0 a6 a16 a28 a38 aB a58 comb',
            'start p1ld p1w p1go c1 c3 c5 p1end', 's3done h0 h5 h10 h18 h27 p4mf p4end', 's4done g0 g8 g16 g28 g40 p5mf p5st', 's2done o0 o4 o8 o12 p3mf p3st p3end'][knob('st', 0)].split()

def stamp(e, name):
    if STAMP and name in ST_NAMES:
        i = ST_NAMES.index(name)
        e(('s_memtime' if '--cyc' in sys.argv else 's_memrealtime') + f' s[{84+2*i}:{85+2*i}]')
def stamp_out(e):
    if not STAMP: return
    if knob('dwg', -1) >= 0:
        stamp(e, 'end')
        e(f'''s_cmp_lg_u32 s2, {knob('dwg', 0)}
s_cbranch_scc1 L_dgx
s_waitcnt lgkmcnt(0)
s_mov_b32 s10, 100000
L_dgl:
s_sub_u32 s10, s10, 1
s_cbranch_scc1 L_dgx
s_memrealtime s[8:9]
s_waitcnt lgkmcnt(0)
s_sub_u32 s8, s8, s{84+2*knob('dst', 0)}
s_cmp_lt_u32 s8, 5000
s_cbranch_scc1 L_dgl
L_dgx:''')
        return
    e('s_waitcnt vmcnt(0)')
    stamp(e, 'end')
    e('s_waitcnt lgkmcnt(0)')
    e(f's_lshl_b32 s3, s2, 2\ns_add_u32 s3, s3, s16\ns_lshl_b32 s3, s3, 6\ns_add_u32 s3, s3, {WS_ST}\nv_mov_b32 v1, 0')
    for i in range(8):
        e(f'v_mov_b32 v0, s{84+2*i}\nbuffer_store_dword v0, v1, s[12:15], s3 offen offset:{4*i}')

def swap23(d, s, t):
    return f'''v_and_b32 v{d}, 0x33, v{s}
v_and_b32 v{t}, 4, v{s}
v_lshl_or_b32 v{d}, v{t}, 1, v{d}
v_lshrrev_b32 v{t}, 1, v{s}
v_and_or_b32 v{d}, v{t}, 4, v{d}'''
def halves_sum(r, t):
    return f'v_mov_b32 v{t}, v{r}\nv_permlane32_swap_b32 v{r}, v{t}\nv_add_f32 v{r}, v{r}, v{t}'
def ln_stats(vs, vq, t, mean, rstd, sig=None):
    s = halves_sum(vs, t) + '\n' + halves_sum(vq, t) + f'''
v_mul_f32 v{mean}, {f32(1/448)}, v{vs}
v_mul_f32 v{t}, v{mean}, v{mean}
v_mov_b32 v{rstd}, {f32(1/448)}
v_fma_f32 v{t}, v{vq}, v{rstd}, -v{t}
v_max_f32 v{t}, 0, v{t}
v_add_f32 v{t}, {f32(1e-5)}, v{t}
v_rsq_f32 v{rstd}, v{t}'''
    if sig is not None: s += f'\nv_mul_f32 v{sig}, v{t}, v{rstd}'
    return s

class Fill:
    def __init__(self, e): self.e = e; self.q = []
    def add(self, text):
        if not isinstance(text, str): self.q.append(text); return
        for l in text.split('\n'):
            l = l.strip()
            if not l: continue
            if l.startswith(('s_cselect', 's_addc')): self.q[-1] += '\n' + l
            else: self.q.append(l)
    def mark(self, tag): self.q.append(('mark', tag))
    def drain(self, k):
        while k > 0 and self.q:
            x = self.q.pop(0)
            if isinstance(x, tuple): continue
            if isinstance(x, str): self.e(x)
            else: x()
            k -= 1
    def need(self, tag):
        while ('mark', tag) in self.q: self.drain(1) if self.q[0] != ('mark', tag) else self.q.pop(0)

def kernel(e):
    vm = VM(e); slow = []
    XR, WQ, CSB, QX, UB = 57344, 114688, 143360, 147456, 155648
    SCR = 114688
    MAP = knob('map', 4); M16 = knob('m16', 1); H1M = knob('h1m', 2)
    Q, O, S, WOF, NM = 16, 48, 112, 160, 144
    def emit(l, tag):
        for x in l:
            if x.startswith(('buffer', 'global')): vm.op(x, tag)
            else: e(x)
    stamp(e, 'start')
    e("""s_cmp_ge_u32 s2, 256
s_cbranch_scc1 L_end
s_load_dwordx2 s[4:5], s[0:1], 0
s_load_dwordx2 s[8:9], s[0:1], 8
s_load_dwordx2 s[12:13], s[0:1], 80
s_load_dwordx2 s[40:41], s[0:1], 16
s_load_dwordx2 s[42:43], s[0:1], 48
s_load_dwordx2 s[60:61], s[0:1], 32
s_load_dwordx2 s[100:101], s[0:1], 72
s_getpc_b64 s[80:81]
L_pc0:
s_lshr_b32 s76, s2, 3
s_lshl_b32 s77, s76, 11
v_lshrrev_b32 v10, 4, v0
v_lshl_add_u32 v10, v10, 7, s77
v_min_u32 v10, L_fallback-L_pc0, v10""")
    vm.op('global_load_dword v31, v10, s[80:81]', 'T')
    e("""v_lshrrev_b32 v2, 6, v0
v_and_b32 v1, 63, v0
v_readfirstlane_b32 s16, v2
s_and_b32 s51, s2, 7""")
    lg = {2: 1, 4: 2, 8: 3}[MAP]
    e(f"""s_lshr_b32 s17, s51, {lg-1}
s_lshl_b32 s17, s17, {lg}
s_lshr_b32 s77, s76, {5-lg}
s_add_u32 s17, s17, s77        ; qb
s_and_b32 s18, s51, {MAP//2 - 1}
s_lshl_b32 s18, s18, {5-lg}
s_and_b32 s77, s76, {32//MAP - 1}
s_add_u32 s18, s18, s77        ; head
s_lshl2_add_u32 s79, s17, s16
s_mul_i32 s48, s79, {32*896}
s_mul_i32 s50, s16, {16*2688}
s_lshl_b32 s49, s18, 7
s_add_u32 s49, s49, s50
s_add_u32 s49, s49, 896
s_mul_i32 s52, s16, 12288
s_add_u32 s52, s52, {XR}
s_lshl_b32 s53, s16, 11
v_lshrrev_b32 v64, 3, v1
v_lshrrev_b32 v65, 4, v1
v_and_b32 v66, 7, v1
v_xor_b32 v67, v65, v66
v_mul_u32_u24 v68, 896, v64
v_lshl_add_u32 v2, v67, 4, v68
v_xor_b32 v3, 64, v2
v_add_u32 v3, 6144, v3
v_add_u32 v4, 12288, v2
v_add_u32 v5, 12288, v3
v_and_b32 v67, 1, v65
v_lshlrev_b32 v67, 2, v67
v_xor_b32 v69, v67, v66
v_mul_u32_u24 v67, 2688, v64
v_lshl_add_u32 v6, v69, 4, v67
v_add_u32 v7, {8*2688-1024}, v6
s_mov_b32 s6, {2048*896}
s_mov_b32 s7, 0x00020000
s_mov_b32 s11, 0x00020000
s_mov_b32 s14, {WS_BYTES}
s_mov_b32 s15, 0x00020000
s_mov_b32 m0, s53
v_mov_b32 v219, 0
s_cmp_lt_u32 s18, 14
s_cselect_b32 s10, {448*2688}, 0
s_waitcnt lgkmcnt(0)
s_cbranch_scc0 L_zero
L_zerod:""")
    e_zero = f"""L_zero:
s_lshl1_add_u32 s77, s17, s18
s_lshl_b32 s77, s77, 12
s_add_u32 s77, s77, {WS_FL - 14*4096}
v_lshlrev_b32 v70, 4, v0
v_mov_b32 v216, 0
v_mov_b32 v217, 0
v_mov_b32 v218, 0
buffer_store_dwordx4 v[216:219], v70, s[12:15], s77 offen sc1
s_branch L_zerod"""
    stamp(e, 'p1ld')
    def wload(it):
        return ([f's_add_u32 m0, s53, {it*8192}', f's_add_u32 s49, s49, {64*2688}'] if it else []) + \
               [f'buffer_load_dwordx4 v{6+j}, s[8:11], s49 offen offset:{1024*j} lds' for j in range(2)]
    def xload(it):
        return [f's_add_u32 m0, s52, {(it%3)*4096}'] + (['s_add_u32 s48, s48, 128'] if it else []) + \
               [f'buffer_load_dwordx4 v{2+i}, s[4:7], s48 offen offset:{1024*i} lds' for i in range(4)]
    emit(wload(0) + xload(0), 0); emit(wload(1) + xload(1), 1)
    e('s_cmp_lt_u32 s18, 14\ns_cbranch_scc0 L_rdyadd\nL_rdyaddd:')
    e_zero += """
L_rdyadd:
s_waitcnt vmcnt(12)
s_barrier
s_cmp_lg_u32 s16, 0
s_cbranch_scc1 L_rdyaddd
v_mov_b32 v70, 1
s_mov_b64 exec, 1
global_atomic_add v219, v70, s[100:101] sc1
s_mov_b64 exec, -1
s_branch L_rdyaddd"""
    e("""v_and_b32 v73, 31, v1
v_lshrrev_b32 v71, 1, v73
v_lshrrev_b32 v72, 5, v1
v_xor_b32 v71, v71, v72
v_and_b32 v71, 7, v71
v_lshlrev_b32 v71, 4, v71
v_lshl_add_u32 v71, v73, 7, v71
v_add_u32 v71, s52, v71
s_lshl_b32 s77, s16, 5
v_xor_b32 v9, s77, v71
v_xor_b32 v10, 32, v9
v_xor_b32 v11, 64, v9
v_xor_b32 v12, 0x60, v9
v_bfe_u32 v76, v1, 2, 2
v_lshl_add_u32 v74, v72, 3, v76
v_and_b32 v75, 16, v1
v_lshlrev_b32 v75, 1, v75
v_and_b32 v71, 1, v1
v_lshl_add_u32 v75, v71, 4, v75
v_bfe_u32 v71, v1, 1, 1
v_lshl_add_u32 v75, v71, 3, v75
v_lshl_add_u32 v13, v74, 7, v75
v_bfe_u32 v71, v1, 3, 1
v_lshl_add_u32 v13, v71, 6, v13
v_add_u32 v13, s53, v13""")
    for n in range(1, 8): e(f'v_xor_b32 v{13+n}, {2048*(n >> 1) + 64*(n & 1)}, v13')
    e('v_mov_b32 v25, 0x3f803f80\nv_mov_b32 v26, 0\nv_mov_b32 v27, 0\nv_mov_b32 v28, 0\nv_mov_b32 v29, 0')
    F = Fill(e); park = []
    def prk(dst, src): F.add(f'v_accvgpr_write_b32 a{len(park)}, v{src}'); park.append(dst)
    F.add(f"""s_mov_b32 s36, s8
s_mov_b32 s37, s9
s_mov_b32 s38, {448*2688}
s_mov_b32 s39, 0x00020000
s_and_b32 s28, s18, 1
s_lshr_b32 s77, s18, 1
s_mul_i32 s77, s77, 7
s_mul_i32 s78, s28, 3
s_add_u32 s78, s78, s77
s_lshl4_add_u32 s50, s78, s50
s_lshr_b32 s54, s53, 1
s_add_u32 s54, s54, {WQ}
v_lshrrev_b32 v70, 2, v1
v_mul_u32_u24 v71, 2688, v70
v_and_b32 v77, 3, v1
v_lshl_add_u32 v8, v77, 4, v71""")
    F.mark('wq')
    F.add(swap23(64, 73, 71))
    F.add(f"""v_lshlrev_b32 v254, 4, v1
v_lshlrev_b32 v71, 4, v64
v_lshl_add_u32 v71, v72, 9, v71
s_lshl_b32 s77, s78, 9
v_add_u32 v71, s77, v71""")
    prk(3, 71)
    F.add(f"""v_mul_u32_u24 v71, 7168, v72
v_lshl_add_u32 v240, v64, 4, v71
v_add_u32 v241, 14336, v240
s_mul_i32 s77, s18, 448
s_add_u32 s77, s77, {VP}
v_add_u32 v66, s77, v240
v_add_u32 v67, s77, v241
v_mov_b32 v78, {WS_BYTES}
v_mov_b32 v71, {ONE}
v_cmp_eq_u32 vcc, 28, v73
v_cndmask_b32 v71, v78, v71, vcc
v_cmp_gt_u32 vcc, 28, v73
v_cndmask_b32 v66, v71, v66, vcc
v_cndmask_b32 v67, v71, v67, vcc""")
    prk(4, 66); prk(248, 67)
    F.add(f"""v_lshlrev_b32 v242, 3, v73
v_add_u32 v242, {CSB}, v242
s_lshl_b32 s77, s16, 8
v_add_u32 v243, s77, v242
s_mul_i32 s58, s79, {TTP}
s_lshl_b32 s57, s18, 12
s_lshl_b32 s77, s18, 10
s_add_u32 s77, s77, {VP - 7*1024}
s_cmp_lt_u32 s18, 7
s_cselect_b32 s57, s57, s77
s_add_u32 s57, s57, s58
s_add_u32 s58, s58, {ONE}
s_cmp_eq_u32 s18, 13
s_cselect_b32 s58, s58, {WS_BYTES}
v_min_u32 v244, 0x70, v254
s_lshl4_add_u32 s3, s79, s18
s_lshl_b32 s3, s3, 11
s_add_u32 s3, s3, {WS_O}
v_lshl_add_u32 v21, v74, 6, v75
v_add_u32 v21, s54, v21
v_xor_b32 v22, 1024, v21
v_xor_b32 v23, 2048, v21
v_xor_b32 v24, 3072, v21
v_mov_b32 v30, 0""")
    for r in (218, 221, 222, 223, 226, 227, 230, 231, 234, 235): F.add(f'v_mov_b32 v{r}, 0')
    for r in range(236, 240): F.add(f'v_mov_b32 v{r}, v25')
    F.add(f"""s_lshl2_add_u32 s76, s2, s16
s_mul_i32 s77, s76, 9363
s_lshr_b32 s77, s77, 16
s_mul_i32 s78, s77, 7
s_sub_u32 s78, s76, s78
s_mul_i32 s56, s78, {WFP}
s_lshl_b32 s76, s77, 11
s_add_u32 s56, s56, s76
s_add_u32 s56, s56, {WS_WF}
s_cmp_lt_u32 s77, 144
s_cselect_b32 s56, s56, {WS_BYTES}
s_lshr_b32 s76, s77, 1
s_mul_i32 s55, s76, 28
s_sub_u32 s55, s55, {56*28}
s_lshl_b32 s76, s76, 5
s_mov_b32 s34, {448*896}
s_mov_b32 s35, 0x00020000
s_cmp_lt_u32 s77, 112
s_cselect_b32 s55, s76, s55
s_cselect_b32 s32, s42, s40
s_cselect_b32 s33, s43, s41
s_cselect_b32 s34, {1792*896}, s34
s_mul_i32 s55, s55, 896
s_lshl_b32 s78, s78, 7
s_add_u32 s55, s55, s78
s_and_b32 s77, s77, 1
s_mul_i32 s77, s77, {64 if M16 else 16*896}
s_add_u32 s55, s55, s77""")
    if M16:
        F.add(f"""v_mul_u32_u24 v250, 896, v70
v_lshl_add_u32 v250, v77, 4, v250
v_add_u32 v251, {16*896 - 1024}, v250
v_lshl_add_u32 v252, v65, 3, v76
v_lshlrev_b32 v252, 6, v252
v_lshl_add_u32 v252, v77, 4, v252
s_add_u32 s77, s53, {UB}
v_add_u32 v252, s77, v252
v_add_u32 v253, 8, v252""")
    else:
        F.add(f"""v_lshl_add_u32 v250, v69, 4, v68
v_add_u32 v251, 6144, v250
v_add_u32 v252, {UB}, v13
v_xor_b32 v253, 64, v252""")
    F.add(f"""s_bfe_u32 s20, s2, 0x40003     ; j
s_lshr_b32 s19, s2, 7
s_lshl1_add_u32 s19, s51, s19  ; rb
s_lshl_b32 s25, s19, 12
s_add_u32 s25, s25, {WS_FL}
s_getreg_b32 s76, hwreg(HW_REG_XCC_ID, 0, 4)
s_lshl_b32 s77, s76, 2
s_lshl_b32 s29, 14, s77
s_lshl_b32 s77, 1, s77
s_cmp_lt_u32 s76, 8
s_cselect_b32 s77, s77, 0
s_cmp_lt_u32 s20, 14
s_cselect_b32 s77, s77, 0
v_lshlrev_b32 v79, 7, v1
s_lshl_b32 s76, s17, 7
s_add_u32 s76, s76, {WS_F1}
v_lshl_add_u32 v255, v79, 4, s76
v_add_u32 v66, {WS_F2 - WS_F1}, v255
v_mov_b32 v67, 1
s_add_u32 s78, s25, {24*128}
v_writelane_b32 v66, s78, 8
v_writelane_b32 v67, s77, 8""")
    prk(14, 66); prk(8, 67)
    F.add(f"""s_and_b32 s21, s20, 1          ; th
s_lshr_b32 s22, s20, 1         ; fb
s_lshl1_add_u32 s23, s19, s21
s_lshr_b32 s76, s16, 1
s_and_b32 s77, s22, {knob('flip', 1)}
s_xor_b32 s76, s76, s77
s_lshl1_add_u32 s23, s23, s76
s_and_b32 s76, s16, 1
s_lshl1_add_u32 s24, s22, s76
s_lshl_b32 s77, s76, {11 if M16 else 10}
v_add_u32 v66, s77, v254
s_lshl_b32 s65, s23, 12
s_lshl3_add_u32 s65, s76, s65
s_lshl_b32 s77, s22, 9
s_add_u32 s65, s65, s77
s_add_u32 s65, s65, {WS_S}
s_mul_i32 s27, s23, {32*896}
s_lshl_b32 s77, s24, 11
s_add_u32 s64, s27, s77
s_add_u32 s64, s64, {WS_H}     ; h tile
s_lshl_b32 s76, s24, 6
s_add_u32 s27, s27, s76""")
    prk(171, 66)
    if M16:
        F.add("""v_and_b32 v66, 15, v1
v_mul_u32_u24 v67, 896, v66
v_lshlrev_b32 v71, 4, v65
v_add_u32 v67, v67, v71
v_lshlrev_b32 v66, 4, v66
v_lshl_add_u32 v66, v65, 9, v66""")
        prk(172, 66)
    else:
        F.add('v_mul_u32_u24 v67, 896, v73\nv_lshlrev_b32 v71, 4, v72\nv_add_u32 v67, v67, v71')
    F.add(f"""v_add_u32 v71, s76, v71
s_lshl_b32 s76, s20, 8
s_lshl_b32 s77, s16, 6
s_add_u32 s77, s77, s76
v_lshl_add_u32 v66, v64, 1, s77""")
    prk(0, 67); prk(160, 71); prk(161, 66)
    F.add(f"""s_mul_i32 s77, s16, {16*3584}
s_add_u32 s77, s77, s76
s_add_u32 s60, s60, s77
s_addc_u32 s61, s61, 0
s_lshl_b32 s59, s16, 12
v_cmp_gt_u32 vcc, 32, v1
s_cmp_eq_u32 s28, 0
s_cselect_b32 s76, -1, 0
v_cndmask_b32 v66, 0, -1, vcc
v_not_b32 v67, v66
v_or_b32 v67, s76, v67
s_not_b32 s76, s76
v_or_b32 v71, s76, v66""")
    prk(6, 66); prk(13, 67); prk(5, 71)
    F.add(f's_add_u32 s76, s53, {QX}\nv_add_u32 v66, s76, v254'); prk(15, 66)
    for s in range(4):
        F.add(f's_xor_b32 s76, s16, {3-s}\ns_mul_i32 s76, s76, 12288\ns_add_u32 s76, s76, {SCR}\nv_add_u32 v66, s76, v254'); prk(9 + s, 66)
    F.add("""v_lshlrev_b32 v66, 2, v65
v_and_b32 v67, 15, v1
v_xor_b32 v66, v66, v67
v_mul_u32_u24 v67, 3584, v65
v_lshl_add_u32 v66, v66, 4, v67""")
    prk(165, 66)
    F.add("""v_lshl_add_u32 v66, v74, 8, v75
v_xor_b32 v67, s16, v76
v_lshl_add_u32 v66, v67, 6, v66""")
    prk(173, 66)
    F.add(f"""v_add_u32 v66, s64, v79
s_and_b32 s76, s65, 0xffffff80
s_sub_u32 s76, s76, {16*128}
v_add_u32 v67, s76, v79
v_cmp_gt_u32 vcc, 16, v1
v_cndmask_b32 v66, v67, v66, vcc
v_cmp_gt_u32 vcc, 20, v1
v_cndmask_b32 v66, v78, v66, vcc
s_lshl_b32 s51, s51, 11
s_add_u32 s76, s51, {WS_F2 - 48*128}
v_add_u32 v67, s76, v79
v_cmp_gt_u32 vcc, 48, v1
v_cndmask_b32 v66, v67, v66, vcc
v_writelane_b32 v66, s78, 20
s_add_u32 s51, s51, {WS_F1}
s_bfe_u32 s76, s2, 0x20003
s_lshl2_add_u32 s76, s76, s16
s_lshl_b32 s76, s76, 11
v_and_b32 v67, 0x780, v79
v_add_u32 v71, s76, v67
v_min_u32 v71, L_fallback-L_pc1, v71""")
    prk(241, 66); prk(169, 67); prk(170, 71); prk(240, 79)
    F.add(f"""s_lshl_b32 s76, s17, 12
s_add_u32 s76, s76, {WS_FL}
s_cmp_eq_u32 s16, 0
s_cselect_b32 s76, s76, {WS_BYTES}
v_writelane_b32 v78, s76, 0
v_mul_u32_u24 v66, 12288, v77
v_add_u32 v66, {SCR}, v66
v_lshlrev_b32 v67, 2, v73
v_sub_u32 v67, v67, v254""")
    prk(174, 78); prk(175, 66); prk(176, 67)
    F.add(f"""s_and_b32 s76, s17, {knob('kvm', 1)}
s_lshl1_add_u32 s76, s16, s76
s_mul_i32 s46, s76, {8*TTP}
s_xor_b32 s76, s76, 1
s_mul_i32 s47, s76, {8*TTP}
s_mul_i32 s44, s22, {WFP}
s_add_u32 s44, s44, {WS_WF}
s_cmp_lt_u32 s20, 14
s_cselect_b32 s44, s44, {WS_BYTES}
s_mul_i32 s45, s16, {28*2048}
s_add_u32 s45, s45, s44
s_lshl2_add_u32 s44, s59, s44
s_add_u32 s44, s44, {112*2048} ; Wo fragments of this wave
s_lshl_b32 s62, s23, 15
s_lshl1_add_u32 s62, s59, s62
s_add_u32 s62, s62, {WS_O}
s_xor_b32 s63, s62, 32768
s_lshl_b32 s66, s16, 7
s_add_u32 s66, s66, s25
s_lshl2_add_u32 s76, s19, s16
s_mul_i32 s67, s76, 28672
s_add_u32 s67, s67, {WS_H}
s_lshl_b32 s68, s76, 12
s_add_u32 s68, s68, {WS_S}
s_mul_i32 s28, s76, 114688
s_lshl_b32 s77, s20, 13
s_add_u32 s28, s28, s77
s_add_u32 s28, s28, {WS_H1}
s_add_u32 s72, s28, s53
s_xor_b32 s73, s72, 2048
s_xor_b32 s74, s72, 4096
s_xor_b32 s75, s72, 6144
s_lshl_b32 s69, s21, 8
s_add_u32 s69, s69, s25
s_mul_i32 s76, s16, {28*1024}
s_add_u32 s76, s76, {WS_H1}
s_mul_i32 s70, s23, 114688
s_add_u32 s70, s70, s76
s_xor_b32 s77, s23, 1
s_mul_i32 s71, s77, 114688
s_add_u32 s71, s71, s76
s_mov_b32 s30, 0""")
    F.drain(knob('f0', 130))
    stamp(e, 'p1w')
    ACC, QA, WF, XF = 32, 64, 80, 104
    XM, RM, CF, ON = 216, 220, 224, 236
    def reads(s, ty):
        it, kk = divmod(s, 4); b = s % 3
        l = [f'ds_read_b128 {vr(XF+4*s,4)}, v{9+kk} offset:{(it%3)*4096}']
        if ty != 'l':
            for f in range(2):
                for rd in range(2):
                    l.append(f'ds_read_b64_tr_b16 {vr(WF+8*b+4*f+2*rd,2)}, v{13+2*kk+f} offset:{it*8192 + rd*512}')
        return l
    def xdots(s):
        for r in range(4):
            x = XF + 4*s + r
            e(f'v_dot2c_f32_bf16 v26, v{x}, v25\nv_dot2c_f32_bf16 v27, v{x}, v{x}')
    wq = [[f's_add_u32 m0, s54, {it*4096}'] + ([f's_add_u32 s50, s50, {64*2688}'] if it else []) + ['buffer_load_dwordx4 v8, s[36:39], s50 offen lds'] for it in range(7)]
    WQS = [int(c) for c in str(knob('wqs', 0)) if c != '0']
    WQE = knob('wqe', 7)
    early = {c - 1: wq[n] for n, c in enumerate(WQS)}
    unit_dma = [f's_add_u32 m0, s53, {UB}', 'buffer_load_dwordx4 v250, s[32:35], s55 offen lds', 'buffer_load_dwordx4 v251, s[32:35], s55 offen offset:1024 lds']
    rdy = 'global_load_dword v245, v219, s[100:101] sc1'
    def rdycheck(lab, hint):
        e(f"""s_cmp_lg_u32 s16, 0
s_cbranch_scc1 {lab}x
v_cmp_gt_u32 vcc, 32, v245
v_mov_b32 v31, 1
s_cbranch_vccnz {lab}p
{lab}d:""")
        if hint: e(f's_mov_b32 s76, {HINT}\ns_mov_b64 exec, 0xff\nbuffer_atomic_add v31, v255, s[12:15], s76 offen sc1\ns_mov_b64 exec, -1')
        e(f'{lab}x:')
        slow.append(f"""{lab}p:
s_mov_b32 s26, {POLL_MAX}
{lab}l:
global_load_dword v245, v219, s[100:101] sc1
s_sub_u32 s26, s26, 1
s_cbranch_scc1 {lab}d
s_waitcnt vmcnt(0)
v_cmp_gt_u32 vcc, 32, v245
s_cbranch_vccnz {lab}l
s_branch {lab}d""")
    xm_frag = f"""v_cmp_gt_u32 vcc, 32, v1
v_sub_f32 v247, 0, v247
v_cndmask_b32 v247, 0, v247, vcc
v_and_b32 v26, 0xffff0000, v247
v_sub_f32 v27, v247, v26
v_cvt_pk_bf16_f32 v{XM}, v26, v26
v_cvt_pk_bf16_f32 v{XM+1}, v27, 0"""
    e('s_cmp_lt_u32 s18, 7\ns_cbranch_scc1 L_kk\ns_cmp_lt_u32 s18, 14\ns_cbranch_scc0 L_light')
    vm0 = (list(vm.seq), vm.done); q0 = list(F.q)
    def variant(ty, lab):
        if lab: e(f'{lab}:')
        vm.seq, vm.done = list(vm0[0]), vm0[1]; F.q = list(q0)
        per = (len(F.q) + 5) // 6
        lt = wq[len(WQS):WQE]
        vm.wait(0); e('s_barrier')
        stamp(e, 'p1go')
        e('\n'.join(reads(0, ty) + reads(1, ty)))
        emit(wload(2), 2)
        for s in range(28):
            it, kk = divmod(s, 4); b = s % 3
            if kk == 0: stamp(e, f'c{it}')
            x = vr(XF+4*s, 4)
            mf = []
            for f in range(2):
                w = vr(WF+8*b+4*f, 4); a = vr(ACC+16*f, 16); c = a if s else '0'
                mf.append(f'{MF} {a}, {w}, {x}, {c}' if ty == 'k' else f'{MF} {a}, {x}, {w}, {c}')
            rd = reads(s+2, ty) if s < 26 else []
            if s < 18:
                if kk < 2: L = xload(it + 2); tag = it + 2; ld = {0: (L[:3], L[3:4]), 1: (L[4:5], L[5:])}[kk]
                else: L = wload(it + 3); tag = it + 3; ld = {2: ([], L[:3]), 3: (L[3:], [])}[kk]
            else:
                tag = 'wq'; F.need('wq')
                ld = ([], lt.pop(0) if lt else [])
            if s < 27: e(f's_waitcnt lgkmcnt({5 if s < 26 else 0})')
            if kk == 2:
                for r in range(4):
                    for f in range(2): e(f'v_dot2c_f32_bf16 v{28+f}, v{WF+8*b+4*f+r}, v25')
                for s2 in range(max(0, s-3), s + (2 if s == 26 else 1)): xdots(s2)
                if s < 26:
                    F.drain(per if s < 22 else 999)
                    vm.wait(it + 1); e('s_barrier')
                else:
                    for f in range(2): e(halves_sum(28+f, 246))
                    e('ds_write_b64 v243, v[28:29]')
            def spread(m, sal, rest):
                e(m)
                if sal and not sal[0].startswith('buffer'): e(sal[0]); sal = sal[1:]
                e('\n'.join(rest)); emit(sal, tag)
            spread(mf[0], ld[0], rd[:3])
            if s == 26: e(ln_stats(26, 27, 246, 247, 248))
            if s == 27: e(xm_frag)
            spread(mf[1], ld[1], rd[3:])
            if it in early and kk == 3: F.need('wq'); emit(early[it], 'wq')
            if s == 17: vm.op(rdy, 'rdy')
            if s == 26:
                e('s_waitcnt lgkmcnt(0)\ns_barrier')
                for w in range(4): e(f'ds_read_b64 {vr(QA+2*w,2)}, v242 offset:{256*w}')
        assert not lt and not F.q
        stamp(e, 'p1end')
        if ty == 'v':
            e(f"""v_cndmask_b32 v246, 0, v248, vcc
v_and_b32 v26, 0xffff0000, v246
v_sub_f32 v27, v246, v26
v_cvt_pk_bf16_f32 v{RM}, v26, v27
{MF} v[88:103], {vr(RM,4)}, {vr(ON,4)}, 0""")
        e('s_waitcnt lgkmcnt(0)')
        for f in range(2):
            e(f"""v_add_f32 v{QA+f}, v{QA+f}, v{QA+2+f}
v_add_f32 v{QA+4+f}, v{QA+4+f}, v{QA+6+f}
v_add_f32 v{QA+f}, v{QA+f}, v{QA+4+f}
v_and_b32 v26, 0xffff0000, v{QA+f}
v_sub_f32 v27, v{QA+f}, v26
v_cvt_pk_bf16_f32 v{CF+4*f}, v26, v27
v_lshrrev_b32 v{CF+4*f+1}, 16, v{QA+f}""")
            a = vr(ACC+16*f, 16); w = vr(CF+4*f, 4)
            e(f'{MF} {a}, {w}, {vr(XM,4)}, {a}' if ty == 'k' else f'{MF} {a}, {vr(XM,4)}, {w}, {a}')
        vm.op(f'buffer_store_dwordx4 {vr(ON,4)}, v244, s[12:15], s58 offen sc1', 'kv')
        for f in range(2):
            A = ACC + 16*f
            for p in range(8):
                if ty == 'k': e(f'v_pk_mul_f32 {vr(A+2*p,2)}, {vr(A+2*p,2)}, v[248:249] op_sel_hi:[1,0]')
                else: e(f'v_pk_mul_f32 {vr(A+2*p,2)}, {vr(A+2*p,2)}, {vr(88+2*p,2)}')
                e(f'v_cvt_pk_bf16_f32 v{A+p}, v{A+2*p}, v{A+2*p+1}')
                if p % 4 == 3:
                    t = p // 4
                    if ty == 'k': vm.op(f'buffer_store_dwordx4 {vr(A+4*t,4)}, v254, s[12:15], s57 offen offset:{2048*f + 1024*t} sc1', 'kv')
                    else: vm.op(f'buffer_store_dwordx4 {vr(A+4*t,4)}, v{240+t}, s[12:15], s57 offen offset:{512*f} sc1', 'kv')
        vm.wait('rdy'); rdycheck(f'L_r{ty}', True)
        if ty == 'v': e('s_branch L_q')
    def light():
        e(e_zero)
        e('L_light:')
        vm.seq, vm.done = list(vm0[0]), vm0[1]; F.q = list(q0)
        F.drain(9999)
        e(f'v_mov_b32 v255, {WS_BYTES}')
        stamp(e, 'p1go')
        for it in range(7):
            stamp(e, f'c{it}')
            vm.wait(it)
            for kk in range(4): e('\n'.join(reads(4*it + kk, 'l')))
            if it + 2 <= 6: emit(xload(it + 2), it + 2)
            if it == 5:
                for l in wq[:WQE] + [[rdy]]: emit(l, 'wq')
            e('s_waitcnt lgkmcnt(0)')
            for kk in range(4): xdots(4*it + kk)
        e(ln_stats(26, 27, 246, 247, 248)); e(xm_frag)
        stamp(e, 'p1end')
        e('s_waitcnt vmcnt(0)')
        rdycheck('L_rl', False)
        e('s_branch L_q')
    variant('v', None); light(); variant('k', 'L_kk')
    e('L_q:')
    stamp(e, 'p1st')
    for l in wq[WQE:]: emit(l, 'wq2')
    emit(unit_dma, 'wq2')
    vm.wait('wq'); e('s_barrier')
    def qrd(s, dst=None):
        it, kk = divmod(s, 4)
        if dst is None: dst = ACC + 4*(s & 7)
        return [f'ds_read_b64_tr_b16 {vr(dst+2*rd,2)}, v{21+kk} offset:{it*4096 + rd*256}' for rd in range(2)]
    QS = knob('qs', 5 if WQE == 7 else 3)
    assert (3 <= WQE <= 4 and QS <= WQE) or WQE == 7
    def s1signal():
        vm.wait('kv')
        e("""s_barrier
s_cmp_lg_u32 s16, 0
s_cbranch_scc1 L_s1b
s_mov_b64 exec, 0xff
buffer_atomic_add v31, v255, s[12:15], 0 offen sc1
s_mov_b64 exec, -1
L_s1b:""")
        stamp(e, 's1sig')
    def unit_out(r):
        for f in range(2):
            for rd in range(2): e(f'ds_read_b64_tr_b16 {vr(r+4*f+2*rd,2)}, v{252+f} offset:{rd*(256 if M16 else 512)}')
        e('s_waitcnt lgkmcnt(0)')
        for f in range(2): vm.op(f'buffer_store_dwordx4 {vr(r+4*f,4)}, v2, s[12:15], s56 offen offset:{1024*f} sc1', 'ust')
    lateprk = [n for n, d in enumerate(park) if XF <= d < XF + 112]
    F.add(f'v_mul_f32 v26, {f32(QSCALE)}, v248\nv_mov_b32 v2, v254')
    for n, d in enumerate(park):
        if n not in lateprk: F.add(f'v_accvgpr_read_b32 v{d}, a{n}')
    F.add(f"""v_xor_b32 v249, {3*2048}, v15
v_xor_b32 v250, {2*2048}, v15
v_xor_b32 v251, {1*2048}, v15
v_mov_b32 v{RM}, 0
v_mov_b32 v7, 0xdddd
s_mov_b32 s8, s60
s_mov_b32 s9, s61
s_cmp_lt_u32 s20, 14
s_cselect_b32 s10, {16*3584}, 0
s_mov_b32 s34, 3584
s_mov_b32 s38, 896
s_mov_b32 s42, {2048*896}
s_mov_b32 s43, 0x00020000""")
    late_fill = '\n'.join(f'v_accvgpr_read_b32 v{park[n]}, a{n}' for n in lateprk) + '\n' + \
                '\n'.join(f'v_add_u32 v{165+i}, {i*(4*3584-1024)}, v165' for i in range(1, 4)) + '\n' + \
                '\n'.join(f'v_xor_b32 v{161+b}, {64*b}, v161' for b in range(1, 4))
    cs_fill = f"""v_add_f32 v96, v96, v97
v_add_f32 v98, v98, v99
v_add_f32 v30, v96, v98
v_and_b32 v28, 0xffff0000, v30
v_sub_f32 v29, v30, v28
v_cvt_pk_bf16_f32 v{CF+8}, v28, v29
v_lshrrev_b32 v{CF+9}, 16, v30"""
    def qcs(g0, g1, r0):
        n = g1 - g0
        for g in range(g0, g1): e('\n'.join(qrd(4*g, r0 + 4*(g - g0))))
        if n > 4:
            e(f's_waitcnt lgkmcnt({2*(n-4)})')
            for s in range(4*g0, 4*g0 + 4): e('\n'.join(qrd(s)))
            for r in range(16): e(f'v_dot2c_f32_bf16 v30, v{r0+r}, v25')
            e('s_waitcnt lgkmcnt(8)')
            for r in range(16, 4*n): e(f'v_dot2c_f32_bf16 v30, v{r0+r}, v25')
        else:
            for s in range(4*g0, 4*g0 + 3): e('\n'.join(qrd(s)))
            e('s_waitcnt lgkmcnt(6)')
            e('\n'.join(qrd(4*g0 + 3)))
            for r in range(4*n): e(f'v_dot2c_f32_bf16 v30, v{r0+r}, v25')
        if g1 == 7: e(halves_sum(30, 246) + '\nds_write_b32 v243, v30')
    qcs(0, WQE, 76 if WQE == 7 else 80)
    for g in range(7):
        for k in range(4):
            s = 4*g + k
            e(f's_waitcnt lgkmcnt({2*min(3, 27-s, (4*WQE-1-s) if g < WQE else 3)})')
            e(f'{MF} {vr(QA,16)}, {vr(ACC+4*(s&7),4)}, {vr(XF+4*s,4)}, ' + (vr(QA, 16) if s else '0'))
            if s + 4 < 28 and g + 1 != WQE: e('\n'.join(qrd(s+4)))
            F.drain(3 if g < 6 else 5)
        if g + 1 == QS: s1signal()
        if WQE < 7 and g + 1 == WQE:
            vm.wait('wq2'); e('s_barrier')
            unit_out(96); qcs(WQE, 7, 80)
        if g == (1 if WQE == 7 else WQE):
            e('s_barrier')
            for w in range(4): e(f'ds_read_b32 v{96+w}, v242 offset:{256*w}')
        if g == (3 if WQE == 7 else 5): F.add(cs_fill)
        if g == 4: F.add(late_fill)
        if WQE == 7 and g + 1 == knob('us', 6): vm.wait('wq2'); unit_out(80)
    F.drain(999)
    e(f"""{MF} {vr(QA,16)}, {vr(CF+8,4)}, {vr(XM,4)}, {vr(QA,16)}
s_load_dwordx2 s[32:33], s[0:1], 40
s_load_dwordx2 s[36:37], s[0:1], 56
s_load_dwordx2 s[40:41], s[0:1], 64
s_getpc_b64 s[80:81]
L_pc1:""")
    vm.op('global_load_dword v242, v170, s[80:81]', 'T')
    for s in (0, 2, 3): e(f'{MF} {vr(O+16*s,16)}, {vr(RM,4)}, {vr(RM,4)}, 0')
    w1n = [0]
    def w1set():
        it = w1n[0] // 4
        return [f's_add_u32 m0, s59, {it*16384}'] + ([f's_add_u32 s8, s8, {64*3584}\ns_addc_u32 s9, s9, 0'] if it else [])
    def w1l():
        i = w1n[0] % 4
        vm.op(f'buffer_load_dwordx4 v{165+i}, s[8:11], 0 offen offset:{1024*i} lds', 'W1'); w1n[0] += 1
    WB_ = knob('w1b', 0)
    for n in range(WB_):
        if n % 4 == 0: e('\n'.join(w1set()))
        w1l()
    for p in range(8):
        e(f'v_mul_f32 v{QA+2*p}, v26, v{QA+2*p}\nv_mul_f32 v{QA+2*p+1}, v26, v{QA+2*p+1}')
        e(f'v_cvt_pk_bf16_f32 v{Q+24+p}, v{QA+2*p}, v{QA+2*p+1}')
    e(f"""v_and_b32 v{Q+24}, v13, v{Q+24}
v_and_b32 v{Q+25}, v13, v{Q+25}
v_and_b32 v{Q+30}, v5, v{Q+30}
v_and_b32 v{Q+31}, v5, v{Q+31}
ds_write_b128 v15, {vr(Q+24,4)}
ds_write_b128 v15, {vr(Q+28,4)} offset:1024
{MF} {vr(O+16,16)}, {vr(RM,4)}, {vr(RM,4)}, 0
s_add_u32 s76, s51, {HINT}
s_mov_b32 m0, s46""")
    stamp(e, 's1win')
    def poll2(lab, addr, so_hint, so, n):
        e(f's_cmp_lg_u32 s16, 0\ns_cbranch_scc1 {lab}done\ns_mov_b32 s26, {POLL_MAX}')
        for l, x in ((lab + 'hint', so_hint), (lab + 'poll', so)):
            if x: e(f"""{l}:
buffer_load_dword v15, {addr}, s[12:15], {x} sc1
s_sub_u32 s26, s26, 1
s_cbranch_scc1 {lab}done
s_waitcnt vmcnt(0)
v_cmp_gt_u32 vcc, {n}, v15
s_cbranch_vccnz {l}""")
        e(f'{lab}done:\ns_waitcnt lgkmcnt(0)\ns_barrier')
    NH = knob('nh', 2)
    poll2('L_s1', 'v169', None if NH & 1 else 's76 offen', 's51 offen', 14)
    stamp(e, 's1done')
    def kvset(j): return f's_add_u32 m0, s{46 + (j >> 3)}, {(j & 7)*TTP}'
    def kl(j, t): vm.op(f'buffer_load_dwordx4 {ar(16*j+4*t,4)}, v3, s[12:15], m0 offen offset:{1024*t} sc1', f'K{j}')
    def vl(j, t): vm.op(f'buffer_load_dwordx4 {ar(16*j+8+4*t,4)}, v{248 if t else 4}, s[12:15], m0 offen sc1', f'V{j}')
    KV0 = knob('kv0', 2)
    for j in range(KV0):
        kl(j, 0); kl(j, 1); vl(j, 0); vl(j, 1); e(kvset(j + 1))
    for s in range(3):
        for t in range(2): e(f'ds_read_b128 {vr(Q+8*s+4*t,4)}, v{249+s} offset:{1024*t}')
    steps = [(s, j) for j in range(16) for s in range(3)] + [(3, j) for j in range(16)]
    N = len(steps)
    def qk(i, t):
        s, j = steps[i]; d = vr(S + 16*(i % 3), 16)
        return f'{MF} {d}, {ar(16*j+4*t,4)}, {vr(Q+8*s+4*t,4)}, ' + ('0' if t == 0 else d)
    def pv(i, t):
        s, j = steps[i]
        return f'{SM} {vr(O+16*s,16)}, {ar(16*j+8+4*t,4)}, {vr(S+16*(i%3)+8*t,8)}, v7'
    free, post = {}, {}
    def P(d, q, f): d.setdefault(q, []).append(f)
    WX = 2048 if M16 else 1024
    def wfrag(kind, n):
        g, r = divmod(n, 4)
        if M16: f, off, reg = r >> 1, (r & 1)*1024, 16*g + 4*r
        else: f, off, reg = r & 1, (r >> 1)*2048, 16*g + 4*r
        dst = vr(WOF + reg, 4) if kind == 'Wo' else ar(reg, 4)
        return (f's_add_u32 m0, s{44 if kind == "Wo" else 45}, {g*4096}', f'buffer_load_dwordx4 {dst}, v{252+f}, s[12:15], m0 offen offset:{off} sc1')
    w2n = [0]
    def w2l(n=1, setm=False):
        for _ in range(n):
            if w2n[0] >= 56: return
            a, b = wfrag('W2', w2n[0])
            if setm or w2n[0] % 4 == 0: e(a); setm = False
            vm.op(b, 'W2'); w2n[0] += 1
    def wfcheck():
        e('v_cmp_gt_u32 vcc, 16, v243\ns_lshr_b32 s26, vcc_hi, 16\ns_cbranch_scc1 L_wf\nL_wfd:')
        slow.append(f"""L_wf:
s_mov_b32 s26, {POLL_MAX}
L_wfp:
buffer_load_dword v243, v241, s[12:15], 0 offen sc1
s_sub_u32 s26, s26, 1
s_cbranch_scc1 L_wfd
s_waitcnt vmcnt(0)
v_cmp_gt_u32 vcc, 16, v243
s_nop 1
s_lshr_b32 s76, vcc_hi, 16
s_cbranch_scc1 L_wfp
s_branch L_wfd""")
    vq = []
    for j in range(KV0, 16):
        for n, (f, t) in enumerate(((kl, 0), (kl, 1), (vl, 0), (vl, 1))):
            vq.append(([kvset(j)] if n == 0 and j > KV0 else [], (lambda f=f, j=j, t=t: f(j, t)), 1))
    vq.append(([], lambda: vm.op('buffer_load_dword v243, v241, s[12:15], 0 offen sc1', 'T0'), 2))
    for t in range(2):
        if M16: vq.append(([f's_add_u32 m0, s27, {16*896*t}'], (lambda t=t: vm.op(f'buffer_load_dwordx4 {vr(224+4*t,4)}, v0, s[4:7], m0 offen', 'sm')), 1))
        else: vq.append((['s_mov_b32 m0, s27'] if t == 0 else [], (lambda t=t: vm.op(f'buffer_load_dwordx4 {vr(224+4*t,4)}, v0, s[4:7], m0 offen offset:{32*t}', 'sm')), 1))
    for t in range(1 if M16 else 2): vq.append(([], (lambda t=t: vm.op(f'buffer_load_dwordx4 {vr(232+4*t,4)}, v160, s[36:39], 0 offen offset:{32*t}', 'sm')), 1))
    for b in range(4): vq.append(([], (lambda b=b: vm.op(f'buffer_load_ushort v{244+b}, v{161+b}, s[32:35], 0 offen', 'sm')), 1))
    for n in range(WB_, 28):
        it = n // 4
        vq.append(((([f's_add_u32 s8, s8, {64*3584}\ns_addc_u32 s9, s9, 0'] if it else []) + [f's_add_u32 m0, s59, {it*16384}']) if n % 4 == 0 else [], w1l, 1))
    nchk = len(vq)
    for n in range(16):
        a, b = wfrag('Wo', n); vq.append(([a] if n % 4 == 0 else [], (lambda b=b: vm.op(b, 'Wo')), 1))
    if knob('t2', 1): vq.append(([], lambda: vm.op('buffer_load_dword v242, v241, s[12:15], 0 offen sc1', 'T'), 1))
    if H1M: vq.append((['s_mov_b32 m0, s28'], lambda: vm.op('buffer_load_dword v242, v240, s[12:15], m0 offen sc1', 'T'), knob('h1g', 8)))
    TL = knob('tl', 0); tail = []
    if TL: k = len(vq) - bool(H1M) - bool(knob('t2', 1)); tail = vq[k:]; vq = vq[:k]
    hs = 0
    def place(sal, f):
        if sal: P(free, 2*hs - 1, lambda x=sal[-1]: e(x))
        if len(sal) > 1: P(free, 2*hs, lambda x=sal[0]: e(x))
        P(post, 2*hs, f)
    for n, (sal, f, d) in enumerate(vq):
        if n == nchk: P(free, 2*hs - 3, lambda: vm.wait('T0')); P(post, 2*hs - 3, wfcheck)
        place(sal, f); hs += d
    hs = max(hs, 100)
    W2A = max(0, min(knob('w2a', 24), 126 - TL - hs)) // 4 * 4
    for n in range(W2A):
        a, b = wfrag('W2', n); place([a] if n % 4 == 0 else [], (lambda b=b: vm.op(b, 'W2'))); hs += 1
    for sal, f, d in tail: place(sal, f); hs += 1
    w2n[0] = W2A
    P(free, 2, lambda: vm.wait('V0'))
    for j in range(1, 16):
        if j < 6: P(free, 4*(3*j-1) - 2, (lambda j=j: vm.wait(f'V{j}')))
        elif j % 2 == 0: P(free, 4*(3*j-1) - 2, (lambda j=j: vm.wait(f'V{j+1}')))
    def pwr(s, q): return f'ds_write_b128 v{9+s}, {vr(O+16*s+4*q,4)} offset:{s*4096 + q*1024}'
    def prd(s, q): return f'ds_read_b128 {vr(O+16*s+4*q,4)}, v12 offset:{s*4096 + q*1024}'
    for k in range(12): P(post, 4*50 + 1 + 2*k, (lambda k=k: e(pwr(k//4, k % 4))))
    P(free, 4*59, lambda: vm.wait('W1', 'lgkmcnt(0)')); P(free, 4*59 + 2, lambda: e('s_barrier'))
    for k in range(12): P(post, 4*60 + k, (lambda k=k: e(prd(k//4, k % 4))))
    vm.wait('ust', 'lgkmcnt(0)')
    e(f"""s_barrier
s_cmp_lg_u32 s16, 0
s_cbranch_scc1 L_s1c
s_mov_b64 exec, 0x1ff
buffer_atomic_add v8, v14, s[12:15], 0 offen sc1
s_mov_b64 exec, -1
L_s1c:
v_mov_b32 v249, v173
v_add_u32 v254, 0x10000, v173
v_mov_b32 v250, v174
v_mov_b32 v251, v175
v_mov_b32 v5, v176
v_mov_b32 v252, v171
v_xor_b32 v253, {WX}, v171
v_mov_b32 v255, v{172 if M16 else 2}
v_mov_b32 v8, 1
v_mov_b32 v14, 0x3f803f80""")
    vm.wait('K0')
    stamp(e, 'a0')
    e(qk(0, 0)); e(qk(0, 1))
    for i in range(N):
        if i == 48: stamp(e, 'aB')
        if i: stamp(e, f'a{i}')
        b = S + 16*(i % 3)
        mf = [qk(i+1, 0) if i+1 < N else None, qk(i+1, 1) if i+1 < N else None, pv(i-1, 1) if i > 0 else None, pv(i, 0)]
        for sl in range(4):
            if mf[sl]: e(mf[sl])
            for f in free.get(4*i + sl, []) + post.get(4*i + sl, []): f()
            for r in range(4): e(f'v_exp_f32 v{b+4*sl+r}, v{b+4*sl+r}')
    e(pv(N-1, 1))
    if not NH & 2: vm.op('buffer_atomic_add v8, v250, s[12:15], 0 offen offset:128 sc1', 'sig')
    assert w1n[0] == 28
    e('L_combine:')
    stamp(e, 'comb')
    e('s_waitcnt lgkmcnt(0)')
    for r in range(16): e(f'v_add_f32 v{O+r}, v{O+r}, v{O+16+r}')
    for p in range(8): e(f'v_pk_add_f32 {vr(O+2*p,2)}, {vr(O+2*p,2)}, {vr(O+32+2*p,2)}')
    for p in [6, 0, 1, 2, 3, 4, 5, 7]:
        e(f'v_pk_add_f32 {vr(O+2*p,2)}, {vr(O+2*p,2)}, {vr(O+48+2*p,2)}')
        if p == 6: e(f'v_mov_b32 v13, v{O+12}\nv_mov_b32 v15, v{O+12}')
        if p == 1: e('v_permlane32_swap_b32 v13, v15')
        if p == 2: e('v_rcp_f32 v158, v15')
    for p in range(8):
        e(f'v_pk_mul_f32 {vr(O+2*p,2)}, {vr(O+2*p,2)}, v[158:159] op_sel_hi:[1,0]')
        e(f'v_cvt_pk_bf16_f32 v{O+p}, v{O+2*p}, v{O+2*p+1}')
        if p == 3: vm.op(f'buffer_store_dwordx4 {vr(O,4)}, v2, s[12:15], s3 offen sc1', 'Ost')
        if p == 6: e(f'v_and_b32 v{O+6}, v6, v{O+6}')
    e(f'v_and_b32 v{O+7}, v6, v{O+7}')
    vm.op(f'buffer_store_dwordx4 {vr(O+4,4)}, v2, s[12:15], s3 offen offset:1024 sc1', 'Ost')
    if knob('t1', 0): vm.op('buffer_load_dword v242, v241, s[12:15], 0 offen sc1', 'T')
    def csrd(dst, s):
        return [f'ds_read_b64_tr_b16 {vr(dst+2*rd,2)}, v{254 if s >= 16 else 249} offset:{(s & 15)*4096 + rd*1024}' for rd in range(2)]
    for k in range(4): e('\n'.join(csrd(S + 4*k, k)))
    e(f"""v_cmp_nle_f32 vcc, {f32(2.0**-40)}, v15
v_mov_b32 v156, 0
v_mov_b32 v157, 0
s_mov_b64 s[82:83], vcc
v_cmp_nge_f32 vcc, {f32(2.0**40)}, v15
v_add_u32 v15, v12, v5
s_or_b64 vcc, vcc, s[82:83]
s_cselect_b32 s26, 1, 0
s_andn2_b32 s26, s26, s30
v_mov_b32 v13, s26""")
    B0 = knob('b0', 8); CS = knob('cs', 4)
    def csgroup(g):
        if g < 7:
            for k in range(4): e('\n'.join(csrd(S + 16*(g & 1) + 4*k, 4*g + k)))
        if g <= CS: w2l(B0*g//CS - B0*(g-1)//CS)
        e(f's_waitcnt lgkmcnt({8 if g < 7 else 0})')
        for r in range(16): e(f'v_dot2c_f32_bf16 v{156 + (r & 1)}, v{S + 16*((g-1) & 1) + r}, v14')
    for g in range(1, CS + 1): csgroup(g)
    e('ds_write_b32 v12, v13')
    vm.wait('Ost', 'lgkmcnt(0)')
    e("""s_barrier
ds_read_b32 v13, v251
s_waitcnt lgkmcnt(0)
v_cmp_ne_u32 vcc, 0, v13
s_cbranch_vccnz L_fallback""")
    vm.op('buffer_atomic_add v8, v250, s[12:15], 0 offen sc1', 'sig2')
    stamp(e, 's2sig')
    e(f's_cmp_ge_u32 s20, 14\ns_cbranch_scc1 {"L_wb" if H1M == 3 or knob("wb", 0) else "L_end"}')
    B1 = knob('b1', 14)
    for g in range(CS + 1, 8):
        w2l(B1*(g-CS)//(7-CS) - B1*(g-CS-1)//(7-CS))
        csgroup(g)
    ACC3, AF = 80, 16
    WA = 240
    e('v_add_f32 v156, v156, v157')
    e(halves_sum(156, 157))
    e("""ds_write_b32 v15, v156 offset:8192
v_add_u32 v157, v11, v5
v_add_u32 v158, v10, v5
v_add_u32 v159, v9, v5
v_readlane_b32 s31, v243, 20
v_mov_b32 v13, 0
s_mov_b32 m0, s63""")
    for r in range(8): e(f'v_lshlrev_b32 v{ACC3+2*r}, 16, v{224+r}\nv_and_b32 v{ACC3+2*r+1}, 0xffff0000, v{224+r}')
    e('s_cmp_eq_u32 s31, s29\ns_cselect_b32 s31, 1, 0')
    if knob('nolocal', 0): e('s_mov_b32 s31, 0')
    stamp(e, 's2win')
    poll2('L_s2', 'v13', None if NH & 2 else 's25 offen offset:128', 's25 offen', 16)
    stamp(e, 's2done')
    def aoff(n): return ((n >> 1) & 1)*2048 + (n & 1)*256 if M16 else (n & 3)*1024
    def ol(a, n):
        if n % 4 == 0 and (a, n) != (1, 0): e(f's_add_u32 m0, s{62+a}, {n*1024}')
        vm.op(f'buffer_load_dwordx4 {vr(AF+32*a+4*n,4)}, v255, s[12:15], m0 offen offset:{aoff(n)} sc1', f'O{a}{n}')
    for n in range(8): ol(1, n)
    e('ds_read_b32 v157, v157 offset:8192\nds_read_b32 v158, v158 offset:8192\nds_read_b32 v159, v159 offset:8192')
    for n in range(4): ol(0, n)
    e(f"""v_and_b32 v3, 0x1f0, v2
s_and_b32 s76, s23, 3
s_lshl_b32 s77, s76, 5
s_add_u32 s77, s77, s24
s_lshl_b32 s77, s77, 2
v_mov_b32 v4, s77
v_min_u32 v5, 13, v1
v_lshlrev_b32 v5, 2, v5
s_lshl_b32 s77, s16, 5
s_add_u32 s77, s77, s20
s_lshl_b32 s77, s77, 2
v_mov_b32 v14, s77
s_mul_i32 s77, s16, 7
s_lshr_b32 s77, s77, 1
v_and_b32 v7, 3, v1
v_add_u32 v7, s77, v7
v_bfe_u32 v13, v1, 2, 1
v_lshl_add_u32 v7, v13, 5, v7
v_lshlrev_b32 v7, 2, v7
v_lshrrev_b32 v250, 2, v2
s_lshl_b32 s77, s16, 8
v_add_u32 v251, s77, v250
{'v_and_b32 v250, 60, v250' if M16 else ''}
s_lshl_b32 s76, s76, 8
v_add_u32 v250, s76, v250
s_waitcnt lgkmcnt(0)""")
    for b in range(4):
        e(f"""v_and_b32 v13, 0xffff0000, v{156+b}
v_sub_f32 v15, v{156+b}, v13
v_cvt_pk_bf16_f32 v15, v13, v15
v_lshrrev_b32 v13, 16, v13
v_lshl_or_b32 v13, v{244+b}, 16, v13
v_accvgpr_write_b32 a{224+4*b}, v15
v_accvgpr_write_b32 a{225+4*b}, v13
v_accvgpr_write_b32 a{226+4*b}, v{244+b}
v_accvgpr_write_b32 a{227+4*b}, 0""")
    for r in range(4 if M16 else 8): e(f'v_lshlrev_b32 v{144+2*r}, 16, v{232+r}\nv_and_b32 v{145+2*r}, 0xffff0000, v{232+r}')
    for b in range(4): e(f'v_xor_b32 v{WA+b}, {64*b}, v249\nv_xor_b32 v{WA+4+b}, {64*b}, v254')
    for n in range(4, 8): ol(0, n)
    def rwr(s, A, q): return f'ds_write_b128 v{12-s}, {vr(A+16*s+4*q,4)} offset:{(3-s)*4096 + q*1024}'
    def rrd(s, A, q): return f'ds_read_b128 {vr(A+16*s+4*q,4)}, v12 offset:{(3-s)*4096 + q*1024}'
    def mm(A, wk, wb, act, a, f, n, init):
        T = A + 16*(2*a + f)
        if not M16:
            return [f'{MF} {vr(T,16)}, {vr(wb+8*n+4*f,4,wk)}, {vr(act,4)}, ' + ('0' if n == 0 and init else vr(T, 16))]
        return [f'{MH} {vr(T+8*(n&1)+4*u,4)}, {vr(wb+16*(n>>1)+8*f+4*u,4,wk)}, {vr(act,4)}, ' + ('0' if n < 2 and init else vr(T+8*(n&1)+4*u, 4)) for u in range(2)]
    def m3(a, f, n): e('\n'.join(mm(ACC3, 'v', WOF, AF+32*a+4*n, a, f, n, (a, f) != (0, 0))))
    B2 = knob('b2', 8)
    for n in range(8):
        vm.wait(f'O1{n}'); stamp(e, f'o{n}'); m3(1, 1, n); m3(1, 0, n)
        if n >= 8 - B2: w2l(1, n == 8 - B2)
    LAG = 2
    for n in range(8):
        vm.wait(f'O0{n}'); stamp(e, f'o{8+n}'); m3(0, 1, n)
        if 1 <= n < 5: e(rwr(3 - (n-1)//2, ACC3, 2*((n-1) % 2)))
        if n >= LAG: m3(0, 0, n - LAG)
        if 1 <= n < 5: e(rwr(3 - (n-1)//2, ACC3, 2*((n-1) % 2) + 1))
        if n == knob('p3b', 5):
            e('s_waitcnt lgkmcnt(0)\ns_barrier')
            for q in range(4): e(rrd(3, ACC3, q) + '\n' + rrd(2, ACC3, q))
    stamp(e, 'p3mf')
    e('s_waitcnt lgkmcnt(0)')
    for n in range(8 - LAG, 8):
        m3(0, 0, n)
        for r in range(4*(n - 8 + LAG), 4*(n - 7 + LAG)): e(f'v_add_f32 v{ACC3+32+r}, v{ACC3+32+r}, v{ACC3+48+r}')
    for q in range(4):
        e(rwr(1, ACC3, q))
        for r in range(8 + 2*q, 10 + 2*q): e(f'v_add_f32 v{ACC3+32+r}, v{ACC3+32+r}, v{ACC3+48+r}')
    for p in range(8): e(f'v_pk_add_f32 {vr(ACC3+2*p,2)}, {vr(ACC3+2*p,2)}, {vr(ACC3+32+2*p,2)}')
    e('s_waitcnt lgkmcnt(0)\ns_barrier')
    for q in range(4): e(rrd(1, ACC3, q))
    HN = ' nt' if knob('hn', 0) else ''
    def dual(lines, tag, lab, loc=''):
        e(f's_cmp_lg_u32 s31, 0\ns_cbranch_scc0 {lab}_s')
        for l in lines: vm.op(l + loc, tag)
        e(f'{lab}_d:')
        slow.append(f'{lab}_s:\ns_nop 1\n' + '\n'.join(l + ' sc1' for l in lines) + f'\ns_nop 1\ns_branch {lab}_d')
    for q in range(4):
        e(f's_waitcnt lgkmcnt({3-q})')
        for p in (2*q, 2*q+1):
            e(f'v_pk_add_f32 {vr(ACC3+2*p,2)}, {vr(ACC3+2*p,2)}, {vr(ACC3+16+2*p,2)}')
            e(f'v_cvt_pk_bf16_f32 v{16+p}, v{ACC3+2*p}, v{ACC3+2*p+1}')
    dual([f'buffer_store_dwordx4 {vr(16+4*t,4)}, v255, s[12:15], s64 offen offset:{(256 if M16 else 1024)*t}' for t in range(2)], 'hst', 'L_h', HN)
    def psum(d, p0, p1):
        A = ACC3 + 2*p0
        e(f'v_pk_mul_f32 {vr(d+2,2)}, {vr(A,2)}, {vr(A,2)}\nv_pk_add_f32 {vr(d,2)}, {vr(A,2)}, {vr(A+2,2)}\nv_pk_fma_f32 {vr(d+2,2)}, {vr(A+2,2)}, {vr(A+2,2)}, {vr(d+2,2)}')
        for p in range(p0 + 2, p1):
            e(f'v_pk_add_f32 {vr(d,2)}, {vr(d,2)}, {vr(ACC3+2*p,2)}\nv_pk_fma_f32 {vr(d+2,2)}, {vr(ACC3+2*p,2)}, {vr(ACC3+2*p,2)}, {vr(d+2,2)}')
        e(f'v_add_f32 v{d}, v{d}, v{d+1}\nv_add_f32 v{d+1}, v{d+2}, v{d+3}')
    if M16:
        psum(24, 0, 4); psum(28, 4, 8)
        e('v_permlane16_swap_b32 v24, v28\nv_permlane16_swap_b32 v25, v29\nv_pk_add_f32 v[24:25], v[24:25], v[28:29]')
    else: psum(24, 0, 8)
    e("""v_mov_b32 v26, v24
v_mov_b32 v27, v25
v_permlane32_swap_b32 v24, v26
v_permlane32_swap_b32 v25, v27
v_pk_add_f32 v[24:25], v[24:25], v[26:27]""")
    dual(['buffer_store_dwordx2 v[24:25], v3, s[12:15], s65 offen'], 'hst', 'L_s', HN)
    stamp(e, 'p3st')
    w2l(knob('b3', 0), True)
    for p in range(8): e(f'v_pk_add_f32 {vr(224+2*p,2)}, {vr(144+2*(p % 4 if M16 else p),2)}, {vr(ACC3+2*p,2)}')
    HF, ACC4, WF, STT = 16, 128, 192, 208
    HP = knob('hp', 8); PER = knob('per', 76)
    SP = knob('sp', 10)
    order = list(range(SP + 1)) + ['s0', 's1', 's2', 's3'] + list(range(SP + 1, 28))
    arr = {x: n*PER for n, x in enumerate(order)}
    mlist = []; nxt = [0, 0, 0, 0]; t = 0
    while min(nxt) < 28:
        c = [b for b in range(4) if nxt[b] < 28 and arr[nxt[b]] <= t]
        if not c: t = min(arr[nxt[b]] for b in range(4) if nxt[b] < 28); continue
        b = min(c, key=lambda b: (b >> 1 and b, nxt[b], b))
        mlist.append((nxt[b], b)); nxt[b] += 1; t += 32
    M = len(mlist)
    last = [max(m for m, (s, b2) in enumerate(mlist) if b2 == b) for b in range(4)]
    firstm = [min(m for m, (s, b2) in enumerate(mlist) if b2 == b) for b in range(4)]
    def w1rd(dst, s, b, k='v'):
        base = WA + b + (4 if s >= 16 else 0); off = (s & 15)*4096
        return [f'ds_read_b64_tr_b16 {vr(dst+2*rd,2,k)}, v{base} offset:{off + rd*1024}' for rd in range(2)]
    def wreg(m): return ('v', WF + 4*(m & 7)) if (m & 7) < 4 else ('a', 240 + 4*((m & 7) - 4))
    def rds(m):
        s, b = mlist[m]; k, r = wreg(m)
        return w1rd(r, s, b, k)
    LD = 6
    for m in range(LD): e('\n'.join(rds(m)))
    e('s_mov_b32 m0, s67')
    vm.wait('hst')
    dual([f'buffer_store_dword v8, v4, s[12:15], s25 offen offset:{16*128}'], 'f3', 'L_f3')
    stamp(e, 'p3end')
    def poll(lab, addr, so):
        e(f"""s_mov_b32 s26, {POLL_MAX}
{lab}:
buffer_load_dword v13, {addr}, s[12:15], {so} sc1
s_sub_u32 s26, s26, 1
s_cbranch_scc1 {lab}_x
s_waitcnt vmcnt(0)
v_cmp_ne_u32 vcc, 1, v13
s_cbranch_vccnz {lab}
{lab}_x:""")
    poll('L_p3', 'v5', f's66 offen offset:{16*128}')
    stamp(e, 's3done')
    def hl(x):
        if isinstance(x, str):
            p = int(x[1]); vm.op(f'buffer_load_dwordx4 {vr(STT+4*p,4)}, v2, s[12:15], s68 offen offset:{1024*p} sc1', 'st'); return
        if x and x % 4 == 0: e(f's_add_u32 m0, s67, {x*1024}')
        vm.op(f'buffer_load_dwordx4 {vr(HF+4*x,4)}, v2, s[12:15], m0 offen offset:{(x&3)*1024} sc1', f'h{x}')
    for x in order[:HP]: hl(x)
    hq = order[HP:]
    XB = STT + 8
    def add_stats():
        F.add(lambda: vm.wait('st'))
        F.add('\n'.join(f'v_and_b32 v{STT+12+r}, v6, v{STT+12+r}' for r in range(4)))
        for k in range(1, 8): F.add(f'v_add_f32 v{STT}, v{STT}, v{STT+2*k}\nv_add_f32 v{STT+1}, v{STT+1}, v{STT+2*k+1}')
        F.add(ln_stats(STT, STT+1, STT+2, STT+3, STT+4, STT+5))
        F.add(f"""v_sub_f32 v{STT+3}, 0, v{STT+3}
v_and_b32 v{STT+3}, v6, v{STT+3}
v_and_b32 v{STT+5}, v6, v{STT+5}
v_and_b32 v{STT+6}, 0xffff0000, v{STT+3}
v_sub_f32 v{STT+7}, v{STT+3}, v{STT+6}
v_cvt_pk_bf16_f32 v{XB}, v{STT+6}, v{STT+6}
v_and_b32 v{STT+6}, 0xffff0000, v{STT+5}
v_cvt_pk_bf16_f32 v{XB+1}, v{STT+7}, v{STT+6}
v_sub_f32 v{STT+7}, v{STT+5}, v{STT+6}
v_cvt_pk_bf16_f32 v{XB+2}, v{STT+7}, 0
v_mov_b32 v{XB+3}, 0
v_mul_f32 v248, v{STT+4}, v{STT+4}""")
        F.mark('st')
    def epi(b):
        A = ACC4 + 16*b
        for p in range(8):
            F.add(f"""v_mul_f32 v{A+2*p}, v{A+2*p}, abs(v{A+2*p})
v_mul_f32 v{A+2*p+1}, v{A+2*p+1}, abs(v{A+2*p+1})
v_cvt_pk_bf16_f32 v{A+p}, v{A+2*p}, v{A+2*p+1}
v_pk_max_i16 v{A+p}, v{A+p}, 0""")
            if p % 4 == 3:
                l = f'buffer_store_dwordx4 {vr(A+4*(p//4),4)}, v2, s[12:15], s{72+b} offen offset:{1024*(p//4)}'
                if H1M == 0: F.add(lambda l=l: vm.op(l + ' sc1', 'h1st'))
                else: F.add(lambda l=l, n=2*b + p//4: dual([l], 'h1st', f'L_e{n}', ' nt' if H1M == 2 else ''))
    mst = min(m for m, (s, b) in enumerate(mlist) if s > SP) + 2
    XK = min(last[0], last[1]) - 1
    w2set = [True]
    for m, (s, b) in enumerate(mlist):
        if m == mst: add_stats()
        if m == last[1] + 1: stamp(e, 'p4a')
        for b2 in range(3):
            if m == last[b2] + 4: epi(b2)
        lg = f'lgkmcnt({2*max(0, min(LD-2, M-2-m))})' if m % 2 == 0 else ''
        vm.wait(f'h{s}', lg)
        if b == 0: stamp(e, f'h{s}')
        acc = vr(ACC4 + 16*b, 16); k, r = wreg(m)
        zero = s == 0
        if s == 0 and m > XK: e(f'{MF} {acc}, {ar(224+4*b,4)}, {vr(XB,4)}, 0'); zero = False
        e(f'{MF} {acc}, {vr(r,4,k)}, {vr(HF+4*s,4)}, ' + ('0' if zero else acc))
        if m % 2 == 1 and hq: hl(hq.pop(0)); n = 2
        elif m % 2 == 1 and w2n[0] < 56: w2l(1, w2set[0]); w2set[0] = False; n = 2
        else: n = 3 if m % 2 else 2
        if m + LD < M: e('\n'.join(rds(m + LD)))
        else: n += 2
        F.drain(n)
        if m == XK:
            F.need('st')
            for b2 in range(4):
                if firstm[b2] <= XK: e(f'{MF} {vr(ACC4+16*b2,16)}, {ar(224+4*b2,4)}, {vr(XB,4)}, {vr(ACC4+16*b2,16)}')
    stamp(e, 'p4mf')
    F.drain(999)
    w2l(56, w2set[0])
    epi(3); F.drain(999)
    e('s_barrier\nds_write_b32 v251, v248\ns_mov_b32 m0, s71')
    vm.wait('h1st')
    dual([f'buffer_store_dword v8, v14, s[12:15], s25 offen offset:{20*128}'], 'f4', 'L_f4')
    stamp(e, 'p4end')
    poll('L_p4', 'v7', f's69 offen offset:{20*128}')
    stamp(e, 's4done')
    GF, ACC5, RING = 16, 144, 32
    GP = knob('gp', 12)
    s5 = [(a, n) for a in (1, 0) for n in range(28)]
    def gl(i):
        a, n = s5[i]
        if i and n % 4 == 0: e(f's_add_u32 m0, s{70+a}, {n*1024}')
        vm.op(f'buffer_load_dwordx4 {vr(GF+4*(i%RING),4)}, v255, s[12:15], m0 offen offset:{aoff(n)} sc1', f'g{i}')
    def m5(a, f, n): e('\n'.join(mm(ACC5, 'a', 0, GF + 4*((n + 28*(1-a)) % RING), a, f, n, True)))
    ON_ = ' nt' if knob('on', 0) else ''
    RS = lambda r: 248 + (2*(r // 8) if M16 else 0)
    for i in range(GP): gl(i)
    for i, (a, n) in enumerate(s5):
        if i == 28: stamp(e, 'p5a')
        vm.wait(f'g{i}')
        stamp(e, f'g{i}')
        m5(a, 1, n)
        if i + GP < 56: gl(i + GP)
        if a == 1: m5(1, 0, n)
        elif n >= LAG: m5(0, 0, n - LAG)
        if a == 0:
            if 3 <= n < 11: e(rwr(2 + (n-3)//4, ACC5, (n-3) % 4))
            if n == 13:
                e('s_waitcnt lgkmcnt(0)\ns_barrier\nds_read_b32 v248, v250')
                if M16: e('ds_read_b32 v250, v250 offset:64')
            if 14 <= n < 18: e(rrd(2, ACC5, n-14) + '\n' + rrd(3, ACC5, n-14))
            if n == 19: e('s_waitcnt lgkmcnt(0)')
            if 19 <= n < 27:
                for r in (2*(n-19), 2*(n-19)+1): e(f'v_add_f32 v{ACC5+32+r}, v{ACC5+32+r}, v{ACC5+48+r}\nv_fmac_f32 v{224+r}, v{RS(r)}, v{ACC5+32+r}')
    stamp(e, 'p5mf')
    for n in range(28 - LAG, 28): m5(0, 0, n)
    for q in range(4): e(rwr(1, ACC5, q))
    if M16: e(f's_add_u32 s26, s27, {16*896}')
    for p in range(8): e(f'v_pk_fma_f32 {vr(224+2*p,2)}, {vr(ACC5+2*p,2)}, {vr(RS(2*p),2)}, {vr(224+2*p,2)} op_sel_hi:[1,0,1]')
    e('s_waitcnt lgkmcnt(0)\ns_barrier')
    for q in range(4): e(rrd(1, ACC5, q))
    for t in range(2):
        e(f's_waitcnt lgkmcnt({2-2*t})')
        for p in range(4*t, 4*t+4):
            e(f'v_pk_fma_f32 {vr(224+2*p,2)}, {vr(ACC5+16+2*p,2)}, {vr(RS(2*p),2)}, {vr(224+2*p,2)} op_sel_hi:[1,0,1]')
            e(f'v_cvt_pk_bf16_f32 v{16+p}, v{224+2*p}, v{225+2*p}')
        if M16: e(f'buffer_store_dwordx4 {vr(16+4*t,4)}, v0, s[40:43], s{27-t} offen' + ON_)
        else: e(f'buffer_store_dwordx4 {vr(16+4*t,4)}, v0, s[40:43], s27 offen offset:{32*t}' + ON_)
    stamp(e, 'p5st')
    stamp_out(e)
    e('s_endpgm')
    for x in slow: e(x)
    if H1M == 3 or knob('wb', 0):
        e(f"""L_wb:
s_cmp_lg_u32 s20, 14
s_cbranch_scc1 L_end
s_cmp_lg_u32 s16, 0
s_cbranch_scc1 L_end
v_and_b32 v5, 15, v1
v_min_u32 v5, 13, v5
v_lshrrev_b32 v13, 4, v1
v_lshl_add_u32 v5, v13, 5, v5
v_lshlrev_b32 v5, 2, v5""")
        poll('L_wbp', 'v5', f's25 offen offset:{(20 if H1M == 3 else 16)*128}')
        e('buffer_wbl2 sc1\ns_waitcnt vmcnt(0)\ns_endpgm')
    e('L_fallback:\ns_mov_b32 s30, 1\ns_waitcnt vmcnt(0) lgkmcnt(0)\ns_barrier')
    for j in range(16):
        e(kvset(j)); kl(j, 0); kl(j, 1); vl(j, 0); vl(j, 1)
        if j == 7: e('s_waitcnt vmcnt(0)')
    e('s_waitcnt vmcnt(0)')
    MXB = SCR
    d = vr(S, 16)
    for s in range(4):
        e(f'v_mov_b32 v{128+s}, 0xff800000')
        for j in range(16):
            e(f'{MF} {d}, {ar(16*j,4)}, {vr(Q+8*s,4)}, 0\n{MF} {d}, {ar(16*j+4,4)}, {vr(Q+8*s+4,4)}, {d}')
            for p in range(8): e(f'v_max3_f32 v{128+s}, v{S+2*p}, v{S+2*p+1}, v{128+s}')
        e(f"""v_mov_b32 v13, v{128+s}
v_permlane32_swap_b32 v{128+s}, v13
v_max_f32 v{128+s}, v{128+s}, v13
s_xor_b32 s76, s16, {3-s}
s_lshl_b32 s76, s76, 9
s_add_u32 s76, s76, {MXB}
v_and_b32 v13, 31, v1
v_lshlrev_b32 v13, 4, v13
v_add_u32 v{132+s}, s76, v13
s_lshl_b32 s76, s16, 2
v_add_u32 v13, s76, v{132+s}
ds_write_b32 v13, v{128+s}""")
    e('s_waitcnt lgkmcnt(0)\ns_barrier')
    for s in range(4): e(f'ds_read_b128 {vr(S+4*s,4)}, v{132+s}')
    e('s_waitcnt lgkmcnt(0)\ns_barrier')
    for s in range(4):
        e(f'v_max3_f32 v{128+s}, v{S+4*s}, v{S+1+4*s}, v{S+2+4*s}\nv_max_f32 v{128+s}, v{128+s}, v{S+3+4*s}')
    for s in range(4):
        for r in range(16): e(f'v_sub_f32 v{NM+r}, 0, v{128+s}\nv_mov_b32 v{O+16*s+r}, 0')
        for j in range(16):
            e(f'{MF} {d}, {ar(16*j,4)}, {vr(Q+8*s,4)}, {vr(NM,16)}\n{MF} {d}, {ar(16*j+4,4)}, {vr(Q+8*s+4,4)}, {d}')
            for r in range(16): e(f'v_exp_f32 v{S+r}, v{S+r}')
            for t in range(2): e(f'{SM} {vr(O+16*s,16)}, {ar(16*j+8+4*t,4)}, {vr(S+8*t,8)}, v7')
            e('s_nop 7')
        e('s_nop 7')
    for k in range(12): e(pwr(k//4, k % 4))
    for n in range(W2A):
        a, b = wfrag('W2', n); e(a + '\n' + b)
    e('s_waitcnt vmcnt(0) lgkmcnt(0)\ns_barrier')
    for k in range(12): e(prd(k//4, k % 4))
    e('s_branch L_combine')
    e('L_end:')

def build1(e, path):
    head = open(f'cdna_kernels/{NAME}.s.ref').read().split('\n')
    name = NAME + '_kernel'
    out = head[:12] + (['; stamps: ' + ' '.join(ST_NAMES)] if STAMP else []) + ['; @launch grid=(256,1,1) block=(256,1,1) lds=163840', '.amdgcn_target "amdgcn-amd-amdhsa--gfx950"\n.text']
    e.fix('-v' in sys.argv)
    out.append(f'.globl {name}\n.p2align 8\n.type {name},@function\n{name}:')
    out.append(e.text() + '    s_endpgm')
    out.append(f""".section .rodata,"a"
.p2align 6
.amdhsa_kernel {name}
  .amdhsa_next_free_vgpr 512
  .amdhsa_next_free_sgpr 102
  .amdhsa_accum_offset 256
  .amdhsa_group_segment_fixed_size 0
  .amdhsa_kernarg_size 88
  .amdhsa_user_sgpr_count 2
  .amdhsa_user_sgpr_kernarg_segment_ptr 1
  .amdhsa_system_sgpr_workgroup_id_x 1
.end_amdhsa_kernel""")
    open(path, 'w').write('\n'.join(out) + '\n')

if __name__ == '__main__':
    e = Asm(); kernel(e)
    outs = [a for a in sys.argv[1:] if a.endswith('.s')]
    build1(e, outs[0] if outs else 'v8.s')
```

```python
import sys, math, struct
from asmlib import *

NAME = 'sequential_preLN__mha_block__dense_activation_squared_relu__prompt'
MF = 'v_mfma_f32_32x32x16_bf16'
MH = 'v_mfma_f32_16x16x32_bf16'
SM = 'v_smfmac_f32_32x32x32_bf16'
def f32(x): return '0x%08x' % struct.unpack('<I', struct.pack('<f', x))[0]
QSCALE = math.log2(math.e) / math.sqrt(28.0)

VP, ONE, TTP = 28672, 57344, 57600
WS_O, WS_H, WS_S, WS_H1, WS_WF, WS_FL, WS_ST = 0x600000, 0x800000, 0x9E0000, 0xA40000, 0x1200000, 0x1400000, 0x1500000
WS_F1, WS_F2, HINT = WS_FL + 0x10000, WS_FL + 0x14000, 0x8000
WS_BYTES = 0x1600000
WFP = 144*2048
POLL_MAX = 1 << 18
STAMP = '--stamp' in sys.argv
def knob(name, d):
    for a in sys.argv:
        if a.startswith(name + '='): return int(a.split('=')[1])
    return d
ST_NAMES = ['start p1go p1st s1sig s1done a0 comb end', 'comb s2sig s2done p3end s3done p4end s4done end',
            'p1go p1end p1st s1sig s1win s1done a0 aB', 's2sig s2win s2done p3mf p3st p3end s3done p4a',
            's3done p4a p4mf p4end s4done p5a p5mf p5st', 'a0 a6 a16 a28 a38 aB a58 comb',
            'start p1ld p1w p1go c1 c3 c5 p1end', 's3done h0 h5 h10 h18 h27 p4mf p4end', 's4done g0 g8 g16 g28 g40 p5mf p5st', 's2done o0 o4 o8 o12 p3mf p3st p3end'][knob('st', 0)].split()

def stamp(e, name):
    if STAMP and name in ST_NAMES:
        i = ST_NAMES.index(name)
        e(('s_memtime' if '--cyc' in sys.argv else 's_memrealtime') + f' s[{84+2*i}:{85+2*i}]')
def stamp_out(e):
    if not STAMP: return
    if knob('dwg', -1) >= 0:
        stamp(e, 'end')
        e(f'''s_cmp_lg_u32 s2, {knob('dwg', 0)}
s_cbranch_scc1 L_dgx
s_waitcnt lgkmcnt(0)
s_mov_b32 s10, 100000
L_dgl:
s_sub_u32 s10, s10, 1
s_cbranch_scc1 L_dgx
s_memrealtime s[8:9]
s_waitcnt lgkmcnt(0)
s_sub_u32 s8, s8, s{84+2*knob('dst', 0)}
s_cmp_lt_u32 s8, 5000
s_cbranch_scc1 L_dgl
L_dgx:''')
        return
    e('s_waitcnt vmcnt(0)')
    stamp(e, 'end')
    e('s_waitcnt lgkmcnt(0)')
    e(f's_lshl_b32 s3, s2, 2\ns_add_u32 s3, s3, s16\ns_lshl_b32 s3, s3, 6\ns_add_u32 s3, s3, {WS_ST}\nv_mov_b32 v1, 0')
    for i in range(8):
        e(f'v_mov_b32 v0, s{84+2*i}\nbuffer_store_dword v0, v1, s[12:15], s3 offen offset:{4*i}')

def swap23(d, s, t):
    return f'''v_and_b32 v{d}, 0x33, v{s}
v_and_b32 v{t}, 4, v{s}
v_lshl_or_b32 v{d}, v{t}, 1, v{d}
v_lshrrev_b32 v{t}, 1, v{s}
v_and_or_b32 v{d}, v{t}, 4, v{d}'''
def halves_sum(r, t):
    return f'v_mov_b32 v{t}, v{r}\nv_permlane32_swap_b32 v{r}, v{t}\nv_add_f32 v{r}, v{r}, v{t}'
def ln_stats(vs, vq, t, mean, rstd, sig=None):
    s = halves_sum(vs, t) + '\n' + halves_sum(vq, t) + f'''
v_mul_f32 v{mean}, {f32(1/448)}, v{vs}
v_mul_f32 v{t}, v{mean}, v{mean}
v_mov_b32 v{rstd}, {f32(1/448)}
v_fma_f32 v{t}, v{vq}, v{rstd}, -v{t}
v_max_f32 v{t}, 0, v{t}
v_add_f32 v{t}, {f32(1e-5)}, v{t}
v_rsq_f32 v{rstd}, v{t}'''
    if sig is not None: s += f'\nv_mul_f32 v{sig}, v{t}, v{rstd}'
    return s

class Fill:
    def __init__(self, e): self.e = e; self.q = []
    def add(self, text):
        if not isinstance(text, str): self.q.append(text); return
        for l in text.split('\n'):
            l = l.strip()
            if not l: continue
            if l.startswith(('s_cselect', 's_addc')): self.q[-1] += '\n' + l
            else: self.q.append(l)
    def mark(self, tag): self.q.append(('mark', tag))
    def drain(self, k):
        while k > 0 and self.q:
            x = self.q.pop(0)
            if isinstance(x, tuple): continue
            if isinstance(x, str): self.e(x)
            else: x()
            k -= 1
    def need(self, tag):
        while ('mark', tag) in self.q: self.drain(1) if self.q[0] != ('mark', tag) else self.q.pop(0)

def kernel(e):
    vm = VM(e); slow = []
    XR, WQ, CSB, QX, UB = 57344, 114688, 143360, 147456, 155648
    SCR = 114688
    MAP = knob('map', 4); M16 = knob('m16', 1); H1M = knob('h1m', 2)
    Q, O, S, WOF, NM = 16, 48, 112, 160, 144
    def emit(l, tag):
        for x in l:
            if x.startswith(('buffer', 'global')): vm.op(x, tag)
            else: e(x)
    stamp(e, 'start')
    e("""s_cmp_ge_u32 s2, 256
s_cbranch_scc1 L_end
s_lshr_b32 s76, s2, 3
s_min_u32 s77, s76, 10
s_lshl_b32 s78, s77, 3
s_load_dwordx2 s[82:83], s[0:1], s78
s_load_dwordx2 s[4:5], s[0:1], 0
s_load_dwordx2 s[8:9], s[0:1], 8
s_load_dwordx2 s[12:13], s[0:1], 80
s_load_dwordx2 s[40:41], s[0:1], 16
s_load_dwordx2 s[42:43], s[0:1], 48
s_load_dwordx2 s[60:61], s[0:1], 32
s_load_dwordx2 s[100:101], s[0:1], 72
s_getpc_b64 s[80:81]
L_pc0:
s_sub_u32 s78, s76, s77
s_lshl_b32 s78, s78, 20
s_lshl_b32 s77, s76, 11
v_lshrrev_b32 v10, 4, v0
v_lshl_add_u32 v10, v10, 7, s77
v_min_u32 v10, L_fallback-L_pc0, v10""")
    vm.op('global_load_dword v31, v10, s[80:81]', 'T')
    e("""v_lshrrev_b32 v2, 6, v0
v_and_b32 v1, 63, v0
v_readfirstlane_b32 s16, v2
s_and_b32 s51, s2, 7""")
    lg = {2: 1, 4: 2, 8: 3}[MAP]
    e(f"""s_lshr_b32 s17, s51, {lg-1}
s_lshl_b32 s17, s17, {lg}
s_lshr_b32 s77, s76, {5-lg}
s_add_u32 s17, s17, s77        ; qb
s_and_b32 s18, s51, {MAP//2 - 1}
s_lshl_b32 s18, s18, {5-lg}
s_and_b32 s77, s76, {32//MAP - 1}
s_add_u32 s18, s18, s77        ; head
s_lshl2_add_u32 s79, s17, s16
s_mul_i32 s48, s79, {32*896}
s_mul_i32 s50, s16, {16*2688}
s_lshl_b32 s49, s18, 7
s_add_u32 s49, s49, s50
s_add_u32 s49, s49, 896
s_mul_i32 s52, s16, 12288
s_add_u32 s52, s52, {XR}
s_lshl_b32 s53, s16, 11
v_lshrrev_b32 v64, 3, v1
v_lshrrev_b32 v65, 4, v1
v_and_b32 v66, 7, v1
v_xor_b32 v67, v65, v66
v_mul_u32_u24 v68, 896, v64
v_lshl_add_u32 v2, v67, 4, v68
v_xor_b32 v3, 64, v2
v_add_u32 v3, 6144, v3
v_add_u32 v4, 12288, v2
v_add_u32 v5, 12288, v3
v_and_b32 v67, 1, v65
v_lshlrev_b32 v67, 2, v67
v_xor_b32 v69, v67, v66
v_mul_u32_u24 v67, 2688, v64
v_lshl_add_u32 v6, v69, 4, v67
v_add_u32 v7, {8*2688-1024}, v6
s_mov_b32 s6, {2048*896}
s_mov_b32 s7, 0x00020000
s_mov_b32 s11, 0x00020000
s_mov_b32 s14, {WS_BYTES}
s_mov_b32 s15, 0x00020000
s_mov_b32 m0, s53
v_mov_b32 v219, 0
s_cmp_lt_u32 s18, 14
s_cselect_b32 s10, {448*2688}, 0
s_waitcnt lgkmcnt(0)
{'s_load_dword s26, s[82:83], s78' if knob('tlb', 1) else ''}
s_cbranch_scc0 L_zero
L_zerod:""")
    e_zero = f"""L_zero:
s_lshl1_add_u32 s77, s17, s18
s_lshl_b32 s77, s77, 12
s_add_u32 s77, s77, {WS_FL - 14*4096}
v_lshlrev_b32 v70, 4, v0
v_mov_b32 v216, 0
v_mov_b32 v217, 0
v_mov_b32 v218, 0
buffer_store_dwordx4 v[216:219], v70, s[12:15], s77 offen sc1
s_branch L_zerod"""
    stamp(e, 'p1ld')
    def wload(it):
        return ([f's_add_u32 m0, s53, {it*8192}', f's_add_u32 s49, s49, {64*2688}'] if it else []) + \
               [f'buffer_load_dwordx4 v{6+j}, s[8:11], s49 offen offset:{1024*j} lds' for j in range(2)]
    def xload(it):
        return [f's_add_u32 m0, s52, {(it%3)*4096}'] + (['s_add_u32 s48, s48, 128'] if it else []) + \
               [f'buffer_load_dwordx4 v{2+i}, s[4:7], s48 offen offset:{1024*i} lds' for i in range(4)]
    emit(wload(0) + xload(0), 0); emit(wload(1) + xload(1), 1)
    e('s_cmp_lt_u32 s18, 14\ns_cbranch_scc0 L_rdyadd\nL_rdyaddd:')
    e_zero += """
L_rdyadd:
s_waitcnt vmcnt(12)
s_barrier
s_cmp_lg_u32 s16, 0
s_cbranch_scc1 L_rdyaddd
v_mov_b32 v70, 1
s_mov_b64 exec, 1
global_atomic_add v219, v70, s[100:101] sc1
s_mov_b64 exec, -1
s_branch L_rdyaddd"""
    e("""v_and_b32 v73, 31, v1
v_lshrrev_b32 v71, 1, v73
v_lshrrev_b32 v72, 5, v1
v_xor_b32 v71, v71, v72
v_and_b32 v71, 7, v71
v_lshlrev_b32 v71, 4, v71
v_lshl_add_u32 v71, v73, 7, v71
v_add_u32 v71, s52, v71
s_lshl_b32 s77, s16, 5
v_xor_b32 v9, s77, v71
v_xor_b32 v10, 32, v9
v_xor_b32 v11, 64, v9
v_xor_b32 v12, 0x60, v9
v_bfe_u32 v76, v1, 2, 2
v_lshl_add_u32 v74, v72, 3, v76
v_and_b32 v75, 16, v1
v_lshlrev_b32 v75, 1, v75
v_and_b32 v71, 1, v1
v_lshl_add_u32 v75, v71, 4, v75
v_bfe_u32 v71, v1, 1, 1
v_lshl_add_u32 v75, v71, 3, v75
v_lshl_add_u32 v13, v74, 7, v75
v_bfe_u32 v71, v1, 3, 1
v_lshl_add_u32 v13, v71, 6, v13
v_add_u32 v13, s53, v13""")
    for n in range(1, 8): e(f'v_xor_b32 v{13+n}, {2048*(n >> 1) + 64*(n & 1)}, v13')
    e('v_mov_b32 v25, 0x3f803f80\nv_mov_b32 v26, 0\nv_mov_b32 v27, 0\nv_mov_b32 v28, 0\nv_mov_b32 v29, 0')
    F = Fill(e); park = []
    def prk(dst, src): F.add(f'v_accvgpr_write_b32 a{len(park)}, v{src}'); park.append(dst)
    F.add(f"""s_mov_b32 s36, s8
s_mov_b32 s37, s9
s_mov_b32 s38, {448*2688}
s_mov_b32 s39, 0x00020000
s_and_b32 s28, s18, 1
s_lshr_b32 s77, s18, 1
s_mul_i32 s77, s77, 7
s_mul_i32 s78, s28, 3
s_add_u32 s78, s78, s77
s_lshl4_add_u32 s50, s78, s50
s_lshr_b32 s54, s53, 1
s_add_u32 s54, s54, {WQ}
v_lshrrev_b32 v70, 2, v1
v_mul_u32_u24 v71, 2688, v70
v_and_b32 v77, 3, v1
v_lshl_add_u32 v8, v77, 4, v71""")
    F.mark('wq')
    F.add(swap23(64, 73, 71))
    F.add(f"""v_lshlrev_b32 v254, 4, v1
v_lshlrev_b32 v71, 4, v64
v_lshl_add_u32 v71, v72, 9, v71
s_lshl_b32 s77, s78, 9
v_add_u32 v71, s77, v71""")
    prk(3, 71)
    F.add(f"""v_mul_u32_u24 v71, 7168, v72
v_lshl_add_u32 v240, v64, 4, v71
v_add_u32 v241, 14336, v240
s_mul_i32 s77, s18, 448
s_add_u32 s77, s77, {VP}
v_add_u32 v66, s77, v240
v_add_u32 v67, s77, v241
v_mov_b32 v78, {WS_BYTES}
v_mov_b32 v71, {ONE}
v_cmp_eq_u32 vcc, 28, v73
v_cndmask_b32 v71, v78, v71, vcc
v_cmp_gt_u32 vcc, 28, v73
v_cndmask_b32 v66, v71, v66, vcc
v_cndmask_b32 v67, v71, v67, vcc""")
    prk(4, 66); prk(248, 67)
    F.add(f"""v_lshlrev_b32 v242, 3, v73
v_add_u32 v242, {CSB}, v242
s_lshl_b32 s77, s16, 8
v_add_u32 v243, s77, v242
s_mul_i32 s58, s79, {TTP}
s_lshl_b32 s57, s18, 12
s_lshl_b32 s77, s18, 10
s_add_u32 s77, s77, {VP - 7*1024}
s_cmp_lt_u32 s18, 7
s_cselect_b32 s57, s57, s77
s_add_u32 s57, s57, s58
s_add_u32 s58, s58, {ONE}
s_cmp_eq_u32 s18, 13
s_cselect_b32 s58, s58, {WS_BYTES}
v_min_u32 v244, 0x70, v254
s_lshl4_add_u32 s3, s79, s18
s_lshl_b32 s3, s3, 11
s_add_u32 s3, s3, {WS_O}
v_lshl_add_u32 v21, v74, 6, v75
v_add_u32 v21, s54, v21
v_xor_b32 v22, 1024, v21
v_xor_b32 v23, 2048, v21
v_xor_b32 v24, 3072, v21
v_mov_b32 v30, 0""")
    for r in (218, 221, 222, 223, 226, 227, 230, 231, 234, 235): F.add(f'v_mov_b32 v{r}, 0')
    for r in range(236, 240): F.add(f'v_mov_b32 v{r}, v25')
    F.add(f"""s_lshl2_add_u32 s76, s2, s16
s_mul_i32 s77, s76, 9363
s_lshr_b32 s77, s77, 16
s_mul_i32 s78, s77, 7
s_sub_u32 s78, s76, s78
s_mul_i32 s56, s78, {WFP}
s_lshl_b32 s76, s77, 11
s_add_u32 s56, s56, s76
s_add_u32 s56, s56, {WS_WF}
s_cmp_lt_u32 s77, 144
s_cselect_b32 s56, s56, {WS_BYTES}
s_lshr_b32 s76, s77, 1
s_mul_i32 s55, s76, 28
s_sub_u32 s55, s55, {56*28}
s_lshl_b32 s76, s76, 5
s_mov_b32 s34, {448*896}
s_mov_b32 s35, 0x00020000
s_cmp_lt_u32 s77, 112
s_cselect_b32 s55, s76, s55
s_cselect_b32 s32, s42, s40
s_cselect_b32 s33, s43, s41
s_cselect_b32 s34, {1792*896}, s34
s_mul_i32 s55, s55, 896
s_lshl_b32 s78, s78, 7
s_add_u32 s55, s55, s78
s_and_b32 s77, s77, 1
s_mul_i32 s77, s77, {64 if M16 else 16*896}
s_add_u32 s55, s55, s77""")
    if M16:
        F.add(f"""v_mul_u32_u24 v250, 896, v70
v_lshl_add_u32 v250, v77, 4, v250
v_add_u32 v251, {16*896 - 1024}, v250
v_lshl_add_u32 v252, v65, 3, v76
v_lshlrev_b32 v252, 6, v252
v_lshl_add_u32 v252, v77, 4, v252
s_add_u32 s77, s53, {UB}
v_add_u32 v252, s77, v252
v_add_u32 v253, 8, v252""")
    else:
        F.add(f"""v_lshl_add_u32 v250, v69, 4, v68
v_add_u32 v251, 6144, v250
v_add_u32 v252, {UB}, v13
v_xor_b32 v253, 64, v252""")
    F.add(f"""s_bfe_u32 s20, s2, 0x40003     ; j
s_lshr_b32 s19, s2, 7
s_lshl1_add_u32 s19, s51, s19  ; rb
s_lshl_b32 s25, s19, 12
s_add_u32 s25, s25, {WS_FL}
s_getreg_b32 s76, hwreg(HW_REG_XCC_ID, 0, 4)
s_lshl_b32 s77, s76, 2
s_lshl_b32 s29, 14, s77
s_lshl_b32 s77, 1, s77
s_cmp_lt_u32 s76, 8
s_cselect_b32 s77, s77, 0
s_cmp_lt_u32 s20, 14
s_cselect_b32 s77, s77, 0
v_lshlrev_b32 v79, 7, v1
s_lshl_b32 s76, s17, 7
s_add_u32 s76, s76, {WS_F1}
v_lshl_add_u32 v255, v79, 4, s76
v_add_u32 v66, {WS_F2 - WS_F1}, v255
v_mov_b32 v67, 1
s_add_u32 s78, s25, {24*128}
v_writelane_b32 v66, s78, 8
v_writelane_b32 v67, s77, 8""")
    prk(14, 66); prk(8, 67)
    F.add(f"""s_and_b32 s21, s20, 1          ; th
s_lshr_b32 s22, s20, 1         ; fb
s_lshl1_add_u32 s23, s19, s21
s_lshr_b32 s76, s16, 1
s_and_b32 s77, s22, {knob('flip', 1)}
s_xor_b32 s76, s76, s77
s_lshl1_add_u32 s23, s23, s76
s_and_b32 s76, s16, 1
s_lshl1_add_u32 s24, s22, s76
s_lshl_b32 s77, s76, {11 if M16 else 10}
v_add_u32 v66, s77, v254
s_lshl_b32 s65, s23, 12
s_lshl3_add_u32 s65, s76, s65
s_lshl_b32 s77, s22, 9
s_add_u32 s65, s65, s77
s_add_u32 s65, s65, {WS_S}
s_mul_i32 s27, s23, {32*896}
s_lshl_b32 s77, s24, 11
s_add_u32 s64, s27, s77
s_add_u32 s64, s64, {WS_H}     ; h tile
s_lshl_b32 s76, s24, 6
s_add_u32 s27, s27, s76""")
    prk(171, 66)
    if M16:
        F.add("""v_and_b32 v66, 15, v1
v_mul_u32_u24 v67, 896, v66
v_lshlrev_b32 v71, 4, v65
v_add_u32 v67, v67, v71
v_lshlrev_b32 v66, 4, v66
v_lshl_add_u32 v66, v65, 9, v66""")
        prk(172, 66)
    else:
        F.add('v_mul_u32_u24 v67, 896, v73\nv_lshlrev_b32 v71, 4, v72\nv_add_u32 v67, v67, v71')
    F.add(f"""v_add_u32 v71, s76, v71
s_lshl_b32 s76, s20, 8
s_lshl_b32 s77, s16, 6
s_add_u32 s77, s77, s76
v_lshl_add_u32 v66, v64, 1, s77""")
    prk(0, 67); prk(160, 71); prk(161, 66)
    F.add(f"""s_mul_i32 s77, s16, {16*3584}
s_add_u32 s77, s77, s76
s_add_u32 s60, s60, s77
s_addc_u32 s61, s61, 0
s_lshl_b32 s59, s16, 12
v_cmp_gt_u32 vcc, 32, v1
s_cmp_eq_u32 s28, 0
s_cselect_b32 s76, -1, 0
v_cndmask_b32 v66, 0, -1, vcc
v_not_b32 v67, v66
v_or_b32 v67, s76, v67
s_not_b32 s76, s76
v_or_b32 v71, s76, v66""")
    prk(6, 66); prk(13, 67); prk(5, 71)
    F.add(f's_add_u32 s76, s53, {QX}\nv_add_u32 v66, s76, v254'); prk(15, 66)
    for s in range(4):
        F.add(f's_xor_b32 s76, s16, {3-s}\ns_mul_i32 s76, s76, 12288\ns_add_u32 s76, s76, {SCR}\nv_add_u32 v66, s76, v254'); prk(9 + s, 66)
    F.add("""v_lshlrev_b32 v66, 2, v65
v_and_b32 v67, 15, v1
v_xor_b32 v66, v66, v67
v_mul_u32_u24 v67, 3584, v65
v_lshl_add_u32 v66, v66, 4, v67""")
    prk(165, 66)
    F.add("""v_lshl_add_u32 v66, v74, 8, v75
v_xor_b32 v67, s16, v76
v_lshl_add_u32 v66, v67, 6, v66""")
    prk(173, 66)
    F.add(f"""v_add_u32 v66, s64, v79
s_and_b32 s76, s65, 0xffffff80
s_sub_u32 s76, s76, {16*128}
v_add_u32 v67, s76, v79
v_cmp_gt_u32 vcc, 16, v1
v_cndmask_b32 v66, v67, v66, vcc
v_cmp_gt_u32 vcc, 20, v1
v_cndmask_b32 v66, v78, v66, vcc
s_lshl_b32 s51, s51, 11
s_add_u32 s76, s51, {WS_F2 - 48*128}
v_add_u32 v67, s76, v79
v_cmp_gt_u32 vcc, 48, v1
v_cndmask_b32 v66, v67, v66, vcc
v_writelane_b32 v66, s78, 20
s_add_u32 s51, s51, {WS_F1}
s_bfe_u32 s76, s2, 0x20003
s_lshl2_add_u32 s76, s76, s16
s_lshl_b32 s76, s76, 11
v_and_b32 v67, 0x780, v79
v_add_u32 v71, s76, v67
v_min_u32 v71, L_fallback-L_pc1, v71""")
    prk(241, 66); prk(169, 67); prk(170, 71); prk(240, 79)
    F.add(f"""s_lshl_b32 s76, s17, 12
s_add_u32 s76, s76, {WS_FL}
s_cmp_eq_u32 s16, 0
s_cselect_b32 s76, s76, {WS_BYTES}
v_writelane_b32 v78, s76, 0
v_mul_u32_u24 v66, 12288, v77
v_add_u32 v66, {SCR}, v66
v_lshlrev_b32 v67, 2, v73
v_sub_u32 v67, v67, v254""")
    prk(174, 78); prk(175, 66); prk(176, 67)
    F.add(f"""s_and_b32 s76, s17, {knob('kvm', 1)}
s_lshl1_add_u32 s76, s16, s76
s_mul_i32 s46, s76, {8*TTP}
s_xor_b32 s76, s76, 1
s_mul_i32 s47, s76, {8*TTP}
s_mul_i32 s44, s22, {WFP}
s_add_u32 s44, s44, {WS_WF}
s_cmp_lt_u32 s20, 14
s_cselect_b32 s44, s44, {WS_BYTES}
s_mul_i32 s45, s16, {28*2048}
s_add_u32 s45, s45, s44
s_lshl2_add_u32 s44, s59, s44
s_add_u32 s44, s44, {112*2048} ; Wo fragments of this wave
s_lshl_b32 s62, s23, 15
s_lshl1_add_u32 s62, s59, s62
s_add_u32 s62, s62, {WS_O}
s_xor_b32 s63, s62, 32768
s_lshl_b32 s66, s16, 7
s_add_u32 s66, s66, s25
s_lshl2_add_u32 s76, s19, s16
s_mul_i32 s67, s76, 28672
s_add_u32 s67, s67, {WS_H}
s_lshl_b32 s68, s76, 12
s_add_u32 s68, s68, {WS_S}
s_mul_i32 s28, s76, 114688
s_lshl_b32 s77, s20, 13
s_add_u32 s28, s28, s77
s_add_u32 s28, s28, {WS_H1}
s_add_u32 s72, s28, s53
s_xor_b32 s73, s72, 2048
s_xor_b32 s74, s72, 4096
s_xor_b32 s75, s72, 6144
s_lshl_b32 s69, s21, 8
s_add_u32 s69, s69, s25
s_mul_i32 s76, s16, {28*1024}
s_add_u32 s76, s76, {WS_H1}
s_mul_i32 s70, s23, 114688
s_add_u32 s70, s70, s76
s_xor_b32 s77, s23, 1
s_mul_i32 s71, s77, 114688
s_add_u32 s71, s71, s76
s_mov_b32 s30, 0""")
    F.drain(knob('f0', 90))
    stamp(e, 'p1w')
    ACC, QA, WF, XF = 32, 64, 80, 104
    XM, RM, CF, ON = 216, 220, 224, 236
    def reads(s, ty):
        it, kk = divmod(s, 4); b = s % 3
        l = [f'ds_read_b128 {vr(XF+4*s,4)}, v{9+kk} offset:{(it%3)*4096}']
        if ty != 'l':
            for f in range(2):
                for rd in range(2):
                    l.append(f'ds_read_b64_tr_b16 {vr(WF+8*b+4*f+2*rd,2)}, v{13+2*kk+f} offset:{it*8192 + rd*512}')
        return l
    def xdots(s):
        for r in range(4):
            x = XF + 4*s + r
            e(f'v_dot2c_f32_bf16 v26, v{x}, v25\nv_dot2c_f32_bf16 v27, v{x}, v{x}')
    wq = [[f's_add_u32 m0, s54, {it*4096}'] + ([f's_add_u32 s50, s50, {64*2688}'] if it else []) + ['buffer_load_dwordx4 v8, s[36:39], s50 offen lds'] for it in range(7)]
    WQS = [int(c) for c in str(knob('wqs', 0)) if c != '0']
    WQE = knob('wqe', 7)
    early = {c - 1: wq[n] for n, c in enumerate(WQS)}
    unit_dma = [f's_add_u32 m0, s53, {UB}', 'buffer_load_dwordx4 v250, s[32:35], s55 offen lds', 'buffer_load_dwordx4 v251, s[32:35], s55 offen offset:1024 lds']
    rdy = 'global_load_dword v245, v219, s[100:101] sc1'
    def rdycheck(lab, hint):
        e(f"""s_cmp_lg_u32 s16, 0
s_cbranch_scc1 {lab}x
v_cmp_gt_u32 vcc, 32, v245
v_mov_b32 v31, 1
s_cbranch_vccnz {lab}p
{lab}d:""")
        if hint: e(f's_mov_b32 s76, {HINT}\ns_mov_b64 exec, 0xff\nbuffer_atomic_add v31, v255, s[12:15], s76 offen sc1\ns_mov_b64 exec, -1')
        e(f'{lab}x:')
        slow.append(f"""{lab}p:
s_mov_b32 s26, {POLL_MAX}
{lab}l:
global_load_dword v245, v219, s[100:101] sc1
s_sub_u32 s26, s26, 1
s_cbranch_scc1 {lab}d
s_waitcnt vmcnt(0)
v_cmp_gt_u32 vcc, 32, v245
s_cbranch_vccnz {lab}l
s_branch {lab}d""")
    xm_frag = f"""v_cmp_gt_u32 vcc, 32, v1
v_sub_f32 v247, 0, v247
v_cndmask_b32 v247, 0, v247, vcc
v_and_b32 v26, 0xffff0000, v247
v_sub_f32 v27, v247, v26
v_cvt_pk_bf16_f32 v{XM}, v26, v26
v_cvt_pk_bf16_f32 v{XM+1}, v27, 0"""
    e('s_cmp_lt_u32 s18, 7\ns_cbranch_scc1 L_kk\ns_cmp_lt_u32 s18, 14\ns_cbranch_scc0 L_light')
    vm0 = (list(vm.seq), vm.done); q0 = list(F.q)
    def variant(ty, lab):
        if lab: e(f'{lab}:')
        vm.seq, vm.done = list(vm0[0]), vm0[1]; F.q = list(q0)
        per = (len(F.q) + 5) // 6
        lt = wq[len(WQS):WQE]
        vm.wait(0); e('s_barrier')
        stamp(e, 'p1go')
        e('\n'.join(reads(0, ty) + reads(1, ty)))
        emit(wload(2), 2)
        for s in range(28):
            it, kk = divmod(s, 4); b = s % 3
            if kk == 0: stamp(e, f'c{it}')
            x = vr(XF+4*s, 4)
            mf = []
            for f in range(2):
                w = vr(WF+8*b+4*f, 4); a = vr(ACC+16*f, 16); c = a if s else '0'
                mf.append(f'{MF} {a}, {w}, {x}, {c}' if ty == 'k' else f'{MF} {a}, {x}, {w}, {c}')
            rd = reads(s+2, ty) if s < 26 else []
            if s < 18:
                if kk < 2: L = xload(it + 2); tag = it + 2; ld = {0: (L[:3], L[3:4]), 1: (L[4:5], L[5:])}[kk]
                else: L = wload(it + 3); tag = it + 3; ld = {2: ([], L[:3]), 3: (L[3:], [])}[kk]
            else:
                tag = 'wq'; F.need('wq')
                ld = ([], lt.pop(0) if lt else [])
            if s < 27: e(f's_waitcnt lgkmcnt({5 if s < 26 else 0})')
            if kk == 2:
                for r in range(4):
                    for f in range(2): e(f'v_dot2c_f32_bf16 v{28+f}, v{WF+8*b+4*f+r}, v25')
                for s2 in range(max(0, s-3), s + (2 if s == 26 else 1)): xdots(s2)
                if s < 26:
                    F.drain(per if s < 22 else 999)
                    vm.wait(it + 1); e('s_barrier')
                else:
                    for f in range(2): e(halves_sum(28+f, 246))
                    e('ds_write_b64 v243, v[28:29]')
            def spread(m, sal, rest):
                e(m)
                if sal and not sal[0].startswith('buffer'): e(sal[0]); sal = sal[1:]
                e('\n'.join(rest)); emit(sal, tag)
            spread(mf[0], ld[0], rd[:3])
            if s == 26: e(ln_stats(26, 27, 246, 247, 248))
            if s == 27: e(xm_frag)
            spread(mf[1], ld[1], rd[3:])
            if it in early and kk == 3: F.need('wq'); emit(early[it], 'wq')
            if s == 17: vm.op(rdy, 'rdy')
            if s == 26:
                e('s_waitcnt lgkmcnt(0)\ns_barrier')
                for w in range(4): e(f'ds_read_b64 {vr(QA+2*w,2)}, v242 offset:{256*w}')
        assert not lt and not F.q
        stamp(e, 'p1end')
        if ty == 'v':
            e(f"""v_cndmask_b32 v246, 0, v248, vcc
v_and_b32 v26, 0xffff0000, v246
v_sub_f32 v27, v246, v26
v_cvt_pk_bf16_f32 v{RM}, v26, v27
{MF} v[88:103], {vr(RM,4)}, {vr(ON,4)}, 0""")
        e('s_waitcnt lgkmcnt(0)')
        for f in range(2):
            e(f"""v_add_f32 v{QA+f}, v{QA+f}, v{QA+2+f}
v_add_f32 v{QA+4+f}, v{QA+4+f}, v{QA+6+f}
v_add_f32 v{QA+f}, v{QA+f}, v{QA+4+f}
v_and_b32 v26, 0xffff0000, v{QA+f}
v_sub_f32 v27, v{QA+f}, v26
v_cvt_pk_bf16_f32 v{CF+4*f}, v26, v27
v_lshrrev_b32 v{CF+4*f+1}, 16, v{QA+f}""")
            a = vr(ACC+16*f, 16); w = vr(CF+4*f, 4)
            e(f'{MF} {a}, {w}, {vr(XM,4)}, {a}' if ty == 'k' else f'{MF} {a}, {vr(XM,4)}, {w}, {a}')
        vm.op(f'buffer_store_dwordx4 {vr(ON,4)}, v244, s[12:15], s58 offen sc1', 'kv')
        for f in range(2):
            A = ACC + 16*f
            for p in range(8):
                if ty == 'k': e(f'v_pk_mul_f32 {vr(A+2*p,2)}, {vr(A+2*p,2)}, v[248:249] op_sel_hi:[1,0]')
                else: e(f'v_pk_mul_f32 {vr(A+2*p,2)}, {vr(A+2*p,2)}, {vr(88+2*p,2)}')
                e(f'v_cvt_pk_bf16_f32 v{A+p}, v{A+2*p}, v{A+2*p+1}')
                if p % 4 == 3:
                    t = p // 4
                    if ty == 'k': vm.op(f'buffer_store_dwordx4 {vr(A+4*t,4)}, v254, s[12:15], s57 offen offset:{2048*f + 1024*t} sc1', 'kv')
                    else: vm.op(f'buffer_store_dwordx4 {vr(A+4*t,4)}, v{240+t}, s[12:15], s57 offen offset:{512*f} sc1', 'kv')
        vm.wait('rdy'); rdycheck(f'L_r{ty}', True)
        if ty == 'v': e('s_branch L_q')
    def light():
        e(e_zero)
        e('L_light:')
        vm.seq, vm.done = list(vm0[0]), vm0[1]; F.q = list(q0)
        F.drain(9999)
        e(f'v_mov_b32 v255, {WS_BYTES}')
        stamp(e, 'p1go')
        for it in range(7):
            stamp(e, f'c{it}')
            vm.wait(it)
            for kk in range(4): e('\n'.join(reads(4*it + kk, 'l')))
            if it + 2 <= 6: emit(xload(it + 2), it + 2)
            if it == 5:
                for l in wq[:WQE] + [[rdy]]: emit(l, 'wq')
            e('s_waitcnt lgkmcnt(0)')
            for kk in range(4): xdots(4*it + kk)
        e(ln_stats(26, 27, 246, 247, 248)); e(xm_frag)
        stamp(e, 'p1end')
        e('s_waitcnt vmcnt(0)')
        rdycheck('L_rl', False)
        e('s_branch L_q')
    variant('v', None); light(); variant('k', 'L_kk')
    e('L_q:')
    stamp(e, 'p1st')
    for l in wq[WQE:]: emit(l, 'wq2')
    emit(unit_dma, 'wq2')
    vm.wait('wq'); e('s_barrier')
    def qrd(s, dst=None):
        it, kk = divmod(s, 4)
        if dst is None: dst = ACC + 4*(s & 7)
        return [f'ds_read_b64_tr_b16 {vr(dst+2*rd,2)}, v{21+kk} offset:{it*4096 + rd*256}' for rd in range(2)]
    QS = knob('qs', 5 if WQE == 7 else 3)
    assert (3 <= WQE <= 4 and QS <= WQE) or WQE == 7
    def s1signal():
        vm.wait('kv')
        e("""s_barrier
s_cmp_lg_u32 s16, 0
s_cbranch_scc1 L_s1b
s_mov_b64 exec, 0xff
buffer_atomic_add v31, v255, s[12:15], 0 offen sc1
s_mov_b64 exec, -1
L_s1b:""")
        stamp(e, 's1sig')
    def unit_out(r):
        for f in range(2):
            for rd in range(2): e(f'ds_read_b64_tr_b16 {vr(r+4*f+2*rd,2)}, v{252+f} offset:{rd*(256 if M16 else 512)}')
        e('s_waitcnt lgkmcnt(0)')
        for f in range(2): vm.op(f'buffer_store_dwordx4 {vr(r+4*f,4)}, v2, s[12:15], s56 offen offset:{1024*f} sc1', 'ust')
    lateprk = [n for n, d in enumerate(park) if XF <= d < XF + 112]
    F.add(f'v_mul_f32 v26, {f32(QSCALE)}, v248\nv_mov_b32 v2, v254')
    for n, d in enumerate(park):
        if n not in lateprk: F.add(f'v_accvgpr_read_b32 v{d}, a{n}')
    F.add(f"""v_xor_b32 v249, {3*2048}, v15
v_xor_b32 v250, {2*2048}, v15
v_xor_b32 v251, {1*2048}, v15
v_mov_b32 v{RM}, 0
v_mov_b32 v7, 0xdddd
s_mov_b32 s8, s60
s_mov_b32 s9, s61
s_cmp_lt_u32 s20, 14
s_cselect_b32 s10, {16*3584}, 0
s_mov_b32 s34, 3584
s_mov_b32 s38, 896
s_mov_b32 s42, {2048*896}
s_mov_b32 s43, 0x00020000""")
    late_fill = '\n'.join(f'v_accvgpr_read_b32 v{park[n]}, a{n}' for n in lateprk) + '\n' + \
                '\n'.join(f'v_add_u32 v{165+i}, {i*(4*3584-1024)}, v165' for i in range(1, 4)) + '\n' + \
                '\n'.join(f'v_xor_b32 v{161+b}, {64*b}, v161' for b in range(1, 4))
    cs_fill = f"""v_add_f32 v96, v96, v97
v_add_f32 v98, v98, v99
v_add_f32 v30, v96, v98
v_and_b32 v28, 0xffff0000, v30
v_sub_f32 v29, v30, v28
v_cvt_pk_bf16_f32 v{CF+8}, v28, v29
v_lshrrev_b32 v{CF+9}, 16, v30"""
    def qcs(g0, g1, r0):
        n = g1 - g0
        for g in range(g0, g1): e('\n'.join(qrd(4*g, r0 + 4*(g - g0))))
        if n > 4:
            e(f's_waitcnt lgkmcnt({2*(n-4)})')
            for s in range(4*g0, 4*g0 + 4): e('\n'.join(qrd(s)))
            for r in range(16): e(f'v_dot2c_f32_bf16 v30, v{r0+r}, v25')
            e('s_waitcnt lgkmcnt(8)')
            for r in range(16, 4*n): e(f'v_dot2c_f32_bf16 v30, v{r0+r}, v25')
        else:
            for s in range(4*g0, 4*g0 + 3): e('\n'.join(qrd(s)))
            e('s_waitcnt lgkmcnt(6)')
            e('\n'.join(qrd(4*g0 + 3)))
            for r in range(4*n): e(f'v_dot2c_f32_bf16 v30, v{r0+r}, v25')
        if g1 == 7: e(halves_sum(30, 246) + '\nds_write_b32 v243, v30')
    qcs(0, WQE, 76 if WQE == 7 else 80)
    for g in range(7):
        for k in range(4):
            s = 4*g + k
            e(f's_waitcnt lgkmcnt({2*min(3, 27-s, (4*WQE-1-s) if g < WQE else 3)})')
            e(f'{MF} {vr(QA,16)}, {vr(ACC+4*(s&7),4)}, {vr(XF+4*s,4)}, ' + (vr(QA, 16) if s else '0'))
            if s + 4 < 28 and g + 1 != WQE: e('\n'.join(qrd(s+4)))
            F.drain(3 if g < 6 else 5)
        if g + 1 == QS: s1signal()
        if WQE < 7 and g + 1 == WQE:
            vm.wait('wq2'); e('s_barrier')
            unit_out(96); qcs(WQE, 7, 80)
        if g == (1 if WQE == 7 else WQE):
            e('s_barrier')
            for w in range(4): e(f'ds_read_b32 v{96+w}, v242 offset:{256*w}')
        if g == (3 if WQE == 7 else 5): F.add(cs_fill)
        if g == 4: F.add(late_fill)
        if WQE == 7 and g + 1 == knob('us', 6): vm.wait('wq2'); unit_out(80)
    F.drain(999)
    e(f"""{MF} {vr(QA,16)}, {vr(CF+8,4)}, {vr(XM,4)}, {vr(QA,16)}
s_load_dwordx2 s[32:33], s[0:1], 40
s_load_dwordx2 s[36:37], s[0:1], 56
s_load_dwordx2 s[40:41], s[0:1], 64
s_getpc_b64 s[80:81]
L_pc1:""")
    vm.op('global_load_dword v242, v170, s[80:81]', 'T')
    for s in (0, 2, 3): e(f'{MF} {vr(O+16*s,16)}, {vr(RM,4)}, {vr(RM,4)}, 0')
    w1n = [0]
    def w1set():
        it = w1n[0] // 4
        return [f's_add_u32 m0, s59, {it*16384}'] + ([f's_add_u32 s8, s8, {64*3584}\ns_addc_u32 s9, s9, 0'] if it else [])
    def w1l():
        i = w1n[0] % 4
        vm.op(f'buffer_load_dwordx4 v{165+i}, s[8:11], 0 offen offset:{1024*i} lds', 'W1'); w1n[0] += 1
    WB_ = knob('w1b', 0)
    for n in range(WB_):
        if n % 4 == 0: e('\n'.join(w1set()))
        w1l()
    for p in range(8):
        e(f'v_mul_f32 v{QA+2*p}, v26, v{QA+2*p}\nv_mul_f32 v{QA+2*p+1}, v26, v{QA+2*p+1}')
        e(f'v_cvt_pk_bf16_f32 v{Q+24+p}, v{QA+2*p}, v{QA+2*p+1}')
    e(f"""v_and_b32 v{Q+24}, v13, v{Q+24}
v_and_b32 v{Q+25}, v13, v{Q+25}
v_and_b32 v{Q+30}, v5, v{Q+30}
v_and_b32 v{Q+31}, v5, v{Q+31}
ds_write_b128 v15, {vr(Q+24,4)}
ds_write_b128 v15, {vr(Q+28,4)} offset:1024
{MF} {vr(O+16,16)}, {vr(RM,4)}, {vr(RM,4)}, 0
s_add_u32 s76, s51, {HINT}
s_mov_b32 m0, s46""")
    stamp(e, 's1win')
    def poll2(lab, addr, so_hint, so, n):
        e(f's_cmp_lg_u32 s16, 0\ns_cbranch_scc1 {lab}done\ns_mov_b32 s26, {POLL_MAX}')
        for l, x in ((lab + 'hint', so_hint), (lab + 'poll', so)):
            if x: e(f"""{l}:
buffer_load_dword v15, {addr}, s[12:15], {x} sc1
s_sub_u32 s26, s26, 1
s_cbranch_scc1 {lab}done
s_waitcnt vmcnt(0)
v_cmp_gt_u32 vcc, {n}, v15
s_cbranch_vccnz {l}""")
        e(f'{lab}done:\ns_waitcnt lgkmcnt(0)\ns_barrier')
    NH = knob('nh', 2)
    poll2('L_s1', 'v169', None if NH & 1 else 's76 offen', 's51 offen', 14)
    stamp(e, 's1done')
    def kvset(j): return f's_add_u32 m0, s{46 + (j >> 3)}, {(j & 7)*TTP}'
    def kl(j, t): vm.op(f'buffer_load_dwordx4 {ar(16*j+4*t,4)}, v3, s[12:15], m0 offen offset:{1024*t} sc1', f'K{j}')
    def vl(j, t): vm.op(f'buffer_load_dwordx4 {ar(16*j+8+4*t,4)}, v{248 if t else 4}, s[12:15], m0 offen sc1', f'V{j}')
    KV0 = knob('kv0', 2)
    for j in range(KV0):
        kl(j, 0); kl(j, 1); vl(j, 0); vl(j, 1); e(kvset(j + 1))
    for s in range(3):
        for t in range(2): e(f'ds_read_b128 {vr(Q+8*s+4*t,4)}, v{249+s} offset:{1024*t}')
    steps = [(s, j) for j in range(16) for s in range(3)] + [(3, j) for j in range(16)]
    N = len(steps)
    def qk(i, t):
        s, j = steps[i]; d = vr(S + 16*(i % 3), 16)
        return f'{MF} {d}, {ar(16*j+4*t,4)}, {vr(Q+8*s+4*t,4)}, ' + ('0' if t == 0 else d)
    def pv(i, t):
        s, j = steps[i]
        return f'{SM} {vr(O+16*s,16)}, {ar(16*j+8+4*t,4)}, {vr(S+16*(i%3)+8*t,8)}, v7'
    free, post = {}, {}
    def P(d, q, f): d.setdefault(q, []).append(f)
    WX = 2048 if M16 else 1024
    def wfrag(kind, n):
        g, r = divmod(n, 4)
        if M16: f, off, reg = r >> 1, (r & 1)*1024, 16*g + 4*r
        else: f, off, reg = r & 1, (r >> 1)*2048, 16*g + 4*r
        dst = vr(WOF + reg, 4) if kind == 'Wo' else ar(reg, 4)
        return (f's_add_u32 m0, s{44 if kind == "Wo" else 45}, {g*4096}', f'buffer_load_dwordx4 {dst}, v{252+f}, s[12:15], m0 offen offset:{off} sc1')
    w2n = [0]
    def w2l(n=1, setm=False):
        for _ in range(n):
            if w2n[0] >= 56: return
            a, b = wfrag('W2', w2n[0])
            if setm or w2n[0] % 4 == 0: e(a); setm = False
            vm.op(b, 'W2'); w2n[0] += 1
    def wfcheck():
        e('v_cmp_gt_u32 vcc, 16, v243\ns_lshr_b32 s26, vcc_hi, 16\ns_cbranch_scc1 L_wf\nL_wfd:')
        slow.append(f"""L_wf:
s_mov_b32 s26, {POLL_MAX}
L_wfp:
buffer_load_dword v243, v241, s[12:15], 0 offen sc1
s_sub_u32 s26, s26, 1
s_cbranch_scc1 L_wfd
s_waitcnt vmcnt(0)
v_cmp_gt_u32 vcc, 16, v243
s_nop 1
s_lshr_b32 s76, vcc_hi, 16
s_cbranch_scc1 L_wfp
s_branch L_wfd""")
    vq = []
    for j in range(KV0, 16):
        for n, (f, t) in enumerate(((kl, 0), (kl, 1), (vl, 0), (vl, 1))):
            vq.append(([kvset(j)] if n == 0 and j > KV0 else [], (lambda f=f, j=j, t=t: f(j, t)), 1))
    vq.append(([], lambda: vm.op('buffer_load_dword v243, v241, s[12:15], 0 offen sc1', 'T0'), 2))
    for t in range(2):
        if M16: vq.append(([f's_add_u32 m0, s27, {16*896*t}'], (lambda t=t: vm.op(f'buffer_load_dwordx4 {vr(224+4*t,4)}, v0, s[4:7], m0 offen', 'sm')), 1))
        else: vq.append((['s_mov_b32 m0, s27'] if t == 0 else [], (lambda t=t: vm.op(f'buffer_load_dwordx4 {vr(224+4*t,4)}, v0, s[4:7], m0 offen offset:{32*t}', 'sm')), 1))
    for t in range(1 if M16 else 2): vq.append(([], (lambda t=t: vm.op(f'buffer_load_dwordx4 {vr(232+4*t,4)}, v160, s[36:39], 0 offen offset:{32*t}', 'sm')), 1))
    for b in range(4): vq.append(([], (lambda b=b: vm.op(f'buffer_load_ushort v{244+b}, v{161+b}, s[32:35], 0 offen', 'sm')), 1))
    for n in range(WB_, 28):
        it = n // 4
        vq.append(((([f's_add_u32 s8, s8, {64*3584}\ns_addc_u32 s9, s9, 0'] if it else []) + [f's_add_u32 m0, s59, {it*16384}']) if n % 4 == 0 else [], w1l, 1))
    nchk = len(vq)
    for n in range(16):
        a, b = wfrag('Wo', n); vq.append(([a] if n % 4 == 0 else [], (lambda b=b: vm.op(b, 'Wo')), 1))
    if knob('t2', 0): vq.append(([], lambda: vm.op('buffer_load_dword v242, v241, s[12:15], 0 offen sc1', 'T'), 1))
    if H1M: vq.append((['s_mov_b32 m0, s28'], lambda: vm.op('buffer_load_dword v242, v240, s[12:15], m0 offen sc1', 'T'), knob('h1g', 8)))
    TL = knob('tl', 0); tail = []
    if TL: k = len(vq) - bool(H1M) - bool(knob('t2', 0)); tail = vq[k:]; vq = vq[:k]
    hs = 0
    def place(sal, f):
        if sal: P(free, 2*hs - 1, lambda x=sal[-1]: e(x))
        if len(sal) > 1: P(free, 2*hs, lambda x=sal[0]: e(x))
        P(post, 2*hs, f)
    for n, (sal, f, d) in enumerate(vq):
        if n == nchk: P(free, 2*hs - 3, lambda: vm.wait('T0')); P(post, 2*hs - 3, wfcheck)
        place(sal, f); hs += d
    hs = max(hs, 100)
    W2A = max(0, min(knob('w2a', 24), 126 - TL - hs)) // 4 * 4
    for n in range(W2A):
        a, b = wfrag('W2', n); place([a] if n % 4 == 0 else [], (lambda b=b: vm.op(b, 'W2'))); hs += 1
    for sal, f, d in tail: place(sal, f); hs += 1
    w2n[0] = W2A
    P(free, 2, lambda: vm.wait('V0'))
    for j in range(1, 16):
        if j < 6: P(free, 4*(3*j-1) - 2, (lambda j=j: vm.wait(f'V{j}')))
        elif j % 2 == 0: P(free, 4*(3*j-1) - 2, (lambda j=j: vm.wait(f'V{j+1}')))
    def pwr(s, q): return f'ds_write_b128 v{9+s}, {vr(O+16*s+4*q,4)} offset:{s*4096 + q*1024}'
    def prd(s, q): return f'ds_read_b128 {vr(O+16*s+4*q,4)}, v12 offset:{s*4096 + q*1024}'
    for k in range(12): P(post, 4*50 + 1 + 2*k, (lambda k=k: e(pwr(k//4, k % 4))))
    P(free, 4*59, lambda: vm.wait('W1', 'lgkmcnt(0)')); P(free, 4*59 + 2, lambda: e('s_barrier'))
    for k in range(12): P(post, 4*60 + k, (lambda k=k: e(prd(k//4, k % 4))))
    vm.wait('ust', 'lgkmcnt(0)')
    e(f"""s_barrier
s_cmp_lg_u32 s16, 0
s_cbranch_scc1 L_s1c
s_mov_b64 exec, 0x1ff
buffer_atomic_add v8, v14, s[12:15], 0 offen sc1
s_mov_b64 exec, -1
L_s1c:
v_mov_b32 v249, v173
v_add_u32 v254, 0x10000, v173
v_mov_b32 v250, v174
v_mov_b32 v251, v175
v_mov_b32 v5, v176
v_mov_b32 v252, v171
v_xor_b32 v253, {WX}, v171
v_mov_b32 v255, v{172 if M16 else 2}
v_mov_b32 v8, 1
v_mov_b32 v14, 0x3f803f80""")
    vm.wait('K0')
    stamp(e, 'a0')
    e(qk(0, 0)); e(qk(0, 1))
    for i in range(N):
        if i == 48: stamp(e, 'aB')
        if i: stamp(e, f'a{i}')
        b = S + 16*(i % 3)
        mf = [qk(i+1, 0) if i+1 < N else None, qk(i+1, 1) if i+1 < N else None, pv(i-1, 1) if i > 0 else None, pv(i, 0)]
        for sl in range(4):
            if mf[sl]: e(mf[sl])
            for f in free.get(4*i + sl, []) + post.get(4*i + sl, []): f()
            for r in range(4): e(f'v_exp_f32 v{b+4*sl+r}, v{b+4*sl+r}')
    e(pv(N-1, 1))
    if not NH & 2: vm.op('buffer_atomic_add v8, v250, s[12:15], 0 offen offset:128 sc1', 'sig')
    assert w1n[0] == 28
    e('L_combine:')
    stamp(e, 'comb')
    e('s_waitcnt lgkmcnt(0)')
    for r in range(16): e(f'v_add_f32 v{O+r}, v{O+r}, v{O+16+r}')
    for p in range(8): e(f'v_pk_add_f32 {vr(O+2*p,2)}, {vr(O+2*p,2)}, {vr(O+32+2*p,2)}')
    for p in [6, 0, 1, 2, 3, 4, 5, 7]:
        e(f'v_pk_add_f32 {vr(O+2*p,2)}, {vr(O+2*p,2)}, {vr(O+48+2*p,2)}')
        if p == 6: e(f'v_mov_b32 v13, v{O+12}\nv_mov_b32 v15, v{O+12}')
        if p == 1: e('v_permlane32_swap_b32 v13, v15')
        if p == 2: e('v_rcp_f32 v158, v15')
    for p in range(8):
        e(f'v_pk_mul_f32 {vr(O+2*p,2)}, {vr(O+2*p,2)}, v[158:159] op_sel_hi:[1,0]')
        e(f'v_cvt_pk_bf16_f32 v{O+p}, v{O+2*p}, v{O+2*p+1}')
        if p == 3: vm.op(f'buffer_store_dwordx4 {vr(O,4)}, v2, s[12:15], s3 offen sc1', 'Ost')
        if p == 6: e(f'v_and_b32 v{O+6}, v6, v{O+6}')
    e(f'v_and_b32 v{O+7}, v6, v{O+7}')
    vm.op(f'buffer_store_dwordx4 {vr(O+4,4)}, v2, s[12:15], s3 offen offset:1024 sc1', 'Ost')
    if knob('t1', 0): vm.op('buffer_load_dword v242, v241, s[12:15], 0 offen sc1', 'T')
    def csrd(dst, s):
        return [f'ds_read_b64_tr_b16 {vr(dst+2*rd,2)}, v{254 if s >= 16 else 249} offset:{(s & 15)*4096 + rd*1024}' for rd in range(2)]
    for k in range(4): e('\n'.join(csrd(S + 4*k, k)))
    e(f"""v_cmp_nle_f32 vcc, {f32(2.0**-40)}, v15
v_mov_b32 v156, 0
v_mov_b32 v157, 0
s_mov_b64 s[82:83], vcc
v_cmp_nge_f32 vcc, {f32(2.0**40)}, v15
v_add_u32 v15, v12, v5
s_or_b64 vcc, vcc, s[82:83]
s_cselect_b32 s26, 1, 0
s_andn2_b32 s26, s26, s30
v_mov_b32 v13, s26""")
    B0 = knob('b0', 8); CS = knob('cs', 4)
    def csgroup(g):
        if g < 7:
            for k in range(4): e('\n'.join(csrd(S + 16*(g & 1) + 4*k, 4*g + k)))
        if g <= CS: w2l(B0*g//CS - B0*(g-1)//CS)
        e(f's_waitcnt lgkmcnt({8 if g < 7 else 0})')
        for r in range(16): e(f'v_dot2c_f32_bf16 v{156 + (r & 1)}, v{S + 16*((g-1) & 1) + r}, v14')
    for g in range(1, CS + 1): csgroup(g)
    e('ds_write_b32 v12, v13')
    vm.wait('Ost', 'lgkmcnt(0)')
    e("""s_barrier
ds_read_b32 v13, v251
s_waitcnt lgkmcnt(0)
v_cmp_ne_u32 vcc, 0, v13
s_cbranch_vccnz L_fallback""")
    vm.op('buffer_atomic_add v8, v250, s[12:15], 0 offen sc1', 'sig2')
    stamp(e, 's2sig')
    e(f's_cmp_ge_u32 s20, 14\ns_cbranch_scc1 {"L_wb" if H1M == 3 or knob("wb", 0) else "L_end"}')
    B1 = knob('b1', 14)
    for g in range(CS + 1, 8):
        w2l(B1*(g-CS)//(7-CS) - B1*(g-CS-1)//(7-CS))
        csgroup(g)
    ACC3, AF = 80, 16
    WA = 240
    e('v_add_f32 v156, v156, v157')
    e(halves_sum(156, 157))
    e("""ds_write_b32 v15, v156 offset:8192
v_add_u32 v157, v11, v5
v_add_u32 v158, v10, v5
v_add_u32 v159, v9, v5
v_readlane_b32 s31, v243, 20
v_mov_b32 v13, 0
s_mov_b32 m0, s63""")
    for r in range(8): e(f'v_lshlrev_b32 v{ACC3+2*r}, 16, v{224+r}\nv_and_b32 v{ACC3+2*r+1}, 0xffff0000, v{224+r}')
    e('s_cmp_eq_u32 s31, s29\ns_cselect_b32 s31, 1, 0')
    if knob('nolocal', 0): e('s_mov_b32 s31, 0')
    stamp(e, 's2win')
    poll2('L_s2', 'v13', None if NH & 2 else 's25 offen offset:128', 's25 offen', 16)
    stamp(e, 's2done')
    def aoff(n): return ((n >> 1) & 1)*2048 + (n & 1)*256 if M16 else (n & 3)*1024
    def ol(a, n):
        if n % 4 == 0 and (a, n) != (1, 0): e(f's_add_u32 m0, s{62+a}, {n*1024}')
        vm.op(f'buffer_load_dwordx4 {vr(AF+32*a+4*n,4)}, v255, s[12:15], m0 offen offset:{aoff(n)} sc1', f'O{a}{n}')
    for n in range(8): ol(1, n)
    e('ds_read_b32 v157, v157 offset:8192\nds_read_b32 v158, v158 offset:8192\nds_read_b32 v159, v159 offset:8192')
    for n in range(4): ol(0, n)
    e(f"""v_and_b32 v3, 0x1f0, v2
s_and_b32 s76, s23, 3
s_lshl_b32 s77, s76, 5
s_add_u32 s77, s77, s24
s_lshl_b32 s77, s77, 2
v_mov_b32 v4, s77
v_min_u32 v5, 13, v1
v_lshlrev_b32 v5, 2, v5
s_lshl_b32 s77, s16, 5
s_add_u32 s77, s77, s20
s_lshl_b32 s77, s77, 2
v_mov_b32 v14, s77
s_mul_i32 s77, s16, 7
s_lshr_b32 s77, s77, 1
v_and_b32 v7, 3, v1
v_add_u32 v7, s77, v7
v_bfe_u32 v13, v1, 2, 1
v_lshl_add_u32 v7, v13, 5, v7
v_lshlrev_b32 v7, 2, v7
v_lshrrev_b32 v250, 2, v2
s_lshl_b32 s77, s16, 8
v_add_u32 v251, s77, v250
{'v_and_b32 v250, 60, v250' if M16 else ''}
s_lshl_b32 s76, s76, 8
v_add_u32 v250, s76, v250
s_waitcnt lgkmcnt(0)""")
    for b in range(4):
        e(f"""v_and_b32 v13, 0xffff0000, v{156+b}
v_sub_f32 v15, v{156+b}, v13
v_cvt_pk_bf16_f32 v15, v13, v15
v_lshrrev_b32 v13, 16, v13
v_lshl_or_b32 v13, v{244+b}, 16, v13
v_accvgpr_write_b32 a{224+4*b}, v15
v_accvgpr_write_b32 a{225+4*b}, v13
v_accvgpr_write_b32 a{226+4*b}, v{244+b}
v_accvgpr_write_b32 a{227+4*b}, 0""")
    for r in range(4 if M16 else 8): e(f'v_lshlrev_b32 v{144+2*r}, 16, v{232+r}\nv_and_b32 v{145+2*r}, 0xffff0000, v{232+r}')
    for b in range(4): e(f'v_xor_b32 v{WA+b}, {64*b}, v249\nv_xor_b32 v{WA+4+b}, {64*b}, v254')
    for n in range(4, 8): ol(0, n)
    def rwr(s, A, q): return f'ds_write_b128 v{12-s}, {vr(A+16*s+4*q,4)} offset:{(3-s)*4096 + q*1024}'
    def rrd(s, A, q): return f'ds_read_b128 {vr(A+16*s+4*q,4)}, v12 offset:{(3-s)*4096 + q*1024}'
    def mm(A, wk, wb, act, a, f, n, init):
        T = A + 16*(2*a + f)
        if not M16:
            return [f'{MF} {vr(T,16)}, {vr(wb+8*n+4*f,4,wk)}, {vr(act,4)}, ' + ('0' if n == 0 and init else vr(T, 16))]
        return [f'{MH} {vr(T+8*(n&1)+4*u,4)}, {vr(wb+16*(n>>1)+8*f+4*u,4,wk)}, {vr(act,4)}, ' + ('0' if n < 2 and init else vr(T+8*(n&1)+4*u, 4)) for u in range(2)]
    def m3(a, f, n): e('\n'.join(mm(ACC3, 'v', WOF, AF+32*a+4*n, a, f, n, (a, f) != (0, 0))))
    B2 = knob('b2', 8)
    for n in range(8):
        vm.wait(f'O1{n}'); stamp(e, f'o{n}'); m3(1, 1, n); m3(1, 0, n)
        if n >= 8 - B2: w2l(1, n == 8 - B2)
    LAG = 2
    for n in range(8):
        vm.wait(f'O0{n}'); stamp(e, f'o{8+n}'); m3(0, 1, n)
        if 1 <= n < 5: e(rwr(3 - (n-1)//2, ACC3, 2*((n-1) % 2)))
        if n >= LAG: m3(0, 0, n - LAG)
        if 1 <= n < 5: e(rwr(3 - (n-1)//2, ACC3, 2*((n-1) % 2) + 1))
        if n == knob('p3b', 5):
            e('s_waitcnt lgkmcnt(0)\ns_barrier')
            for q in range(4): e(rrd(3, ACC3, q) + '\n' + rrd(2, ACC3, q))
    stamp(e, 'p3mf')
    e('s_waitcnt lgkmcnt(0)')
    for n in range(8 - LAG, 8):
        m3(0, 0, n)
        for r in range(4*(n - 8 + LAG), 4*(n - 7 + LAG)): e(f'v_add_f32 v{ACC3+32+r}, v{ACC3+32+r}, v{ACC3+48+r}')
    for q in range(4):
        e(rwr(1, ACC3, q))
        for r in range(8 + 2*q, 10 + 2*q): e(f'v_add_f32 v{ACC3+32+r}, v{ACC3+32+r}, v{ACC3+48+r}')
    for p in range(8): e(f'v_pk_add_f32 {vr(ACC3+2*p,2)}, {vr(ACC3+2*p,2)}, {vr(ACC3+32+2*p,2)}')
    e('s_waitcnt lgkmcnt(0)\ns_barrier')
    for q in range(4): e(rrd(1, ACC3, q))
    HN = ' nt' if knob('hn', 0) else ''
    def dual(lines, tag, lab, loc=''):
        e(f's_cmp_lg_u32 s31, 0\ns_cbranch_scc0 {lab}_s')
        for l in lines: vm.op(l + loc, tag)
        e(f'{lab}_d:')
        slow.append(f'{lab}_s:\ns_nop 1\n' + '\n'.join(l + ' sc1' for l in lines) + f'\ns_nop 1\ns_branch {lab}_d')
    for q in range(4):
        e(f's_waitcnt lgkmcnt({3-q})')
        for p in (2*q, 2*q+1):
            e(f'v_pk_add_f32 {vr(ACC3+2*p,2)}, {vr(ACC3+2*p,2)}, {vr(ACC3+16+2*p,2)}')
            e(f'v_cvt_pk_bf16_f32 v{16+p}, v{ACC3+2*p}, v{ACC3+2*p+1}')
    dual([f'buffer_store_dwordx4 {vr(16+4*t,4)}, v255, s[12:15], s64 offen offset:{(256 if M16 else 1024)*t}' for t in range(2)], 'hst', 'L_h', HN)
    def psum(d, p0, p1):
        A = ACC3 + 2*p0
        e(f'v_pk_mul_f32 {vr(d+2,2)}, {vr(A,2)}, {vr(A,2)}\nv_pk_add_f32 {vr(d,2)}, {vr(A,2)}, {vr(A+2,2)}\nv_pk_fma_f32 {vr(d+2,2)}, {vr(A+2,2)}, {vr(A+2,2)}, {vr(d+2,2)}')
        for p in range(p0 + 2, p1):
            e(f'v_pk_add_f32 {vr(d,2)}, {vr(d,2)}, {vr(ACC3+2*p,2)}\nv_pk_fma_f32 {vr(d+2,2)}, {vr(ACC3+2*p,2)}, {vr(ACC3+2*p,2)}, {vr(d+2,2)}')
        e(f'v_add_f32 v{d}, v{d}, v{d+1}\nv_add_f32 v{d+1}, v{d+2}, v{d+3}')
    if M16:
        psum(24, 0, 4); psum(28, 4, 8)
        e('v_permlane16_swap_b32 v24, v28\nv_permlane16_swap_b32 v25, v29\nv_pk_add_f32 v[24:25], v[24:25], v[28:29]')
    else: psum(24, 0, 8)
    e("""v_mov_b32 v26, v24
v_mov_b32 v27, v25
v_permlane32_swap_b32 v24, v26
v_permlane32_swap_b32 v25, v27
v_pk_add_f32 v[24:25], v[24:25], v[26:27]""")
    dual(['buffer_store_dwordx2 v[24:25], v3, s[12:15], s65 offen'], 'hst', 'L_s', HN)
    stamp(e, 'p3st')
    w2l(knob('b3', 0), True)
    for p in range(8): e(f'v_pk_add_f32 {vr(224+2*p,2)}, {vr(144+2*(p % 4 if M16 else p),2)}, {vr(ACC3+2*p,2)}')
    HF, ACC4, WF, STT = 16, 128, 192, 208
    HP = knob('hp', 8); PER = knob('per', 76)
    SP = knob('sp', 10)
    order = list(range(SP + 1)) + ['s0', 's1', 's2', 's3'] + list(range(SP + 1, 28))
    arr = {x: n*PER for n, x in enumerate(order)}
    mlist = []; nxt = [0, 0, 0, 0]; t = 0
    while min(nxt) < 28:
        c = [b for b in range(4) if nxt[b] < 28 and arr[nxt[b]] <= t]
        if not c: t = min(arr[nxt[b]] for b in range(4) if nxt[b] < 28); continue
        b = min(c, key=lambda b: (b >> 1 and b, nxt[b], b))
        mlist.append((nxt[b], b)); nxt[b] += 1; t += 32
    M = len(mlist)
    last = [max(m for m, (s, b2) in enumerate(mlist) if b2 == b) for b in range(4)]
    firstm = [min(m for m, (s, b2) in enumerate(mlist) if b2 == b) for b in range(4)]
    def w1rd(dst, s, b, k='v'):
        base = WA + b + (4 if s >= 16 else 0); off = (s & 15)*4096
        return [f'ds_read_b64_tr_b16 {vr(dst+2*rd,2,k)}, v{base} offset:{off + rd*1024}' for rd in range(2)]
    def wreg(m): return ('v', WF + 4*(m & 7)) if (m & 7) < 4 else ('a', 240 + 4*((m & 7) - 4))
    def rds(m):
        s, b = mlist[m]; k, r = wreg(m)
        return w1rd(r, s, b, k)
    LD = 6
    for m in range(LD): e('\n'.join(rds(m)))
    e('s_mov_b32 m0, s67')
    vm.wait('hst')
    dual([f'buffer_store_dword v8, v4, s[12:15], s25 offen offset:{16*128}'], 'f3', 'L_f3')
    stamp(e, 'p3end')
    def poll(lab, addr, so):
        e(f"""s_mov_b32 s26, {POLL_MAX}
{lab}:
buffer_load_dword v13, {addr}, s[12:15], {so} sc1
s_sub_u32 s26, s26, 1
s_cbranch_scc1 {lab}_x
s_waitcnt vmcnt(0)
v_cmp_ne_u32 vcc, 1, v13
s_cbranch_vccnz {lab}
{lab}_x:""")
    poll('L_p3', 'v5', f's66 offen offset:{16*128}')
    stamp(e, 's3done')
    def hl(x):
        if isinstance(x, str):
            p = int(x[1]); vm.op(f'buffer_load_dwordx4 {vr(STT+4*p,4)}, v2, s[12:15], s68 offen offset:{1024*p} sc1', 'st'); return
        if x and x % 4 == 0: e(f's_add_u32 m0, s67, {x*1024}')
        vm.op(f'buffer_load_dwordx4 {vr(HF+4*x,4)}, v2, s[12:15], m0 offen offset:{(x&3)*1024} sc1', f'h{x}')
    for x in order[:HP]: hl(x)
    hq = order[HP:]
    XB = STT + 8
    def add_stats():
        F.add(lambda: vm.wait('st'))
        F.add('\n'.join(f'v_and_b32 v{STT+12+r}, v6, v{STT+12+r}' for r in range(4)))
        for k in range(1, 8): F.add(f'v_add_f32 v{STT}, v{STT}, v{STT+2*k}\nv_add_f32 v{STT+1}, v{STT+1}, v{STT+2*k+1}')
        F.add(ln_stats(STT, STT+1, STT+2, STT+3, STT+4, STT+5))
        F.add(f"""v_sub_f32 v{STT+3}, 0, v{STT+3}
v_and_b32 v{STT+3}, v6, v{STT+3}
v_and_b32 v{STT+5}, v6, v{STT+5}
v_and_b32 v{STT+6}, 0xffff0000, v{STT+3}
v_sub_f32 v{STT+7}, v{STT+3}, v{STT+6}
v_cvt_pk_bf16_f32 v{XB}, v{STT+6}, v{STT+6}
v_and_b32 v{STT+6}, 0xffff0000, v{STT+5}
v_cvt_pk_bf16_f32 v{XB+1}, v{STT+7}, v{STT+6}
v_sub_f32 v{STT+7}, v{STT+5}, v{STT+6}
v_cvt_pk_bf16_f32 v{XB+2}, v{STT+7}, 0
v_mov_b32 v{XB+3}, 0
v_mul_f32 v248, v{STT+4}, v{STT+4}""")
        F.mark('st')
    def epi(b):
        A = ACC4 + 16*b
        for p in range(8):
            F.add(f"""v_mul_f32 v{A+2*p}, v{A+2*p}, abs(v{A+2*p})
v_mul_f32 v{A+2*p+1}, v{A+2*p+1}, abs(v{A+2*p+1})
v_cvt_pk_bf16_f32 v{A+p}, v{A+2*p}, v{A+2*p+1}
v_pk_max_i16 v{A+p}, v{A+p}, 0""")
            if p % 4 == 3:
                l = f'buffer_store_dwordx4 {vr(A+4*(p//4),4)}, v2, s[12:15], s{72+b} offen offset:{1024*(p//4)}'
                if H1M == 0: F.add(lambda l=l: vm.op(l + ' sc1', 'h1st'))
                else: F.add(lambda l=l, n=2*b + p//4: dual([l], 'h1st', f'L_e{n}', ' nt' if H1M == 2 else ''))
    mst = min(m for m, (s, b) in enumerate(mlist) if s > SP) + 2
    XK = min(last[0], last[1]) - 1
    w2set = [True]
    for m, (s, b) in enumerate(mlist):
        if m == mst: add_stats()
        if m == last[1] + 1: stamp(e, 'p4a')
        for b2 in range(3):
            if m == last[b2] + 4: epi(b2)
        lg = f'lgkmcnt({2*max(0, min(LD-2, M-2-m))})' if m % 2 == 0 else ''
        vm.wait(f'h{s}', lg)
        if b == 0: stamp(e, f'h{s}')
        acc = vr(ACC4 + 16*b, 16); k, r = wreg(m)
        zero = s == 0
        if s == 0 and m > XK: e(f'{MF} {acc}, {ar(224+4*b,4)}, {vr(XB,4)}, 0'); zero = False
        e(f'{MF} {acc}, {vr(r,4,k)}, {vr(HF+4*s,4)}, ' + ('0' if zero else acc))
        if m % 2 == 1 and hq: hl(hq.pop(0)); n = 2
        elif m % 2 == 1 and w2n[0] < 56: w2l(1, w2set[0]); w2set[0] = False; n = 2
        else: n = 3 if m % 2 else 2
        if m + LD < M: e('\n'.join(rds(m + LD)))
        else: n += 2
        F.drain(n)
        if m == XK:
            F.need('st')
            for b2 in range(4):
                if firstm[b2] <= XK: e(f'{MF} {vr(ACC4+16*b2,16)}, {ar(224+4*b2,4)}, {vr(XB,4)}, {vr(ACC4+16*b2,16)}')
    stamp(e, 'p4mf')
    F.drain(999)
    w2l(56, w2set[0])
    epi(3); F.drain(999)
    e('s_barrier\nds_write_b32 v251, v248\ns_mov_b32 m0, s71')
    vm.wait('h1st')
    dual([f'buffer_store_dword v8, v14, s[12:15], s25 offen offset:{20*128}'], 'f4', 'L_f4')
    stamp(e, 'p4end')
    poll('L_p4', 'v7', f's69 offen offset:{20*128}')
    stamp(e, 's4done')
    GF, ACC5, RING = 16, 144, 32
    GP = knob('gp', 12)
    s5 = [(a, n) for a in (1, 0) for n in range(28)]
    def gl(i):
        a, n = s5[i]
        if i and n % 4 == 0: e(f's_add_u32 m0, s{70+a}, {n*1024}')
        vm.op(f'buffer_load_dwordx4 {vr(GF+4*(i%RING),4)}, v255, s[12:15], m0 offen offset:{aoff(n)} sc1', f'g{i}')
    def m5(a, f, n): e('\n'.join(mm(ACC5, 'a', 0, GF + 4*((n + 28*(1-a)) % RING), a, f, n, True)))
    ON_ = ' nt' if knob('on', 0) else ''
    RS = lambda r: 248 + (2*(r // 8) if M16 else 0)
    for i in range(GP): gl(i)
    for i, (a, n) in enumerate(s5):
        if i == 28: stamp(e, 'p5a')
        vm.wait(f'g{i}')
        stamp(e, f'g{i}')
        m5(a, 1, n)
        if i + GP < 56: gl(i + GP)
        if a == 1: m5(1, 0, n)
        elif n >= LAG: m5(0, 0, n - LAG)
        if a == 0:
            if 3 <= n < 11: e(rwr(2 + (n-3)//4, ACC5, (n-3) % 4))
            if n == 13:
                e('s_waitcnt lgkmcnt(0)\ns_barrier\nds_read_b32 v248, v250')
                if M16: e('ds_read_b32 v250, v250 offset:64')
            if 14 <= n < 18: e(rrd(2, ACC5, n-14) + '\n' + rrd(3, ACC5, n-14))
            if n == 19: e('s_waitcnt lgkmcnt(0)')
            if 19 <= n < 27:
                for r in (2*(n-19), 2*(n-19)+1): e(f'v_add_f32 v{ACC5+32+r}, v{ACC5+32+r}, v{ACC5+48+r}\nv_fmac_f32 v{224+r}, v{RS(r)}, v{ACC5+32+r}')
    stamp(e, 'p5mf')
    for n in range(28 - LAG, 28): m5(0, 0, n)
    for q in range(4): e(rwr(1, ACC5, q))
    if M16: e(f's_add_u32 s26, s27, {16*896}')
    for p in range(8): e(f'v_pk_fma_f32 {vr(224+2*p,2)}, {vr(ACC5+2*p,2)}, {vr(RS(2*p),2)}, {vr(224+2*p,2)} op_sel_hi:[1,0,1]')
    e('s_waitcnt lgkmcnt(0)\ns_barrier')
    for q in range(4): e(rrd(1, ACC5, q))
    for t in range(2):
        e(f's_waitcnt lgkmcnt({2-2*t})')
        for p in range(4*t, 4*t+4):
            e(f'v_pk_fma_f32 {vr(224+2*p,2)}, {vr(ACC5+16+2*p,2)}, {vr(RS(2*p),2)}, {vr(224+2*p,2)} op_sel_hi:[1,0,1]')
            e(f'v_cvt_pk_bf16_f32 v{16+p}, v{224+2*p}, v{225+2*p}')
        if M16: e(f'buffer_store_dwordx4 {vr(16+4*t,4)}, v0, s[40:43], s{27-t} offen' + ON_)
        else: e(f'buffer_store_dwordx4 {vr(16+4*t,4)}, v0, s[40:43], s27 offen offset:{32*t}' + ON_)
    stamp(e, 'p5st')
    stamp_out(e)
    e('s_endpgm')
    for x in slow: e(x)
    if H1M == 3 or knob('wb', 0):
        e(f"""L_wb:
s_cmp_lg_u32 s20, 14
s_cbranch_scc1 L_end
s_cmp_lg_u32 s16, 0
s_cbranch_scc1 L_end
v_and_b32 v5, 15, v1
v_min_u32 v5, 13, v5
v_lshrrev_b32 v13, 4, v1
v_lshl_add_u32 v5, v13, 5, v5
v_lshlrev_b32 v5, 2, v5""")
        poll('L_wbp', 'v5', f's25 offen offset:{(20 if H1M == 3 else 16)*128}')
        e('buffer_wbl2 sc1\ns_waitcnt vmcnt(0)\ns_endpgm')
    e('L_fallback:\ns_mov_b32 s30, 1\ns_waitcnt vmcnt(0) lgkmcnt(0)\ns_barrier')
    for j in range(16):
        e(kvset(j)); kl(j, 0); kl(j, 1); vl(j, 0); vl(j, 1)
        if j == 7: e('s_waitcnt vmcnt(0)')
    e('s_waitcnt vmcnt(0)')
    MXB = SCR
    d = vr(S, 16)
    for s in range(4):
        e(f'v_mov_b32 v{128+s}, 0xff800000')
        for j in range(16):
            e(f'{MF} {d}, {ar(16*j,4)}, {vr(Q+8*s,4)}, 0\n{MF} {d}, {ar(16*j+4,4)}, {vr(Q+8*s+4,4)}, {d}')
            for p in range(8): e(f'v_max3_f32 v{128+s}, v{S+2*p}, v{S+2*p+1}, v{128+s}')
        e(f"""v_mov_b32 v13, v{128+s}
v_permlane32_swap_b32 v{128+s}, v13
v_max_f32 v{128+s}, v{128+s}, v13
s_xor_b32 s76, s16, {3-s}
s_lshl_b32 s76, s76, 9
s_add_u32 s76, s76, {MXB}
v_and_b32 v13, 31, v1
v_lshlrev_b32 v13, 4, v13
v_add_u32 v{132+s}, s76, v13
s_lshl_b32 s76, s16, 2
v_add_u32 v13, s76, v{132+s}
ds_write_b32 v13, v{128+s}""")
    e('s_waitcnt lgkmcnt(0)\ns_barrier')
    for s in range(4): e(f'ds_read_b128 {vr(S+4*s,4)}, v{132+s}')
    e('s_waitcnt lgkmcnt(0)\ns_barrier')
    for s in range(4):
        e(f'v_max3_f32 v{128+s}, v{S+4*s}, v{S+1+4*s}, v{S+2+4*s}\nv_max_f32 v{128+s}, v{128+s}, v{S+3+4*s}')
    for s in range(4):
        for r in range(16): e(f'v_sub_f32 v{NM+r}, 0, v{128+s}\nv_mov_b32 v{O+16*s+r}, 0')
        for j in range(16):
            e(f'{MF} {d}, {ar(16*j,4)}, {vr(Q+8*s,4)}, {vr(NM,16)}\n{MF} {d}, {ar(16*j+4,4)}, {vr(Q+8*s+4,4)}, {d}')
            for r in range(16): e(f'v_exp_f32 v{S+r}, v{S+r}')
            for t in range(2): e(f'{SM} {vr(O+16*s,16)}, {ar(16*j+8+4*t,4)}, {vr(S+8*t,8)}, v7')
            e('s_nop 7')
        e('s_nop 7')
    for k in range(12): e(pwr(k//4, k % 4))
    for n in range(W2A):
        a, b = wfrag('W2', n); e(a + '\n' + b)
    e('s_waitcnt vmcnt(0) lgkmcnt(0)\ns_barrier')
    for k in range(12): e(prd(k//4, k % 4))
    e('s_branch L_combine')
    e('L_end:')

def build1(e, path):
    head = open(f'cdna_kernels/{NAME}.s.ref').read().split('\n')
    name = NAME + '_kernel'
    out = head[:12] + (['; stamps: ' + ' '.join(ST_NAMES)] if STAMP else []) + ['; @launch grid=(256,1,1) block=(256,1,1) lds=163840', '.amdgcn_target "amdgcn-amd-amdhsa--gfx950"\n.text']
    e.fix('-v' in sys.argv)
    out.append(f'.globl {name}\n.p2align 8\n.type {name},@function\n{name}:')
    out.append(e.text() + '    s_endpgm')
    out.append(f""".section .rodata,"a"
.p2align 6
.amdhsa_kernel {name}
  .amdhsa_next_free_vgpr 512
  .amdhsa_next_free_sgpr 102
  .amdhsa_accum_offset 256
  .amdhsa_group_segment_fixed_size 0
  .amdhsa_kernarg_size 88
  .amdhsa_user_sgpr_count 2
  .amdhsa_user_sgpr_kernarg_segment_ptr 1
  .amdhsa_system_sgpr_workgroup_id_x 1
.end_amdhsa_kernel""")
    open(path, 'w').write('\n'.join(out) + '\n')

if __name__ == '__main__':
    e = Asm(); kernel(e)
    outs = [a for a in sys.argv[1:] if a.endswith('.s')]
    build1(e, outs[0] if outs else 'v8.s')
```

```python
import sys, math, struct
from asmlib import *

NAME = 'sequential_preLN__mha_block__dense_activation_squared_relu__prompt'
MF = 'v_mfma_f32_32x32x16_bf16'
MH = 'v_mfma_f32_16x16x32_bf16'
SM = 'v_smfmac_f32_32x32x32_bf16'
def f32(x): return '0x%08x' % struct.unpack('<I', struct.pack('<f', x))[0]
QSCALE = math.log2(math.e) / math.sqrt(28.0)

VP, ONE, TTP = 28672, 57344, 57600
WS_O, WS_H, WS_S, WS_H1, WS_WF, WS_FL, WS_ST = 0x600000, 0x800000, 0x9E0000, 0xA40000, 0x1200000, 0x1400000, 0x1500000
WS_F1, WS_F2, HINT = WS_FL + 0x10000, WS_FL + 0x14000, 0x8000
WS_BYTES = 0x1600000
WFP = 144*2048
POLL_MAX = 1 << 18
STAMP = '--stamp' in sys.argv
def knob(name, d):
    for a in sys.argv:
        if a.startswith(name + '='): return int(a.split('=')[1])
    return d
ST_NAMES = ['start p1go p1st s1sig s1done a0 comb end', 'comb s2sig s2done p3end s3done p4end s4done end',
            'p1go p1end p1st s1sig s1win s1done a0 aB', 's2sig s2win s2done p3mf p3st p3end s3done p4a',
            's3done p4a p4mf p4end s4done p5a p5mf p5st', 'a0 a6 a16 a28 a38 aB a58 comb',
            'start p1ld p1w p1go c1 c3 c5 p1end', 's3done h0 h5 h10 h18 h27 p4mf p4end', 's4done g0 g8 g16 g28 g40 p5mf p5st', 's2done o0 o4 o8 o12 p3mf p3st p3end'][knob('st', 0)].split()

for a in sys.argv:
    if a.startswith('names='): ST_NAMES = a[6:].split(',')
def stamp(e, name):
    if STAMP:
        for i, n in enumerate(ST_NAMES):
            if n == name: e(('s_memtime' if '--cyc' in sys.argv else 's_memrealtime') + f' s[{84+2*i}:{85+2*i}]')
def stamp_out(e):
    if not STAMP: return
    if knob('dwg', -1) >= 0:
        stamp(e, 'end')
        e(f'''s_cmp_lg_u32 s2, {knob('dwg', 0)}
s_cbranch_scc1 L_dgx
s_cmp_lg_u32 s16, {knob('dwv', 0)}
s_cbranch_scc1 L_dgx
s_waitcnt lgkmcnt(0)
s_sub_u32 s4, s88, s86
s_sub_u32 s5, s90, s88
s_lshr_b32 s4, s4, 3
s_lshr_b32 s5, s5, 3
s_min_u32 s4, s4, 63
s_min_u32 s5, s5, 127
s_lshl_b32 s4, s4, 7
s_add_u32 s4, s4, s5
s_mul_i32 s4, s4, 200
s_add_u32 s4, s4, 10000
s_mov_b32 s10, 2000000
L_dgl:
s_sub_u32 s10, s10, 1
s_cbranch_scc1 L_dgx
s_memrealtime s[8:9]
s_waitcnt lgkmcnt(0)
s_sub_u32 s8, s8, s84
s_cmp_lt_u32 s8, s4
s_cbranch_scc1 L_dgl
L_dgx:''')
        return
    e('s_waitcnt vmcnt(0)')
    stamp(e, 'end')
    e('s_waitcnt lgkmcnt(0)')
    e(f's_lshl_b32 s3, s2, 2\ns_add_u32 s3, s3, s16\ns_lshl_b32 s3, s3, 6\ns_add_u32 s3, s3, {WS_ST}\nv_mov_b32 v1, 0')
    for i in range(8):
        e(f'v_mov_b32 v0, s{84+2*i}\nbuffer_store_dword v0, v1, s[12:15], s3 offen offset:{4*i}')

def swap23(d, s, t):
    return f'''v_and_b32 v{d}, 0x33, v{s}
v_and_b32 v{t}, 4, v{s}
v_lshl_or_b32 v{d}, v{t}, 1, v{d}
v_lshrrev_b32 v{t}, 1, v{s}
v_and_or_b32 v{d}, v{t}, 4, v{d}'''
def halves_sum(r, t):
    return f'v_mov_b32 v{t}, v{r}\nv_permlane32_swap_b32 v{r}, v{t}\nv_add_f32 v{r}, v{r}, v{t}'
def ln_stats(vs, vq, t, mean, rstd, sig=None):
    s = halves_sum(vs, t) + '\n' + halves_sum(vq, t) + f'''
v_mul_f32 v{mean}, {f32(1/448)}, v{vs}
v_mul_f32 v{t}, v{mean}, v{mean}
v_mov_b32 v{rstd}, {f32(1/448)}
v_fma_f32 v{t}, v{vq}, v{rstd}, -v{t}
v_max_f32 v{t}, 0, v{t}
v_add_f32 v{t}, {f32(1e-5)}, v{t}
v_rsq_f32 v{rstd}, v{t}'''
    if sig is not None: s += f'\nv_mul_f32 v{sig}, v{t}, v{rstd}'
    return s

class Fill:
    def __init__(self, e): self.e = e; self.q = []
    def add(self, text):
        if not isinstance(text, str): self.q.append(text); return
        for l in text.split('\n'):
            l = l.strip()
            if not l: continue
            if l.startswith(('s_cselect', 's_addc')): self.q[-1] += '\n' + l
            else: self.q.append(l)
    def mark(self, tag): self.q.append(('mark', tag))
    def drain(self, k):
        while k > 0 and self.q:
            x = self.q.pop(0)
            if isinstance(x, tuple): continue
            if isinstance(x, str): self.e(x)
            else: x()
            k -= 1
    def need(self, tag):
        while ('mark', tag) in self.q: self.drain(1) if self.q[0] != ('mark', tag) else self.q.pop(0)

def kernel(e):
    vm = VM(e); slow = []
    XR, WQ, CSB, QX, UB = 57344, 114688, 143360, 147456, 155648
    SCR = 114688
    MAP = knob('map', 4); M16 = knob('m16', 1); H1M = knob('h1m', 2)
    Q, O, S, WOF, NM = 16, 48, 112, 160, 144
    def emit(l, tag):
        for x in l:
            if x.startswith(('buffer', 'global')): vm.op(x, tag)
            else: e(x)
    stamp(e, 'start')
    e("""s_cmp_ge_u32 s2, 256
s_cbranch_scc1 L_end
s_lshr_b32 s76, s2, 3
s_min_u32 s77, s76, 10
s_lshl_b32 s78, s77, 3
s_load_dwordx2 s[82:83], s[0:1], s78
s_load_dwordx2 s[4:5], s[0:1], 0
s_load_dwordx2 s[8:9], s[0:1], 8
s_load_dwordx2 s[12:13], s[0:1], 80
s_load_dwordx2 s[40:41], s[0:1], 16
s_load_dwordx2 s[42:43], s[0:1], 48
s_load_dwordx2 s[60:61], s[0:1], 32
s_load_dwordx2 s[100:101], s[0:1], 72
s_getpc_b64 s[80:81]
L_pc0:
s_sub_u32 s78, s76, s77
s_lshl_b32 s78, s78, 20
s_lshl_b32 s77, s76, 11
v_lshrrev_b32 v10, 4, v0
v_lshl_add_u32 v10, v10, 7, s77
v_min_u32 v10, L_fallback-L_pc0, v10""")
    vm.op('global_load_dword v31, v10, s[80:81]', 'T')
    e("""v_lshrrev_b32 v2, 6, v0
v_and_b32 v1, 63, v0
v_readfirstlane_b32 s16, v2
s_and_b32 s51, s2, 7""")
    lg = {2: 1, 4: 2, 8: 3}[MAP]
    e(f"""s_lshr_b32 s17, s51, {lg-1}
s_lshl_b32 s17, s17, {lg}
s_lshr_b32 s77, s76, {5-lg}
s_add_u32 s17, s17, s77        ; qb
s_and_b32 s18, s51, {MAP//2 - 1}
s_lshl_b32 s18, s18, {5-lg}
s_and_b32 s77, s76, {32//MAP - 1}
s_add_u32 s18, s18, s77        ; head
s_lshl2_add_u32 s79, s17, s16
s_mul_i32 s48, s79, {32*896}
s_mul_i32 s50, s16, {16*2688}
s_lshl_b32 s49, s18, 7
s_add_u32 s49, s49, s50
s_add_u32 s49, s49, 896
s_mul_i32 s52, s16, 12288
s_add_u32 s52, s52, {XR}
s_lshl_b32 s53, s16, 11
v_lshrrev_b32 v64, 3, v1
v_lshrrev_b32 v65, 4, v1
v_and_b32 v66, 7, v1
v_xor_b32 v67, v65, v66
v_mul_u32_u24 v68, 896, v64
v_lshl_add_u32 v2, v67, 4, v68
v_xor_b32 v3, 64, v2
v_add_u32 v3, 6144, v3
v_add_u32 v4, 12288, v2
v_add_u32 v5, 12288, v3
v_and_b32 v67, 1, v65
v_lshlrev_b32 v67, 2, v67
v_xor_b32 v69, v67, v66
v_mul_u32_u24 v67, 2688, v64
v_lshl_add_u32 v6, v69, 4, v67
v_add_u32 v7, {8*2688-1024}, v6
s_mov_b32 s6, {2048*896}
s_mov_b32 s7, 0x00020000
s_mov_b32 s11, 0x00020000
s_mov_b32 s14, {WS_BYTES}
s_mov_b32 s15, 0x00020000
s_mov_b32 m0, s53
v_mov_b32 v219, 0
s_cmp_lt_u32 s18, 14
s_cselect_b32 s10, {448*2688}, 0
s_waitcnt lgkmcnt(0)
{'s_load_dword s26, s[82:83], s78' if knob('tlb', 1) else ''}
s_cbranch_scc0 L_zero
L_zerod:""")
    e_zero = f"""L_zero:
s_lshl1_add_u32 s77, s17, s18
s_lshl_b32 s77, s77, 12
s_add_u32 s77, s77, {WS_FL - 14*4096}
v_lshlrev_b32 v70, 4, v0
v_mov_b32 v216, 0
v_mov_b32 v217, 0
v_mov_b32 v218, 0
buffer_store_dwordx4 v[216:219], v70, s[12:15], s77 offen sc1
s_branch L_zerod"""
    stamp(e, 'p1ld')
    def wload(it):
        return ([f's_add_u32 m0, s53, {it*8192}', f's_add_u32 s49, s49, {64*2688}'] if it else []) + \
               [f'buffer_load_dwordx4 v{6+j}, s[8:11], s49 offen offset:{1024*j} lds' for j in range(2)]
    def xload(it):
        return [f's_add_u32 m0, s52, {(it%3)*4096}'] + (['s_add_u32 s48, s48, 128'] if it else []) + \
               [f'buffer_load_dwordx4 v{2+i}, s[4:7], s48 offen offset:{1024*i} lds' for i in range(4)]
    emit(wload(0) + xload(0), 0); emit(wload(1) + xload(1), 1)
    e('s_cmp_lt_u32 s18, 14\ns_cbranch_scc0 L_rdyadd\nL_rdyaddd:')
    e_zero += """
L_rdyadd:
s_waitcnt vmcnt(12)
s_barrier
s_cmp_lg_u32 s16, 0
s_cbranch_scc1 L_rdyaddd
v_mov_b32 v70, 1
s_mov_b64 exec, 1
global_atomic_add v219, v70, s[100:101] sc1
s_mov_b64 exec, -1
s_branch L_rdyaddd"""
    e("""v_and_b32 v73, 31, v1
v_lshrrev_b32 v71, 1, v73
v_lshrrev_b32 v72, 5, v1
v_xor_b32 v71, v71, v72
v_and_b32 v71, 7, v71
v_lshlrev_b32 v71, 4, v71
v_lshl_add_u32 v71, v73, 7, v71
v_add_u32 v71, s52, v71
s_lshl_b32 s77, s16, 5
v_xor_b32 v9, s77, v71
v_xor_b32 v10, 32, v9
v_xor_b32 v11, 64, v9
v_xor_b32 v12, 0x60, v9
v_bfe_u32 v76, v1, 2, 2
v_lshl_add_u32 v74, v72, 3, v76
v_and_b32 v75, 16, v1
v_lshlrev_b32 v75, 1, v75
v_and_b32 v71, 1, v1
v_lshl_add_u32 v75, v71, 4, v75
v_bfe_u32 v71, v1, 1, 1
v_lshl_add_u32 v75, v71, 3, v75
v_lshl_add_u32 v13, v74, 7, v75
v_bfe_u32 v71, v1, 3, 1
v_lshl_add_u32 v13, v71, 6, v13
v_add_u32 v13, s53, v13""")
    for n in range(1, 8): e(f'v_xor_b32 v{13+n}, {2048*(n >> 1) + 64*(n & 1)}, v13')
    e('v_mov_b32 v25, 0x3f803f80\nv_mov_b32 v26, 0\nv_mov_b32 v27, 0\nv_mov_b32 v28, 0\nv_mov_b32 v29, 0')
    F = Fill(e); park = []
    def prk(dst, src): F.add(f'v_accvgpr_write_b32 a{len(park)}, v{src}'); park.append(dst)
    F.add(f"""s_mov_b32 s36, s8
s_mov_b32 s37, s9
s_mov_b32 s38, {448*2688}
s_mov_b32 s39, 0x00020000
s_and_b32 s28, s18, 1
s_lshr_b32 s77, s18, 1
s_mul_i32 s77, s77, 7
s_mul_i32 s78, s28, 3
s_add_u32 s78, s78, s77
s_lshl4_add_u32 s50, s78, s50
s_lshr_b32 s54, s53, 1
s_add_u32 s54, s54, {WQ}
v_lshrrev_b32 v70, 2, v1
v_mul_u32_u24 v71, 2688, v70
v_and_b32 v77, 3, v1
v_lshl_add_u32 v8, v77, 4, v71""")
    F.mark('wq')
    F.add(swap23(64, 73, 71))
    F.add(f"""v_lshlrev_b32 v254, 4, v1
v_lshlrev_b32 v71, 4, v64
v_lshl_add_u32 v71, v72, 9, v71
s_lshl_b32 s77, s78, 9
v_add_u32 v71, s77, v71""")
    prk(3, 71)
    F.add(f"""v_mul_u32_u24 v71, 7168, v72
v_lshl_add_u32 v240, v64, 4, v71
v_add_u32 v241, 14336, v240
s_mul_i32 s77, s18, 448
s_add_u32 s77, s77, {VP}
v_add_u32 v66, s77, v240
v_add_u32 v67, s77, v241
v_mov_b32 v78, {WS_BYTES}
v_mov_b32 v71, {ONE}
v_cmp_eq_u32 vcc, 28, v73
v_cndmask_b32 v71, v78, v71, vcc
v_cmp_gt_u32 vcc, 28, v73
v_cndmask_b32 v66, v71, v66, vcc
v_cndmask_b32 v67, v71, v67, vcc""")
    prk(4, 66); prk(248, 67)
    F.add(f"""v_lshlrev_b32 v242, 3, v73
v_add_u32 v242, {CSB}, v242
s_lshl_b32 s77, s16, 8
v_add_u32 v243, s77, v242
s_mul_i32 s58, s79, {TTP}
s_lshl_b32 s57, s18, 12
s_lshl_b32 s77, s18, 10
s_add_u32 s77, s77, {VP - 7*1024}
s_cmp_lt_u32 s18, 7
s_cselect_b32 s57, s57, s77
s_add_u32 s57, s57, s58
s_add_u32 s58, s58, {ONE}
s_cmp_eq_u32 s18, 13
s_cselect_b32 s58, s58, {WS_BYTES}
v_min_u32 v244, 0x70, v254
s_lshl4_add_u32 s3, s79, s18
s_lshl_b32 s3, s3, 11
s_add_u32 s3, s3, {WS_O}
v_lshl_add_u32 v21, v74, 6, v75
v_add_u32 v21, s54, v21
v_xor_b32 v22, 1024, v21
v_xor_b32 v23, 2048, v21
v_xor_b32 v24, 3072, v21
v_mov_b32 v30, 0""")
    for r in (218, 221, 222, 223, 226, 227, 230, 231, 234, 235): F.add(f'v_mov_b32 v{r}, 0')
    for r in range(236, 240): F.add(f'v_mov_b32 v{r}, v25')
    F.add(f"""s_lshl2_add_u32 s76, s2, s16
s_mul_i32 s77, s76, 9363
s_lshr_b32 s77, s77, 16
s_mul_i32 s78, s77, 7
s_sub_u32 s78, s76, s78
s_mul_i32 s56, s78, {WFP}
s_lshl_b32 s76, s77, 11
s_add_u32 s56, s56, s76
s_add_u32 s56, s56, {WS_WF}
s_cmp_lt_u32 s77, 144
s_cselect_b32 s56, s56, {WS_BYTES}
s_lshr_b32 s76, s77, 1
s_mul_i32 s55, s76, 28
s_sub_u32 s55, s55, {56*28}
s_lshl_b32 s76, s76, 5
s_mov_b32 s34, {448*896}
s_mov_b32 s35, 0x00020000
s_cmp_lt_u32 s77, 112
s_cselect_b32 s55, s76, s55
s_cselect_b32 s32, s42, s40
s_cselect_b32 s33, s43, s41
s_cselect_b32 s34, {1792*896}, s34
s_mul_i32 s55, s55, 896
s_lshl_b32 s78, s78, 7
s_add_u32 s55, s55, s78
s_and_b32 s77, s77, 1
s_mul_i32 s77, s77, {64 if M16 else 16*896}
s_add_u32 s55, s55, s77""")
    if M16:
        F.add(f"""v_mul_u32_u24 v250, 896, v70
v_lshl_add_u32 v250, v77, 4, v250
v_add_u32 v251, {16*896 - 1024}, v250
v_lshl_add_u32 v252, v65, 3, v76
v_lshlrev_b32 v252, 6, v252
v_lshl_add_u32 v252, v77, 4, v252
s_add_u32 s77, s53, {UB}
v_add_u32 v252, s77, v252
v_add_u32 v253, 8, v252""")
    else:
        F.add(f"""v_lshl_add_u32 v250, v69, 4, v68
v_add_u32 v251, 6144, v250
v_add_u32 v252, {UB}, v13
v_xor_b32 v253, 64, v252""")
    F.add(f"""s_bfe_u32 s20, s2, 0x40003     ; j
s_lshr_b32 s19, s2, 7
s_lshl1_add_u32 s19, s51, s19  ; rb
s_lshl_b32 s25, s19, 12
s_add_u32 s25, s25, {WS_FL}
s_getreg_b32 s76, hwreg(HW_REG_XCC_ID, 0, 4)
s_lshl_b32 s77, s76, 2
s_lshl_b32 s29, 14, s77
s_lshl_b32 s77, 1, s77
s_cmp_lt_u32 s76, 8
s_cselect_b32 s77, s77, 0
s_cmp_lt_u32 s20, 14
s_cselect_b32 s77, s77, 0
v_lshlrev_b32 v79, 7, v1
s_lshl_b32 s76, s17, 7
s_add_u32 s76, s76, {WS_F1}
v_lshl_add_u32 v255, v79, 4, s76
v_add_u32 v66, {WS_F2 - WS_F1}, v255
v_mov_b32 v67, 1
s_add_u32 s78, s25, {24*128}
v_writelane_b32 v66, s78, 8
v_writelane_b32 v67, s77, 8""")
    prk(14, 66); prk(8, 67)
    F.add(f"""s_and_b32 s21, s20, 1          ; th
s_lshr_b32 s22, s20, 1         ; fb
s_lshl1_add_u32 s23, s19, s21
s_lshr_b32 s76, s16, 1
s_and_b32 s77, s22, {knob('flip', 1)}
s_xor_b32 s76, s76, s77
s_lshl1_add_u32 s23, s23, s76
s_and_b32 s76, s16, 1
s_lshl1_add_u32 s24, s22, s76
s_lshl_b32 s77, s76, {11 if M16 else 10}
v_add_u32 v66, s77, v254
s_lshl_b32 s65, s23, 12
s_lshl3_add_u32 s65, s76, s65
s_lshl_b32 s77, s22, 9
s_add_u32 s65, s65, s77
s_add_u32 s65, s65, {WS_S}
s_mul_i32 s27, s23, {32*896}
s_lshl_b32 s77, s24, 11
s_add_u32 s64, s27, s77
s_add_u32 s64, s64, {WS_H}     ; h tile
s_lshl_b32 s76, s24, 6
s_add_u32 s27, s27, s76""")
    prk(171, 66)
    if M16:
        F.add("""v_and_b32 v66, 15, v1
v_mul_u32_u24 v67, 896, v66
v_lshlrev_b32 v71, 4, v65
v_add_u32 v67, v67, v71
v_lshlrev_b32 v66, 4, v66
v_lshl_add_u32 v66, v65, 9, v66""")
        prk(172, 66)
    else:
        F.add('v_mul_u32_u24 v67, 896, v73\nv_lshlrev_b32 v71, 4, v72\nv_add_u32 v67, v67, v71')
    F.add(f"""v_add_u32 v71, s76, v71
s_lshl_b32 s76, s20, 8
s_lshl_b32 s77, s16, 6
s_add_u32 s77, s77, s76
v_lshl_add_u32 v66, v64, 1, s77""")
    prk(0, 67); prk(160, 71); prk(161, 66)
    F.add(f"""s_mul_i32 s77, s16, {16*3584}
s_add_u32 s77, s77, s76
s_add_u32 s60, s60, s77
s_addc_u32 s61, s61, 0
s_lshl_b32 s59, s16, 12
v_cmp_gt_u32 vcc, 32, v1
s_cmp_eq_u32 s28, 0
s_cselect_b32 s76, -1, 0
v_cndmask_b32 v66, 0, -1, vcc
v_not_b32 v67, v66
v_or_b32 v67, s76, v67
s_not_b32 s76, s76
v_or_b32 v71, s76, v66""")
    prk(6, 66); prk(13, 67); prk(5, 71)
    F.add(f's_add_u32 s76, s53, {QX}\nv_add_u32 v66, s76, v254'); prk(15, 66)
    for s in range(4):
        F.add(f's_xor_b32 s76, s16, {3-s}\ns_mul_i32 s76, s76, 12288\ns_add_u32 s76, s76, {SCR}\nv_add_u32 v66, s76, v254'); prk(9 + s, 66)
    F.add("""v_lshlrev_b32 v66, 2, v65
v_and_b32 v67, 15, v1
v_xor_b32 v66, v66, v67
v_mul_u32_u24 v67, 3584, v65
v_lshl_add_u32 v66, v66, 4, v67""")
    prk(165, 66)
    F.add("""v_lshl_add_u32 v66, v74, 8, v75
v_xor_b32 v67, s16, v76
v_lshl_add_u32 v66, v67, 6, v66""")
    prk(173, 66)
    F.add(f"""v_add_u32 v66, s64, v79
s_and_b32 s76, s65, 0xffffff80
s_sub_u32 s76, s76, {16*128}
v_add_u32 v67, s76, v79
v_cmp_gt_u32 vcc, 16, v1
v_cndmask_b32 v66, v67, v66, vcc
v_cmp_gt_u32 vcc, 20, v1
v_cndmask_b32 v66, v78, v66, vcc
s_lshl_b32 s51, s51, 11
s_add_u32 s76, s51, {WS_F2 - 48*128}
v_add_u32 v67, s76, v79
v_cmp_gt_u32 vcc, 48, v1
v_cndmask_b32 v66, v67, v66, vcc
v_writelane_b32 v66, s78, 20
s_add_u32 s51, s51, {WS_F1}
s_bfe_u32 s76, s2, 0x20003
s_lshl2_add_u32 s76, s76, s16
s_lshl_b32 s76, s76, 11
v_and_b32 v67, 0x780, v79
v_add_u32 v71, s76, v67
v_min_u32 v71, L_fallback-L_pc1, v71""")
    prk(241, 66); prk(169, 67); prk(170, 71); prk(240, 79)
    F.add(f"""s_lshl_b32 s76, s17, 12
s_add_u32 s76, s76, {WS_FL}
s_cmp_eq_u32 s16, 0
s_cselect_b32 s76, s76, {WS_BYTES}
v_writelane_b32 v78, s76, 0
v_mul_u32_u24 v66, 12288, v77
v_add_u32 v66, {SCR}, v66
v_lshlrev_b32 v67, 2, v73
v_sub_u32 v67, v67, v254""")
    prk(174, 78); prk(175, 66); prk(176, 67)
    F.add(f"""s_and_b32 s76, s17, {knob('kvm', 1)}
s_lshl1_add_u32 s76, s16, s76
s_mul_i32 s46, s76, {8*TTP}
s_xor_b32 s76, s76, 1
s_mul_i32 s47, s76, {8*TTP}
s_mul_i32 s44, s22, {WFP}
s_add_u32 s44, s44, {WS_WF}
s_cmp_lt_u32 s20, 14
s_cselect_b32 s44, s44, {WS_BYTES}
s_mul_i32 s45, s16, {28*2048}
s_add_u32 s45, s45, s44
s_lshl2_add_u32 s44, s59, s44
s_add_u32 s44, s44, {112*2048} ; Wo fragments of this wave
s_lshl_b32 s62, s23, 15
s_lshl1_add_u32 s62, s59, s62
s_add_u32 s62, s62, {WS_O}
s_xor_b32 s63, s62, 32768
s_lshl_b32 s66, s16, 7
s_add_u32 s66, s66, s25
s_lshl2_add_u32 s76, s19, s16
s_mul_i32 s67, s76, 28672
s_add_u32 s67, s67, {WS_H}
s_lshl_b32 s68, s76, 12
s_add_u32 s68, s68, {WS_S}
s_mul_i32 s28, s76, 114688
s_lshl_b32 s77, s20, 13
s_add_u32 s28, s28, s77
s_add_u32 s28, s28, {WS_H1}
s_add_u32 s72, s28, s53
s_xor_b32 s73, s72, 2048
s_xor_b32 s74, s72, 4096
s_xor_b32 s75, s72, 6144
s_lshl_b32 s69, s21, 8
s_add_u32 s69, s69, s25
s_mul_i32 s76, s16, {28*1024}
s_add_u32 s76, s76, {WS_H1}
s_mul_i32 s70, s23, 114688
s_add_u32 s70, s70, s76
s_xor_b32 s77, s23, 1
s_mul_i32 s71, s77, 114688
s_add_u32 s71, s71, s76
s_mov_b32 s30, 0""")
    F.drain(knob('f0', 90))
    stamp(e, 'p1w')
    ACC, QA, WF, XF = 32, 64, 80, 104
    XM, RM, CF, ON = 216, 220, 224, 236
    def reads(s, ty):
        it, kk = divmod(s, 4); b = s % 3
        l = [f'ds_read_b128 {vr(XF+4*s,4)}, v{9+kk} offset:{(it%3)*4096}']
        if ty != 'l':
            for f in range(2):
                for rd in range(2):
                    l.append(f'ds_read_b64_tr_b16 {vr(WF+8*b+4*f+2*rd,2)}, v{13+2*kk+f} offset:{it*8192 + rd*512}')
        return l
    def xdots(s):
        for r in range(4):
            x = XF + 4*s + r
            e(f'v_dot2c_f32_bf16 v26, v{x}, v25\nv_dot2c_f32_bf16 v27, v{x}, v{x}')
    wq = [[f's_add_u32 m0, s54, {it*4096}'] + ([f's_add_u32 s50, s50, {64*2688}'] if it else []) + ['buffer_load_dwordx4 v8, s[36:39], s50 offen lds'] for it in range(7)]
    WQS = [int(c) for c in str(knob('wqs', 0)) if c != '0']
    WQE = knob('wqe', 7)
    early = {c - 1: wq[n] for n, c in enumerate(WQS)}
    unit_dma = [f's_add_u32 m0, s53, {UB}', 'buffer_load_dwordx4 v250, s[32:35], s55 offen lds', 'buffer_load_dwordx4 v251, s[32:35], s55 offen offset:1024 lds']
    rdy = 'global_load_dword v245, v219, s[100:101] sc1'
    def rdycheck(lab, hint):
        e(f"""s_cmp_lg_u32 s16, 0
s_cbranch_scc1 {lab}x
v_cmp_gt_u32 vcc, 32, v245
v_mov_b32 v31, 1
s_cbranch_vccnz {lab}p
{lab}d:""")
        if hint: e(f's_mov_b32 s76, {HINT}\ns_mov_b64 exec, 0xff\nbuffer_atomic_add v31, v255, s[12:15], s76 offen sc1\ns_mov_b64 exec, -1')
        e(f'{lab}x:')
        slow.append(f"""{lab}p:
s_mov_b32 s26, {POLL_MAX}
{lab}l:
global_load_dword v245, v219, s[100:101] sc1
s_sub_u32 s26, s26, 1
s_cbranch_scc1 {lab}d
s_waitcnt vmcnt(0)
v_cmp_gt_u32 vcc, 32, v245
s_cbranch_vccnz {lab}l
s_branch {lab}d""")
    xm_frag = f"""v_cmp_gt_u32 vcc, 32, v1
v_sub_f32 v247, 0, v247
v_cndmask_b32 v247, 0, v247, vcc
v_and_b32 v26, 0xffff0000, v247
v_sub_f32 v27, v247, v26
v_cvt_pk_bf16_f32 v{XM}, v26, v26
v_cvt_pk_bf16_f32 v{XM+1}, v27, 0"""
    e('s_cmp_lt_u32 s18, 7\ns_cbranch_scc1 L_kk\ns_cmp_lt_u32 s18, 14\ns_cbranch_scc0 L_light')
    vm0 = (list(vm.seq), vm.done); q0 = list(F.q)
    def variant(ty, lab):
        if lab: e(f'{lab}:')
        vm.seq, vm.done = list(vm0[0]), vm0[1]; F.q = list(q0)
        per = (len(F.q) + 5) // 6
        lt = wq[len(WQS):WQE]
        vm.wait(0); e('s_barrier')
        stamp(e, 'p1go')
        e('\n'.join(reads(0, ty) + reads(1, ty)))
        emit(wload(2), 2)
        for s in range(28):
            it, kk = divmod(s, 4); b = s % 3
            if kk == 0: stamp(e, f'c{it}')
            x = vr(XF+4*s, 4)
            mf = []
            for f in range(2):
                w = vr(WF+8*b+4*f, 4); a = vr(ACC+16*f, 16); c = a if s else '0'
                mf.append(f'{MF} {a}, {w}, {x}, {c}' if ty == 'k' else f'{MF} {a}, {x}, {w}, {c}')
            rd = reads(s+2, ty) if s < 26 else []
            if s < 18:
                if kk < 2: L = xload(it + 2); tag = it + 2; ld = {0: (L[:3], L[3:4]), 1: (L[4:5], L[5:])}[kk]
                else: L = wload(it + 3); tag = it + 3; ld = {2: ([], L[:3]), 3: (L[3:], [])}[kk]
            else:
                tag = 'wq'; F.need('wq')
                ld = ([], lt.pop(0) if lt else [])
            if s < 27: e(f's_waitcnt lgkmcnt({5 if s < 26 else 0})')
            if kk == 2:
                for r in range(4):
                    for f in range(2): e(f'v_dot2c_f32_bf16 v{28+f}, v{WF+8*b+4*f+r}, v25')
                for s2 in range(max(0, s-3), s + (2 if s == 26 else 1)): xdots(s2)
                if s < 26:
                    F.drain(per if s < 22 else 999)
                    vm.wait(it + 1); e('s_barrier')
                else:
                    for f in range(2): e(halves_sum(28+f, 246))
                    e('ds_write_b64 v243, v[28:29]')
            def spread(m, sal, rest):
                e(m)
                if sal and not sal[0].startswith('buffer'): e(sal[0]); sal = sal[1:]
                e('\n'.join(rest)); emit(sal, tag)
            spread(mf[0], ld[0], rd[:3])
            if s == 26: e(ln_stats(26, 27, 246, 247, 248))
            if s == 27: e(xm_frag)
            spread(mf[1], ld[1], rd[3:])
            if it in early and kk == 3: F.need('wq'); emit(early[it], 'wq')
            if s == 17: vm.op(rdy, 'rdy')
            if s == 26:
                e('s_waitcnt lgkmcnt(0)\ns_barrier')
                for w in range(4): e(f'ds_read_b64 {vr(QA+2*w,2)}, v242 offset:{256*w}')
        assert not lt and not F.q
        stamp(e, 'p1end')
        if ty == 'v':
            e(f"""v_cndmask_b32 v246, 0, v248, vcc
v_and_b32 v26, 0xffff0000, v246
v_sub_f32 v27, v246, v26
v_cvt_pk_bf16_f32 v{RM}, v26, v27
{MF} v[88:103], {vr(RM,4)}, {vr(ON,4)}, 0""")
        e('s_waitcnt lgkmcnt(0)')
        for f in range(2):
            e(f"""v_add_f32 v{QA+f}, v{QA+f}, v{QA+2+f}
v_add_f32 v{QA+4+f}, v{QA+4+f}, v{QA+6+f}
v_add_f32 v{QA+f}, v{QA+f}, v{QA+4+f}
v_and_b32 v26, 0xffff0000, v{QA+f}
v_sub_f32 v27, v{QA+f}, v26
v_cvt_pk_bf16_f32 v{CF+4*f}, v26, v27
v_lshrrev_b32 v{CF+4*f+1}, 16, v{QA+f}""")
            a = vr(ACC+16*f, 16); w = vr(CF+4*f, 4)
            e(f'{MF} {a}, {w}, {vr(XM,4)}, {a}' if ty == 'k' else f'{MF} {a}, {vr(XM,4)}, {w}, {a}')
        vm.op(f'buffer_store_dwordx4 {vr(ON,4)}, v244, s[12:15], s58 offen sc1', 'kv')
        for f in range(2):
            A = ACC + 16*f
            for p in range(8):
                if ty == 'k': e(f'v_pk_mul_f32 {vr(A+2*p,2)}, {vr(A+2*p,2)}, v[248:249] op_sel_hi:[1,0]')
                else: e(f'v_pk_mul_f32 {vr(A+2*p,2)}, {vr(A+2*p,2)}, {vr(88+2*p,2)}')
                e(f'v_cvt_pk_bf16_f32 v{A+p}, v{A+2*p}, v{A+2*p+1}')
                if p % 4 == 3:
                    t = p // 4
                    if ty == 'k': vm.op(f'buffer_store_dwordx4 {vr(A+4*t,4)}, v254, s[12:15], s57 offen offset:{2048*f + 1024*t} sc1', 'kv')
                    else: vm.op(f'buffer_store_dwordx4 {vr(A+4*t,4)}, v{240+t}, s[12:15], s57 offen offset:{512*f} sc1', 'kv')
        vm.wait('rdy'); rdycheck(f'L_r{ty}', True)
        if ty == 'v': e('s_branch L_q')
    def light():
        e(e_zero)
        e('L_light:')
        vm.seq, vm.done = list(vm0[0]), vm0[1]; F.q = list(q0)
        F.drain(9999)
        e(f'v_mov_b32 v255, {WS_BYTES}')
        stamp(e, 'p1go')
        for it in range(7):
            stamp(e, f'c{it}')
            vm.wait(it)
            for kk in range(4): e('\n'.join(reads(4*it + kk, 'l')))
            if it + 2 <= 6: emit(xload(it + 2), it + 2)
            if it == 5:
                for l in wq[:WQE] + [[rdy]]: emit(l, 'wq')
            e('s_waitcnt lgkmcnt(0)')
            for kk in range(4): xdots(4*it + kk)
        e(ln_stats(26, 27, 246, 247, 248)); e(xm_frag)
        stamp(e, 'p1end')
        e('s_waitcnt vmcnt(0)')
        rdycheck('L_rl', False)
        e('s_branch L_q')
    variant('v', None); light(); variant('k', 'L_kk')
    e('L_q:')
    stamp(e, 'p1st')
    for l in wq[WQE:]: emit(l, 'wq2')
    emit(unit_dma, 'wq2')
    vm.wait('wq'); e('s_barrier')
    def qrd(s, dst=None):
        it, kk = divmod(s, 4)
        if dst is None: dst = ACC + 4*(s & 7)
        return [f'ds_read_b64_tr_b16 {vr(dst+2*rd,2)}, v{21+kk} offset:{it*4096 + rd*256}' for rd in range(2)]
    QS = knob('qs', 5 if WQE == 7 else 3)
    assert (3 <= WQE <= 4 and QS <= WQE) or WQE == 7
    def s1signal():
        vm.wait('kv')
        e("""s_barrier
s_cmp_lg_u32 s16, 0
s_cbranch_scc1 L_s1b
s_mov_b64 exec, 0xff
buffer_atomic_add v31, v255, s[12:15], 0 offen sc1
s_mov_b64 exec, -1
L_s1b:""")
        stamp(e, 's1sig')
    def unit_out(r):
        for f in range(2):
            for rd in range(2): e(f'ds_read_b64_tr_b16 {vr(r+4*f+2*rd,2)}, v{252+f} offset:{rd*(256 if M16 else 512)}')
        e('s_waitcnt lgkmcnt(0)')
        for f in range(2): vm.op(f'buffer_store_dwordx4 {vr(r+4*f,4)}, v2, s[12:15], s56 offen offset:{1024*f} sc1', 'ust')
    lateprk = [n for n, d in enumerate(park) if XF <= d < XF + 112]
    F.add(f'v_mul_f32 v26, {f32(QSCALE)}, v248\nv_mov_b32 v2, v254')
    for n, d in enumerate(park):
        if n not in lateprk: F.add(f'v_accvgpr_read_b32 v{d}, a{n}')
    F.add(f"""v_xor_b32 v249, {3*2048}, v15
v_xor_b32 v250, {2*2048}, v15
v_xor_b32 v251, {1*2048}, v15
v_mov_b32 v{RM}, 0
v_mov_b32 v7, 0xdddd
s_mov_b32 s8, s60
s_mov_b32 s9, s61
s_cmp_lt_u32 s20, 14
s_cselect_b32 s10, {16*3584}, 0
s_mov_b32 s34, 3584
s_mov_b32 s38, 896
s_mov_b32 s42, {2048*896}
s_mov_b32 s43, 0x00020000""")
    late_fill = '\n'.join(f'v_accvgpr_read_b32 v{park[n]}, a{n}' for n in lateprk) + '\n' + \
                '\n'.join(f'v_add_u32 v{165+i}, {i*(4*3584-1024)}, v165' for i in range(1, 4)) + '\n' + \
                '\n'.join(f'v_xor_b32 v{161+b}, {64*b}, v161' for b in range(1, 4))
    cs_fill = f"""v_add_f32 v96, v96, v97
v_add_f32 v98, v98, v99
v_add_f32 v30, v96, v98
v_and_b32 v28, 0xffff0000, v30
v_sub_f32 v29, v30, v28
v_cvt_pk_bf16_f32 v{CF+8}, v28, v29
v_lshrrev_b32 v{CF+9}, 16, v30"""
    def qcs(g0, g1, r0):
        n = g1 - g0
        for g in range(g0, g1): e('\n'.join(qrd(4*g, r0 + 4*(g - g0))))
        if n > 4:
            e(f's_waitcnt lgkmcnt({2*(n-4)})')
            for s in range(4*g0, 4*g0 + 4): e('\n'.join(qrd(s)))
            for r in range(16): e(f'v_dot2c_f32_bf16 v30, v{r0+r}, v25')
            e('s_waitcnt lgkmcnt(8)')
            for r in range(16, 4*n): e(f'v_dot2c_f32_bf16 v30, v{r0+r}, v25')
        else:
            for s in range(4*g0, 4*g0 + 3): e('\n'.join(qrd(s)))
            e('s_waitcnt lgkmcnt(6)')
            e('\n'.join(qrd(4*g0 + 3)))
            for r in range(4*n): e(f'v_dot2c_f32_bf16 v30, v{r0+r}, v25')
        if g1 == 7: e(halves_sum(30, 246) + '\nds_write_b32 v243, v30')
    qcs(0, WQE, 76 if WQE == 7 else 80)
    for g in range(7):
        for k in range(4):
            s = 4*g + k
            e(f's_waitcnt lgkmcnt({2*min(3, 27-s, (4*WQE-1-s) if g < WQE else 3)})')
            e(f'{MF} {vr(QA,16)}, {vr(ACC+4*(s&7),4)}, {vr(XF+4*s,4)}, ' + (vr(QA, 16) if s else '0'))
            if s + 4 < 28 and g + 1 != WQE: e('\n'.join(qrd(s+4)))
            F.drain(3 if g < 6 else 5)
        if g + 1 == QS: s1signal()
        if WQE < 7 and g + 1 == WQE:
            vm.wait('wq2'); e('s_barrier')
            unit_out(96); qcs(WQE, 7, 80)
        if g == (1 if WQE == 7 else WQE):
            e('s_barrier')
            for w in range(4): e(f'ds_read_b32 v{96+w}, v242 offset:{256*w}')
        if g == (3 if WQE == 7 else 5): F.add(cs_fill)
        if g == 4: F.add(late_fill)
        if WQE == 7 and g + 1 == knob('us', 6): vm.wait('wq2'); unit_out(80)
    F.drain(999)
    e(f"""{MF} {vr(QA,16)}, {vr(CF+8,4)}, {vr(XM,4)}, {vr(QA,16)}
s_load_dwordx2 s[32:33], s[0:1], 40
s_load_dwordx2 s[36:37], s[0:1], 56
s_load_dwordx2 s[40:41], s[0:1], 64
s_getpc_b64 s[80:81]
L_pc1:""")
    vm.op('global_load_dword v242, v170, s[80:81]', 'T')
    for s in (0, 2, 3): e(f'{MF} {vr(O+16*s,16)}, {vr(RM,4)}, {vr(RM,4)}, 0')
    w1n = [0]
    def w1set():
        it = w1n[0] // 4
        return [f's_add_u32 m0, s59, {it*16384}'] + ([f's_add_u32 s8, s8, {64*3584}\ns_addc_u32 s9, s9, 0'] if it else [])
    def w1l():
        i = w1n[0] % 4
        vm.op(f'buffer_load_dwordx4 v{165+i}, s[8:11], 0 offen offset:{1024*i} lds', 'W1'); w1n[0] += 1
    WB_ = knob('w1b', 0)
    for n in range(WB_):
        if n % 4 == 0: e('\n'.join(w1set()))
        w1l()
    for p in range(8):
        e(f'v_mul_f32 v{QA+2*p}, v26, v{QA+2*p}\nv_mul_f32 v{QA+2*p+1}, v26, v{QA+2*p+1}')
        e(f'v_cvt_pk_bf16_f32 v{Q+24+p}, v{QA+2*p}, v{QA+2*p+1}')
    e(f"""v_and_b32 v{Q+24}, v13, v{Q+24}
v_and_b32 v{Q+25}, v13, v{Q+25}
v_and_b32 v{Q+30}, v5, v{Q+30}
v_and_b32 v{Q+31}, v5, v{Q+31}
ds_write_b128 v15, {vr(Q+24,4)}
ds_write_b128 v15, {vr(Q+28,4)} offset:1024
{MF} {vr(O+16,16)}, {vr(RM,4)}, {vr(RM,4)}, 0
s_add_u32 s76, s51, {HINT}
s_mov_b32 m0, s46""")
    stamp(e, 's1win')
    def poll2(lab, addr, so_hint, so, n):
        e(f's_cmp_lg_u32 s16, 0\ns_cbranch_scc1 {lab}done\ns_mov_b32 s26, {POLL_MAX}')
        for l, x in ((lab + 'hint', so_hint), (lab + 'poll', so)):
            if x: e(f"""{l}:
buffer_load_dword v15, {addr}, s[12:15], {x} sc1
s_sub_u32 s26, s26, 1
s_cbranch_scc1 {lab}done
s_waitcnt vmcnt(0)
v_cmp_gt_u32 vcc, {n}, v15
s_cbranch_vccnz {l}""")
        e(f'{lab}done:\ns_waitcnt lgkmcnt(0)\ns_barrier')
    NH = knob('nh', 2)
    poll2('L_s1', 'v169', None if NH & 1 else 's76 offen', 's51 offen', 14)
    stamp(e, 's1done')
    def kvset(j): return f's_add_u32 m0, s{46 + (j >> 3)}, {(j & 7)*TTP}'
    def kl(j, t): vm.op(f'buffer_load_dwordx4 {ar(16*j+4*t,4)}, v3, s[12:15], m0 offen offset:{1024*t} sc1', f'K{j}')
    def vl(j, t): vm.op(f'buffer_load_dwordx4 {ar(16*j+8+4*t,4)}, v{248 if t else 4}, s[12:15], m0 offen sc1', f'V{j}')
    KV0 = knob('kv0', 2)
    for j in range(KV0):
        kl(j, 0); kl(j, 1); vl(j, 0); vl(j, 1); e(kvset(j + 1))
    for s in range(3):
        for t in range(2): e(f'ds_read_b128 {vr(Q+8*s+4*t,4)}, v{249+s} offset:{1024*t}')
    steps = [(s, j) for j in range(16) for s in range(3)] + [(3, j) for j in range(16)]
    N = len(steps)
    def qk(i, t):
        s, j = steps[i]; d = vr(S + 16*(i % 3), 16)
        return f'{MF} {d}, {ar(16*j+4*t,4)}, {vr(Q+8*s+4*t,4)}, ' + ('0' if t == 0 else d)
    def pv(i, t):
        s, j = steps[i]
        return f'{SM} {vr(O+16*s,16)}, {ar(16*j+8+4*t,4)}, {vr(S+16*(i%3)+8*t,8)}, v7'
    free, post = {}, {}
    def P(d, q, f): d.setdefault(q, []).append(f)
    WX = 2048 if M16 else 1024
    def wfrag(kind, n):
        g, r = divmod(n, 4)
        if M16: f, off, reg = r >> 1, (r & 1)*1024, 16*g + 4*r
        else: f, off, reg = r & 1, (r >> 1)*2048, 16*g + 4*r
        dst = vr(WOF + reg, 4) if kind == 'Wo' else ar(reg, 4)
        return (f's_add_u32 m0, s{44 if kind == "Wo" else 45}, {g*4096}', f'buffer_load_dwordx4 {dst}, v{252+f}, s[12:15], m0 offen offset:{off} sc1')
    w2n = [0]
    def w2l(n=1, setm=False):
        for _ in range(n):
            if w2n[0] >= 56: return
            a, b = wfrag('W2', w2n[0])
            if setm or w2n[0] % 4 == 0: e(a); setm = False
            vm.op(b, 'W2'); w2n[0] += 1
    def wfcheck():
        e('v_cmp_gt_u32 vcc, 16, v243\ns_lshr_b32 s26, vcc_hi, 16\ns_cbranch_scc1 L_wf\nL_wfd:')
        slow.append(f"""L_wf:
s_mov_b32 s26, {POLL_MAX}
L_wfp:
buffer_load_dword v243, v241, s[12:15], 0 offen sc1
s_sub_u32 s26, s26, 1
s_cbranch_scc1 L_wfd
s_waitcnt vmcnt(0)
v_cmp_gt_u32 vcc, 16, v243
s_nop 1
s_lshr_b32 s76, vcc_hi, 16
s_cbranch_scc1 L_wfp
s_branch L_wfd""")
    vq = []
    for j in range(KV0, 16):
        for n, (f, t) in enumerate(((kl, 0), (kl, 1), (vl, 0), (vl, 1))):
            vq.append(([kvset(j)] if n == 0 and j > KV0 else [], (lambda f=f, j=j, t=t: f(j, t)), 1))
    vq.append(([], lambda: vm.op('buffer_load_dword v243, v241, s[12:15], 0 offen sc1', 'T0'), 2))
    for t in range(2):
        if M16: vq.append(([f's_add_u32 m0, s27, {16*896*t}'], (lambda t=t: vm.op(f'buffer_load_dwordx4 {vr(224+4*t,4)}, v0, s[4:7], m0 offen', 'sm')), 1))
        else: vq.append((['s_mov_b32 m0, s27'] if t == 0 else [], (lambda t=t: vm.op(f'buffer_load_dwordx4 {vr(224+4*t,4)}, v0, s[4:7], m0 offen offset:{32*t}', 'sm')), 1))
    for t in range(1 if M16 else 2): vq.append(([], (lambda t=t: vm.op(f'buffer_load_dwordx4 {vr(232+4*t,4)}, v160, s[36:39], 0 offen offset:{32*t}', 'sm')), 1))
    for b in range(4): vq.append(([], (lambda b=b: vm.op(f'buffer_load_ushort v{244+b}, v{161+b}, s[32:35], 0 offen', 'sm')), 1))
    for n in range(WB_, 28):
        it = n // 4
        vq.append(((([f's_add_u32 s8, s8, {64*3584}\ns_addc_u32 s9, s9, 0'] if it else []) + [f's_add_u32 m0, s59, {it*16384}']) if n % 4 == 0 else [], w1l, 1))
    nchk = len(vq)
    for n in range(16):
        a, b = wfrag('Wo', n); vq.append(([a] if n % 4 == 0 else [], (lambda b=b: vm.op(b, 'Wo')), 1))
    if knob('t2', 0): vq.append(([], lambda: vm.op('buffer_load_dword v242, v241, s[12:15], 0 offen sc1', 'T'), 1))
    if H1M: vq.append((['s_mov_b32 m0, s28'], lambda: vm.op('buffer_load_dword v242, v240, s[12:15], m0 offen sc1', 'T'), knob('h1g', 8)))
    TL = knob('tl', 0); tail = []
    if TL: k = len(vq) - bool(H1M) - bool(knob('t2', 0)); tail = vq[k:]; vq = vq[:k]
    hs = 0
    def place(sal, f):
        if sal: P(free, 2*hs - 1, lambda x=sal[-1]: e(x))
        if len(sal) > 1: P(free, 2*hs, lambda x=sal[0]: e(x))
        P(post, 2*hs, f)
    for n, (sal, f, d) in enumerate(vq):
        if n == nchk: P(free, 2*hs - 3, lambda: vm.wait('T0')); P(post, 2*hs - 3, wfcheck)
        place(sal, f); hs += d
    hs = max(hs, 100)
    W2A = max(0, min(knob('w2a', 24), 126 - TL - hs)) // 4 * 4
    for n in range(W2A):
        a, b = wfrag('W2', n); place([a] if n % 4 == 0 else [], (lambda b=b: vm.op(b, 'W2'))); hs += 1
    for sal, f, d in tail: place(sal, f); hs += 1
    w2n[0] = W2A
    P(free, 2, lambda: vm.wait('V0'))
    for j in range(1, 16):
        if j < 6: P(free, 4*(3*j-1) - 2, (lambda j=j: vm.wait(f'V{j}')))
        elif j % 2 == 0: P(free, 4*(3*j-1) - 2, (lambda j=j: vm.wait(f'V{j+1}')))
    def pwr(s, q): return f'ds_write_b128 v{9+s}, {vr(O+16*s+4*q,4)} offset:{s*4096 + q*1024}'
    def prd(s, q): return f'ds_read_b128 {vr(O+16*s+4*q,4)}, v12 offset:{s*4096 + q*1024}'
    for k in range(12): P(post, 4*50 + 1 + 2*k, (lambda k=k: e(pwr(k//4, k % 4))))
    P(free, 4*59, lambda: vm.wait('W1', 'lgkmcnt(0)')); P(free, 4*59 + 2, lambda: e('s_barrier'))
    for k in range(12): P(post, 4*60 + k, (lambda k=k: e(prd(k//4, k % 4))))
    vm.wait('ust', 'lgkmcnt(0)')
    e(f"""s_barrier
s_cmp_lg_u32 s16, 0
s_cbranch_scc1 L_s1c
s_mov_b64 exec, 0x1ff
buffer_atomic_add v8, v14, s[12:15], 0 offen sc1
s_mov_b64 exec, -1
L_s1c:
v_mov_b32 v249, v173
v_add_u32 v254, 0x10000, v173
v_mov_b32 v250, v174
v_mov_b32 v251, v175
v_mov_b32 v5, v176
v_mov_b32 v252, v171
v_xor_b32 v253, {WX}, v171
v_mov_b32 v255, v{172 if M16 else 2}
v_mov_b32 v8, 1
v_mov_b32 v14, 0x3f803f80""")
    vm.wait('K0')
    stamp(e, 'a0')
    e(qk(0, 0)); e(qk(0, 1))
    for i in range(N):
        if i == 48: stamp(e, 'aB')
        if i: stamp(e, f'a{i}')
        b = S + 16*(i % 3)
        mf = [qk(i+1, 0) if i+1 < N else None, qk(i+1, 1) if i+1 < N else None, pv(i-1, 1) if i > 0 else None, pv(i, 0)]
        for sl in range(4):
            if mf[sl]: e(mf[sl])
            for f in free.get(4*i + sl, []) + post.get(4*i + sl, []): f()
            for r in range(4): e(f'v_exp_f32 v{b+4*sl+r}, v{b+4*sl+r}')
    e(pv(N-1, 1))
    if not NH & 2: vm.op('buffer_atomic_add v8, v250, s[12:15], 0 offen offset:128 sc1', 'sig')
    assert w1n[0] == 28
    e('L_combine:')
    stamp(e, 'comb')
    e('s_waitcnt lgkmcnt(0)')
    for r in range(16): e(f'v_add_f32 v{O+r}, v{O+r}, v{O+16+r}')
    for p in range(8): e(f'v_pk_add_f32 {vr(O+2*p,2)}, {vr(O+2*p,2)}, {vr(O+32+2*p,2)}')
    for p in [6, 0, 1, 2, 3, 4, 5, 7]:
        e(f'v_pk_add_f32 {vr(O+2*p,2)}, {vr(O+2*p,2)}, {vr(O+48+2*p,2)}')
        if p == 6: e(f'v_mov_b32 v13, v{O+12}\nv_mov_b32 v15, v{O+12}')
        if p == 1: e('v_permlane32_swap_b32 v13, v15')
        if p == 2: e('v_rcp_f32 v158, v15')
    for p in range(8):
        e(f'v_pk_mul_f32 {vr(O+2*p,2)}, {vr(O+2*p,2)}, v[158:159] op_sel_hi:[1,0]')
        e(f'v_cvt_pk_bf16_f32 v{O+p}, v{O+2*p}, v{O+2*p+1}')
        if p == 3: vm.op(f'buffer_store_dwordx4 {vr(O,4)}, v2, s[12:15], s3 offen sc1', 'Ost')
        if p == 6: e(f'v_and_b32 v{O+6}, v6, v{O+6}')
    e(f'v_and_b32 v{O+7}, v6, v{O+7}')
    vm.op(f'buffer_store_dwordx4 {vr(O+4,4)}, v2, s[12:15], s3 offen offset:1024 sc1', 'Ost')
    if knob('t1', 0): vm.op('buffer_load_dword v242, v241, s[12:15], 0 offen sc1', 'T')
    def csrd(dst, s):
        return [f'ds_read_b64_tr_b16 {vr(dst+2*rd,2)}, v{254 if s >= 16 else 249} offset:{(s & 15)*4096 + rd*1024}' for rd in range(2)]
    for k in range(4): e('\n'.join(csrd(S + 4*k, k)))
    e(f"""v_cmp_nle_f32 vcc, {f32(2.0**-40)}, v15
v_mov_b32 v156, 0
v_mov_b32 v157, 0
s_mov_b64 s[82:83], vcc
v_cmp_nge_f32 vcc, {f32(2.0**40)}, v15
v_add_u32 v15, v12, v5
s_or_b64 vcc, vcc, s[82:83]
s_cselect_b32 s26, 1, 0
s_andn2_b32 s26, s26, s30
v_mov_b32 v13, s26""")
    B0 = knob('b0', 8); CS = knob('cs', 4)
    def csgroup(g):
        if g < 7:
            for k in range(4): e('\n'.join(csrd(S + 16*(g & 1) + 4*k, 4*g + k)))
        if g <= CS: w2l(B0*g//CS - B0*(g-1)//CS)
        e(f's_waitcnt lgkmcnt({8 if g < 7 else 0})')
        for r in range(16): e(f'v_dot2c_f32_bf16 v{156 + (r & 1)}, v{S + 16*((g-1) & 1) + r}, v14')
    for g in range(1, CS + 1): csgroup(g)
    e('ds_write_b32 v12, v13')
    vm.wait('Ost', 'lgkmcnt(0)')
    e("""s_barrier
ds_read_b32 v13, v251
s_waitcnt lgkmcnt(0)
v_cmp_ne_u32 vcc, 0, v13
s_cbranch_vccnz L_fallback""")
    vm.op('buffer_atomic_add v8, v250, s[12:15], 0 offen sc1', 'sig2')
    stamp(e, 's2sig')
    e(f's_cmp_ge_u32 s20, 14\ns_cbranch_scc1 {"L_wb" if H1M == 3 or knob("wb", 0) else "L_end"}')
    B1 = knob('b1', 14)
    for g in range(CS + 1, 8):
        w2l(B1*(g-CS)//(7-CS) - B1*(g-CS-1)//(7-CS))
        csgroup(g)
    ACC3, AF = 80, 16
    WA = 240
    e('v_add_f32 v156, v156, v157')
    e(halves_sum(156, 157))
    e("""ds_write_b32 v15, v156 offset:8192
v_add_u32 v157, v11, v5
v_add_u32 v158, v10, v5
v_add_u32 v159, v9, v5
v_readlane_b32 s31, v243, 20
v_mov_b32 v13, 0
s_mov_b32 m0, s63""")
    for r in range(8): e(f'v_lshlrev_b32 v{ACC3+2*r}, 16, v{224+r}\nv_and_b32 v{ACC3+2*r+1}, 0xffff0000, v{224+r}')
    e('s_cmp_eq_u32 s31, s29\ns_cselect_b32 s31, 1, 0')
    if knob('nolocal', 0): e('s_mov_b32 s31, 0')
    stamp(e, 's2win')
    poll2('L_s2', 'v13', None if NH & 2 else 's25 offen offset:128', 's25 offen', 16)
    stamp(e, 's2done')
    def aoff(n): return ((n >> 1) & 1)*2048 + (n & 1)*256 if M16 else (n & 3)*1024
    def ol(a, n):
        if n % 4 == 0 and (a, n) != (1, 0): e(f's_add_u32 m0, s{62+a}, {n*1024}')
        vm.op(f'buffer_load_dwordx4 {vr(AF+32*a+4*n,4)}, v255, s[12:15], m0 offen offset:{aoff(n)} sc1', f'O{a}{n}')
    for n in range(8): ol(1, n)
    e('ds_read_b32 v157, v157 offset:8192\nds_read_b32 v158, v158 offset:8192\nds_read_b32 v159, v159 offset:8192')
    for n in range(4): ol(0, n)
    e(f"""v_and_b32 v3, 0x1f0, v2
s_and_b32 s76, s23, 3
s_lshl_b32 s77, s76, 5
s_add_u32 s77, s77, s24
s_lshl_b32 s77, s77, 2
v_mov_b32 v4, s77
v_min_u32 v5, 13, v1
v_lshlrev_b32 v5, 2, v5
s_lshl_b32 s77, s16, 5
s_add_u32 s77, s77, s20
s_lshl_b32 s77, s77, 2
v_mov_b32 v14, s77
s_mul_i32 s77, s16, 7
s_lshr_b32 s77, s77, 1
v_and_b32 v7, 3, v1
v_add_u32 v7, s77, v7
v_bfe_u32 v13, v1, 2, 1
v_lshl_add_u32 v7, v13, 5, v7
v_lshlrev_b32 v7, 2, v7
v_lshrrev_b32 v250, 2, v2
s_lshl_b32 s77, s16, 8
v_add_u32 v251, s77, v250
{'v_and_b32 v250, 60, v250' if M16 else ''}
s_lshl_b32 s76, s76, 8
v_add_u32 v250, s76, v250
s_waitcnt lgkmcnt(0)""")
    for b in range(4):
        e(f"""v_and_b32 v13, 0xffff0000, v{156+b}
v_sub_f32 v15, v{156+b}, v13
v_cvt_pk_bf16_f32 v15, v13, v15
v_lshrrev_b32 v13, 16, v13
v_lshl_or_b32 v13, v{244+b}, 16, v13
v_accvgpr_write_b32 a{224+4*b}, v15
v_accvgpr_write_b32 a{225+4*b}, v13
v_accvgpr_write_b32 a{226+4*b}, v{244+b}
v_accvgpr_write_b32 a{227+4*b}, 0""")
    for r in range(4 if M16 else 8): e(f'v_lshlrev_b32 v{144+2*r}, 16, v{232+r}\nv_and_b32 v{145+2*r}, 0xffff0000, v{232+r}')
    for b in range(4): e(f'v_xor_b32 v{WA+b}, {64*b}, v249\nv_xor_b32 v{WA+4+b}, {64*b}, v254')
    for n in range(4, 8): ol(0, n)
    def rwr(s, A, q): return f'ds_write_b128 v{12-s}, {vr(A+16*s+4*q,4)} offset:{(3-s)*4096 + q*1024}'
    def rrd(s, A, q): return f'ds_read_b128 {vr(A+16*s+4*q,4)}, v12 offset:{(3-s)*4096 + q*1024}'
    def mm(A, wk, wb, act, a, f, n, init):
        T = A + 16*(2*a + f)
        if not M16:
            return [f'{MF} {vr(T,16)}, {vr(wb+8*n+4*f,4,wk)}, {vr(act,4)}, ' + ('0' if n == 0 and init else vr(T, 16))]
        return [f'{MH} {vr(T+8*(n&1)+4*u,4)}, {vr(wb+16*(n>>1)+8*f+4*u,4,wk)}, {vr(act,4)}, ' + ('0' if n < 2 and init else vr(T+8*(n&1)+4*u, 4)) for u in range(2)]
    def m3(a, f, n): e('\n'.join(mm(ACC3, 'v', WOF, AF+32*a+4*n, a, f, n, (a, f) != (0, 0))))
    B2 = knob('b2', 8)
    for n in range(8):
        vm.wait(f'O1{n}'); stamp(e, f'o{n}'); m3(1, 1, n); m3(1, 0, n)
        if n >= 8 - B2: w2l(1, n == 8 - B2)
    LAG = 2
    for n in range(8):
        vm.wait(f'O0{n}'); stamp(e, f'o{8+n}'); m3(0, 1, n)
        if 1 <= n < 5: e(rwr(3 - (n-1)//2, ACC3, 2*((n-1) % 2)))
        if n >= LAG: m3(0, 0, n - LAG)
        if 1 <= n < 5: e(rwr(3 - (n-1)//2, ACC3, 2*((n-1) % 2) + 1))
        if n == knob('p3b', 5):
            e('s_waitcnt lgkmcnt(0)\ns_barrier')
            for q in range(4): e(rrd(3, ACC3, q) + '\n' + rrd(2, ACC3, q))
    stamp(e, 'p3mf')
    e('s_waitcnt lgkmcnt(0)')
    for n in range(8 - LAG, 8):
        m3(0, 0, n)
        for r in range(4*(n - 8 + LAG), 4*(n - 7 + LAG)): e(f'v_add_f32 v{ACC3+32+r}, v{ACC3+32+r}, v{ACC3+48+r}')
    for q in range(4):
        e(rwr(1, ACC3, q))
        for r in range(8 + 2*q, 10 + 2*q): e(f'v_add_f32 v{ACC3+32+r}, v{ACC3+32+r}, v{ACC3+48+r}')
    for p in range(8): e(f'v_pk_add_f32 {vr(ACC3+2*p,2)}, {vr(ACC3+2*p,2)}, {vr(ACC3+32+2*p,2)}')
    e('s_waitcnt lgkmcnt(0)\ns_barrier')
    for q in range(4): e(rrd(1, ACC3, q))
    HN = ' nt' if knob('hn', 0) else ''
    def dual(lines, tag, lab, loc=''):
        e(f's_cmp_lg_u32 s31, 0\ns_cbranch_scc0 {lab}_s')
        for l in lines: vm.op(l + loc, tag)
        e(f'{lab}_d:')
        slow.append(f'{lab}_s:\ns_nop 1\n' + '\n'.join(l + ' sc1' for l in lines) + f'\ns_nop 1\ns_branch {lab}_d')
    for q in range(4):
        e(f's_waitcnt lgkmcnt({3-q})')
        for p in (2*q, 2*q+1):
            e(f'v_pk_add_f32 {vr(ACC3+2*p,2)}, {vr(ACC3+2*p,2)}, {vr(ACC3+16+2*p,2)}')
            e(f'v_cvt_pk_bf16_f32 v{16+p}, v{ACC3+2*p}, v{ACC3+2*p+1}')
    dual([f'buffer_store_dwordx4 {vr(16+4*t,4)}, v255, s[12:15], s64 offen offset:{(256 if M16 else 1024)*t}' for t in range(2)], 'hst', 'L_h', HN)
    def psum(d, p0, p1):
        A = ACC3 + 2*p0
        e(f'v_pk_mul_f32 {vr(d+2,2)}, {vr(A,2)}, {vr(A,2)}\nv_pk_add_f32 {vr(d,2)}, {vr(A,2)}, {vr(A+2,2)}\nv_pk_fma_f32 {vr(d+2,2)}, {vr(A+2,2)}, {vr(A+2,2)}, {vr(d+2,2)}')
        for p in range(p0 + 2, p1):
            e(f'v_pk_add_f32 {vr(d,2)}, {vr(d,2)}, {vr(ACC3+2*p,2)}\nv_pk_fma_f32 {vr(d+2,2)}, {vr(ACC3+2*p,2)}, {vr(ACC3+2*p,2)}, {vr(d+2,2)}')
        e(f'v_add_f32 v{d}, v{d}, v{d+1}\nv_add_f32 v{d+1}, v{d+2}, v{d+3}')
    if M16:
        psum(24, 0, 4); psum(28, 4, 8)
        e('v_permlane16_swap_b32 v24, v28\nv_permlane16_swap_b32 v25, v29\nv_pk_add_f32 v[24:25], v[24:25], v[28:29]')
    else: psum(24, 0, 8)
    e("""v_mov_b32 v26, v24
v_mov_b32 v27, v25
v_permlane32_swap_b32 v24, v26
v_permlane32_swap_b32 v25, v27
v_pk_add_f32 v[24:25], v[24:25], v[26:27]""")
    dual(['buffer_store_dwordx2 v[24:25], v3, s[12:15], s65 offen'], 'hst', 'L_s', HN)
    stamp(e, 'p3st')
    w2l(knob('b3', 0), True)
    for p in range(8): e(f'v_pk_add_f32 {vr(224+2*p,2)}, {vr(144+2*(p % 4 if M16 else p),2)}, {vr(ACC3+2*p,2)}')
    HF, ACC4, WF, STT = 16, 128, 192, 208
    HP = knob('hp', 8); PER = knob('per', 76)
    SP = knob('sp', 10)
    order = list(range(SP + 1)) + ['s0', 's1', 's2', 's3'] + list(range(SP + 1, 28))
    arr = {x: n*PER for n, x in enumerate(order)}
    mlist = []; nxt = [0, 0, 0, 0]; t = 0
    while min(nxt) < 28:
        c = [b for b in range(4) if nxt[b] < 28 and arr[nxt[b]] <= t]
        if not c: t = min(arr[nxt[b]] for b in range(4) if nxt[b] < 28); continue
        b = min(c, key=lambda b: (b >> 1 and b, nxt[b], b))
        mlist.append((nxt[b], b)); nxt[b] += 1; t += 32
    M = len(mlist)
    last = [max(m for m, (s, b2) in enumerate(mlist) if b2 == b) for b in range(4)]
    firstm = [min(m for m, (s, b2) in enumerate(mlist) if b2 == b) for b in range(4)]
    def w1rd(dst, s, b, k='v'):
        base = WA + b + (4 if s >= 16 else 0); off = (s & 15)*4096
        return [f'ds_read_b64_tr_b16 {vr(dst+2*rd,2,k)}, v{base} offset:{off + rd*1024}' for rd in range(2)]
    def wreg(m): return ('v', WF + 4*(m & 7)) if (m & 7) < 4 else ('a', 240 + 4*((m & 7) - 4))
    def rds(m):
        s, b = mlist[m]; k, r = wreg(m)
        return w1rd(r, s, b, k)
    LD = 6
    for m in range(LD): e('\n'.join(rds(m)))
    e('s_mov_b32 m0, s67')
    vm.wait('hst')
    dual([f'buffer_store_dword v8, v4, s[12:15], s25 offen offset:{16*128}'], 'f3', 'L_f3')
    stamp(e, 'p3end')
    def poll(lab, addr, so):
        e(f"""s_mov_b32 s26, {POLL_MAX}
{lab}:
buffer_load_dword v13, {addr}, s[12:15], {so} sc1
s_sub_u32 s26, s26, 1
s_cbranch_scc1 {lab}_x
s_waitcnt vmcnt(0)
v_cmp_ne_u32 vcc, 1, v13
s_cbranch_vccnz {lab}
{lab}_x:""")
    poll('L_p3', 'v5', f's66 offen offset:{16*128}')
    stamp(e, 's3done')
    def hl(x):
        if isinstance(x, str):
            p = int(x[1]); vm.op(f'buffer_load_dwordx4 {vr(STT+4*p,4)}, v2, s[12:15], s68 offen offset:{1024*p} sc1', 'st'); return
        if x and x % 4 == 0: e(f's_add_u32 m0, s67, {x*1024}')
        vm.op(f'buffer_load_dwordx4 {vr(HF+4*x,4)}, v2, s[12:15], m0 offen offset:{(x&3)*1024} sc1', f'h{x}')
    for x in order[:HP]: hl(x)
    hq = order[HP:]
    XB = STT + 8
    def add_stats():
        F.add(lambda: vm.wait('st'))
        F.add('\n'.join(f'v_and_b32 v{STT+12+r}, v6, v{STT+12+r}' for r in range(4)))
        for k in range(1, 8): F.add(f'v_add_f32 v{STT}, v{STT}, v{STT+2*k}\nv_add_f32 v{STT+1}, v{STT+1}, v{STT+2*k+1}')
        F.add(ln_stats(STT, STT+1, STT+2, STT+3, STT+4, STT+5))
        F.add(f"""v_sub_f32 v{STT+3}, 0, v{STT+3}
v_and_b32 v{STT+3}, v6, v{STT+3}
v_and_b32 v{STT+5}, v6, v{STT+5}
v_and_b32 v{STT+6}, 0xffff0000, v{STT+3}
v_sub_f32 v{STT+7}, v{STT+3}, v{STT+6}
v_cvt_pk_bf16_f32 v{XB}, v{STT+6}, v{STT+6}
v_and_b32 v{STT+6}, 0xffff0000, v{STT+5}
v_cvt_pk_bf16_f32 v{XB+1}, v{STT+7}, v{STT+6}
v_sub_f32 v{STT+7}, v{STT+5}, v{STT+6}
v_cvt_pk_bf16_f32 v{XB+2}, v{STT+7}, 0
v_mov_b32 v{XB+3}, 0
v_mul_f32 v248, v{STT+4}, v{STT+4}""")
        F.mark('st')
    def epi(b):
        A = ACC4 + 16*b
        for p in range(8):
            F.add(f"""v_mul_f32 v{A+2*p}, v{A+2*p}, abs(v{A+2*p})
v_mul_f32 v{A+2*p+1}, v{A+2*p+1}, abs(v{A+2*p+1})
v_cvt_pk_bf16_f32 v{A+p}, v{A+2*p}, v{A+2*p+1}
v_pk_max_i16 v{A+p}, v{A+p}, 0""")
            if p % 4 == 3:
                l = f'buffer_store_dwordx4 {vr(A+4*(p//4),4)}, v2, s[12:15], s{72+b} offen offset:{1024*(p//4)}'
                if H1M == 0: F.add(lambda l=l: vm.op(l + ' sc1', 'h1st'))
                else: F.add(lambda l=l, n=2*b + p//4: dual([l], 'h1st', f'L_e{n}', ' nt' if H1M == 2 else ''))
    mst = min(m for m, (s, b) in enumerate(mlist) if s > SP) + 2
    XK = min(last[0], last[1]) - 1
    w2set = [True]
    for m, (s, b) in enumerate(mlist):
        if m == mst: add_stats()
        if m == last[1] + 1: stamp(e, 'p4a')
        for b2 in range(3):
            if m == last[b2] + 4: epi(b2)
        lg = f'lgkmcnt({2*max(0, min(LD-2, M-2-m))})' if m % 2 == 0 else ''
        vm.wait(f'h{s}', lg)
        if b == 0: stamp(e, f'h{s}')
        acc = vr(ACC4 + 16*b, 16); k, r = wreg(m)
        zero = s == 0
        if s == 0 and m > XK: e(f'{MF} {acc}, {ar(224+4*b,4)}, {vr(XB,4)}, 0'); zero = False
        e(f'{MF} {acc}, {vr(r,4,k)}, {vr(HF+4*s,4)}, ' + ('0' if zero else acc))
        if m % 2 == 1 and hq: hl(hq.pop(0)); n = 2
        elif m % 2 == 1 and w2n[0] < 56: w2l(1, w2set[0]); w2set[0] = False; n = 2
        else: n = 3 if m % 2 else 2
        if m + LD < M: e('\n'.join(rds(m + LD)))
        else: n += 2
        F.drain(n)
        if m == XK:
            F.need('st')
            for b2 in range(4):
                if firstm[b2] <= XK: e(f'{MF} {vr(ACC4+16*b2,16)}, {ar(224+4*b2,4)}, {vr(XB,4)}, {vr(ACC4+16*b2,16)}')
    stamp(e, 'p4mf')
    F.drain(999)
    w2l(56, w2set[0])
    epi(3); F.drain(999)
    e('s_barrier\nds_write_b32 v251, v248\ns_mov_b32 m0, s71')
    vm.wait('h1st')
    dual([f'buffer_store_dword v8, v14, s[12:15], s25 offen offset:{20*128}'], 'f4', 'L_f4')
    stamp(e, 'p4end')
    poll('L_p4', 'v7', f's69 offen offset:{20*128}')
    stamp(e, 's4done')
    GF, ACC5, RING = 16, 144, 32
    GP = knob('gp', 12)
    s5 = [(a, n) for a in (1, 0) for n in range(28)]
    def gl(i):
        a, n = s5[i]
        if i and n % 4 == 0: e(f's_add_u32 m0, s{70+a}, {n*1024}')
        vm.op(f'buffer_load_dwordx4 {vr(GF+4*(i%RING),4)}, v255, s[12:15], m0 offen offset:{aoff(n)} sc1', f'g{i}')
    def m5(a, f, n): e('\n'.join(mm(ACC5, 'a', 0, GF + 4*((n + 28*(1-a)) % RING), a, f, n, True)))
    ON_ = ' nt' if knob('on', 0) else ''
    RS = lambda r: 248 + (2*(r // 8) if M16 else 0)
    for i in range(GP): gl(i)
    for i, (a, n) in enumerate(s5):
        if i == 28: stamp(e, 'p5a')
        vm.wait(f'g{i}')
        stamp(e, f'g{i}')
        m5(a, 1, n)
        if i + GP < 56: gl(i + GP)
        if a == 1: m5(1, 0, n)
        elif n >= LAG: m5(0, 0, n - LAG)
        if a == 0:
            if 3 <= n < 11: e(rwr(2 + (n-3)//4, ACC5, (n-3) % 4))
            if n == 13:
                e('s_waitcnt lgkmcnt(0)\ns_barrier\nds_read_b32 v248, v250')
                if M16: e('ds_read_b32 v250, v250 offset:64')
            if 14 <= n < 18: e(rrd(2, ACC5, n-14) + '\n' + rrd(3, ACC5, n-14))
            if n == 19: e('s_waitcnt lgkmcnt(0)')
            if 19 <= n < 27:
                for r in (2*(n-19), 2*(n-19)+1): e(f'v_add_f32 v{ACC5+32+r}, v{ACC5+32+r}, v{ACC5+48+r}\nv_fmac_f32 v{224+r}, v{RS(r)}, v{ACC5+32+r}')
    stamp(e, 'p5mf')
    for n in range(28 - LAG, 28): m5(0, 0, n)
    for q in range(4): e(rwr(1, ACC5, q))
    if M16: e(f's_add_u32 s26, s27, {16*896}')
    for p in range(8): e(f'v_pk_fma_f32 {vr(224+2*p,2)}, {vr(ACC5+2*p,2)}, {vr(RS(2*p),2)}, {vr(224+2*p,2)} op_sel_hi:[1,0,1]')
    e('s_waitcnt lgkmcnt(0)\ns_barrier')
    for q in range(4): e(rrd(1, ACC5, q))
    for t in range(2):
        e(f's_waitcnt lgkmcnt({2-2*t})')
        for p in range(4*t, 4*t+4):
            e(f'v_pk_fma_f32 {vr(224+2*p,2)}, {vr(ACC5+16+2*p,2)}, {vr(RS(2*p),2)}, {vr(224+2*p,2)} op_sel_hi:[1,0,1]')
            e(f'v_cvt_pk_bf16_f32 v{16+p}, v{224+2*p}, v{225+2*p}')
        if M16: e(f'buffer_store_dwordx4 {vr(16+4*t,4)}, v0, s[40:43], s{27-t} offen' + ON_)
        else: e(f'buffer_store_dwordx4 {vr(16+4*t,4)}, v0, s[40:43], s27 offen offset:{32*t}' + ON_)
    stamp(e, 'p5st')
    stamp_out(e)
    e('s_endpgm')
    for x in slow: e(x)
    if H1M == 3 or knob('wb', 0):
        e(f"""L_wb:
s_cmp_lg_u32 s20, 14
s_cbranch_scc1 L_end
s_cmp_lg_u32 s16, 0
s_cbranch_scc1 L_end
v_and_b32 v5, 15, v1
v_min_u32 v5, 13, v5
v_lshrrev_b32 v13, 4, v1
v_lshl_add_u32 v5, v13, 5, v5
v_lshlrev_b32 v5, 2, v5""")
        poll('L_wbp', 'v5', f's25 offen offset:{(20 if H1M == 3 else 16)*128}')
        e('buffer_wbl2 sc1\ns_waitcnt vmcnt(0)\ns_endpgm')
    e('L_fallback:\ns_mov_b32 s30, 1\ns_waitcnt vmcnt(0) lgkmcnt(0)\ns_barrier')
    for j in range(16):
        e(kvset(j)); kl(j, 0); kl(j, 1); vl(j, 0); vl(j, 1)
        if j == 7: e('s_waitcnt vmcnt(0)')
    e('s_waitcnt vmcnt(0)')
    MXB = SCR
    d = vr(S, 16)
    for s in range(4):
        e(f'v_mov_b32 v{128+s}, 0xff800000')
        for j in range(16):
            e(f'{MF} {d}, {ar(16*j,4)}, {vr(Q+8*s,4)}, 0\n{MF} {d}, {ar(16*j+4,4)}, {vr(Q+8*s+4,4)}, {d}')
            for p in range(8): e(f'v_max3_f32 v{128+s}, v{S+2*p}, v{S+2*p+1}, v{128+s}')
        e(f"""v_mov_b32 v13, v{128+s}
v_permlane32_swap_b32 v{128+s}, v13
v_max_f32 v{128+s}, v{128+s}, v13
s_xor_b32 s76, s16, {3-s}
s_lshl_b32 s76, s76, 9
s_add_u32 s76, s76, {MXB}
v_and_b32 v13, 31, v1
v_lshlrev_b32 v13, 4, v13
v_add_u32 v{132+s}, s76, v13
s_lshl_b32 s76, s16, 2
v_add_u32 v13, s76, v{132+s}
ds_write_b32 v13, v{128+s}""")
    e('s_waitcnt lgkmcnt(0)\ns_barrier')
    for s in range(4): e(f'ds_read_b128 {vr(S+4*s,4)}, v{132+s}')
    e('s_waitcnt lgkmcnt(0)\ns_barrier')
    for s in range(4):
        e(f'v_max3_f32 v{128+s}, v{S+4*s}, v{S+1+4*s}, v{S+2+4*s}\nv_max_f32 v{128+s}, v{128+s}, v{S+3+4*s}')
    for s in range(4):
        for r in range(16): e(f'v_sub_f32 v{NM+r}, 0, v{128+s}\nv_mov_b32 v{O+16*s+r}, 0')
        for j in range(16):
            e(f'{MF} {d}, {ar(16*j,4)}, {vr(Q+8*s,4)}, {vr(NM,16)}\n{MF} {d}, {ar(16*j+4,4)}, {vr(Q+8*s+4,4)}, {d}')
            for r in range(16): e(f'v_exp_f32 v{S+r}, v{S+r}')
            for t in range(2): e(f'{SM} {vr(O+16*s,16)}, {ar(16*j+8+4*t,4)}, {vr(S+8*t,8)}, v7')
            e('s_nop 7')
        e('s_nop 7')
    for k in range(12): e(pwr(k//4, k % 4))
    for n in range(W2A):
        a, b = wfrag('W2', n); e(a + '\n' + b)
    e('s_waitcnt vmcnt(0) lgkmcnt(0)\ns_barrier')
    for k in range(12): e(prd(k//4, k % 4))
    e('s_branch L_combine')
    e('L_end:')

def build1(e, path):
    head = open(f'cdna_kernels/{NAME}.s.ref').read().split('\n')
    name = NAME + '_kernel'
    out = head[:12] + (['; stamps: ' + ' '.join(ST_NAMES)] if STAMP else []) + ['; @launch grid=(256,1,1) block=(256,1,1) lds=163840', '.amdgcn_target "amdgcn-amd-amdhsa--gfx950"\n.text']
    e.fix('-v' in sys.argv)
    out.append(f'.globl {name}\n.p2align 8\n.type {name},@function\n{name}:')
    out.append(e.text() + '    s_endpgm')
    out.append(f""".section .rodata,"a"
.p2align 6
.amdhsa_kernel {name}
  .amdhsa_next_free_vgpr 512
  .amdhsa_next_free_sgpr 102
  .amdhsa_accum_offset 256
  .amdhsa_group_segment_fixed_size 0
  .amdhsa_kernarg_size 88
  .amdhsa_user_sgpr_count 2
  .amdhsa_user_sgpr_kernarg_segment_ptr 1
  .amdhsa_system_sgpr_workgroup_id_x 1
.end_amdhsa_kernel""")
    open(path, 'w').write('\n'.join(out) + '\n')

if __name__ == '__main__':
    e = Asm(); kernel(e)
    outs = [a for a in sys.argv[1:] if a.endswith('.s')]
    build1(e, outs[0] if outs else 'v8.s')
```

```python
import sys, math, struct
from asmlib import *

NAME = 'sequential_preLN__mha_block__dense_activation_squared_relu__prompt'
MF = 'v_mfma_f32_32x32x16_bf16'
MH = 'v_mfma_f32_16x16x32_bf16'
SM = 'v_smfmac_f32_32x32x32_bf16'
def f32(x): return '0x%08x' % struct.unpack('<I', struct.pack('<f', x))[0]
QSCALE = math.log2(math.e) / math.sqrt(28.0)

VP, ONE, TTP = 28672, 57344, 57600
WS_O, WS_H, WS_S, WS_H1, WS_WF, WS_FL, WS_ST = 0x600000, 0x800000, 0x9E0000, 0xA40000, 0x1200000, 0x1400000, 0x1500000
WS_F1, WS_F2, HINT = WS_FL + 0x10000, WS_FL + 0x14000, 0x8000
WS_BYTES = 0x1600000
WFP = 144*2048
POLL_MAX = 1 << 18
STAMP = '--stamp' in sys.argv
def knob(name, d):
    for a in sys.argv:
        if a.startswith(name + '='): return int(a.split('=')[1])
    return d
ST_NAMES = ['start p1go p1st s1sig s1done a0 comb end', 'comb s2sig s2done p3end s3done p4end s4done end',
            'p1go p1end p1st s1sig s1win s1done a0 aB', 's2sig s2win s2done p3mf p3st p3end s3done p4a',
            's3done p4a p4mf p4end s4done p5a p5mf p5st', 'a0 a6 a16 a28 a38 aB a58 comb',
            'start p1ld p1w p1go c1 c3 c5 p1end', 's3done h0 h5 h10 h18 h27 p4mf p4end', 's4done g0 g8 g16 g28 g40 p5mf p5st', 's2done o0 o4 o8 o12 p3mf p3st p3end'][knob('st', 0)].split()

for a in sys.argv:
    if a.startswith('names='): ST_NAMES = a[6:].split(',')
def stamp(e, name):
    if STAMP:
        for i, n in enumerate(ST_NAMES):
            if n == name: e(('s_memtime' if '--cyc' in sys.argv else 's_memrealtime') + f' s[{84+2*i}:{85+2*i}]')
def stamp_out(e):
    if not STAMP: return
    if knob('dwg', -1) >= 0:
        stamp(e, 'end')
        e(f'''s_cmp_lg_u32 s2, {knob('dwg', 0)}
s_cbranch_scc1 L_dgx
s_cmp_lg_u32 s16, {knob('dwv', 0)}
s_cbranch_scc1 L_dgx
s_waitcnt lgkmcnt(0)
s_sub_u32 s4, s88, s86
s_sub_u32 s5, s90, s88
s_lshr_b32 s4, s4, 3
s_lshr_b32 s5, s5, 3
s_min_u32 s4, s4, 63
s_min_u32 s5, s5, 127
s_lshl_b32 s4, s4, 7
s_add_u32 s4, s4, s5
s_mul_i32 s4, s4, 200
s_add_u32 s4, s4, 10000
s_mov_b32 s10, 2000000
L_dgl:
s_sub_u32 s10, s10, 1
s_cbranch_scc1 L_dgx
s_memrealtime s[8:9]
s_waitcnt lgkmcnt(0)
s_sub_u32 s8, s8, s84
s_cmp_lt_u32 s8, s4
s_cbranch_scc1 L_dgl
L_dgx:''')
        return
    e('s_waitcnt vmcnt(0)')
    stamp(e, 'end')
    e('s_waitcnt lgkmcnt(0)')
    e(f's_lshl_b32 s3, s2, 2\ns_add_u32 s3, s3, s16\ns_lshl_b32 s3, s3, 6\ns_add_u32 s3, s3, {WS_ST}\nv_mov_b32 v1, 0')
    for i in range(8):
        e(f'v_mov_b32 v0, s{84+2*i}\nbuffer_store_dword v0, v1, s[12:15], s3 offen offset:{4*i}')

def swap23(d, s, t):
    return f'''v_and_b32 v{d}, 0x33, v{s}
v_and_b32 v{t}, 4, v{s}
v_lshl_or_b32 v{d}, v{t}, 1, v{d}
v_lshrrev_b32 v{t}, 1, v{s}
v_and_or_b32 v{d}, v{t}, 4, v{d}'''
def halves_sum(r, t):
    return f'v_mov_b32 v{t}, v{r}\nv_permlane32_swap_b32 v{r}, v{t}\nv_add_f32 v{r}, v{r}, v{t}'
def ln_stats(vs, vq, t, mean, rstd, sig=None):
    s = halves_sum(vs, t) + '\n' + halves_sum(vq, t) + f'''
v_mul_f32 v{mean}, {f32(1/448)}, v{vs}
v_mul_f32 v{t}, v{mean}, v{mean}
v_mov_b32 v{rstd}, {f32(1/448)}
v_fma_f32 v{t}, v{vq}, v{rstd}, -v{t}
v_max_f32 v{t}, 0, v{t}
v_add_f32 v{t}, {f32(1e-5)}, v{t}
v_rsq_f32 v{rstd}, v{t}'''
    if sig is not None: s += f'\nv_mul_f32 v{sig}, v{t}, v{rstd}'
    return s

class Fill:
    def __init__(self, e): self.e = e; self.q = []
    def add(self, text):
        if not isinstance(text, str): self.q.append(text); return
        for l in text.split('\n'):
            l = l.strip()
            if not l: continue
            if l.startswith(('s_cselect', 's_addc')): self.q[-1] += '\n' + l
            else: self.q.append(l)
    def mark(self, tag): self.q.append(('mark', tag))
    def drain(self, k):
        while k > 0 and self.q:
            x = self.q.pop(0)
            if isinstance(x, tuple): continue
            if isinstance(x, str): self.e(x)
            else: x()
            k -= 1
    def need(self, tag):
        while ('mark', tag) in self.q: self.drain(1) if self.q[0] != ('mark', tag) else self.q.pop(0)

def kernel(e):
    vm = VM(e); slow = []
    XR, WQ, CSB, QX, UB = 57344, 114688, 143360, 147456, 155648
    SCR = 114688
    MAP = knob('map', 8); M16 = knob('m16', 1); H1M = knob('h1m', 2)
    Q, O, S, WOF, NM = 16, 48, 112, 160, 144
    def emit(l, tag):
        for x in l:
            if x.startswith(('buffer', 'global')): vm.op(x, tag)
            else: e(x)
    e("""s_getpc_b64 s[80:81]
L_pc0:
s_lshr_b32 s76, s2, 3
v_lshrrev_b32 v10, 4, v0
v_lshl_add_u32 v10, s76, 4, v10
v_min_u32 v10, (L_fallback-L_pc0)/128, v10
v_lshlrev_b32 v10, 7, v10""")
    vm.op('global_load_dword v31, v10, s[80:81]', 'T')
    e("""s_load_dwordx4 s[4:7], s[0:1], 0
s_load_dwordx2 s[12:13], s[0:1], 80""")
    stamp(e, 'start')
    e("""s_cmp_ge_u32 s76, 32
s_cbranch_scc1 L_end
v_lshrrev_b32 v2, 6, v0
v_and_b32 v1, 63, v0
v_readfirstlane_b32 s16, v2
s_and_b32 s51, s2, 7""")
    lg = {2: 1, 4: 2, 8: 3}[MAP]
    ROT = knob('rot', 7)
    rotc = {7: f's_lshr_b32 s48, s76, {5-lg}\ns_lshl1_add_u32 s48, ' + ('s48, s77' if MAP <= 4 else 's77, s48') + '\ns_mul_i32 s77, s48, 37\ns_lshr_b32 s77, s77, 8\ns_mul_i32 s77, s77, 7\ns_sub_u32 s48, s48, s77',
            1: 's_mov_b32 s48, 0', 2: 's_add_u32 s48, s17, s18\ns_and_b32 s48, s48, 1',
            4: 's_add_u32 s48, s17, s18\ns_and_b32 s48, s48, 3\ns_lshl_b32 s48, s48, 1'}[ROT]
    def adv(r, step, it):
        if it == 0: return []
        if ROT == 1 or (ROT == 2 and it > 2): return [f's_add_u32 s{r}, s{r}, {step}']
        if ROT == 2: return [f's_sub_u32 s{r}, {step}, s{r}' if it == 1 else f's_mov_b32 s{r}, {2*step}']
        return [f's_add_u32 s{r}, s{r}, {step}', f's_cmp_lg_u32 s{r}, {7*step}\ns_cselect_b32 s{r}, s{r}, 0']
    e(f"""s_lshr_b32 s17, s51, {lg-1}
s_lshl_b32 s17, s17, {lg}
s_lshr_b32 s77, s76, {5-lg}
s_add_u32 s17, s17, s77        ; qb
s_and_b32 s18, s51, {MAP//2 - 1}
s_lshl_b32 s18, s18, {5-lg}
s_and_b32 s77, s76, {32//MAP - 1}
s_add_u32 s18, s18, s77        ; head
s_lshl2_add_u32 s79, s17, s16
{rotc}
s_mul_i32 s55, s79, {32*896}
s_mul_i32 s54, s16, {16*2688}
s_lshl_b32 s56, s18, 7
s_add_u32 s56, s56, s54
s_add_u32 s56, s56, 896
s_mul_i32 s49, s48, {64*2688}
s_lshl_b32 s48, s48, 7
s_mov_b32 s50, s49
s_mul_i32 s52, s16, 12288
s_add_u32 s52, s52, {XR}
s_lshl_b32 s53, s16, 11
v_lshrrev_b32 v64, 3, v1
v_lshrrev_b32 v65, 4, v1
v_and_b32 v66, 7, v1
v_xor_b32 v67, v65, v66
v_mul_u32_u24 v68, 896, v64
v_lshl_add_u32 v2, v67, 4, v68
v_add_u32 v2, s55, v2
v_xor_b32 v3, 64, v2
v_add_u32 v3, 6144, v3
v_add_u32 v4, 12288, v2
v_add_u32 v5, 12288, v3
v_and_b32 v67, 1, v65
v_lshlrev_b32 v67, 2, v67
v_xor_b32 v69, v67, v66
v_mul_u32_u24 v67, 2688, v64
v_lshl_add_u32 v6, v69, 4, v67
v_add_u32 v6, s56, v6
v_add_u32 v7, {8*2688-1024}, v6
s_mov_b32 s11, 0x00020000
s_mov_b32 m0, s53
s_cmp_lt_u32 s18, 14
s_cselect_b32 s10, {448*2688}, 0
s_waitcnt lgkmcnt(0)
s_mov_b64 s[8:9], s[6:7]
s_mov_b32 s6, {2048*896}
s_mov_b32 s7, s11
s_cbranch_scc0 L_zero
L_zerod:""")
    e_zero = f"""L_zero:
s_mov_b32 s14, {WS_BYTES}
s_mov_b32 s15, 0x00020000
v_mov_b32 v219, 0
s_lshl1_add_u32 s77, s17, s18
s_lshl_b32 s77, s77, 12
s_add_u32 s77, s77, {WS_FL - 14*4096}
v_lshlrev_b32 v70, 4, v0
v_mov_b32 v216, 0
v_mov_b32 v217, 0
v_mov_b32 v218, 0
buffer_store_dwordx4 v[216:219], v70, s[12:15], s77 offen sc1
s_lshl1_add_u32 s77, s17, s18
s_sub_u32 s77, s77, 14
s_mul_i32 s77, s77, {14*2688}
v_lshrrev_b32 v70, 4, v0
v_min_u32 v70, 13, v70
v_mul_u32_u24 v70, 2688, v70
v_bfe_u32 v71, v0, 1, 3
v_min_u32 v71, 6, v71
v_lshl_add_u32 v70, v71, 7, v70
v_add_u32 v70, s77, v70
global_load_dword v31, v70, s[8:9]
s_branch L_zerod"""
    stamp(e, 'p1ld')
    def wload(it):
        return ([f's_add_u32 m0, s53, {it*8192}'] if it else []) + adv(49, 64*2688, it) + \
               [f'buffer_load_dwordx4 v{6+j}, s[8:11], s49 offen offset:{1024*j} lds' for j in range(2)]
    def xload(it):
        return [f's_add_u32 m0, s52, {(it%3)*4096}'] + adv(48, 128, it) + \
               [f'buffer_load_dwordx4 v{2+i}, s[4:7], s48 offen offset:{1024*i} lds' for i in range(4)]
    emit(wload(0) + xload(0), 0)
    QT = knob('qt', 1) and MAP == 8
    if QT:
        e(f'''s_and_b32 s77, s51, 3
s_mul_i32 s77, s77, 7
s_lshr_b32 s77, s77, 2
s_lshl_b32 s77, s77, 7
s_mul_i32 s78, s76, {14*2688}
s_add_u32 s77, s77, s78
v_lshrrev_b32 v70, 4, v0
v_min_u32 v70, 13, v70
v_mul_u32_u24 v70, 2688, v70
v_bfe_u32 v71, v0, 2, 2
v_min_u32 v71, 2, v71
v_lshl_add_u32 v70, v71, 7, v70
v_add_u32 v70, s77, v70''')
        vm.op('global_load_dword v31, v70, s[8:9]', 'T')
        k = e_zero.index('s_lshl1_add_u32 s77, s17, s18\ns_sub_u32'); e_zero = e_zero[:k] + 's_branch L_zerod'
    if knob('pt', 0):
        e(f'''s_lshl4_add_u32 s77, s17, s18
s_lshl2_add_u32 s77, s77, s16
s_mul_i32 s77, s77, {2*896}
v_min_u32 v70, 4, v66
v_lshlrev_b32 v70, 7, v70
v_and_b32 v71, 1, v64
v_mul_u32_u24 v71, 896, v71
v_add_u32 v70, v70, v71
s_mul_i32 s78, s79, {5*2688}
s_lshl_b32 s57, s18, 7
s_add_u32 s78, s78, s57
s_add_u32 s78, s78, {128*2688 + 896}
v_min_u32 v71, 4, v64
v_mul_u32_u24 v71, 2688, v71
s_mov_b64 exec, 0xffff''')
        vm.op('buffer_load_dword v31, v70, s[4:7], s77 offen offset:256', 'T')
        e('s_mov_b64 exec, -1')
        vm.op('buffer_load_dword v31, v71, s[8:11], s78 offen', 'T')
    e(f"""s_load_dwordx2 s[40:41], s[0:1], 16
s_load_dwordx2 s[42:43], s[0:1], 48
s_load_dwordx2 s[60:61], s[0:1], 32
s_load_dwordx2 s[100:101], s[0:1], 72
s_mov_b32 s14, {WS_BYTES}
s_mov_b32 s15, 0x00020000
v_mov_b32 v219, 0""")
    emit(wload(1) + xload(1), 1)
    e('s_waitcnt lgkmcnt(0)')
    e('s_cmp_lt_u32 s18, 14\ns_cbranch_scc0 L_rdyadd\nL_rdyaddd:')
    e_zero += """
L_rdyadd:
s_waitcnt vmcnt(""" + str(15 if knob('pt', 0) else 13) + """)
s_barrier
s_cmp_lg_u32 s16, 0
s_cbranch_scc1 L_rdyaddd
v_mov_b32 v70, 1
s_mov_b64 exec, 1
global_atomic_add v219, v70, s[100:101] sc1
s_mov_b64 exec, -1
s_branch L_rdyaddd"""
    e("""v_and_b32 v73, 31, v1
v_lshrrev_b32 v71, 1, v73
v_lshrrev_b32 v72, 5, v1
v_xor_b32 v71, v71, v72
v_and_b32 v71, 7, v71
v_lshlrev_b32 v71, 4, v71
v_lshl_add_u32 v71, v73, 7, v71
v_add_u32 v71, s52, v71
s_lshl_b32 s77, s16, 5
v_xor_b32 v9, s77, v71
v_xor_b32 v10, 32, v9
v_xor_b32 v11, 64, v9
v_xor_b32 v12, 0x60, v9
v_bfe_u32 v76, v1, 2, 2
v_lshl_add_u32 v74, v72, 3, v76
v_and_b32 v75, 16, v1
v_lshlrev_b32 v75, 1, v75
v_and_b32 v71, 1, v1
v_lshl_add_u32 v75, v71, 4, v75
v_bfe_u32 v71, v1, 1, 1
v_lshl_add_u32 v75, v71, 3, v75
v_lshl_add_u32 v13, v74, 7, v75
v_bfe_u32 v71, v1, 3, 1
v_lshl_add_u32 v13, v71, 6, v13
v_add_u32 v13, s53, v13""")
    for n in range(1, 8): e(f'v_xor_b32 v{13+n}, {2048*(n >> 1) + 64*(n & 1)}, v13')
    e('v_mov_b32 v25, 0x3f803f80\nv_mov_b32 v26, 0\nv_mov_b32 v27, 0\nv_mov_b32 v28, 0\nv_mov_b32 v29, 0')
    F = Fill(e); park = []
    def prk(dst, src): F.add(f'v_accvgpr_write_b32 a{len(park)}, v{src}'); park.append(dst)
    F.add(f"""s_mov_b32 s36, s8
s_mov_b32 s37, s9
s_mov_b32 s38, {448*2688}
s_mov_b32 s39, 0x00020000
s_and_b32 s28, s18, 1
s_lshr_b32 s77, s18, 1
s_mul_i32 s77, s77, 7
s_mul_i32 s78, s28, 3
s_add_u32 s78, s78, s77
s_lshl4_add_u32 s77, s78, s54
s_lshr_b32 s54, s53, 1
s_add_u32 s54, s54, {WQ}
v_lshrrev_b32 v70, 2, v1
v_mul_u32_u24 v71, 2688, v70
v_and_b32 v77, 3, v1
v_lshl_add_u32 v8, v77, 4, v71
v_add_u32 v8, s77, v8""")
    F.mark('wq')
    F.add(swap23(64, 73, 71))
    F.add(f"""v_lshlrev_b32 v254, 4, v1
v_lshlrev_b32 v71, 4, v64
v_lshl_add_u32 v71, v72, 9, v71
s_lshl_b32 s77, s78, 9
v_add_u32 v71, s77, v71""")
    prk(3, 71)
    F.add(f"""v_mul_u32_u24 v71, 7168, v72
v_lshl_add_u32 v240, v64, 4, v71
v_add_u32 v241, 14336, v240
s_mul_i32 s77, s18, 448
s_add_u32 s77, s77, {VP}
v_add_u32 v66, s77, v240
v_add_u32 v67, s77, v241
v_mov_b32 v78, {WS_BYTES}
v_mov_b32 v71, {ONE}
v_cmp_eq_u32 vcc, 28, v73
v_cndmask_b32 v71, v78, v71, vcc
v_cmp_gt_u32 vcc, 28, v73
v_cndmask_b32 v66, v71, v66, vcc
v_cndmask_b32 v67, v71, v67, vcc""")
    prk(4, 66); prk(248, 67)
    F.add(f"""v_lshlrev_b32 v242, 3, v73
v_add_u32 v242, {CSB}, v242
s_lshl_b32 s77, s16, 8
v_add_u32 v243, s77, v242
s_mul_i32 s58, s79, {TTP}
s_lshl_b32 s57, s18, 12
s_lshl_b32 s77, s18, 10
s_add_u32 s77, s77, {VP - 7*1024}
s_cmp_lt_u32 s18, 7
s_cselect_b32 s57, s57, s77
s_add_u32 s57, s57, s58
s_add_u32 s58, s58, {ONE}
s_cmp_eq_u32 s18, 13
s_cselect_b32 s58, s58, {WS_BYTES}
v_min_u32 v244, 0x70, v254
s_lshl4_add_u32 s3, s79, s18
s_lshl_b32 s3, s3, 11
s_add_u32 s3, s3, {WS_O}
v_lshl_add_u32 v21, v74, 6, v75
v_add_u32 v21, s54, v21
v_xor_b32 v22, 1024, v21
v_xor_b32 v23, 2048, v21
v_xor_b32 v24, 3072, v21
v_mov_b32 v30, 0""")
    for r in (218, 221, 222, 223, 226, 227, 230, 231, 234, 235): F.add(f'v_mov_b32 v{r}, 0')
    for r in range(236, 240): F.add(f'v_mov_b32 v{r}, v25')
    F.add(f"""s_lshl2_add_u32 s76, s2, s16
s_mul_i32 s77, s76, 9363
s_lshr_b32 s77, s77, 16
s_mul_i32 s78, s77, 7
s_sub_u32 s78, s76, s78
s_mul_i32 s56, s78, {WFP}
s_lshl_b32 s76, s77, 11
s_add_u32 s56, s56, s76
s_add_u32 s56, s56, {WS_WF}
s_cmp_lt_u32 s77, 144
s_cselect_b32 s56, s56, {WS_BYTES}
s_lshr_b32 s76, s77, 1
s_mul_i32 s55, s76, 28
s_sub_u32 s55, s55, {56*28}
s_lshl_b32 s76, s76, 5
s_mov_b32 s34, {448*896}
s_mov_b32 s35, 0x00020000
s_cmp_lt_u32 s77, 112
s_cselect_b32 s55, s76, s55
s_cselect_b32 s32, s42, s40
s_cselect_b32 s33, s43, s41
s_cselect_b32 s34, {1792*896}, s34
s_mul_i32 s55, s55, 896
s_lshl_b32 s78, s78, 7
s_add_u32 s55, s55, s78
s_and_b32 s77, s77, 1
s_mul_i32 s77, s77, {64 if M16 else 16*896}
s_add_u32 s55, s55, s77""")
    if M16:
        F.add(f"""v_mul_u32_u24 v250, 896, v70
v_lshl_add_u32 v250, v77, 4, v250
v_add_u32 v251, {16*896 - 1024}, v250
v_lshl_add_u32 v252, v65, 3, v76
v_lshlrev_b32 v252, 6, v252
v_lshl_add_u32 v252, v77, 4, v252
s_add_u32 s77, s53, {UB}
v_add_u32 v252, s77, v252
v_add_u32 v253, 8, v252""")
    else:
        F.add(f"""v_lshl_add_u32 v250, v69, 4, v68
v_add_u32 v251, 6144, v250
v_add_u32 v252, {UB}, v13
v_xor_b32 v253, 64, v252""")
    F.add(f"""s_bfe_u32 s20, s2, 0x40003     ; j
s_lshr_b32 s19, s2, 7
s_lshl1_add_u32 s19, s51, s19  ; rb
s_lshl_b32 s25, s19, 12
s_add_u32 s25, s25, {WS_FL}
s_getreg_b32 s76, hwreg(HW_REG_XCC_ID, 0, 4)
s_lshl_b32 s77, s76, 2
s_lshl_b32 s29, 14, s77
s_lshl_b32 s77, 1, s77
s_cmp_lt_u32 s76, 8
s_cselect_b32 s77, s77, 0
s_cmp_lt_u32 s20, 14
s_cselect_b32 s77, s77, 0
v_lshlrev_b32 v79, 7, v1
s_lshl_b32 s76, s17, 7
s_add_u32 s76, s76, {WS_F1}
v_lshl_add_u32 v255, v79, 4, s76
v_add_u32 v66, {WS_F2 - WS_F1}, v255
s_cmp_eq_u32 s16, 0
s_cselect_b32 s76, 8, 0
v_cmp_gt_u32 vcc, s76, v1
v_cndmask_b32 v255, v78, v255, vcc
v_mov_b32 v67, 1
s_add_u32 s78, s25, {24*128}
v_writelane_b32 v66, s78, 8
v_writelane_b32 v67, s77, 8""")
    prk(14, 66); prk(8, 67)
    F.add(f"""s_and_b32 s21, s20, 1          ; th
s_lshr_b32 s22, s20, 1         ; fb
s_lshl1_add_u32 s23, s19, s21
s_lshr_b32 s76, s16, 1
s_and_b32 s77, s22, {knob('flip', 1)}
s_xor_b32 s76, s76, s77
s_lshl1_add_u32 s23, s23, s76
s_and_b32 s76, s16, 1
s_lshl1_add_u32 s24, s22, s76
s_lshl_b32 s77, s76, {11 if M16 else 10}
v_add_u32 v66, s77, v254
s_lshl_b32 s65, s23, 12
s_lshl3_add_u32 s65, s76, s65
s_lshl_b32 s77, s22, 9
s_add_u32 s65, s65, s77
s_add_u32 s65, s65, {WS_S}
s_mul_i32 s27, s23, {32*896}
s_lshl_b32 s77, s24, 11
s_add_u32 s64, s27, s77
s_add_u32 s64, s64, {WS_H}     ; h tile
s_lshl_b32 s76, s24, 6
s_add_u32 s27, s27, s76""")
    prk(171, 66)
    if M16:
        F.add("""v_and_b32 v66, 15, v1
v_mul_u32_u24 v67, 896, v66
v_lshlrev_b32 v71, 4, v65
v_add_u32 v67, v67, v71
v_lshlrev_b32 v66, 4, v66
v_lshl_add_u32 v66, v65, 9, v66""")
        prk(172, 66)
    else:
        F.add('v_mul_u32_u24 v67, 896, v73\nv_lshlrev_b32 v71, 4, v72\nv_add_u32 v67, v67, v71')
    F.add(f"""v_add_u32 v71, s76, v71
s_lshl_b32 s76, s20, 8
s_lshl_b32 s77, s16, 6
s_add_u32 s77, s77, s76
v_lshl_add_u32 v66, v64, 1, s77""")
    prk(0, 67); prk(160, 71); prk(161, 66)
    F.add(f"""s_mov_b32 s31, s77
s_lshl2_add_u32 s77, s2, s16
s_mul_i32 s77, s77, 1664
s_min_u32 s77, s77, {448*3584 - 1664}
v_min_u32 v249, 12, v70
v_lshlrev_b32 v249, 7, v249""")
    prk(177, 249)
    F.add(f"""
s_add_u32 s82, s60, s77
s_addc_u32 s83, s61, 0
s_mul_i32 s77, s16, {16*3584}
s_add_u32 s77, s77, s76
s_add_u32 s60, s60, s77
s_addc_u32 s61, s61, 0
s_lshl_b32 s59, s16, 12
v_cmp_gt_u32 vcc, 32, v1
s_cmp_eq_u32 s28, 0
s_cselect_b32 s76, -1, 0
v_cndmask_b32 v66, 0, -1, vcc
v_not_b32 v67, v66
v_or_b32 v67, s76, v67
s_not_b32 s76, s76
v_or_b32 v71, s76, v66""")
    prk(6, 66); prk(13, 67); prk(5, 71)
    F.add(f's_add_u32 s76, s53, {QX}\nv_add_u32 v66, s76, v254'); prk(15, 66)
    for s in range(4):
        F.add(f's_xor_b32 s76, s16, {3-s}\ns_mul_i32 s76, s76, 12288\ns_add_u32 s76, s76, {SCR}\nv_add_u32 v66, s76, v254'); prk(9 + s, 66)
    F.add("""v_lshlrev_b32 v66, 2, v65
v_and_b32 v67, 15, v1
v_xor_b32 v66, v66, v67
v_mul_u32_u24 v67, 3584, v65
v_lshl_add_u32 v66, v66, 4, v67""")
    prk(165, 66)
    F.add("""v_lshl_add_u32 v66, v74, 8, v75
v_xor_b32 v67, s16, v76
v_lshl_add_u32 v66, v67, 6, v66""")
    prk(173, 66)
    ST = knob('sm', 0)
    if ST & 2: F.add('v_mov_b32 v66, v78')
    else: F.add(f"""v_add_u32 v66, s64, v79
s_and_b32 s76, s65, 0xffffff80
s_sub_u32 s76, s76, {16*128}
v_add_u32 v67, s76, v79
v_cmp_gt_u32 vcc, 16, v1
v_cndmask_b32 v66, v67, v66, vcc
v_cmp_gt_u32 vcc, 20, v1
v_cndmask_b32 v66, v78, v66, vcc""")
    F.add(f"""s_lshl_b32 s51, s51, 11
s_add_u32 s76, s51, {WS_F2 - 48*128}
v_add_u32 v67, s76, v79
v_cmp_gt_u32 vcc, 48, v1
v_cndmask_b32 v66, v67, v66, vcc
v_writelane_b32 v66, s78, 20
s_add_u32 s51, s51, {WS_F1}
s_bfe_u32 s76, s2, 0x20003
s_lshl2_add_u32 s76, s76, s16
s_lshl_b32 s76, s76, 11
v_and_b32 v67, 0x780, v79
v_add_u32 v71, s76, v67
v_min_u32 v71, L_fallback-L_pc1, v71""")
    prk(241, 66); prk(169, 67); prk(170, 71); prk(240, 79)
    F.add(f"""s_lshl_b32 s76, s17, 12
s_add_u32 s76, s76, {WS_FL}
s_cmp_eq_u32 s16, 0
s_cselect_b32 s76, s76, {WS_BYTES}
v_writelane_b32 v78, s76, 0
v_mul_u32_u24 v66, 12288, v77
v_add_u32 v66, {SCR}, v66
v_lshlrev_b32 v67, 2, v73
v_sub_u32 v67, v67, v254""")
    prk(174, 78); prk(175, 66); prk(176, 67)
    F.add(f"""s_and_b32 s76, s17, {knob('kvm', 1)}
s_lshl1_add_u32 s76, s16, s76
s_mul_i32 s46, s76, {8*TTP}
s_xor_b32 s76, s76, 1
s_mul_i32 s47, s76, {8*TTP}
s_mul_i32 s44, s22, {WFP}
s_add_u32 s44, s44, {WS_WF}
s_cmp_lt_u32 s20, 14
s_cselect_b32 s44, s44, {WS_BYTES}
s_mul_i32 s45, s16, {28*2048}
s_add_u32 s45, s45, s44
s_lshl2_add_u32 s44, s59, s44
s_add_u32 s44, s44, {112*2048} ; Wo fragments of this wave
s_lshl_b32 s62, s23, 15
s_lshl1_add_u32 s62, s59, s62
s_add_u32 s62, s62, {WS_O}
s_xor_b32 s63, s62, 32768
s_lshl_b32 s66, s16, 7
s_add_u32 s66, s66, s25
s_lshl2_add_u32 s76, s19, s16
s_mul_i32 s67, s76, 28672
s_add_u32 s67, s67, {WS_H}
s_lshl_b32 s68, s76, 12
s_add_u32 s68, s68, {WS_S}
s_mul_i32 s28, s76, 114688
s_lshl_b32 s77, s20, 13
s_add_u32 s28, s28, s77
s_add_u32 s28, s28, {WS_H1}
s_add_u32 s72, s28, s53
s_xor_b32 s73, s72, 2048
s_xor_b32 s74, s72, 4096
s_xor_b32 s75, s72, 6144
s_lshl_b32 s69, s21, 8
s_add_u32 s69, s69, s25
s_mul_i32 s76, s16, {28*1024}
s_add_u32 s76, s76, {WS_H1}
s_mul_i32 s70, s23, 114688
s_add_u32 s70, s70, s76
s_xor_b32 s77, s23, 1
s_mul_i32 s71, s77, 114688
s_add_u32 s71, s71, s76
s_mov_b32 s30, 0""")
    F.drain(knob('f0', 400))
    stamp(e, 'p1w')
    ACC, QA, WF, XF = 32, 64, 80, 104
    XM, RM, CF, ON = 216, 220, 224, 236
    def reads(s, ty):
        it, kk = divmod(s, 4); b = s % 3
        l = [f'ds_read_b128 {vr(XF+4*s,4)}, v{9+kk} offset:{(it%3)*4096}']
        if ty != 'l':
            for f in range(2):
                for rd in range(2):
                    l.append(f'ds_read_b64_tr_b16 {vr(WF+8*b+4*f+2*rd,2)}, v{13+2*kk+f} offset:{it*8192 + rd*512}')
        return l
    def xdots(s):
        for r in range(4):
            x = XF + 4*s + r
            e(f'v_dot2c_f32_bf16 v26, v{x}, v25\nv_dot2c_f32_bf16 v27, v{x}, v{x}')
    wq = [[f's_add_u32 m0, s54, {it*4096}'] + adv(50, 64*2688, it) + ['buffer_load_dwordx4 v8, s[36:39], s50 offen lds'] for it in range(7)]
    WQS = [int(c) for c in str(knob('wqs', 0)) if c != '0']
    WQE = knob('wqe', 7)
    early = {c - 1: wq[n] for n, c in enumerate(WQS)}
    unit_dma = [f's_add_u32 m0, s53, {UB}', 'buffer_load_dwordx4 v250, s[32:35], s55 offen lds', 'buffer_load_dwordx4 v251, s[32:35], s55 offen offset:1024 lds']
    rdy = 'global_load_dword v245, v219, s[100:101] sc1'
    def rdycheck(lab):
        e(f"""v_cmp_gt_u32 vcc, 32, v245
v_mov_b32 v31, 1
s_cbranch_vccnz {lab}p
{lab}d:""")
        slow.append(f"""{lab}p:
s_mov_b32 s26, {POLL_MAX}
{lab}l:
global_load_dword v245, v219, s[100:101] sc1
s_sub_u32 s26, s26, 1
s_cbranch_scc1 {lab}d
s_waitcnt vmcnt(0)
v_cmp_gt_u32 vcc, 32, v245
s_cbranch_vccnz {lab}l
s_branch {lab}d""")
    xm_frag = f"""v_cmp_gt_u32 vcc, 32, v1
v_sub_f32 v247, 0, v247
v_cndmask_b32 v247, 0, v247, vcc
v_and_b32 v26, 0xffff0000, v247
v_sub_f32 v27, v247, v26
v_cvt_pk_bf16_f32 v{XM}, v26, v26
v_cvt_pk_bf16_f32 v{XM+1}, v27, 0"""
    e('s_cmp_lt_u32 s18, 7\ns_cbranch_scc1 L_kk\ns_cmp_lt_u32 s18, 14\ns_cbranch_scc0 L_light')
    vm0 = (list(vm.seq), vm.done); q0 = list(F.q)
    def variant(ty, lab):
        if lab: e(f'{lab}:')
        vm.seq, vm.done = list(vm0[0]), vm0[1]; F.q = list(q0)
        per = (len(F.q) + 5) // 6
        lt = wq[len(WQS):WQE]
        vm.wait(0); e('s_barrier')
        stamp(e, 'p1go')
        e('\n'.join(reads(0, ty) + reads(1, ty)))
        emit(wload(2), 2)
        for s in range(28):
            it, kk = divmod(s, 4); b = s % 3
            if kk == 0: stamp(e, f'c{it}')
            x = vr(XF+4*s, 4)
            mf = []
            for f in range(2):
                w = vr(WF+8*b+4*f, 4); a = vr(ACC+16*f, 16); c = a if s else '0'
                mf.append(f'{MF} {a}, {w}, {x}, {c}' if ty == 'k' else f'{MF} {a}, {x}, {w}, {c}')
            rd = reads(s+2, ty) if s < 26 else []
            if s < 18:
                if kk < 2: L = xload(it + 2); tag = it + 2; ld = {0: (L[:-3], L[-3:-2]), 1: (L[-2:-1], L[-1:])}[kk]
                else: L = wload(it + 3); tag = it + 3; ld = {2: ([], L[:-1]), 3: (L[-1:], [])}[kk]
            else:
                tag = 'wq'; F.need('wq')
                ld = ([], lt.pop(0) if lt else [])
            if s < 27: e(f's_waitcnt lgkmcnt({5 if s < 26 else 0})')
            if kk == 2:
                for r in range(4):
                    for f in range(2): e(f'v_dot2c_f32_bf16 v{28+f}, v{WF+8*b+4*f+r}, v25')
                for s2 in range(max(0, s-3), s + (2 if s == 26 else 1)): xdots(s2)
                if s < 26:
                    F.drain(per if s < 22 else 999)
                    vm.wait(it + 1); e('s_barrier')
                else:
                    for f in range(2): e(halves_sum(28+f, 246))
                    e('ds_write_b64 v243, v[28:29]')
            def spread(m, sal, rest):
                e(m)
                if sal and not sal[0].startswith('buffer'): e(sal[0]); sal = sal[1:]
                e('\n'.join(rest)); emit(sal, tag)
            spread(mf[0], ld[0], rd[:3])
            if s == 26: e(ln_stats(26, 27, 246, 247, 248))
            if s == 27: e(xm_frag)
            spread(mf[1], ld[1], rd[3:])
            if it in early and kk == 3: F.need('wq'); emit(early[it], 'wq')
            if s == 17: vm.op(rdy, 'rdy')
            if s == 26:
                e('s_waitcnt lgkmcnt(0)\ns_barrier')
                for w in range(4): e(f'ds_read_b64 {vr(QA+2*w,2)}, v242 offset:{256*w}')
        assert not lt and not F.q
        stamp(e, 'p1end')
        if ty == 'v':
            e(f"""v_cndmask_b32 v246, 0, v248, vcc
v_and_b32 v26, 0xffff0000, v246
v_sub_f32 v27, v246, v26
v_cvt_pk_bf16_f32 v{RM}, v26, v27
{MF} v[88:103], {vr(RM,4)}, {vr(ON,4)}, 0""")
        e('s_waitcnt lgkmcnt(0)')
        for f in range(2):
            e(f"""v_add_f32 v{QA+f}, v{QA+f}, v{QA+2+f}
v_add_f32 v{QA+4+f}, v{QA+4+f}, v{QA+6+f}
v_add_f32 v{QA+f}, v{QA+f}, v{QA+4+f}
v_and_b32 v26, 0xffff0000, v{QA+f}
v_sub_f32 v27, v{QA+f}, v26
v_cvt_pk_bf16_f32 v{CF+4*f}, v26, v27
v_lshrrev_b32 v{CF+4*f+1}, 16, v{QA+f}""")
            a = vr(ACC+16*f, 16); w = vr(CF+4*f, 4)
            e(f'{MF} {a}, {w}, {vr(XM,4)}, {a}' if ty == 'k' else f'{MF} {a}, {vr(XM,4)}, {w}, {a}')
        vm.op(f'buffer_store_dwordx4 {vr(ON,4)}, v244, s[12:15], s58 offen sc1', 'kv')
        for f in range(2):
            A = ACC + 16*f
            for p in range(8):
                if ty == 'k': e(f'v_pk_mul_f32 {vr(A+2*p,2)}, {vr(A+2*p,2)}, v[248:249] op_sel_hi:[1,0]')
                else: e(f'v_pk_mul_f32 {vr(A+2*p,2)}, {vr(A+2*p,2)}, {vr(88+2*p,2)}')
                e(f'v_cvt_pk_bf16_f32 v{A+p}, v{A+2*p}, v{A+2*p+1}')
                if p % 4 == 3:
                    t = p // 4
                    if ty == 'k': vm.op(f'buffer_store_dwordx4 {vr(A+4*t,4)}, v254, s[12:15], s57 offen offset:{2048*f + 1024*t} sc1', 'kv')
                    else: vm.op(f'buffer_store_dwordx4 {vr(A+4*t,4)}, v{240+t}, s[12:15], s57 offen offset:{512*f} sc1', 'kv')
        stamp(e, 'kvst')
        if ty == 'v': e('s_branch L_q')
    def light():
        e(e_zero)
        e('L_light:')
        vm.seq, vm.done = list(vm0[0]), vm0[1]; F.q = list(q0)
        F.drain(9999)
        e(f'v_mov_b32 v255, {WS_BYTES}')
        stamp(e, 'p1go')
        for it in range(7):
            stamp(e, f'c{it}')
            vm.wait(it)
            for kk in range(4): e('\n'.join(reads(4*it + kk, 'l')))
            if it + 2 <= 6: emit(xload(it + 2), it + 2)
            if it == 5:
                for l in wq[:WQE] + [[rdy]]: emit(l, 'wq')
            e('s_waitcnt lgkmcnt(0)')
            for kk in range(4): xdots(4*it + kk)
        e(ln_stats(26, 27, 246, 247, 248)); e(xm_frag)
        stamp(e, 'p1end')
        e('s_waitcnt vmcnt(0)')
        stamp(e, 'kvst')
        e('s_branch L_q')
    variant('v', None); light(); variant('k', 'L_kk')
    e('L_q:')
    stamp(e, 'p1st')
    for l in wq[WQE:]: emit(l, 'wq2')
    UA = knob('ua', 1)
    if not UA: emit(unit_dma, 'wq2')
    vm.wait('rdy'); rdycheck('L_rd')
    if not knob('nh', 2) & 1:
        e(f's_mov_b32 m0, {HINT}'); vm.op('buffer_atomic_add v31, v255, s[12:15], m0 offen sc1', 'sig')
    if UA: emit(unit_dma, 'u')
    WT = knob('wt', 2)
    if WT == 1: vm.op('global_load_dword v244, v249, s[82:83]', 'T')
    stamp(e, 'q0'); vm.wait('wq'); stamp(e, 'q1'); e('s_barrier'); stamp(e, 'q2')
    def qrd(s, dst=None):
        it, kk = divmod(s, 4)
        if dst is None: dst = ACC + 4*(s & 7)
        return [f'ds_read_b64_tr_b16 {vr(dst+2*rd,2)}, v{21+kk} offset:{it*4096 + rd*256}' for rd in range(2)]
    QS = knob('qs', 3)
    assert (3 <= WQE <= 4 and QS <= WQE) or WQE == 7
    def s1signal():
        stamp(e, 'q3'); vm.wait('kv'); stamp(e, 'q4')
        e('s_barrier')
        vm.op('buffer_atomic_add v31, v255, s[12:15], 0 offen sc1', 'sig')
        stamp(e, 's1sig')
    def unit_out(r):
        for f in range(2):
            for rd in range(2): e(f'ds_read_b64_tr_b16 {vr(r+4*f+2*rd,2)}, v{252+f} offset:{rd*(256 if M16 else 512)}')
        e('s_waitcnt lgkmcnt(0)')
        for f in range(2): vm.op(f'buffer_store_dwordx4 {vr(r+4*f,4)}, v2, s[12:15], s56 offen offset:{1024*f} sc1', 'ust')
    lateprk = [n for n, d in enumerate(park) if XF <= d < XF + 112]
    F.add(f'v_mul_f32 v26, {f32(QSCALE)}, v248\nv_mov_b32 v2, v254')
    for n, d in enumerate(park):
        if n not in lateprk: F.add(f'v_accvgpr_read_b32 v{d}, a{n}')
    F.add(f"""v_xor_b32 v249, {3*2048}, v15
v_xor_b32 v250, {2*2048}, v15
v_xor_b32 v251, {1*2048}, v15
v_mov_b32 v{RM}, 0
v_mov_b32 v7, 0xdddd
s_mov_b32 s8, s60
s_mov_b32 s9, s61
s_cmp_lt_u32 s20, 14
s_cselect_b32 s10, {16*3584}, 0
s_mov_b32 s34, 3584
s_mov_b32 s38, 896
s_mov_b32 s42, {2048*896}
s_mov_b32 s43, 0x00020000""")
    late_fill = '\n'.join(f'v_accvgpr_read_b32 v{park[n]}, a{n}' for n in lateprk) + '\n' + \
                '\n'.join(f'v_add_u32 v{165+i}, {i*(4*3584-1024)}, v165' for i in range(1, 4)) + '\n' + \
                '\n'.join(f'v_xor_b32 v{161+b}, {64*b}, v161' for b in range(1, 4))
    cs_fill = f"""v_add_f32 v96, v96, v97
v_add_f32 v98, v98, v99
v_add_f32 v30, v96, v98
v_and_b32 v28, 0xffff0000, v30
v_sub_f32 v29, v30, v28
v_cvt_pk_bf16_f32 v{CF+8}, v28, v29
v_lshrrev_b32 v{CF+9}, 16, v30"""
    def qcs(g0, g1, r0):
        n = g1 - g0
        for g in range(g0, g1): e('\n'.join(qrd(4*g, r0 + 4*(g - g0))))
        if n > 4:
            e(f's_waitcnt lgkmcnt({2*(n-4)})')
            for s in range(4*g0, 4*g0 + 4): e('\n'.join(qrd(s)))
            for r in range(16): e(f'v_dot2c_f32_bf16 v30, v{r0+r}, v25')
            e('s_waitcnt lgkmcnt(8)')
            for r in range(16, 4*n): e(f'v_dot2c_f32_bf16 v30, v{r0+r}, v25')
        else:
            for s in range(4*g0, 4*g0 + 3): e('\n'.join(qrd(s)))
            e('s_waitcnt lgkmcnt(6)')
            e('\n'.join(qrd(4*g0 + 3)))
            for r in range(4*n): e(f'v_dot2c_f32_bf16 v30, v{r0+r}, v25')
        if g1 == 7: e(halves_sum(30, 246) + '\nds_write_b32 v243, v30')
    qcs(0, WQE, 76 if WQE == 7 else 80)
    for g in range(7):
        for k in range(4):
            s = 4*g + k
            e(f's_waitcnt lgkmcnt({2*min(3, 27-s, (4*WQE-1-s) if g < WQE else 3)})')
            e(f'{MF} {vr(QA,16)}, {vr(ACC+4*(s&7),4)}, {vr(XF+4*s,4)}, ' + (vr(QA, 16) if s else '0'))
            if s + 4 < 28 and g + 1 != WQE: e('\n'.join(qrd(s+4)))
            F.drain(3 if g < 6 else 5)
        if g + 1 == QS: s1signal()
        if WQE < 7 and g + 1 == WQE:
            stamp(e, 'q5'); vm.wait('wq2'); e('s_barrier'); stamp(e, 'q6')
            if not UA: unit_out(96)
            qcs(WQE, 7, 80)
        if g == (1 if WQE == 7 else WQE):
            e('s_barrier')
            for w in range(4): e(f'ds_read_b32 v{96+w}, v242 offset:{256*w}')
        if g == (3 if WQE == 7 else 5): F.add(cs_fill)
        if g == 4: F.add(late_fill)
        if WQE == 7 and not UA and g + 1 == knob('us', 6): vm.wait('wq2'); unit_out(80)
    F.drain(999)
    e(f"""{MF} {vr(QA,16)}, {vr(CF+8,4)}, {vr(XM,4)}, {vr(QA,16)}
s_load_dwordx2 s[32:33], s[0:1], 40
s_load_dwordx2 s[36:37], s[0:1], 56
s_load_dwordx2 s[40:41], s[0:1], 64
s_getpc_b64 s[80:81]
L_pc1:""")
    vm.op('global_load_dword v242, v170, s[80:81]', 'T')
    for s in (0, 2, 3): e(f'{MF} {vr(O+16*s,16)}, {vr(RM,4)}, {vr(RM,4)}, 0')
    w1n = [0]
    def w1set():
        it = w1n[0] // 4
        return [f's_add_u32 m0, s59, {it*16384}'] + ([f's_add_u32 s8, s8, {64*3584}\ns_addc_u32 s9, s9, 0'] if it else [])
    def w1l():
        i = w1n[0] % 4
        vm.op(f'buffer_load_dwordx4 v{165+i}, s[8:11], 0 offen offset:{1024*i} lds', 'W1'); w1n[0] += 1
    WB_ = knob('w1b', 0)
    for n in range(WB_):
        if n % 4 == 0: e('\n'.join(w1set()))
        w1l()
    for p in range(8):
        e(f'v_mul_f32 v{QA+2*p}, v26, v{QA+2*p}\nv_mul_f32 v{QA+2*p+1}, v26, v{QA+2*p+1}')
        e(f'v_cvt_pk_bf16_f32 v{Q+24+p}, v{QA+2*p}, v{QA+2*p+1}')
    e(f"""v_and_b32 v{Q+24}, v13, v{Q+24}
v_and_b32 v{Q+25}, v13, v{Q+25}
v_and_b32 v{Q+30}, v5, v{Q+30}
v_and_b32 v{Q+31}, v5, v{Q+31}
ds_write_b128 v15, {vr(Q+24,4)}
ds_write_b128 v15, {vr(Q+28,4)} offset:1024
{MF} {vr(O+16,16)}, {vr(RM,4)}, {vr(RM,4)}, 0
s_add_u32 s76, s51, {HINT}
s_mov_b32 m0, s46""")
    stamp(e, 's1win')
    def poll2(lab, addr, so_hint, so, n, first):
        e(f's_cmp_lg_u32 s16, {knob("pw", 1)}\ns_cbranch_scc1 {lab}wait\ns_mov_b32 s26, {POLL_MAX}')
        for l, x in ((lab + 'hint', so_hint), (lab + 'poll', so)):
            if x: e(f"""{l}:
buffer_load_dword v15, {addr}, s[12:15], {x} sc1
s_sub_u32 s26, s26, 1
s_cbranch_scc1 {lab}done
s_waitcnt vmcnt(0)
v_cmp_gt_u32 vcc, {n}, v15
s_cbranch_vccnz {l}""")
        e(f'{lab}done:')
        k = knob('pp', 2)
        sv = list(vm.seq)
        for f in first[:k]: f()
        vm.seq = sv
        e(f's_waitcnt lgkmcnt(0)\ns_barrier\ns_branch {lab}go\n{lab}wait:\ns_waitcnt lgkmcnt(0)\ns_barrier')
        for f in first[:k]: f()
        e(f'{lab}go:')
        stamp(e, lab[2:] + 'done')
        for f in first[k:]: f()
    NH = knob('nh', 2)
    def kvset(j): return f's_add_u32 m0, s{46 + (j >> 3)}, {(j & 7)*TTP}'
    def kl(j, t): vm.op(f'buffer_load_dwordx4 {ar(16*j+4*t,4)}, v3, s[12:15], m0 offen offset:{1024*t} sc1', f'K{j}')
    def vl(j, t): vm.op(f'buffer_load_dwordx4 {ar(16*j+8+4*t,4)}, v{248 if t else 4}, s[12:15], m0 offen sc1', f'V{j}')
    KV0 = knob('kv0', 3)
    poll2('L_s1', 'v169', None if NH & 1 else 's76 offen', 's51 offen', 14, [lambda: kl(0, 0), lambda: kl(0, 1), lambda: vl(0, 0), lambda: vl(0, 1)])
    e(kvset(1))
    for s in range(3):
        for t in range(2): e(f'ds_read_b128 {vr(Q+8*s+4*t,4)}, v{249+s} offset:{1024*t}')
    for j in range(1, KV0):
        kl(j, 0); kl(j, 1); vl(j, 0); vl(j, 1); e(kvset(j + 1))
    steps = [(s, j) for j in range(16) for s in range(3)] + [(3, j) for j in range(16)]
    N = len(steps)
    def qk(i, t):
        s, j = steps[i]; d = vr(S + 16*(i % 3), 16)
        return f'{MF} {d}, {ar(16*j+4*t,4)}, {vr(Q+8*s+4*t,4)}, ' + ('0' if t == 0 else d)
    def pv(i, t):
        s, j = steps[i]
        return f'{SM} {vr(O+16*s,16)}, {ar(16*j+8+4*t,4)}, {vr(S+16*(i%3)+8*t,8)}, v7'
    free, post = {}, {}
    def P(d, q, f): d.setdefault(q, []).append(f)
    WX = 2048 if M16 else 1024
    def wfrag(kind, n):
        g, r = divmod(n, 4)
        if M16: f, off, reg = r >> 1, (r & 1)*1024, 16*g + 4*r
        else: f, off, reg = r & 1, (r >> 1)*2048, 16*g + 4*r
        dst = vr(WOF + reg, 4) if kind == 'Wo' else ar(reg, 4)
        return (f's_add_u32 m0, s{44 if kind == "Wo" else 45}, {g*4096}', f'buffer_load_dwordx4 {dst}, v{252+f}, s[12:15], m0 offen offset:{off} sc1')
    w2n = [0]
    def w2l(n=1, setm=False):
        for _ in range(n):
            if w2n[0] >= 56: return
            a, b = wfrag('W2', w2n[0])
            if setm or w2n[0] % 4 == 0: e(a); setm = False
            vm.op(b, 'W2'); w2n[0] += 1
    def wfcheck():
        e('v_cmp_gt_u32 vcc, 16, v243\ns_lshr_b32 s26, vcc_hi, 16\ns_cbranch_scc1 L_wf\nL_wfd:')
        slow.append(f"""L_wf:
s_mov_b32 s26, {POLL_MAX}
L_wfp:
buffer_load_dword v243, v241, s[12:15], 0 offen sc1
s_sub_u32 s26, s26, 1
s_cbranch_scc1 L_wfd
s_waitcnt vmcnt(0)
v_cmp_gt_u32 vcc, 16, v243
s_nop 1
s_lshr_b32 s78, vcc_hi, 16
s_cbranch_scc1 L_wfp
s_branch L_wfd""")
    vq = []
    for j in range(KV0, 16):
        for n, (f, t) in enumerate(((kl, 0), (kl, 1), (vl, 0), (vl, 1))):
            vq.append(([kvset(j)] if n == 0 and j > KV0 else [], (lambda f=f, j=j, t=t: f(j, t)), 1))
        if UA and j == knob('uj', 5):
            for f in range(2): vq.append(([], (lambda f=f: vm.op(f'buffer_store_dwordx4 {vr(180+4*f,4)}, v2, s[12:15], s56 offen offset:{1024*f} sc1', 'ust')), 1))
        if WT == 2 and j == knob('wj', 7): vq.append(([], lambda: vm.op('global_load_dword v242, v177, s[82:83]', 'T'), knob('wg', 3)))
    def t0f():
        if knob('t2', 1): e('s_mov_b32 exec_lo, 0xfff00000')
        vm.op('buffer_load_dword v243, v241, s[12:15], 0 offen sc1', 'T0')
        if knob('t2', 1): e('s_mov_b32 exec_lo, -1')
    t0 = ([], t0f, 1 if ST & 2 or knob('t2', 1) else 2)
    for t in range(2):
        if M16: vq.append(([f's_add_u32 m0, s27, {16*896*t}'], (lambda t=t: vm.op(f'buffer_load_dwordx4 {vr(224+4*t,4)}, v0, s[4:7], m0 offen', 'sm')), 1))
        else: vq.append((['s_mov_b32 m0, s27'] if t == 0 else [], (lambda t=t: vm.op(f'buffer_load_dwordx4 {vr(224+4*t,4)}, v0, s[4:7], m0 offen offset:{32*t}', 'sm')), 1))
    tiny = [(lambda t=t: vm.op(f'buffer_load_dwordx4 {vr(232+4*t,4)}, v160, s[36:39], 0 offen offset:{32*t}', 'sm')) for t in range(1 if M16 else 2)]
    tiny += [(lambda b=b: vm.op(f'buffer_load_ushort v{244+b}, v{161+b}, s[32:35], 0 offen', 'sm')) for b in range(4)]
    if knob('ty', 9):
        for n, f in enumerate(tiny): P(post, 4*knob('ty', 9) + 1 + 2*n, f)
    else: vq += [([], f, 1) for f in tiny]
    for n in range(WB_, 28):
        it = n // 4
        vq.append(((([f's_add_u32 s8, s8, {64*3584}\ns_addc_u32 s9, s9, 0'] if it else []) + [f's_add_u32 m0, s59, {it*16384}']) if n % 4 == 0 else [], w1l, 1))
    vq.insert(len(vq) - 12, t0)
    nchk = len(vq)
    for n in range(16):
        a, b = wfrag('Wo', n); vq.append(([a] if n % 4 == 0 else [], (lambda b=b: vm.op(b, 'Wo')), 1))
    if knob('t2', 1): vq.append(([], lambda: vm.op('buffer_load_dword v242, v241, s[12:15], 0 offen sc1', 'T'), 1))
    if H1M: vq.append((['s_mov_b32 m0, s28'], lambda: vm.op('buffer_load_dword v242, v240, s[12:15], m0 offen sc1', 'T'), knob('h1g', 8)))
    TL = knob('tl', 16); tail = []
    if TL: k = len(vq) - bool(H1M) - bool(knob('t2', 1)); tail = vq[k:]; vq = vq[:k]
    hs = 0
    def place(sal, f):
        if sal: P(free, 2*hs - 1, lambda x=sal[-1]: e(x))
        if len(sal) > 1: P(free, 2*hs, lambda x=sal[0]: e(x))
        P(post, 2*hs, f)
    for n, (sal, f, d) in enumerate(vq):
        if n == nchk: P(free, 2*hs - 3, lambda: vm.wait('T0')); P(post, 2*hs - 3, wfcheck)
        place(sal, f); hs += d
    hs = max(hs, 100)
    W2A = max(0, min(knob('w2a', 24), 126 - TL - hs)) // 4 * 4
    for n in range(W2A):
        a, b = wfrag('W2', n); place([a] if n % 4 == 0 else [], (lambda b=b: vm.op(b, 'W2'))); hs += 1
    for sal, f, d in tail: place(sal, f); hs += 1
    w2n[0] = W2A
    P(free, 2, lambda: vm.wait('V0'))
    for j in range(1, 16):
        if j < 6: P(free, 4*(3*j-1) - 2, (lambda j=j: vm.wait(f'V{j}')))
        elif j % 2 == 0: P(free, 4*(3*j-1) - 2, (lambda j=j: vm.wait(f'V{j+1}')))
    def pwr(s, q): return f'ds_write_b128 v{9+s}, {vr(O+16*s+4*q,4)} offset:{s*4096 + q*1024}'
    def prd(s, q): return f'ds_read_b128 {vr(O+16*s+4*q,4)}, v12 offset:{s*4096 + q*1024}'
    for k in range(12): P(post, 4*50 + 1 + 2*k, (lambda k=k: e(pwr(k//4, k % 4))))
    P(free, 4*59, lambda: vm.wait('W1', 'lgkmcnt(0)')); P(free, 4*59 + 2, lambda: e('s_barrier'))
    for k in range(12): P(post, 4*60 + k, (lambda k=k: e(prd(k//4, k % 4))))
    if UA:
        vm.wait('u')
        for f in range(2):
            for rd in range(2): e(f'ds_read_b64_tr_b16 {vr(180+4*f+2*rd,2)}, v{252+f} offset:{rd*(256 if M16 else 512)}')
        e(f'''s_cmp_eq_u32 s16, 0
s_cselect_b32 s26, 9, 0
v_cmp_gt_u32 vcc, s26, v1
v_mov_b32 v13, {WS_BYTES}
v_mov_b32 v178, v8
s_lshl_b32 s76, s24, 6
v_cndmask_b32 v179, v13, v14, vcc
s_waitcnt lgkmcnt(0)''')
        UB_ = knob('ub', 17)
        P(free, 4*UB_, lambda: vm.wait('ust')); P(free, 4*UB_ + 1, lambda: e('s_barrier'))
        P(post, 4*UB_ + 1, lambda: vm.op('buffer_atomic_add v178, v179, s[12:15], 0 offen sc1', 'sig'))
    else:
        e(f'''s_cmp_eq_u32 s16, 0
s_cselect_b32 s26, 9, 0
v_cmp_gt_u32 vcc, s26, v1
v_mov_b32 v13, {WS_BYTES}
s_lshl_b32 s76, s24, 6
v_cndmask_b32 v14, v13, v14, vcc''')
        vm.wait('ust', 'lgkmcnt(0)')
        e('s_barrier')
        vm.op('buffer_atomic_add v8, v14, s[12:15], 0 offen sc1', 'sig')
    sq = []
    if ST & 1: sq += [f's_load_dword s77, s[82:83], {64*k}' for k in range(26)] + ['s_buffer_load_dword s77, s[32:35], s31', 's_buffer_load_dword s77, s[36:39], s76']
    q = 1
    for x in sq:
        while q in free: q += 1
        P(free, q, lambda x=x: e(x)); q += 2
    if ST & 2:
        q = max(q, 4*knob('hs', 26))
        for x in [f's_buffer_load_dword s77, s[12:15], s64 offset:{64*k}' for k in range(32)] + [f's_buffer_load_dword s77, s[12:15], s65 offset:{64*k}' for k in range(8)]:
            while q in free: q += 1
            P(free, q, lambda x=x: e(x)); q += 2
        assert q < 4*52
    e(f"""v_mov_b32 v249, v173
v_add_u32 v254, 0x10000, v173
v_mov_b32 v250, v174
v_mov_b32 v251, v175
v_mov_b32 v5, v176
v_mov_b32 v252, v171
v_xor_b32 v253, {WX}, v171
v_mov_b32 v255, v{172 if M16 else 2}
v_mov_b32 v8, 1
v_mov_b32 v14, 0x3f803f80""")
    vm.wait('K0')
    stamp(e, 'a0')
    e(qk(0, 0)); e(qk(0, 1))
    for i in range(N):
        if i == 48: stamp(e, 'aB')
        if i: stamp(e, f'a{i}')
        b = S + 16*(i % 3)
        mf = [qk(i+1, 0) if i+1 < N else None, qk(i+1, 1) if i+1 < N else None, pv(i-1, 1) if i > 0 else None, pv(i, 0)]
        for sl in range(4):
            if mf[sl]: e(mf[sl])
            for f in free.get(4*i + sl, []) + post.get(4*i + sl, []): f()
            for r in range(4): e(f'v_exp_f32 v{b+4*sl+r}, v{b+4*sl+r}')
    e(pv(N-1, 1))
    if not NH & 2: vm.op('buffer_atomic_add v8, v250, s[12:15], 0 offen offset:128 sc1', 'sig')
    assert w1n[0] == 28
    e('L_combine:')
    stamp(e, 'comb')
    e('s_waitcnt lgkmcnt(0)')
    for r in range(16): e(f'v_add_f32 v{O+r}, v{O+r}, v{O+16+r}')
    for p in range(8): e(f'v_pk_add_f32 {vr(O+2*p,2)}, {vr(O+2*p,2)}, {vr(O+32+2*p,2)}')
    for p in [6, 0, 1, 2, 3, 4, 5, 7]:
        e(f'v_pk_add_f32 {vr(O+2*p,2)}, {vr(O+2*p,2)}, {vr(O+48+2*p,2)}')
        if p == 6: e(f'v_mov_b32 v13, v{O+12}\nv_mov_b32 v15, v{O+12}')
        if p == 1: e('v_permlane32_swap_b32 v13, v15')
        if p == 2: e('v_rcp_f32 v158, v15')
    for p in range(8):
        e(f'v_pk_mul_f32 {vr(O+2*p,2)}, {vr(O+2*p,2)}, v[158:159] op_sel_hi:[1,0]')
        e(f'v_cvt_pk_bf16_f32 v{O+p}, v{O+2*p}, v{O+2*p+1}')
        if p == 3: vm.op(f'buffer_store_dwordx4 {vr(O,4)}, v2, s[12:15], s3 offen sc1', 'Ost')
        if p == 6: e(f'v_and_b32 v{O+6}, v6, v{O+6}')
    e(f'v_and_b32 v{O+7}, v6, v{O+7}')
    vm.op(f'buffer_store_dwordx4 {vr(O+4,4)}, v2, s[12:15], s3 offen offset:1024 sc1', 'Ost')
    if knob('t1', 0): vm.op('buffer_load_dword v242, v241, s[12:15], 0 offen sc1', 'T')
    def csrd(dst, s):
        return [f'ds_read_b64_tr_b16 {vr(dst+2*rd,2)}, v{254 if s >= 16 else 249} offset:{(s & 15)*4096 + rd*1024}' for rd in range(2)]
    for k in range(4): e('\n'.join(csrd(S + 4*k, k)))
    e(f"""v_cmp_nle_f32 vcc, {f32(2.0**-40)}, v15
v_mov_b32 v156, 0
v_mov_b32 v157, 0
s_mov_b64 s[82:83], vcc
v_cmp_nge_f32 vcc, {f32(2.0**40)}, v15
v_add_u32 v15, v12, v5
s_or_b64 vcc, vcc, s[82:83]
s_cselect_b32 s26, 1, 0
s_andn2_b32 s26, s26, s30
v_mov_b32 v13, s26""")
    B0 = knob('b0', 8); CS = knob('cs', 4)
    def csgroup(g):
        if g < 7:
            for k in range(4): e('\n'.join(csrd(S + 16*(g & 1) + 4*k, 4*g + k)))
        if g <= CS: w2l(B0*g//CS - B0*(g-1)//CS)
        e(f's_waitcnt lgkmcnt({8 if g < 7 else 0})')
        for r in range(16): e(f'v_dot2c_f32_bf16 v{156 + (r & 1)}, v{S + 16*((g-1) & 1) + r}, v14')
    for g in range(1, CS + 1): csgroup(g)
    e('ds_write_b32 v12, v13')
    vm.wait('Ost', 'lgkmcnt(0)')
    e("""s_barrier
ds_read_b32 v13, v251
s_waitcnt lgkmcnt(0)
v_cmp_ne_u32 vcc, 0, v13
s_cbranch_vccnz L_fallback""")
    vm.op('buffer_atomic_add v8, v250, s[12:15], 0 offen sc1', 'sig2')
    stamp(e, 's2sig')
    e(f's_cmp_ge_u32 s20, 14\ns_cbranch_scc1 {"L_wb" if H1M == 3 or knob("wb", 0) else "L_end"}')
    B1 = knob('b1', 14)
    for g in range(CS + 1, 8):
        w2l(B1*(g-CS)//(7-CS) - B1*(g-CS-1)//(7-CS))
        csgroup(g)
    ACC3, AF = 80, 16
    WA = 240
    e('v_add_f32 v156, v156, v157')
    e(halves_sum(156, 157))
    e("""ds_write_b32 v15, v156 offset:8192
v_add_u32 v157, v11, v5
v_add_u32 v158, v10, v5
v_add_u32 v159, v9, v5
v_readlane_b32 s31, v243, 20
v_mov_b32 v13, 0
s_mov_b32 m0, s63""")
    for r in range(8): e(f'v_lshlrev_b32 v{ACC3+2*r}, 16, v{224+r}\nv_and_b32 v{ACC3+2*r+1}, 0xffff0000, v{224+r}')
    e('s_cmp_eq_u32 s31, s29\ns_cselect_b32 s31, 1, 0')
    if knob('nolocal', 0): e('s_mov_b32 s31, 0')
    stamp(e, 's2win')
    def aoff(n): return ((n >> 1) & 1)*2048 + (n & 1)*256 if M16 else (n & 3)*1024
    def ol(a, n):
        if n % 4 == 0 and (a, n) != (1, 0): e(f's_add_u32 m0, s{62+a}, {n*1024}')
        vm.op(f'buffer_load_dwordx4 {vr(AF+32*a+4*n,4)}, v255, s[12:15], m0 offen offset:{aoff(n)} sc1', f'O{a}{n}')
    poll2('L_s2', 'v13', None if NH & 2 else 's25 offen offset:128', 's25 offen', 16, [(lambda n=n: ol(1, n)) for n in range(8)])
    e('ds_read_b32 v157, v157 offset:8192\nds_read_b32 v158, v158 offset:8192\nds_read_b32 v159, v159 offset:8192')
    for n in range(4): ol(0, n)
    e(f"""v_and_b32 v3, 0x1f0, v2
s_and_b32 s76, s23, 3
s_lshl_b32 s77, s76, 5
s_add_u32 s77, s77, s24
s_lshl_b32 s77, s77, 2
v_mov_b32 v4, s77
v_min_u32 v5, 13, v1
v_lshlrev_b32 v5, 2, v5
s_lshl_b32 s77, s16, 5
s_add_u32 s77, s77, s20
s_lshl_b32 s77, s77, 2
v_mov_b32 v14, s77
s_mul_i32 s77, s16, 7
s_lshr_b32 s77, s77, 1
v_and_b32 v7, 3, v1
v_add_u32 v7, s77, v7
v_bfe_u32 v13, v1, 2, 1
v_lshl_add_u32 v7, v13, 5, v7
v_lshlrev_b32 v7, 2, v7
v_lshrrev_b32 v250, 2, v2
s_lshl_b32 s77, s16, 8
v_add_u32 v251, s77, v250
{'v_and_b32 v250, 60, v250' if M16 else ''}
s_lshl_b32 s76, s76, 8
v_add_u32 v250, s76, v250
s_waitcnt lgkmcnt(0)""")
    for b in range(4):
        e(f"""v_and_b32 v13, 0xffff0000, v{156+b}
v_sub_f32 v15, v{156+b}, v13
v_cvt_pk_bf16_f32 v15, v13, v15
v_lshrrev_b32 v13, 16, v13
v_lshl_or_b32 v13, v{244+b}, 16, v13
v_accvgpr_write_b32 a{224+4*b}, v15
v_accvgpr_write_b32 a{225+4*b}, v13
v_accvgpr_write_b32 a{226+4*b}, v{244+b}
v_accvgpr_write_b32 a{227+4*b}, 0""")
    for r in range(4 if M16 else 8): e(f'v_lshlrev_b32 v{144+2*r}, 16, v{232+r}\nv_and_b32 v{145+2*r}, 0xffff0000, v{232+r}')
    for b in range(4): e(f'v_xor_b32 v{WA+b}, {64*b}, v249\nv_xor_b32 v{WA+4+b}, {64*b}, v254')
    for n in range(4, 8): ol(0, n)
    def rwr(s, A, q): return f'ds_write_b128 v{12-s}, {vr(A+16*s+4*q,4)} offset:{(3-s)*4096 + q*1024}'
    def rrd(s, A, q): return f'ds_read_b128 {vr(A+16*s+4*q,4)}, v12 offset:{(3-s)*4096 + q*1024}'
    def mm(A, wk, wb, act, a, f, n, init):
        T = A + 16*(2*a + f)
        if not M16:
            return [f'{MF} {vr(T,16)}, {vr(wb+8*n+4*f,4,wk)}, {vr(act,4)}, ' + ('0' if n == 0 and init else vr(T, 16))]
        return [f'{MH} {vr(T+8*(n&1)+4*u,4)}, {vr(wb+16*(n>>1)+8*f+4*u,4,wk)}, {vr(act,4)}, ' + ('0' if n < 2 and init else vr(T+8*(n&1)+4*u, 4)) for u in range(2)]
    def m3(a, f, n): e('\n'.join(mm(ACC3, 'v', WOF, AF+32*a+4*n, a, f, n, (a, f) != (0, 0))))
    B2 = knob('b2', 8)
    for n in range(8):
        vm.wait(f'O1{n}'); stamp(e, f'o{n}'); m3(1, 1, n); m3(1, 0, n)
        if n >= 8 - B2: w2l(1, n == 8 - B2)
    LAG = 2
    for n in range(8):
        vm.wait(f'O0{n}'); stamp(e, f'o{8+n}'); m3(0, 1, n)
        if 1 <= n < 5: e(rwr(3 - (n-1)//2, ACC3, 2*((n-1) % 2)))
        if n >= LAG: m3(0, 0, n - LAG)
        if 1 <= n < 5: e(rwr(3 - (n-1)//2, ACC3, 2*((n-1) % 2) + 1))
        if n == knob('p3b', 5):
            e('s_waitcnt lgkmcnt(0)\ns_barrier')
            for q in range(4): e(rrd(3, ACC3, q) + '\n' + rrd(2, ACC3, q))
    stamp(e, 'p3mf')
    e('s_waitcnt lgkmcnt(0)')
    for n in range(8 - LAG, 8):
        m3(0, 0, n)
        for r in range(4*(n - 8 + LAG), 4*(n - 7 + LAG)): e(f'v_add_f32 v{ACC3+32+r}, v{ACC3+32+r}, v{ACC3+48+r}')
    for q in range(4):
        e(rwr(1, ACC3, q))
        for r in range(8 + 2*q, 10 + 2*q): e(f'v_add_f32 v{ACC3+32+r}, v{ACC3+32+r}, v{ACC3+48+r}')
    for p in range(8): e(f'v_pk_add_f32 {vr(ACC3+2*p,2)}, {vr(ACC3+2*p,2)}, {vr(ACC3+32+2*p,2)}')
    e('s_waitcnt lgkmcnt(0)\ns_barrier')
    for q in range(4): e(rrd(1, ACC3, q))
    HN = ' nt' if knob('hn', 0) else ''
    def dual(lines, tag, lab, loc=''):
        e(f's_cmp_lg_u32 s31, 0\ns_cbranch_scc0 {lab}_s')
        for l in lines: vm.op(l + loc, tag)
        e(f'{lab}_d:')
        slow.append(f'{lab}_s:\ns_nop 1\n' + '\n'.join(l + ' sc1' for l in lines) + f'\ns_nop 1\ns_branch {lab}_d')
    for q in range(4):
        e(f's_waitcnt lgkmcnt({3-q})')
        for p in (2*q, 2*q+1):
            e(f'v_pk_add_f32 {vr(ACC3+2*p,2)}, {vr(ACC3+2*p,2)}, {vr(ACC3+16+2*p,2)}')
            e(f'v_cvt_pk_bf16_f32 v{16+p}, v{ACC3+2*p}, v{ACC3+2*p+1}')
    dual([f'buffer_store_dwordx4 {vr(16+4*t,4)}, v255, s[12:15], s64 offen offset:{(256 if M16 else 1024)*t}' for t in range(2)], 'hst', 'L_h', HN)
    def psum(d, p0, p1):
        A = ACC3 + 2*p0
        e(f'v_pk_mul_f32 {vr(d+2,2)}, {vr(A,2)}, {vr(A,2)}\nv_pk_add_f32 {vr(d,2)}, {vr(A,2)}, {vr(A+2,2)}\nv_pk_fma_f32 {vr(d+2,2)}, {vr(A+2,2)}, {vr(A+2,2)}, {vr(d+2,2)}')
        for p in range(p0 + 2, p1):
            e(f'v_pk_add_f32 {vr(d,2)}, {vr(d,2)}, {vr(ACC3+2*p,2)}\nv_pk_fma_f32 {vr(d+2,2)}, {vr(ACC3+2*p,2)}, {vr(ACC3+2*p,2)}, {vr(d+2,2)}')
        e(f'v_add_f32 v{d}, v{d}, v{d+1}\nv_add_f32 v{d+1}, v{d+2}, v{d+3}')
    if M16:
        psum(24, 0, 4); psum(28, 4, 8)
        e('v_permlane16_swap_b32 v24, v28\nv_permlane16_swap_b32 v25, v29\nv_pk_add_f32 v[24:25], v[24:25], v[28:29]')
    else: psum(24, 0, 8)
    e("""v_mov_b32 v26, v24
v_mov_b32 v27, v25
v_permlane32_swap_b32 v24, v26
v_permlane32_swap_b32 v25, v27
v_pk_add_f32 v[24:25], v[24:25], v[26:27]""")
    dual(['buffer_store_dwordx2 v[24:25], v3, s[12:15], s65 offen'], 'hst', 'L_s', HN)
    stamp(e, 'p3st')
    w2l(knob('b3', 0), True)
    for p in range(8): e(f'v_pk_add_f32 {vr(224+2*p,2)}, {vr(144+2*(p % 4 if M16 else p),2)}, {vr(ACC3+2*p,2)}')
    HF, ACC4, WF, STT = 16, 128, 192, 208
    HP = knob('hp', 8); PER = knob('per', 76)
    SP = knob('sp', 10)
    order = list(range(SP + 1)) + ['s0', 's1', 's2', 's3'] + list(range(SP + 1, 28))
    arr = {x: n*PER for n, x in enumerate(order)}
    mlist = []; nxt = [0, 0, 0, 0]; t = 0
    while min(nxt) < 28:
        c = [b for b in range(4) if nxt[b] < 28 and arr[nxt[b]] <= t]
        if not c: t = min(arr[nxt[b]] for b in range(4) if nxt[b] < 28); continue
        b = min(c, key=lambda b: (b >> 1 and b, nxt[b], b))
        mlist.append((nxt[b], b)); nxt[b] += 1; t += 32
    M = len(mlist)
    last = [max(m for m, (s, b2) in enumerate(mlist) if b2 == b) for b in range(4)]
    firstm = [min(m for m, (s, b2) in enumerate(mlist) if b2 == b) for b in range(4)]
    def w1rd(dst, s, b, k='v'):
        base = WA + b + (4 if s >= 16 else 0); off = (s & 15)*4096
        return [f'ds_read_b64_tr_b16 {vr(dst+2*rd,2,k)}, v{base} offset:{off + rd*1024}' for rd in range(2)]
    def wreg(m): return ('v', WF + 4*(m & 7)) if (m & 7) < 4 else ('a', 240 + 4*((m & 7) - 4))
    def rds(m):
        s, b = mlist[m]; k, r = wreg(m)
        return w1rd(r, s, b, k)
    LD = 6
    for m in range(LD): e('\n'.join(rds(m)))
    e('s_mov_b32 m0, s67')
    vm.wait('hst')
    dual([f'buffer_store_dword v8, v4, s[12:15], s25 offen offset:{16*128}'], 'f3', 'L_f3')
    stamp(e, 'p3end')
    def poll(lab, addr, so):
        e(f"""s_mov_b32 s26, {POLL_MAX}
{lab}:
buffer_load_dword v13, {addr}, s[12:15], {so} sc1
s_sub_u32 s26, s26, 1
s_cbranch_scc1 {lab}_x
s_waitcnt vmcnt(0)
v_cmp_ne_u32 vcc, 1, v13
s_cbranch_vccnz {lab}
{lab}_x:""")
    poll('L_p3', 'v5', f's66 offen offset:{16*128}')
    stamp(e, 's3done')
    def hl(x):
        if isinstance(x, str):
            p = int(x[1]); vm.op(f'buffer_load_dwordx4 {vr(STT+4*p,4)}, v2, s[12:15], s68 offen offset:{1024*p} sc1', 'st'); return
        if x and x % 4 == 0: e(f's_add_u32 m0, s67, {x*1024}')
        vm.op(f'buffer_load_dwordx4 {vr(HF+4*x,4)}, v2, s[12:15], m0 offen offset:{(x&3)*1024} sc1', f'h{x}')
    for x in order[:HP]: hl(x)
    hq = order[HP:]
    XB = STT + 8
    def add_stats():
        F.add(lambda: vm.wait('st'))
        F.add('\n'.join(f'v_and_b32 v{STT+12+r}, v6, v{STT+12+r}' for r in range(4)))
        for k in range(1, 8): F.add(f'v_add_f32 v{STT}, v{STT}, v{STT+2*k}\nv_add_f32 v{STT+1}, v{STT+1}, v{STT+2*k+1}')
        F.add(ln_stats(STT, STT+1, STT+2, STT+3, STT+4, STT+5))
        F.add(f"""v_sub_f32 v{STT+3}, 0, v{STT+3}
v_and_b32 v{STT+3}, v6, v{STT+3}
v_and_b32 v{STT+5}, v6, v{STT+5}
v_and_b32 v{STT+6}, 0xffff0000, v{STT+3}
v_sub_f32 v{STT+7}, v{STT+3}, v{STT+6}
v_cvt_pk_bf16_f32 v{XB}, v{STT+6}, v{STT+6}
v_and_b32 v{STT+6}, 0xffff0000, v{STT+5}
v_cvt_pk_bf16_f32 v{XB+1}, v{STT+7}, v{STT+6}
v_sub_f32 v{STT+7}, v{STT+5}, v{STT+6}
v_cvt_pk_bf16_f32 v{XB+2}, v{STT+7}, 0
v_mov_b32 v{XB+3}, 0
v_mul_f32 v248, v{STT+4}, v{STT+4}""")
        F.mark('st')
    def epi(b):
        A = ACC4 + 16*b
        for p in range(8):
            F.add(f"""v_mul_f32 v{A+2*p}, v{A+2*p}, abs(v{A+2*p})
v_mul_f32 v{A+2*p+1}, v{A+2*p+1}, abs(v{A+2*p+1})
v_cvt_pk_bf16_f32 v{A+p}, v{A+2*p}, v{A+2*p+1}
v_pk_max_i16 v{A+p}, v{A+p}, 0""")
            if p % 4 == 3:
                l = f'buffer_store_dwordx4 {vr(A+4*(p//4),4)}, v2, s[12:15], s{72+b} offen offset:{1024*(p//4)}'
                if H1M == 0: F.add(lambda l=l: vm.op(l + ' sc1', 'h1st'))
                else: F.add(lambda l=l, n=2*b + p//4: dual([l], 'h1st', f'L_e{n}', ' nt' if H1M == 2 else ''))
    mst = min(m for m, (s, b) in enumerate(mlist) if s > SP) + 2
    XK = min(last[0], last[1]) - 1
    w2set = [True]
    for m, (s, b) in enumerate(mlist):
        if m == mst: add_stats()
        if m == last[1] + 1: stamp(e, 'p4a')
        for b2 in range(3):
            if m == last[b2] + 4: epi(b2)
        lg = f'lgkmcnt({2*max(0, min(LD-2, M-2-m))})' if m % 2 == 0 else ''
        vm.wait(f'h{s}', lg)
        if b == 0: stamp(e, f'h{s}')
        acc = vr(ACC4 + 16*b, 16); k, r = wreg(m)
        zero = s == 0
        if s == 0 and m > XK: e(f'{MF} {acc}, {ar(224+4*b,4)}, {vr(XB,4)}, 0'); zero = False
        e(f'{MF} {acc}, {vr(r,4,k)}, {vr(HF+4*s,4)}, ' + ('0' if zero else acc))
        if m % 2 == 1 and hq: hl(hq.pop(0)); n = 2
        elif m % 2 == 1 and w2n[0] < 56: w2l(1, w2set[0]); w2set[0] = False; n = 2
        else: n = 3 if m % 2 else 2
        if m + LD < M: e('\n'.join(rds(m + LD)))
        else: n += 2
        F.drain(n)
        if m == XK:
            F.need('st')
            for b2 in range(4):
                if firstm[b2] <= XK: e(f'{MF} {vr(ACC4+16*b2,16)}, {ar(224+4*b2,4)}, {vr(XB,4)}, {vr(ACC4+16*b2,16)}')
    stamp(e, 'p4mf')
    F.drain(999)
    w2l(56, w2set[0])
    epi(3); F.drain(999)
    e('s_barrier\nds_write_b32 v251, v248\ns_mov_b32 m0, s71')
    vm.wait('h1st')
    dual([f'buffer_store_dword v8, v14, s[12:15], s25 offen offset:{20*128}'], 'f4', 'L_f4')
    stamp(e, 'p4end')
    poll('L_p4', 'v7', f's69 offen offset:{20*128}')
    stamp(e, 's4done')
    GF, ACC5, RING = 16, 144, 32
    GP = knob('gp', 12)
    s5 = [(a, n) for a in (1, 0) for n in range(28)]
    def gl(i):
        a, n = s5[i]
        if i and n % 4 == 0: e(f's_add_u32 m0, s{70+a}, {n*1024}')
        vm.op(f'buffer_load_dwordx4 {vr(GF+4*(i%RING),4)}, v255, s[12:15], m0 offen offset:{aoff(n)} sc1', f'g{i}')
    def m5(a, f, n): e('\n'.join(mm(ACC5, 'a', 0, GF + 4*((n + 28*(1-a)) % RING), a, f, n, True)))
    ON_ = ' nt' if knob('on', 0) else ''
    RS = lambda r: 248 + (2*(r // 8) if M16 else 0)
    G0 = knob('g0', 5); gi = [G0]
    for i in range(G0): gl(i)
    def gnext(i):
        if gi[0] < min(56, i + 1 + GP): gl(gi[0]); gi[0] += 1
    for i, (a, n) in enumerate(s5):
        if i == 28: stamp(e, 'p5a')
        vm.wait(f'g{i}')
        stamp(e, f'g{i}')
        m5(a, 1, n)
        gnext(i)
        if a == 1: m5(1, 0, n); gnext(i)
        elif n >= LAG: m5(0, 0, n - LAG)
        if a == 0:
            if 3 <= n < 11: e(rwr(2 + (n-3)//4, ACC5, (n-3) % 4))
            if n == 13:
                e('s_waitcnt lgkmcnt(0)\ns_barrier\nds_read_b32 v248, v250')
                if M16: e('ds_read_b32 v250, v250 offset:64')
            if 14 <= n < 18: e(rrd(2, ACC5, n-14) + '\n' + rrd(3, ACC5, n-14))
            if n == 19: e('s_waitcnt lgkmcnt(0)')
            if 19 <= n < 27:
                for r in (2*(n-19), 2*(n-19)+1): e(f'v_add_f32 v{ACC5+32+r}, v{ACC5+32+r}, v{ACC5+48+r}\nv_fmac_f32 v{224+r}, v{RS(r)}, v{ACC5+32+r}')
    stamp(e, 'p5mf')
    for n in range(28 - LAG, 28): m5(0, 0, n)
    for q in range(4): e(rwr(1, ACC5, q))
    if M16: e(f's_add_u32 s26, s27, {16*896}')
    for p in range(8): e(f'v_pk_fma_f32 {vr(224+2*p,2)}, {vr(ACC5+2*p,2)}, {vr(RS(2*p),2)}, {vr(224+2*p,2)} op_sel_hi:[1,0,1]')
    e('s_waitcnt lgkmcnt(0)\ns_barrier')
    for q in range(4): e(rrd(1, ACC5, q))
    for t in range(2):
        e(f's_waitcnt lgkmcnt({2-2*t})')
        for p in range(4*t, 4*t+4):
            e(f'v_pk_fma_f32 {vr(224+2*p,2)}, {vr(ACC5+16+2*p,2)}, {vr(RS(2*p),2)}, {vr(224+2*p,2)} op_sel_hi:[1,0,1]')
            e(f'v_cvt_pk_bf16_f32 v{16+p}, v{224+2*p}, v{225+2*p}')
        if M16: e(f'buffer_store_dwordx4 {vr(16+4*t,4)}, v0, s[40:43], s{27-t} offen' + ON_)
        else: e(f'buffer_store_dwordx4 {vr(16+4*t,4)}, v0, s[40:43], s27 offen offset:{32*t}' + ON_)
    stamp(e, 'p5st')
    stamp_out(e)
    e('s_endpgm')
    for x in slow: e(x)
    if H1M == 3 or knob('wb', 0):
        e(f"""L_wb:
s_cmp_lg_u32 s20, 14
s_cbranch_scc1 L_end
s_cmp_lg_u32 s16, 0
s_cbranch_scc1 L_end
v_and_b32 v5, 15, v1
v_min_u32 v5, 13, v5
v_lshrrev_b32 v13, 4, v1
v_lshl_add_u32 v5, v13, 5, v5
v_lshlrev_b32 v5, 2, v5""")
        poll('L_wbp', 'v5', f's25 offen offset:{(20 if H1M == 3 else 16)*128}')
        e('buffer_wbl2 sc1\ns_waitcnt vmcnt(0)\ns_endpgm')
    e('L_fallback:\ns_mov_b32 s30, 1\ns_waitcnt vmcnt(0) lgkmcnt(0)\ns_barrier')
    for j in range(16):
        e(kvset(j)); kl(j, 0); kl(j, 1); vl(j, 0); vl(j, 1)
        if j == 7: e('s_waitcnt vmcnt(0)')
    e('s_waitcnt vmcnt(0)')
    MXB = SCR
    d = vr(S, 16)
    for s in range(4):
        e(f'v_mov_b32 v{128+s}, 0xff800000')
        for j in range(16):
            e(f'{MF} {d}, {ar(16*j,4)}, {vr(Q+8*s,4)}, 0\n{MF} {d}, {ar(16*j+4,4)}, {vr(Q+8*s+4,4)}, {d}')
            for p in range(8): e(f'v_max3_f32 v{128+s}, v{S+2*p}, v{S+2*p+1}, v{128+s}')
        e(f"""v_mov_b32 v13, v{128+s}
v_permlane32_swap_b32 v{128+s}, v13
v_max_f32 v{128+s}, v{128+s}, v13
s_xor_b32 s76, s16, {3-s}
s_lshl_b32 s76, s76, 9
s_add_u32 s76, s76, {MXB}
v_and_b32 v13, 31, v1
v_lshlrev_b32 v13, 4, v13
v_add_u32 v{132+s}, s76, v13
s_lshl_b32 s76, s16, 2
v_add_u32 v13, s76, v{132+s}
ds_write_b32 v13, v{128+s}""")
    e('s_waitcnt lgkmcnt(0)\ns_barrier')
    for s in range(4): e(f'ds_read_b128 {vr(S+4*s,4)}, v{132+s}')
    e('s_waitcnt lgkmcnt(0)\ns_barrier')
    for s in range(4):
        e(f'v_max3_f32 v{128+s}, v{S+4*s}, v{S+1+4*s}, v{S+2+4*s}\nv_max_f32 v{128+s}, v{128+s}, v{S+3+4*s}')
    for s in range(4):
        for r in range(16): e(f'v_sub_f32 v{NM+r}, 0, v{128+s}\nv_mov_b32 v{O+16*s+r}, 0')
        for j in range(16):
            e(f'{MF} {d}, {ar(16*j,4)}, {vr(Q+8*s,4)}, {vr(NM,16)}\n{MF} {d}, {ar(16*j+4,4)}, {vr(Q+8*s+4,4)}, {d}')
            for r in range(16): e(f'v_exp_f32 v{S+r}, v{S+r}')
            for t in range(2): e(f'{SM} {vr(O+16*s,16)}, {ar(16*j+8+4*t,4)}, {vr(S+8*t,8)}, v7')
            e('s_nop 7')
        e('s_nop 7')
    for k in range(12): e(pwr(k//4, k % 4))
    for n in range(W2A):
        a, b = wfrag('W2', n); e(a + '\n' + b)
    e('s_waitcnt vmcnt(0) lgkmcnt(0)\ns_barrier')
    for k in range(12): e(prd(k//4, k % 4))
    e('s_branch L_combine')
    e('L_end:')

def build1(e, path):
    head = open(f'cdna_kernels/{NAME}.s.ref').read().split('\n')
    name = NAME + '_kernel'
    out = head[:12] + (['; stamps: ' + ' '.join(ST_NAMES)] if STAMP else []) + ['; @launch grid=(256,1,1) block=(256,1,1) lds=163840', '.amdgcn_target "amdgcn-amd-amdhsa--gfx950"\n.text']
    e.fix('-v' in sys.argv)
    out.append(f'.globl {name}\n' + ('.p2align 12\n' if knob('al', 1) else '') + f'.p2align 8\n.type {name},@function\n{name}:')
    out.append(e.text() + '    s_endpgm')
    out.append(f""".section .rodata,"a"
.p2align 6
.amdhsa_kernel {name}
  .amdhsa_next_free_vgpr 512
  .amdhsa_next_free_sgpr 102
  .amdhsa_accum_offset 256
  .amdhsa_group_segment_fixed_size 0
  .amdhsa_kernarg_size 88
  .amdhsa_user_sgpr_count 2
  .amdhsa_user_sgpr_kernarg_segment_ptr 1
  .amdhsa_system_sgpr_workgroup_id_x 1
.end_amdhsa_kernel""")
    open(path, 'w').write('\n'.join(out) + '\n')

if __name__ == '__main__':
    e = Asm(); kernel(e)
    outs = [a for a in sys.argv[1:] if a.endswith('.s')]
    build1(e, outs[0] if outs else 'v8.s')
```

```python
import sys, math, struct
from asmlib import *

NAME = 'sequential_preLN__mha_block__dense_activation_squared_relu__prompt'
MF = 'v_mfma_f32_32x32x16_bf16'
MH = 'v_mfma_f32_16x16x32_bf16'
SM = 'v_smfmac_f32_32x32x32_bf16'
def f32(x): return '0x%08x' % struct.unpack('<I', struct.pack('<f', x))[0]
QSCALE = math.log2(math.e) / math.sqrt(28.0)

VP, ONE, TTP = 28672, 57344, 57600
WS_O, WS_H, WS_S, WS_H1, WS_WF, WS_FL, WS_ST = 0x600000, 0x800000, 0x9E0000, 0xA40000, 0x1200000, 0x1400000, 0x1500000
WS_F1, WS_F2, HINT = WS_FL + 0x10000, WS_FL + 0x14000, 0x8000
WS_BYTES = 0x1600000
WFP = 144*2048
POLL_MAX = 1 << 18
STAMP = '--stamp' in sys.argv
def knob(name, d):
    for a in sys.argv:
        if a.startswith(name + '='): return int(a.split('=')[1])
    return d
ST_NAMES = ['start p1go p1st s1sig s1done a0 comb end', 'comb s2sig s2done p3end s3done p4end s4done end',
            'p1go p1end p1st s1sig s1win s1done a0 aB', 's2sig s2win s2done p3mf p3st p3end s3done p4a',
            's3done p4a p4mf p4end s4done p5a p5mf p5st', 'a0 a6 a16 a28 a38 aB a58 comb',
            'start p1ld p1w p1go c1 c3 c5 p1end', 's3done h0 h5 h10 h18 h27 p4mf p4end', 's4done g0 g8 g16 g28 g40 p5mf p5st', 's2done o0 o4 o8 o12 p3mf p3st p3end'][knob('st', 0)].split()

for a in sys.argv:
    if a.startswith('names='): ST_NAMES = a[6:].split(',')
def stamp(e, name):
    if STAMP:
        for i, n in enumerate(ST_NAMES):
            if n == name: e(('s_memtime' if '--cyc' in sys.argv and (i or knob('dwg', -1) < 0) else 's_memrealtime') + f' s[{84+2*i}:{85+2*i}]')
def stamp_out(e):
    if not STAMP: return
    if knob('dwg', -1) >= 0:
        stamp(e, 'end')
        e(f'''s_cmp_lg_u32 s2, {knob('dwg', 0)}
s_cbranch_scc1 L_dgx
s_cmp_lg_u32 s16, {knob('dwv', 0)}
s_cbranch_scc1 L_dgx
s_waitcnt lgkmcnt(0)
s_sub_u32 s4, s88, s86
s_mul_i32 s4, s4, {1 if '--cyc' in sys.argv else 10}
s_min_u32 s4, s4, 50000
s_add_u32 s4, s4, 10000
s_mov_b32 s10, 2000000
L_dgl:
s_sub_u32 s10, s10, 1
s_cbranch_scc1 L_dgx
s_memrealtime s[8:9]
s_waitcnt lgkmcnt(0)
s_sub_u32 s8, s8, s84
s_cmp_lt_u32 s8, s4
s_cbranch_scc1 L_dgl
L_dgx:''')
        return
    e('s_waitcnt vmcnt(0)')
    stamp(e, 'end')
    e('s_waitcnt lgkmcnt(0)')
    e(f's_lshl_b32 s3, s2, 2\ns_add_u32 s3, s3, s16\ns_lshl_b32 s3, s3, 6\ns_add_u32 s3, s3, {WS_ST}\nv_mov_b32 v1, 0')
    for i in range(8):
        e(f'v_mov_b32 v0, s{84+2*i}\nbuffer_store_dword v0, v1, s[12:15], s3 offen offset:{4*i}')

def swap23(d, s, t):
    return f'''v_and_b32 v{d}, 0x33, v{s}
v_and_b32 v{t}, 4, v{s}
v_lshl_or_b32 v{d}, v{t}, 1, v{d}
v_lshrrev_b32 v{t}, 1, v{s}
v_and_or_b32 v{d}, v{t}, 4, v{d}'''
def halves_sum(r, t):
    return f'v_mov_b32 v{t}, v{r}\nv_permlane32_swap_b32 v{r}, v{t}\nv_add_f32 v{r}, v{r}, v{t}'
def ln_stats(vs, vq, t, mean, rstd, sig=None):
    s = halves_sum(vs, t) + '\n' + halves_sum(vq, t) + f'''
v_mul_f32 v{mean}, {f32(1/448)}, v{vs}
v_mul_f32 v{t}, v{mean}, v{mean}
v_mov_b32 v{rstd}, {f32(1/448)}
v_fma_f32 v{t}, v{vq}, v{rstd}, -v{t}
v_max_f32 v{t}, 0, v{t}
v_add_f32 v{t}, {f32(1e-5)}, v{t}
v_rsq_f32 v{rstd}, v{t}'''
    if sig is not None: s += f'\nv_mul_f32 v{sig}, v{t}, v{rstd}'
    return s

class Fill:
    def __init__(self, e): self.e = e; self.q = []
    def add(self, text):
        if not isinstance(text, str): self.q.append(text); return
        for l in text.split('\n'):
            l = l.strip()
            if not l: continue
            if l.startswith(('s_cselect', 's_addc')): self.q[-1] += '\n' + l
            else: self.q.append(l)
    def mark(self, tag): self.q.append(('mark', tag))
    def drain(self, k):
        while k > 0 and self.q:
            x = self.q.pop(0)
            if isinstance(x, tuple): continue
            if isinstance(x, str): self.e(x)
            else: x()
            k -= 1
    def need(self, tag):
        while ('mark', tag) in self.q: self.drain(1) if self.q[0] != ('mark', tag) else self.q.pop(0)

def kernel(e):
    vm = VM(e); slow = []
    XR, WQ, CSB, QX, UB = 57344, 114688, 143360, 147456, 155648
    SCR = 114688
    MAP = knob('map', 8); M16 = knob('m16', 1); H1M = knob('h1m', 2)
    Q, O, S, WOF, NM = 16, 48, 112, 160, 144
    def emit(l, tag):
        for x in l:
            if x.startswith(('buffer', 'global')): vm.op(x, tag)
            else: e(x)
    e("""s_getpc_b64 s[80:81]
L_pc0:
s_lshr_b32 s76, s2, 3
v_lshrrev_b32 v10, 4, v0
v_lshl_add_u32 v10, s76, 4, v10
v_min_u32 v10, (L_fallback-L_pc0)/128, v10
v_lshlrev_b32 v10, 7, v10""")
    vm.op('global_load_dword v31, v10, s[80:81]', 'T')
    e("""s_load_dwordx4 s[4:7], s[0:1], 0
s_load_dwordx2 s[12:13], s[0:1], 80""")
    stamp(e, 'start')
    e("""s_cmp_ge_u32 s76, 32
s_cbranch_scc1 L_end
v_lshrrev_b32 v2, 6, v0
v_and_b32 v1, 63, v0
v_readfirstlane_b32 s16, v2
s_and_b32 s51, s2, 7""")
    lg = {2: 1, 4: 2, 8: 3}[MAP]
    ROT = knob('rot', 2)
    rotc = {7: f's_lshr_b32 s48, s76, {5-lg}\ns_lshl1_add_u32 s48, ' + ('s48, s77' if MAP <= 4 else 's77, s48') + '\ns_mul_i32 s77, s48, 37\ns_lshr_b32 s77, s77, 8\ns_mul_i32 s77, s77, 7\ns_sub_u32 s48, s48, s77',
            1: 's_mov_b32 s48, 0', 2: 's_add_u32 s48, s17, s18\ns_and_b32 s48, s48, 1',
            4: 's_add_u32 s48, s17, s18\ns_and_b32 s48, s48, 3\ns_lshl_b32 s48, s48, 1'}[ROT]
    def adv(r, step, it):
        if it == 0: return []
        if ROT == 1 or (ROT == 2 and it > 2): return [f's_add_u32 s{r}, s{r}, {step}']
        if ROT == 2: return [f's_sub_u32 s{r}, {step}, s{r}' if it == 1 else f's_mov_b32 s{r}, {2*step}']
        return [f's_add_u32 s{r}, s{r}, {step}', f's_cmp_lg_u32 s{r}, {7*step}\ns_cselect_b32 s{r}, s{r}, 0']
    e(f"""s_lshr_b32 s17, s51, {lg-1}
s_lshl_b32 s17, s17, {lg}
s_lshr_b32 s77, s76, {5-lg}
s_add_u32 s17, s17, s77        ; qb
s_and_b32 s18, s51, {MAP//2 - 1}
s_lshl_b32 s18, s18, {5-lg}
s_and_b32 s77, s76, {32//MAP - 1}
s_add_u32 s18, s18, s77        ; head
s_lshl2_add_u32 s79, s17, s16
{rotc}
s_mul_i32 s55, s79, {32*896}
s_mul_i32 s54, s16, {16*2688}
s_lshl_b32 s56, s18, 7
s_add_u32 s56, s56, s54
s_add_u32 s56, s56, 896
s_mul_i32 s49, s48, {64*2688}
s_lshl_b32 s48, s48, 7
s_mov_b32 s50, s49
s_mul_i32 s52, s16, 12288
s_add_u32 s52, s52, {XR}
s_lshl_b32 s53, s16, 11
v_lshrrev_b32 v64, 3, v1
v_lshrrev_b32 v65, 4, v1
v_and_b32 v66, 7, v1
v_xor_b32 v67, v65, v66
v_mul_u32_u24 v68, 896, v64
v_lshl_add_u32 v2, v67, 4, v68
v_add_u32 v2, s55, v2
v_xor_b32 v3, 64, v2
v_add_u32 v3, 6144, v3
v_add_u32 v4, 12288, v2
v_add_u32 v5, 12288, v3
v_and_b32 v67, 1, v65
v_lshlrev_b32 v67, 2, v67
v_xor_b32 v69, v67, v66
v_mul_u32_u24 v67, 2688, v64
v_lshl_add_u32 v6, v69, 4, v67
v_add_u32 v6, s56, v6
v_add_u32 v7, {8*2688-1024}, v6
s_mov_b32 s11, 0x00020000
s_mov_b32 m0, s53
s_cmp_lt_u32 s18, 14
s_cselect_b32 s10, {448*2688}, 0
s_waitcnt lgkmcnt(0)
s_mov_b64 s[8:9], s[6:7]
s_mov_b32 s6, {2048*896}
s_mov_b32 s7, s11
s_cbranch_scc0 L_zero
L_zerod:""")
    e_zero = f"""L_zero:
s_mov_b32 s14, {WS_BYTES}
s_mov_b32 s15, 0x00020000
v_mov_b32 v219, 0
s_lshl1_add_u32 s77, s17, s18
s_lshl_b32 s77, s77, 12
s_add_u32 s77, s77, {WS_FL - 14*4096}
v_lshlrev_b32 v70, 4, v0
v_mov_b32 v216, 0
v_mov_b32 v217, 0
v_mov_b32 v218, 0
buffer_store_dwordx4 v[216:219], v70, s[12:15], s77 offen sc1
s_lshl1_add_u32 s77, s17, s18
s_sub_u32 s77, s77, 14
s_mul_i32 s77, s77, {14*2688}
v_lshrrev_b32 v70, 4, v0
v_min_u32 v70, 13, v70
v_mul_u32_u24 v70, 2688, v70
v_bfe_u32 v71, v0, 1, 3
v_min_u32 v71, 6, v71
v_lshl_add_u32 v70, v71, 7, v70
v_add_u32 v70, s77, v70
global_load_dword v31, v70, s[8:9]
s_branch L_zerod"""
    stamp(e, 'p1ld')
    def wload(it):
        return ([f's_add_u32 m0, s53, {it*8192}'] if it else []) + adv(49, 64*2688, it) + \
               [f'buffer_load_dwordx4 v{6+j}, s[8:11], s49 offen offset:{1024*j} lds' for j in range(2)]
    def xload(it):
        return [f's_add_u32 m0, s52, {(it%3)*4096}'] + adv(48, 128, it) + \
               [f'buffer_load_dwordx4 v{2+i}, s[4:7], s48 offen offset:{1024*i} lds' for i in range(4)]
    emit(wload(0) + xload(0), 0)
    QT = knob('qt', 1) and MAP == 8
    if QT:
        e(f'''s_and_b32 s77, s51, 3
s_mul_i32 s77, s77, 7
s_lshr_b32 s77, s77, 2
s_lshl_b32 s77, s77, 7
s_mul_i32 s78, s76, {14*2688}
s_add_u32 s77, s77, s78
v_lshrrev_b32 v70, 4, v0
v_min_u32 v70, 13, v70
v_mul_u32_u24 v70, 2688, v70
v_bfe_u32 v71, v0, 2, 2
v_min_u32 v71, 2, v71
v_lshl_add_u32 v70, v71, 7, v70
v_add_u32 v70, s77, v70''')
        vm.op('global_load_dword v31, v70, s[8:9]', 'T')
        k = e_zero.index('s_lshl1_add_u32 s77, s17, s18\ns_sub_u32'); e_zero = e_zero[:k] + 's_branch L_zerod'
    if knob('pt', 1):
        e(f'''s_lshl4_add_u32 s77, s17, s18
s_lshl2_add_u32 s77, s77, s16
s_mul_i32 s77, s77, {2*896}
v_min_u32 v70, 4, v66
v_lshlrev_b32 v70, 7, v70
v_and_b32 v71, 1, v64
v_mul_u32_u24 v71, 896, v71
v_add_u32 v70, v70, v71
s_mul_i32 s78, s79, {5*2688}
s_lshl_b32 s57, s18, 7
s_add_u32 s78, s78, s57
s_add_u32 s78, s78, {128*2688 + 896}
v_min_u32 v71, 4, v64
v_mul_u32_u24 v71, 2688, v71
s_mov_b64 exec, 0xffff''')
        vm.op('buffer_load_dword v31, v70, s[4:7], s77 offen offset:256', 'T')
        e('s_mov_b64 exec, -1')
        vm.op('buffer_load_dword v31, v71, s[8:11], s78 offen', 'T')
    e(f"""s_load_dwordx2 s[40:41], s[0:1], 16
s_load_dwordx2 s[42:43], s[0:1], 48
s_load_dwordx2 s[60:61], s[0:1], 32
s_load_dwordx2 s[100:101], s[0:1], 72
s_mov_b32 s14, {WS_BYTES}
s_mov_b32 s15, 0x00020000
v_mov_b32 v219, 0""")
    emit(wload(1) + xload(1), 1)
    e('s_waitcnt lgkmcnt(0)')
    e('s_cmp_lt_u32 s18, 14\ns_cbranch_scc0 L_rdyadd\nL_rdyaddd:')
    e_zero += """
L_rdyadd:
s_waitcnt vmcnt(""" + str(15 if knob('pt', 1) else 13) + """)
s_barrier
s_cmp_lg_u32 s16, 0
s_cbranch_scc1 L_rdyaddd
v_mov_b32 v70, 1
s_mov_b64 exec, 1
global_atomic_add v219, v70, s[100:101] sc1
s_mov_b64 exec, -1
s_branch L_rdyaddd"""
    e("""v_and_b32 v73, 31, v1
v_lshrrev_b32 v71, 1, v73
v_lshrrev_b32 v72, 5, v1
v_xor_b32 v71, v71, v72
v_and_b32 v71, 7, v71
v_lshlrev_b32 v71, 4, v71
v_lshl_add_u32 v71, v73, 7, v71
v_add_u32 v71, s52, v71
s_lshl_b32 s77, s16, 5
v_xor_b32 v9, s77, v71
v_xor_b32 v10, 32, v9
v_xor_b32 v11, 64, v9
v_xor_b32 v12, 0x60, v9
v_bfe_u32 v76, v1, 2, 2
v_lshl_add_u32 v74, v72, 3, v76
v_and_b32 v75, 16, v1
v_lshlrev_b32 v75, 1, v75
v_and_b32 v71, 1, v1
v_lshl_add_u32 v75, v71, 4, v75
v_bfe_u32 v71, v1, 1, 1
v_lshl_add_u32 v75, v71, 3, v75
v_lshl_add_u32 v13, v74, 7, v75
v_bfe_u32 v71, v1, 3, 1
v_lshl_add_u32 v13, v71, 6, v13
v_add_u32 v13, s53, v13""")
    for n in range(1, 8): e(f'v_xor_b32 v{13+n}, {2048*(n >> 1) + 64*(n & 1)}, v13')
    e('v_mov_b32 v25, 0x3f803f80\nv_mov_b32 v26, 0\nv_mov_b32 v27, 0\nv_mov_b32 v28, 0\nv_mov_b32 v29, 0')
    F = Fill(e); park = []
    def prk(dst, src): F.add(f'v_accvgpr_write_b32 a{len(park)}, v{src}'); park.append(dst)
    F.add(f"""s_mov_b32 s36, s8
s_mov_b32 s37, s9
s_mov_b32 s38, {448*2688}
s_mov_b32 s39, 0x00020000
s_and_b32 s28, s18, 1
s_lshr_b32 s77, s18, 1
s_mul_i32 s77, s77, 7
s_mul_i32 s78, s28, 3
s_add_u32 s78, s78, s77
s_lshl4_add_u32 s77, s78, s54
s_lshr_b32 s54, s53, 1
s_add_u32 s54, s54, {WQ}
v_lshrrev_b32 v70, 2, v1
v_mul_u32_u24 v71, 2688, v70
v_and_b32 v77, 3, v1
v_lshl_add_u32 v8, v77, 4, v71
v_add_u32 v8, s77, v8""")
    F.mark('wq')
    F.add(swap23(64, 73, 71))
    F.add(f"""v_lshlrev_b32 v254, 4, v1
v_lshlrev_b32 v71, 4, v64
v_lshl_add_u32 v71, v72, 9, v71
s_lshl_b32 s77, s78, 9
v_add_u32 v71, s77, v71""")
    prk(3, 71)
    F.add(f"""v_mul_u32_u24 v71, 7168, v72
v_lshl_add_u32 v240, v64, 4, v71
v_add_u32 v241, 14336, v240
s_mul_i32 s77, s18, 448
s_add_u32 s77, s77, {VP}
v_add_u32 v66, s77, v240
v_add_u32 v67, s77, v241
v_mov_b32 v78, {WS_BYTES}
v_mov_b32 v71, {ONE}
v_cmp_eq_u32 vcc, 28, v73
v_cndmask_b32 v71, v78, v71, vcc
v_cmp_gt_u32 vcc, 28, v73
v_cndmask_b32 v66, v71, v66, vcc
v_cndmask_b32 v67, v71, v67, vcc""")
    prk(4, 66); prk(248, 67)
    F.add(f"""v_lshlrev_b32 v242, 3, v73
v_add_u32 v242, {CSB}, v242
s_lshl_b32 s77, s16, 8
v_add_u32 v243, s77, v242
s_mul_i32 s58, s79, {TTP}
s_lshl_b32 s57, s18, 12
s_lshl_b32 s77, s18, 10
s_add_u32 s77, s77, {VP - 7*1024}
s_cmp_lt_u32 s18, 7
s_cselect_b32 s57, s57, s77
s_add_u32 s57, s57, s58
s_add_u32 s58, s58, {ONE}
s_cmp_eq_u32 s18, 13
s_cselect_b32 s58, s58, {WS_BYTES}
v_min_u32 v244, 0x70, v254
s_lshl4_add_u32 s3, s79, s18
s_lshl_b32 s3, s3, 11
s_add_u32 s3, s3, {WS_O}
v_lshl_add_u32 v21, v74, 6, v75
v_add_u32 v21, s54, v21
v_xor_b32 v22, 1024, v21
v_xor_b32 v23, 2048, v21
v_xor_b32 v24, 3072, v21
v_mov_b32 v30, 0""")
    for r in (218, 221, 222, 223, 226, 227, 230, 231, 234, 235): F.add(f'v_mov_b32 v{r}, 0')
    for r in range(236, 240): F.add(f'v_mov_b32 v{r}, v25')
    F.add(f"""s_lshl2_add_u32 s76, s2, s16
s_mul_i32 s77, s76, 9363
s_lshr_b32 s77, s77, 16
s_mul_i32 s78, s77, 7
s_sub_u32 s78, s76, s78
s_mul_i32 s56, s78, {WFP}
s_lshl_b32 s76, s77, 11
s_add_u32 s56, s56, s76
s_add_u32 s56, s56, {WS_WF}
s_cmp_lt_u32 s77, 144
s_cselect_b32 s56, s56, {WS_BYTES}
s_lshr_b32 s76, s77, 1
s_mul_i32 s55, s76, 28
s_sub_u32 s55, s55, {56*28}
s_lshl_b32 s76, s76, 5
s_mov_b32 s34, {448*896}
s_mov_b32 s35, 0x00020000
s_cmp_lt_u32 s77, 112
s_cselect_b32 s55, s76, s55
s_cselect_b32 s32, s42, s40
s_cselect_b32 s33, s43, s41
s_cselect_b32 s34, {1792*896}, s34
s_mul_i32 s55, s55, 896
s_lshl_b32 s78, s78, 7
s_add_u32 s55, s55, s78
s_and_b32 s77, s77, 1
s_mul_i32 s77, s77, {64 if M16 else 16*896}
s_add_u32 s55, s55, s77""")
    if M16:
        F.add(f"""v_mul_u32_u24 v250, 896, v70
v_lshl_add_u32 v250, v77, 4, v250
v_add_u32 v251, {16*896 - 1024}, v250
v_lshl_add_u32 v252, v65, 3, v76
v_lshlrev_b32 v252, 6, v252
v_lshl_add_u32 v252, v77, 4, v252
s_add_u32 s77, s53, {UB}
v_add_u32 v252, s77, v252
v_add_u32 v253, 8, v252""")
    else:
        F.add(f"""v_lshl_add_u32 v250, v69, 4, v68
v_add_u32 v251, 6144, v250
v_add_u32 v252, {UB}, v13
v_xor_b32 v253, 64, v252""")
    F.add(f"""s_bfe_u32 s20, s2, 0x40003     ; j
s_lshr_b32 s19, s2, 7
s_lshl1_add_u32 s19, s51, s19  ; rb
s_lshl_b32 s25, s19, 12
s_add_u32 s25, s25, {WS_FL}
s_getreg_b32 s76, hwreg(HW_REG_XCC_ID, 0, 4)
s_lshl_b32 s77, s76, 2
s_lshl_b32 s29, 14, s77
s_lshl_b32 s77, 1, s77
s_cmp_lt_u32 s76, 8
s_cselect_b32 s77, s77, 0
s_cmp_lt_u32 s20, 14
s_cselect_b32 s77, s77, 0
v_lshlrev_b32 v79, 7, v1
s_lshl_b32 s76, s17, 7
s_add_u32 s76, s76, {WS_F1}
v_lshl_add_u32 v255, v79, 4, s76
v_add_u32 v66, {WS_F2 - WS_F1}, v255
s_cmp_eq_u32 s16, 0
s_cselect_b32 s76, 8, 0
v_cmp_gt_u32 vcc, s76, v1
v_cndmask_b32 v255, v78, v255, vcc
v_mov_b32 v67, 1
s_add_u32 s78, s25, {24*128}
v_writelane_b32 v66, s78, 8
v_writelane_b32 v67, s77, 8""")
    prk(14, 66); prk(8, 67)
    F.add(f"""s_and_b32 s21, s20, 1          ; th
s_lshr_b32 s22, s20, 1         ; fb
s_lshl1_add_u32 s23, s19, s21
s_lshr_b32 s76, s16, 1
s_and_b32 s77, s22, {knob('flip', 1)}
s_xor_b32 s76, s76, s77
s_lshl1_add_u32 s23, s23, s76
s_and_b32 s76, s16, 1
s_lshl1_add_u32 s24, s22, s76
s_lshl_b32 s77, s76, {11 if M16 else 10}
v_add_u32 v66, s77, v254
s_lshl_b32 s65, s23, 12
s_lshl3_add_u32 s65, s76, s65
s_lshl_b32 s77, s22, 9
s_add_u32 s65, s65, s77
s_add_u32 s65, s65, {WS_S}
s_mul_i32 s27, s23, {32*896}
s_lshl_b32 s77, s24, 11
s_add_u32 s64, s27, s77
s_add_u32 s64, s64, {WS_H}     ; h tile
s_lshl_b32 s76, s24, 6
s_add_u32 s27, s27, s76""")
    prk(171, 66)
    if M16:
        F.add("""v_and_b32 v66, 15, v1
v_mul_u32_u24 v67, 896, v66
v_lshlrev_b32 v71, 4, v65
v_add_u32 v67, v67, v71
v_lshlrev_b32 v66, 4, v66
v_lshl_add_u32 v66, v65, 9, v66""")
        prk(172, 66)
    else:
        F.add('v_mul_u32_u24 v67, 896, v73\nv_lshlrev_b32 v71, 4, v72\nv_add_u32 v67, v67, v71')
    F.add(f"""v_add_u32 v71, s76, v71
s_lshl_b32 s76, s20, 8
s_lshl_b32 s77, s16, 6
s_add_u32 s77, s77, s76
v_lshl_add_u32 v66, v64, 1, s77""")
    prk(0, 67); prk(160, 71); prk(161, 66)
    F.add(f"""s_mov_b32 s31, s77
s_lshl2_add_u32 s77, s2, s16
s_mul_i32 s77, s77, 1664
s_min_u32 s77, s77, {448*3584 - 1664}
v_min_u32 v249, 12, v70
v_lshlrev_b32 v249, 7, v249""")
    prk(177, 249)
    F.add(f"""
s_add_u32 s82, s60, s77
s_addc_u32 s83, s61, 0
s_mul_i32 s77, s16, {16*3584}
s_add_u32 s77, s77, s76
s_add_u32 s60, s60, s77
s_addc_u32 s61, s61, 0
s_lshl_b32 s59, s16, 12
v_cmp_gt_u32 vcc, 32, v1
s_cmp_eq_u32 s28, 0
s_cselect_b32 s76, -1, 0
v_cndmask_b32 v66, 0, -1, vcc
v_not_b32 v67, v66
v_or_b32 v67, s76, v67
s_not_b32 s76, s76
v_or_b32 v71, s76, v66""")
    prk(6, 66); prk(13, 67); prk(5, 71)
    F.add(f's_add_u32 s76, s53, {QX}\nv_add_u32 v66, s76, v254'); prk(15, 66)
    for s in range(4):
        F.add(f's_xor_b32 s76, s16, {3-s}\ns_mul_i32 s76, s76, 12288\ns_add_u32 s76, s76, {SCR}\nv_add_u32 v66, s76, v254'); prk(9 + s, 66)
    F.add("""v_lshlrev_b32 v66, 2, v65
v_and_b32 v67, 15, v1
v_xor_b32 v66, v66, v67
v_mul_u32_u24 v67, 3584, v65
v_lshl_add_u32 v66, v66, 4, v67""")
    prk(165, 66)
    F.add("""v_lshl_add_u32 v66, v74, 8, v75
v_xor_b32 v67, s16, v76
v_lshl_add_u32 v66, v67, 6, v66""")
    prk(173, 66)
    ST = knob('sm', 0)
    if ST & 2: F.add('v_mov_b32 v66, v78')
    else: F.add(f"""v_add_u32 v66, s64, v79
s_and_b32 s76, s65, 0xffffff80
s_sub_u32 s76, s76, {16*128}
v_add_u32 v67, s76, v79
v_cmp_gt_u32 vcc, 16, v1
v_cndmask_b32 v66, v67, v66, vcc
v_cmp_gt_u32 vcc, 20, v1
v_cndmask_b32 v66, v78, v66, vcc""")
    F.add(f"""s_lshl_b32 s51, s51, 11
s_add_u32 s76, s51, {WS_F2 - 48*128}
v_add_u32 v67, s76, v79
v_cmp_gt_u32 vcc, 48, v1
v_cndmask_b32 v66, v67, v66, vcc
v_writelane_b32 v66, s78, 20
s_add_u32 s51, s51, {WS_F1}
s_bfe_u32 s76, s2, 0x20003
s_lshl2_add_u32 s76, s76, s16
s_lshl_b32 s76, s76, 11
v_and_b32 v67, 0x780, v79
v_add_u32 v71, s76, v67
v_min_u32 v71, L_fallback-L_pc1, v71""")
    prk(241, 66); prk(169, 67); prk(170, 71); prk(240, 79)
    F.add(f"""s_lshl_b32 s76, s17, 12
s_add_u32 s76, s76, {WS_FL}
s_cmp_eq_u32 s16, 0
s_cselect_b32 s76, s76, {WS_BYTES}
v_writelane_b32 v78, s76, 0
v_mul_u32_u24 v66, 12288, v77
v_add_u32 v66, {SCR}, v66
v_lshlrev_b32 v67, 2, v73
v_sub_u32 v67, v67, v254""")
    prk(174, 78); prk(175, 66); prk(176, 67)
    F.add(f"""s_and_b32 s76, s17, {knob('kvm', 1)}
s_lshl1_add_u32 s76, s16, s76
s_mul_i32 s46, s76, {8*TTP}
s_xor_b32 s76, s76, 1
s_mul_i32 s47, s76, {8*TTP}
s_mul_i32 s44, s22, {WFP}
s_add_u32 s44, s44, {WS_WF}
s_cmp_lt_u32 s20, 14
s_cselect_b32 s44, s44, {WS_BYTES}
s_mul_i32 s45, s16, {28*2048}
s_add_u32 s45, s45, s44
s_lshl2_add_u32 s44, s59, s44
s_add_u32 s44, s44, {112*2048} ; Wo fragments of this wave
s_lshl_b32 s62, s23, 15
s_lshl1_add_u32 s62, s59, s62
s_add_u32 s62, s62, {WS_O}
s_xor_b32 s63, s62, 32768
s_lshl_b32 s66, s16, 7
s_add_u32 s66, s66, s25
s_lshl2_add_u32 s76, s19, s16
s_mul_i32 s67, s76, 28672
s_add_u32 s67, s67, {WS_H}
s_lshl_b32 s68, s76, 12
s_add_u32 s68, s68, {WS_S}
s_mul_i32 s28, s76, 114688
s_lshl_b32 s77, s20, 13
s_add_u32 s28, s28, s77
s_add_u32 s28, s28, {WS_H1}
s_add_u32 s72, s28, s53
s_xor_b32 s73, s72, 2048
s_xor_b32 s74, s72, 4096
s_xor_b32 s75, s72, 6144
s_lshl_b32 s69, s21, 8
s_add_u32 s69, s69, s25
s_mul_i32 s76, s16, {28*1024}
s_add_u32 s76, s76, {WS_H1}
s_mul_i32 s70, s23, 114688
s_add_u32 s70, s70, s76
s_xor_b32 s77, s23, 1
s_mul_i32 s71, s77, 114688
s_add_u32 s71, s71, s76
s_mov_b32 s30, 0""")
    F.drain(knob('f0', 400))
    stamp(e, 'p1w')
    ACC, QA, WF, XF = 32, 64, 80, 104
    XM, RM, CF, ON = 216, 220, 224, 236
    def reads(s, ty):
        it, kk = divmod(s, 4); b = s % 3
        l = [f'ds_read_b128 {vr(XF+4*s,4)}, v{9+kk} offset:{(it%3)*4096}']
        if ty != 'l':
            for f in range(2):
                for rd in range(2):
                    l.append(f'ds_read_b64_tr_b16 {vr(WF+8*b+4*f+2*rd,2)}, v{13+2*kk+f} offset:{it*8192 + rd*512}')
        return l
    def xdots(s):
        for r in range(4):
            x = XF + 4*s + r
            e(f'v_dot2c_f32_bf16 v26, v{x}, v25\nv_dot2c_f32_bf16 v27, v{x}, v{x}')
    wq = [[f's_add_u32 m0, s54, {it*4096}'] + adv(50, 64*2688, it) + ['buffer_load_dwordx4 v8, s[36:39], s50 offen lds'] for it in range(7)]
    WQS = [int(c) for c in str(knob('wqs', 0)) if c != '0']
    WQE = knob('wqe', 7)
    early = {c - 1: wq[n] for n, c in enumerate(WQS)}
    unit_dma = [f's_add_u32 m0, s53, {UB}', 'buffer_load_dwordx4 v250, s[32:35], s55 offen lds', 'buffer_load_dwordx4 v251, s[32:35], s55 offen offset:1024 lds']
    rdy = 'global_load_dword v245, v219, s[100:101] sc1'
    def rdycheck(lab):
        e(f"""v_cmp_gt_u32 vcc, 32, v245
v_mov_b32 v31, 1
s_cbranch_vccnz {lab}p
{lab}d:""")
        slow.append(f"""{lab}p:
s_mov_b32 s26, {POLL_MAX}
{lab}l:
global_load_dword v245, v219, s[100:101] sc1
s_sub_u32 s26, s26, 1
s_cbranch_scc1 {lab}d
s_waitcnt vmcnt(0)
v_cmp_gt_u32 vcc, 32, v245
s_cbranch_vccnz {lab}l
s_branch {lab}d""")
    xm_frag = f"""v_cmp_gt_u32 vcc, 32, v1
v_sub_f32 v247, 0, v247
v_cndmask_b32 v247, 0, v247, vcc
v_and_b32 v26, 0xffff0000, v247
v_sub_f32 v27, v247, v26
v_cvt_pk_bf16_f32 v{XM}, v26, v26
v_cvt_pk_bf16_f32 v{XM+1}, v27, 0"""
    e('s_cmp_lt_u32 s18, 7\ns_cbranch_scc1 L_kk\ns_cmp_lt_u32 s18, 14\ns_cbranch_scc0 L_light')
    vm0 = (list(vm.seq), vm.done); q0 = list(F.q)
    def variant(ty, lab):
        if lab: e(f'{lab}:')
        vm.seq, vm.done = list(vm0[0]), vm0[1]; F.q = list(q0)
        per = (len(F.q) + 5) // 6
        lt = wq[len(WQS):WQE]
        vm.wait(0); e('s_barrier')
        stamp(e, 'p1go')
        e('\n'.join(reads(0, ty) + reads(1, ty)))
        emit(wload(2), 2)
        for s in range(28):
            it, kk = divmod(s, 4); b = s % 3
            if kk == 0: stamp(e, f'c{it}')
            x = vr(XF+4*s, 4)
            mf = []
            for f in range(2):
                w = vr(WF+8*b+4*f, 4); a = vr(ACC+16*f, 16); c = a if s else '0'
                mf.append(f'{MF} {a}, {w}, {x}, {c}' if ty == 'k' else f'{MF} {a}, {x}, {w}, {c}')
            rd = reads(s+2, ty) if s < 26 else []
            if s < 18:
                if kk < 2: L = xload(it + 2); tag = it + 2; ld = {0: (L[:-3], L[-3:-2]), 1: (L[-2:-1], L[-1:])}[kk]
                else: L = wload(it + 3); tag = it + 3; ld = {2: ([], L[:-1]), 3: (L[-1:], [])}[kk]
            else:
                tag = 'wq'; F.need('wq')
                ld = ([], lt.pop(0) if lt else [])
            if s < 27: e(f's_waitcnt lgkmcnt({5 if s < 26 else 0})')
            if kk == 2:
                for r in range(4):
                    for f in range(2): e(f'v_dot2c_f32_bf16 v{28+f}, v{WF+8*b+4*f+r}, v25')
                for s2 in range(max(0, s-3), s + (2 if s == 26 else 1)): xdots(s2)
                if s < 26:
                    F.drain(per if s < 22 else 999)
                    vm.wait(it + 1); e('s_barrier')
                else:
                    for f in range(2): e(halves_sum(28+f, 246))
                    e('ds_write_b64 v243, v[28:29]')
            def spread(m, sal, rest):
                e(m)
                if sal and not sal[0].startswith('buffer'): e(sal[0]); sal = sal[1:]
                e('\n'.join(rest)); emit(sal, tag)
            spread(mf[0], ld[0], rd[:3])
            if s == 26: e(ln_stats(26, 27, 246, 247, 248))
            if s == 27: e(xm_frag)
            spread(mf[1], ld[1], rd[3:])
            if it in early and kk == 3: F.need('wq'); emit(early[it], 'wq')
            if s == 17: vm.op(rdy, 'rdy')
            if s == 26:
                e('s_waitcnt lgkmcnt(0)\ns_barrier')
                for w in range(4): e(f'ds_read_b64 {vr(QA+2*w,2)}, v242 offset:{256*w}')
        assert not lt and not F.q
        stamp(e, 'p1end')
        if ty == 'v':
            e(f"""v_cndmask_b32 v246, 0, v248, vcc
v_and_b32 v26, 0xffff0000, v246
v_sub_f32 v27, v246, v26
v_cvt_pk_bf16_f32 v{RM}, v26, v27
{MF} v[88:103], {vr(RM,4)}, {vr(ON,4)}, 0""")
        e('s_waitcnt lgkmcnt(0)')
        for f in range(2):
            e(f"""v_add_f32 v{QA+f}, v{QA+f}, v{QA+2+f}
v_add_f32 v{QA+4+f}, v{QA+4+f}, v{QA+6+f}
v_add_f32 v{QA+f}, v{QA+f}, v{QA+4+f}
v_and_b32 v26, 0xffff0000, v{QA+f}
v_sub_f32 v27, v{QA+f}, v26
v_cvt_pk_bf16_f32 v{CF+4*f}, v26, v27
v_lshrrev_b32 v{CF+4*f+1}, 16, v{QA+f}""")
            a = vr(ACC+16*f, 16); w = vr(CF+4*f, 4)
            e(f'{MF} {a}, {w}, {vr(XM,4)}, {a}' if ty == 'k' else f'{MF} {a}, {vr(XM,4)}, {w}, {a}')
        vm.op(f'buffer_store_dwordx4 {vr(ON,4)}, v244, s[12:15], s58 offen sc1', 'kv')
        for f in range(2):
            A = ACC + 16*f
            for p in range(8):
                if ty == 'k': e(f'v_pk_mul_f32 {vr(A+2*p,2)}, {vr(A+2*p,2)}, v[248:249] op_sel_hi:[1,0]')
                else: e(f'v_pk_mul_f32 {vr(A+2*p,2)}, {vr(A+2*p,2)}, {vr(88+2*p,2)}')
                e(f'v_cvt_pk_bf16_f32 v{A+p}, v{A+2*p}, v{A+2*p+1}')
                if p % 4 == 3:
                    t = p // 4
                    if ty == 'k': vm.op(f'buffer_store_dwordx4 {vr(A+4*t,4)}, v254, s[12:15], s57 offen offset:{2048*f + 1024*t} sc1', 'kv')
                    else: vm.op(f'buffer_store_dwordx4 {vr(A+4*t,4)}, v{240+t}, s[12:15], s57 offen offset:{512*f} sc1', 'kv')
        stamp(e, 'kvst')
        if ty == 'v': e('s_branch L_q')
    def light():
        e(e_zero)
        e('L_light:')
        vm.seq, vm.done = list(vm0[0]), vm0[1]; F.q = list(q0)
        F.drain(9999)
        e(f'v_mov_b32 v255, {WS_BYTES}')
        stamp(e, 'p1go')
        for it in range(7):
            stamp(e, f'c{it}')
            vm.wait(it)
            for kk in range(4): e('\n'.join(reads(4*it + kk, 'l')))
            if it + 2 <= 6: emit(xload(it + 2), it + 2)
            if it == 5:
                for l in wq[:WQE] + [[rdy]]: emit(l, 'wq')
            e('s_waitcnt lgkmcnt(0)')
            for kk in range(4): xdots(4*it + kk)
        e(ln_stats(26, 27, 246, 247, 248)); e(xm_frag)
        stamp(e, 'p1end')
        e('s_waitcnt vmcnt(0)')
        stamp(e, 'kvst')
        e('s_branch L_q')
    variant('v', None); light(); variant('k', 'L_kk')
    e('L_q:')
    stamp(e, 'p1st')
    for l in wq[WQE:]: emit(l, 'wq2')
    UA = knob('ua', 1)
    if not UA: emit(unit_dma, 'wq2')
    vm.wait('rdy'); rdycheck('L_rd')
    if not knob('nh', 2) & 1:
        e(f's_mov_b32 m0, {HINT}'); vm.op('buffer_atomic_add v31, v255, s[12:15], m0 offen sc1', 'sig')
    if UA: emit(unit_dma, 'u')
    WT = knob('wt', 2)
    if WT == 1: vm.op('global_load_dword v244, v249, s[82:83]', 'T')
    stamp(e, 'q0'); vm.wait('wq'); stamp(e, 'q1'); e('s_barrier'); stamp(e, 'q2')
    def qrd(s, dst=None):
        it, kk = divmod(s, 4)
        if dst is None: dst = ACC + 4*(s & 7)
        return [f'ds_read_b64_tr_b16 {vr(dst+2*rd,2)}, v{21+kk} offset:{it*4096 + rd*256}' for rd in range(2)]
    QS = knob('qs', 3)
    assert (3 <= WQE <= 4 and QS <= WQE) or WQE == 7
    def s1signal():
        stamp(e, 'q3'); vm.wait('kv'); stamp(e, 'q4')
        e('s_barrier')
        vm.op('buffer_atomic_add v31, v255, s[12:15], 0 offen sc1', 'sig')
        stamp(e, 's1sig')
    def unit_out(r):
        for f in range(2):
            for rd in range(2): e(f'ds_read_b64_tr_b16 {vr(r+4*f+2*rd,2)}, v{252+f} offset:{rd*(256 if M16 else 512)}')
        e('s_waitcnt lgkmcnt(0)')
        for f in range(2): vm.op(f'buffer_store_dwordx4 {vr(r+4*f,4)}, v2, s[12:15], s56 offen offset:{1024*f} sc1', 'ust')
    lateprk = [n for n, d in enumerate(park) if XF <= d < XF + 112]
    F.add(f'v_mul_f32 v26, {f32(QSCALE)}, v248\nv_mov_b32 v2, v254')
    for n, d in enumerate(park):
        if n not in lateprk: F.add(f'v_accvgpr_read_b32 v{d}, a{n}')
    F.add(f"""v_xor_b32 v249, {3*2048}, v15
v_xor_b32 v250, {2*2048}, v15
v_xor_b32 v251, {1*2048}, v15
v_mov_b32 v{RM}, 0
v_mov_b32 v7, 0xdddd
s_mov_b32 s8, s60
s_mov_b32 s9, s61
s_cmp_lt_u32 s20, 14
s_cselect_b32 s10, {16*3584}, 0
s_mov_b32 s34, 3584
s_mov_b32 s38, 896
s_mov_b32 s42, {2048*896}
s_mov_b32 s43, 0x00020000""")
    late_fill = '\n'.join(f'v_accvgpr_read_b32 v{park[n]}, a{n}' for n in lateprk) + '\n' + \
                '\n'.join(f'v_add_u32 v{165+i}, {i*(4*3584-1024)}, v165' for i in range(1, 4)) + '\n' + \
                '\n'.join(f'v_xor_b32 v{161+b}, {64*b}, v161' for b in range(1, 4))
    cs_fill = f"""v_add_f32 v96, v96, v97
v_add_f32 v98, v98, v99
v_add_f32 v30, v96, v98
v_and_b32 v28, 0xffff0000, v30
v_sub_f32 v29, v30, v28
v_cvt_pk_bf16_f32 v{CF+8}, v28, v29
v_lshrrev_b32 v{CF+9}, 16, v30"""
    def qcs(g0, g1, r0):
        n = g1 - g0
        for g in range(g0, g1): e('\n'.join(qrd(4*g, r0 + 4*(g - g0))))
        if n > 4:
            e(f's_waitcnt lgkmcnt({2*(n-4)})')
            for s in range(4*g0, 4*g0 + 4): e('\n'.join(qrd(s)))
            for r in range(16): e(f'v_dot2c_f32_bf16 v30, v{r0+r}, v25')
            e('s_waitcnt lgkmcnt(8)')
            for r in range(16, 4*n): e(f'v_dot2c_f32_bf16 v30, v{r0+r}, v25')
        else:
            for s in range(4*g0, 4*g0 + 3): e('\n'.join(qrd(s)))
            e('s_waitcnt lgkmcnt(6)')
            e('\n'.join(qrd(4*g0 + 3)))
            for r in range(4*n): e(f'v_dot2c_f32_bf16 v30, v{r0+r}, v25')
        if g1 == 7: e(halves_sum(30, 246) + '\nds_write_b32 v243, v30')
    qcs(0, WQE, 76 if WQE == 7 else 80)
    for g in range(7):
        for k in range(4):
            s = 4*g + k
            e(f's_waitcnt lgkmcnt({2*min(3, 27-s, (4*WQE-1-s) if g < WQE else 3)})')
            e(f'{MF} {vr(QA,16)}, {vr(ACC+4*(s&7),4)}, {vr(XF+4*s,4)}, ' + (vr(QA, 16) if s else '0'))
            if s + 4 < 28 and g + 1 != WQE: e('\n'.join(qrd(s+4)))
            F.drain(3 if g < 6 else 5)
        if g + 1 == QS: s1signal()
        if WQE < 7 and g + 1 == WQE:
            stamp(e, 'q5'); vm.wait('wq2'); e('s_barrier'); stamp(e, 'q6')
            if not UA: unit_out(96)
            qcs(WQE, 7, 80)
        if g == (1 if WQE == 7 else WQE):
            e('s_barrier')
            for w in range(4): e(f'ds_read_b32 v{96+w}, v242 offset:{256*w}')
        if g == (3 if WQE == 7 else 5): F.add(cs_fill)
        if g == 4: F.add(late_fill)
        if WQE == 7 and not UA and g + 1 == knob('us', 6): vm.wait('wq2'); unit_out(80)
    F.drain(999)
    e(f"""{MF} {vr(QA,16)}, {vr(CF+8,4)}, {vr(XM,4)}, {vr(QA,16)}
s_load_dwordx2 s[32:33], s[0:1], 40
s_load_dwordx2 s[36:37], s[0:1], 56
s_load_dwordx2 s[40:41], s[0:1], 64
s_getpc_b64 s[80:81]
L_pc1:""")
    vm.op('global_load_dword v242, v170, s[80:81]', 'T')
    for s in (0, 2, 3): e(f'{MF} {vr(O+16*s,16)}, {vr(RM,4)}, {vr(RM,4)}, 0')
    w1n = [0]
    def w1set():
        it = w1n[0] // 4
        return [f's_add_u32 m0, s59, {it*16384}'] + ([f's_add_u32 s8, s8, {64*3584}\ns_addc_u32 s9, s9, 0'] if it else [])
    def w1l():
        i = w1n[0] % 4
        vm.op(f'buffer_load_dwordx4 v{165+i}, s[8:11], 0 offen offset:{1024*i} lds', 'W1'); w1n[0] += 1
    WB_ = knob('w1b', 0)
    for n in range(WB_):
        if n % 4 == 0: e('\n'.join(w1set()))
        w1l()
    for p in range(8):
        e(f'v_mul_f32 v{QA+2*p}, v26, v{QA+2*p}\nv_mul_f32 v{QA+2*p+1}, v26, v{QA+2*p+1}')
        e(f'v_cvt_pk_bf16_f32 v{Q+24+p}, v{QA+2*p}, v{QA+2*p+1}')
    e(f"""v_and_b32 v{Q+24}, v13, v{Q+24}
v_and_b32 v{Q+25}, v13, v{Q+25}
v_and_b32 v{Q+30}, v5, v{Q+30}
v_and_b32 v{Q+31}, v5, v{Q+31}
ds_write_b128 v15, {vr(Q+24,4)}
ds_write_b128 v15, {vr(Q+28,4)} offset:1024
{MF} {vr(O+16,16)}, {vr(RM,4)}, {vr(RM,4)}, 0
s_add_u32 s76, s51, {HINT}
s_mov_b32 m0, s46""")
    stamp(e, 's1win')
    def poll2(lab, addr, so_hint, so, n, first):
        e(f's_cmp_lg_u32 s16, {knob("pw", 1)}\ns_cbranch_scc1 {lab}wait\ns_mov_b32 s26, {POLL_MAX}')
        for l, x in ((lab + 'hint', so_hint), (lab + 'poll', so)):
            if x: e(f"""{l}:
buffer_load_dword v15, {addr}, s[12:15], {x} sc1
s_sub_u32 s26, s26, 1
s_cbranch_scc1 {lab}done
s_waitcnt vmcnt(0)
v_cmp_gt_u32 vcc, {n}, v15
s_cbranch_vccnz {l}""")
        e(f'{lab}done:')
        k = knob('pp', 2)
        sv = list(vm.seq)
        for f in first[:k]: f()
        vm.seq = sv
        e(f's_waitcnt lgkmcnt(0)\ns_barrier\ns_branch {lab}go\n{lab}wait:\ns_waitcnt lgkmcnt(0)\ns_barrier')
        for f in first[:k]: f()
        e(f'{lab}go:')
        stamp(e, lab[2:] + 'done')
        for f in first[k:]: f()
    NH = knob('nh', 2)
    def kvset(j): return f's_add_u32 m0, s{46 + (j >> 3)}, {(j & 7)*TTP}'
    def kl(j, t): vm.op(f'buffer_load_dwordx4 {ar(16*j+4*t,4)}, v3, s[12:15], m0 offen offset:{1024*t} sc1', f'K{j}')
    def vl(j, t): vm.op(f'buffer_load_dwordx4 {ar(16*j+8+4*t,4)}, v{248 if t else 4}, s[12:15], m0 offen sc1', f'V{j}')
    KV0 = knob('kv0', 3)
    poll2('L_s1', 'v169', None if NH & 1 else 's76 offen', 's51 offen', 14, [lambda: kl(0, 0), lambda: kl(0, 1), lambda: vl(0, 0), lambda: vl(0, 1)])
    e(kvset(1))
    for s in range(3):
        for t in range(2): e(f'ds_read_b128 {vr(Q+8*s+4*t,4)}, v{249+s} offset:{1024*t}')
    for j in range(1, KV0):
        kl(j, 0); kl(j, 1); vl(j, 0); vl(j, 1); e(kvset(j + 1))
    steps = [(s, j) for j in range(16) for s in range(3)] + [(3, j) for j in range(16)]
    N = len(steps)
    def qk(i, t):
        s, j = steps[i]; d = vr(S + 16*(i % 3), 16)
        return f'{MF} {d}, {ar(16*j+4*t,4)}, {vr(Q+8*s+4*t,4)}, ' + ('0' if t == 0 else d)
    def pv(i, t):
        s, j = steps[i]
        return f'{SM} {vr(O+16*s,16)}, {ar(16*j+8+4*t,4)}, {vr(S+16*(i%3)+8*t,8)}, v7'
    free, post = {}, {}
    def P(d, q, f): d.setdefault(q, []).append(f)
    WX = 2048 if M16 else 1024
    def wfrag(kind, n):
        g, r = divmod(n, 4)
        if M16: f, off, reg = r >> 1, (r & 1)*1024, 16*g + 4*r
        else: f, off, reg = r & 1, (r >> 1)*2048, 16*g + 4*r
        dst = vr(WOF + reg, 4) if kind == 'Wo' else ar(reg, 4)
        return (f's_add_u32 m0, s{44 if kind == "Wo" else 45}, {g*4096}', f'buffer_load_dwordx4 {dst}, v{252+f}, s[12:15], m0 offen offset:{off} sc1')
    w2n = [0]
    def w2l(n=1, setm=False):
        for _ in range(n):
            if w2n[0] >= 56: return
            a, b = wfrag('W2', w2n[0])
            if setm or w2n[0] % 4 == 0: e(a); setm = False
            vm.op(b, 'W2'); w2n[0] += 1
    def wfcheck():
        e('v_cmp_gt_u32 vcc, 16, v243\ns_lshr_b32 s26, vcc_hi, 16\ns_cbranch_scc1 L_wf\nL_wfd:')
        slow.append(f"""L_wf:
s_mov_b32 s26, {POLL_MAX}
L_wfp:
buffer_load_dword v243, v241, s[12:15], 0 offen sc1
s_sub_u32 s26, s26, 1
s_cbranch_scc1 L_wfd
s_waitcnt vmcnt(0)
v_cmp_gt_u32 vcc, 16, v243
s_nop 1
s_lshr_b32 s78, vcc_hi, 16
s_cbranch_scc1 L_wfp
s_branch L_wfd""")
    vq = []
    for j in range(KV0, 16):
        for n, (f, t) in enumerate(((kl, 0), (kl, 1), (vl, 0), (vl, 1))):
            vq.append(([kvset(j)] if n == 0 and j > KV0 else [], (lambda f=f, j=j, t=t: f(j, t)), 1))
        if UA and j == knob('uj', 5):
            for f in range(2): vq.append(([], (lambda f=f: vm.op(f'buffer_store_dwordx4 {vr(180+4*f,4)}, v2, s[12:15], s56 offen offset:{1024*f} sc1', 'ust')), 1))
        if WT == 2 and j == knob('wj', 7): vq.append(([], lambda: vm.op('global_load_dword v242, v177, s[82:83]', 'T'), knob('wg', 3)))
    def t0f():
        if knob('t2', 1): e('s_mov_b32 exec_lo, 0xfff00000')
        vm.op('buffer_load_dword v243, v241, s[12:15], 0 offen sc1', 'T0')
        if knob('t2', 1): e('s_mov_b32 exec_lo, -1')
    t0 = ([], t0f, 1 if ST & 2 or knob('t2', 1) else 2)
    for t in range(2):
        if M16: vq.append(([f's_add_u32 m0, s27, {16*896*t}'], (lambda t=t: vm.op(f'buffer_load_dwordx4 {vr(224+4*t,4)}, v0, s[4:7], m0 offen', 'sm')), 1))
        else: vq.append((['s_mov_b32 m0, s27'] if t == 0 else [], (lambda t=t: vm.op(f'buffer_load_dwordx4 {vr(224+4*t,4)}, v0, s[4:7], m0 offen offset:{32*t}', 'sm')), 1))
    tiny = [(lambda t=t: vm.op(f'buffer_load_dwordx4 {vr(232+4*t,4)}, v160, s[36:39], 0 offen offset:{32*t}', 'sm')) for t in range(1 if M16 else 2)]
    tiny += [(lambda b=b: vm.op(f'buffer_load_ushort v{244+b}, v{161+b}, s[32:35], 0 offen', 'sm')) for b in range(4)]
    if knob('ty', 9):
        for n, f in enumerate(tiny): P(post, 4*knob('ty', 9) + 1 + 2*n, f)
    else: vq += [([], f, 1) for f in tiny]
    for n in range(WB_, 28):
        it = n // 4
        vq.append(((([f's_add_u32 s8, s8, {64*3584}\ns_addc_u32 s9, s9, 0'] if it else []) + [f's_add_u32 m0, s59, {it*16384}']) if n % 4 == 0 else [], w1l, 1))
    vq.insert(len(vq) - 12, t0)
    nchk = len(vq)
    for n in range(16):
        a, b = wfrag('Wo', n); vq.append(([a] if n % 4 == 0 else [], (lambda b=b: vm.op(b, 'Wo')), 1))
    if knob('t2', 1): vq.append(([], lambda: vm.op('buffer_load_dword v242, v241, s[12:15], 0 offen sc1', 'T'), 1))
    if H1M: vq.append((['s_mov_b32 m0, s28'], lambda: vm.op('buffer_load_dword v242, v240, s[12:15], m0 offen sc1', 'T'), knob('h1g', 8)))
    TL = knob('tl', 16); tail = []
    if TL: k = len(vq) - bool(H1M) - bool(knob('t2', 1)); tail = vq[k:]; vq = vq[:k]
    hs = 0
    def place(sal, f):
        if sal: P(free, 2*hs - 1, lambda x=sal[-1]: e(x))
        if len(sal) > 1: P(free, 2*hs, lambda x=sal[0]: e(x))
        P(post, 2*hs, f)
    for n, (sal, f, d) in enumerate(vq):
        if n == nchk: P(free, 2*hs - 3, lambda: vm.wait('T0')); P(post, 2*hs - 3, wfcheck)
        place(sal, f); hs += d
    hs = max(hs, 100)
    W2A = max(0, min(knob('w2a', 24), 126 - TL - hs)) // 4 * 4
    for n in range(W2A):
        a, b = wfrag('W2', n); place([a] if n % 4 == 0 else [], (lambda b=b: vm.op(b, 'W2'))); hs += 1
    for sal, f, d in tail: place(sal, f); hs += 1
    w2n[0] = W2A
    P(free, 2, lambda: vm.wait('V0'))
    for j in range(1, 16):
        if j < 6: P(free, 4*(3*j-1) - 2, (lambda j=j: vm.wait(f'V{j}')))
        elif j % 2 == 0: P(free, 4*(3*j-1) - 2, (lambda j=j: vm.wait(f'V{j+1}')))
    def pwr(s, q): return f'ds_write_b128 v{9+s}, {vr(O+16*s+4*q,4)} offset:{s*4096 + q*1024}'
    def prd(s, q): return f'ds_read_b128 {vr(O+16*s+4*q,4)}, v12 offset:{s*4096 + q*1024}'
    for k in range(12): P(post, 4*50 + 1 + 2*k, (lambda k=k: e(pwr(k//4, k % 4))))
    P(free, 4*59, lambda: vm.wait('W1', 'lgkmcnt(0)')); P(free, 4*59 + 2, lambda: e('s_barrier'))
    for k in range(12): P(post, 4*60 + k, (lambda k=k: e(prd(k//4, k % 4))))
    if UA:
        vm.wait('u')
        for f in range(2):
            for rd in range(2): e(f'ds_read_b64_tr_b16 {vr(180+4*f+2*rd,2)}, v{252+f} offset:{rd*(256 if M16 else 512)}')
        e(f'''s_cmp_eq_u32 s16, 0
s_cselect_b32 s26, 9, 0
v_cmp_gt_u32 vcc, s26, v1
v_mov_b32 v13, {WS_BYTES}
v_mov_b32 v178, v8
s_lshl_b32 s76, s24, 6
v_cndmask_b32 v179, v13, v14, vcc
s_waitcnt lgkmcnt(0)''')
        UB_ = knob('ub', 17)
        P(free, 4*UB_, lambda: vm.wait('ust')); P(free, 4*UB_ + 1, lambda: e('s_barrier'))
        P(post, 4*UB_ + 1, lambda: vm.op('buffer_atomic_add v178, v179, s[12:15], 0 offen sc1', 'sig'))
    else:
        e(f'''s_cmp_eq_u32 s16, 0
s_cselect_b32 s26, 9, 0
v_cmp_gt_u32 vcc, s26, v1
v_mov_b32 v13, {WS_BYTES}
s_lshl_b32 s76, s24, 6
v_cndmask_b32 v14, v13, v14, vcc''')
        vm.wait('ust', 'lgkmcnt(0)')
        e('s_barrier')
        vm.op('buffer_atomic_add v8, v14, s[12:15], 0 offen sc1', 'sig')
    sq = []
    if ST & 1: sq += [f's_load_dword s77, s[82:83], {64*k}' for k in range(26)] + ['s_buffer_load_dword s77, s[32:35], s31', 's_buffer_load_dword s77, s[36:39], s76']
    q = 1
    for x in sq:
        while q in free: q += 1
        P(free, q, lambda x=x: e(x)); q += 2
    if ST & 2:
        q = max(q, 4*knob('hs', 26))
        for x in [f's_buffer_load_dword s77, s[12:15], s64 offset:{64*k}' for k in range(32)] + [f's_buffer_load_dword s77, s[12:15], s65 offset:{64*k}' for k in range(8)]:
            while q in free: q += 1
            P(free, q, lambda x=x: e(x)); q += 2
        assert q < 4*52
    e(f"""v_mov_b32 v249, v173
v_add_u32 v254, 0x10000, v173
v_mov_b32 v250, v174
v_mov_b32 v251, v175
v_mov_b32 v5, v176
v_mov_b32 v252, v171
v_xor_b32 v253, {WX}, v171
v_mov_b32 v255, v{172 if M16 else 2}
v_mov_b32 v8, 1
v_mov_b32 v14, 0x3f803f80""")
    vm.wait('K0')
    stamp(e, 'a0')
    e(qk(0, 0)); e(qk(0, 1))
    for i in range(N):
        if i == 48: stamp(e, 'aB')
        if i: stamp(e, f'a{i}')
        b = S + 16*(i % 3)
        mf = [qk(i+1, 0) if i+1 < N else None, qk(i+1, 1) if i+1 < N else None, pv(i-1, 1) if i > 0 else None, pv(i, 0)]
        for sl in range(4):
            if mf[sl]: e(mf[sl])
            for f in free.get(4*i + sl, []) + post.get(4*i + sl, []): f()
            for r in range(4): e(f'v_exp_f32 v{b+4*sl+r}, v{b+4*sl+r}')
    e(pv(N-1, 1))
    if not NH & 2: vm.op('buffer_atomic_add v8, v250, s[12:15], 0 offen offset:128 sc1', 'sig')
    assert w1n[0] == 28
    e('L_combine:')
    stamp(e, 'comb')
    e('s_waitcnt lgkmcnt(0)')
    for r in range(16): e(f'v_add_f32 v{O+r}, v{O+r}, v{O+16+r}')
    for p in range(8): e(f'v_pk_add_f32 {vr(O+2*p,2)}, {vr(O+2*p,2)}, {vr(O+32+2*p,2)}')
    for p in [6, 0, 1, 2, 3, 4, 5, 7]:
        e(f'v_pk_add_f32 {vr(O+2*p,2)}, {vr(O+2*p,2)}, {vr(O+48+2*p,2)}')
        if p == 6: e(f'v_mov_b32 v13, v{O+12}\nv_mov_b32 v15, v{O+12}')
        if p == 1: e('v_permlane32_swap_b32 v13, v15')
        if p == 2: e('v_rcp_f32 v158, v15')
    for p in range(8):
        e(f'v_pk_mul_f32 {vr(O+2*p,2)}, {vr(O+2*p,2)}, v[158:159] op_sel_hi:[1,0]')
        e(f'v_cvt_pk_bf16_f32 v{O+p}, v{O+2*p}, v{O+2*p+1}')
        if p == 3: vm.op(f'buffer_store_dwordx4 {vr(O,4)}, v2, s[12:15], s3 offen sc1', 'Ost')
        if p == 6: e(f'v_and_b32 v{O+6}, v6, v{O+6}')
    e(f'v_and_b32 v{O+7}, v6, v{O+7}')
    vm.op(f'buffer_store_dwordx4 {vr(O+4,4)}, v2, s[12:15], s3 offen offset:1024 sc1', 'Ost')
    if knob('t1', 0): vm.op('buffer_load_dword v242, v241, s[12:15], 0 offen sc1', 'T')
    def csrd(dst, s):
        return [f'ds_read_b64_tr_b16 {vr(dst+2*rd,2)}, v{254 if s >= 16 else 249} offset:{(s & 15)*4096 + rd*1024}' for rd in range(2)]
    for k in range(4): e('\n'.join(csrd(S + 4*k, k)))
    e(f"""v_cmp_nle_f32 vcc, {f32(2.0**-40)}, v15
v_mov_b32 v156, 0
v_mov_b32 v157, 0
s_mov_b64 s[82:83], vcc
v_cmp_nge_f32 vcc, {f32(2.0**40)}, v15
v_add_u32 v15, v12, v5
s_or_b64 vcc, vcc, s[82:83]
s_cselect_b32 s26, 1, 0
s_andn2_b32 s26, s26, s30
v_mov_b32 v13, s26""")
    B0 = knob('b0', 8); CS = knob('cs', 4)
    def csgroup(g):
        if g < 7:
            for k in range(4): e('\n'.join(csrd(S + 16*(g & 1) + 4*k, 4*g + k)))
        if g <= CS: w2l(B0*g//CS - B0*(g-1)//CS)
        e(f's_waitcnt lgkmcnt({8 if g < 7 else 0})')
        for r in range(16): e(f'v_dot2c_f32_bf16 v{156 + (r & 1)}, v{S + 16*((g-1) & 1) + r}, v14')
    for g in range(1, CS + 1): csgroup(g)
    e('ds_write_b32 v12, v13')
    vm.wait('Ost', 'lgkmcnt(0)')
    e("""s_barrier
ds_read_b32 v13, v251
s_waitcnt lgkmcnt(0)
v_cmp_ne_u32 vcc, 0, v13
s_cbranch_vccnz L_fallback""")
    vm.op('buffer_atomic_add v8, v250, s[12:15], 0 offen sc1', 'sig2')
    stamp(e, 's2sig')
    e(f's_cmp_ge_u32 s20, 14\ns_cbranch_scc1 {"L_wb" if H1M == 3 or knob("wb", 0) else "L_end"}')
    B1 = knob('b1', 14)
    for g in range(CS + 1, 8):
        w2l(B1*(g-CS)//(7-CS) - B1*(g-CS-1)//(7-CS))
        csgroup(g)
    ACC3, AF = 80, 16
    WA = 240
    e('v_add_f32 v156, v156, v157')
    e(halves_sum(156, 157))
    e("""ds_write_b32 v15, v156 offset:8192
v_add_u32 v157, v11, v5
v_add_u32 v158, v10, v5
v_add_u32 v159, v9, v5
v_readlane_b32 s31, v243, 20
v_mov_b32 v13, 0
s_mov_b32 m0, s63""")
    for r in range(8): e(f'v_lshlrev_b32 v{ACC3+2*r}, 16, v{224+r}\nv_and_b32 v{ACC3+2*r+1}, 0xffff0000, v{224+r}')
    e('s_cmp_eq_u32 s31, s29\ns_cselect_b32 s31, 1, 0')
    if knob('nolocal', 0): e('s_mov_b32 s31, 0')
    stamp(e, 's2win')
    def aoff(n): return ((n >> 1) & 1)*2048 + (n & 1)*256 if M16 else (n & 3)*1024
    def ol(a, n):
        if n % 4 == 0 and (a, n) != (1, 0): e(f's_add_u32 m0, s{62+a}, {n*1024}')
        vm.op(f'buffer_load_dwordx4 {vr(AF+32*a+4*n,4)}, v255, s[12:15], m0 offen offset:{aoff(n)} sc1', f'O{a}{n}')
    poll2('L_s2', 'v13', None if NH & 2 else 's25 offen offset:128', 's25 offen', 16, [(lambda n=n: ol(1, n)) for n in range(8)])
    e('ds_read_b32 v157, v157 offset:8192\nds_read_b32 v158, v158 offset:8192\nds_read_b32 v159, v159 offset:8192')
    for n in range(4): ol(0, n)
    e(f"""v_and_b32 v3, 0x1f0, v2
s_and_b32 s76, s23, 3
s_lshl_b32 s77, s76, 5
s_add_u32 s77, s77, s24
s_lshl_b32 s77, s77, 2
v_mov_b32 v4, s77
v_min_u32 v5, 13, v1
v_lshlrev_b32 v5, 2, v5
s_lshl_b32 s77, s16, 5
s_add_u32 s77, s77, s20
s_lshl_b32 s77, s77, 2
v_mov_b32 v14, s77
s_mul_i32 s77, s16, 7
s_lshr_b32 s77, s77, 1
v_and_b32 v7, 3, v1
v_add_u32 v7, s77, v7
v_bfe_u32 v13, v1, 2, 1
v_lshl_add_u32 v7, v13, 5, v7
v_lshlrev_b32 v7, 2, v7
v_lshrrev_b32 v250, 2, v2
s_lshl_b32 s77, s16, 8
v_add_u32 v251, s77, v250
{'v_and_b32 v250, 60, v250' if M16 else ''}
s_lshl_b32 s76, s76, 8
v_add_u32 v250, s76, v250
s_waitcnt lgkmcnt(0)""")
    for b in range(4):
        e(f"""v_and_b32 v13, 0xffff0000, v{156+b}
v_sub_f32 v15, v{156+b}, v13
v_cvt_pk_bf16_f32 v15, v13, v15
v_lshrrev_b32 v13, 16, v13
v_lshl_or_b32 v13, v{244+b}, 16, v13
v_accvgpr_write_b32 a{224+4*b}, v15
v_accvgpr_write_b32 a{225+4*b}, v13
v_accvgpr_write_b32 a{226+4*b}, v{244+b}
v_accvgpr_write_b32 a{227+4*b}, 0""")
    for r in range(4 if M16 else 8): e(f'v_lshlrev_b32 v{144+2*r}, 16, v{232+r}\nv_and_b32 v{145+2*r}, 0xffff0000, v{232+r}')
    for b in range(4): e(f'v_xor_b32 v{WA+b}, {64*b}, v249\nv_xor_b32 v{WA+4+b}, {64*b}, v254')
    for n in range(4, 8): ol(0, n)
    def rwr(s, A, q): return f'ds_write_b128 v{12-s}, {vr(A+16*s+4*q,4)} offset:{(3-s)*4096 + q*1024}'
    def rrd(s, A, q): return f'ds_read_b128 {vr(A+16*s+4*q,4)}, v12 offset:{(3-s)*4096 + q*1024}'
    def mm(A, wk, wb, act, a, f, n, init):
        T = A + 16*(2*a + f)
        if not M16:
            return [f'{MF} {vr(T,16)}, {vr(wb+8*n+4*f,4,wk)}, {vr(act,4)}, ' + ('0' if n == 0 and init else vr(T, 16))]
        return [f'{MH} {vr(T+8*(n&1)+4*u,4)}, {vr(wb+16*(n>>1)+8*f+4*u,4,wk)}, {vr(act,4)}, ' + ('0' if n < 2 and init else vr(T+8*(n&1)+4*u, 4)) for u in range(2)]
    def m3(a, f, n): e('\n'.join(mm(ACC3, 'v', WOF, AF+32*a+4*n, a, f, n, (a, f) != (0, 0))))
    B2 = knob('b2', 8)
    for n in range(8):
        vm.wait(f'O1{n}'); stamp(e, f'o{n}'); m3(1, 1, n); m3(1, 0, n)
        if n >= 8 - B2: w2l(1, n == 8 - B2)
    LAG = 2
    for n in range(8):
        vm.wait(f'O0{n}'); stamp(e, f'o{8+n}'); m3(0, 1, n)
        if 1 <= n < 5: e(rwr(3 - (n-1)//2, ACC3, 2*((n-1) % 2)))
        if n >= LAG: m3(0, 0, n - LAG)
        if 1 <= n < 5: e(rwr(3 - (n-1)//2, ACC3, 2*((n-1) % 2) + 1))
        if n == knob('p3b', 5):
            e('s_waitcnt lgkmcnt(0)\ns_barrier')
            for q in range(4): e(rrd(3, ACC3, q) + '\n' + rrd(2, ACC3, q))
    stamp(e, 'p3mf')
    e('s_waitcnt lgkmcnt(0)')
    for n in range(8 - LAG, 8):
        m3(0, 0, n)
        for r in range(4*(n - 8 + LAG), 4*(n - 7 + LAG)): e(f'v_add_f32 v{ACC3+32+r}, v{ACC3+32+r}, v{ACC3+48+r}')
    for q in range(4):
        e(rwr(1, ACC3, q))
        for r in range(8 + 2*q, 10 + 2*q): e(f'v_add_f32 v{ACC3+32+r}, v{ACC3+32+r}, v{ACC3+48+r}')
    for p in range(8): e(f'v_pk_add_f32 {vr(ACC3+2*p,2)}, {vr(ACC3+2*p,2)}, {vr(ACC3+32+2*p,2)}')
    e('s_waitcnt lgkmcnt(0)\ns_barrier')
    for q in range(4): e(rrd(1, ACC3, q))
    HN = ' nt' if knob('hn', 0) else ''
    def dual(lines, tag, lab, loc=''):
        e(f's_cmp_lg_u32 s31, 0\ns_cbranch_scc0 {lab}_s')
        for l in lines: vm.op(l + loc, tag)
        e(f'{lab}_d:')
        slow.append(f'{lab}_s:\ns_nop 1\n' + '\n'.join(l + ' sc1' for l in lines) + f'\ns_nop 1\ns_branch {lab}_d')
    for q in range(4):
        e(f's_waitcnt lgkmcnt({3-q})')
        for p in (2*q, 2*q+1):
            e(f'v_pk_add_f32 {vr(ACC3+2*p,2)}, {vr(ACC3+2*p,2)}, {vr(ACC3+16+2*p,2)}')
            e(f'v_cvt_pk_bf16_f32 v{16+p}, v{ACC3+2*p}, v{ACC3+2*p+1}')
    dual([f'buffer_store_dwordx4 {vr(16+4*t,4)}, v255, s[12:15], s64 offen offset:{(256 if M16 else 1024)*t}' for t in range(2)], 'hst', 'L_h', HN)
    def psum(d, p0, p1):
        A = ACC3 + 2*p0
        e(f'v_pk_mul_f32 {vr(d+2,2)}, {vr(A,2)}, {vr(A,2)}\nv_pk_add_f32 {vr(d,2)}, {vr(A,2)}, {vr(A+2,2)}\nv_pk_fma_f32 {vr(d+2,2)}, {vr(A+2,2)}, {vr(A+2,2)}, {vr(d+2,2)}')
        for p in range(p0 + 2, p1):
            e(f'v_pk_add_f32 {vr(d,2)}, {vr(d,2)}, {vr(ACC3+2*p,2)}\nv_pk_fma_f32 {vr(d+2,2)}, {vr(ACC3+2*p,2)}, {vr(ACC3+2*p,2)}, {vr(d+2,2)}')
        e(f'v_add_f32 v{d}, v{d}, v{d+1}\nv_add_f32 v{d+1}, v{d+2}, v{d+3}')
    if M16:
        psum(24, 0, 4); psum(28, 4, 8)
        e('v_permlane16_swap_b32 v24, v28\nv_permlane16_swap_b32 v25, v29\nv_pk_add_f32 v[24:25], v[24:25], v[28:29]')
    else: psum(24, 0, 8)
    e("""v_mov_b32 v26, v24
v_mov_b32 v27, v25
v_permlane32_swap_b32 v24, v26
v_permlane32_swap_b32 v25, v27
v_pk_add_f32 v[24:25], v[24:25], v[26:27]""")
    dual(['buffer_store_dwordx2 v[24:25], v3, s[12:15], s65 offen'], 'hst', 'L_s', HN)
    stamp(e, 'p3st')
    w2l(knob('b3', 0), True)
    for p in range(8): e(f'v_pk_add_f32 {vr(224+2*p,2)}, {vr(144+2*(p % 4 if M16 else p),2)}, {vr(ACC3+2*p,2)}')
    HF, ACC4, WF, STT = 16, 128, 192, 208
    HP = knob('hp', 8); PER = knob('per', 76)
    SP = knob('sp', 10)
    order = list(range(SP + 1)) + ['s0', 's1', 's2', 's3'] + list(range(SP + 1, 28))
    arr = {x: n*PER for n, x in enumerate(order)}
    mlist = []; nxt = [0, 0, 0, 0]; t = 0
    while min(nxt) < 28:
        c = [b for b in range(4) if nxt[b] < 28 and arr[nxt[b]] <= t]
        if not c: t = min(arr[nxt[b]] for b in range(4) if nxt[b] < 28); continue
        b = min(c, key=lambda b: (b >> 1 and b, nxt[b], b))
        mlist.append((nxt[b], b)); nxt[b] += 1; t += 32
    M = len(mlist)
    last = [max(m for m, (s, b2) in enumerate(mlist) if b2 == b) for b in range(4)]
    firstm = [min(m for m, (s, b2) in enumerate(mlist) if b2 == b) for b in range(4)]
    def w1rd(dst, s, b, k='v'):
        base = WA + b + (4 if s >= 16 else 0); off = (s & 15)*4096
        return [f'ds_read_b64_tr_b16 {vr(dst+2*rd,2,k)}, v{base} offset:{off + rd*1024}' for rd in range(2)]
    def wreg(m): return ('v', WF + 4*(m & 7)) if (m & 7) < 4 else ('a', 240 + 4*((m & 7) - 4))
    def rds(m):
        s, b = mlist[m]; k, r = wreg(m)
        return w1rd(r, s, b, k)
    LD = 6
    for m in range(LD): e('\n'.join(rds(m)))
    e('s_mov_b32 m0, s67')
    vm.wait('hst')
    dual([f'buffer_store_dword v8, v4, s[12:15], s25 offen offset:{16*128}'], 'f3', 'L_f3')
    stamp(e, 'p3end')
    def poll(lab, addr, so):
        e(f"""s_mov_b32 s26, {POLL_MAX}
{lab}:
buffer_load_dword v13, {addr}, s[12:15], {so} sc1
s_sub_u32 s26, s26, 1
s_cbranch_scc1 {lab}_x
s_waitcnt vmcnt(0)
v_cmp_ne_u32 vcc, 1, v13
s_cbranch_vccnz {lab}
{lab}_x:""")
    poll('L_p3', 'v5', f's66 offen offset:{16*128}')
    stamp(e, 's3done')
    def hl(x):
        if isinstance(x, str):
            p = int(x[1]); vm.op(f'buffer_load_dwordx4 {vr(STT+4*p,4)}, v2, s[12:15], s68 offen offset:{1024*p} sc1', 'st'); return
        if x and x % 4 == 0: e(f's_add_u32 m0, s67, {x*1024}')
        vm.op(f'buffer_load_dwordx4 {vr(HF+4*x,4)}, v2, s[12:15], m0 offen offset:{(x&3)*1024} sc1', f'h{x}')
    for x in order[:HP]: hl(x)
    hq = order[HP:]
    XB = STT + 8
    def add_stats():
        F.add(lambda: vm.wait('st'))
        F.add('\n'.join(f'v_and_b32 v{STT+12+r}, v6, v{STT+12+r}' for r in range(4)))
        for k in range(1, 8): F.add(f'v_add_f32 v{STT}, v{STT}, v{STT+2*k}\nv_add_f32 v{STT+1}, v{STT+1}, v{STT+2*k+1}')
        F.add(ln_stats(STT, STT+1, STT+2, STT+3, STT+4, STT+5))
        F.add(f"""v_sub_f32 v{STT+3}, 0, v{STT+3}
v_and_b32 v{STT+3}, v6, v{STT+3}
v_and_b32 v{STT+5}, v6, v{STT+5}
v_and_b32 v{STT+6}, 0xffff0000, v{STT+3}
v_sub_f32 v{STT+7}, v{STT+3}, v{STT+6}
v_cvt_pk_bf16_f32 v{XB}, v{STT+6}, v{STT+6}
v_and_b32 v{STT+6}, 0xffff0000, v{STT+5}
v_cvt_pk_bf16_f32 v{XB+1}, v{STT+7}, v{STT+6}
v_sub_f32 v{STT+7}, v{STT+5}, v{STT+6}
v_cvt_pk_bf16_f32 v{XB+2}, v{STT+7}, 0
v_mov_b32 v{XB+3}, 0
v_mul_f32 v248, v{STT+4}, v{STT+4}""")
        F.mark('st')
    def epi(b):
        A = ACC4 + 16*b
        for p in range(8):
            F.add(f"""v_mul_f32 v{A+2*p}, v{A+2*p}, abs(v{A+2*p})
v_mul_f32 v{A+2*p+1}, v{A+2*p+1}, abs(v{A+2*p+1})
v_cvt_pk_bf16_f32 v{A+p}, v{A+2*p}, v{A+2*p+1}
v_pk_max_i16 v{A+p}, v{A+p}, 0""")
            if p % 4 == 3:
                l = f'buffer_store_dwordx4 {vr(A+4*(p//4),4)}, v2, s[12:15], s{72+b} offen offset:{1024*(p//4)}'
                if H1M == 0: F.add(lambda l=l: vm.op(l + ' sc1', 'h1st'))
                else: F.add(lambda l=l, n=2*b + p//4: dual([l], 'h1st', f'L_e{n}', ' nt' if H1M == 2 else ''))
    mst = min(m for m, (s, b) in enumerate(mlist) if s > SP) + 2
    XK = min(last[0], last[1]) - 1
    w2set = [True]
    for m, (s, b) in enumerate(mlist):
        if m == mst: add_stats()
        if m == last[1] + 1: stamp(e, 'p4a')
        for b2 in range(3):
            if m == last[b2] + 4: epi(b2)
        lg = f'lgkmcnt({2*max(0, min(LD-2, M-2-m))})' if m % 2 == 0 else ''
        vm.wait(f'h{s}', lg)
        if b == 0: stamp(e, f'h{s}')
        acc = vr(ACC4 + 16*b, 16); k, r = wreg(m)
        zero = s == 0
        if s == 0 and m > XK: e(f'{MF} {acc}, {ar(224+4*b,4)}, {vr(XB,4)}, 0'); zero = False
        e(f'{MF} {acc}, {vr(r,4,k)}, {vr(HF+4*s,4)}, ' + ('0' if zero else acc))
        if m % 2 == 1 and hq: hl(hq.pop(0)); n = 2
        elif m % 2 == 1 and w2n[0] < 56: w2l(1, w2set[0]); w2set[0] = False; n = 2
        else: n = 3 if m % 2 else 2
        if m + LD < M: e('\n'.join(rds(m + LD)))
        else: n += 2
        F.drain(n)
        if m == XK:
            F.need('st')
            for b2 in range(4):
                if firstm[b2] <= XK: e(f'{MF} {vr(ACC4+16*b2,16)}, {ar(224+4*b2,4)}, {vr(XB,4)}, {vr(ACC4+16*b2,16)}')
    stamp(e, 'p4mf')
    F.drain(999)
    w2l(56, w2set[0])
    epi(3); F.drain(999)
    e('s_barrier\nds_write_b32 v251, v248\ns_mov_b32 m0, s71')
    vm.wait('h1st')
    dual([f'buffer_store_dword v8, v14, s[12:15], s25 offen offset:{20*128}'], 'f4', 'L_f4')
    stamp(e, 'p4end')
    poll('L_p4', 'v7', f's69 offen offset:{20*128}')
    stamp(e, 's4done')
    GF, ACC5, RING = 16, 144, 32
    GP = knob('gp', 12)
    s5 = [(a, n) for a in (1, 0) for n in range(28)]
    def gl(i):
        a, n = s5[i]
        if i and n % 4 == 0: e(f's_add_u32 m0, s{70+a}, {n*1024}')
        vm.op(f'buffer_load_dwordx4 {vr(GF+4*(i%RING),4)}, v255, s[12:15], m0 offen offset:{aoff(n)} sc1', f'g{i}')
    def m5(a, f, n): e('\n'.join(mm(ACC5, 'a', 0, GF + 4*((n + 28*(1-a)) % RING), a, f, n, True)))
    ON_ = ' nt' if knob('on', 0) else ''
    RS = lambda r: 248 + (2*(r // 8) if M16 else 0)
    G0 = knob('g0', 5); gi = [G0]
    for i in range(G0): gl(i)
    def gnext(i):
        if gi[0] < min(56, i + 1 + GP): gl(gi[0]); gi[0] += 1
    for i, (a, n) in enumerate(s5):
        if i == 28: stamp(e, 'p5a')
        vm.wait(f'g{i}')
        stamp(e, f'g{i}')
        m5(a, 1, n)
        gnext(i)
        if a == 1: m5(1, 0, n); gnext(i)
        elif n >= LAG: m5(0, 0, n - LAG)
        if a == 0:
            if 3 <= n < 11: e(rwr(2 + (n-3)//4, ACC5, (n-3) % 4))
            if n == 13:
                e('s_waitcnt lgkmcnt(0)\ns_barrier\nds_read_b32 v248, v250')
                if M16: e('ds_read_b32 v250, v250 offset:64')
            if 14 <= n < 18: e(rrd(2, ACC5, n-14) + '\n' + rrd(3, ACC5, n-14))
            if n == 19: e('s_waitcnt lgkmcnt(0)')
            if 19 <= n < 27:
                for r in (2*(n-19), 2*(n-19)+1): e(f'v_add_f32 v{ACC5+32+r}, v{ACC5+32+r}, v{ACC5+48+r}\nv_fmac_f32 v{224+r}, v{RS(r)}, v{ACC5+32+r}')
    stamp(e, 'p5mf')
    for n in range(28 - LAG, 28): m5(0, 0, n)
    for q in range(4): e(rwr(1, ACC5, q))
    if M16: e(f's_add_u32 s26, s27, {16*896}')
    for p in range(8): e(f'v_pk_fma_f32 {vr(224+2*p,2)}, {vr(ACC5+2*p,2)}, {vr(RS(2*p),2)}, {vr(224+2*p,2)} op_sel_hi:[1,0,1]')
    e('s_waitcnt lgkmcnt(0)\ns_barrier')
    for q in range(4): e(rrd(1, ACC5, q))
    for t in range(2):
        e(f's_waitcnt lgkmcnt({2-2*t})')
        for p in range(4*t, 4*t+4):
            e(f'v_pk_fma_f32 {vr(224+2*p,2)}, {vr(ACC5+16+2*p,2)}, {vr(RS(2*p),2)}, {vr(224+2*p,2)} op_sel_hi:[1,0,1]')
            e(f'v_cvt_pk_bf16_f32 v{16+p}, v{224+2*p}, v{225+2*p}')
        if M16: e(f'buffer_store_dwordx4 {vr(16+4*t,4)}, v0, s[40:43], s{27-t} offen' + ON_)
        else: e(f'buffer_store_dwordx4 {vr(16+4*t,4)}, v0, s[40:43], s27 offen offset:{32*t}' + ON_)
    stamp(e, 'p5st')
    stamp_out(e)
    e('s_endpgm')
    for x in slow: e(x)
    if H1M == 3 or knob('wb', 0):
        e(f"""L_wb:
s_cmp_lg_u32 s20, 14
s_cbranch_scc1 L_end
s_cmp_lg_u32 s16, 0
s_cbranch_scc1 L_end
v_and_b32 v5, 15, v1
v_min_u32 v5, 13, v5
v_lshrrev_b32 v13, 4, v1
v_lshl_add_u32 v5, v13, 5, v5
v_lshlrev_b32 v5, 2, v5""")
        poll('L_wbp', 'v5', f's25 offen offset:{(20 if H1M == 3 else 16)*128}')
        e('buffer_wbl2 sc1\ns_waitcnt vmcnt(0)\ns_endpgm')
    e('L_fallback:\ns_mov_b32 s30, 1\ns_waitcnt vmcnt(0) lgkmcnt(0)\ns_barrier')
    for j in range(16):
        e(kvset(j)); kl(j, 0); kl(j, 1); vl(j, 0); vl(j, 1)
        if j == 7: e('s_waitcnt vmcnt(0)')
    e('s_waitcnt vmcnt(0)')
    MXB = SCR
    d = vr(S, 16)
    for s in range(4):
        e(f'v_mov_b32 v{128+s}, 0xff800000')
        for j in range(16):
            e(f'{MF} {d}, {ar(16*j,4)}, {vr(Q+8*s,4)}, 0\n{MF} {d}, {ar(16*j+4,4)}, {vr(Q+8*s+4,4)}, {d}')
            for p in range(8): e(f'v_max3_f32 v{128+s}, v{S+2*p}, v{S+2*p+1}, v{128+s}')
        e(f"""v_mov_b32 v13, v{128+s}
v_permlane32_swap_b32 v{128+s}, v13
v_max_f32 v{128+s}, v{128+s}, v13
s_xor_b32 s76, s16, {3-s}
s_lshl_b32 s76, s76, 9
s_add_u32 s76, s76, {MXB}
v_and_b32 v13, 31, v1
v_lshlrev_b32 v13, 4, v13
v_add_u32 v{132+s}, s76, v13
s_lshl_b32 s76, s16, 2
v_add_u32 v13, s76, v{132+s}
ds_write_b32 v13, v{128+s}""")
    e('s_waitcnt lgkmcnt(0)\ns_barrier')
    for s in range(4): e(f'ds_read_b128 {vr(S+4*s,4)}, v{132+s}')
    e('s_waitcnt lgkmcnt(0)\ns_barrier')
    for s in range(4):
        e(f'v_max3_f32 v{128+s}, v{S+4*s}, v{S+1+4*s}, v{S+2+4*s}\nv_max_f32 v{128+s}, v{128+s}, v{S+3+4*s}')
    for s in range(4):
        for r in range(16): e(f'v_sub_f32 v{NM+r}, 0, v{128+s}\nv_mov_b32 v{O+16*s+r}, 0')
        for j in range(16):
            e(f'{MF} {d}, {ar(16*j,4)}, {vr(Q+8*s,4)}, {vr(NM,16)}\n{MF} {d}, {ar(16*j+4,4)}, {vr(Q+8*s+4,4)}, {d}')
            for r in range(16): e(f'v_exp_f32 v{S+r}, v{S+r}')
            for t in range(2): e(f'{SM} {vr(O+16*s,16)}, {ar(16*j+8+4*t,4)}, {vr(S+8*t,8)}, v7')
            e('s_nop 7')
        e('s_nop 7')
    for k in range(12): e(pwr(k//4, k % 4))
    for n in range(W2A):
        a, b = wfrag('W2', n); e(a + '\n' + b)
    e('s_waitcnt vmcnt(0) lgkmcnt(0)\ns_barrier')
    for k in range(12): e(prd(k//4, k % 4))
    e('s_branch L_combine')
    e('L_end:')

def build1(e, path):
    head = open(f'cdna_kernels/{NAME}.s.ref').read().split('\n')
    name = NAME + '_kernel'
    out = head[:12] + (['; stamps: ' + ' '.join(ST_NAMES)] if STAMP else []) + ['; @launch grid=(256,1,1) block=(256,1,1) lds=163840', '.amdgcn_target "amdgcn-amd-amdhsa--gfx950"\n.text']
    e.fix('-v' in sys.argv)
    out.append(f'.globl {name}\n' + ('.p2align 12\n' if knob('al', 1) else '') + f'.p2align 8\n.type {name},@function\n{name}:')
    out.append(e.text() + '    s_endpgm')
    out.append(f""".section .rodata,"a"
.p2align 6
.amdhsa_kernel {name}
  .amdhsa_next_free_vgpr 512
  .amdhsa_next_free_sgpr 102
  .amdhsa_accum_offset 256
  .amdhsa_group_segment_fixed_size 0
  .amdhsa_kernarg_size 88
  .amdhsa_user_sgpr_count 2
  .amdhsa_user_sgpr_kernarg_segment_ptr 1
  .amdhsa_system_sgpr_workgroup_id_x 1
.end_amdhsa_kernel""")
    open(path, 'w').write('\n'.join(out) + '\n')

if __name__ == '__main__':
    e = Asm(); kernel(e)
    outs = [a for a in sys.argv[1:] if a.endswith('.s')]
    build1(e, outs[0] if outs else 'v8.s')
```

```python
import sys, math, struct
from asmlib import *

NAME = 'sequential_preLN__mha_block__dense_activation_squared_relu__prompt'
MF = 'v_mfma_f32_32x32x16_bf16'
MH = 'v_mfma_f32_16x16x32_bf16'
SM = 'v_smfmac_f32_32x32x32_bf16'
def f32(x): return '0x%08x' % struct.unpack('<I', struct.pack('<f', x))[0]
QSCALE = math.log2(math.e) / math.sqrt(28.0)

VP, ONE, TTP = 28672, 57344, 57600
WS_O, WS_H, WS_S, WS_H1, WS_WF, WS_FL, WS_ST = 0x600000, 0x800000, 0x9E0000, 0xA40000, 0x1200000, 0x1400000, 0x1500000
WS_F1, WS_F2, HINT = WS_FL + 0x10000, WS_FL + 0x14000, 0x8000
WS_BYTES = 0x1600000
WFP = 144*2048
POLL_MAX = 1 << 18
STAMP = '--stamp' in sys.argv
def knob(name, d):
    for a in sys.argv:
        if a.startswith(name + '='): return int(a.split('=')[1])
    return d
ST_NAMES = ['start p1go p1st s1sig s1done a0 comb end', 'comb s2sig s2done p3end s3done p4end s4done end',
            'p1go p1end p1st s1sig s1win s1done a0 aB', 's2sig s2win s2done p3mf p3st p3end s3done p4a',
            's3done p4a p4mf p4end s4done p5a p5mf p5st', 'a0 a6 a16 a28 a38 aB a58 comb',
            'start p1ld p1w p1go c1 c3 c5 p1end', 's3done h0 h5 h10 h18 h27 p4mf p4end', 's4done g0 g8 g16 g28 g40 p5mf p5st', 's2done o0 o4 o8 o12 p3mf p3st p3end'][knob('st', 0)].split()

for a in sys.argv:
    if a.startswith('names='): ST_NAMES = a[6:].split(',')
def stamp(e, name):
    if STAMP:
        for i, n in enumerate(ST_NAMES):
            if n == name: e(('s_memtime' if '--cyc' in sys.argv and (i or knob('dwg', -1) < 0) else 's_memrealtime') + f' s[{84+2*i}:{85+2*i}]')
def stamp_out(e):
    if not STAMP: return
    if knob('dwg', -1) >= 0:
        stamp(e, 'end')
        e(f'''s_cmp_lg_u32 s2, {knob('dwg', 0)}
s_cbranch_scc1 L_dgx
s_cmp_lg_u32 s16, {knob('dwv', 0)}
s_cbranch_scc1 L_dgx
s_waitcnt lgkmcnt(0)
s_sub_u32 s4, s88, s86
s_mul_i32 s4, s4, {1 if '--cyc' in sys.argv else 10}
s_min_u32 s4, s4, 50000
s_add_u32 s4, s4, 10000
s_mov_b32 s10, 2000000
L_dgl:
s_sub_u32 s10, s10, 1
s_cbranch_scc1 L_dgx
s_memrealtime s[8:9]
s_waitcnt lgkmcnt(0)
s_sub_u32 s8, s8, s84
s_cmp_lt_u32 s8, s4
s_cbranch_scc1 L_dgl
L_dgx:''')
        return
    e('s_waitcnt vmcnt(0)')
    stamp(e, 'end')
    e('s_waitcnt lgkmcnt(0)')
    e(f's_lshl_b32 s3, s2, 2\ns_add_u32 s3, s3, s16\ns_lshl_b32 s3, s3, 6\ns_add_u32 s3, s3, {WS_ST}\nv_mov_b32 v1, 0')
    for i in range(8):
        e(f'v_mov_b32 v0, s{84+2*i}\nbuffer_store_dword v0, v1, s[12:15], s3 offen offset:{4*i}')

def swap23(d, s, t):
    return f'''v_and_b32 v{d}, 0x33, v{s}
v_and_b32 v{t}, 4, v{s}
v_lshl_or_b32 v{d}, v{t}, 1, v{d}
v_lshrrev_b32 v{t}, 1, v{s}
v_and_or_b32 v{d}, v{t}, 4, v{d}'''
def halves_sum(r, t):
    return f'v_mov_b32 v{t}, v{r}\nv_permlane32_swap_b32 v{r}, v{t}\nv_add_f32 v{r}, v{r}, v{t}'
def ln_stats(vs, vq, t, mean, rstd, sig=None):
    s = halves_sum(vs, t) + '\n' + halves_sum(vq, t) + f'''
v_mul_f32 v{mean}, {f32(1/448)}, v{vs}
v_mul_f32 v{t}, v{mean}, v{mean}
v_mov_b32 v{rstd}, {f32(1/448)}
v_fma_f32 v{t}, v{vq}, v{rstd}, -v{t}
v_max_f32 v{t}, 0, v{t}
v_add_f32 v{t}, {f32(1e-5)}, v{t}
v_rsq_f32 v{rstd}, v{t}'''
    if sig is not None: s += f'\nv_mul_f32 v{sig}, v{t}, v{rstd}'
    return s

class Fill:
    def __init__(self, e): self.e = e; self.q = []
    def add(self, text):
        if not isinstance(text, str): self.q.append(text); return
        for l in text.split('\n'):
            l = l.strip()
            if not l: continue
            if l.startswith(('s_cselect', 's_addc')): self.q[-1] += '\n' + l
            else: self.q.append(l)
    def mark(self, tag): self.q.append(('mark', tag))
    def drain(self, k):
        while k > 0 and self.q:
            x = self.q.pop(0)
            if isinstance(x, tuple): continue
            if isinstance(x, str): self.e(x)
            else: x()
            k -= 1
    def need(self, tag):
        while ('mark', tag) in self.q: self.drain(1) if self.q[0] != ('mark', tag) else self.q.pop(0)

def kernel(e):
    vm = VM(e); slow = []
    XR, WQ, CSB, QX, UB = 57344, 114688, 143360, 147456, 155648
    SCR = 114688
    MAP = knob('map', 8); M16 = knob('m16', 1); H1M = knob('h1m', 2)
    Q, O, S, WOF, NM = 16, 48, 112, 160, 144
    def emit(l, tag):
        for x in l:
            if x.startswith(('buffer', 'global')): vm.op(x, tag)
            else: e(x)
    e("""s_getpc_b64 s[80:81]
L_pc0:
s_lshr_b32 s76, s2, 3
v_lshrrev_b32 v10, 4, v0
v_lshl_add_u32 v10, s76, 4, v10
v_min_u32 v10, (L_fallback-L_pc0)/128, v10
v_lshlrev_b32 v10, 7, v10""")
    vm.op('global_load_dword v31, v10, s[80:81]', 'T')
    e("""s_load_dwordx4 s[4:7], s[0:1], 0
s_load_dwordx2 s[12:13], s[0:1], 80""")
    stamp(e, 'start')
    e("""s_cmp_ge_u32 s76, 32
s_cbranch_scc1 L_end
v_lshrrev_b32 v2, 6, v0
v_and_b32 v1, 63, v0
v_readfirstlane_b32 s16, v2
s_and_b32 s51, s2, 7""")
    lg = {2: 1, 4: 2, 8: 3}[MAP]
    ROT = knob('rot', 2)
    rotc = {7: f's_lshr_b32 s48, s76, {5-lg}\ns_lshl1_add_u32 s48, ' + ('s48, s77' if MAP <= 4 else 's77, s48') + '\ns_mul_i32 s77, s48, 37\ns_lshr_b32 s77, s77, 8\ns_mul_i32 s77, s77, 7\ns_sub_u32 s48, s48, s77',
            1: 's_mov_b32 s48, 0', 2: 's_add_u32 s48, s17, s18\ns_and_b32 s48, s48, 1',
            4: 's_add_u32 s48, s17, s18\ns_and_b32 s48, s48, 3\ns_lshl_b32 s48, s48, 1'}[ROT]
    def adv(r, step, it):
        if it == 0: return []
        if ROT == 1 or (ROT == 2 and it > 2): return [f's_add_u32 s{r}, s{r}, {step}']
        if ROT == 2: return [f's_sub_u32 s{r}, {step}, s{r}' if it == 1 else f's_mov_b32 s{r}, {2*step}']
        return [f's_add_u32 s{r}, s{r}, {step}', f's_cmp_lg_u32 s{r}, {7*step}\ns_cselect_b32 s{r}, s{r}, 0']
    e(f"""s_lshr_b32 s17, s51, {lg-1}
s_lshl_b32 s17, s17, {lg}
s_lshr_b32 s77, s76, {5-lg}
s_add_u32 s17, s17, s77        ; qb
s_and_b32 s18, s51, {MAP//2 - 1}
s_lshl_b32 s18, s18, {5-lg}
s_and_b32 s77, s76, {32//MAP - 1}
s_add_u32 s18, s18, s77        ; head
s_lshl2_add_u32 s79, s17, s16
{rotc}
s_mul_i32 s55, s79, {32*896}
s_mul_i32 s54, s16, {16*2688}
s_lshl_b32 s56, s18, 7
s_add_u32 s56, s56, s54
s_add_u32 s56, s56, 896
s_mul_i32 s49, s48, {64*2688}
s_lshl_b32 s48, s48, 7
s_mov_b32 s50, s49
s_mul_i32 s52, s16, 12288
s_add_u32 s52, s52, {XR}
s_lshl_b32 s53, s16, 11
v_lshrrev_b32 v64, 3, v1
v_lshrrev_b32 v65, 4, v1
v_and_b32 v66, 7, v1
v_xor_b32 v67, v65, v66
v_mul_u32_u24 v68, 896, v64
v_lshl_add_u32 v2, v67, 4, v68
v_add_u32 v2, s55, v2
v_xor_b32 v3, 64, v2
v_add_u32 v3, 6144, v3
v_add_u32 v4, 12288, v2
v_add_u32 v5, 12288, v3
v_and_b32 v67, 1, v65
v_lshlrev_b32 v67, 2, v67
v_xor_b32 v69, v67, v66
v_mul_u32_u24 v67, 2688, v64
v_lshl_add_u32 v6, v69, 4, v67
v_add_u32 v6, s56, v6
v_add_u32 v7, {8*2688-1024}, v6
s_mov_b32 s11, 0x00020000
s_mov_b32 m0, s53
s_cmp_lt_u32 s18, 14
s_cselect_b32 s10, {448*2688}, 0
s_waitcnt lgkmcnt(0)
s_mov_b64 s[8:9], s[6:7]
s_mov_b32 s6, {2048*896}
s_mov_b32 s7, s11
s_cbranch_scc0 L_zero
L_zerod:""")
    e_zero = f"""L_zero:
s_mov_b32 s14, {WS_BYTES}
s_mov_b32 s15, 0x00020000
v_mov_b32 v219, 0
s_lshl1_add_u32 s77, s17, s18
s_lshl_b32 s77, s77, 12
s_add_u32 s77, s77, {WS_FL - 14*4096}
v_lshlrev_b32 v70, 4, v0
v_mov_b32 v216, 0
v_mov_b32 v217, 0
v_mov_b32 v218, 0
buffer_store_dwordx4 v[216:219], v70, s[12:15], s77 offen sc1
s_lshl1_add_u32 s77, s17, s18
s_sub_u32 s77, s77, 14
s_mul_i32 s77, s77, {14*2688}
v_lshrrev_b32 v70, 4, v0
v_min_u32 v70, 13, v70
v_mul_u32_u24 v70, 2688, v70
v_bfe_u32 v71, v0, 1, 3
v_min_u32 v71, 6, v71
v_lshl_add_u32 v70, v71, 7, v70
v_add_u32 v70, s77, v70
global_load_dword v31, v70, s[8:9]
s_branch L_zerod"""
    stamp(e, 'p1ld')
    def wload(it):
        return ([f's_add_u32 m0, s53, {it*8192}'] if it else []) + adv(49, 64*2688, it) + \
               [f'buffer_load_dwordx4 v{6+j}, s[8:11], s49 offen offset:{1024*j} lds' for j in range(2)]
    def xload(it):
        return [f's_add_u32 m0, s52, {(it%3)*4096}'] + adv(48, 128, it) + \
               [f'buffer_load_dwordx4 v{2+i}, s[4:7], s48 offen offset:{1024*i} lds' for i in range(4)]
    emit(wload(0) + xload(0), 0)
    QT = knob('qt', 1) and MAP == 8
    if QT:
        e(f'''s_and_b32 s77, s51, 3
s_mul_i32 s77, s77, 7
s_lshr_b32 s77, s77, 2
s_lshl_b32 s77, s77, 7
s_mul_i32 s78, s76, {14*2688}
s_add_u32 s77, s77, s78
v_lshrrev_b32 v70, 4, v0
v_min_u32 v70, 13, v70
v_mul_u32_u24 v70, 2688, v70
v_bfe_u32 v71, v0, 2, 2
v_min_u32 v71, 2, v71
v_lshl_add_u32 v70, v71, 7, v70
v_add_u32 v70, s77, v70''')
        vm.op('global_load_dword v31, v70, s[8:9]', 'T')
        k = e_zero.index('s_lshl1_add_u32 s77, s17, s18\ns_sub_u32'); e_zero = e_zero[:k] + 's_branch L_zerod'
    if knob('pt', 1):
        e(f'''s_lshl4_add_u32 s77, s17, s18
s_lshl2_add_u32 s77, s77, s16
s_mul_i32 s77, s77, {2*896}
v_min_u32 v70, 4, v66
v_lshlrev_b32 v70, 7, v70
v_and_b32 v71, 1, v64
v_mul_u32_u24 v71, 896, v71
v_add_u32 v70, v70, v71
s_mul_i32 s78, s79, {5*2688}
s_lshl_b32 s57, s18, 7
s_add_u32 s78, s78, s57
s_add_u32 s78, s78, {128*2688 + 896}
v_min_u32 v71, 4, v64
v_mul_u32_u24 v71, 2688, v71
s_mov_b64 exec, 0xffff''')
        vm.op('buffer_load_dword v31, v70, s[4:7], s77 offen offset:256', 'T')
        e('s_mov_b64 exec, -1')
        vm.op('buffer_load_dword v31, v71, s[8:11], s78 offen', 'T')
    TLB = knob('tlb', 1)
    if TLB: e('s_min_u32 s77, s76, 10\ns_sub_u32 s31, s76, s77\ns_lshl_b32 s77, s77, 3\ns_load_dwordx2 s[82:83], s[0:1], s77\ns_lshl_b32 s31, s31, 20')
    e(f"""s_load_dwordx2 s[40:41], s[0:1], 16
s_load_dwordx2 s[42:43], s[0:1], 48
s_load_dwordx2 s[60:61], s[0:1], 32
s_load_dwordx2 s[100:101], s[0:1], 72
s_mov_b32 s14, {WS_BYTES}
s_mov_b32 s15, 0x00020000
v_mov_b32 v219, 0""")
    if TLB == 2:
        e('v_mov_b32 v70, s31\ns_waitcnt lgkmcnt(0)'); vm.op('global_load_dword v31, v70, s[82:83]', 'T')
    emit(wload(1) + xload(1), 1)
    e('s_waitcnt lgkmcnt(0)')
    if TLB == 1: e('s_load_dword s26, s[82:83], s31')
    e('s_cmp_lt_u32 s18, 14\ns_cbranch_scc0 L_rdyadd\nL_rdyaddd:')
    e_zero += """
L_rdyadd:
s_waitcnt vmcnt(""" + str(len(vm.seq) - 1 + (not QT)) + """)
s_barrier
s_cmp_lg_u32 s16, 0
s_cbranch_scc1 L_rdyaddd
v_mov_b32 v70, 1
s_mov_b64 exec, 1
global_atomic_add v219, v70, s[100:101] sc1
s_mov_b64 exec, -1
s_branch L_rdyaddd"""
    e("""v_and_b32 v73, 31, v1
v_lshrrev_b32 v71, 1, v73
v_lshrrev_b32 v72, 5, v1
v_xor_b32 v71, v71, v72
v_and_b32 v71, 7, v71
v_lshlrev_b32 v71, 4, v71
v_lshl_add_u32 v71, v73, 7, v71
v_add_u32 v71, s52, v71
s_lshl_b32 s77, s16, 5
v_xor_b32 v9, s77, v71
v_xor_b32 v10, 32, v9
v_xor_b32 v11, 64, v9
v_xor_b32 v12, 0x60, v9
v_bfe_u32 v76, v1, 2, 2
v_lshl_add_u32 v74, v72, 3, v76
v_and_b32 v75, 16, v1
v_lshlrev_b32 v75, 1, v75
v_and_b32 v71, 1, v1
v_lshl_add_u32 v75, v71, 4, v75
v_bfe_u32 v71, v1, 1, 1
v_lshl_add_u32 v75, v71, 3, v75
v_lshl_add_u32 v13, v74, 7, v75
v_bfe_u32 v71, v1, 3, 1
v_lshl_add_u32 v13, v71, 6, v13
v_add_u32 v13, s53, v13""")
    for n in range(1, 8): e(f'v_xor_b32 v{13+n}, {2048*(n >> 1) + 64*(n & 1)}, v13')
    e('v_mov_b32 v25, 0x3f803f80\nv_mov_b32 v26, 0\nv_mov_b32 v27, 0\nv_mov_b32 v28, 0\nv_mov_b32 v29, 0')
    F = Fill(e); park = []
    def prk(dst, src): F.add(f'v_accvgpr_write_b32 a{len(park)}, v{src}'); park.append(dst)
    F.add(f"""s_mov_b32 s36, s8
s_mov_b32 s37, s9
s_mov_b32 s38, {448*2688}
s_mov_b32 s39, 0x00020000
s_and_b32 s28, s18, 1
s_lshr_b32 s77, s18, 1
s_mul_i32 s77, s77, 7
s_mul_i32 s78, s28, 3
s_add_u32 s78, s78, s77
s_lshl4_add_u32 s77, s78, s54
s_lshr_b32 s54, s53, 1
s_add_u32 s54, s54, {WQ}
v_lshrrev_b32 v70, 2, v1
v_mul_u32_u24 v71, 2688, v70
v_and_b32 v77, 3, v1
v_lshl_add_u32 v8, v77, 4, v71
v_add_u32 v8, s77, v8""")
    F.mark('wq')
    F.add(swap23(64, 73, 71))
    F.add(f"""v_lshlrev_b32 v254, 4, v1
v_lshlrev_b32 v71, 4, v64
v_lshl_add_u32 v71, v72, 9, v71
s_lshl_b32 s77, s78, 9
v_add_u32 v71, s77, v71""")
    prk(3, 71)
    F.add(f"""v_mul_u32_u24 v71, 7168, v72
v_lshl_add_u32 v240, v64, 4, v71
v_add_u32 v241, 14336, v240
s_mul_i32 s77, s18, 448
s_add_u32 s77, s77, {VP}
v_add_u32 v66, s77, v240
v_add_u32 v67, s77, v241
v_mov_b32 v78, {WS_BYTES}
v_mov_b32 v71, {ONE}
v_cmp_eq_u32 vcc, 28, v73
v_cndmask_b32 v71, v78, v71, vcc
v_cmp_gt_u32 vcc, 28, v73
v_cndmask_b32 v66, v71, v66, vcc
v_cndmask_b32 v67, v71, v67, vcc""")
    prk(4, 66); prk(248, 67)
    F.add(f"""v_lshlrev_b32 v242, 3, v73
v_add_u32 v242, {CSB}, v242
s_lshl_b32 s77, s16, 8
v_add_u32 v243, s77, v242
s_mul_i32 s58, s79, {TTP}
s_lshl_b32 s57, s18, 12
s_lshl_b32 s77, s18, 10
s_add_u32 s77, s77, {VP - 7*1024}
s_cmp_lt_u32 s18, 7
s_cselect_b32 s57, s57, s77
s_add_u32 s57, s57, s58
s_add_u32 s58, s58, {ONE}
s_cmp_eq_u32 s18, 13
s_cselect_b32 s58, s58, {WS_BYTES}
v_min_u32 v244, 0x70, v254
s_lshl4_add_u32 s3, s79, s18
s_lshl_b32 s3, s3, 11
s_add_u32 s3, s3, {WS_O}
v_lshl_add_u32 v21, v74, 6, v75
v_add_u32 v21, s54, v21
v_xor_b32 v22, 1024, v21
v_xor_b32 v23, 2048, v21
v_xor_b32 v24, 3072, v21
v_mov_b32 v30, 0""")
    for r in (218, 221, 222, 223, 226, 227, 230, 231, 234, 235): F.add(f'v_mov_b32 v{r}, 0')
    for r in range(236, 240): F.add(f'v_mov_b32 v{r}, v25')
    F.add(f"""s_lshl2_add_u32 s76, s2, s16
s_mul_i32 s77, s76, 9363
s_lshr_b32 s77, s77, 16
s_mul_i32 s78, s77, 7
s_sub_u32 s78, s76, s78
s_mul_i32 s56, s78, {WFP}
s_lshl_b32 s76, s77, 11
s_add_u32 s56, s56, s76
s_add_u32 s56, s56, {WS_WF}
s_cmp_lt_u32 s77, 144
s_cselect_b32 s56, s56, {WS_BYTES}
s_lshr_b32 s76, s77, 1
s_mul_i32 s55, s76, 28
s_sub_u32 s55, s55, {56*28}
s_lshl_b32 s76, s76, 5
s_mov_b32 s34, {448*896}
s_mov_b32 s35, 0x00020000
s_cmp_lt_u32 s77, 112
s_cselect_b32 s55, s76, s55
s_cselect_b32 s32, s42, s40
s_cselect_b32 s33, s43, s41
s_cselect_b32 s34, {1792*896}, s34
s_mul_i32 s55, s55, 896
s_lshl_b32 s78, s78, 7
s_add_u32 s55, s55, s78
s_and_b32 s77, s77, 1
s_mul_i32 s77, s77, {64 if M16 else 16*896}
s_add_u32 s55, s55, s77""")
    if M16:
        F.add(f"""v_mul_u32_u24 v250, 896, v70
v_lshl_add_u32 v250, v77, 4, v250
v_add_u32 v251, {16*896 - 1024}, v250
v_lshl_add_u32 v252, v65, 3, v76
v_lshlrev_b32 v252, 6, v252
v_lshl_add_u32 v252, v77, 4, v252
s_add_u32 s77, s53, {UB}
v_add_u32 v252, s77, v252
v_add_u32 v253, 8, v252""")
    else:
        F.add(f"""v_lshl_add_u32 v250, v69, 4, v68
v_add_u32 v251, 6144, v250
v_add_u32 v252, {UB}, v13
v_xor_b32 v253, 64, v252""")
    F.add(f"""s_bfe_u32 s20, s2, 0x40003     ; j
s_lshr_b32 s19, s2, 7
s_lshl1_add_u32 s19, s51, s19  ; rb
s_lshl_b32 s25, s19, 12
s_add_u32 s25, s25, {WS_FL}
s_getreg_b32 s76, hwreg(HW_REG_XCC_ID, 0, 4)
s_lshl_b32 s77, s76, 2
s_lshl_b32 s29, 14, s77
s_lshl_b32 s77, 1, s77
s_cmp_lt_u32 s76, 8
s_cselect_b32 s77, s77, 0
s_cmp_lt_u32 s20, 14
s_cselect_b32 s77, s77, 0
v_lshlrev_b32 v79, 7, v1
s_lshl_b32 s76, s17, 7
s_add_u32 s76, s76, {WS_F1}
v_lshl_add_u32 v255, v79, 4, s76
v_add_u32 v66, {WS_F2 - WS_F1}, v255
s_cmp_eq_u32 s16, 0
s_cselect_b32 s76, 8, 0
v_cmp_gt_u32 vcc, s76, v1
v_cndmask_b32 v255, v78, v255, vcc
v_mov_b32 v67, 1
s_add_u32 s78, s25, {24*128}
v_writelane_b32 v66, s78, 8
v_writelane_b32 v67, s77, 8""")
    prk(14, 66); prk(8, 67)
    F.add(f"""s_and_b32 s21, s20, 1          ; th
s_lshr_b32 s22, s20, 1         ; fb
s_lshl1_add_u32 s23, s19, s21
s_lshr_b32 s76, s16, 1
s_and_b32 s77, s22, {knob('flip', 1)}
s_xor_b32 s76, s76, s77
s_lshl1_add_u32 s23, s23, s76
s_and_b32 s76, s16, 1
s_lshl1_add_u32 s24, s22, s76
s_lshl_b32 s77, s76, {11 if M16 else 10}
v_add_u32 v66, s77, v254
s_lshl_b32 s65, s23, 12
s_lshl3_add_u32 s65, s76, s65
s_lshl_b32 s77, s22, 9
s_add_u32 s65, s65, s77
s_add_u32 s65, s65, {WS_S}
s_mul_i32 s27, s23, {32*896}
s_lshl_b32 s77, s24, 11
s_add_u32 s64, s27, s77
s_add_u32 s64, s64, {WS_H}     ; h tile
s_lshl_b32 s76, s24, 6
s_add_u32 s27, s27, s76""")
    prk(171, 66)
    if M16:
        F.add("""v_and_b32 v66, 15, v1
v_mul_u32_u24 v67, 896, v66
v_lshlrev_b32 v71, 4, v65
v_add_u32 v67, v67, v71
v_lshlrev_b32 v66, 4, v66
v_lshl_add_u32 v66, v65, 9, v66""")
        prk(172, 66)
    else:
        F.add('v_mul_u32_u24 v67, 896, v73\nv_lshlrev_b32 v71, 4, v72\nv_add_u32 v67, v67, v71')
    F.add(f"""v_add_u32 v71, s76, v71
s_lshl_b32 s76, s20, 8
s_lshl_b32 s77, s16, 6
s_add_u32 s77, s77, s76
v_lshl_add_u32 v66, v64, 1, s77""")
    prk(0, 67); prk(160, 71); prk(161, 66)
    F.add(f"""s_mov_b32 s31, s77
s_lshl2_add_u32 s77, s2, s16
s_mul_i32 s77, s77, 1664
s_min_u32 s77, s77, {448*3584 - 1664}
v_min_u32 v249, 12, v70
v_lshlrev_b32 v249, 7, v249""")
    prk(177, 249)
    F.add(f"""
s_add_u32 s82, s60, s77
s_addc_u32 s83, s61, 0
s_mul_i32 s77, s16, {16*3584}
s_add_u32 s77, s77, s76
s_add_u32 s60, s60, s77
s_addc_u32 s61, s61, 0
s_lshl_b32 s59, s16, 12
v_cmp_gt_u32 vcc, 32, v1
s_cmp_eq_u32 s28, 0
s_cselect_b32 s76, -1, 0
v_cndmask_b32 v66, 0, -1, vcc
v_not_b32 v67, v66
v_or_b32 v67, s76, v67
s_not_b32 s76, s76
v_or_b32 v71, s76, v66""")
    prk(6, 66); prk(13, 67); prk(5, 71)
    F.add(f's_add_u32 s76, s53, {QX}\nv_add_u32 v66, s76, v254'); prk(15, 66)
    for s in range(4):
        F.add(f's_xor_b32 s76, s16, {3-s}\ns_mul_i32 s76, s76, 12288\ns_add_u32 s76, s76, {SCR}\nv_add_u32 v66, s76, v254'); prk(9 + s, 66)
    F.add("""v_lshlrev_b32 v66, 2, v65
v_and_b32 v67, 15, v1
v_xor_b32 v66, v66, v67
v_mul_u32_u24 v67, 3584, v65
v_lshl_add_u32 v66, v66, 4, v67""")
    prk(165, 66)
    F.add("""v_lshl_add_u32 v66, v74, 8, v75
v_xor_b32 v67, s16, v76
v_lshl_add_u32 v66, v67, 6, v66""")
    prk(173, 66)
    ST = knob('sm', 0)
    if ST & 2: F.add('v_mov_b32 v66, v78')
    else: F.add(f"""v_add_u32 v66, s64, v79
s_and_b32 s76, s65, 0xffffff80
s_sub_u32 s76, s76, {16*128}
v_add_u32 v67, s76, v79
v_cmp_gt_u32 vcc, 16, v1
v_cndmask_b32 v66, v67, v66, vcc
v_cmp_gt_u32 vcc, 20, v1
v_cndmask_b32 v66, v78, v66, vcc""")
    F.add(f"""s_lshl_b32 s51, s51, 11
s_add_u32 s76, s51, {WS_F2 - 48*128}
v_add_u32 v67, s76, v79
v_cmp_gt_u32 vcc, 48, v1
v_cndmask_b32 v66, v67, v66, vcc
v_writelane_b32 v66, s78, 20
s_add_u32 s51, s51, {WS_F1}
s_bfe_u32 s76, s2, 0x20003
s_lshl2_add_u32 s76, s76, s16
s_lshl_b32 s76, s76, 11
v_and_b32 v67, 0x780, v79
v_add_u32 v71, s76, v67
v_min_u32 v71, L_fallback-L_pc1, v71""")
    prk(241, 66); prk(169, 67); prk(170, 71); prk(240, 79)
    F.add(f"""s_lshl_b32 s76, s17, 12
s_add_u32 s76, s76, {WS_FL}
s_cmp_eq_u32 s16, 0
s_cselect_b32 s76, s76, {WS_BYTES}
v_writelane_b32 v78, s76, 0
v_mul_u32_u24 v66, 12288, v77
v_add_u32 v66, {SCR}, v66
v_lshlrev_b32 v67, 2, v73
v_sub_u32 v67, v67, v254""")
    prk(174, 78); prk(175, 66); prk(176, 67)
    F.add(f"""s_and_b32 s76, s17, {knob('kvm', 1)}
s_lshl1_add_u32 s76, s16, s76
s_mul_i32 s46, s76, {8*TTP}
s_xor_b32 s76, s76, 1
s_mul_i32 s47, s76, {8*TTP}
s_mul_i32 s44, s22, {WFP}
s_add_u32 s44, s44, {WS_WF}
s_cmp_lt_u32 s20, 14
s_cselect_b32 s44, s44, {WS_BYTES}
s_mul_i32 s45, s16, {28*2048}
s_add_u32 s45, s45, s44
s_lshl2_add_u32 s44, s59, s44
s_add_u32 s44, s44, {112*2048} ; Wo fragments of this wave
s_lshl_b32 s62, s23, 15
s_lshl1_add_u32 s62, s59, s62
s_add_u32 s62, s62, {WS_O}
s_xor_b32 s63, s62, 32768
s_lshl_b32 s66, s16, 7
s_add_u32 s66, s66, s25
s_lshl2_add_u32 s76, s19, s16
s_mul_i32 s67, s76, 28672
s_add_u32 s67, s67, {WS_H}
s_lshl_b32 s68, s76, 12
s_add_u32 s68, s68, {WS_S}
s_mul_i32 s28, s76, 114688
s_lshl_b32 s77, s20, 13
s_add_u32 s28, s28, s77
s_add_u32 s28, s28, {WS_H1}
s_add_u32 s72, s28, s53
s_xor_b32 s73, s72, 2048
s_xor_b32 s74, s72, 4096
s_xor_b32 s75, s72, 6144
s_lshl_b32 s69, s21, 8
s_add_u32 s69, s69, s25
s_mul_i32 s76, s16, {28*1024}
s_add_u32 s76, s76, {WS_H1}
s_mul_i32 s70, s23, 114688
s_add_u32 s70, s70, s76
s_xor_b32 s77, s23, 1
s_mul_i32 s71, s77, 114688
s_add_u32 s71, s71, s76
s_mov_b32 s30, 0""")
    F.drain(knob('f0', 400))
    stamp(e, 'p1w')
    ACC, QA, WF, XF = 32, 64, 80, 104
    XM, RM, CF, ON = 216, 220, 224, 236
    def reads(s, ty):
        it, kk = divmod(s, 4); b = s % 3
        l = [f'ds_read_b128 {vr(XF+4*s,4)}, v{9+kk} offset:{(it%3)*4096}']
        if ty != 'l':
            for f in range(2):
                for rd in range(2):
                    l.append(f'ds_read_b64_tr_b16 {vr(WF+8*b+4*f+2*rd,2)}, v{13+2*kk+f} offset:{it*8192 + rd*512}')
        return l
    def xdots(s):
        for r in range(4):
            x = XF + 4*s + r
            e(f'v_dot2c_f32_bf16 v26, v{x}, v25\nv_dot2c_f32_bf16 v27, v{x}, v{x}')
    wq = [[f's_add_u32 m0, s54, {it*4096}'] + adv(50, 64*2688, it) + ['buffer_load_dwordx4 v8, s[36:39], s50 offen lds'] for it in range(7)]
    WQS = [int(c) for c in str(knob('wqs', 0)) if c != '0']
    WQE = knob('wqe', 7)
    early = {c - 1: wq[n] for n, c in enumerate(WQS)}
    unit_dma = [f's_add_u32 m0, s53, {UB}', 'buffer_load_dwordx4 v250, s[32:35], s55 offen lds', 'buffer_load_dwordx4 v251, s[32:35], s55 offen offset:1024 lds']
    rdy = 'global_load_dword v245, v219, s[100:101] sc1'
    def rdycheck(lab):
        e(f"""v_cmp_gt_u32 vcc, 32, v245
v_mov_b32 v31, 1
s_cbranch_vccnz {lab}p
{lab}d:""")
        slow.append(f"""{lab}p:
s_mov_b32 s26, {POLL_MAX}
{lab}l:
global_load_dword v245, v219, s[100:101] sc1
s_sub_u32 s26, s26, 1
s_cbranch_scc1 {lab}d
s_waitcnt vmcnt(0)
v_cmp_gt_u32 vcc, 32, v245
s_cbranch_vccnz {lab}l
s_branch {lab}d""")
    xm_frag = f"""v_cmp_gt_u32 vcc, 32, v1
v_sub_f32 v247, 0, v247
v_cndmask_b32 v247, 0, v247, vcc
v_and_b32 v26, 0xffff0000, v247
v_sub_f32 v27, v247, v26
v_cvt_pk_bf16_f32 v{XM}, v26, v26
v_cvt_pk_bf16_f32 v{XM+1}, v27, 0"""
    e('s_cmp_lt_u32 s18, 7\ns_cbranch_scc1 L_kk\ns_cmp_lt_u32 s18, 14\ns_cbranch_scc0 L_light')
    vm0 = (list(vm.seq), vm.done); q0 = list(F.q)
    def variant(ty, lab):
        if lab: e(f'{lab}:')
        vm.seq, vm.done = list(vm0[0]), vm0[1]; F.q = list(q0)
        per = (len(F.q) + 5) // 6
        lt = wq[len(WQS):WQE]
        vm.wait(0); e('s_barrier')
        stamp(e, 'p1go')
        e('\n'.join(reads(0, ty) + reads(1, ty)))
        emit(wload(2), 2)
        for s in range(28):
            it, kk = divmod(s, 4); b = s % 3
            if kk == 0: stamp(e, f'c{it}')
            x = vr(XF+4*s, 4)
            mf = []
            for f in range(2):
                w = vr(WF+8*b+4*f, 4); a = vr(ACC+16*f, 16); c = a if s else '0'
                mf.append(f'{MF} {a}, {w}, {x}, {c}' if ty == 'k' else f'{MF} {a}, {x}, {w}, {c}')
            rd = reads(s+2, ty) if s < 26 else []
            if s < 18:
                if kk < 2: L = xload(it + 2); tag = it + 2; ld = {0: (L[:-3], L[-3:-2]), 1: (L[-2:-1], L[-1:])}[kk]
                else: L = wload(it + 3); tag = it + 3; ld = {2: ([], L[:-1]), 3: (L[-1:], [])}[kk]
            else:
                tag = 'wq'; F.need('wq')
                ld = ([], lt.pop(0) if lt else [])
            if s < 27: e(f's_waitcnt lgkmcnt({5 if s < 26 else 0})')
            if kk == 2:
                for r in range(4):
                    for f in range(2): e(f'v_dot2c_f32_bf16 v{28+f}, v{WF+8*b+4*f+r}, v25')
                for s2 in range(max(0, s-3), s + (2 if s == 26 else 1)): xdots(s2)
                if s < 26:
                    F.drain(per if s < 22 else 999)
                    vm.wait(it + 1); e('s_barrier')
                else:
                    for f in range(2): e(halves_sum(28+f, 246))
                    e('ds_write_b64 v243, v[28:29]')
            def spread(m, sal, rest):
                e(m)
                if sal and not sal[0].startswith('buffer'): e(sal[0]); sal = sal[1:]
                e('\n'.join(rest)); emit(sal, tag)
            spread(mf[0], ld[0], rd[:3])
            if s == 26: e(ln_stats(26, 27, 246, 247, 248))
            if s == 27: e(xm_frag)
            spread(mf[1], ld[1], rd[3:])
            if it in early and kk == 3: F.need('wq'); emit(early[it], 'wq')
            if s == 17: vm.op(rdy, 'rdy')
            if s == 26:
                e('s_waitcnt lgkmcnt(0)\ns_barrier')
                for w in range(4): e(f'ds_read_b64 {vr(QA+2*w,2)}, v242 offset:{256*w}')
        assert not lt and not F.q
        stamp(e, 'p1end')
        if ty == 'v':
            e(f"""v_cndmask_b32 v246, 0, v248, vcc
v_and_b32 v26, 0xffff0000, v246
v_sub_f32 v27, v246, v26
v_cvt_pk_bf16_f32 v{RM}, v26, v27
{MF} v[88:103], {vr(RM,4)}, {vr(ON,4)}, 0""")
        e('s_waitcnt lgkmcnt(0)')
        for f in range(2):
            e(f"""v_add_f32 v{QA+f}, v{QA+f}, v{QA+2+f}
v_add_f32 v{QA+4+f}, v{QA+4+f}, v{QA+6+f}
v_add_f32 v{QA+f}, v{QA+f}, v{QA+4+f}
v_and_b32 v26, 0xffff0000, v{QA+f}
v_sub_f32 v27, v{QA+f}, v26
v_cvt_pk_bf16_f32 v{CF+4*f}, v26, v27
v_lshrrev_b32 v{CF+4*f+1}, 16, v{QA+f}""")
            a = vr(ACC+16*f, 16); w = vr(CF+4*f, 4)
            e(f'{MF} {a}, {w}, {vr(XM,4)}, {a}' if ty == 'k' else f'{MF} {a}, {vr(XM,4)}, {w}, {a}')
        vm.op(f'buffer_store_dwordx4 {vr(ON,4)}, v244, s[12:15], s58 offen sc1', 'kv')
        for f in range(2):
            A = ACC + 16*f
            for p in range(8):
                if ty == 'k': e(f'v_pk_mul_f32 {vr(A+2*p,2)}, {vr(A+2*p,2)}, v[248:249] op_sel_hi:[1,0]')
                else: e(f'v_pk_mul_f32 {vr(A+2*p,2)}, {vr(A+2*p,2)}, {vr(88+2*p,2)}')
                e(f'v_cvt_pk_bf16_f32 v{A+p}, v{A+2*p}, v{A+2*p+1}')
                if p % 4 == 3:
                    t = p // 4
                    if ty == 'k': vm.op(f'buffer_store_dwordx4 {vr(A+4*t,4)}, v254, s[12:15], s57 offen offset:{2048*f + 1024*t} sc1', 'kv')
                    else: vm.op(f'buffer_store_dwordx4 {vr(A+4*t,4)}, v{240+t}, s[12:15], s57 offen offset:{512*f} sc1', 'kv')
        stamp(e, 'kvst')
        if ty == 'v': e('s_branch L_q')
    def light():
        e(e_zero)
        e('L_light:')
        vm.seq, vm.done = list(vm0[0]), vm0[1]; F.q = list(q0)
        F.drain(9999)
        e(f'v_mov_b32 v255, {WS_BYTES}')
        stamp(e, 'p1go')
        for it in range(7):
            stamp(e, f'c{it}')
            vm.wait(it)
            for kk in range(4): e('\n'.join(reads(4*it + kk, 'l')))
            if it + 2 <= 6: emit(xload(it + 2), it + 2)
            if it == 5:
                for l in wq[:WQE] + [[rdy]]: emit(l, 'wq')
            e('s_waitcnt lgkmcnt(0)')
            for kk in range(4): xdots(4*it + kk)
        e(ln_stats(26, 27, 246, 247, 248)); e(xm_frag)
        stamp(e, 'p1end')
        e('s_waitcnt vmcnt(0)')
        stamp(e, 'kvst')
        e('s_branch L_q')
    variant('v', None); light(); variant('k', 'L_kk')
    e('L_q:')
    stamp(e, 'p1st')
    for l in wq[WQE:]: emit(l, 'wq2')
    UA = knob('ua', 1)
    if not UA: emit(unit_dma, 'wq2')
    vm.wait('rdy'); rdycheck('L_rd')
    if not knob('nh', 2) & 1:
        e(f's_mov_b32 m0, {HINT}'); vm.op('buffer_atomic_add v31, v255, s[12:15], m0 offen sc1', 'sig')
    if UA: emit(unit_dma, 'u')
    WT = knob('wt', 2)
    if WT == 1: vm.op('global_load_dword v244, v249, s[82:83]', 'T')
    stamp(e, 'q0'); vm.wait('wq'); stamp(e, 'q1'); e('s_barrier'); stamp(e, 'q2')
    def qrd(s, dst=None):
        it, kk = divmod(s, 4)
        if dst is None: dst = ACC + 4*(s & 7)
        return [f'ds_read_b64_tr_b16 {vr(dst+2*rd,2)}, v{21+kk} offset:{it*4096 + rd*256}' for rd in range(2)]
    QS = knob('qs', 3)
    assert (3 <= WQE <= 4 and QS <= WQE) or WQE == 7
    def s1signal():
        stamp(e, 'q3'); vm.wait('kv'); stamp(e, 'q4')
        e('s_barrier')
        vm.op('buffer_atomic_add v31, v255, s[12:15], 0 offen sc1', 'sig')
        stamp(e, 's1sig')
    def unit_out(r):
        for f in range(2):
            for rd in range(2): e(f'ds_read_b64_tr_b16 {vr(r+4*f+2*rd,2)}, v{252+f} offset:{rd*(256 if M16 else 512)}')
        e('s_waitcnt lgkmcnt(0)')
        for f in range(2): vm.op(f'buffer_store_dwordx4 {vr(r+4*f,4)}, v2, s[12:15], s56 offen offset:{1024*f} sc1', 'ust')
    lateprk = [n for n, d in enumerate(park) if XF <= d < XF + 112]
    F.add(f'v_mul_f32 v26, {f32(QSCALE)}, v248\nv_mov_b32 v2, v254')
    for n, d in enumerate(park):
        if n not in lateprk: F.add(f'v_accvgpr_read_b32 v{d}, a{n}')
    F.add(f"""v_xor_b32 v249, {3*2048}, v15
v_xor_b32 v250, {2*2048}, v15
v_xor_b32 v251, {1*2048}, v15
v_mov_b32 v{RM}, 0
v_mov_b32 v7, 0xdddd
s_mov_b32 s8, s60
s_mov_b32 s9, s61
s_cmp_lt_u32 s20, 14
s_cselect_b32 s10, {16*3584}, 0
s_mov_b32 s34, 3584
s_mov_b32 s38, 896
s_mov_b32 s42, {2048*896}
s_mov_b32 s43, 0x00020000""")
    late_fill = '\n'.join(f'v_accvgpr_read_b32 v{park[n]}, a{n}' for n in lateprk) + '\n' + \
                '\n'.join(f'v_add_u32 v{165+i}, {i*(4*3584-1024)}, v165' for i in range(1, 4)) + '\n' + \
                '\n'.join(f'v_xor_b32 v{161+b}, {64*b}, v161' for b in range(1, 4))
    cs_fill = f"""v_add_f32 v96, v96, v97
v_add_f32 v98, v98, v99
v_add_f32 v30, v96, v98
v_and_b32 v28, 0xffff0000, v30
v_sub_f32 v29, v30, v28
v_cvt_pk_bf16_f32 v{CF+8}, v28, v29
v_lshrrev_b32 v{CF+9}, 16, v30"""
    def qcs(g0, g1, r0):
        n = g1 - g0
        for g in range(g0, g1): e('\n'.join(qrd(4*g, r0 + 4*(g - g0))))
        if n > 4:
            e(f's_waitcnt lgkmcnt({2*(n-4)})')
            for s in range(4*g0, 4*g0 + 4): e('\n'.join(qrd(s)))
            for r in range(16): e(f'v_dot2c_f32_bf16 v30, v{r0+r}, v25')
            e('s_waitcnt lgkmcnt(8)')
            for r in range(16, 4*n): e(f'v_dot2c_f32_bf16 v30, v{r0+r}, v25')
        else:
            for s in range(4*g0, 4*g0 + 3): e('\n'.join(qrd(s)))
            e('s_waitcnt lgkmcnt(6)')
            e('\n'.join(qrd(4*g0 + 3)))
            for r in range(4*n): e(f'v_dot2c_f32_bf16 v30, v{r0+r}, v25')
        if g1 == 7: e(halves_sum(30, 246) + '\nds_write_b32 v243, v30')
    qcs(0, WQE, 76 if WQE == 7 else 80)
    for g in range(7):
        for k in range(4):
            s = 4*g + k
            e(f's_waitcnt lgkmcnt({2*min(3, 27-s, (4*WQE-1-s) if g < WQE else 3)})')
            e(f'{MF} {vr(QA,16)}, {vr(ACC+4*(s&7),4)}, {vr(XF+4*s,4)}, ' + (vr(QA, 16) if s else '0'))
            if s + 4 < 28 and g + 1 != WQE: e('\n'.join(qrd(s+4)))
            F.drain(3 if g < 6 else 5)
        if g + 1 == QS: s1signal()
        if WQE < 7 and g + 1 == WQE:
            stamp(e, 'q5'); vm.wait('wq2'); e('s_barrier'); stamp(e, 'q6')
            if not UA: unit_out(96)
            qcs(WQE, 7, 80)
        if g == (1 if WQE == 7 else WQE):
            e('s_barrier')
            for w in range(4): e(f'ds_read_b32 v{96+w}, v242 offset:{256*w}')
        if g == (3 if WQE == 7 else 5): F.add(cs_fill)
        if g == 4: F.add(late_fill)
        if WQE == 7 and not UA and g + 1 == knob('us', 6): vm.wait('wq2'); unit_out(80)
    F.drain(999)
    e(f"""{MF} {vr(QA,16)}, {vr(CF+8,4)}, {vr(XM,4)}, {vr(QA,16)}
s_load_dwordx2 s[32:33], s[0:1], 40
s_load_dwordx2 s[36:37], s[0:1], 56
s_load_dwordx2 s[40:41], s[0:1], 64
s_getpc_b64 s[80:81]
L_pc1:""")
    vm.op('global_load_dword v242, v170, s[80:81]', 'T')
    for s in (0, 2, 3): e(f'{MF} {vr(O+16*s,16)}, {vr(RM,4)}, {vr(RM,4)}, 0')
    w1n = [0]
    def w1set():
        it = w1n[0] // 4
        return [f's_add_u32 m0, s59, {it*16384}'] + ([f's_add_u32 s8, s8, {64*3584}\ns_addc_u32 s9, s9, 0'] if it else [])
    def w1l():
        i = w1n[0] % 4
        vm.op(f'buffer_load_dwordx4 v{165+i}, s[8:11], 0 offen offset:{1024*i} lds', 'W1'); w1n[0] += 1
    WB_ = knob('w1b', 0)
    for n in range(WB_):
        if n % 4 == 0: e('\n'.join(w1set()))
        w1l()
    for p in range(8):
        e(f'v_mul_f32 v{QA+2*p}, v26, v{QA+2*p}\nv_mul_f32 v{QA+2*p+1}, v26, v{QA+2*p+1}')
        e(f'v_cvt_pk_bf16_f32 v{Q+24+p}, v{QA+2*p}, v{QA+2*p+1}')
    e(f"""v_and_b32 v{Q+24}, v13, v{Q+24}
v_and_b32 v{Q+25}, v13, v{Q+25}
v_and_b32 v{Q+30}, v5, v{Q+30}
v_and_b32 v{Q+31}, v5, v{Q+31}
ds_write_b128 v15, {vr(Q+24,4)}
ds_write_b128 v15, {vr(Q+28,4)} offset:1024
{MF} {vr(O+16,16)}, {vr(RM,4)}, {vr(RM,4)}, 0
s_add_u32 s76, s51, {HINT}
s_mov_b32 m0, s46""")
    stamp(e, 's1win')
    def poll2(lab, addr, so_hint, so, n, first):
        e(f's_cmp_lg_u32 s16, {knob("pw", 1)}\ns_cbranch_scc1 {lab}wait\ns_mov_b32 s26, {POLL_MAX}')
        for l, x in ((lab + 'hint', so_hint), (lab + 'poll', so)):
            if x: e(f"""{l}:
buffer_load_dword v15, {addr}, s[12:15], {x} sc1
s_sub_u32 s26, s26, 1
s_cbranch_scc1 {lab}done
s_waitcnt vmcnt(0)
v_cmp_gt_u32 vcc, {n}, v15
s_cbranch_vccnz {l}""")
        e(f'{lab}done:')
        k = knob('pp', 2)
        sv = list(vm.seq)
        for f in first[:k]: f()
        vm.seq = sv
        e(f's_waitcnt lgkmcnt(0)\ns_barrier\ns_branch {lab}go\n{lab}wait:\ns_waitcnt lgkmcnt(0)\ns_barrier')
        for f in first[:k]: f()
        e(f'{lab}go:')
        stamp(e, lab[2:] + 'done')
        for f in first[k:]: f()
    NH = knob('nh', 2)
    def kvset(j): return f's_add_u32 m0, s{46 + (j >> 3)}, {(j & 7)*TTP}'
    def kl(j, t): vm.op(f'buffer_load_dwordx4 {ar(16*j+4*t,4)}, v3, s[12:15], m0 offen offset:{1024*t} sc1', f'K{j}')
    def vl(j, t): vm.op(f'buffer_load_dwordx4 {ar(16*j+8+4*t,4)}, v{248 if t else 4}, s[12:15], m0 offen sc1', f'V{j}')
    KV0 = knob('kv0', 3)
    poll2('L_s1', 'v169', None if NH & 1 else 's76 offen', 's51 offen', 14, [lambda: kl(0, 0), lambda: kl(0, 1), lambda: vl(0, 0), lambda: vl(0, 1)])
    e(kvset(1))
    for s in range(3):
        for t in range(2): e(f'ds_read_b128 {vr(Q+8*s+4*t,4)}, v{249+s} offset:{1024*t}')
    for j in range(1, KV0):
        kl(j, 0); kl(j, 1); vl(j, 0); vl(j, 1); e(kvset(j + 1))
    steps = [(s, j) for j in range(16) for s in range(3)] + [(3, j) for j in range(16)]
    N = len(steps)
    def qk(i, t):
        s, j = steps[i]; d = vr(S + 16*(i % 3), 16)
        return f'{MF} {d}, {ar(16*j+4*t,4)}, {vr(Q+8*s+4*t,4)}, ' + ('0' if t == 0 else d)
    def pv(i, t):
        s, j = steps[i]
        return f'{SM} {vr(O+16*s,16)}, {ar(16*j+8+4*t,4)}, {vr(S+16*(i%3)+8*t,8)}, v7'
    free, post = {}, {}
    def P(d, q, f): d.setdefault(q, []).append(f)
    WX = 2048 if M16 else 1024
    def wfrag(kind, n):
        g, r = divmod(n, 4)
        if M16: f, off, reg = r >> 1, (r & 1)*1024, 16*g + 4*r
        else: f, off, reg = r & 1, (r >> 1)*2048, 16*g + 4*r
        dst = vr(WOF + reg, 4) if kind == 'Wo' else ar(reg, 4)
        return (f's_add_u32 m0, s{44 if kind == "Wo" else 45}, {g*4096}', f'buffer_load_dwordx4 {dst}, v{252+f}, s[12:15], m0 offen offset:{off} sc1')
    w2n = [0]
    def w2l(n=1, setm=False):
        for _ in range(n):
            if w2n[0] >= 56: return
            a, b = wfrag('W2', w2n[0])
            if setm or w2n[0] % 4 == 0: e(a); setm = False
            vm.op(b, 'W2'); w2n[0] += 1
    def wfcheck():
        e('v_cmp_gt_u32 vcc, 16, v243\ns_lshr_b32 s26, vcc_hi, 16\ns_cbranch_scc1 L_wf\nL_wfd:')
        slow.append(f"""L_wf:
s_mov_b32 s26, {POLL_MAX}
L_wfp:
buffer_load_dword v243, v241, s[12:15], 0 offen sc1
s_sub_u32 s26, s26, 1
s_cbranch_scc1 L_wfd
s_waitcnt vmcnt(0)
v_cmp_gt_u32 vcc, 16, v243
s_nop 1
s_lshr_b32 s78, vcc_hi, 16
s_cbranch_scc1 L_wfp
s_branch L_wfd""")
    vq = []
    for j in range(KV0, 16):
        for n, (f, t) in enumerate(((kl, 0), (kl, 1), (vl, 0), (vl, 1))):
            vq.append(([kvset(j)] if n == 0 and j > KV0 else [], (lambda f=f, j=j, t=t: f(j, t)), 1))
        if UA and j == knob('uj', 5):
            for f in range(2): vq.append(([], (lambda f=f: vm.op(f'buffer_store_dwordx4 {vr(180+4*f,4)}, v2, s[12:15], s56 offen offset:{1024*f} sc1', 'ust')), 1))
        if WT == 2 and j == knob('wj', 7): vq.append(([], lambda: vm.op('global_load_dword v242, v177, s[82:83]', 'T'), knob('wg', 3)))
    def t0f():
        if knob('t2', 1): e('s_mov_b32 exec_lo, 0xfff00000')
        vm.op('buffer_load_dword v243, v241, s[12:15], 0 offen sc1', 'T0')
        if knob('t2', 1): e('s_mov_b32 exec_lo, -1')
    t0 = ([], t0f, 1 if ST & 2 or knob('t2', 1) else 2)
    for t in range(2):
        if M16: vq.append(([f's_add_u32 m0, s27, {16*896*t}'], (lambda t=t: vm.op(f'buffer_load_dwordx4 {vr(224+4*t,4)}, v0, s[4:7], m0 offen', 'sm')), 1))
        else: vq.append((['s_mov_b32 m0, s27'] if t == 0 else [], (lambda t=t: vm.op(f'buffer_load_dwordx4 {vr(224+4*t,4)}, v0, s[4:7], m0 offen offset:{32*t}', 'sm')), 1))
    tiny = [(lambda t=t: vm.op(f'buffer_load_dwordx4 {vr(232+4*t,4)}, v160, s[36:39], 0 offen offset:{32*t}', 'sm')) for t in range(1 if M16 else 2)]
    tiny += [(lambda b=b: vm.op(f'buffer_load_ushort v{244+b}, v{161+b}, s[32:35], 0 offen', 'sm')) for b in range(4)]
    if knob('ty', 9):
        for n, f in enumerate(tiny): P(post, 4*knob('ty', 9) + 1 + 2*n, f)
    else: vq += [([], f, 1) for f in tiny]
    for n in range(WB_, 28):
        it = n // 4
        vq.append(((([f's_add_u32 s8, s8, {64*3584}\ns_addc_u32 s9, s9, 0'] if it else []) + [f's_add_u32 m0, s59, {it*16384}']) if n % 4 == 0 else [], w1l, 1))
    vq.insert(len(vq) - 12, t0)
    nchk = len(vq)
    for n in range(16):
        a, b = wfrag('Wo', n); vq.append(([a] if n % 4 == 0 else [], (lambda b=b: vm.op(b, 'Wo')), 1))
    if knob('t2', 1): vq.append(([], lambda: vm.op('buffer_load_dword v242, v241, s[12:15], 0 offen sc1', 'T'), 1))
    if H1M: vq.append((['s_mov_b32 m0, s28'], lambda: vm.op('buffer_load_dword v242, v240, s[12:15], m0 offen sc1', 'T'), knob('h1g', 8)))
    TL = knob('tl', 16); tail = []
    if TL: k = len(vq) - bool(H1M) - bool(knob('t2', 1)); tail = vq[k:]; vq = vq[:k]
    hs = 0
    def place(sal, f):
        if sal: P(free, 2*hs - 1, lambda x=sal[-1]: e(x))
        if len(sal) > 1: P(free, 2*hs, lambda x=sal[0]: e(x))
        P(post, 2*hs, f)
    for n, (sal, f, d) in enumerate(vq):
        if n == nchk: P(free, 2*hs - 3, lambda: vm.wait('T0')); P(post, 2*hs - 3, wfcheck)
        place(sal, f); hs += d
    hs = max(hs, 100)
    W2A = max(0, min(knob('w2a', 24), 126 - TL - hs)) // 4 * 4
    for n in range(W2A):
        a, b = wfrag('W2', n); place([a] if n % 4 == 0 else [], (lambda b=b: vm.op(b, 'W2'))); hs += 1
    for sal, f, d in tail: place(sal, f); hs += 1
    w2n[0] = W2A
    P(free, 2, lambda: vm.wait('V0'))
    for j in range(1, 16):
        if j < 6: P(free, 4*(3*j-1) - 2, (lambda j=j: vm.wait(f'V{j}')))
        elif j % 2 == 0: P(free, 4*(3*j-1) - 2, (lambda j=j: vm.wait(f'V{j+1}')))
    def pwr(s, q): return f'ds_write_b128 v{9+s}, {vr(O+16*s+4*q,4)} offset:{s*4096 + q*1024}'
    def prd(s, q): return f'ds_read_b128 {vr(O+16*s+4*q,4)}, v12 offset:{s*4096 + q*1024}'
    for k in range(12): P(post, 4*50 + 1 + 2*k, (lambda k=k: e(pwr(k//4, k % 4))))
    P(free, 4*59, lambda: vm.wait('W1', 'lgkmcnt(0)')); P(free, 4*59 + 2, lambda: e('s_barrier'))
    for k in range(12): P(post, 4*60 + k, (lambda k=k: e(prd(k//4, k % 4))))
    if UA:
        vm.wait('u')
        for f in range(2):
            for rd in range(2): e(f'ds_read_b64_tr_b16 {vr(180+4*f+2*rd,2)}, v{252+f} offset:{rd*(256 if M16 else 512)}')
        e(f'''s_cmp_eq_u32 s16, 0
s_cselect_b32 s26, 9, 0
v_cmp_gt_u32 vcc, s26, v1
v_mov_b32 v13, {WS_BYTES}
v_mov_b32 v178, v8
s_lshl_b32 s76, s24, 6
v_cndmask_b32 v179, v13, v14, vcc
s_waitcnt lgkmcnt(0)''')
        UB_ = knob('ub', 17)
        P(free, 4*UB_, lambda: vm.wait('ust')); P(free, 4*UB_ + 1, lambda: e('s_barrier'))
        P(post, 4*UB_ + 1, lambda: vm.op('buffer_atomic_add v178, v179, s[12:15], 0 offen sc1', 'sig'))
    else:
        e(f'''s_cmp_eq_u32 s16, 0
s_cselect_b32 s26, 9, 0
v_cmp_gt_u32 vcc, s26, v1
v_mov_b32 v13, {WS_BYTES}
s_lshl_b32 s76, s24, 6
v_cndmask_b32 v14, v13, v14, vcc''')
        vm.wait('ust', 'lgkmcnt(0)')
        e('s_barrier')
        vm.op('buffer_atomic_add v8, v14, s[12:15], 0 offen sc1', 'sig')
    sq = []
    if ST & 1: sq += [f's_load_dword s77, s[82:83], {64*k}' for k in range(26)] + ['s_buffer_load_dword s77, s[32:35], s31', 's_buffer_load_dword s77, s[36:39], s76']
    q = 1
    for x in sq:
        while q in free: q += 1
        P(free, q, lambda x=x: e(x)); q += 2
    if ST & 2:
        q = max(q, 4*knob('hs', 26))
        for x in [f's_buffer_load_dword s77, s[12:15], s64 offset:{64*k}' for k in range(32)] + [f's_buffer_load_dword s77, s[12:15], s65 offset:{64*k}' for k in range(8)]:
            while q in free: q += 1
            P(free, q, lambda x=x: e(x)); q += 2
        assert q < 4*52
    e(f"""v_mov_b32 v249, v173
v_add_u32 v254, 0x10000, v173
v_mov_b32 v250, v174
v_mov_b32 v251, v175
v_mov_b32 v5, v176
v_mov_b32 v252, v171
v_xor_b32 v253, {WX}, v171
v_mov_b32 v255, v{172 if M16 else 2}
v_mov_b32 v8, 1
v_mov_b32 v14, 0x3f803f80""")
    vm.wait('K0')
    stamp(e, 'a0')
    e(qk(0, 0)); e(qk(0, 1))
    for i in range(N):
        if i == 48: stamp(e, 'aB')
        if i: stamp(e, f'a{i}')
        b = S + 16*(i % 3)
        mf = [qk(i+1, 0) if i+1 < N else None, qk(i+1, 1) if i+1 < N else None, pv(i-1, 1) if i > 0 else None, pv(i, 0)]
        for sl in range(4):
            if mf[sl]: e(mf[sl])
            for f in free.get(4*i + sl, []) + post.get(4*i + sl, []): f()
            for r in range(4): e(f'v_exp_f32 v{b+4*sl+r}, v{b+4*sl+r}')
    e(pv(N-1, 1))
    if not NH & 2: vm.op('buffer_atomic_add v8, v250, s[12:15], 0 offen offset:128 sc1', 'sig')
    assert w1n[0] == 28
    e('L_combine:')
    stamp(e, 'comb')
    e('s_waitcnt lgkmcnt(0)')
    for r in range(16): e(f'v_add_f32 v{O+r}, v{O+r}, v{O+16+r}')
    for p in range(8): e(f'v_pk_add_f32 {vr(O+2*p,2)}, {vr(O+2*p,2)}, {vr(O+32+2*p,2)}')
    for p in [6, 0, 1, 2, 3, 4, 5, 7]:
        e(f'v_pk_add_f32 {vr(O+2*p,2)}, {vr(O+2*p,2)}, {vr(O+48+2*p,2)}')
        if p == 6: e(f'v_mov_b32 v13, v{O+12}\nv_mov_b32 v15, v{O+12}')
        if p == 1: e('v_permlane32_swap_b32 v13, v15')
        if p == 2: e('v_rcp_f32 v158, v15')
    for p in range(8):
        e(f'v_pk_mul_f32 {vr(O+2*p,2)}, {vr(O+2*p,2)}, v[158:159] op_sel_hi:[1,0]')
        e(f'v_cvt_pk_bf16_f32 v{O+p}, v{O+2*p}, v{O+2*p+1}')
        if p == 3: vm.op(f'buffer_store_dwordx4 {vr(O,4)}, v2, s[12:15], s3 offen sc1', 'Ost')
        if p == 6: e(f'v_and_b32 v{O+6}, v6, v{O+6}')
    e(f'v_and_b32 v{O+7}, v6, v{O+7}')
    vm.op(f'buffer_store_dwordx4 {vr(O+4,4)}, v2, s[12:15], s3 offen offset:1024 sc1', 'Ost')
    if knob('t1', 0): vm.op('buffer_load_dword v242, v241, s[12:15], 0 offen sc1', 'T')
    def csrd(dst, s):
        return [f'ds_read_b64_tr_b16 {vr(dst+2*rd,2)}, v{254 if s >= 16 else 249} offset:{(s & 15)*4096 + rd*1024}' for rd in range(2)]
    for k in range(4): e('\n'.join(csrd(S + 4*k, k)))
    e(f"""v_cmp_nle_f32 vcc, {f32(2.0**-40)}, v15
v_mov_b32 v156, 0
v_mov_b32 v157, 0
s_mov_b64 s[82:83], vcc
v_cmp_nge_f32 vcc, {f32(2.0**40)}, v15
v_add_u32 v15, v12, v5
s_or_b64 vcc, vcc, s[82:83]
s_cselect_b32 s26, 1, 0
s_andn2_b32 s26, s26, s30
v_mov_b32 v13, s26""")
    B0 = knob('b0', 8); CS = knob('cs', 4)
    def csgroup(g):
        if g < 7:
            for k in range(4): e('\n'.join(csrd(S + 16*(g & 1) + 4*k, 4*g + k)))
        if g <= CS: w2l(B0*g//CS - B0*(g-1)//CS)
        e(f's_waitcnt lgkmcnt({8 if g < 7 else 0})')
        for r in range(16): e(f'v_dot2c_f32_bf16 v{156 + (r & 1)}, v{S + 16*((g-1) & 1) + r}, v14')
    for g in range(1, CS + 1): csgroup(g)
    e('ds_write_b32 v12, v13')
    vm.wait('Ost', 'lgkmcnt(0)')
    e("""s_barrier
ds_read_b32 v13, v251
s_waitcnt lgkmcnt(0)
v_cmp_ne_u32 vcc, 0, v13
s_cbranch_vccnz L_fallback""")
    vm.op('buffer_atomic_add v8, v250, s[12:15], 0 offen sc1', 'sig2')
    stamp(e, 's2sig')
    e(f's_cmp_ge_u32 s20, 14\ns_cbranch_scc1 {"L_wb" if H1M == 3 or knob("wb", 0) else "L_end"}')
    B1 = knob('b1', 14)
    for g in range(CS + 1, 8):
        w2l(B1*(g-CS)//(7-CS) - B1*(g-CS-1)//(7-CS))
        csgroup(g)
    ACC3, AF = 80, 16
    WA = 240
    e('v_add_f32 v156, v156, v157')
    e(halves_sum(156, 157))
    e("""ds_write_b32 v15, v156 offset:8192
v_add_u32 v157, v11, v5
v_add_u32 v158, v10, v5
v_add_u32 v159, v9, v5
v_readlane_b32 s31, v243, 20
v_mov_b32 v13, 0
s_mov_b32 m0, s63""")
    for r in range(8): e(f'v_lshlrev_b32 v{ACC3+2*r}, 16, v{224+r}\nv_and_b32 v{ACC3+2*r+1}, 0xffff0000, v{224+r}')
    e('s_cmp_eq_u32 s31, s29\ns_cselect_b32 s31, 1, 0')
    if knob('nolocal', 0): e('s_mov_b32 s31, 0')
    stamp(e, 's2win')
    def aoff(n): return ((n >> 1) & 1)*2048 + (n & 1)*256 if M16 else (n & 3)*1024
    def ol(a, n):
        if n % 4 == 0 and (a, n) != (1, 0): e(f's_add_u32 m0, s{62+a}, {n*1024}')
        vm.op(f'buffer_load_dwordx4 {vr(AF+32*a+4*n,4)}, v255, s[12:15], m0 offen offset:{aoff(n)} sc1', f'O{a}{n}')
    poll2('L_s2', 'v13', None if NH & 2 else 's25 offen offset:128', 's25 offen', 16, [(lambda n=n: ol(1, n)) for n in range(8)])
    e('ds_read_b32 v157, v157 offset:8192\nds_read_b32 v158, v158 offset:8192\nds_read_b32 v159, v159 offset:8192')
    for n in range(4): ol(0, n)
    e(f"""v_and_b32 v3, 0x1f0, v2
s_and_b32 s76, s23, 3
s_lshl_b32 s77, s76, 5
s_add_u32 s77, s77, s24
s_lshl_b32 s77, s77, 2
v_mov_b32 v4, s77
v_min_u32 v5, 13, v1
v_lshlrev_b32 v5, 2, v5
s_lshl_b32 s77, s16, 5
s_add_u32 s77, s77, s20
s_lshl_b32 s77, s77, 2
v_mov_b32 v14, s77
s_mul_i32 s77, s16, 7
s_lshr_b32 s77, s77, 1
v_and_b32 v7, 3, v1
v_add_u32 v7, s77, v7
v_bfe_u32 v13, v1, 2, 1
v_lshl_add_u32 v7, v13, 5, v7
v_lshlrev_b32 v7, 2, v7
v_lshrrev_b32 v250, 2, v2
s_lshl_b32 s77, s16, 8
v_add_u32 v251, s77, v250
{'v_and_b32 v250, 60, v250' if M16 else ''}
s_lshl_b32 s76, s76, 8
v_add_u32 v250, s76, v250
s_waitcnt lgkmcnt(0)""")
    for b in range(4):
        e(f"""v_and_b32 v13, 0xffff0000, v{156+b}
v_sub_f32 v15, v{156+b}, v13
v_cvt_pk_bf16_f32 v15, v13, v15
v_lshrrev_b32 v13, 16, v13
v_lshl_or_b32 v13, v{244+b}, 16, v13
v_accvgpr_write_b32 a{224+4*b}, v15
v_accvgpr_write_b32 a{225+4*b}, v13
v_accvgpr_write_b32 a{226+4*b}, v{244+b}
v_accvgpr_write_b32 a{227+4*b}, 0""")
    for r in range(4 if M16 else 8): e(f'v_lshlrev_b32 v{144+2*r}, 16, v{232+r}\nv_and_b32 v{145+2*r}, 0xffff0000, v{232+r}')
    for b in range(4): e(f'v_xor_b32 v{WA+b}, {64*b}, v249\nv_xor_b32 v{WA+4+b}, {64*b}, v254')
    for n in range(4, 8): ol(0, n)
    def rwr(s, A, q): return f'ds_write_b128 v{12-s}, {vr(A+16*s+4*q,4)} offset:{(3-s)*4096 + q*1024}'
    def rrd(s, A, q): return f'ds_read_b128 {vr(A+16*s+4*q,4)}, v12 offset:{(3-s)*4096 + q*1024}'
    def mm(A, wk, wb, act, a, f, n, init):
        T = A + 16*(2*a + f)
        if not M16:
            return [f'{MF} {vr(T,16)}, {vr(wb+8*n+4*f,4,wk)}, {vr(act,4)}, ' + ('0' if n == 0 and init else vr(T, 16))]
        return [f'{MH} {vr(T+8*(n&1)+4*u,4)}, {vr(wb+16*(n>>1)+8*f+4*u,4,wk)}, {vr(act,4)}, ' + ('0' if n < 2 and init else vr(T+8*(n&1)+4*u, 4)) for u in range(2)]
    def m3(a, f, n): e('\n'.join(mm(ACC3, 'v', WOF, AF+32*a+4*n, a, f, n, (a, f) != (0, 0))))
    B2 = knob('b2', 8)
    for n in range(8):
        vm.wait(f'O1{n}'); stamp(e, f'o{n}'); m3(1, 1, n); m3(1, 0, n)
        if n >= 8 - B2: w2l(1, n == 8 - B2)
    LAG = 2
    for n in range(8):
        vm.wait(f'O0{n}'); stamp(e, f'o{8+n}'); m3(0, 1, n)
        if 1 <= n < 5: e(rwr(3 - (n-1)//2, ACC3, 2*((n-1) % 2)))
        if n >= LAG: m3(0, 0, n - LAG)
        if 1 <= n < 5: e(rwr(3 - (n-1)//2, ACC3, 2*((n-1) % 2) + 1))
        if n == knob('p3b', 5):
            e('s_waitcnt lgkmcnt(0)\ns_barrier')
            for q in range(4): e(rrd(3, ACC3, q) + '\n' + rrd(2, ACC3, q))
    stamp(e, 'p3mf')
    e('s_waitcnt lgkmcnt(0)')
    for n in range(8 - LAG, 8):
        m3(0, 0, n)
        for r in range(4*(n - 8 + LAG), 4*(n - 7 + LAG)): e(f'v_add_f32 v{ACC3+32+r}, v{ACC3+32+r}, v{ACC3+48+r}')
    for q in range(4):
        e(rwr(1, ACC3, q))
        for r in range(8 + 2*q, 10 + 2*q): e(f'v_add_f32 v{ACC3+32+r}, v{ACC3+32+r}, v{ACC3+48+r}')
    for p in range(8): e(f'v_pk_add_f32 {vr(ACC3+2*p,2)}, {vr(ACC3+2*p,2)}, {vr(ACC3+32+2*p,2)}')
    e('s_waitcnt lgkmcnt(0)\ns_barrier')
    for q in range(4): e(rrd(1, ACC3, q))
    HN = ' nt' if knob('hn', 0) else ''
    def dual(lines, tag, lab, loc=''):
        e(f's_cmp_lg_u32 s31, 0\ns_cbranch_scc0 {lab}_s')
        for l in lines: vm.op(l + loc, tag)
        e(f'{lab}_d:')
        slow.append(f'{lab}_s:\ns_nop 1\n' + '\n'.join(l + ' sc1' for l in lines) + f'\ns_nop 1\ns_branch {lab}_d')
    for q in range(4):
        e(f's_waitcnt lgkmcnt({3-q})')
        for p in (2*q, 2*q+1):
            e(f'v_pk_add_f32 {vr(ACC3+2*p,2)}, {vr(ACC3+2*p,2)}, {vr(ACC3+16+2*p,2)}')
            e(f'v_cvt_pk_bf16_f32 v{16+p}, v{ACC3+2*p}, v{ACC3+2*p+1}')
    dual([f'buffer_store_dwordx4 {vr(16+4*t,4)}, v255, s[12:15], s64 offen offset:{(256 if M16 else 1024)*t}' for t in range(2)], 'hst', 'L_h', HN)
    def psum(d, p0, p1):
        A = ACC3 + 2*p0
        e(f'v_pk_mul_f32 {vr(d+2,2)}, {vr(A,2)}, {vr(A,2)}\nv_pk_add_f32 {vr(d,2)}, {vr(A,2)}, {vr(A+2,2)}\nv_pk_fma_f32 {vr(d+2,2)}, {vr(A+2,2)}, {vr(A+2,2)}, {vr(d+2,2)}')
        for p in range(p0 + 2, p1):
            e(f'v_pk_add_f32 {vr(d,2)}, {vr(d,2)}, {vr(ACC3+2*p,2)}\nv_pk_fma_f32 {vr(d+2,2)}, {vr(ACC3+2*p,2)}, {vr(ACC3+2*p,2)}, {vr(d+2,2)}')
        e(f'v_add_f32 v{d}, v{d}, v{d+1}\nv_add_f32 v{d+1}, v{d+2}, v{d+3}')
    if M16:
        psum(24, 0, 4); psum(28, 4, 8)
        e('v_permlane16_swap_b32 v24, v28\nv_permlane16_swap_b32 v25, v29\nv_pk_add_f32 v[24:25], v[24:25], v[28:29]')
    else: psum(24, 0, 8)
    e("""v_mov_b32 v26, v24
v_mov_b32 v27, v25
v_permlane32_swap_b32 v24, v26
v_permlane32_swap_b32 v25, v27
v_pk_add_f32 v[24:25], v[24:25], v[26:27]""")
    dual(['buffer_store_dwordx2 v[24:25], v3, s[12:15], s65 offen'], 'hst', 'L_s', HN)
    stamp(e, 'p3st')
    w2l(knob('b3', 0), True)
    for p in range(8): e(f'v_pk_add_f32 {vr(224+2*p,2)}, {vr(144+2*(p % 4 if M16 else p),2)}, {vr(ACC3+2*p,2)}')
    HF, ACC4, WF, STT = 16, 128, 192, 208
    HP = knob('hp', 8); PER = knob('per', 76)
    SP = knob('sp', 10)
    order = list(range(SP + 1)) + ['s0', 's1', 's2', 's3'] + list(range(SP + 1, 28))
    arr = {x: n*PER for n, x in enumerate(order)}
    mlist = []; nxt = [0, 0, 0, 0]; t = 0
    while min(nxt) < 28:
        c = [b for b in range(4) if nxt[b] < 28 and arr[nxt[b]] <= t]
        if not c: t = min(arr[nxt[b]] for b in range(4) if nxt[b] < 28); continue
        b = min(c, key=lambda b: (b >> 1 and b, nxt[b], b))
        mlist.append((nxt[b], b)); nxt[b] += 1; t += 32
    M = len(mlist)
    last = [max(m for m, (s, b2) in enumerate(mlist) if b2 == b) for b in range(4)]
    firstm = [min(m for m, (s, b2) in enumerate(mlist) if b2 == b) for b in range(4)]
    def w1rd(dst, s, b, k='v'):
        base = WA + b + (4 if s >= 16 else 0); off = (s & 15)*4096
        return [f'ds_read_b64_tr_b16 {vr(dst+2*rd,2,k)}, v{base} offset:{off + rd*1024}' for rd in range(2)]
    def wreg(m): return ('v', WF + 4*(m & 7)) if (m & 7) < 4 else ('a', 240 + 4*((m & 7) - 4))
    def rds(m):
        s, b = mlist[m]; k, r = wreg(m)
        return w1rd(r, s, b, k)
    LD = 6
    for m in range(LD): e('\n'.join(rds(m)))
    e('s_mov_b32 m0, s67')
    vm.wait('hst')
    dual([f'buffer_store_dword v8, v4, s[12:15], s25 offen offset:{16*128}'], 'f3', 'L_f3')
    stamp(e, 'p3end')
    def poll(lab, addr, so):
        e(f"""s_mov_b32 s26, {POLL_MAX}
{lab}:
buffer_load_dword v13, {addr}, s[12:15], {so} sc1
s_sub_u32 s26, s26, 1
s_cbranch_scc1 {lab}_x
s_waitcnt vmcnt(0)
v_cmp_ne_u32 vcc, 1, v13
s_cbranch_vccnz {lab}
{lab}_x:""")
    poll('L_p3', 'v5', f's66 offen offset:{16*128}')
    stamp(e, 's3done')
    def hl(x):
        if isinstance(x, str):
            p = int(x[1]); vm.op(f'buffer_load_dwordx4 {vr(STT+4*p,4)}, v2, s[12:15], s68 offen offset:{1024*p} sc1', 'st'); return
        if x and x % 4 == 0: e(f's_add_u32 m0, s67, {x*1024}')
        vm.op(f'buffer_load_dwordx4 {vr(HF+4*x,4)}, v2, s[12:15], m0 offen offset:{(x&3)*1024} sc1', f'h{x}')
    for x in order[:HP]: hl(x)
    hq = order[HP:]
    XB = STT + 8
    def add_stats():
        F.add(lambda: vm.wait('st'))
        F.add('\n'.join(f'v_and_b32 v{STT+12+r}, v6, v{STT+12+r}' for r in range(4)))
        for k in range(1, 8): F.add(f'v_add_f32 v{STT}, v{STT}, v{STT+2*k}\nv_add_f32 v{STT+1}, v{STT+1}, v{STT+2*k+1}')
        F.add(ln_stats(STT, STT+1, STT+2, STT+3, STT+4, STT+5))
        F.add(f"""v_sub_f32 v{STT+3}, 0, v{STT+3}
v_and_b32 v{STT+3}, v6, v{STT+3}
v_and_b32 v{STT+5}, v6, v{STT+5}
v_and_b32 v{STT+6}, 0xffff0000, v{STT+3}
v_sub_f32 v{STT+7}, v{STT+3}, v{STT+6}
v_cvt_pk_bf16_f32 v{XB}, v{STT+6}, v{STT+6}
v_and_b32 v{STT+6}, 0xffff0000, v{STT+5}
v_cvt_pk_bf16_f32 v{XB+1}, v{STT+7}, v{STT+6}
v_sub_f32 v{STT+7}, v{STT+5}, v{STT+6}
v_cvt_pk_bf16_f32 v{XB+2}, v{STT+7}, 0
v_mov_b32 v{XB+3}, 0
v_mul_f32 v248, v{STT+4}, v{STT+4}""")
        F.mark('st')
    def epi(b):
        A = ACC4 + 16*b
        for p in range(8):
            F.add(f"""v_mul_f32 v{A+2*p}, v{A+2*p}, abs(v{A+2*p})
v_mul_f32 v{A+2*p+1}, v{A+2*p+1}, abs(v{A+2*p+1})
v_cvt_pk_bf16_f32 v{A+p}, v{A+2*p}, v{A+2*p+1}
v_pk_max_i16 v{A+p}, v{A+p}, 0""")
            if p % 4 == 3:
                l = f'buffer_store_dwordx4 {vr(A+4*(p//4),4)}, v2, s[12:15], s{72+b} offen offset:{1024*(p//4)}'
                if H1M == 0: F.add(lambda l=l: vm.op(l + ' sc1', 'h1st'))
                else: F.add(lambda l=l, n=2*b + p//4: dual([l], 'h1st', f'L_e{n}', ' nt' if H1M == 2 else ''))
    mst = min(m for m, (s, b) in enumerate(mlist) if s > SP) + 2
    XK = min(last[0], last[1]) - 1
    w2set = [True]
    for m, (s, b) in enumerate(mlist):
        if m == mst: add_stats()
        if m == last[1] + 1: stamp(e, 'p4a')
        for b2 in range(3):
            if m == last[b2] + 4: epi(b2)
        lg = f'lgkmcnt({2*max(0, min(LD-2, M-2-m))})' if m % 2 == 0 else ''
        vm.wait(f'h{s}', lg)
        if b == 0: stamp(e, f'h{s}')
        acc = vr(ACC4 + 16*b, 16); k, r = wreg(m)
        zero = s == 0
        if s == 0 and m > XK: e(f'{MF} {acc}, {ar(224+4*b,4)}, {vr(XB,4)}, 0'); zero = False
        e(f'{MF} {acc}, {vr(r,4,k)}, {vr(HF+4*s,4)}, ' + ('0' if zero else acc))
        if m % 2 == 1 and hq: hl(hq.pop(0)); n = 2
        elif m % 2 == 1 and w2n[0] < 56: w2l(1, w2set[0]); w2set[0] = False; n = 2
        else: n = 3 if m % 2 else 2
        if m + LD < M: e('\n'.join(rds(m + LD)))
        else: n += 2
        F.drain(n)
        if m == XK:
            F.need('st')
            for b2 in range(4):
                if firstm[b2] <= XK: e(f'{MF} {vr(ACC4+16*b2,16)}, {ar(224+4*b2,4)}, {vr(XB,4)}, {vr(ACC4+16*b2,16)}')
    stamp(e, 'p4mf')
    F.drain(999)
    w2l(56, w2set[0])
    epi(3); F.drain(999)
    e('s_barrier\nds_write_b32 v251, v248\ns_mov_b32 m0, s71')
    vm.wait('h1st')
    dual([f'buffer_store_dword v8, v14, s[12:15], s25 offen offset:{20*128}'], 'f4', 'L_f4')
    stamp(e, 'p4end')
    poll('L_p4', 'v7', f's69 offen offset:{20*128}')
    stamp(e, 's4done')
    GF, ACC5, RING = 16, 144, 32
    GP = knob('gp', 12)
    s5 = [(a, n) for a in (1, 0) for n in range(28)]
    def gl(i):
        a, n = s5[i]
        if i and n % 4 == 0: e(f's_add_u32 m0, s{70+a}, {n*1024}')
        vm.op(f'buffer_load_dwordx4 {vr(GF+4*(i%RING),4)}, v255, s[12:15], m0 offen offset:{aoff(n)} sc1', f'g{i}')
    def m5(a, f, n): e('\n'.join(mm(ACC5, 'a', 0, GF + 4*((n + 28*(1-a)) % RING), a, f, n, True)))
    ON_ = ' nt' if knob('on', 0) else ''
    RS = lambda r: 248 + (2*(r // 8) if M16 else 0)
    G0 = knob('g0', 5); gi = [G0]
    for i in range(G0): gl(i)
    def gnext(i):
        if gi[0] < min(56, i + 1 + GP): gl(gi[0]); gi[0] += 1
    for i, (a, n) in enumerate(s5):
        if i == 28: stamp(e, 'p5a')
        vm.wait(f'g{i}')
        stamp(e, f'g{i}')
        m5(a, 1, n)
        gnext(i)
        if a == 1: m5(1, 0, n); gnext(i)
        elif n >= LAG: m5(0, 0, n - LAG)
        if a == 0:
            if 3 <= n < 11: e(rwr(2 + (n-3)//4, ACC5, (n-3) % 4))
            if n == 13:
                e('s_waitcnt lgkmcnt(0)\ns_barrier\nds_read_b32 v248, v250')
                if M16: e('ds_read_b32 v250, v250 offset:64')
            if 14 <= n < 18: e(rrd(2, ACC5, n-14) + '\n' + rrd(3, ACC5, n-14))
            if n == 19: e('s_waitcnt lgkmcnt(0)')
            if 19 <= n < 27:
                for r in (2*(n-19), 2*(n-19)+1): e(f'v_add_f32 v{ACC5+32+r}, v{ACC5+32+r}, v{ACC5+48+r}\nv_fmac_f32 v{224+r}, v{RS(r)}, v{ACC5+32+r}')
    stamp(e, 'p5mf')
    for n in range(28 - LAG, 28): m5(0, 0, n)
    for q in range(4): e(rwr(1, ACC5, q))
    if M16: e(f's_add_u32 s26, s27, {16*896}')
    for p in range(8): e(f'v_pk_fma_f32 {vr(224+2*p,2)}, {vr(ACC5+2*p,2)}, {vr(RS(2*p),2)}, {vr(224+2*p,2)} op_sel_hi:[1,0,1]')
    e('s_waitcnt lgkmcnt(0)\ns_barrier')
    for q in range(4): e(rrd(1, ACC5, q))
    for t in range(2):
        e(f's_waitcnt lgkmcnt({2-2*t})')
        for p in range(4*t, 4*t+4):
            e(f'v_pk_fma_f32 {vr(224+2*p,2)}, {vr(ACC5+16+2*p,2)}, {vr(RS(2*p),2)}, {vr(224+2*p,2)} op_sel_hi:[1,0,1]')
            e(f'v_cvt_pk_bf16_f32 v{16+p}, v{224+2*p}, v{225+2*p}')
        if M16: e(f'buffer_store_dwordx4 {vr(16+4*t,4)}, v0, s[40:43], s{27-t} offen' + ON_)
        else: e(f'buffer_store_dwordx4 {vr(16+4*t,4)}, v0, s[40:43], s27 offen offset:{32*t}' + ON_)
    stamp(e, 'p5st')
    stamp_out(e)
    e('s_endpgm')
    for x in slow: e(x)
    if H1M == 3 or knob('wb', 0):
        e(f"""L_wb:
s_cmp_lg_u32 s20, 14
s_cbranch_scc1 L_end
s_cmp_lg_u32 s16, 0
s_cbranch_scc1 L_end
v_and_b32 v5, 15, v1
v_min_u32 v5, 13, v5
v_lshrrev_b32 v13, 4, v1
v_lshl_add_u32 v5, v13, 5, v5
v_lshlrev_b32 v5, 2, v5""")
        poll('L_wbp', 'v5', f's25 offen offset:{(20 if H1M == 3 else 16)*128}')
        e('buffer_wbl2 sc1\ns_waitcnt vmcnt(0)\ns_endpgm')
    e('L_fallback:\ns_mov_b32 s30, 1\ns_waitcnt vmcnt(0) lgkmcnt(0)\ns_barrier')
    for j in range(16):
        e(kvset(j)); kl(j, 0); kl(j, 1); vl(j, 0); vl(j, 1)
        if j == 7: e('s_waitcnt vmcnt(0)')
    e('s_waitcnt vmcnt(0)')
    MXB = SCR
    d = vr(S, 16)
    for s in range(4):
        e(f'v_mov_b32 v{128+s}, 0xff800000')
        for j in range(16):
            e(f'{MF} {d}, {ar(16*j,4)}, {vr(Q+8*s,4)}, 0\n{MF} {d}, {ar(16*j+4,4)}, {vr(Q+8*s+4,4)}, {d}')
            for p in range(8): e(f'v_max3_f32 v{128+s}, v{S+2*p}, v{S+2*p+1}, v{128+s}')
        e(f"""v_mov_b32 v13, v{128+s}
v_permlane32_swap_b32 v{128+s}, v13
v_max_f32 v{128+s}, v{128+s}, v13
s_xor_b32 s76, s16, {3-s}
s_lshl_b32 s76, s76, 9
s_add_u32 s76, s76, {MXB}
v_and_b32 v13, 31, v1
v_lshlrev_b32 v13, 4, v13
v_add_u32 v{132+s}, s76, v13
s_lshl_b32 s76, s16, 2
v_add_u32 v13, s76, v{132+s}
ds_write_b32 v13, v{128+s}""")
    e('s_waitcnt lgkmcnt(0)\ns_barrier')
    for s in range(4): e(f'ds_read_b128 {vr(S+4*s,4)}, v{132+s}')
    e('s_waitcnt lgkmcnt(0)\ns_barrier')
    for s in range(4):
        e(f'v_max3_f32 v{128+s}, v{S+4*s}, v{S+1+4*s}, v{S+2+4*s}\nv_max_f32 v{128+s}, v{128+s}, v{S+3+4*s}')
    for s in range(4):
        for r in range(16): e(f'v_sub_f32 v{NM+r}, 0, v{128+s}\nv_mov_b32 v{O+16*s+r}, 0')
        for j in range(16):
            e(f'{MF} {d}, {ar(16*j,4)}, {vr(Q+8*s,4)}, {vr(NM,16)}\n{MF} {d}, {ar(16*j+4,4)}, {vr(Q+8*s+4,4)}, {d}')
            for r in range(16): e(f'v_exp_f32 v{S+r}, v{S+r}')
            for t in range(2): e(f'{SM} {vr(O+16*s,16)}, {ar(16*j+8+4*t,4)}, {vr(S+8*t,8)}, v7')
            e('s_nop 7')
        e('s_nop 7')
    for k in range(12): e(pwr(k//4, k % 4))
    for n in range(W2A):
        a, b = wfrag('W2', n); e(a + '\n' + b)
    e('s_waitcnt vmcnt(0) lgkmcnt(0)\ns_barrier')
    for k in range(12): e(prd(k//4, k % 4))
    e('s_branch L_combine')
    e('L_end:')

def build1(e, path):
    head = open(f'cdna_kernels/{NAME}.s.ref').read().split('\n')
    name = NAME + '_kernel'
    out = head[:12] + (['; stamps: ' + ' '.join(ST_NAMES)] if STAMP else []) + ['; @launch grid=(256,1,1) block=(256,1,1) lds=163840', '.amdgcn_target "amdgcn-amd-amdhsa--gfx950"\n.text']
    e.fix('-v' in sys.argv)
    out.append(f'.globl {name}\n' + ('.p2align 12\n' if knob('al', 1) else '') + f'.p2align 8\n.type {name},@function\n{name}:')
    out.append(e.text() + '    s_endpgm')
    out.append(f""".section .rodata,"a"
.p2align 6
.amdhsa_kernel {name}
  .amdhsa_next_free_vgpr 512
  .amdhsa_next_free_sgpr 102
  .amdhsa_accum_offset 256
  .amdhsa_group_segment_fixed_size 0
  .amdhsa_kernarg_size 88
  .amdhsa_user_sgpr_count 2
  .amdhsa_user_sgpr_kernarg_segment_ptr 1
  .amdhsa_system_sgpr_workgroup_id_x 1
.end_amdhsa_kernel""")
    open(path, 'w').write('\n'.join(out) + '\n')

if __name__ == '__main__':
    e = Asm(); kernel(e)
    outs = [a for a in sys.argv[1:] if a.endswith('.s')]
    build1(e, outs[0] if outs else 'v8.s')
```

```python
import sys, math, struct
from asmlib import *

NAME = 'sequential_preLN__mha_block__dense_activation_squared_relu__prompt'
MF = 'v_mfma_f32_32x32x16_bf16'
MH = 'v_mfma_f32_16x16x32_bf16'
SM = 'v_smfmac_f32_32x32x32_bf16'
def f32(x): return '0x%08x' % struct.unpack('<I', struct.pack('<f', x))[0]
QSCALE = math.log2(math.e) / math.sqrt(28.0)

VP, ONE, TTP = 28672, 57344, 57600
WS_O, WS_H, WS_S, WS_H1, WS_WF, WS_FL, WS_ST = 0x600000, 0x800000, 0x9E0000, 0xA40000, 0x1200000, 0x1400000, 0x1500000
WS_F1, WS_F2, HINT = WS_FL + 0x10000, WS_FL + 0x14000, 0x8000
WS_BYTES = 0x1600000
WFP = 144*2048
POLL_MAX = 1 << 18
STAMP = '--stamp' in sys.argv
def knob(name, d):
    for a in sys.argv:
        if a.startswith(name + '='): return int(a.split('=')[1])
    return d
ST_NAMES = ['start p1go p1st s1sig s1done a0 comb end', 'comb s2sig s2done p3end s3done p4end s4done end',
            'p1go p1end p1st s1sig s1win s1done a0 aB', 's2sig s2win s2done p3mf p3st p3end s3done p4a',
            's3done p4a p4mf p4end s4done p5a p5mf p5st', 'a0 a6 a16 a28 a38 aB a58 comb',
            'start p1ld p1w p1go c1 c3 c5 p1end', 's3done h0 h5 h10 h18 h27 p4mf p4end', 's4done g0 g8 g16 g28 g40 p5mf p5st', 's2done o0 o4 o8 o12 p3mf p3st p3end'][knob('st', 0)].split()

for a in sys.argv:
    if a.startswith('names='): ST_NAMES = a[6:].split(',')
def stamp(e, name):
    if STAMP:
        for i, n in enumerate(ST_NAMES):
            if n == name: e(('s_memtime' if '--cyc' in sys.argv and (i or knob('dwg', -1) < 0) else 's_memrealtime') + f' s[{84+2*i}:{85+2*i}]')
def stamp_out(e):
    if not STAMP: return
    if knob('dwg', -1) >= 0:
        stamp(e, 'end')
        e(f'''s_cmp_lg_u32 s2, {knob('dwg', 0)}
s_cbranch_scc1 L_dgx
s_cmp_lg_u32 s16, {knob('dwv', 0)}
s_cbranch_scc1 L_dgx
s_waitcnt lgkmcnt(0)
s_sub_u32 s4, s88, s86
s_mul_i32 s4, s4, {1 if '--cyc' in sys.argv else 10}
s_min_u32 s4, s4, 50000
s_add_u32 s4, s4, 10000
s_mov_b32 s10, 2000000
L_dgl:
s_sub_u32 s10, s10, 1
s_cbranch_scc1 L_dgx
s_memrealtime s[8:9]
s_waitcnt lgkmcnt(0)
s_sub_u32 s8, s8, s84
s_cmp_lt_u32 s8, s4
s_cbranch_scc1 L_dgl
L_dgx:''')
        return
    e('s_waitcnt vmcnt(0)')
    stamp(e, 'end')
    e('s_waitcnt lgkmcnt(0)')
    e(f's_lshl_b32 s3, s2, 2\ns_add_u32 s3, s3, s16\ns_lshl_b32 s3, s3, 6\ns_add_u32 s3, s3, {WS_ST}\nv_mov_b32 v1, 0')
    for i in range(8):
        e(f'v_mov_b32 v0, s{84+2*i}\nbuffer_store_dword v0, v1, s[12:15], s3 offen offset:{4*i}')

def swap23(d, s, t):
    return f'''v_and_b32 v{d}, 0x33, v{s}
v_and_b32 v{t}, 4, v{s}
v_lshl_or_b32 v{d}, v{t}, 1, v{d}
v_lshrrev_b32 v{t}, 1, v{s}
v_and_or_b32 v{d}, v{t}, 4, v{d}'''
def halves_sum(r, t):
    return f'v_mov_b32 v{t}, v{r}\nv_permlane32_swap_b32 v{r}, v{t}\nv_add_f32 v{r}, v{r}, v{t}'
def ln_stats(vs, vq, t, mean, rstd, sig=None):
    s = halves_sum(vs, t) + '\n' + halves_sum(vq, t) + f'''
v_mul_f32 v{mean}, {f32(1/448)}, v{vs}
v_mul_f32 v{t}, v{mean}, v{mean}
v_mov_b32 v{rstd}, {f32(1/448)}
v_fma_f32 v{t}, v{vq}, v{rstd}, -v{t}
v_max_f32 v{t}, 0, v{t}
v_add_f32 v{t}, {f32(1e-5)}, v{t}
v_rsq_f32 v{rstd}, v{t}'''
    if sig is not None: s += f'\nv_mul_f32 v{sig}, v{t}, v{rstd}'
    return s

class Fill:
    def __init__(self, e): self.e = e; self.q = []
    def add(self, text):
        if not isinstance(text, str): self.q.append(text); return
        for l in text.split('\n'):
            l = l.strip()
            if not l: continue
            if l.startswith(('s_cselect', 's_addc')): self.q[-1] += '\n' + l
            else: self.q.append(l)
    def mark(self, tag): self.q.append(('mark', tag))
    def drain(self, k):
        while k > 0 and self.q:
            x = self.q.pop(0)
            if isinstance(x, tuple): continue
            if isinstance(x, str): self.e(x)
            else: x()
            k -= 1
    def need(self, tag):
        while ('mark', tag) in self.q: self.drain(1) if self.q[0] != ('mark', tag) else self.q.pop(0)

def kernel(e):
    vm = VM(e); slow = []
    XR, WQ, CSB, QX, UB = 57344, 114688, 143360, 147456, 155648
    SCR = 114688
    MAP = knob('map', 8); M16 = knob('m16', 1); H1M = knob('h1m', 2)
    Q, O, S, WOF, NM = 16, 48, 112, 160, 144
    def emit(l, tag):
        for x in l:
            if x.startswith(('buffer', 'global')): vm.op(x, tag)
            else: e(x)
    e("""s_getpc_b64 s[80:81]
L_pc0:
s_lshr_b32 s76, s2, 3
v_lshrrev_b32 v10, 4, v0
v_lshl_add_u32 v10, s76, 4, v10
v_min_u32 v10, (L_fallback-L_pc0)/128, v10
v_lshlrev_b32 v10, 7, v10""")
    vm.op('global_load_dword v31, v10, s[80:81]', 'T')
    e("""s_load_dwordx4 s[4:7], s[0:1], 0
s_load_dwordx2 s[12:13], s[0:1], 80""")
    stamp(e, 'start')
    e("""s_cmp_ge_u32 s76, 32
s_cbranch_scc1 L_end
v_lshrrev_b32 v2, 6, v0
v_and_b32 v1, 63, v0
v_readfirstlane_b32 s16, v2
s_and_b32 s51, s2, 7""")
    lg = {2: 1, 4: 2, 8: 3}[MAP]
    ROT = knob('rot', 2)
    WSB = knob('wsb', 0) << 20
    wsb = f's_add_u32 s12, s12, {WSB}\ns_addc_u32 s13, s13, 0' if WSB else ''
    rotc = {7: f's_lshr_b32 s48, s76, {5-lg}\ns_lshl1_add_u32 s48, ' + ('s48, s77' if MAP <= 4 else 's77, s48') + '\ns_mul_i32 s77, s48, 37\ns_lshr_b32 s77, s77, 8\ns_mul_i32 s77, s77, 7\ns_sub_u32 s48, s48, s77',
            1: 's_mov_b32 s48, 0', 2: 's_add_u32 s48, s17, s18\ns_and_b32 s48, s48, 1',
            4: 's_add_u32 s48, s17, s18\ns_and_b32 s48, s48, 3\ns_lshl_b32 s48, s48, 1'}[ROT]
    def adv(r, step, it):
        if it == 0: return []
        if ROT == 1 or (ROT == 2 and it > 2): return [f's_add_u32 s{r}, s{r}, {step}']
        if ROT == 2: return [f's_sub_u32 s{r}, {step}, s{r}' if it == 1 else f's_mov_b32 s{r}, {2*step}']
        return [f's_add_u32 s{r}, s{r}, {step}', f's_cmp_lg_u32 s{r}, {7*step}\ns_cselect_b32 s{r}, s{r}, 0']
    e(f"""s_lshr_b32 s17, s51, {lg-1}
s_lshl_b32 s17, s17, {lg}
s_lshr_b32 s77, s76, {5-lg}
s_add_u32 s17, s17, s77        ; qb
s_and_b32 s18, s51, {MAP//2 - 1}
s_lshl_b32 s18, s18, {5-lg}
s_and_b32 s77, s76, {32//MAP - 1}
s_add_u32 s18, s18, s77        ; head
s_lshl2_add_u32 s79, s17, s16
{rotc}
s_mul_i32 s55, s79, {32*896}
s_mul_i32 s54, s16, {16*2688}
s_lshl_b32 s56, s18, 7
s_add_u32 s56, s56, s54
s_add_u32 s56, s56, 896
s_mul_i32 s49, s48, {64*2688}
s_lshl_b32 s48, s48, 7
s_mov_b32 s50, s49
s_mul_i32 s52, s16, 12288
s_add_u32 s52, s52, {XR}
s_lshl_b32 s53, s16, 11
v_lshrrev_b32 v64, 3, v1
v_lshrrev_b32 v65, 4, v1
v_and_b32 v66, 7, v1
v_xor_b32 v67, v65, v66
v_mul_u32_u24 v68, 896, v64
v_lshl_add_u32 v2, v67, 4, v68
v_add_u32 v2, s55, v2
v_xor_b32 v3, 64, v2
v_add_u32 v3, 6144, v3
v_add_u32 v4, 12288, v2
v_add_u32 v5, 12288, v3
v_and_b32 v67, 1, v65
v_lshlrev_b32 v67, 2, v67
v_xor_b32 v69, v67, v66
v_mul_u32_u24 v67, 2688, v64
v_lshl_add_u32 v6, v69, 4, v67
v_add_u32 v6, s56, v6
v_add_u32 v7, {8*2688-1024}, v6
s_mov_b32 s11, 0x00020000
s_mov_b32 m0, s53
s_waitcnt lgkmcnt(0)
{wsb}
s_cmp_lt_u32 s18, 14
s_cselect_b32 s10, {448*2688}, 0
s_mov_b64 s[8:9], s[6:7]
s_mov_b32 s6, {2048*896}
s_mov_b32 s7, s11
s_cbranch_scc0 L_zero
L_zerod:""")
    e_zero = f"""L_zero:
s_mov_b32 s14, {WS_BYTES}
s_mov_b32 s15, 0x00020000
v_mov_b32 v219, 0
s_lshl1_add_u32 s77, s17, s18
s_lshl_b32 s77, s77, 12
s_add_u32 s77, s77, {WS_FL - 14*4096}
v_lshlrev_b32 v70, 4, v0
v_mov_b32 v216, 0
v_mov_b32 v217, 0
v_mov_b32 v218, 0
buffer_store_dwordx4 v[216:219], v70, s[12:15], s77 offen sc1
s_lshl1_add_u32 s77, s17, s18
s_sub_u32 s77, s77, 14
s_mul_i32 s77, s77, {14*2688}
v_lshrrev_b32 v70, 4, v0
v_min_u32 v70, 13, v70
v_mul_u32_u24 v70, 2688, v70
v_bfe_u32 v71, v0, 1, 3
v_min_u32 v71, 6, v71
v_lshl_add_u32 v70, v71, 7, v70
v_add_u32 v70, s77, v70
global_load_dword v31, v70, s[8:9]
s_branch L_zerod"""
    stamp(e, 'p1ld')
    def wload(it):
        return ([f's_add_u32 m0, s53, {it*8192}'] if it else []) + adv(49, 64*2688, it) + \
               [f'buffer_load_dwordx4 v{6+j}, s[8:11], s49 offen offset:{1024*j} lds' for j in range(2)]
    def xload(it):
        return [f's_add_u32 m0, s52, {(it%3)*4096}'] + adv(48, 128, it) + \
               [f'buffer_load_dwordx4 v{2+i}, s[4:7], s48 offen offset:{1024*i} lds' for i in range(4)]
    emit(wload(0) + xload(0), 0)
    QT = knob('qt', 1) and MAP == 8
    if QT:
        e(f'''s_and_b32 s77, s51, 3
s_mul_i32 s77, s77, 7
s_lshr_b32 s77, s77, 2
s_lshl_b32 s77, s77, 7
s_mul_i32 s78, s76, {14*2688}
s_add_u32 s77, s77, s78
v_lshrrev_b32 v70, 4, v0
v_min_u32 v70, 13, v70
v_mul_u32_u24 v70, 2688, v70
v_bfe_u32 v71, v0, 2, 2
v_min_u32 v71, 2, v71
v_lshl_add_u32 v70, v71, 7, v70
v_add_u32 v70, s77, v70''')
        vm.op('global_load_dword v31, v70, s[8:9]', 'T')
        k = e_zero.index('s_lshl1_add_u32 s77, s17, s18\ns_sub_u32'); e_zero = e_zero[:k] + 's_branch L_zerod'
    if knob('pt', 1):
        e(f'''s_lshl4_add_u32 s77, s17, s18
s_lshl2_add_u32 s77, s77, s16
s_mul_i32 s77, s77, {2*896}
v_min_u32 v70, 4, v66
v_lshlrev_b32 v70, 7, v70
v_and_b32 v71, 1, v64
v_mul_u32_u24 v71, 896, v71
v_add_u32 v70, v70, v71
s_mul_i32 s78, s79, {5*2688}
s_lshl_b32 s57, s18, 7
s_add_u32 s78, s78, s57
s_add_u32 s78, s78, {128*2688 + 896}
v_min_u32 v71, 4, v64
v_mul_u32_u24 v71, 2688, v71
s_mov_b64 exec, 0xffff''')
        vm.op('buffer_load_dword v31, v70, s[4:7], s77 offen offset:256', 'T')
        e('s_mov_b64 exec, -1')
        vm.op('buffer_load_dword v31, v71, s[8:11], s78 offen', 'T')
    TLB = knob('tlb', 2)
    if TLB: e('s_min_u32 s77, s76, 10\ns_sub_u32 s31, s76, s77\ns_lshl_b32 s77, s77, 3\ns_load_dwordx2 s[82:83], s[0:1], s77\ns_lshl_b32 s31, s31, 20')
    if TLB and WSB: e(f's_add_u32 s78, s31, {WSB}\ns_cmp_lt_u32 s76, 10\ns_cselect_b32 s31, 0, s78')
    e(f"""s_load_dwordx2 s[40:41], s[0:1], 16
s_load_dwordx2 s[42:43], s[0:1], 48
s_load_dwordx2 s[60:61], s[0:1], 32
s_load_dwordx2 s[100:101], s[0:1], 72
s_mov_b32 s14, {WS_BYTES}
s_mov_b32 s15, 0x00020000
v_mov_b32 v219, 0""")
    if TLB == 2:
        e('v_mov_b32 v70, s31\ns_waitcnt lgkmcnt(0)'); vm.op('global_load_dword v31, v70, s[82:83]', 'T')
    emit(wload(1) + xload(1), 1)
    e('s_waitcnt lgkmcnt(0)')
    if TLB == 1: e('s_load_dword s26, s[82:83], s31')
    e('s_cmp_lt_u32 s18, 14\ns_cbranch_scc0 L_rdyadd\nL_rdyaddd:')
    e_zero += """
L_rdyadd:
s_waitcnt vmcnt(""" + str(len(vm.seq) - 1 + (not QT)) + """)
s_barrier
s_cmp_lg_u32 s16, 0
s_cbranch_scc1 L_rdyaddd
v_mov_b32 v70, 1
s_mov_b64 exec, 1
global_atomic_add v219, v70, s[100:101] sc1
s_mov_b64 exec, -1
s_branch L_rdyaddd"""
    e("""v_and_b32 v73, 31, v1
v_lshrrev_b32 v71, 1, v73
v_lshrrev_b32 v72, 5, v1
v_xor_b32 v71, v71, v72
v_and_b32 v71, 7, v71
v_lshlrev_b32 v71, 4, v71
v_lshl_add_u32 v71, v73, 7, v71
v_add_u32 v71, s52, v71
s_lshl_b32 s77, s16, 5
v_xor_b32 v9, s77, v71
v_xor_b32 v10, 32, v9
v_xor_b32 v11, 64, v9
v_xor_b32 v12, 0x60, v9
v_bfe_u32 v76, v1, 2, 2
v_lshl_add_u32 v74, v72, 3, v76
v_and_b32 v75, 16, v1
v_lshlrev_b32 v75, 1, v75
v_and_b32 v71, 1, v1
v_lshl_add_u32 v75, v71, 4, v75
v_bfe_u32 v71, v1, 1, 1
v_lshl_add_u32 v75, v71, 3, v75
v_lshl_add_u32 v13, v74, 7, v75
v_bfe_u32 v71, v1, 3, 1
v_lshl_add_u32 v13, v71, 6, v13
v_add_u32 v13, s53, v13""")
    for n in range(1, 8): e(f'v_xor_b32 v{13+n}, {2048*(n >> 1) + 64*(n & 1)}, v13')
    e('v_mov_b32 v25, 0x3f803f80\nv_mov_b32 v26, 0\nv_mov_b32 v27, 0\nv_mov_b32 v28, 0\nv_mov_b32 v29, 0')
    F = Fill(e); park = []
    def prk(dst, src): F.add(f'v_accvgpr_write_b32 a{len(park)}, v{src}'); park.append(dst)
    F.add(f"""s_mov_b32 s36, s8
s_mov_b32 s37, s9
s_mov_b32 s38, {448*2688}
s_mov_b32 s39, 0x00020000
s_and_b32 s28, s18, 1
s_lshr_b32 s77, s18, 1
s_mul_i32 s77, s77, 7
s_mul_i32 s78, s28, 3
s_add_u32 s78, s78, s77
s_lshl4_add_u32 s77, s78, s54
s_lshr_b32 s54, s53, 1
s_add_u32 s54, s54, {WQ}
v_lshrrev_b32 v70, 2, v1
v_mul_u32_u24 v71, 2688, v70
v_and_b32 v77, 3, v1
v_lshl_add_u32 v8, v77, 4, v71
v_add_u32 v8, s77, v8""")
    F.mark('wq')
    F.add(swap23(64, 73, 71))
    F.add(f"""v_lshlrev_b32 v254, 4, v1
v_lshlrev_b32 v71, 4, v64
v_lshl_add_u32 v71, v72, 9, v71
s_lshl_b32 s77, s78, 9
v_add_u32 v71, s77, v71""")
    prk(3, 71)
    F.add(f"""v_mul_u32_u24 v71, 7168, v72
v_lshl_add_u32 v240, v64, 4, v71
v_add_u32 v241, 14336, v240
s_mul_i32 s77, s18, 448
s_add_u32 s77, s77, {VP}
v_add_u32 v66, s77, v240
v_add_u32 v67, s77, v241
v_mov_b32 v78, {WS_BYTES}
v_mov_b32 v71, {ONE}
v_cmp_eq_u32 vcc, 28, v73
v_cndmask_b32 v71, v78, v71, vcc
v_cmp_gt_u32 vcc, 28, v73
v_cndmask_b32 v66, v71, v66, vcc
v_cndmask_b32 v67, v71, v67, vcc""")
    prk(4, 66); prk(248, 67)
    F.add(f"""v_lshlrev_b32 v242, 3, v73
v_add_u32 v242, {CSB}, v242
s_lshl_b32 s77, s16, 8
v_add_u32 v243, s77, v242
s_mul_i32 s58, s79, {TTP}
s_lshl_b32 s57, s18, 12
s_lshl_b32 s77, s18, 10
s_add_u32 s77, s77, {VP - 7*1024}
s_cmp_lt_u32 s18, 7
s_cselect_b32 s57, s57, s77
s_add_u32 s57, s57, s58
s_add_u32 s58, s58, {ONE}
s_cmp_eq_u32 s18, 13
s_cselect_b32 s58, s58, {WS_BYTES}
v_min_u32 v244, 0x70, v254
s_lshl4_add_u32 s3, s79, s18
s_lshl_b32 s3, s3, 11
s_add_u32 s3, s3, {WS_O}
v_lshl_add_u32 v21, v74, 6, v75
v_add_u32 v21, s54, v21
v_xor_b32 v22, 1024, v21
v_xor_b32 v23, 2048, v21
v_xor_b32 v24, 3072, v21
v_mov_b32 v30, 0""")
    for r in (218, 221, 222, 223, 226, 227, 230, 231, 234, 235): F.add(f'v_mov_b32 v{r}, 0')
    for r in range(236, 240): F.add(f'v_mov_b32 v{r}, v25')
    F.add(f"""s_lshl2_add_u32 s76, s2, s16
s_mul_i32 s77, s76, 9363
s_lshr_b32 s77, s77, 16
s_mul_i32 s78, s77, 7
s_sub_u32 s78, s76, s78
s_mul_i32 s56, s78, {WFP}
s_lshl_b32 s76, s77, 11
s_add_u32 s56, s56, s76
s_add_u32 s56, s56, {WS_WF}
s_cmp_lt_u32 s77, 144
s_cselect_b32 s56, s56, {WS_BYTES}
s_lshr_b32 s76, s77, 1
s_mul_i32 s55, s76, 28
s_sub_u32 s55, s55, {56*28}
s_lshl_b32 s76, s76, 5
s_mov_b32 s34, {448*896}
s_mov_b32 s35, 0x00020000
s_cmp_lt_u32 s77, 112
s_cselect_b32 s55, s76, s55
s_cselect_b32 s32, s42, s40
s_cselect_b32 s33, s43, s41
s_cselect_b32 s34, {1792*896}, s34
s_mul_i32 s55, s55, 896
s_lshl_b32 s78, s78, 7
s_add_u32 s55, s55, s78
s_and_b32 s77, s77, 1
s_mul_i32 s77, s77, {64 if M16 else 16*896}
s_add_u32 s55, s55, s77""")
    if M16:
        F.add(f"""v_mul_u32_u24 v250, 896, v70
v_lshl_add_u32 v250, v77, 4, v250
v_add_u32 v251, {16*896 - 1024}, v250
v_lshl_add_u32 v252, v65, 3, v76
v_lshlrev_b32 v252, 6, v252
v_lshl_add_u32 v252, v77, 4, v252
s_add_u32 s77, s53, {UB}
v_add_u32 v252, s77, v252
v_add_u32 v253, 8, v252""")
    else:
        F.add(f"""v_lshl_add_u32 v250, v69, 4, v68
v_add_u32 v251, 6144, v250
v_add_u32 v252, {UB}, v13
v_xor_b32 v253, 64, v252""")
    F.add(f"""s_bfe_u32 s20, s2, 0x40003     ; j
s_lshr_b32 s19, s2, 7
s_lshl1_add_u32 s19, s51, s19  ; rb
s_lshl_b32 s25, s19, 12
s_add_u32 s25, s25, {WS_FL}
s_getreg_b32 s76, hwreg(HW_REG_XCC_ID, 0, 4)
s_lshl_b32 s77, s76, 2
s_lshl_b32 s29, 14, s77
s_lshl_b32 s77, 1, s77
s_cmp_lt_u32 s76, 8
s_cselect_b32 s77, s77, 0
s_cmp_lt_u32 s20, 14
s_cselect_b32 s77, s77, 0
v_lshlrev_b32 v79, 7, v1
s_lshl_b32 s76, s17, 7
s_add_u32 s76, s76, {WS_F1}
v_lshl_add_u32 v255, v79, 4, s76
v_add_u32 v66, {WS_F2 - WS_F1}, v255
s_cmp_eq_u32 s16, 0
s_cselect_b32 s76, 8, 0
v_cmp_gt_u32 vcc, s76, v1
v_cndmask_b32 v255, v78, v255, vcc
v_mov_b32 v67, 1
s_add_u32 s78, s25, {24*128}
v_writelane_b32 v66, s78, 8
v_writelane_b32 v67, s77, 8""")
    prk(14, 66); prk(8, 67)
    F.add(f"""s_and_b32 s21, s20, 1          ; th
s_lshr_b32 s22, s20, 1         ; fb
s_lshl1_add_u32 s23, s19, s21
s_lshr_b32 s76, s16, 1
s_and_b32 s77, s22, {knob('flip', 1)}
s_xor_b32 s76, s76, s77
s_lshl1_add_u32 s23, s23, s76
s_and_b32 s76, s16, 1
s_lshl1_add_u32 s24, s22, s76
s_lshl_b32 s77, s76, {11 if M16 else 10}
v_add_u32 v66, s77, v254
s_lshl_b32 s65, s23, 12
s_lshl3_add_u32 s65, s76, s65
s_lshl_b32 s77, s22, 9
s_add_u32 s65, s65, s77
s_add_u32 s65, s65, {WS_S}
s_mul_i32 s27, s23, {32*896}
s_lshl_b32 s77, s24, 11
s_add_u32 s64, s27, s77
s_add_u32 s64, s64, {WS_H}     ; h tile
s_lshl_b32 s76, s24, 6
s_add_u32 s27, s27, s76""")
    prk(171, 66)
    if M16:
        F.add("""v_and_b32 v66, 15, v1
v_mul_u32_u24 v67, 896, v66
v_lshlrev_b32 v71, 4, v65
v_add_u32 v67, v67, v71
v_lshlrev_b32 v66, 4, v66
v_lshl_add_u32 v66, v65, 9, v66""")
        prk(172, 66)
    else:
        F.add('v_mul_u32_u24 v67, 896, v73\nv_lshlrev_b32 v71, 4, v72\nv_add_u32 v67, v67, v71')
    F.add(f"""v_add_u32 v71, s76, v71
s_lshl_b32 s76, s20, 8
s_lshl_b32 s77, s16, 6
s_add_u32 s77, s77, s76
v_lshl_add_u32 v66, v64, 1, s77""")
    prk(0, 67); prk(160, 71); prk(161, 66)
    F.add(f"""s_mov_b32 s31, s77
s_lshl2_add_u32 s77, s2, s16
s_mul_i32 s77, s77, 1664
s_min_u32 s77, s77, {448*3584 - 1664}
v_min_u32 v249, 12, v70
v_lshlrev_b32 v249, 7, v249""")
    prk(177, 249)
    F.add(f"""
s_add_u32 s82, s60, s77
s_addc_u32 s83, s61, 0
s_mul_i32 s77, s16, {16*3584}
s_add_u32 s77, s77, s76
s_add_u32 s60, s60, s77
s_addc_u32 s61, s61, 0
s_lshl_b32 s59, s16, 12
v_cmp_gt_u32 vcc, 32, v1
s_cmp_eq_u32 s28, 0
s_cselect_b32 s76, -1, 0
v_cndmask_b32 v66, 0, -1, vcc
v_not_b32 v67, v66
v_or_b32 v67, s76, v67
s_not_b32 s76, s76
v_or_b32 v71, s76, v66""")
    prk(6, 66); prk(13, 67); prk(5, 71)
    F.add(f's_add_u32 s76, s53, {QX}\nv_add_u32 v66, s76, v254'); prk(15, 66)
    for s in range(4):
        F.add(f's_xor_b32 s76, s16, {3-s}\ns_mul_i32 s76, s76, 12288\ns_add_u32 s76, s76, {SCR}\nv_add_u32 v66, s76, v254'); prk(9 + s, 66)
    F.add("""v_lshlrev_b32 v66, 2, v65
v_and_b32 v67, 15, v1
v_xor_b32 v66, v66, v67
v_mul_u32_u24 v67, 3584, v65
v_lshl_add_u32 v66, v66, 4, v67""")
    prk(165, 66)
    F.add("""v_lshl_add_u32 v66, v74, 8, v75
v_xor_b32 v67, s16, v76
v_lshl_add_u32 v66, v67, 6, v66""")
    prk(173, 66)
    ST = knob('sm', 0)
    if ST & 2: F.add('v_mov_b32 v66, v78')
    else: F.add(f"""v_add_u32 v66, s64, v79
s_and_b32 s76, s65, 0xffffff80
s_sub_u32 s76, s76, {16*128}
v_add_u32 v67, s76, v79
v_cmp_gt_u32 vcc, 16, v1
v_cndmask_b32 v66, v67, v66, vcc
v_cmp_gt_u32 vcc, 20, v1
v_cndmask_b32 v66, v78, v66, vcc""")
    F.add(f"""s_lshl_b32 s51, s51, 11
s_add_u32 s76, s51, {WS_F2 - 48*128}
v_add_u32 v67, s76, v79
v_cmp_gt_u32 vcc, 48, v1
v_cndmask_b32 v66, v67, v66, vcc
v_writelane_b32 v66, s78, 20
s_add_u32 s51, s51, {WS_F1}
s_bfe_u32 s76, s2, 0x20003
s_lshl2_add_u32 s76, s76, s16
s_lshl_b32 s76, s76, 11
v_and_b32 v67, 0x780, v79
v_add_u32 v71, s76, v67
v_min_u32 v71, L_fallback-L_pc1, v71""")
    prk(241, 66); prk(169, 67); prk(170, 71); prk(240, 79)
    F.add(f"""s_lshl_b32 s76, s17, 12
s_add_u32 s76, s76, {WS_FL}
s_cmp_eq_u32 s16, 0
s_cselect_b32 s76, s76, {WS_BYTES}
v_writelane_b32 v78, s76, 0
v_mul_u32_u24 v66, 12288, v77
v_add_u32 v66, {SCR}, v66
v_lshlrev_b32 v67, 2, v73
v_sub_u32 v67, v67, v254""")
    prk(174, 78); prk(175, 66); prk(176, 67)
    F.add(f"""s_and_b32 s76, s17, {knob('kvm', 1)}
s_lshl1_add_u32 s76, s16, s76
s_mul_i32 s46, s76, {8*TTP}
s_xor_b32 s76, s76, 1
s_mul_i32 s47, s76, {8*TTP}
s_mul_i32 s44, s22, {WFP}
s_add_u32 s44, s44, {WS_WF}
s_cmp_lt_u32 s20, 14
s_cselect_b32 s44, s44, {WS_BYTES}
s_mul_i32 s45, s16, {28*2048}
s_add_u32 s45, s45, s44
s_lshl2_add_u32 s44, s59, s44
s_add_u32 s44, s44, {112*2048} ; Wo fragments of this wave
s_lshl_b32 s62, s23, 15
s_lshl1_add_u32 s62, s59, s62
s_add_u32 s62, s62, {WS_O}
s_xor_b32 s63, s62, 32768
s_lshl_b32 s66, s16, 7
s_add_u32 s66, s66, s25
s_lshl2_add_u32 s76, s19, s16
s_mul_i32 s67, s76, 28672
s_add_u32 s67, s67, {WS_H}
s_lshl_b32 s68, s76, 12
s_add_u32 s68, s68, {WS_S}
s_mul_i32 s28, s76, 114688
s_lshl_b32 s77, s20, 13
s_add_u32 s28, s28, s77
s_add_u32 s28, s28, {WS_H1}
s_add_u32 s72, s28, s53
s_xor_b32 s73, s72, 2048
s_xor_b32 s74, s72, 4096
s_xor_b32 s75, s72, 6144
s_lshl_b32 s69, s21, 8
s_add_u32 s69, s69, s25
s_mul_i32 s76, s16, {28*1024}
s_add_u32 s76, s76, {WS_H1}
s_mul_i32 s70, s23, 114688
s_add_u32 s70, s70, s76
s_xor_b32 s77, s23, 1
s_mul_i32 s71, s77, 114688
s_add_u32 s71, s71, s76
s_mov_b32 s30, 0""")
    F.drain(knob('f0', 400))
    stamp(e, 'p1w')
    ACC, QA, WF, XF = 32, 64, 80, 104
    XM, RM, CF, ON = 216, 220, 224, 236
    def reads(s, ty):
        it, kk = divmod(s, 4); b = s % 3
        l = [f'ds_read_b128 {vr(XF+4*s,4)}, v{9+kk} offset:{(it%3)*4096}']
        if ty != 'l':
            for f in range(2):
                for rd in range(2):
                    l.append(f'ds_read_b64_tr_b16 {vr(WF+8*b+4*f+2*rd,2)}, v{13+2*kk+f} offset:{it*8192 + rd*512}')
        return l
    def xdots(s):
        for r in range(4):
            x = XF + 4*s + r
            e(f'v_dot2c_f32_bf16 v26, v{x}, v25\nv_dot2c_f32_bf16 v27, v{x}, v{x}')
    wq = [[f's_add_u32 m0, s54, {it*4096}'] + adv(50, 64*2688, it) + ['buffer_load_dwordx4 v8, s[36:39], s50 offen lds'] for it in range(7)]
    WQS = [int(c) for c in str(knob('wqs', 0)) if c != '0']
    WQE = knob('wqe', 7)
    early = {c - 1: wq[n] for n, c in enumerate(WQS)}
    unit_dma = [f's_add_u32 m0, s53, {UB}', 'buffer_load_dwordx4 v250, s[32:35], s55 offen lds', 'buffer_load_dwordx4 v251, s[32:35], s55 offen offset:1024 lds']
    rdy = 'global_load_dword v245, v219, s[100:101] sc1'
    def rdycheck(lab):
        e(f"""v_cmp_gt_u32 vcc, 32, v245
v_mov_b32 v31, 1
s_cbranch_vccnz {lab}p
{lab}d:""")
        slow.append(f"""{lab}p:
s_mov_b32 s26, {POLL_MAX}
{lab}l:
global_load_dword v245, v219, s[100:101] sc1
s_sub_u32 s26, s26, 1
s_cbranch_scc1 {lab}d
s_waitcnt vmcnt(0)
v_cmp_gt_u32 vcc, 32, v245
s_cbranch_vccnz {lab}l
s_branch {lab}d""")
    xm_frag = f"""v_cmp_gt_u32 vcc, 32, v1
v_sub_f32 v247, 0, v247
v_cndmask_b32 v247, 0, v247, vcc
v_and_b32 v26, 0xffff0000, v247
v_sub_f32 v27, v247, v26
v_cvt_pk_bf16_f32 v{XM}, v26, v26
v_cvt_pk_bf16_f32 v{XM+1}, v27, 0"""
    e('s_cmp_lt_u32 s18, 7\ns_cbranch_scc1 L_kk\ns_cmp_lt_u32 s18, 14\ns_cbranch_scc0 L_light')
    vm0 = (list(vm.seq), vm.done); q0 = list(F.q)
    def variant(ty, lab):
        if lab: e(f'{lab}:')
        vm.seq, vm.done = list(vm0[0]), vm0[1]; F.q = list(q0)
        per = (len(F.q) + 5) // 6
        lt = wq[len(WQS):WQE]
        vm.wait(0); e('s_barrier')
        stamp(e, 'p1go')
        e('\n'.join(reads(0, ty) + reads(1, ty)))
        emit(wload(2), 2)
        for s in range(28):
            it, kk = divmod(s, 4); b = s % 3
            if kk == 0: stamp(e, f'c{it}')
            x = vr(XF+4*s, 4)
            mf = []
            for f in range(2):
                w = vr(WF+8*b+4*f, 4); a = vr(ACC+16*f, 16); c = a if s else '0'
                mf.append(f'{MF} {a}, {w}, {x}, {c}' if ty == 'k' else f'{MF} {a}, {x}, {w}, {c}')
            rd = reads(s+2, ty) if s < 26 else []
            if s < 18:
                if kk < 2: L = xload(it + 2); tag = it + 2; ld = {0: (L[:-3], L[-3:-2]), 1: (L[-2:-1], L[-1:])}[kk]
                else: L = wload(it + 3); tag = it + 3; ld = {2: ([], L[:-1]), 3: (L[-1:], [])}[kk]
            else:
                tag = 'wq'; F.need('wq')
                ld = ([], lt.pop(0) if lt else [])
            if s < 27: e(f's_waitcnt lgkmcnt({5 if s < 26 else 0})')
            if kk == 2:
                for r in range(4):
                    for f in range(2): e(f'v_dot2c_f32_bf16 v{28+f}, v{WF+8*b+4*f+r}, v25')
                for s2 in range(max(0, s-3), s + (2 if s == 26 else 1)): xdots(s2)
                if s < 26:
                    F.drain(per if s < 22 else 999)
                    vm.wait(it + 1); e('s_barrier')
                else:
                    for f in range(2): e(halves_sum(28+f, 246))
                    e('ds_write_b64 v243, v[28:29]')
            def spread(m, sal, rest):
                e(m)
                if sal and not sal[0].startswith('buffer'): e(sal[0]); sal = sal[1:]
                e('\n'.join(rest)); emit(sal, tag)
            spread(mf[0], ld[0], rd[:3])
            if s == 26: e(ln_stats(26, 27, 246, 247, 248))
            if s == 27: e(xm_frag)
            spread(mf[1], ld[1], rd[3:])
            if it in early and kk == 3: F.need('wq'); emit(early[it], 'wq')
            if s == 17: vm.op(rdy, 'rdy')
            if s == 26:
                e('s_waitcnt lgkmcnt(0)\ns_barrier')
                for w in range(4): e(f'ds_read_b64 {vr(QA+2*w,2)}, v242 offset:{256*w}')
        assert not lt and not F.q
        stamp(e, 'p1end')
        if ty == 'v':
            e(f"""v_cndmask_b32 v246, 0, v248, vcc
v_and_b32 v26, 0xffff0000, v246
v_sub_f32 v27, v246, v26
v_cvt_pk_bf16_f32 v{RM}, v26, v27
{MF} v[88:103], {vr(RM,4)}, {vr(ON,4)}, 0""")
        e('s_waitcnt lgkmcnt(0)')
        for f in range(2):
            e(f"""v_add_f32 v{QA+f}, v{QA+f}, v{QA+2+f}
v_add_f32 v{QA+4+f}, v{QA+4+f}, v{QA+6+f}
v_add_f32 v{QA+f}, v{QA+f}, v{QA+4+f}
v_and_b32 v26, 0xffff0000, v{QA+f}
v_sub_f32 v27, v{QA+f}, v26
v_cvt_pk_bf16_f32 v{CF+4*f}, v26, v27
v_lshrrev_b32 v{CF+4*f+1}, 16, v{QA+f}""")
            a = vr(ACC+16*f, 16); w = vr(CF+4*f, 4)
            e(f'{MF} {a}, {w}, {vr(XM,4)}, {a}' if ty == 'k' else f'{MF} {a}, {vr(XM,4)}, {w}, {a}')
        vm.op(f'buffer_store_dwordx4 {vr(ON,4)}, v244, s[12:15], s58 offen sc1', 'kv')
        for f in range(2):
            A = ACC + 16*f
            for p in range(8):
                if ty == 'k': e(f'v_pk_mul_f32 {vr(A+2*p,2)}, {vr(A+2*p,2)}, v[248:249] op_sel_hi:[1,0]')
                else: e(f'v_pk_mul_f32 {vr(A+2*p,2)}, {vr(A+2*p,2)}, {vr(88+2*p,2)}')
                e(f'v_cvt_pk_bf16_f32 v{A+p}, v{A+2*p}, v{A+2*p+1}')
                if p % 4 == 3:
                    t = p // 4
                    if ty == 'k': vm.op(f'buffer_store_dwordx4 {vr(A+4*t,4)}, v254, s[12:15], s57 offen offset:{2048*f + 1024*t} sc1', 'kv')
                    else: vm.op(f'buffer_store_dwordx4 {vr(A+4*t,4)}, v{240+t}, s[12:15], s57 offen offset:{512*f} sc1', 'kv')
        stamp(e, 'kvst')
        if ty == 'v': e('s_branch L_q')
    def light():
        e(e_zero)
        e('L_light:')
        vm.seq, vm.done = list(vm0[0]), vm0[1]; F.q = list(q0)
        F.drain(9999)
        e(f'v_mov_b32 v255, {WS_BYTES}')
        stamp(e, 'p1go')
        for it in range(7):
            stamp(e, f'c{it}')
            vm.wait(it)
            for kk in range(4): e('\n'.join(reads(4*it + kk, 'l')))
            if it + 2 <= 6: emit(xload(it + 2), it + 2)
            if it == 5:
                for l in wq[:WQE] + [[rdy]]: emit(l, 'wq')
            e('s_waitcnt lgkmcnt(0)')
            for kk in range(4): xdots(4*it + kk)
        e(ln_stats(26, 27, 246, 247, 248)); e(xm_frag)
        stamp(e, 'p1end')
        e('s_waitcnt vmcnt(0)')
        stamp(e, 'kvst')
        e('s_branch L_q')
    variant('v', None); light(); variant('k', 'L_kk')
    e('L_q:')
    stamp(e, 'p1st')
    for l in wq[WQE:]: emit(l, 'wq2')
    UA = knob('ua', 1)
    if not UA: emit(unit_dma, 'wq2')
    vm.wait('rdy'); rdycheck('L_rd')
    if not knob('nh', 2) & 1:
        e(f's_mov_b32 m0, {HINT}'); vm.op('buffer_atomic_add v31, v255, s[12:15], m0 offen sc1', 'sig')
    if UA: emit(unit_dma, 'u')
    WT = knob('wt', 2)
    if WT == 1: vm.op('global_load_dword v244, v249, s[82:83]', 'T')
    stamp(e, 'q0'); vm.wait('wq'); stamp(e, 'q1'); e('s_barrier'); stamp(e, 'q2')
    def qrd(s, dst=None):
        it, kk = divmod(s, 4)
        if dst is None: dst = ACC + 4*(s & 7)
        return [f'ds_read_b64_tr_b16 {vr(dst+2*rd,2)}, v{21+kk} offset:{it*4096 + rd*256}' for rd in range(2)]
    QS = knob('qs', 3)
    assert (3 <= WQE <= 4 and QS <= WQE) or WQE == 7
    def s1signal():
        stamp(e, 'q3'); vm.wait('kv'); stamp(e, 'q4')
        e('s_barrier')
        vm.op('buffer_atomic_add v31, v255, s[12:15], 0 offen sc1', 'sig')
        stamp(e, 's1sig')
    def unit_out(r):
        for f in range(2):
            for rd in range(2): e(f'ds_read_b64_tr_b16 {vr(r+4*f+2*rd,2)}, v{252+f} offset:{rd*(256 if M16 else 512)}')
        e('s_waitcnt lgkmcnt(0)')
        for f in range(2): vm.op(f'buffer_store_dwordx4 {vr(r+4*f,4)}, v2, s[12:15], s56 offen offset:{1024*f} sc1', 'ust')
    lateprk = [n for n, d in enumerate(park) if XF <= d < XF + 112]
    F.add(f'v_mul_f32 v26, {f32(QSCALE)}, v248\nv_mov_b32 v2, v254')
    for n, d in enumerate(park):
        if n not in lateprk: F.add(f'v_accvgpr_read_b32 v{d}, a{n}')
    F.add(f"""v_xor_b32 v249, {3*2048}, v15
v_xor_b32 v250, {2*2048}, v15
v_xor_b32 v251, {1*2048}, v15
v_mov_b32 v{RM}, 0
v_mov_b32 v7, 0xdddd
s_mov_b32 s8, s60
s_mov_b32 s9, s61
s_cmp_lt_u32 s20, 14
s_cselect_b32 s10, {16*3584}, 0
s_mov_b32 s34, 3584
s_mov_b32 s38, 896
s_mov_b32 s42, {2048*896}
s_mov_b32 s43, 0x00020000""")
    late_fill = '\n'.join(f'v_accvgpr_read_b32 v{park[n]}, a{n}' for n in lateprk) + '\n' + \
                '\n'.join(f'v_add_u32 v{165+i}, {i*(4*3584-1024)}, v165' for i in range(1, 4)) + '\n' + \
                '\n'.join(f'v_xor_b32 v{161+b}, {64*b}, v161' for b in range(1, 4))
    cs_fill = f"""v_add_f32 v96, v96, v97
v_add_f32 v98, v98, v99
v_add_f32 v30, v96, v98
v_and_b32 v28, 0xffff0000, v30
v_sub_f32 v29, v30, v28
v_cvt_pk_bf16_f32 v{CF+8}, v28, v29
v_lshrrev_b32 v{CF+9}, 16, v30"""
    def qcs(g0, g1, r0):
        n = g1 - g0
        for g in range(g0, g1): e('\n'.join(qrd(4*g, r0 + 4*(g - g0))))
        if n > 4:
            e(f's_waitcnt lgkmcnt({2*(n-4)})')
            for s in range(4*g0, 4*g0 + 4): e('\n'.join(qrd(s)))
            for r in range(16): e(f'v_dot2c_f32_bf16 v30, v{r0+r}, v25')
            e('s_waitcnt lgkmcnt(8)')
            for r in range(16, 4*n): e(f'v_dot2c_f32_bf16 v30, v{r0+r}, v25')
        else:
            for s in range(4*g0, 4*g0 + 3): e('\n'.join(qrd(s)))
            e('s_waitcnt lgkmcnt(6)')
            e('\n'.join(qrd(4*g0 + 3)))
            for r in range(4*n): e(f'v_dot2c_f32_bf16 v30, v{r0+r}, v25')
        if g1 == 7: e(halves_sum(30, 246) + '\nds_write_b32 v243, v30')
    qcs(0, WQE, 76 if WQE == 7 else 80)
    for g in range(7):
        for k in range(4):
            s = 4*g + k
            e(f's_waitcnt lgkmcnt({2*min(3, 27-s, (4*WQE-1-s) if g < WQE else 3)})')
            e(f'{MF} {vr(QA,16)}, {vr(ACC+4*(s&7),4)}, {vr(XF+4*s,4)}, ' + (vr(QA, 16) if s else '0'))
            if s + 4 < 28 and g + 1 != WQE: e('\n'.join(qrd(s+4)))
            F.drain(3 if g < 6 else 5)
        if g + 1 == QS: s1signal()
        if WQE < 7 and g + 1 == WQE:
            stamp(e, 'q5'); vm.wait('wq2'); e('s_barrier'); stamp(e, 'q6')
            if not UA: unit_out(96)
            qcs(WQE, 7, 80)
        if g == (1 if WQE == 7 else WQE):
            e('s_barrier')
            for w in range(4): e(f'ds_read_b32 v{96+w}, v242 offset:{256*w}')
        if g == (3 if WQE == 7 else 5): F.add(cs_fill)
        if g == 4: F.add(late_fill)
        if WQE == 7 and not UA and g + 1 == knob('us', 6): vm.wait('wq2'); unit_out(80)
    F.drain(999)
    e(f"""{MF} {vr(QA,16)}, {vr(CF+8,4)}, {vr(XM,4)}, {vr(QA,16)}
s_load_dwordx2 s[32:33], s[0:1], 40
s_load_dwordx2 s[36:37], s[0:1], 56
s_load_dwordx2 s[40:41], s[0:1], 64
s_getpc_b64 s[80:81]
L_pc1:""")
    vm.op('global_load_dword v242, v170, s[80:81]', 'T')
    for s in (0, 2, 3): e(f'{MF} {vr(O+16*s,16)}, {vr(RM,4)}, {vr(RM,4)}, 0')
    w1n = [0]
    def w1set():
        it = w1n[0] // 4
        return [f's_add_u32 m0, s59, {it*16384}'] + ([f's_add_u32 s8, s8, {64*3584}\ns_addc_u32 s9, s9, 0'] if it else [])
    def w1l():
        i = w1n[0] % 4
        vm.op(f'buffer_load_dwordx4 v{165+i}, s[8:11], 0 offen offset:{1024*i} lds', 'W1'); w1n[0] += 1
    WB_ = knob('w1b', 0)
    for n in range(WB_):
        if n % 4 == 0: e('\n'.join(w1set()))
        w1l()
    for p in range(8):
        e(f'v_mul_f32 v{QA+2*p}, v26, v{QA+2*p}\nv_mul_f32 v{QA+2*p+1}, v26, v{QA+2*p+1}')
        e(f'v_cvt_pk_bf16_f32 v{Q+24+p}, v{QA+2*p}, v{QA+2*p+1}')
    e(f"""v_and_b32 v{Q+24}, v13, v{Q+24}
v_and_b32 v{Q+25}, v13, v{Q+25}
v_and_b32 v{Q+30}, v5, v{Q+30}
v_and_b32 v{Q+31}, v5, v{Q+31}
ds_write_b128 v15, {vr(Q+24,4)}
ds_write_b128 v15, {vr(Q+28,4)} offset:1024
{MF} {vr(O+16,16)}, {vr(RM,4)}, {vr(RM,4)}, 0
s_add_u32 s76, s51, {HINT}
s_mov_b32 m0, s46""")
    stamp(e, 's1win')
    def poll2(lab, addr, so_hint, so, n, first):
        e(f's_cmp_lg_u32 s16, {knob("pw", 1)}\ns_cbranch_scc1 {lab}wait\ns_mov_b32 s26, {POLL_MAX}')
        for l, x in ((lab + 'hint', so_hint), (lab + 'poll', so)):
            if x: e(f"""{l}:
buffer_load_dword v15, {addr}, s[12:15], {x} sc1
s_sub_u32 s26, s26, 1
s_cbranch_scc1 {lab}done
s_waitcnt vmcnt(0)
v_cmp_gt_u32 vcc, {n}, v15
s_cbranch_vccnz {l}""")
        e(f'{lab}done:')
        k = knob('pp', 2)
        sv = list(vm.seq)
        for f in first[:k]: f()
        vm.seq = sv
        e(f's_waitcnt lgkmcnt(0)\ns_barrier\ns_branch {lab}go\n{lab}wait:\ns_waitcnt lgkmcnt(0)\ns_barrier')
        for f in first[:k]: f()
        e(f'{lab}go:')
        stamp(e, lab[2:] + 'done')
        for f in first[k:]: f()
    NH = knob('nh', 2)
    def kvset(j): return f's_add_u32 m0, s{46 + (j >> 3)}, {(j & 7)*TTP}'
    def kl(j, t): vm.op(f'buffer_load_dwordx4 {ar(16*j+4*t,4)}, v3, s[12:15], m0 offen offset:{1024*t} sc1', f'K{j}')
    def vl(j, t): vm.op(f'buffer_load_dwordx4 {ar(16*j+8+4*t,4)}, v{248 if t else 4}, s[12:15], m0 offen sc1', f'V{j}')
    KV0 = knob('kv0', 3)
    poll2('L_s1', 'v169', None if NH & 1 else 's76 offen', 's51 offen', 14, [lambda: kl(0, 0), lambda: kl(0, 1), lambda: vl(0, 0), lambda: vl(0, 1)])
    e(kvset(1))
    for s in range(3):
        for t in range(2): e(f'ds_read_b128 {vr(Q+8*s+4*t,4)}, v{249+s} offset:{1024*t}')
    for j in range(1, KV0):
        kl(j, 0); kl(j, 1); vl(j, 0); vl(j, 1); e(kvset(j + 1))
    steps = [(s, j) for j in range(16) for s in range(3)] + [(3, j) for j in range(16)]
    N = len(steps)
    def qk(i, t):
        s, j = steps[i]; d = vr(S + 16*(i % 3), 16)
        return f'{MF} {d}, {ar(16*j+4*t,4)}, {vr(Q+8*s+4*t,4)}, ' + ('0' if t == 0 else d)
    def pv(i, t):
        s, j = steps[i]
        return f'{SM} {vr(O+16*s,16)}, {ar(16*j+8+4*t,4)}, {vr(S+16*(i%3)+8*t,8)}, v7'
    free, post = {}, {}
    def P(d, q, f): d.setdefault(q, []).append(f)
    WX = 2048 if M16 else 1024
    def wfrag(kind, n):
        g, r = divmod(n, 4)
        if M16: f, off, reg = r >> 1, (r & 1)*1024, 16*g + 4*r
        else: f, off, reg = r & 1, (r >> 1)*2048, 16*g + 4*r
        dst = vr(WOF + reg, 4) if kind == 'Wo' else ar(reg, 4)
        return (f's_add_u32 m0, s{44 if kind == "Wo" else 45}, {g*4096}', f'buffer_load_dwordx4 {dst}, v{252+f}, s[12:15], m0 offen offset:{off} sc1')
    w2n = [0]
    def w2l(n=1, setm=False):
        for _ in range(n):
            if w2n[0] >= 56: return
            a, b = wfrag('W2', w2n[0])
            if setm or w2n[0] % 4 == 0: e(a); setm = False
            vm.op(b, 'W2'); w2n[0] += 1
    def wfcheck():
        e('v_cmp_gt_u32 vcc, 16, v243\ns_lshr_b32 s26, vcc_hi, 16\ns_cbranch_scc1 L_wf\nL_wfd:')
        slow.append(f"""L_wf:
s_mov_b32 s26, {POLL_MAX}
L_wfp:
buffer_load_dword v243, v241, s[12:15], 0 offen sc1
s_sub_u32 s26, s26, 1
s_cbranch_scc1 L_wfd
s_waitcnt vmcnt(0)
v_cmp_gt_u32 vcc, 16, v243
s_nop 1
s_lshr_b32 s78, vcc_hi, 16
s_cbranch_scc1 L_wfp
s_branch L_wfd""")
    vq = []
    for j in range(KV0, 16):
        for n, (f, t) in enumerate(((kl, 0), (kl, 1), (vl, 0), (vl, 1))):
            vq.append(([kvset(j)] if n == 0 and j > KV0 else [], (lambda f=f, j=j, t=t: f(j, t)), 1))
        if UA and j == knob('uj', 5):
            for f in range(2): vq.append(([], (lambda f=f: vm.op(f'buffer_store_dwordx4 {vr(180+4*f,4)}, v2, s[12:15], s56 offen offset:{1024*f} sc1', 'ust')), 1))
        if WT == 2 and j == knob('wj', 7): vq.append(([], lambda: vm.op('global_load_dword v242, v177, s[82:83]', 'T'), knob('wg', 3)))
    def t0f():
        if knob('t2', 1): e('s_mov_b32 exec_lo, 0xfff00000')
        vm.op('buffer_load_dword v243, v241, s[12:15], 0 offen sc1', 'T0')
        if knob('t2', 1): e('s_mov_b32 exec_lo, -1')
    t0 = ([], t0f, 1 if ST & 2 or knob('t2', 1) else 2)
    for t in range(2):
        if M16: vq.append(([f's_add_u32 m0, s27, {16*896*t}'], (lambda t=t: vm.op(f'buffer_load_dwordx4 {vr(224+4*t,4)}, v0, s[4:7], m0 offen', 'sm')), 1))
        else: vq.append((['s_mov_b32 m0, s27'] if t == 0 else [], (lambda t=t: vm.op(f'buffer_load_dwordx4 {vr(224+4*t,4)}, v0, s[4:7], m0 offen offset:{32*t}', 'sm')), 1))
    tiny = [(lambda t=t: vm.op(f'buffer_load_dwordx4 {vr(232+4*t,4)}, v160, s[36:39], 0 offen offset:{32*t}', 'sm')) for t in range(1 if M16 else 2)]
    tiny += [(lambda b=b: vm.op(f'buffer_load_ushort v{244+b}, v{161+b}, s[32:35], 0 offen', 'sm')) for b in range(4)]
    if knob('ty', 9):
        for n, f in enumerate(tiny): P(post, 4*knob('ty', 9) + 1 + 2*n, f)
    else: vq += [([], f, 1) for f in tiny]
    for n in range(WB_, 28):
        it = n // 4
        vq.append(((([f's_add_u32 s8, s8, {64*3584}\ns_addc_u32 s9, s9, 0'] if it else []) + [f's_add_u32 m0, s59, {it*16384}']) if n % 4 == 0 else [], w1l, 1))
    vq.insert(len(vq) - 12, t0)
    nchk = len(vq)
    for n in range(16):
        a, b = wfrag('Wo', n); vq.append(([a] if n % 4 == 0 else [], (lambda b=b: vm.op(b, 'Wo')), 1))
    if knob('t2', 1): vq.append(([], lambda: vm.op('buffer_load_dword v242, v241, s[12:15], 0 offen sc1', 'T'), 1))
    if H1M: vq.append((['s_mov_b32 m0, s28'], lambda: vm.op('buffer_load_dword v242, v240, s[12:15], m0 offen sc1', 'T'), knob('h1g', 8)))
    TL = knob('tl', 16); tail = []
    if TL: k = len(vq) - bool(H1M) - bool(knob('t2', 1)); tail = vq[k:]; vq = vq[:k]
    hs = 0
    def place(sal, f):
        if sal: P(free, 2*hs - 1, lambda x=sal[-1]: e(x))
        if len(sal) > 1: P(free, 2*hs, lambda x=sal[0]: e(x))
        P(post, 2*hs, f)
    for n, (sal, f, d) in enumerate(vq):
        if n == nchk: P(free, 2*hs - 3, lambda: vm.wait('T0')); P(post, 2*hs - 3, wfcheck)
        place(sal, f); hs += d
    hs = max(hs, 100)
    W2A = max(0, min(knob('w2a', 24), 126 - TL - hs)) // 4 * 4
    for n in range(W2A):
        a, b = wfrag('W2', n); place([a] if n % 4 == 0 else [], (lambda b=b: vm.op(b, 'W2'))); hs += 1
    for sal, f, d in tail: place(sal, f); hs += 1
    w2n[0] = W2A
    P(free, 2, lambda: vm.wait('V0'))
    for j in range(1, 16):
        if j < 6: P(free, 4*(3*j-1) - 2, (lambda j=j: vm.wait(f'V{j}')))
        elif j % 2 == 0: P(free, 4*(3*j-1) - 2, (lambda j=j: vm.wait(f'V{j+1}')))
    def pwr(s, q): return f'ds_write_b128 v{9+s}, {vr(O+16*s+4*q,4)} offset:{s*4096 + q*1024}'
    def prd(s, q): return f'ds_read_b128 {vr(O+16*s+4*q,4)}, v12 offset:{s*4096 + q*1024}'
    for k in range(12): P(post, 4*50 + 1 + 2*k, (lambda k=k: e(pwr(k//4, k % 4))))
    P(free, 4*59, lambda: vm.wait('W1', 'lgkmcnt(0)')); P(free, 4*59 + 2, lambda: e('s_barrier'))
    for k in range(12): P(post, 4*60 + k, (lambda k=k: e(prd(k//4, k % 4))))
    if UA:
        vm.wait('u')
        for f in range(2):
            for rd in range(2): e(f'ds_read_b64_tr_b16 {vr(180+4*f+2*rd,2)}, v{252+f} offset:{rd*(256 if M16 else 512)}')
        e(f'''s_cmp_eq_u32 s16, 0
s_cselect_b32 s26, 9, 0
v_cmp_gt_u32 vcc, s26, v1
v_mov_b32 v13, {WS_BYTES}
v_mov_b32 v178, v8
s_lshl_b32 s76, s24, 6
v_cndmask_b32 v179, v13, v14, vcc
s_waitcnt lgkmcnt(0)''')
        UB_ = knob('ub', 17)
        P(free, 4*UB_, lambda: vm.wait('ust')); P(free, 4*UB_ + 1, lambda: e('s_barrier'))
        P(post, 4*UB_ + 1, lambda: vm.op('buffer_atomic_add v178, v179, s[12:15], 0 offen sc1', 'sig'))
    else:
        e(f'''s_cmp_eq_u32 s16, 0
s_cselect_b32 s26, 9, 0
v_cmp_gt_u32 vcc, s26, v1
v_mov_b32 v13, {WS_BYTES}
s_lshl_b32 s76, s24, 6
v_cndmask_b32 v14, v13, v14, vcc''')
        vm.wait('ust', 'lgkmcnt(0)')
        e('s_barrier')
        vm.op('buffer_atomic_add v8, v14, s[12:15], 0 offen sc1', 'sig')
    sq = []
    if ST & 1: sq += [f's_load_dword s77, s[82:83], {64*k}' for k in range(26)] + ['s_buffer_load_dword s77, s[32:35], s31', 's_buffer_load_dword s77, s[36:39], s76']
    q = 1
    for x in sq:
        while q in free: q += 1
        P(free, q, lambda x=x: e(x)); q += 2
    if ST & 2:
        q = max(q, 4*knob('hs', 26))
        for x in [f's_buffer_load_dword s77, s[12:15], s64 offset:{64*k}' for k in range(32)] + [f's_buffer_load_dword s77, s[12:15], s65 offset:{64*k}' for k in range(8)]:
            while q in free: q += 1
            P(free, q, lambda x=x: e(x)); q += 2
        assert q < 4*52
    e(f"""v_mov_b32 v249, v173
v_add_u32 v254, 0x10000, v173
v_mov_b32 v250, v174
v_mov_b32 v251, v175
v_mov_b32 v5, v176
v_mov_b32 v252, v171
v_xor_b32 v253, {WX}, v171
v_mov_b32 v255, v{172 if M16 else 2}
v_mov_b32 v8, 1
v_mov_b32 v14, 0x3f803f80""")
    vm.wait('K0')
    stamp(e, 'a0')
    e(qk(0, 0)); e(qk(0, 1))
    for i in range(N):
        if i == 48: stamp(e, 'aB')
        if i: stamp(e, f'a{i}')
        b = S + 16*(i % 3)
        mf = [qk(i+1, 0) if i+1 < N else None, qk(i+1, 1) if i+1 < N else None, pv(i-1, 1) if i > 0 else None, pv(i, 0)]
        for sl in range(4):
            if mf[sl]: e(mf[sl])
            for f in free.get(4*i + sl, []) + post.get(4*i + sl, []): f()
            for r in range(4): e(f'v_exp_f32 v{b+4*sl+r}, v{b+4*sl+r}')
    e(pv(N-1, 1))
    if not NH & 2: vm.op('buffer_atomic_add v8, v250, s[12:15], 0 offen offset:128 sc1', 'sig')
    assert w1n[0] == 28
    e('L_combine:')
    stamp(e, 'comb')
    e('s_waitcnt lgkmcnt(0)')
    for r in range(16): e(f'v_add_f32 v{O+r}, v{O+r}, v{O+16+r}')
    for p in range(8): e(f'v_pk_add_f32 {vr(O+2*p,2)}, {vr(O+2*p,2)}, {vr(O+32+2*p,2)}')
    for p in [6, 0, 1, 2, 3, 4, 5, 7]:
        e(f'v_pk_add_f32 {vr(O+2*p,2)}, {vr(O+2*p,2)}, {vr(O+48+2*p,2)}')
        if p == 6: e(f'v_mov_b32 v13, v{O+12}\nv_mov_b32 v15, v{O+12}')
        if p == 1: e('v_permlane32_swap_b32 v13, v15')
        if p == 2: e('v_rcp_f32 v158, v15')
    for p in range(8):
        e(f'v_pk_mul_f32 {vr(O+2*p,2)}, {vr(O+2*p,2)}, v[158:159] op_sel_hi:[1,0]')
        e(f'v_cvt_pk_bf16_f32 v{O+p}, v{O+2*p}, v{O+2*p+1}')
        if p == 3: vm.op(f'buffer_store_dwordx4 {vr(O,4)}, v2, s[12:15], s3 offen sc1', 'Ost')
        if p == 6: e(f'v_and_b32 v{O+6}, v6, v{O+6}')
    e(f'v_and_b32 v{O+7}, v6, v{O+7}')
    vm.op(f'buffer_store_dwordx4 {vr(O+4,4)}, v2, s[12:15], s3 offen offset:1024 sc1', 'Ost')
    if knob('t1', 0): vm.op('buffer_load_dword v242, v241, s[12:15], 0 offen sc1', 'T')
    def csrd(dst, s):
        return [f'ds_read_b64_tr_b16 {vr(dst+2*rd,2)}, v{254 if s >= 16 else 249} offset:{(s & 15)*4096 + rd*1024}' for rd in range(2)]
    for k in range(4): e('\n'.join(csrd(S + 4*k, k)))
    e(f"""v_cmp_nle_f32 vcc, {f32(2.0**-40)}, v15
v_mov_b32 v156, 0
v_mov_b32 v157, 0
s_mov_b64 s[82:83], vcc
v_cmp_nge_f32 vcc, {f32(2.0**40)}, v15
v_add_u32 v15, v12, v5
s_or_b64 vcc, vcc, s[82:83]
s_cselect_b32 s26, 1, 0
s_andn2_b32 s26, s26, s30
v_mov_b32 v13, s26""")
    B0 = knob('b0', 8); CS = knob('cs', 4)
    def csgroup(g):
        if g < 7:
            for k in range(4): e('\n'.join(csrd(S + 16*(g & 1) + 4*k, 4*g + k)))
        if g <= CS: w2l(B0*g//CS - B0*(g-1)//CS)
        e(f's_waitcnt lgkmcnt({8 if g < 7 else 0})')
        for r in range(16): e(f'v_dot2c_f32_bf16 v{156 + (r & 1)}, v{S + 16*((g-1) & 1) + r}, v14')
    for g in range(1, CS + 1): csgroup(g)
    e('ds_write_b32 v12, v13')
    vm.wait('Ost', 'lgkmcnt(0)')
    e("""s_barrier
ds_read_b32 v13, v251
s_waitcnt lgkmcnt(0)
v_cmp_ne_u32 vcc, 0, v13
s_cbranch_vccnz L_fallback""")
    vm.op('buffer_atomic_add v8, v250, s[12:15], 0 offen sc1', 'sig2')
    stamp(e, 's2sig')
    e(f's_cmp_ge_u32 s20, 14\ns_cbranch_scc1 {"L_wb" if H1M == 3 or knob("wb", 0) else "L_end"}')
    B1 = knob('b1', 14)
    for g in range(CS + 1, 8):
        w2l(B1*(g-CS)//(7-CS) - B1*(g-CS-1)//(7-CS))
        csgroup(g)
    ACC3, AF = 80, 16
    WA = 240
    e('v_add_f32 v156, v156, v157')
    e(halves_sum(156, 157))
    e("""ds_write_b32 v15, v156 offset:8192
v_add_u32 v157, v11, v5
v_add_u32 v158, v10, v5
v_add_u32 v159, v9, v5
v_readlane_b32 s31, v243, 20
v_mov_b32 v13, 0
s_mov_b32 m0, s63""")
    for r in range(8): e(f'v_lshlrev_b32 v{ACC3+2*r}, 16, v{224+r}\nv_and_b32 v{ACC3+2*r+1}, 0xffff0000, v{224+r}')
    e('s_cmp_eq_u32 s31, s29\ns_cselect_b32 s31, 1, 0')
    if knob('nolocal', 0): e('s_mov_b32 s31, 0')
    stamp(e, 's2win')
    def aoff(n): return ((n >> 1) & 1)*2048 + (n & 1)*256 if M16 else (n & 3)*1024
    def ol(a, n):
        if n % 4 == 0 and (a, n) != (1, 0): e(f's_add_u32 m0, s{62+a}, {n*1024}')
        vm.op(f'buffer_load_dwordx4 {vr(AF+32*a+4*n,4)}, v255, s[12:15], m0 offen offset:{aoff(n)} sc1', f'O{a}{n}')
    poll2('L_s2', 'v13', None if NH & 2 else 's25 offen offset:128', 's25 offen', 16, [(lambda n=n: ol(1, n)) for n in range(8)])
    e('ds_read_b32 v157, v157 offset:8192\nds_read_b32 v158, v158 offset:8192\nds_read_b32 v159, v159 offset:8192')
    for n in range(4): ol(0, n)
    e(f"""v_and_b32 v3, 0x1f0, v2
s_and_b32 s76, s23, 3
s_lshl_b32 s77, s76, 5
s_add_u32 s77, s77, s24
s_lshl_b32 s77, s77, 2
v_mov_b32 v4, s77
v_min_u32 v5, 13, v1
v_lshlrev_b32 v5, 2, v5
s_lshl_b32 s77, s16, 5
s_add_u32 s77, s77, s20
s_lshl_b32 s77, s77, 2
v_mov_b32 v14, s77
s_mul_i32 s77, s16, 7
s_lshr_b32 s77, s77, 1
v_and_b32 v7, 3, v1
v_add_u32 v7, s77, v7
v_bfe_u32 v13, v1, 2, 1
v_lshl_add_u32 v7, v13, 5, v7
v_lshlrev_b32 v7, 2, v7
v_lshrrev_b32 v250, 2, v2
s_lshl_b32 s77, s16, 8
v_add_u32 v251, s77, v250
{'v_and_b32 v250, 60, v250' if M16 else ''}
s_lshl_b32 s76, s76, 8
v_add_u32 v250, s76, v250
s_waitcnt lgkmcnt(0)""")
    for b in range(4):
        e(f"""v_and_b32 v13, 0xffff0000, v{156+b}
v_sub_f32 v15, v{156+b}, v13
v_cvt_pk_bf16_f32 v15, v13, v15
v_lshrrev_b32 v13, 16, v13
v_lshl_or_b32 v13, v{244+b}, 16, v13
v_accvgpr_write_b32 a{224+4*b}, v15
v_accvgpr_write_b32 a{225+4*b}, v13
v_accvgpr_write_b32 a{226+4*b}, v{244+b}
v_accvgpr_write_b32 a{227+4*b}, 0""")
    for r in range(4 if M16 else 8): e(f'v_lshlrev_b32 v{144+2*r}, 16, v{232+r}\nv_and_b32 v{145+2*r}, 0xffff0000, v{232+r}')
    for b in range(4): e(f'v_xor_b32 v{WA+b}, {64*b}, v249\nv_xor_b32 v{WA+4+b}, {64*b}, v254')
    for n in range(4, 8): ol(0, n)
    def rwr(s, A, q): return f'ds_write_b128 v{12-s}, {vr(A+16*s+4*q,4)} offset:{(3-s)*4096 + q*1024}'
    def rrd(s, A, q): return f'ds_read_b128 {vr(A+16*s+4*q,4)}, v12 offset:{(3-s)*4096 + q*1024}'
    def mm(A, wk, wb, act, a, f, n, init):
        T = A + 16*(2*a + f)
        if not M16:
            return [f'{MF} {vr(T,16)}, {vr(wb+8*n+4*f,4,wk)}, {vr(act,4)}, ' + ('0' if n == 0 and init else vr(T, 16))]
        return [f'{MH} {vr(T+8*(n&1)+4*u,4)}, {vr(wb+16*(n>>1)+8*f+4*u,4,wk)}, {vr(act,4)}, ' + ('0' if n < 2 and init else vr(T+8*(n&1)+4*u, 4)) for u in range(2)]
    def m3(a, f, n): e('\n'.join(mm(ACC3, 'v', WOF, AF+32*a+4*n, a, f, n, (a, f) != (0, 0))))
    B2 = knob('b2', 8)
    for n in range(8):
        vm.wait(f'O1{n}'); stamp(e, f'o{n}'); m3(1, 1, n); m3(1, 0, n)
        if n >= 8 - B2: w2l(1, n == 8 - B2)
    LAG = 2
    for n in range(8):
        vm.wait(f'O0{n}'); stamp(e, f'o{8+n}'); m3(0, 1, n)
        if 1 <= n < 5: e(rwr(3 - (n-1)//2, ACC3, 2*((n-1) % 2)))
        if n >= LAG: m3(0, 0, n - LAG)
        if 1 <= n < 5: e(rwr(3 - (n-1)//2, ACC3, 2*((n-1) % 2) + 1))
        if n == knob('p3b', 5):
            e('s_waitcnt lgkmcnt(0)\ns_barrier')
            for q in range(4): e(rrd(3, ACC3, q) + '\n' + rrd(2, ACC3, q))
    stamp(e, 'p3mf')
    e('s_waitcnt lgkmcnt(0)')
    for n in range(8 - LAG, 8):
        m3(0, 0, n)
        for r in range(4*(n - 8 + LAG), 4*(n - 7 + LAG)): e(f'v_add_f32 v{ACC3+32+r}, v{ACC3+32+r}, v{ACC3+48+r}')
    for q in range(4):
        e(rwr(1, ACC3, q))
        for r in range(8 + 2*q, 10 + 2*q): e(f'v_add_f32 v{ACC3+32+r}, v{ACC3+32+r}, v{ACC3+48+r}')
    for p in range(8): e(f'v_pk_add_f32 {vr(ACC3+2*p,2)}, {vr(ACC3+2*p,2)}, {vr(ACC3+32+2*p,2)}')
    e('s_waitcnt lgkmcnt(0)\ns_barrier')
    for q in range(4): e(rrd(1, ACC3, q))
    HN = ' nt' if knob('hn', 0) else ''
    def dual(lines, tag, lab, loc=''):
        e(f's_cmp_lg_u32 s31, 0\ns_cbranch_scc0 {lab}_s')
        for l in lines: vm.op(l + loc, tag)
        e(f'{lab}_d:')
        slow.append(f'{lab}_s:\ns_nop 1\n' + '\n'.join(l + ' sc1' for l in lines) + f'\ns_nop 1\ns_branch {lab}_d')
    for q in range(4):
        e(f's_waitcnt lgkmcnt({3-q})')
        for p in (2*q, 2*q+1):
            e(f'v_pk_add_f32 {vr(ACC3+2*p,2)}, {vr(ACC3+2*p,2)}, {vr(ACC3+16+2*p,2)}')
            e(f'v_cvt_pk_bf16_f32 v{16+p}, v{ACC3+2*p}, v{ACC3+2*p+1}')
    dual([f'buffer_store_dwordx4 {vr(16+4*t,4)}, v255, s[12:15], s64 offen offset:{(256 if M16 else 1024)*t}' for t in range(2)], 'hst', 'L_h', HN)
    def psum(d, p0, p1):
        A = ACC3 + 2*p0
        e(f'v_pk_mul_f32 {vr(d+2,2)}, {vr(A,2)}, {vr(A,2)}\nv_pk_add_f32 {vr(d,2)}, {vr(A,2)}, {vr(A+2,2)}\nv_pk_fma_f32 {vr(d+2,2)}, {vr(A+2,2)}, {vr(A+2,2)}, {vr(d+2,2)}')
        for p in range(p0 + 2, p1):
            e(f'v_pk_add_f32 {vr(d,2)}, {vr(d,2)}, {vr(ACC3+2*p,2)}\nv_pk_fma_f32 {vr(d+2,2)}, {vr(ACC3+2*p,2)}, {vr(ACC3+2*p,2)}, {vr(d+2,2)}')
        e(f'v_add_f32 v{d}, v{d}, v{d+1}\nv_add_f32 v{d+1}, v{d+2}, v{d+3}')
    if M16:
        psum(24, 0, 4); psum(28, 4, 8)
        e('v_permlane16_swap_b32 v24, v28\nv_permlane16_swap_b32 v25, v29\nv_pk_add_f32 v[24:25], v[24:25], v[28:29]')
    else: psum(24, 0, 8)
    e("""v_mov_b32 v26, v24
v_mov_b32 v27, v25
v_permlane32_swap_b32 v24, v26
v_permlane32_swap_b32 v25, v27
v_pk_add_f32 v[24:25], v[24:25], v[26:27]""")
    dual(['buffer_store_dwordx2 v[24:25], v3, s[12:15], s65 offen'], 'hst', 'L_s', HN)
    stamp(e, 'p3st')
    w2l(knob('b3', 0), True)
    for p in range(8): e(f'v_pk_add_f32 {vr(224+2*p,2)}, {vr(144+2*(p % 4 if M16 else p),2)}, {vr(ACC3+2*p,2)}')
    HF, ACC4, WF, STT = 16, 128, 192, 208
    HP = knob('hp', 8); PER = knob('per', 76)
    SP = knob('sp', 10)
    order = list(range(SP + 1)) + ['s0', 's1', 's2', 's3'] + list(range(SP + 1, 28))
    arr = {x: n*PER for n, x in enumerate(order)}
    mlist = []; nxt = [0, 0, 0, 0]; t = 0
    while min(nxt) < 28:
        c = [b for b in range(4) if nxt[b] < 28 and arr[nxt[b]] <= t]
        if not c: t = min(arr[nxt[b]] for b in range(4) if nxt[b] < 28); continue
        b = min(c, key=lambda b: (b >> 1 and b, nxt[b], b))
        mlist.append((nxt[b], b)); nxt[b] += 1; t += 32
    M = len(mlist)
    last = [max(m for m, (s, b2) in enumerate(mlist) if b2 == b) for b in range(4)]
    firstm = [min(m for m, (s, b2) in enumerate(mlist) if b2 == b) for b in range(4)]
    def w1rd(dst, s, b, k='v'):
        base = WA + b + (4 if s >= 16 else 0); off = (s & 15)*4096
        return [f'ds_read_b64_tr_b16 {vr(dst+2*rd,2,k)}, v{base} offset:{off + rd*1024}' for rd in range(2)]
    def wreg(m): return ('v', WF + 4*(m & 7)) if (m & 7) < 4 else ('a', 240 + 4*((m & 7) - 4))
    def rds(m):
        s, b = mlist[m]; k, r = wreg(m)
        return w1rd(r, s, b, k)
    LD = 6
    for m in range(LD): e('\n'.join(rds(m)))
    e('s_mov_b32 m0, s67')
    vm.wait('hst')
    dual([f'buffer_store_dword v8, v4, s[12:15], s25 offen offset:{16*128}'], 'f3', 'L_f3')
    stamp(e, 'p3end')
    def poll(lab, addr, so):
        e(f"""s_mov_b32 s26, {POLL_MAX}
{lab}:
buffer_load_dword v13, {addr}, s[12:15], {so} sc1
s_sub_u32 s26, s26, 1
s_cbranch_scc1 {lab}_x
s_waitcnt vmcnt(0)
v_cmp_ne_u32 vcc, 1, v13
s_cbranch_vccnz {lab}
{lab}_x:""")
    poll('L_p3', 'v5', f's66 offen offset:{16*128}')
    stamp(e, 's3done')
    def hl(x):
        if isinstance(x, str):
            p = int(x[1]); vm.op(f'buffer_load_dwordx4 {vr(STT+4*p,4)}, v2, s[12:15], s68 offen offset:{1024*p} sc1', 'st'); return
        if x and x % 4 == 0: e(f's_add_u32 m0, s67, {x*1024}')
        vm.op(f'buffer_load_dwordx4 {vr(HF+4*x,4)}, v2, s[12:15], m0 offen offset:{(x&3)*1024} sc1', f'h{x}')
    for x in order[:HP]: hl(x)
    hq = order[HP:]
    XB = STT + 8
    def add_stats():
        F.add(lambda: vm.wait('st'))
        F.add('\n'.join(f'v_and_b32 v{STT+12+r}, v6, v{STT+12+r}' for r in range(4)))
        for k in range(1, 8): F.add(f'v_add_f32 v{STT}, v{STT}, v{STT+2*k}\nv_add_f32 v{STT+1}, v{STT+1}, v{STT+2*k+1}')
        F.add(ln_stats(STT, STT+1, STT+2, STT+3, STT+4, STT+5))
        F.add(f"""v_sub_f32 v{STT+3}, 0, v{STT+3}
v_and_b32 v{STT+3}, v6, v{STT+3}
v_and_b32 v{STT+5}, v6, v{STT+5}
v_and_b32 v{STT+6}, 0xffff0000, v{STT+3}
v_sub_f32 v{STT+7}, v{STT+3}, v{STT+6}
v_cvt_pk_bf16_f32 v{XB}, v{STT+6}, v{STT+6}
v_and_b32 v{STT+6}, 0xffff0000, v{STT+5}
v_cvt_pk_bf16_f32 v{XB+1}, v{STT+7}, v{STT+6}
v_sub_f32 v{STT+7}, v{STT+5}, v{STT+6}
v_cvt_pk_bf16_f32 v{XB+2}, v{STT+7}, 0
v_mov_b32 v{XB+3}, 0
v_mul_f32 v248, v{STT+4}, v{STT+4}""")
        F.mark('st')
    def epi(b):
        A = ACC4 + 16*b
        for p in range(8):
            F.add(f"""v_mul_f32 v{A+2*p}, v{A+2*p}, abs(v{A+2*p})
v_mul_f32 v{A+2*p+1}, v{A+2*p+1}, abs(v{A+2*p+1})
v_cvt_pk_bf16_f32 v{A+p}, v{A+2*p}, v{A+2*p+1}
v_pk_max_i16 v{A+p}, v{A+p}, 0""")
            if p % 4 == 3:
                l = f'buffer_store_dwordx4 {vr(A+4*(p//4),4)}, v2, s[12:15], s{72+b} offen offset:{1024*(p//4)}'
                if H1M == 0: F.add(lambda l=l: vm.op(l + ' sc1', 'h1st'))
                else: F.add(lambda l=l, n=2*b + p//4: dual([l], 'h1st', f'L_e{n}', ' nt' if H1M == 2 else ''))
    mst = min(m for m, (s, b) in enumerate(mlist) if s > SP) + 2
    XK = min(last[0], last[1]) - 1
    w2set = [True]
    for m, (s, b) in enumerate(mlist):
        if m == mst: add_stats()
        if m == last[1] + 1: stamp(e, 'p4a')
        for b2 in range(3):
            if m == last[b2] + 4: epi(b2)
        lg = f'lgkmcnt({2*max(0, min(LD-2, M-2-m))})' if m % 2 == 0 else ''
        vm.wait(f'h{s}', lg)
        if b == 0: stamp(e, f'h{s}')
        acc = vr(ACC4 + 16*b, 16); k, r = wreg(m)
        zero = s == 0
        if s == 0 and m > XK: e(f'{MF} {acc}, {ar(224+4*b,4)}, {vr(XB,4)}, 0'); zero = False
        e(f'{MF} {acc}, {vr(r,4,k)}, {vr(HF+4*s,4)}, ' + ('0' if zero else acc))
        if m % 2 == 1 and hq: hl(hq.pop(0)); n = 2
        elif m % 2 == 1 and w2n[0] < 56: w2l(1, w2set[0]); w2set[0] = False; n = 2
        else: n = 3 if m % 2 else 2
        if m + LD < M: e('\n'.join(rds(m + LD)))
        else: n += 2
        F.drain(n)
        if m == XK:
            F.need('st')
            for b2 in range(4):
                if firstm[b2] <= XK: e(f'{MF} {vr(ACC4+16*b2,16)}, {ar(224+4*b2,4)}, {vr(XB,4)}, {vr(ACC4+16*b2,16)}')
    stamp(e, 'p4mf')
    F.drain(999)
    w2l(56, w2set[0])
    epi(3); F.drain(999)
    e('s_barrier\nds_write_b32 v251, v248\ns_mov_b32 m0, s71')
    vm.wait('h1st')
    dual([f'buffer_store_dword v8, v14, s[12:15], s25 offen offset:{20*128}'], 'f4', 'L_f4')
    stamp(e, 'p4end')
    poll('L_p4', 'v7', f's69 offen offset:{20*128}')
    stamp(e, 's4done')
    GF, ACC5, RING = 16, 144, 32
    GP = knob('gp', 12)
    s5 = [(a, n) for a in (1, 0) for n in range(28)]
    def gl(i):
        a, n = s5[i]
        if i and n % 4 == 0: e(f's_add_u32 m0, s{70+a}, {n*1024}')
        vm.op(f'buffer_load_dwordx4 {vr(GF+4*(i%RING),4)}, v255, s[12:15], m0 offen offset:{aoff(n)} sc1', f'g{i}')
    def m5(a, f, n): e('\n'.join(mm(ACC5, 'a', 0, GF + 4*((n + 28*(1-a)) % RING), a, f, n, True)))
    ON_ = ' nt' if knob('on', 0) else ''
    RS = lambda r: 248 + (2*(r // 8) if M16 else 0)
    G0 = knob('g0', 5); gi = [G0]
    for i in range(G0): gl(i)
    def gnext(i):
        if gi[0] < min(56, i + 1 + GP): gl(gi[0]); gi[0] += 1
    for i, (a, n) in enumerate(s5):
        if i == 28: stamp(e, 'p5a')
        vm.wait(f'g{i}')
        stamp(e, f'g{i}')
        m5(a, 1, n)
        gnext(i)
        if a == 1: m5(1, 0, n); gnext(i)
        elif n >= LAG: m5(0, 0, n - LAG)
        if a == 0:
            if 3 <= n < 11: e(rwr(2 + (n-3)//4, ACC5, (n-3) % 4))
            if n == 13:
                e('s_waitcnt lgkmcnt(0)\ns_barrier\nds_read_b32 v248, v250')
                if M16: e('ds_read_b32 v250, v250 offset:64')
            if 14 <= n < 18: e(rrd(2, ACC5, n-14) + '\n' + rrd(3, ACC5, n-14))
            if n == 19: e('s_waitcnt lgkmcnt(0)')
            if 19 <= n < 27:
                for r in (2*(n-19), 2*(n-19)+1): e(f'v_add_f32 v{ACC5+32+r}, v{ACC5+32+r}, v{ACC5+48+r}\nv_fmac_f32 v{224+r}, v{RS(r)}, v{ACC5+32+r}')
    stamp(e, 'p5mf')
    for n in range(28 - LAG, 28): m5(0, 0, n)
    for q in range(4): e(rwr(1, ACC5, q))
    if M16: e(f's_add_u32 s26, s27, {16*896}')
    for p in range(8): e(f'v_pk_fma_f32 {vr(224+2*p,2)}, {vr(ACC5+2*p,2)}, {vr(RS(2*p),2)}, {vr(224+2*p,2)} op_sel_hi:[1,0,1]')
    e('s_waitcnt lgkmcnt(0)\ns_barrier')
    for q in range(4): e(rrd(1, ACC5, q))
    for t in range(2):
        e(f's_waitcnt lgkmcnt({2-2*t})')
        for p in range(4*t, 4*t+4):
            e(f'v_pk_fma_f32 {vr(224+2*p,2)}, {vr(ACC5+16+2*p,2)}, {vr(RS(2*p),2)}, {vr(224+2*p,2)} op_sel_hi:[1,0,1]')
            e(f'v_cvt_pk_bf16_f32 v{16+p}, v{224+2*p}, v{225+2*p}')
        if M16: e(f'buffer_store_dwordx4 {vr(16+4*t,4)}, v0, s[40:43], s{27-t} offen' + ON_)
        else: e(f'buffer_store_dwordx4 {vr(16+4*t,4)}, v0, s[40:43], s27 offen offset:{32*t}' + ON_)
    stamp(e, 'p5st')
    stamp_out(e)
    e('s_endpgm')
    for x in slow: e(x)
    if H1M == 3 or knob('wb', 0):
        e(f"""L_wb:
s_cmp_lg_u32 s20, 14
s_cbranch_scc1 L_end
s_cmp_lg_u32 s16, 0
s_cbranch_scc1 L_end
v_and_b32 v5, 15, v1
v_min_u32 v5, 13, v5
v_lshrrev_b32 v13, 4, v1
v_lshl_add_u32 v5, v13, 5, v5
v_lshlrev_b32 v5, 2, v5""")
        poll('L_wbp', 'v5', f's25 offen offset:{(20 if H1M == 3 else 16)*128}')
        e('buffer_wbl2 sc1\ns_waitcnt vmcnt(0)\ns_endpgm')
    e('L_fallback:\ns_mov_b32 s30, 1\ns_waitcnt vmcnt(0) lgkmcnt(0)\ns_barrier')
    for j in range(16):
        e(kvset(j)); kl(j, 0); kl(j, 1); vl(j, 0); vl(j, 1)
        if j == 7: e('s_waitcnt vmcnt(0)')
    e('s_waitcnt vmcnt(0)')
    MXB = SCR
    d = vr(S, 16)
    for s in range(4):
        e(f'v_mov_b32 v{128+s}, 0xff800000')
        for j in range(16):
            e(f'{MF} {d}, {ar(16*j,4)}, {vr(Q+8*s,4)}, 0\n{MF} {d}, {ar(16*j+4,4)}, {vr(Q+8*s+4,4)}, {d}')
            for p in range(8): e(f'v_max3_f32 v{128+s}, v{S+2*p}, v{S+2*p+1}, v{128+s}')
        e(f"""v_mov_b32 v13, v{128+s}
v_permlane32_swap_b32 v{128+s}, v13
v_max_f32 v{128+s}, v{128+s}, v13
s_xor_b32 s76, s16, {3-s}
s_lshl_b32 s76, s76, 9
s_add_u32 s76, s76, {MXB}
v_and_b32 v13, 31, v1
v_lshlrev_b32 v13, 4, v13
v_add_u32 v{132+s}, s76, v13
s_lshl_b32 s76, s16, 2
v_add_u32 v13, s76, v{132+s}
ds_write_b32 v13, v{128+s}""")
    e('s_waitcnt lgkmcnt(0)\ns_barrier')
    for s in range(4): e(f'ds_read_b128 {vr(S+4*s,4)}, v{132+s}')
    e('s_waitcnt lgkmcnt(0)\ns_barrier')
    for s in range(4):
        e(f'v_max3_f32 v{128+s}, v{S+4*s}, v{S+1+4*s}, v{S+2+4*s}\nv_max_f32 v{128+s}, v{128+s}, v{S+3+4*s}')
    for s in range(4):
        for r in range(16): e(f'v_sub_f32 v{NM+r}, 0, v{128+s}\nv_mov_b32 v{O+16*s+r}, 0')
        for j in range(16):
            e(f'{MF} {d}, {ar(16*j,4)}, {vr(Q+8*s,4)}, {vr(NM,16)}\n{MF} {d}, {ar(16*j+4,4)}, {vr(Q+8*s+4,4)}, {d}')
            for r in range(16): e(f'v_exp_f32 v{S+r}, v{S+r}')
            for t in range(2): e(f'{SM} {vr(O+16*s,16)}, {ar(16*j+8+4*t,4)}, {vr(S+8*t,8)}, v7')
            e('s_nop 7')
        e('s_nop 7')
    for k in range(12): e(pwr(k//4, k % 4))
    for n in range(W2A):
        a, b = wfrag('W2', n); e(a + '\n' + b)
    e('s_waitcnt vmcnt(0) lgkmcnt(0)\ns_barrier')
    for k in range(12): e(prd(k//4, k % 4))
    e('s_branch L_combine')
    e('L_end:')

def build1(e, path):
    head = open(f'cdna_kernels/{NAME}.s.ref').read().split('\n')
    name = NAME + '_kernel'
    out = head[:12] + (['; stamps: ' + ' '.join(ST_NAMES)] if STAMP else []) + ['; @launch grid=(256,1,1) block=(256,1,1) lds=163840', '.amdgcn_target "amdgcn-amd-amdhsa--gfx950"\n.text']
    e.fix('-v' in sys.argv)
    out.append(f'.globl {name}\n' + ('.p2align 12\n' if knob('al', 1) else '') + f'.p2align 8\n.type {name},@function\n{name}:')
    out.append(e.text() + '    s_endpgm')
    out.append(f""".section .rodata,"a"
.p2align 6
.amdhsa_kernel {name}
  .amdhsa_next_free_vgpr 512
  .amdhsa_next_free_sgpr 102
  .amdhsa_accum_offset 256
  .amdhsa_group_segment_fixed_size 0
  .amdhsa_kernarg_size 88
  .amdhsa_user_sgpr_count 2
  .amdhsa_user_sgpr_kernarg_segment_ptr 1
  .amdhsa_system_sgpr_workgroup_id_x 1
.end_amdhsa_kernel""")
    open(path, 'w').write('\n'.join(out) + '\n')

if __name__ == '__main__':
    e = Asm(); kernel(e)
    outs = [a for a in sys.argv[1:] if a.endswith('.s')]
    build1(e, outs[0] if outs else 'v8.s')
```

```python
import sys, math, struct
from asmlib import *

NAME = 'sequential_preLN__mha_block__dense_activation_squared_relu__prompt'
MF = 'v_mfma_f32_32x32x16_bf16'
MH = 'v_mfma_f32_16x16x32_bf16'
SM = 'v_smfmac_f32_32x32x32_bf16'
def f32(x): return '0x%08x' % struct.unpack('<I', struct.pack('<f', x))[0]
QSCALE = math.log2(math.e) / math.sqrt(28.0)

VP, ONE, TTP = 28672, 57344, 57600
WS_O, WS_H, WS_S, WS_H1, WS_WF, WS_FL, WS_ST = 0x600000, 0x800000, 0x9E0000, 0xA40000, 0x1200000, 0x1400000, 0x1500000
WS_F1, WS_F2, HINT = WS_FL + 0x10000, WS_FL + 0x14000, 0x8000
WS_BYTES = 0x1600000
WFP = 144*2048
POLL_MAX = 1 << 18
STAMP = '--stamp' in sys.argv
def knob(name, d):
    for a in sys.argv:
        if a.startswith(name + '='): return int(a.split('=')[1])
    return d
ST_NAMES = ['start p1go p1st s1sig s1done a0 comb end', 'comb s2sig s2done p3end s3done p4end s4done end',
            'p1go p1end p1st s1sig s1win s1done a0 aB', 's2sig s2win s2done p3mf p3st p3end s3done p4a',
            's3done p4a p4mf p4end s4done p5a p5mf p5st', 'a0 a6 a16 a28 a38 aB a58 comb',
            'start p1ld p1w p1go c1 c3 c5 p1end', 's3done h0 h5 h10 h18 h27 p4mf p4end', 's4done g0 g8 g16 g28 g40 p5mf p5st', 's2done o0 o4 o8 o12 p3mf p3st p3end'][knob('st', 0)].split()

for a in sys.argv:
    if a.startswith('names='): ST_NAMES = a[6:].split(',')
def stamp(e, name):
    if STAMP:
        for i, n in enumerate(ST_NAMES):
            if n == name: e(('s_memtime' if '--cyc' in sys.argv and (i or knob('dwg', -1) < 0) else 's_memrealtime') + f' s[{84+2*i}:{85+2*i}]')
def stamp_out(e):
    if not STAMP: return
    if knob('dwg', -1) >= 0:
        stamp(e, 'end')
        e(f'''s_cmp_lg_u32 s2, {knob('dwg', 0)}
s_cbranch_scc1 L_dgx
s_cmp_lg_u32 s16, {knob('dwv', 0)}
s_cbranch_scc1 L_dgx
s_waitcnt lgkmcnt(0)
s_sub_u32 s4, s88, s86
s_mul_i32 s4, s4, {1 if '--cyc' in sys.argv else 10}
s_min_u32 s4, s4, 50000
s_add_u32 s4, s4, 10000
s_mov_b32 s10, 2000000
L_dgl:
s_sub_u32 s10, s10, 1
s_cbranch_scc1 L_dgx
s_memrealtime s[8:9]
s_waitcnt lgkmcnt(0)
s_sub_u32 s8, s8, s84
s_cmp_lt_u32 s8, s4
s_cbranch_scc1 L_dgl
L_dgx:''')
        return
    e('s_waitcnt vmcnt(0)')
    stamp(e, 'end')
    e('s_waitcnt lgkmcnt(0)')
    e(f's_lshl_b32 s3, s2, 2\ns_add_u32 s3, s3, s16\ns_lshl_b32 s3, s3, 6\ns_add_u32 s3, s3, {WS_ST}\nv_mov_b32 v1, 0')
    for i in range(8):
        e(f'v_mov_b32 v0, s{84+2*i}\nbuffer_store_dword v0, v1, s[12:15], s3 offen offset:{4*i}')

def swap23(d, s, t):
    return f'''v_and_b32 v{d}, 0x33, v{s}
v_and_b32 v{t}, 4, v{s}
v_lshl_or_b32 v{d}, v{t}, 1, v{d}
v_lshrrev_b32 v{t}, 1, v{s}
v_and_or_b32 v{d}, v{t}, 4, v{d}'''
def halves_sum(r, t):
    return f'v_mov_b32 v{t}, v{r}\nv_permlane32_swap_b32 v{r}, v{t}\nv_add_f32 v{r}, v{r}, v{t}'
def ln_stats(vs, vq, t, mean, rstd, sig=None):
    s = halves_sum(vs, t) + '\n' + halves_sum(vq, t) + f'''
v_mul_f32 v{mean}, {f32(1/448)}, v{vs}
v_mul_f32 v{t}, v{mean}, v{mean}
v_mov_b32 v{rstd}, {f32(1/448)}
v_fma_f32 v{t}, v{vq}, v{rstd}, -v{t}
v_max_f32 v{t}, 0, v{t}
v_add_f32 v{t}, {f32(1e-5)}, v{t}
v_rsq_f32 v{rstd}, v{t}'''
    if sig is not None: s += f'\nv_mul_f32 v{sig}, v{t}, v{rstd}'
    return s

class Fill:
    def __init__(self, e): self.e = e; self.q = []
    def add(self, text):
        if not isinstance(text, str): self.q.append(text); return
        for l in text.split('\n'):
            l = l.strip()
            if not l: continue
            if l.startswith(('s_cselect', 's_addc')): self.q[-1] += '\n' + l
            else: self.q.append(l)
    def mark(self, tag): self.q.append(('mark', tag))
    def drain(self, k):
        while k > 0 and self.q:
            x = self.q.pop(0)
            if isinstance(x, tuple): continue
            if isinstance(x, str): self.e(x)
            else: x()
            k -= 1
    def need(self, tag):
        while ('mark', tag) in self.q: self.drain(1) if self.q[0] != ('mark', tag) else self.q.pop(0)

def kernel(e):
    vm = VM(e); slow = []
    XR, WQ, CSB, QX = 65536, 114688, 143360, 147456
    SCR = 114688
    MAP = knob('map', 8); M16 = knob('m16', 1); H1M = knob('h1m', 2)
    Q, O, S, WOF, NM = 16, 48, 112, 160, 144
    def emit(l, tag):
        for x in l:
            if x.startswith(('buffer', 'global')): vm.op(x, tag)
            else: e(x)
    e("""s_getpc_b64 s[80:81]
L_pc0:
s_lshr_b32 s76, s2, 3
v_lshrrev_b32 v10, 4, v0
v_lshl_add_u32 v10, s76, 4, v10
v_min_u32 v10, (L_fallback-L_pc0)/128, v10
v_lshlrev_b32 v10, 7, v10""")
    vm.op('global_load_dword v31, v10, s[80:81]', 'T')
    e("""s_load_dwordx4 s[4:7], s[0:1], 0
s_load_dwordx2 s[12:13], s[0:1], 80""")
    stamp(e, 'start')
    e("""s_cmp_ge_u32 s76, 32
s_cbranch_scc1 L_end
v_lshrrev_b32 v2, 6, v0
v_and_b32 v1, 63, v0
v_readfirstlane_b32 s16, v2
s_and_b32 s51, s2, 7""")
    lg = {2: 1, 4: 2, 8: 3}[MAP]
    ROT = knob('rot', 2)
    WSB = knob('wsb', 0) << 20
    wsb = f's_add_u32 s12, s12, {WSB}\ns_addc_u32 s13, s13, 0' if WSB else ''
    rotc = {7: f's_lshr_b32 s48, s76, {5-lg}\ns_lshl1_add_u32 s48, ' + ('s48, s77' if MAP <= 4 else 's77, s48') + '\ns_mul_i32 s77, s48, 37\ns_lshr_b32 s77, s77, 8\ns_mul_i32 s77, s77, 7\ns_sub_u32 s48, s48, s77',
            1: 's_mov_b32 s48, 0', 2: 's_lshr_b32 s48, s17, 1\ns_add_u32 s48, s48, s18\ns_and_b32 s48, s48, 1',
            4: 's_add_u32 s48, s17, s18\ns_and_b32 s48, s48, 3\ns_lshl_b32 s48, s48, 1'}[ROT]
    def adv(r, step, it):
        if it == 0: return []
        if ROT == 1 or (ROT == 2 and it > 2): return [f's_add_u32 s{r}, s{r}, {step}']
        if ROT == 2: return [f's_sub_u32 s{r}, {step}, s{r}' if it == 1 else f's_mov_b32 s{r}, {2*step}']
        return [f's_add_u32 s{r}, s{r}, {step}', f's_cmp_lg_u32 s{r}, {7*step}\ns_cselect_b32 s{r}, s{r}, 0']
    e(f"""s_lshr_b32 s17, s51, {lg-1}
s_lshl_b32 s17, s17, {lg}
s_lshr_b32 s77, s76, {5-lg}
s_add_u32 s17, s17, s77        ; qb
s_and_b32 s18, s51, {MAP//2 - 1}
s_lshl_b32 s18, s18, {5-lg}
s_and_b32 s77, s76, {32//MAP - 1}
s_add_u32 s18, s18, s77        ; head
s_lshl2_add_u32 s79, s17, s16
{rotc}
s_mul_i32 s55, s79, {32*896}
s_mul_i32 s54, s16, {16*2688}
s_and_b32 s77, s17, 1
s_lshl2_add_u32 s77, s77, {knob('lh', 1)}
s_cmp_gt_u32 s18, s77
s_subb_u32 s30, s18, 0
s_sub_u32 s78, s18, s77
s_cmp_gt_i32 s78, 7
s_subb_u32 s30, s30, 0
s_bitcmp1_b32 0x81, s78
s_cselect_b32 s30, 15, s30     ; window
s_lshl_b32 s56, s30, 7
s_add_u32 s56, s56, s54
s_add_u32 s56, s56, 896
s_mul_i32 s49, s48, {64*2688}
s_lshl_b32 s48, s48, 7
s_mov_b32 s50, s49
s_mul_i32 s52, s16, 12288
s_add_u32 s52, s52, {XR}
s_lshl_b32 s53, s16, 11
v_lshrrev_b32 v64, 3, v1
v_lshrrev_b32 v65, 4, v1
v_and_b32 v66, 7, v1
v_xor_b32 v67, v65, v66
v_mul_u32_u24 v68, 896, v64
v_lshl_add_u32 v2, v67, 4, v68
v_add_u32 v2, s55, v2
v_xor_b32 v3, 64, v2
v_add_u32 v3, 6144, v3
v_add_u32 v4, 12288, v2
v_add_u32 v5, 12288, v3
v_and_b32 v67, 1, v65
v_lshlrev_b32 v67, 2, v67
v_xor_b32 v69, v67, v66
v_mul_u32_u24 v67, 2688, v64
v_lshl_add_u32 v6, v69, 4, v67
v_add_u32 v6, s56, v6
v_add_u32 v7, {8*2688-1024}, v6
s_mov_b32 s11, 0x00020000
s_mov_b32 m0, s53
s_waitcnt lgkmcnt(0)
{wsb}
s_cmp_lt_u32 s30, 14
s_cselect_b32 s10, {448*2688}, 0
s_mov_b64 s[8:9], s[6:7]
s_mov_b32 s6, {2048*896}
s_mov_b32 s7, s11
s_cbranch_scc0 L_light""")
    stamp(e, 'p1ld')
    def wload(it):
        return ([f's_add_u32 m0, s53, {it*8192}'] if it else []) + adv(49, 64*2688, it) + \
               [f'buffer_load_dwordx4 v{6+j}, s[8:11], s49 offen offset:{1024*j} lds' for j in range(2)]
    def xload(it):
        return [f's_add_u32 m0, s52, {(it%3)*4096}'] + adv(48, 128, it) + \
               [f'buffer_load_dwordx4 v{2+i}, s[4:7], s48 offen offset:{1024*i} lds' for i in range(4)]
    emit(wload(0) + xload(0), 0)
    TLB = knob('tlb', 2)
    def touches():
        QT = knob('qt', 1) and MAP == 8
        if QT:
            e(f'''s_and_b32 s77, s51, 3
s_mul_i32 s77, s77, 7
s_lshr_b32 s77, s77, 2
s_lshl_b32 s77, s77, 7
s_mul_i32 s78, s76, {14*2688}
s_add_u32 s77, s77, s78
v_lshrrev_b32 v70, 4, v0
v_min_u32 v70, 13, v70
v_mul_u32_u24 v70, 2688, v70
v_bfe_u32 v71, v0, 2, 2
v_min_u32 v71, 2, v71
v_lshl_add_u32 v70, v71, 7, v70
v_add_u32 v70, s77, v70''')
            vm.op('global_load_dword v31, v70, s[8:9]', 'T')
        if knob('pt', 1):
            e(f'''s_lshl4_add_u32 s77, s17, s18
s_lshl2_add_u32 s77, s77, s16
s_mul_i32 s77, s77, {2*896}
v_min_u32 v70, 4, v66
v_lshlrev_b32 v70, 7, v70
v_and_b32 v71, 1, v64
v_mul_u32_u24 v71, 896, v71
v_add_u32 v70, v70, v71
s_mul_i32 s78, s79, {5*2688}
s_lshl_b32 s57, s30, 7
s_add_u32 s78, s78, s57
s_add_u32 s78, s78, {128*2688 + 896}
v_min_u32 v71, 4, v64
v_mul_u32_u24 v71, 2688, v71
s_mov_b64 exec, 0xffff''')
            vm.op('buffer_load_dword v31, v70, s[4:7], s77 offen offset:256', 'T')
            e('s_mov_b64 exec, -1')
            vm.op('buffer_load_dword v31, v71, s[8:11], s78 offen', 'T')
        if TLB: e('s_min_u32 s77, s76, 10\ns_sub_u32 s31, s76, s77\ns_lshl_b32 s77, s77, 3\ns_load_dwordx2 s[82:83], s[0:1], s77\ns_lshl_b32 s31, s31, 20')
        if TLB and WSB: e(f's_add_u32 s78, s31, {WSB}\ns_cmp_lt_u32 s76, 10\ns_cselect_b32 s31, 0, s78')
        e(f"""s_load_dwordx2 s[40:41], s[0:1], 16
s_load_dwordx2 s[42:43], s[0:1], 48
s_load_dwordx2 s[60:61], s[0:1], 32
s_load_dwordx2 s[100:101], s[0:1], 72
s_mov_b32 s14, {WS_BYTES}
s_mov_b32 s15, 0x00020000
v_mov_b32 v219, 0""")
        if TLB == 2:
            e('v_mov_b32 v70, s31\ns_waitcnt lgkmcnt(0)'); vm.op('global_load_dword v31, v70, s[82:83]', 'T')
    touches()
    emit(wload(1) + xload(1), 1)
    e('s_waitcnt lgkmcnt(0)')
    if TLB == 1: e('s_load_dword s26, s[82:83], s31')
    def addrs():
        e("""v_and_b32 v73, 31, v1
v_lshrrev_b32 v71, 1, v73
v_lshrrev_b32 v72, 5, v1
v_xor_b32 v71, v71, v72
v_and_b32 v71, 7, v71
v_lshlrev_b32 v71, 4, v71
v_lshl_add_u32 v71, v73, 7, v71
v_add_u32 v71, s52, v71
s_lshl_b32 s77, s16, 5
v_xor_b32 v9, s77, v71
v_xor_b32 v10, 32, v9
v_xor_b32 v11, 64, v9
v_xor_b32 v12, 0x60, v9
v_bfe_u32 v76, v1, 2, 2
v_lshl_add_u32 v74, v72, 3, v76
v_and_b32 v75, 16, v1
v_lshlrev_b32 v75, 1, v75
v_and_b32 v71, 1, v1
v_lshl_add_u32 v75, v71, 4, v75
v_bfe_u32 v71, v1, 1, 1
v_lshl_add_u32 v75, v71, 3, v75
v_lshl_add_u32 v13, v74, 7, v75
v_bfe_u32 v71, v1, 3, 1
v_lshl_add_u32 v13, v71, 6, v13
v_add_u32 v13, s53, v13""")
        for n in range(1, 8): e(f'v_xor_b32 v{13+n}, {2048*(n >> 1) + 64*(n & 1)}, v13')
        e('v_mov_b32 v25, 0x3f803f80\nv_mov_b32 v26, 0\nv_mov_b32 v27, 0\nv_mov_b32 v28, 0\nv_mov_b32 v29, 0')
    addrs()
    F = Fill(e); park = []
    def prk(dst, src): F.add(f'v_accvgpr_write_b32 a{len(park)}, v{src}'); park.append(dst)
    F.add(f"""s_mov_b32 s36, s8
s_mov_b32 s37, s9
s_mov_b32 s38, {448*2688}
s_mov_b32 s39, 0x00020000
s_and_b32 s28, s18, 1
s_lshr_b32 s77, s18, 1
s_mul_i32 s77, s77, 7
s_mul_i32 s78, s28, 3
s_add_u32 s78, s78, s77
s_lshl4_add_u32 s77, s78, s54
s_lshr_b32 s54, s53, 1
s_add_u32 s54, s54, {WQ}
v_lshrrev_b32 v70, 2, v1
v_mul_u32_u24 v71, 2688, v70
v_and_b32 v77, 3, v1
v_lshl_add_u32 v8, v77, 4, v71
v_add_u32 v8, s77, v8""")
    F.mark('wq')
    F.add(swap23(64, 73, 71))
    F.add(f"""v_lshlrev_b32 v254, 4, v1
v_lshlrev_b32 v71, 4, v64
v_lshl_add_u32 v71, v72, 9, v71
s_lshl_b32 s77, s78, 9
v_add_u32 v71, s77, v71""")
    prk(3, 71)
    F.add(f"""v_mul_u32_u24 v71, 7168, v72
v_lshl_add_u32 v240, v64, 4, v71
v_add_u32 v241, 14336, v240
s_mul_i32 s77, s18, 448
s_add_u32 s77, s77, {VP}
v_add_u32 v66, s77, v240
v_add_u32 v67, s77, v241
v_mov_b32 v78, {WS_BYTES}
v_mov_b32 v71, {ONE}
v_cmp_eq_u32 vcc, 28, v73
v_cndmask_b32 v71, v78, v71, vcc
v_cmp_gt_u32 vcc, 28, v73
v_cndmask_b32 v66, v71, v66, vcc
v_cndmask_b32 v67, v71, v67, vcc""")
    prk(4, 66); prk(248, 67)
    F.add(f"""v_lshlrev_b32 v242, 3, v73
v_add_u32 v242, {CSB}, v242
s_lshl_b32 s77, s16, 8
v_add_u32 v243, s77, v242
s_mul_i32 s58, s79, {TTP}
s_lshl_b32 s57, s30, 12
s_lshl_b32 s77, s30, 10
s_add_u32 s77, s77, {VP - 7*1024}
s_cmp_lt_u32 s30, 7
s_cselect_b32 s57, s57, s77
s_add_u32 s57, s57, s58
s_add_u32 s58, s58, {ONE}
s_cmp_eq_u32 s30, 13
s_cselect_b32 s58, s58, {WS_BYTES}
v_min_u32 v244, 0x70, v254
s_lshl4_add_u32 s3, s79, s18
s_lshl_b32 s3, s3, 11
s_add_u32 s3, s3, {WS_O}
v_lshl_add_u32 v21, v74, 6, v75
v_add_u32 v21, s54, v21
v_xor_b32 v22, 1024, v21
v_xor_b32 v23, 2048, v21
v_xor_b32 v24, 3072, v21
v_mov_b32 v30, 0""")
    for r in (218, 221, 222, 223, 226, 227, 230, 231, 234, 235): F.add(f'v_mov_b32 v{r}, 0')
    for r in range(236, 240): F.add(f'v_mov_b32 v{r}, v25')
    F.add(f"""s_bfe_u32 s20, s2, 0x40003     ; j
s_lshr_b32 s19, s2, 7
s_lshl1_add_u32 s19, s51, s19  ; rb
s_lshl_b32 s25, s19, 12
s_add_u32 s25, s25, {WS_FL}
s_getreg_b32 s76, hwreg(HW_REG_XCC_ID, 0, 4)
s_lshl_b32 s77, s76, 2
s_lshl_b32 s29, 14, s77
s_lshl_b32 s77, 1, s77
s_cmp_lt_u32 s76, 8
s_cselect_b32 s77, s77, 0
s_cmp_lt_u32 s20, 14
s_cselect_b32 s77, s77, 0
v_lshlrev_b32 v79, 7, v1
s_lshl_b32 s76, s17, 7
s_add_u32 s76, s76, {WS_F1}
s_add_u32 s78, s76, {WS_F2 - WS_F1}
s_cmp_lt_u32 s30, 14
s_cselect_b32 s76, s76, s78
v_lshl_add_u32 v255, v79, 4, s76
s_add_u32 s78, s25, {24*128}
v_writelane_b32 v255, s78, 8
s_cmp_eq_u32 s16, 0
s_cselect_b32 s76, 9, 0
v_cmp_gt_u32 vcc, s76, v1
v_cndmask_b32 v255, v78, v255, vcc
v_mov_b32 v253, 1
v_writelane_b32 v253, s77, 8""")
    F.add(f"""s_and_b32 s21, s20, 1          ; th
s_lshr_b32 s22, s20, 1         ; fb
s_lshl1_add_u32 s23, s19, s21
s_lshr_b32 s76, s16, 1
s_and_b32 s77, s22, {knob('flip', 1)}
s_xor_b32 s76, s76, s77
s_lshl1_add_u32 s23, s23, s76
s_and_b32 s76, s16, 1
s_lshl1_add_u32 s24, s22, s76
s_lshl_b32 s77, s76, {11 if M16 else 10}
v_add_u32 v66, s77, v254
s_lshl_b32 s65, s23, 12
s_lshl3_add_u32 s65, s76, s65
s_lshl_b32 s77, s22, 9
s_add_u32 s65, s65, s77
s_add_u32 s65, s65, {WS_S}
s_mul_i32 s27, s23, {32*896}
s_lshl_b32 s77, s24, 11
s_add_u32 s64, s27, s77
s_add_u32 s64, s64, {WS_H}     ; h tile
s_lshl_b32 s76, s24, 6
s_add_u32 s27, s27, s76""")
    prk(171, 66)
    if M16:
        F.add("""v_and_b32 v66, 15, v1
v_mul_u32_u24 v67, 896, v66
v_lshlrev_b32 v71, 4, v65
v_add_u32 v67, v67, v71
v_lshlrev_b32 v66, 4, v66
v_lshl_add_u32 v66, v65, 9, v66""")
        prk(172, 66)
    else:
        F.add('v_mul_u32_u24 v67, 896, v73\nv_lshlrev_b32 v71, 4, v72\nv_add_u32 v67, v67, v71')
    F.add(f"""v_add_u32 v71, s76, v71
s_lshl_b32 s76, s20, 8
s_lshl_b32 s77, s16, 6
s_add_u32 s77, s77, s76
v_lshl_add_u32 v66, v64, 1, s77""")
    prk(0, 67); prk(160, 71); prk(161, 66)
    F.add(f"""s_mov_b32 s31, s77
s_lshl2_add_u32 s77, s2, s16
s_mul_i32 s77, s77, 1664
s_min_u32 s77, s77, {448*3584 - 1664}
v_min_u32 v249, 12, v70
v_lshlrev_b32 v249, 7, v249""")
    prk(177, 249)
    F.add(f"""
s_add_u32 s82, s60, s77
s_addc_u32 s83, s61, 0
s_mul_i32 s77, s16, {16*3584}
s_add_u32 s77, s77, s76
s_add_u32 s60, s60, s77
s_addc_u32 s61, s61, 0
s_lshl_b32 s59, s16, 12
v_cmp_gt_u32 vcc, 32, v1
s_cmp_eq_u32 s28, 0
s_cselect_b32 s76, -1, 0
v_cndmask_b32 v66, 0, -1, vcc
v_not_b32 v67, v66
v_or_b32 v67, s76, v67
s_not_b32 s76, s76
v_or_b32 v71, s76, v66""")
    prk(6, 66); prk(13, 67); prk(5, 71)
    F.add(f's_add_u32 s76, s53, {QX}\nv_add_u32 v66, s76, v254'); prk(15, 66)
    for s in range(4):
        F.add(f's_xor_b32 s76, s16, {3-s}\ns_mul_i32 s76, s76, 12288\ns_add_u32 s76, s76, {SCR}\nv_add_u32 v66, s76, v254'); prk(9 + s, 66)
    F.add("""v_lshlrev_b32 v66, 2, v65
v_and_b32 v67, 15, v1
v_xor_b32 v66, v66, v67
v_mul_u32_u24 v67, 3584, v65
v_lshl_add_u32 v66, v66, 4, v67""")
    prk(165, 66)
    F.add("""v_lshl_add_u32 v66, v74, 8, v75
v_xor_b32 v67, s16, v76
v_lshl_add_u32 v66, v67, 6, v66""")
    prk(173, 66)
    ST = knob('sm', 0)
    if ST & 2: F.add('v_mov_b32 v66, v78')
    else: F.add(f"""v_add_u32 v66, s64, v79
s_and_b32 s76, s65, 0xffffff80
s_sub_u32 s76, s76, {16*128}
v_add_u32 v67, s76, v79
v_cmp_gt_u32 vcc, 16, v1
v_cndmask_b32 v66, v67, v66, vcc
v_cmp_gt_u32 vcc, 20, v1
v_cndmask_b32 v66, v78, v66, vcc""")
    F.add(f"""s_lshl_b32 s51, s51, 11
s_add_u32 s76, s51, {WS_F2 - 48*128}
v_add_u32 v67, s76, v79
v_cmp_gt_u32 vcc, 48, v1
v_cndmask_b32 v66, v67, v66, vcc
v_writelane_b32 v66, s78, 20
s_add_u32 s51, s51, {WS_F1}
s_bfe_u32 s76, s2, 0x20003
s_lshl2_add_u32 s76, s76, s16
s_lshl_b32 s76, s76, 11
v_and_b32 v67, 0x780, v79
v_add_u32 v71, s76, v67
v_min_u32 v71, L_fallback-L_pc1, v71""")
    prk(241, 66); prk(169, 67); prk(170, 71); prk(240, 79)
    F.add(f"""s_lshl_b32 s76, s17, 12
s_add_u32 s76, s76, {WS_FL}
s_cmp_eq_u32 s16, 0
s_cselect_b32 s76, s76, {WS_BYTES}
v_writelane_b32 v78, s76, 0
v_mul_u32_u24 v66, 12288, v77
v_add_u32 v66, {SCR}, v66
v_lshlrev_b32 v67, 2, v73
v_sub_u32 v67, v67, v254""")
    prk(174, 78); prk(175, 66); prk(176, 67)
    F.add(f"""s_and_b32 s76, s17, {knob('kvm', 1)}
s_lshl1_add_u32 s76, s16, s76
s_mul_i32 s46, s76, {8*TTP}
s_xor_b32 s76, s76, 1
s_mul_i32 s47, s76, {8*TTP}
s_mul_i32 s44, s22, {WFP}
s_add_u32 s44, s44, {WS_WF}
s_cmp_lt_u32 s20, 14
s_cselect_b32 s44, s44, {WS_BYTES}
s_mul_i32 s45, s16, {28*2048}
s_add_u32 s45, s45, s44
s_lshl2_add_u32 s44, s59, s44
s_add_u32 s44, s44, {112*2048} ; Wo fragments of this wave
s_lshl_b32 s62, s23, 15
s_lshl1_add_u32 s62, s59, s62
s_add_u32 s62, s62, {WS_O}
s_xor_b32 s63, s62, 32768
s_lshl_b32 s66, s16, 7
s_add_u32 s66, s66, s25
s_lshl2_add_u32 s76, s19, s16
s_mul_i32 s67, s76, 28672
s_add_u32 s67, s67, {WS_H}
s_lshl_b32 s68, s76, 12
s_add_u32 s68, s68, {WS_S}
s_mul_i32 s28, s76, 114688
s_lshl_b32 s77, s20, 13
s_add_u32 s28, s28, s77
s_add_u32 s28, s28, {WS_H1}
s_add_u32 s72, s28, s53
s_xor_b32 s73, s72, 2048
s_xor_b32 s74, s72, 4096
s_xor_b32 s75, s72, 6144
s_lshl_b32 s69, s21, 8
s_add_u32 s69, s69, s25
s_mul_i32 s76, s16, {28*1024}
s_add_u32 s76, s76, {WS_H1}
s_mul_i32 s70, s23, 114688
s_add_u32 s70, s70, s76
s_xor_b32 s77, s23, 1
s_mul_i32 s71, s77, 114688
s_add_u32 s71, s71, s76""")
    qall = list(F.q)
    F.drain(knob('f0', 400))
    stamp(e, 'p1w')
    ACC, QA, WF, XF = 32, 64, 80, 104
    XM, RM, CF, ON = 216, 220, 224, 236
    def reads(s, ty):
        it, kk = divmod(s, 4); b = s % 3
        l = [f'ds_read_b128 {vr(XF+4*s,4)}, v{9+kk} offset:{(it%3)*4096}']
        if ty != 'l':
            for f in range(2):
                for rd in range(2):
                    l.append(f'ds_read_b64_tr_b16 {vr(WF+8*b+4*f+2*rd,2)}, v{13+2*kk+f} offset:{it*8192 + rd*512}')
        return l
    def xdots(s):
        for r in range(4):
            x = XF + 4*s + r
            e(f'v_dot2c_f32_bf16 v26, v{x}, v25\nv_dot2c_f32_bf16 v27, v{x}, v{x}')
    wq = [[f's_add_u32 m0, s54, {it*4096}'] + adv(50, 64*2688, it) + ['buffer_load_dwordx4 v8, s[36:39], s50 offen lds'] for it in range(7)]
    WQS = [int(c) for c in str(knob('wqs', 0)) if c != '0']
    WQE = knob('wqe', 7)
    early = {c - 1: wq[n] for n, c in enumerate(WQS)}
    rdy = 'global_load_dword v245, v219, s[100:101] sc1'
    def rdycheck(lab):
        e(f"""v_cmp_gt_u32 vcc, 32, v245
s_cbranch_vccnz {lab}p
{lab}d:""")
        slow.append(f"""{lab}p:
s_mov_b32 s26, {POLL_MAX}
{lab}l:
global_load_dword v245, v219, s[100:101] sc1
s_sub_u32 s26, s26, 1
s_cbranch_scc1 {lab}d
s_waitcnt vmcnt(0)
v_cmp_gt_u32 vcc, 32, v245
s_cbranch_vccnz {lab}l
s_branch {lab}d""")
    xm_frag = f"""v_cmp_gt_u32 vcc, 32, v1
v_sub_f32 v247, 0, v247
v_cndmask_b32 v247, 0, v247, vcc
v_and_b32 v26, 0xffff0000, v247
v_sub_f32 v27, v247, v26
v_cvt_pk_bf16_f32 v{XM}, v26, v26
v_cvt_pk_bf16_f32 v{XM+1}, v27, 0"""
    e('s_cmp_lt_u32 s30, 7\ns_cbranch_scc1 L_kk')
    vm0 = (list(vm.seq), vm.done); q0 = list(F.q)
    def variant(ty, lab):
        if lab: e(f'{lab}:')
        vm.seq, vm.done = list(vm0[0]), vm0[1]; F.q = list(q0)
        per = (len(F.q) + 5) // 6
        lt = wq[len(WQS):WQE]
        vm.wait(0); e('s_barrier')
        stamp(e, 'p1go')
        e('\n'.join(reads(0, ty) + reads(1, ty)))
        emit(wload(2), 2)
        for s in range(28):
            it, kk = divmod(s, 4); b = s % 3
            if kk == 0: stamp(e, f'c{it}')
            x = vr(XF+4*s, 4)
            mf = []
            for f in range(2):
                w = vr(WF+8*b+4*f, 4); a = vr(ACC+16*f, 16); c = a if s else '0'
                mf.append(f'{MF} {a}, {w}, {x}, {c}' if ty == 'k' else f'{MF} {a}, {x}, {w}, {c}')
            rd = reads(s+2, ty) if s < 26 else []
            if s < 18:
                if kk < 2: L = xload(it + 2); tag = it + 2; ld = {0: (L[:-3], L[-3:-2]), 1: (L[-2:-1], L[-1:])}[kk]
                else: L = wload(it + 3); tag = it + 3; ld = {2: ([], L[:-1]), 3: (L[-1:], [])}[kk]
            else:
                tag = 'wq'; F.need('wq')
                ld = ([], lt.pop(0) if lt else [])
            if s < 27: e(f's_waitcnt lgkmcnt({5 if s < 26 else 0})')
            if kk == 2:
                for r in range(4):
                    for f in range(2): e(f'v_dot2c_f32_bf16 v{28+f}, v{WF+8*b+4*f+r}, v25')
                for s2 in range(max(0, s-3), s + (2 if s == 26 else 1)): xdots(s2)
                if s < 26:
                    F.drain(per if s < 22 else 999)
                    vm.wait(it + 1); e('s_barrier')
                else:
                    for f in range(2): e(halves_sum(28+f, 246))
                    e('ds_write_b64 v243, v[28:29]')
            def spread(m, sal, rest):
                e(m)
                if sal and not sal[0].startswith('buffer'): e(sal[0]); sal = sal[1:]
                e('\n'.join(rest)); emit(sal, tag)
            spread(mf[0], ld[0], rd[:3])
            if s == 26: e(ln_stats(26, 27, 246, 247, 248))
            if s == 27: e(xm_frag)
            spread(mf[1], ld[1], rd[3:])
            if it in early and kk == 3: F.need('wq'); emit(early[it], 'wq')
            if s == 17: vm.op(rdy, 'rdy')
            if s == 26:
                e('s_waitcnt lgkmcnt(0)\ns_barrier')
                for w in range(4): e(f'ds_read_b64 {vr(QA+2*w,2)}, v242 offset:{256*w}')
        assert not lt and not F.q
        stamp(e, 'p1end')
        if ty == 'v':
            e(f"""v_cndmask_b32 v246, 0, v248, vcc
v_and_b32 v26, 0xffff0000, v246
v_sub_f32 v27, v246, v26
v_cvt_pk_bf16_f32 v{RM}, v26, v27
{MF} v[88:103], {vr(RM,4)}, {vr(ON,4)}, 0""")
        e('s_waitcnt lgkmcnt(0)')
        for f in range(2):
            e(f"""v_add_f32 v{QA+f}, v{QA+f}, v{QA+2+f}
v_add_f32 v{QA+4+f}, v{QA+4+f}, v{QA+6+f}
v_add_f32 v{QA+f}, v{QA+f}, v{QA+4+f}
v_and_b32 v26, 0xffff0000, v{QA+f}
v_sub_f32 v27, v{QA+f}, v26
v_cvt_pk_bf16_f32 v{CF+4*f}, v26, v27
v_lshrrev_b32 v{CF+4*f+1}, 16, v{QA+f}""")
            a = vr(ACC+16*f, 16); w = vr(CF+4*f, 4)
            e(f'{MF} {a}, {w}, {vr(XM,4)}, {a}' if ty == 'k' else f'{MF} {a}, {vr(XM,4)}, {w}, {a}')
        vm.op(f'buffer_store_dwordx4 {vr(ON,4)}, v244, s[12:15], s58 offen sc1', 'kv')
        for f in range(2):
            A = ACC + 16*f
            for p in range(8):
                if ty == 'k': e(f'v_pk_mul_f32 {vr(A+2*p,2)}, {vr(A+2*p,2)}, v[248:249] op_sel_hi:[1,0]')
                else: e(f'v_pk_mul_f32 {vr(A+2*p,2)}, {vr(A+2*p,2)}, {vr(88+2*p,2)}')
                e(f'v_cvt_pk_bf16_f32 v{A+p}, v{A+2*p}, v{A+2*p+1}')
                if p % 4 == 3:
                    t = p // 4
                    if ty == 'k': vm.op(f'buffer_store_dwordx4 {vr(A+4*t,4)}, v254, s[12:15], s57 offen offset:{2048*f + 1024*t} sc1', 'kv')
                    else: vm.op(f'buffer_store_dwordx4 {vr(A+4*t,4)}, v{240+t}, s[12:15], s57 offen offset:{512*f} sc1', 'kv')
        stamp(e, 'kvst')
        if ty == 'v': e('s_branch L_q')
    hint = ['s_mov_b64 exec, 0xff', f's_mov_b32 m0, {HINT}', 'buffer_atomic_add v253, v255, s[12:15], m0 offen sc1', 's_mov_b64 exec, -1']
    def light():
        vm.seq, vm.done = [], 0; F.q = list(qall)
        e(f"""L_light:
s_mov_b32 s14, {WS_BYTES}
s_mov_b32 s15, 0x00020000
s_lshr_b32 s55, s18, 3
s_lshl1_add_u32 s55, s17, s55
s_lshl_b32 s77, s55, 12
s_add_u32 s77, s77, {WS_FL}
v_lshlrev_b32 v70, 4, v0
v_mov_b32 v216, 0
v_mov_b32 v217, 0
v_mov_b32 v218, 0
v_mov_b32 v219, 0""")
        vm.op('buffer_store_dwordx4 v[216:219], v70, s[12:15], s77 offen sc1', 'z')
        stamp(e, 'p1ld')
        assert TLB != 1
        touches()
        e('s_waitcnt lgkmcnt(0)')
        e(f"""s_lshl2_add_u32 s76, s55, s16
s_mul_i32 s77, s76, 147
s_lshr_b32 s77, s77, 10
s_mul_i32 s78, s77, 7
s_sub_u32 s78, s76, s78
s_mul_i32 s56, s78, {WFP}
s_lshl_b32 s76, s77, 14
s_add_u32 s56, s56, s76
s_add_u32 s56, s56, {WS_WF}
s_cmp_lt_u32 s77, 18
s_cselect_b32 s56, s56, {WS_BYTES}
s_sub_u32 s76, s77, 14
s_mov_b32 s34, {448*896}
s_mov_b32 s35, 0x00020000
s_mov_b32 s49, {28*896}
s_cmp_lt_u32 s77, 14
s_cselect_b32 s76, s77, s76
s_cselect_b32 s32, s42, s40
s_cselect_b32 s33, s43, s41
s_cselect_b32 s34, {1792*896}, s34
s_cselect_b32 s49, {32*896}, s49
s_mul_i32 s55, s76, s49
s_lshl_b32 s78, s78, 7
s_lshl2_add_u32 s55, s55, s78
s_lshl_b32 s26, s16, 14
v_lshl_add_u32 v32, v69, 4, v68
v_add_u32 v33, 6144, v32
v_add_u32 v34, 12288, v32
v_add_u32 v35, 18432, v32""")
        def udma(k):
            e(f's_add_u32 m0, s26, {k*4096}')
            if k: e('s_add_u32 s55, s55, s49')
            for i in range(4): vm.op(f'buffer_load_dwordx4 v{32+i}, s[32:35], s55 offen offset:{1024*i} lds', 'u')
        udma(0); udma(1)
        addrs(); F.drain(knob('lf', 150))
        vm.wait('z')
        e("""s_barrier
s_cmp_lg_u32 s16, 0
s_cbranch_scc1 L_light2
v_mov_b32 v38, 1
s_mov_b64 exec, 1
global_atomic_add v219, v38, s[100:101] sc1
s_mov_b64 exec, -1
L_light2:""")
        udma(2); udma(3)
        emit(xload(0), 0)
        F.drain(9999)
        if M16: e("""v_lshl_add_u32 v36, v65, 3, v76
v_lshlrev_b32 v36, 7, v36
v_lshl_add_u32 v36, v77, 4, v36
v_bfe_u32 v37, v1, 3, 1
v_lshl_add_u32 v36, v37, 6, v36
v_add_u32 v36, s26, v36""")
        else: e('v_subrev_u32 v36, s53, v13\nv_add_u32 v36, s26, v36')
        e('v_xor_b32 v37, 64, v36')
        emit(xload(1), 1)
        stamp(e, 'p1w'); stamp(e, 'p1go')
        for it in range(7):
            stamp(e, f'c{it}')
            vm.wait(it)
            for kk in range(4): e('\n'.join(reads(4*it + kk, 'l')))
            if it + 2 <= 6: emit(xload(it + 2), it + 2)
            if it == 5:
                for l in wq + [[rdy]]: emit(l, 'wq')
            e('s_waitcnt lgkmcnt(0)')
            for kk in range(4): xdots(4*it + kk)
        e(ln_stats(26, 27, 246, 247, 248)); e(xm_frag)
        stamp(e, 'p1end')
        for k in range(4):
            for n in range(4):
                f, o = (n >> 1, (n & 1)*8) if M16 else (n & 1, (n >> 1)*2048)
                for rd in range(2): e(f'ds_read_b64_tr_b16 {vr(40+16*k+4*n+2*rd,2)}, v{36+f} offset:{k*4096 + o + rd*512}')
            e('s_waitcnt lgkmcnt(7)')
        e('s_waitcnt lgkmcnt(0)')
        for k in range(4):
            e(f's_add_u32 m0, s56, {k*4096}')
            for n in range(4): vm.op(f'buffer_store_dwordx4 {vr(40+16*k+4*n,4)}, v254, s[12:15], m0 offen offset:{1024*n} sc1', 'ust')
        vm.wait('wq'); rdycheck('L_rl')
        stamp(e, 'kvst'); stamp(e, 'p1st')
        if not NH & 1: emit(hint, 'sig')
        e('s_branch L_q2')
    NH = knob('nh', 2)
    assert WQE == 7
    variant('v', None); light(); variant('k', 'L_kk')
    e('L_q:')
    stamp(e, 'p1st')
    vm.wait('rdy'); rdycheck('L_rd')
    if not NH & 1: emit(hint, 'sig')
    WT = knob('wt', 2)
    stamp(e, 'q0'); vm.wait('wq')
    e('L_q2:\ns_barrier'); stamp(e, 'q2')
    def qrd(s, dst=None):
        it, kk = divmod(s, 4)
        if dst is None: dst = ACC + 4*(s & 7)
        return [f'ds_read_b64_tr_b16 {vr(dst+2*rd,2)}, v{21+kk} offset:{it*4096 + rd*256}' for rd in range(2)]
    QS = knob('qs', 3)
    assert (3 <= WQE <= 4 and QS <= WQE) or WQE == 7
    def s1signal():
        stamp(e, 'q3'); vm.wait('kv'); stamp(e, 'q4')
        e('s_barrier')
        vm.op('buffer_atomic_add v253, v255, s[12:15], 0 offen sc1', 'sig')
        stamp(e, 's1sig')
    lateprk = [n for n, d in enumerate(park) if XF <= d < XF + 112]
    F.add(f'v_mul_f32 v26, {f32(QSCALE)}, v248\nv_mov_b32 v2, v254')
    for n, d in enumerate(park):
        if n not in lateprk: F.add(f'v_accvgpr_read_b32 v{d}, a{n}')
    F.add(f"""v_xor_b32 v249, {3*2048}, v15
v_xor_b32 v250, {2*2048}, v15
v_xor_b32 v251, {1*2048}, v15
v_mov_b32 v{RM}, 0
v_mov_b32 v7, 0xdddd
s_mov_b32 s8, s60
s_mov_b32 s9, s61
s_cmp_lt_u32 s20, 14
s_cselect_b32 s10, {16*3584}, 0
s_mov_b32 s30, 0
s_mov_b32 s34, 3584
s_mov_b32 s35, 0x00020000
s_mov_b32 s38, 896
s_mov_b32 s42, {2048*896}
s_mov_b32 s43, 0x00020000""")
    late_fill = '\n'.join(f'v_accvgpr_read_b32 v{park[n]}, a{n}' for n in lateprk) + '\n' + \
                '\n'.join(f'v_add_u32 v{165+i}, {i*(4*3584-1024)}, v165' for i in range(1, 4)) + '\n' + \
                '\n'.join(f'v_xor_b32 v{161+b}, {64*b}, v161' for b in range(1, 4))
    cs_fill = f"""v_add_f32 v96, v96, v97
v_add_f32 v98, v98, v99
v_add_f32 v30, v96, v98
v_and_b32 v28, 0xffff0000, v30
v_sub_f32 v29, v30, v28
v_cvt_pk_bf16_f32 v{CF+8}, v28, v29
v_lshrrev_b32 v{CF+9}, 16, v30"""
    def qcs(g0, g1, r0):
        n = g1 - g0
        for g in range(g0, g1): e('\n'.join(qrd(4*g, r0 + 4*(g - g0))))
        if n > 4:
            e(f's_waitcnt lgkmcnt({2*(n-4)})')
            for s in range(4*g0, 4*g0 + 4): e('\n'.join(qrd(s)))
            for r in range(16): e(f'v_dot2c_f32_bf16 v30, v{r0+r}, v25')
            e('s_waitcnt lgkmcnt(8)')
            for r in range(16, 4*n): e(f'v_dot2c_f32_bf16 v30, v{r0+r}, v25')
        else:
            for s in range(4*g0, 4*g0 + 3): e('\n'.join(qrd(s)))
            e('s_waitcnt lgkmcnt(6)')
            e('\n'.join(qrd(4*g0 + 3)))
            for r in range(4*n): e(f'v_dot2c_f32_bf16 v30, v{r0+r}, v25')
        if g1 == 7: e(halves_sum(30, 246) + '\nds_write_b32 v243, v30')
    qcs(0, WQE, 76 if WQE == 7 else 80)
    for g in range(7):
        for k in range(4):
            s = 4*g + k
            e(f's_waitcnt lgkmcnt({2*min(3, 27-s, (4*WQE-1-s) if g < WQE else 3)})')
            e(f'{MF} {vr(QA,16)}, {vr(ACC+4*(s&7),4)}, {vr(XF+4*s,4)}, ' + (vr(QA, 16) if s else '0'))
            if s + 4 < 28 and g + 1 != WQE: e('\n'.join(qrd(s+4)))
            F.drain(3 if g < 6 else 5)
        if g + 1 == QS: s1signal()
        if g == (1 if WQE == 7 else WQE):
            e('s_barrier')
            for w in range(4): e(f'ds_read_b32 v{96+w}, v242 offset:{256*w}')
        if g == (3 if WQE == 7 else 5): F.add(cs_fill)
        if g == 4: F.add(late_fill)
    F.drain(999)
    e(f"""{MF} {vr(QA,16)}, {vr(CF+8,4)}, {vr(XM,4)}, {vr(QA,16)}
s_load_dwordx2 s[32:33], s[0:1], 40
s_load_dwordx2 s[36:37], s[0:1], 56
s_load_dwordx2 s[40:41], s[0:1], 64
s_getpc_b64 s[80:81]
L_pc1:""")
    vm.op('global_load_dword v242, v170, s[80:81]', 'T')
    for s in (0, 2, 3): e(f'{MF} {vr(O+16*s,16)}, {vr(RM,4)}, {vr(RM,4)}, 0')
    w1n = [0]
    def w1set():
        it = w1n[0] // 4
        return [f's_add_u32 m0, s59, {it*16384}'] + ([f's_add_u32 s8, s8, {64*3584}\ns_addc_u32 s9, s9, 0'] if it else [])
    def w1l():
        i = w1n[0] % 4
        vm.op(f'buffer_load_dwordx4 v{165+i}, s[8:11], 0 offen offset:{1024*i} lds', 'W1'); w1n[0] += 1
    WB_ = knob('w1b', 0)
    for n in range(WB_):
        if n % 4 == 0: e('\n'.join(w1set()))
        w1l()
    for p in range(8):
        e(f'v_mul_f32 v{QA+2*p}, v26, v{QA+2*p}\nv_mul_f32 v{QA+2*p+1}, v26, v{QA+2*p+1}')
        e(f'v_cvt_pk_bf16_f32 v{Q+24+p}, v{QA+2*p}, v{QA+2*p+1}')
    e(f"""v_and_b32 v{Q+24}, v13, v{Q+24}
v_and_b32 v{Q+25}, v13, v{Q+25}
v_and_b32 v{Q+30}, v5, v{Q+30}
v_and_b32 v{Q+31}, v5, v{Q+31}
ds_write_b128 v15, {vr(Q+24,4)}
ds_write_b128 v15, {vr(Q+28,4)} offset:1024
{MF} {vr(O+16,16)}, {vr(RM,4)}, {vr(RM,4)}, 0
s_add_u32 s76, s51, {HINT}
s_mov_b32 m0, s46""")
    stamp(e, 's1win')
    def poll2(lab, addr, so_hint, so, n, first):
        e(f's_cmp_lg_u32 s16, {knob("pw", 1)}\ns_cbranch_scc1 {lab}wait\ns_mov_b32 s26, {POLL_MAX}')
        for l, x in ((lab + 'hint', so_hint), (lab + 'poll', so)):
            if x: e(f"""{l}:
buffer_load_dword v15, {addr}, s[12:15], {x} sc1
s_sub_u32 s26, s26, 1
s_cbranch_scc1 {lab}done
s_waitcnt vmcnt(0)
v_cmp_gt_u32 vcc, {n}, v15
s_cbranch_vccnz {l}""")
        e(f'{lab}done:')
        k = knob('pp', 2)
        sv = list(vm.seq)
        for f in first[:k]: f()
        vm.seq = sv
        e(f's_waitcnt lgkmcnt(0)\ns_barrier\ns_branch {lab}go\n{lab}wait:\ns_waitcnt lgkmcnt(0)\ns_barrier')
        for f in first[:k]: f()
        e(f'{lab}go:')
        stamp(e, lab[2:] + 'done')
        for f in first[k:]: f()
    def kvset(j): return f's_add_u32 m0, s{46 + (j >> 3)}, {(j & 7)*TTP}'
    def kl(j, t): vm.op(f'buffer_load_dwordx4 {ar(16*j+4*t,4)}, v3, s[12:15], m0 offen offset:{1024*t} sc1', f'K{j}')
    def vl(j, t): vm.op(f'buffer_load_dwordx4 {ar(16*j+8+4*t,4)}, v{248 if t else 4}, s[12:15], m0 offen sc1', f'V{j}')
    KV0 = knob('kv0', 3)
    poll2('L_s1', 'v169', None if NH & 1 else 's76 offen', 's51 offen', 14, [lambda: kl(0, 0), lambda: kl(0, 1), lambda: vl(0, 0), lambda: vl(0, 1)])
    e(kvset(1))
    for s in range(3):
        for t in range(2): e(f'ds_read_b128 {vr(Q+8*s+4*t,4)}, v{249+s} offset:{1024*t}')
    for j in range(1, KV0):
        kl(j, 0); kl(j, 1); vl(j, 0); vl(j, 1); e(kvset(j + 1))
    steps = [(s, j) for j in range(16) for s in range(3)] + [(3, j) for j in range(16)]
    N = len(steps)
    def qk(i, t):
        s, j = steps[i]; d = vr(S + 16*(i % 3), 16)
        return f'{MF} {d}, {ar(16*j+4*t,4)}, {vr(Q+8*s+4*t,4)}, ' + ('0' if t == 0 else d)
    def pv(i, t):
        s, j = steps[i]
        return f'{SM} {vr(O+16*s,16)}, {ar(16*j+8+4*t,4)}, {vr(S+16*(i%3)+8*t,8)}, v7'
    free, post = {}, {}
    def P(d, q, f): d.setdefault(q, []).append(f)
    WX = 2048 if M16 else 1024
    def wfrag(kind, n):
        g, r = divmod(n, 4)
        if M16: f, off, reg = r >> 1, (r & 1)*1024, 16*g + 4*r
        else: f, off, reg = r & 1, (r >> 1)*2048, 16*g + 4*r
        dst = vr(WOF + reg, 4) if kind == 'Wo' else ar(reg, 4)
        return (f's_add_u32 m0, s{44 if kind == "Wo" else 45}, {g*4096}', f'buffer_load_dwordx4 {dst}, v{252+f}, s[12:15], m0 offen offset:{off} sc1')
    w2n = [0]
    def w2l(n=1, setm=False):
        for _ in range(n):
            if w2n[0] >= 56: return
            a, b = wfrag('W2', w2n[0])
            if setm or w2n[0] % 4 == 0: e(a); setm = False
            vm.op(b, 'W2'); w2n[0] += 1
    def wfcheck():
        e('v_cmp_gt_u32 vcc, 2, v243\ns_lshr_b32 s26, vcc_hi, 16\ns_cbranch_scc1 L_wf\nL_wfd:')
        slow.append(f"""L_wf:
s_mov_b32 s26, {POLL_MAX}
L_wfp:
buffer_load_dword v243, v241, s[12:15], 0 offen sc1
s_sub_u32 s26, s26, 1
s_cbranch_scc1 L_wfd
s_waitcnt vmcnt(0)
v_cmp_gt_u32 vcc, 2, v243
s_nop 1
s_lshr_b32 s78, vcc_hi, 16
s_cbranch_scc1 L_wfp
s_branch L_wfd""")
    vq = []
    for j in range(KV0, 16):
        for n, (f, t) in enumerate(((kl, 0), (kl, 1), (vl, 0), (vl, 1))):
            vq.append(([kvset(j)] if n == 0 and j > KV0 else [], (lambda f=f, j=j, t=t: f(j, t)), 1))
        if WT == 2 and j == knob('wj', 7): vq.append(([], lambda: vm.op('global_load_dword v242, v177, s[82:83]', 'T'), knob('wg', 3)))
    def t0f():
        if knob('t2', 1): e('s_mov_b32 exec_lo, 0xfff00000')
        vm.op('buffer_load_dword v243, v241, s[12:15], 0 offen sc1', 'T0')
        if knob('t2', 1): e('s_mov_b32 exec_lo, -1')
    t0 = ([], t0f, 1 if ST & 2 or knob('t2', 1) else 2)
    for t in range(2):
        if M16: vq.append(([f's_add_u32 m0, s27, {16*896*t}'], (lambda t=t: vm.op(f'buffer_load_dwordx4 {vr(224+4*t,4)}, v0, s[4:7], m0 offen', 'sm')), 1))
        else: vq.append((['s_mov_b32 m0, s27'] if t == 0 else [], (lambda t=t: vm.op(f'buffer_load_dwordx4 {vr(224+4*t,4)}, v0, s[4:7], m0 offen offset:{32*t}', 'sm')), 1))
    tiny = [(lambda t=t: vm.op(f'buffer_load_dwordx4 {vr(232+4*t,4)}, v160, s[36:39], 0 offen offset:{32*t}', 'sm')) for t in range(1 if M16 else 2)]
    tiny += [(lambda b=b: vm.op(f'buffer_load_ushort v{244+b}, v{161+b}, s[32:35], 0 offen', 'sm')) for b in range(4)]
    if knob('ty', 9):
        for n, f in enumerate(tiny): P(post, 4*knob('ty', 9) + 1 + 2*n, f)
    else: vq += [([], f, 1) for f in tiny]
    for n in range(WB_, 28):
        it = n // 4
        vq.append(((([f's_add_u32 s8, s8, {64*3584}\ns_addc_u32 s9, s9, 0'] if it else []) + [f's_add_u32 m0, s59, {it*16384}']) if n % 4 == 0 else [], w1l, 1))
    vq.insert(len(vq) - 12, t0)
    nchk = len(vq)
    for n in range(16):
        a, b = wfrag('Wo', n); vq.append(([a] if n % 4 == 0 else [], (lambda b=b: vm.op(b, 'Wo')), 1))
    if knob('t2', 1): vq.append(([], lambda: vm.op('buffer_load_dword v242, v241, s[12:15], 0 offen sc1', 'T'), 1))
    if H1M: vq.append((['s_mov_b32 m0, s28'], lambda: vm.op('buffer_load_dword v242, v240, s[12:15], m0 offen sc1', 'T'), knob('h1g', 8)))
    TL = knob('tl', 20); tail = []
    if TL: k = len(vq) - bool(H1M) - bool(knob('t2', 1)); tail = vq[k:]; vq = vq[:k]
    hs = 0
    def place(sal, f):
        if sal: P(free, 2*hs - 1, lambda x=sal[-1]: e(x))
        if len(sal) > 1: P(free, 2*hs, lambda x=sal[0]: e(x))
        P(post, 2*hs, f)
    for n, (sal, f, d) in enumerate(vq):
        if n == nchk: P(free, 2*hs - 3, lambda: vm.wait('T0')); P(post, 2*hs - 3, wfcheck)
        place(sal, f); hs += d
    hs = max(hs, 100)
    W2A = max(0, min(knob('w2a', 24), 126 - TL - hs)) // 4 * 4
    for n in range(W2A):
        a, b = wfrag('W2', n); place([a] if n % 4 == 0 else [], (lambda b=b: vm.op(b, 'W2'))); hs += 1
    for sal, f, d in tail: place(sal, f); hs += 1
    w2n[0] = W2A
    P(free, 2, lambda: vm.wait('V0'))
    for j in range(1, 16):
        if j < 6: P(free, 4*(3*j-1) - 2, (lambda j=j: vm.wait(f'V{j}')))
        elif j % 2 == 0: P(free, 4*(3*j-1) - 2, (lambda j=j: vm.wait(f'V{j+1}')))
    def pwr(s, q): return f'ds_write_b128 v{9+s}, {vr(O+16*s+4*q,4)} offset:{s*4096 + q*1024}'
    def prd(s, q): return f'ds_read_b128 {vr(O+16*s+4*q,4)}, v12 offset:{s*4096 + q*1024}'
    for k in range(12): P(post, 4*50 + 1 + 2*k, (lambda k=k: e(pwr(k//4, k % 4))))
    P(free, 4*59, lambda: vm.wait('W1', 'lgkmcnt(0)')); P(free, 4*59 + 2, lambda: e('s_barrier'))
    for k in range(12): P(post, 4*60 + k, (lambda k=k: e(prd(k//4, k % 4))))
    e('s_lshl_b32 s76, s24, 6\ns_waitcnt lgkmcnt(0)\ns_barrier')
    sq = []
    if ST & 1: sq += [f's_load_dword s77, s[82:83], {64*k}' for k in range(26)] + ['s_buffer_load_dword s77, s[32:35], s31', 's_buffer_load_dword s77, s[36:39], s76']
    q = 1
    for x in sq:
        while q in free: q += 1
        P(free, q, lambda x=x: e(x)); q += 2
    if ST & 2:
        q = max(q, 4*knob('hs', 26))
        for x in [f's_buffer_load_dword s77, s[12:15], s64 offset:{64*k}' for k in range(32)] + [f's_buffer_load_dword s77, s[12:15], s65 offset:{64*k}' for k in range(8)]:
            while q in free: q += 1
            P(free, q, lambda x=x: e(x)); q += 2
        assert q < 4*52
    e(f"""v_mov_b32 v249, v173
v_add_u32 v254, 0x10000, v173
v_mov_b32 v250, v174
v_mov_b32 v251, v175
v_mov_b32 v5, v176
v_mov_b32 v252, v171
v_xor_b32 v253, {WX}, v171
v_mov_b32 v255, v{172 if M16 else 2}
v_mov_b32 v8, 1
v_mov_b32 v14, 0x3f803f80""")
    vm.wait('K0')
    stamp(e, 'a0')
    e(qk(0, 0)); e(qk(0, 1))
    for i in range(N):
        if i == 48: stamp(e, 'aB')
        if i: stamp(e, f'a{i}')
        b = S + 16*(i % 3)
        mf = [qk(i+1, 0) if i+1 < N else None, qk(i+1, 1) if i+1 < N else None, pv(i-1, 1) if i > 0 else None, pv(i, 0)]
        for sl in range(4):
            if mf[sl]: e(mf[sl])
            for f in free.get(4*i + sl, []) + post.get(4*i + sl, []): f()
            for r in range(4): e(f'v_exp_f32 v{b+4*sl+r}, v{b+4*sl+r}')
    e(pv(N-1, 1))
    if not NH & 2: vm.op('buffer_atomic_add v8, v250, s[12:15], 0 offen offset:128 sc1', 'sig')
    assert w1n[0] == 28
    e('L_combine:')
    stamp(e, 'comb')
    e('s_waitcnt lgkmcnt(0)')
    for r in range(16): e(f'v_add_f32 v{O+r}, v{O+r}, v{O+16+r}')
    for p in range(8): e(f'v_pk_add_f32 {vr(O+2*p,2)}, {vr(O+2*p,2)}, {vr(O+32+2*p,2)}')
    for p in [6, 0, 1, 2, 3, 4, 5, 7]:
        e(f'v_pk_add_f32 {vr(O+2*p,2)}, {vr(O+2*p,2)}, {vr(O+48+2*p,2)}')
        if p == 6: e(f'v_mov_b32 v13, v{O+12}\nv_mov_b32 v15, v{O+12}')
        if p == 1: e('v_permlane32_swap_b32 v13, v15')
        if p == 2: e('v_rcp_f32 v158, v15')
    for p in range(8):
        e(f'v_pk_mul_f32 {vr(O+2*p,2)}, {vr(O+2*p,2)}, v[158:159] op_sel_hi:[1,0]')
        e(f'v_cvt_pk_bf16_f32 v{O+p}, v{O+2*p}, v{O+2*p+1}')
        if p == 3: vm.op(f'buffer_store_dwordx4 {vr(O,4)}, v2, s[12:15], s3 offen sc1', 'Ost')
        if p == 6: e(f'v_and_b32 v{O+6}, v6, v{O+6}')
    e(f'v_and_b32 v{O+7}, v6, v{O+7}')
    vm.op(f'buffer_store_dwordx4 {vr(O+4,4)}, v2, s[12:15], s3 offen offset:1024 sc1', 'Ost')
    if knob('t1', 0): vm.op('buffer_load_dword v242, v241, s[12:15], 0 offen sc1', 'T')
    def csrd(dst, s):
        return [f'ds_read_b64_tr_b16 {vr(dst+2*rd,2)}, v{254 if s >= 16 else 249} offset:{(s & 15)*4096 + rd*1024}' for rd in range(2)]
    for k in range(4): e('\n'.join(csrd(S + 4*k, k)))
    e(f"""v_cmp_nle_f32 vcc, {f32(2.0**-40)}, v15
v_mov_b32 v156, 0
v_mov_b32 v157, 0
s_mov_b64 s[82:83], vcc
v_cmp_nge_f32 vcc, {f32(2.0**40)}, v15
v_add_u32 v15, v12, v5
s_or_b64 vcc, vcc, s[82:83]
s_cselect_b32 s26, 1, 0
s_andn2_b32 s26, s26, s30
v_mov_b32 v13, s26""")
    B0 = knob('b0', 8); CS = knob('cs', 4)
    def csgroup(g):
        if g < 7:
            for k in range(4): e('\n'.join(csrd(S + 16*(g & 1) + 4*k, 4*g + k)))
        if g <= CS: w2l(B0*g//CS - B0*(g-1)//CS)
        e(f's_waitcnt lgkmcnt({8 if g < 7 else 0})')
        for r in range(16): e(f'v_dot2c_f32_bf16 v{156 + (r & 1)}, v{S + 16*((g-1) & 1) + r}, v14')
    for g in range(1, CS + 1): csgroup(g)
    e('ds_write_b32 v12, v13')
    vm.wait('Ost', 'lgkmcnt(0)')
    e("""s_barrier
ds_read_b32 v13, v251
s_waitcnt lgkmcnt(0)
v_cmp_ne_u32 vcc, 0, v13
s_cbranch_vccnz L_fallback""")
    vm.op('buffer_atomic_add v8, v250, s[12:15], 0 offen sc1', 'sig2')
    stamp(e, 's2sig')
    e(f's_cmp_ge_u32 s20, 14\ns_cbranch_scc1 {"L_wb" if H1M == 3 or knob("wb", 0) else "L_end"}')
    B1 = knob('b1', 14)
    for g in range(CS + 1, 8):
        w2l(B1*(g-CS)//(7-CS) - B1*(g-CS-1)//(7-CS))
        csgroup(g)
    ACC3, AF = 80, 16
    WA = 240
    e('v_add_f32 v156, v156, v157')
    e(halves_sum(156, 157))
    e("""ds_write_b32 v15, v156 offset:8192
v_add_u32 v157, v11, v5
v_add_u32 v158, v10, v5
v_add_u32 v159, v9, v5
v_readlane_b32 s31, v243, 20
v_mov_b32 v13, 0
s_mov_b32 m0, s63""")
    for r in range(8): e(f'v_lshlrev_b32 v{ACC3+2*r}, 16, v{224+r}\nv_and_b32 v{ACC3+2*r+1}, 0xffff0000, v{224+r}')
    e('s_cmp_eq_u32 s31, s29\ns_cselect_b32 s31, 1, 0')
    if knob('nolocal', 0): e('s_mov_b32 s31, 0')
    stamp(e, 's2win')
    def aoff(n): return ((n >> 1) & 1)*2048 + (n & 1)*256 if M16 else (n & 3)*1024
    def ol(a, n):
        if n % 4 == 0 and (a, n) != (1, 0): e(f's_add_u32 m0, s{62+a}, {n*1024}')
        vm.op(f'buffer_load_dwordx4 {vr(AF+32*a+4*n,4)}, v255, s[12:15], m0 offen offset:{aoff(n)} sc1', f'O{a}{n}')
    poll2('L_s2', 'v13', None if NH & 2 else 's25 offen offset:128', 's25 offen', 16, [(lambda n=n: ol(1, n)) for n in range(8)])
    e('ds_read_b32 v157, v157 offset:8192\nds_read_b32 v158, v158 offset:8192\nds_read_b32 v159, v159 offset:8192')
    for n in range(4): ol(0, n)
    e(f"""v_and_b32 v3, 0x1f0, v2
s_and_b32 s76, s23, 3
s_lshl_b32 s77, s76, 5
s_add_u32 s77, s77, s24
s_lshl_b32 s77, s77, 2
v_mov_b32 v4, s77
v_min_u32 v5, 13, v1
v_lshlrev_b32 v5, 2, v5
s_lshl_b32 s77, s16, 5
s_add_u32 s77, s77, s20
s_lshl_b32 s77, s77, 2
v_mov_b32 v14, s77
s_mul_i32 s77, s16, 7
s_lshr_b32 s77, s77, 1
v_and_b32 v7, 3, v1
v_add_u32 v7, s77, v7
v_bfe_u32 v13, v1, 2, 1
v_lshl_add_u32 v7, v13, 5, v7
v_lshlrev_b32 v7, 2, v7
v_lshrrev_b32 v250, 2, v2
s_lshl_b32 s77, s16, 8
v_add_u32 v251, s77, v250
{'v_and_b32 v250, 60, v250' if M16 else ''}
s_lshl_b32 s76, s76, 8
v_add_u32 v250, s76, v250
s_waitcnt lgkmcnt(0)""")
    for b in range(4):
        e(f"""v_and_b32 v13, 0xffff0000, v{156+b}
v_sub_f32 v15, v{156+b}, v13
v_cvt_pk_bf16_f32 v15, v13, v15
v_lshrrev_b32 v13, 16, v13
v_lshl_or_b32 v13, v{244+b}, 16, v13
v_accvgpr_write_b32 a{224+4*b}, v15
v_accvgpr_write_b32 a{225+4*b}, v13
v_accvgpr_write_b32 a{226+4*b}, v{244+b}
v_accvgpr_write_b32 a{227+4*b}, 0""")
    for r in range(4 if M16 else 8): e(f'v_lshlrev_b32 v{144+2*r}, 16, v{232+r}\nv_and_b32 v{145+2*r}, 0xffff0000, v{232+r}')
    for b in range(4): e(f'v_xor_b32 v{WA+b}, {64*b}, v249\nv_xor_b32 v{WA+4+b}, {64*b}, v254')
    for n in range(4, 8): ol(0, n)
    def rwr(s, A, q): return f'ds_write_b128 v{12-s}, {vr(A+16*s+4*q,4)} offset:{(3-s)*4096 + q*1024}'
    def rrd(s, A, q): return f'ds_read_b128 {vr(A+16*s+4*q,4)}, v12 offset:{(3-s)*4096 + q*1024}'
    def mm(A, wk, wb, act, a, f, n, init):
        T = A + 16*(2*a + f)
        if not M16:
            return [f'{MF} {vr(T,16)}, {vr(wb+8*n+4*f,4,wk)}, {vr(act,4)}, ' + ('0' if n == 0 and init else vr(T, 16))]
        return [f'{MH} {vr(T+8*(n&1)+4*u,4)}, {vr(wb+16*(n>>1)+8*f+4*u,4,wk)}, {vr(act,4)}, ' + ('0' if n < 2 and init else vr(T+8*(n&1)+4*u, 4)) for u in range(2)]
    def m3(a, f, n): e('\n'.join(mm(ACC3, 'v', WOF, AF+32*a+4*n, a, f, n, (a, f) != (0, 0))))
    B2 = knob('b2', 8)
    for n in range(8):
        vm.wait(f'O1{n}'); stamp(e, f'o{n}'); m3(1, 1, n); m3(1, 0, n)
        if n >= 8 - B2: w2l(1, n == 8 - B2)
    LAG = 2
    for n in range(8):
        vm.wait(f'O0{n}'); stamp(e, f'o{8+n}'); m3(0, 1, n)
        if 1 <= n < 5: e(rwr(3 - (n-1)//2, ACC3, 2*((n-1) % 2)))
        if n >= LAG: m3(0, 0, n - LAG)
        if 1 <= n < 5: e(rwr(3 - (n-1)//2, ACC3, 2*((n-1) % 2) + 1))
        if n == knob('p3b', 5):
            e('s_waitcnt lgkmcnt(0)\ns_barrier')
            for q in range(4): e(rrd(3, ACC3, q) + '\n' + rrd(2, ACC3, q))
    stamp(e, 'p3mf')
    e('s_waitcnt lgkmcnt(0)')
    for n in range(8 - LAG, 8):
        m3(0, 0, n)
        for r in range(4*(n - 8 + LAG), 4*(n - 7 + LAG)): e(f'v_add_f32 v{ACC3+32+r}, v{ACC3+32+r}, v{ACC3+48+r}')
    for q in range(4):
        e(rwr(1, ACC3, q))
        for r in range(8 + 2*q, 10 + 2*q): e(f'v_add_f32 v{ACC3+32+r}, v{ACC3+32+r}, v{ACC3+48+r}')
    for p in range(8): e(f'v_pk_add_f32 {vr(ACC3+2*p,2)}, {vr(ACC3+2*p,2)}, {vr(ACC3+32+2*p,2)}')
    e('s_waitcnt lgkmcnt(0)\ns_barrier')
    for q in range(4): e(rrd(1, ACC3, q))
    HN = ' nt' if knob('hn', 0) else ''
    def dual(lines, tag, lab, loc=''):
        e(f's_cmp_lg_u32 s31, 0\ns_cbranch_scc0 {lab}_s')
        for l in lines: vm.op(l + loc, tag)
        e(f'{lab}_d:')
        slow.append(f'{lab}_s:\ns_nop 1\n' + '\n'.join(l + ' sc1' for l in lines) + f'\ns_nop 1\ns_branch {lab}_d')
    for q in range(4):
        e(f's_waitcnt lgkmcnt({3-q})')
        for p in (2*q, 2*q+1):
            e(f'v_pk_add_f32 {vr(ACC3+2*p,2)}, {vr(ACC3+2*p,2)}, {vr(ACC3+16+2*p,2)}')
            e(f'v_cvt_pk_bf16_f32 v{16+p}, v{ACC3+2*p}, v{ACC3+2*p+1}')
    dual([f'buffer_store_dwordx4 {vr(16+4*t,4)}, v255, s[12:15], s64 offen offset:{(256 if M16 else 1024)*t}' for t in range(2)], 'hst', 'L_h', HN)
    def psum(d, p0, p1):
        A = ACC3 + 2*p0
        e(f'v_pk_mul_f32 {vr(d+2,2)}, {vr(A,2)}, {vr(A,2)}\nv_pk_add_f32 {vr(d,2)}, {vr(A,2)}, {vr(A+2,2)}\nv_pk_fma_f32 {vr(d+2,2)}, {vr(A+2,2)}, {vr(A+2,2)}, {vr(d+2,2)}')
        for p in range(p0 + 2, p1):
            e(f'v_pk_add_f32 {vr(d,2)}, {vr(d,2)}, {vr(ACC3+2*p,2)}\nv_pk_fma_f32 {vr(d+2,2)}, {vr(ACC3+2*p,2)}, {vr(ACC3+2*p,2)}, {vr(d+2,2)}')
        e(f'v_add_f32 v{d}, v{d}, v{d+1}\nv_add_f32 v{d+1}, v{d+2}, v{d+3}')
    if M16:
        psum(24, 0, 4); psum(28, 4, 8)
        e('v_permlane16_swap_b32 v24, v28\nv_permlane16_swap_b32 v25, v29\nv_pk_add_f32 v[24:25], v[24:25], v[28:29]')
    else: psum(24, 0, 8)
    e("""v_mov_b32 v26, v24
v_mov_b32 v27, v25
v_permlane32_swap_b32 v24, v26
v_permlane32_swap_b32 v25, v27
v_pk_add_f32 v[24:25], v[24:25], v[26:27]""")
    dual(['buffer_store_dwordx2 v[24:25], v3, s[12:15], s65 offen'], 'hst', 'L_s', HN)
    stamp(e, 'p3st')
    w2l(knob('b3', 0), True)
    for p in range(8): e(f'v_pk_add_f32 {vr(224+2*p,2)}, {vr(144+2*(p % 4 if M16 else p),2)}, {vr(ACC3+2*p,2)}')
    HF, ACC4, WF, STT = 16, 128, 192, 208
    HP = knob('hp', 8); PER = knob('per', 76)
    SP = knob('sp', 10)
    order = list(range(SP + 1)) + ['s0', 's1', 's2', 's3'] + list(range(SP + 1, 28))
    arr = {x: n*PER for n, x in enumerate(order)}
    mlist = []; nxt = [0, 0, 0, 0]; t = 0
    while min(nxt) < 28:
        c = [b for b in range(4) if nxt[b] < 28 and arr[nxt[b]] <= t]
        if not c: t = min(arr[nxt[b]] for b in range(4) if nxt[b] < 28); continue
        b = min(c, key=lambda b: (b >> 1 and b, nxt[b], b))
        mlist.append((nxt[b], b)); nxt[b] += 1; t += 32
    M = len(mlist)
    last = [max(m for m, (s, b2) in enumerate(mlist) if b2 == b) for b in range(4)]
    firstm = [min(m for m, (s, b2) in enumerate(mlist) if b2 == b) for b in range(4)]
    def w1rd(dst, s, b, k='v'):
        base = WA + b + (4 if s >= 16 else 0); off = (s & 15)*4096
        return [f'ds_read_b64_tr_b16 {vr(dst+2*rd,2,k)}, v{base} offset:{off + rd*1024}' for rd in range(2)]
    def wreg(m): return ('v', WF + 4*(m & 7)) if (m & 7) < 4 else ('a', 240 + 4*((m & 7) - 4))
    def rds(m):
        s, b = mlist[m]; k, r = wreg(m)
        return w1rd(r, s, b, k)
    LD = 6
    for m in range(LD): e('\n'.join(rds(m)))
    e('s_mov_b32 m0, s67')
    vm.wait('hst')
    dual([f'buffer_store_dword v8, v4, s[12:15], s25 offen offset:{16*128}'], 'f3', 'L_f3')
    stamp(e, 'p3end')
    def poll(lab, addr, so):
        e(f"""s_mov_b32 s26, {POLL_MAX}
{lab}:
buffer_load_dword v13, {addr}, s[12:15], {so} sc1
s_sub_u32 s26, s26, 1
s_cbranch_scc1 {lab}_x
s_waitcnt vmcnt(0)
v_cmp_ne_u32 vcc, 1, v13
s_cbranch_vccnz {lab}
{lab}_x:""")
    poll('L_p3', 'v5', f's66 offen offset:{16*128}')
    stamp(e, 's3done')
    def hl(x):
        if isinstance(x, str):
            p = int(x[1]); vm.op(f'buffer_load_dwordx4 {vr(STT+4*p,4)}, v2, s[12:15], s68 offen offset:{1024*p} sc1', 'st'); return
        if x and x % 4 == 0: e(f's_add_u32 m0, s67, {x*1024}')
        vm.op(f'buffer_load_dwordx4 {vr(HF+4*x,4)}, v2, s[12:15], m0 offen offset:{(x&3)*1024} sc1', f'h{x}')
    for x in order[:HP]: hl(x)
    hq = order[HP:]
    XB = STT + 8
    def add_stats():
        F.add(lambda: vm.wait('st'))
        F.add('\n'.join(f'v_and_b32 v{STT+12+r}, v6, v{STT+12+r}' for r in range(4)))
        for k in range(1, 8): F.add(f'v_add_f32 v{STT}, v{STT}, v{STT+2*k}\nv_add_f32 v{STT+1}, v{STT+1}, v{STT+2*k+1}')
        F.add(ln_stats(STT, STT+1, STT+2, STT+3, STT+4, STT+5))
        F.add(f"""v_sub_f32 v{STT+3}, 0, v{STT+3}
v_and_b32 v{STT+3}, v6, v{STT+3}
v_and_b32 v{STT+5}, v6, v{STT+5}
v_and_b32 v{STT+6}, 0xffff0000, v{STT+3}
v_sub_f32 v{STT+7}, v{STT+3}, v{STT+6}
v_cvt_pk_bf16_f32 v{XB}, v{STT+6}, v{STT+6}
v_and_b32 v{STT+6}, 0xffff0000, v{STT+5}
v_cvt_pk_bf16_f32 v{XB+1}, v{STT+7}, v{STT+6}
v_sub_f32 v{STT+7}, v{STT+5}, v{STT+6}
v_cvt_pk_bf16_f32 v{XB+2}, v{STT+7}, 0
v_mov_b32 v{XB+3}, 0
v_mul_f32 v248, v{STT+4}, v{STT+4}""")
        F.mark('st')
    def epi(b):
        A = ACC4 + 16*b
        for p in range(8):
            F.add(f"""v_mul_f32 v{A+2*p}, v{A+2*p}, abs(v{A+2*p})
v_mul_f32 v{A+2*p+1}, v{A+2*p+1}, abs(v{A+2*p+1})
v_cvt_pk_bf16_f32 v{A+p}, v{A+2*p}, v{A+2*p+1}
v_pk_max_i16 v{A+p}, v{A+p}, 0""")
            if p % 4 == 3:
                l = f'buffer_store_dwordx4 {vr(A+4*(p//4),4)}, v2, s[12:15], s{72+b} offen offset:{1024*(p//4)}'
                if H1M == 0: F.add(lambda l=l: vm.op(l + ' sc1', 'h1st'))
                else: F.add(lambda l=l, n=2*b + p//4: dual([l], 'h1st', f'L_e{n}', ' nt' if H1M == 2 else ''))
    mst = min(m for m, (s, b) in enumerate(mlist) if s > SP) + 2
    XK = min(last[0], last[1]) - 1
    w2set = [True]
    for m, (s, b) in enumerate(mlist):
        if m == mst: add_stats()
        if m == last[1] + 1: stamp(e, 'p4a')
        for b2 in range(3):
            if m == last[b2] + 4: epi(b2)
        lg = f'lgkmcnt({2*max(0, min(LD-2, M-2-m))})' if m % 2 == 0 else ''
        vm.wait(f'h{s}', lg)
        if b == 0: stamp(e, f'h{s}')
        acc = vr(ACC4 + 16*b, 16); k, r = wreg(m)
        zero = s == 0
        if s == 0 and m > XK: e(f'{MF} {acc}, {ar(224+4*b,4)}, {vr(XB,4)}, 0'); zero = False
        e(f'{MF} {acc}, {vr(r,4,k)}, {vr(HF+4*s,4)}, ' + ('0' if zero else acc))
        if m % 2 == 1 and hq: hl(hq.pop(0)); n = 2
        elif m % 2 == 1 and w2n[0] < 56: w2l(1, w2set[0]); w2set[0] = False; n = 2
        else: n = 3 if m % 2 else 2
        if m + LD < M: e('\n'.join(rds(m + LD)))
        else: n += 2
        F.drain(n)
        if m == XK:
            F.need('st')
            for b2 in range(4):
                if firstm[b2] <= XK: e(f'{MF} {vr(ACC4+16*b2,16)}, {ar(224+4*b2,4)}, {vr(XB,4)}, {vr(ACC4+16*b2,16)}')
    stamp(e, 'p4mf')
    F.drain(999)
    w2l(56, w2set[0])
    epi(3); F.drain(999)
    e('s_barrier\nds_write_b32 v251, v248\ns_mov_b32 m0, s71')
    vm.wait('h1st')
    dual([f'buffer_store_dword v8, v14, s[12:15], s25 offen offset:{20*128}'], 'f4', 'L_f4')
    stamp(e, 'p4end')
    poll('L_p4', 'v7', f's69 offen offset:{20*128}')
    stamp(e, 's4done')
    GF, ACC5, RING = 16, 144, 32
    GP = knob('gp', 12)
    s5 = [(a, n) for a in (1, 0) for n in range(28)]
    def gl(i):
        a, n = s5[i]
        if i and n % 4 == 0: e(f's_add_u32 m0, s{70+a}, {n*1024}')
        vm.op(f'buffer_load_dwordx4 {vr(GF+4*(i%RING),4)}, v255, s[12:15], m0 offen offset:{aoff(n)} sc1', f'g{i}')
    def m5(a, f, n): e('\n'.join(mm(ACC5, 'a', 0, GF + 4*((n + 28*(1-a)) % RING), a, f, n, True)))
    ON_ = ' nt' if knob('on', 0) else ''
    RS = lambda r: 248 + (2*(r // 8) if M16 else 0)
    G0 = knob('g0', 5); gi = [G0]
    for i in range(G0): gl(i)
    def gnext(i):
        if gi[0] < min(56, i + 1 + GP): gl(gi[0]); gi[0] += 1
    for i, (a, n) in enumerate(s5):
        if i == 28: stamp(e, 'p5a')
        vm.wait(f'g{i}')
        stamp(e, f'g{i}')
        m5(a, 1, n)
        gnext(i)
        if a == 1: m5(1, 0, n); gnext(i)
        elif n >= LAG: m5(0, 0, n - LAG)
        if a == 0:
            if 3 <= n < 11: e(rwr(2 + (n-3)//4, ACC5, (n-3) % 4))
            if n == 13:
                e('s_waitcnt lgkmcnt(0)\ns_barrier\nds_read_b32 v248, v250')
                if M16: e('ds_read_b32 v250, v250 offset:64')
            if 14 <= n < 18: e(rrd(2, ACC5, n-14) + '\n' + rrd(3, ACC5, n-14))
            if n == 19: e('s_waitcnt lgkmcnt(0)')
            if 19 <= n < 27:
                for r in (2*(n-19), 2*(n-19)+1): e(f'v_add_f32 v{ACC5+32+r}, v{ACC5+32+r}, v{ACC5+48+r}\nv_fmac_f32 v{224+r}, v{RS(r)}, v{ACC5+32+r}')
    stamp(e, 'p5mf')
    for n in range(28 - LAG, 28): m5(0, 0, n)
    for q in range(4): e(rwr(1, ACC5, q))
    if M16: e(f's_add_u32 s26, s27, {16*896}')
    for p in range(8): e(f'v_pk_fma_f32 {vr(224+2*p,2)}, {vr(ACC5+2*p,2)}, {vr(RS(2*p),2)}, {vr(224+2*p,2)} op_sel_hi:[1,0,1]')
    e('s_waitcnt lgkmcnt(0)\ns_barrier')
    for q in range(4): e(rrd(1, ACC5, q))
    for t in range(2):
        e(f's_waitcnt lgkmcnt({2-2*t})')
        for p in range(4*t, 4*t+4):
            e(f'v_pk_fma_f32 {vr(224+2*p,2)}, {vr(ACC5+16+2*p,2)}, {vr(RS(2*p),2)}, {vr(224+2*p,2)} op_sel_hi:[1,0,1]')
            e(f'v_cvt_pk_bf16_f32 v{16+p}, v{224+2*p}, v{225+2*p}')
        if M16: e(f'buffer_store_dwordx4 {vr(16+4*t,4)}, v0, s[40:43], s{27-t} offen' + ON_)
        else: e(f'buffer_store_dwordx4 {vr(16+4*t,4)}, v0, s[40:43], s27 offen offset:{32*t}' + ON_)
    stamp(e, 'p5st')
    stamp_out(e)
    e('s_endpgm')
    for x in slow: e(x)
    if H1M == 3 or knob('wb', 0):
        e(f"""L_wb:
s_cmp_lg_u32 s20, 14
s_cbranch_scc1 L_end
s_cmp_lg_u32 s16, 0
s_cbranch_scc1 L_end
v_and_b32 v5, 15, v1
v_min_u32 v5, 13, v5
v_lshrrev_b32 v13, 4, v1
v_lshl_add_u32 v5, v13, 5, v5
v_lshlrev_b32 v5, 2, v5""")
        poll('L_wbp', 'v5', f's25 offen offset:{(20 if H1M == 3 else 16)*128}')
        e('buffer_wbl2 sc1\ns_waitcnt vmcnt(0)\ns_endpgm')
    e('L_fallback:\ns_mov_b32 s30, 1\ns_waitcnt vmcnt(0) lgkmcnt(0)\ns_barrier')
    for j in range(16):
        e(kvset(j)); kl(j, 0); kl(j, 1); vl(j, 0); vl(j, 1)
        if j == 7: e('s_waitcnt vmcnt(0)')
    e('s_waitcnt vmcnt(0)')
    MXB = SCR
    d = vr(S, 16)
    for s in range(4):
        e(f'v_mov_b32 v{128+s}, 0xff800000')
        for j in range(16):
            e(f'{MF} {d}, {ar(16*j,4)}, {vr(Q+8*s,4)}, 0\n{MF} {d}, {ar(16*j+4,4)}, {vr(Q+8*s+4,4)}, {d}')
            for p in range(8): e(f'v_max3_f32 v{128+s}, v{S+2*p}, v{S+2*p+1}, v{128+s}')
        e(f"""v_mov_b32 v13, v{128+s}
v_permlane32_swap_b32 v{128+s}, v13
v_max_f32 v{128+s}, v{128+s}, v13
s_xor_b32 s76, s16, {3-s}
s_lshl_b32 s76, s76, 9
s_add_u32 s76, s76, {MXB}
v_and_b32 v13, 31, v1
v_lshlrev_b32 v13, 4, v13
v_add_u32 v{132+s}, s76, v13
s_lshl_b32 s76, s16, 2
v_add_u32 v13, s76, v{132+s}
ds_write_b32 v13, v{128+s}""")
    e('s_waitcnt lgkmcnt(0)\ns_barrier')
    for s in range(4): e(f'ds_read_b128 {vr(S+4*s,4)}, v{132+s}')
    e('s_waitcnt lgkmcnt(0)\ns_barrier')
    for s in range(4):
        e(f'v_max3_f32 v{128+s}, v{S+4*s}, v{S+1+4*s}, v{S+2+4*s}\nv_max_f32 v{128+s}, v{128+s}, v{S+3+4*s}')
    for s in range(4):
        for r in range(16): e(f'v_sub_f32 v{NM+r}, 0, v{128+s}\nv_mov_b32 v{O+16*s+r}, 0')
        for j in range(16):
            e(f'{MF} {d}, {ar(16*j,4)}, {vr(Q+8*s,4)}, {vr(NM,16)}\n{MF} {d}, {ar(16*j+4,4)}, {vr(Q+8*s+4,4)}, {d}')
            for r in range(16): e(f'v_exp_f32 v{S+r}, v{S+r}')
            for t in range(2): e(f'{SM} {vr(O+16*s,16)}, {ar(16*j+8+4*t,4)}, {vr(S+8*t,8)}, v7')
            e('s_nop 7')
        e('s_nop 7')
    for k in range(12): e(pwr(k//4, k % 4))
    for n in range(W2A):
        a, b = wfrag('W2', n); e(a + '\n' + b)
    e('s_waitcnt vmcnt(0) lgkmcnt(0)\ns_barrier')
    for k in range(12): e(prd(k//4, k % 4))
    e('s_branch L_combine')
    e('L_end:')

def build1(e, path):
    head = open(f'cdna_kernels/{NAME}.s.ref').read().split('\n')
    name = NAME + '_kernel'
    out = head[:12] + (['; stamps: ' + ' '.join(ST_NAMES)] if STAMP else []) + ['; @launch grid=(256,1,1) block=(256,1,1) lds=163840', '.amdgcn_target "amdgcn-amd-amdhsa--gfx950"\n.text']
    e.fix('-v' in sys.argv)
    out.append(f'.globl {name}\n' + ('.p2align 12\n' if knob('al', 1) else '') + f'.p2align 8\n.type {name},@function\n{name}:')
    out.append(e.text() + '    s_endpgm')
    out.append(f""".section .rodata,"a"
.p2align 6
.amdhsa_kernel {name}
  .amdhsa_next_free_vgpr 512
  .amdhsa_next_free_sgpr 102
  .amdhsa_accum_offset 256
  .amdhsa_group_segment_fixed_size 0
  .amdhsa_kernarg_size 88
  .amdhsa_user_sgpr_count 2
  .amdhsa_user_sgpr_kernarg_segment_ptr 1
  .amdhsa_system_sgpr_workgroup_id_x 1
.end_amdhsa_kernel""")
    open(path, 'w').write('\n'.join(out) + '\n')

if __name__ == '__main__':
    e = Asm(); kernel(e)
    outs = [a for a in sys.argv[1:] if a.endswith('.s')]
    build1(e, outs[0] if outs else 'v9.s')
```

```python
import sys, math, struct
from asmlib import *

NAME = 'sequential_preLN__mha_block__dense_activation_squared_relu__prompt'
MF = 'v_mfma_f32_32x32x16_bf16'
MH = 'v_mfma_f32_16x16x32_bf16'
SM = 'v_smfmac_f32_32x32x32_bf16'
def f32(x): return '0x%08x' % struct.unpack('<I', struct.pack('<f', x))[0]
QSCALE = math.log2(math.e) / math.sqrt(28.0)

VP, ONE, TTP = 28672, 57344, 57600
WS_O, WS_H, WS_S, WS_H1, WS_WF, WS_FL, WS_ST = 0x600000, 0x800000, 0x9E0000, 0xA40000, 0x1200000, 0x1400000, 0x1500000
WS_F1, WS_F2, HINT = WS_FL + 0x10000, WS_FL + 0x14000, 0x8000
WS_BYTES = 0x1600000
WFP = 144*2048
POLL_MAX = 1 << 18
STAMP = '--stamp' in sys.argv
def knob(name, d):
    for a in sys.argv:
        if a.startswith(name + '='): return int(a.split('=')[1])
    return d
ST_NAMES = ['start p1go p1st s1sig s1done a0 comb end', 'comb s2sig s2done p3end s3done p4end s4done end',
            'p1go p1end p1st s1sig s1win s1done a0 aB', 's2sig s2win s2done p3mf p3st p3end s3done p4a',
            's3done p4a p4mf p4end s4done p5a p5mf p5st', 'a0 a6 a16 a28 a38 aB a58 comb',
            'start p1ld p1w p1go c1 c3 c5 p1end', 's3done h0 h5 h10 h18 h27 p4mf p4end', 's4done g0 g8 g16 g28 g40 p5mf p5st', 's2done o0 o4 o8 o12 p3mf p3st p3end'][knob('st', 0)].split()

for a in sys.argv:
    if a.startswith('names='): ST_NAMES = a[6:].split(',')
def stamp(e, name):
    if STAMP:
        for i, n in enumerate(ST_NAMES):
            if n == name: e(('s_memtime' if '--cyc' in sys.argv and (i or knob('dwg', -1) < 0) else 's_memrealtime') + f' s[{84+2*i}:{85+2*i}]')
def stamp_out(e):
    if not STAMP: return
    if knob('dwg', -1) >= 0:
        stamp(e, 'end')
        e(f'''s_cmp_lg_u32 s2, {knob('dwg', 0)}
s_cbranch_scc1 L_dgx
s_cmp_lg_u32 s16, {knob('dwv', 0)}
s_cbranch_scc1 L_dgx
s_waitcnt lgkmcnt(0)
s_sub_u32 s4, s88, s86
s_mul_i32 s4, s4, {1 if '--cyc' in sys.argv else 10}
s_min_u32 s4, s4, 50000
s_add_u32 s4, s4, 10000
s_mov_b32 s10, 2000000
L_dgl:
s_sub_u32 s10, s10, 1
s_cbranch_scc1 L_dgx
s_memrealtime s[8:9]
s_waitcnt lgkmcnt(0)
s_sub_u32 s8, s8, s84
s_cmp_lt_u32 s8, s4
s_cbranch_scc1 L_dgl
L_dgx:''')
        return
    e('s_waitcnt vmcnt(0)')
    stamp(e, 'end')
    e('s_waitcnt lgkmcnt(0)')
    e(f's_lshl_b32 s3, s2, 2\ns_add_u32 s3, s3, s16\ns_lshl_b32 s3, s3, 6\ns_add_u32 s3, s3, {WS_ST}\nv_mov_b32 v1, 0')
    for i in range(8):
        e(f'v_mov_b32 v0, s{84+2*i}\nbuffer_store_dword v0, v1, s[12:15], s3 offen offset:{4*i}')

def swap23(d, s, t):
    return f'''v_and_b32 v{d}, 0x33, v{s}
v_and_b32 v{t}, 4, v{s}
v_lshl_or_b32 v{d}, v{t}, 1, v{d}
v_lshrrev_b32 v{t}, 1, v{s}
v_and_or_b32 v{d}, v{t}, 4, v{d}'''
def halves_sum(r, t):
    return f'v_mov_b32 v{t}, v{r}\nv_permlane32_swap_b32 v{r}, v{t}\nv_add_f32 v{r}, v{r}, v{t}'
def ln_stats(vs, vq, t, mean, rstd, sig=None):
    s = halves_sum(vs, t) + '\n' + halves_sum(vq, t) + f'''
v_mul_f32 v{mean}, {f32(1/448)}, v{vs}
v_mul_f32 v{t}, v{mean}, v{mean}
v_mov_b32 v{rstd}, {f32(1/448)}
v_fma_f32 v{t}, v{vq}, v{rstd}, -v{t}
v_max_f32 v{t}, 0, v{t}
v_add_f32 v{t}, {f32(1e-5)}, v{t}
v_rsq_f32 v{rstd}, v{t}'''
    if sig is not None: s += f'\nv_mul_f32 v{sig}, v{t}, v{rstd}'
    return s

class Fill:
    def __init__(self, e): self.e = e; self.q = []
    def add(self, text):
        if not isinstance(text, str): self.q.append(text); return
        for l in text.split('\n'):
            l = l.strip()
            if not l: continue
            if l.startswith(('s_cselect', 's_addc')): self.q[-1] += '\n' + l
            else: self.q.append(l)
    def mark(self, tag): self.q.append(('mark', tag))
    def drain(self, k):
        while k > 0 and self.q:
            x = self.q.pop(0)
            if isinstance(x, tuple): continue
            if isinstance(x, str): self.e(x)
            else: x()
            k -= 1
    def need(self, tag):
        while ('mark', tag) in self.q: self.drain(1) if self.q[0] != ('mark', tag) else self.q.pop(0)

def kernel(e):
    vm = VM(e); slow = []
    XR, WQ, CSB, QX = 65536, 114688, 143360, 147456
    SCR = 114688
    MAP = knob('map', 8); M16 = knob('m16', 1); H1M = knob('h1m', 2)
    Q, O, S, WOF, NM = 16, 48, 112, 160, 144
    def emit(l, tag):
        for x in l:
            if x.startswith(('buffer', 'global')): vm.op(x, tag)
            else: e(x)
    e("""s_getpc_b64 s[80:81]
L_pc0:
s_lshr_b32 s76, s2, 3
v_lshrrev_b32 v10, 4, v0
v_lshl_add_u32 v10, s76, 4, v10
v_min_u32 v10, (L_fallback-L_pc0)/128, v10
v_lshlrev_b32 v10, 7, v10""")
    vm.op('global_load_dword v31, v10, s[80:81]', 'T')
    e("""s_load_dwordx4 s[4:7], s[0:1], 0
s_load_dwordx2 s[12:13], s[0:1], 80""")
    stamp(e, 'start')
    e("""s_cmp_ge_u32 s76, 32
s_cbranch_scc1 L_end
v_lshrrev_b32 v2, 6, v0
v_and_b32 v1, 63, v0
v_readfirstlane_b32 s16, v2
s_and_b32 s51, s2, 7""")
    lg = {2: 1, 4: 2, 8: 3}[MAP]
    ROT = knob('rot', 2)
    WSB = knob('wsb', 0) << 20
    wsb = f's_add_u32 s12, s12, {WSB}\ns_addc_u32 s13, s13, 0' if WSB else ''
    rotc = {7: f's_lshr_b32 s48, s76, {5-lg}\ns_lshl1_add_u32 s48, ' + ('s48, s77' if MAP <= 4 else 's77, s48') + '\ns_mul_i32 s77, s48, 37\ns_lshr_b32 s77, s77, 8\ns_mul_i32 s77, s77, 7\ns_sub_u32 s48, s48, s77',
            1: 's_mov_b32 s48, 0', 2: 's_lshr_b32 s48, s17, 1\ns_add_u32 s48, s48, s18\ns_and_b32 s48, s48, 1',
            4: 's_add_u32 s48, s17, s18\ns_and_b32 s48, s48, 3\ns_lshl_b32 s48, s48, 1'}[ROT]
    def adv(r, step, it):
        if it == 0: return []
        if ROT == 1 or (ROT == 2 and it > 2): return [f's_add_u32 s{r}, s{r}, {step}']
        if ROT == 2: return [f's_sub_u32 s{r}, {step}, s{r}' if it == 1 else f's_mov_b32 s{r}, {2*step}']
        return [f's_add_u32 s{r}, s{r}, {step}', f's_cmp_lg_u32 s{r}, {7*step}\ns_cselect_b32 s{r}, s{r}, 0']
    e(f"""s_lshr_b32 s17, s51, {lg-1}
s_lshl_b32 s17, s17, {lg}
s_lshr_b32 s77, s76, {5-lg}
s_add_u32 s17, s17, s77        ; qb
s_and_b32 s18, s51, {MAP//2 - 1}
s_lshl_b32 s18, s18, {5-lg}
s_and_b32 s77, s76, {32//MAP - 1}
s_add_u32 s18, s18, s77        ; head
s_lshl2_add_u32 s79, s17, s16
{rotc}
s_mul_i32 s55, s79, {32*896}
s_mul_i32 s54, s16, {16*2688}
s_and_b32 s77, s17, 1
s_lshl2_add_u32 s77, s77, {knob('lh', 1)}
s_cmp_gt_u32 s18, s77
s_subb_u32 s30, s18, 0
s_sub_u32 s78, s18, s77
s_cmp_gt_i32 s78, 7
s_subb_u32 s30, s30, 0
s_bitcmp1_b32 0x81, s78
s_cselect_b32 s30, 15, s30     ; window
s_lshl_b32 s56, s30, 7
s_add_u32 s56, s56, s54
s_add_u32 s56, s56, 896
s_mul_i32 s49, s48, {64*2688}
s_lshl_b32 s48, s48, 7
s_mov_b32 s50, s49
s_mul_i32 s52, s16, 12288
s_add_u32 s52, s52, {XR}
s_lshl_b32 s53, s16, 11
v_lshrrev_b32 v64, 3, v1
v_lshrrev_b32 v65, 4, v1
v_and_b32 v66, 7, v1
v_xor_b32 v67, v65, v66
v_mul_u32_u24 v68, 896, v64
v_lshl_add_u32 v2, v67, 4, v68
v_add_u32 v2, s55, v2
v_xor_b32 v3, 64, v2
v_add_u32 v3, 6144, v3
v_add_u32 v4, 12288, v2
v_add_u32 v5, 12288, v3
v_and_b32 v67, 1, v65
v_lshlrev_b32 v67, 2, v67
v_xor_b32 v69, v67, v66
v_mul_u32_u24 v67, 2688, v64
v_lshl_add_u32 v6, v69, 4, v67
v_add_u32 v6, s56, v6
v_add_u32 v7, {8*2688-1024}, v6
s_mov_b32 s11, 0x00020000
s_mov_b32 m0, s53
s_waitcnt lgkmcnt(0)
{wsb}
s_cmp_lt_u32 s30, 14
s_cselect_b32 s10, {448*2688}, 0
s_mov_b64 s[8:9], s[6:7]
s_mov_b32 s6, {2048*896}
s_mov_b32 s7, s11
s_cbranch_scc0 L_light""")
    stamp(e, 'p1ld')
    def wload(it):
        return ([f's_add_u32 m0, s53, {it*8192}'] if it else []) + adv(49, 64*2688, it) + \
               [f'buffer_load_dwordx4 v{6+j}, s[8:11], s49 offen offset:{1024*j} lds' for j in range(2)]
    def xload(it):
        return [f's_add_u32 m0, s52, {(it%3)*4096}'] + adv(48, 128, it) + \
               [f'buffer_load_dwordx4 v{2+i}, s[4:7], s48 offen offset:{1024*i} lds' for i in range(4)]
    emit(wload(0) + xload(0), 0)
    TLB = knob('tlb', 2)
    def touches():
        QT = knob('qt', 2)
        if QT == 2:
            e(f'''s_min_u32 s77, s2, 223
s_mul_i32 s77, s77, {2*2688}
v_lshrrev_b32 v70, 7, v0
v_mul_u32_u24 v70, 2688, v70
v_bfe_u32 v71, v0, 4, 3
v_min_u32 v71, 6, v71
v_lshl_add_u32 v70, v71, 7, v70
v_add_u32 v70, s77, v70''')
            vm.op('global_load_dword v31, v70, s[8:9]', 'T')
        if QT == 1 and MAP == 8:
            e(f'''s_and_b32 s77, s51, 3
s_mul_i32 s77, s77, 7
s_lshr_b32 s77, s77, 2
s_lshl_b32 s77, s77, 7
s_mul_i32 s78, s76, {14*2688}
s_add_u32 s77, s77, s78
v_lshrrev_b32 v70, 4, v0
v_min_u32 v70, 13, v70
v_mul_u32_u24 v70, 2688, v70
v_bfe_u32 v71, v0, 2, 2
v_min_u32 v71, 2, v71
v_lshl_add_u32 v70, v71, 7, v70
v_add_u32 v70, s77, v70''')
            vm.op('global_load_dword v31, v70, s[8:9]', 'T')
        if knob('pt', 1):
            e(f'''s_lshl4_add_u32 s77, s17, s18
s_lshl2_add_u32 s77, s77, s16
s_mul_i32 s77, s77, {2*896}
v_min_u32 v70, 4, v66
v_lshlrev_b32 v70, 7, v70
v_and_b32 v71, 1, v64
v_mul_u32_u24 v71, 896, v71
v_add_u32 v70, v70, v71
s_mul_i32 s78, s79, {5*2688}
s_lshl_b32 s57, s30, 7
s_add_u32 s78, s78, s57
s_add_u32 s78, s78, {128*2688 + 896}
v_min_u32 v71, 4, v64
v_mul_u32_u24 v71, 2688, v71
s_mov_b64 exec, 0xffff''')
            vm.op('buffer_load_dword v31, v70, s[4:7], s77 offen offset:256', 'T')
            e('s_mov_b64 exec, -1')
            vm.op('buffer_load_dword v31, v71, s[8:11], s78 offen', 'T')
        if TLB: e('s_min_u32 s77, s76, 10\ns_sub_u32 s31, s76, s77\ns_lshl_b32 s77, s77, 3\ns_load_dwordx2 s[82:83], s[0:1], s77\ns_lshl_b32 s31, s31, 20')
        if TLB and WSB: e(f's_add_u32 s78, s31, {WSB}\ns_cmp_lt_u32 s76, 10\ns_cselect_b32 s31, 0, s78')
        e(f"""s_load_dwordx2 s[40:41], s[0:1], 16
s_load_dwordx2 s[42:43], s[0:1], 48
s_load_dwordx2 s[60:61], s[0:1], 32
s_load_dwordx2 s[100:101], s[0:1], 72
s_mov_b32 s14, {WS_BYTES}
s_mov_b32 s15, 0x00020000
v_mov_b32 v219, 0""")
        if TLB == 2:
            e('v_mov_b32 v70, s31\ns_waitcnt lgkmcnt(0)'); vm.op('global_load_dword v31, v70, s[82:83]', 'T')
    touches()
    C1 = knob('c1', 200)
    if C1 == 0: emit(wload(1) + xload(1), 1)
    e('s_waitcnt lgkmcnt(0)')
    if TLB == 1: e('s_load_dword s26, s[82:83], s31')
    def addrs():
        e("""v_and_b32 v73, 31, v1
v_lshrrev_b32 v71, 1, v73
v_lshrrev_b32 v72, 5, v1
v_xor_b32 v71, v71, v72
v_and_b32 v71, 7, v71
v_lshlrev_b32 v71, 4, v71
v_lshl_add_u32 v71, v73, 7, v71
v_add_u32 v71, s52, v71
s_lshl_b32 s77, s16, 5
v_xor_b32 v9, s77, v71
v_xor_b32 v10, 32, v9
v_xor_b32 v11, 64, v9
v_xor_b32 v12, 0x60, v9
v_bfe_u32 v76, v1, 2, 2
v_lshl_add_u32 v74, v72, 3, v76
v_and_b32 v75, 16, v1
v_lshlrev_b32 v75, 1, v75
v_and_b32 v71, 1, v1
v_lshl_add_u32 v75, v71, 4, v75
v_bfe_u32 v71, v1, 1, 1
v_lshl_add_u32 v75, v71, 3, v75
v_lshl_add_u32 v13, v74, 7, v75
v_bfe_u32 v71, v1, 3, 1
v_lshl_add_u32 v13, v71, 6, v13
v_add_u32 v13, s53, v13""")
        for n in range(1, 8): e(f'v_xor_b32 v{13+n}, {2048*(n >> 1) + 64*(n & 1)}, v13')
        e('v_mov_b32 v25, 0x3f803f80\nv_mov_b32 v26, 0\nv_mov_b32 v27, 0\nv_mov_b32 v28, 0\nv_mov_b32 v29, 0')
    addrs()
    F = Fill(e); park = []
    def prk(dst, src): F.add(f'v_accvgpr_write_b32 a{len(park)}, v{src}'); park.append(dst)
    F.add(f"""s_mov_b32 s36, s8
s_mov_b32 s37, s9
s_mov_b32 s38, {448*2688}
s_mov_b32 s39, 0x00020000
s_and_b32 s28, s18, 1
s_lshr_b32 s77, s18, 1
s_mul_i32 s77, s77, 7
s_mul_i32 s78, s28, 3
s_add_u32 s78, s78, s77
s_lshl4_add_u32 s77, s78, s54
s_lshr_b32 s54, s53, 1
s_add_u32 s54, s54, {WQ}
v_lshrrev_b32 v70, 2, v1
v_mul_u32_u24 v71, 2688, v70
v_and_b32 v77, 3, v1
v_lshl_add_u32 v8, v77, 4, v71
v_add_u32 v8, s77, v8""")
    F.mark('wq')
    F.add(swap23(64, 73, 71))
    F.add(f"""v_lshlrev_b32 v254, 4, v1
v_lshlrev_b32 v71, 4, v64
v_lshl_add_u32 v71, v72, 9, v71
s_lshl_b32 s77, s78, 9
v_add_u32 v71, s77, v71""")
    prk(3, 71)
    F.add(f"""v_mul_u32_u24 v71, 7168, v72
v_lshl_add_u32 v240, v64, 4, v71
v_add_u32 v241, 14336, v240
s_mul_i32 s77, s18, 448
s_add_u32 s77, s77, {VP}
v_add_u32 v66, s77, v240
v_add_u32 v67, s77, v241
v_mov_b32 v78, {WS_BYTES}
v_mov_b32 v71, {ONE}
v_cmp_eq_u32 vcc, 28, v73
v_cndmask_b32 v71, v78, v71, vcc
v_cmp_gt_u32 vcc, 28, v73
v_cndmask_b32 v66, v71, v66, vcc
v_cndmask_b32 v67, v71, v67, vcc""")
    prk(4, 66); prk(248, 67)
    F.add(f"""v_lshlrev_b32 v242, 3, v73
v_add_u32 v242, {CSB}, v242
s_lshl_b32 s77, s16, 8
v_add_u32 v243, s77, v242
s_mul_i32 s58, s79, {TTP}
s_lshl_b32 s57, s30, 12
s_lshl_b32 s77, s30, 10
s_add_u32 s77, s77, {VP - 7*1024}
s_cmp_lt_u32 s30, 7
s_cselect_b32 s57, s57, s77
s_add_u32 s57, s57, s58
s_add_u32 s58, s58, {ONE}
s_cmp_eq_u32 s30, 13
s_cselect_b32 s58, s58, {WS_BYTES}
v_min_u32 v244, 0x70, v254
s_lshl_b32 s3, s79, 5
s_add_u32 s3, s3, s18
s_lshl_b32 s3, s3, 10
s_add_u32 s3, s3, {WS_O}
v_lshl_add_u32 v21, v74, 6, v75
v_add_u32 v21, s54, v21
v_xor_b32 v22, 1024, v21
v_xor_b32 v23, 2048, v21
v_xor_b32 v24, 3072, v21
v_mov_b32 v30, 0""")
    for r in (218, 221, 222, 223, 226, 227, 230, 231, 234, 235): F.add(f'v_mov_b32 v{r}, 0')
    for r in range(236, 240): F.add(f'v_mov_b32 v{r}, v25')
    F.add(f"""s_bfe_u32 s20, s2, 0x40003     ; j
s_lshr_b32 s19, s2, 7
s_lshl1_add_u32 s19, s51, s19  ; rb
s_lshl_b32 s25, s19, 12
s_add_u32 s25, s25, {WS_FL}
s_getreg_b32 s76, hwreg(HW_REG_XCC_ID, 0, 4)
s_lshl_b32 s77, s76, 2
s_lshl_b32 s29, 14, s77
s_lshl_b32 s77, 1, s77
s_cmp_lt_u32 s76, 8
s_cselect_b32 s77, s77, 0
s_cmp_lt_u32 s20, 14
s_cselect_b32 s77, s77, 0
v_lshlrev_b32 v79, 7, v1
s_lshl_b32 s76, s17, 7
s_add_u32 s76, s76, {WS_F1}
s_add_u32 s78, s76, {WS_F2 - WS_F1}
s_cmp_lt_u32 s30, 14
s_cselect_b32 s76, s76, s78
v_lshl_add_u32 v255, v79, 4, s76
s_add_u32 s78, s25, {24*128}
v_writelane_b32 v255, s78, 8
s_cmp_eq_u32 s16, 0
s_cselect_b32 s76, 9, 0
v_cmp_gt_u32 vcc, s76, v1
v_cndmask_b32 v255, v78, v255, vcc
v_mov_b32 v253, 1
v_writelane_b32 v253, s77, 8""")
    F.add(f"""s_and_b32 s21, s20, 1          ; th
s_lshr_b32 s22, s20, 1         ; fb
s_lshl1_add_u32 s23, s19, s21
s_lshr_b32 s76, s16, 1
s_and_b32 s77, s22, {knob('flip', 0)}
s_xor_b32 s76, s76, s77
s_lshl1_add_u32 s23, s23, s76
s_and_b32 s76, s16, 1
s_lshl1_add_u32 s24, s22, s76
s_lshl_b32 s77, s76, {11 if M16 else 10}
v_add_u32 v66, s77, v254
s_lshl_b32 s65, s23, 12
s_lshl3_add_u32 s65, s76, s65
s_lshl_b32 s77, s22, 9
s_add_u32 s65, s65, s77
s_add_u32 s65, s65, {WS_S}
s_mul_i32 s27, s23, {32*896}
s_lshl_b32 s77, s24, 11
s_add_u32 s64, s27, s77
s_add_u32 s64, s64, {WS_H}     ; h tile
s_lshl_b32 s76, s24, 6
s_add_u32 s27, s27, s76""")
    prk(171, 66)
    if M16:
        F.add("""v_and_b32 v66, 15, v1
v_mul_u32_u24 v67, 896, v66
v_lshlrev_b32 v71, 4, v65
v_add_u32 v67, v67, v71
v_lshlrev_b32 v66, 4, v66
v_lshl_add_u32 v66, v72, 8, v66
v_and_b32 v246, 16, v1
v_lshl_add_u32 v66, v246, 10, v66""")
        prk(172, 66)
    else:
        F.add('v_mul_u32_u24 v67, 896, v73\nv_lshlrev_b32 v71, 4, v72\nv_add_u32 v67, v67, v71')
    F.add(f"""v_add_u32 v71, s76, v71
s_lshl_b32 s76, s20, 8
s_lshl_b32 s77, s16, 6
s_add_u32 s77, s77, s76
v_lshl_add_u32 v66, v64, 1, s77""")
    prk(0, 67); prk(160, 71); prk(161, 66)
    F.add(f"""s_mov_b32 s31, s77
s_lshl2_add_u32 s77, s2, s16
s_mul_i32 s77, s77, 1664
s_min_u32 s77, s77, {448*3584 - 1664}
v_min_u32 v249, 12, v70
v_lshlrev_b32 v249, 7, v249""")
    prk(177, 249)
    F.add(f"""
s_add_u32 s82, s60, s77
s_addc_u32 s83, s61, 0
s_mul_i32 s77, s16, {16*3584}
s_add_u32 s77, s77, s76
s_add_u32 s60, s60, s77
s_addc_u32 s61, s61, 0
s_lshl_b32 s59, s16, 12
v_cmp_gt_u32 vcc, 32, v1
s_cmp_eq_u32 s28, 0
s_cselect_b32 s76, -1, 0
v_cndmask_b32 v66, 0, -1, vcc
v_not_b32 v67, v66
v_or_b32 v67, s76, v67
s_not_b32 s76, s76
v_or_b32 v71, s76, v66""")
    prk(6, 66); prk(13, 67); prk(5, 71)
    F.add(f's_add_u32 s76, s53, {QX}\nv_add_u32 v66, s76, v254'); prk(15, 66)
    for s in range(4):
        F.add(f's_xor_b32 s76, s16, {3-s}\ns_mul_i32 s76, s76, 12288\ns_add_u32 s76, s76, {SCR}\nv_add_u32 v66, s76, v254'); prk(9 + s, 66)
    F.add("""v_lshlrev_b32 v66, 2, v65
v_and_b32 v67, 15, v1
v_xor_b32 v66, v66, v67
v_mul_u32_u24 v67, 3584, v65
v_lshl_add_u32 v66, v66, 4, v67""")
    prk(165, 66)
    F.add("""v_lshl_add_u32 v66, v74, 8, v75
v_xor_b32 v67, s16, v76
v_lshl_add_u32 v66, v67, 6, v66""")
    prk(173, 66)
    ST = knob('sm', 0)
    if ST & 2: F.add('v_mov_b32 v66, v78')
    else: F.add(f"""v_add_u32 v66, s64, v79
s_and_b32 s76, s65, 0xffffff80
s_sub_u32 s76, s76, {16*128}
v_add_u32 v67, s76, v79
v_cmp_gt_u32 vcc, 16, v1
v_cndmask_b32 v66, v67, v66, vcc
v_cmp_gt_u32 vcc, 20, v1
v_cndmask_b32 v66, v78, v66, vcc""")
    F.add(f"""s_lshl_b32 s51, s51, 11
s_add_u32 s76, s51, {WS_F2 - 48*128}
v_add_u32 v67, s76, v79
v_cmp_gt_u32 vcc, 48, v1
v_cndmask_b32 v66, v67, v66, vcc
v_writelane_b32 v66, s78, 20
s_add_u32 s51, s51, {WS_F1}
s_bfe_u32 s76, s2, 0x20003
s_lshl2_add_u32 s76, s76, s16
s_lshl_b32 s76, s76, 11
v_and_b32 v67, 0x780, v79
v_add_u32 v71, s76, v67
v_min_u32 v71, L_fallback-L_pc1, v71""")
    prk(241, 66); prk(169, 67); prk(170, 71)
    F.add(f'v_mul_u32_u24 v66, {57344 - 4096}, v72\nv_add_u32 v66, v66, v79'); prk(240, 66)
    F.add(f"""s_lshl_b32 s76, s17, 12
s_add_u32 s76, s76, {WS_FL}
s_cmp_eq_u32 s16, 0
s_cselect_b32 s76, s76, {WS_BYTES}
v_writelane_b32 v78, s76, 0
v_mul_u32_u24 v66, 12288, v77
v_add_u32 v66, {SCR}, v66
v_lshlrev_b32 v67, 2, v73
v_sub_u32 v67, v67, v254""")
    prk(174, 78); prk(175, 66); prk(176, 67)
    F.add(f"""s_and_b32 s76, s17, {knob('kvm', 1)}
s_lshl1_add_u32 s76, s16, s76
s_mul_i32 s46, s76, {8*TTP}
s_xor_b32 s76, s76, 1
s_mul_i32 s47, s76, {8*TTP}
s_mul_i32 s44, s22, {WFP}
s_add_u32 s44, s44, {WS_WF}
s_cmp_lt_u32 s20, 14
s_cselect_b32 s44, s44, {WS_BYTES}
s_mul_i32 s45, s16, {28*2048}
s_add_u32 s45, s45, s44
s_lshl2_add_u32 s44, s59, s44
s_add_u32 s44, s44, {112*2048} ; Wo fragments of this wave
s_lshl_b32 s62, s23, 15
s_add_u32 s62, s59, s62
s_add_u32 s62, s62, {WS_O}
s_xor_b32 s63, s62, 32768
s_lshl_b32 s66, s16, 7
s_add_u32 s66, s66, s25
s_lshl2_add_u32 s76, s19, s16
s_mul_i32 s67, s76, 28672
s_add_u32 s67, s67, {WS_H}
s_lshl_b32 s68, s76, 12
s_add_u32 s68, s68, {WS_S}
s_mul_i32 s28, s76, 114688
s_lshl_b32 s77, s20, 12
s_add_u32 s28, s28, s77
s_add_u32 s28, s28, {WS_H1}
s_lshr_b32 s72, s53, 1
s_add_u32 s72, s28, s72
s_xor_b32 s73, s72, 1024
s_xor_b32 s74, s72, 2048
s_xor_b32 s75, s72, 3072
s_lshl_b32 s69, s21, 8
s_add_u32 s69, s69, s25
s_mul_i32 s76, s16, {14*1024}
s_add_u32 s76, s76, {WS_H1}
s_mul_i32 s70, s23, 114688
s_add_u32 s70, s70, s76
s_xor_b32 s77, s23, 1
s_mul_i32 s71, s77, 114688
s_add_u32 s71, s71, s76""")
    qall = list(F.q)
    if C1: F.drain(C1); emit(wload(1) + xload(1), 1)
    F.drain(max(0, knob('f0', 200) - C1))
    stamp(e, 'p1w')
    ACC, QA, WF, XF = 32, 64, 80, 104
    XM, RM, CF, ON = 216, 220, 224, 236
    def reads(s, ty):
        it, kk = divmod(s, 4); b = s % 3
        l = [f'ds_read_b128 {vr(XF+4*s,4)}, v{9+kk} offset:{(it%3)*4096}']
        if ty != 'l':
            for f in range(2):
                for rd in range(2):
                    l.append(f'ds_read_b64_tr_b16 {vr(WF+8*b+4*f+2*rd,2)}, v{13+2*kk+f} offset:{it*8192 + rd*512}')
        return l
    def xdots(s):
        for r in range(4):
            x = XF + 4*s + r
            e(f'v_dot2c_f32_bf16 v26, v{x}, v25\nv_dot2c_f32_bf16 v27, v{x}, v{x}')
    wq = [[f's_add_u32 m0, s54, {it*4096}'] + adv(50, 64*2688, it) + ['buffer_load_dwordx4 v8, s[36:39], s50 offen lds'] for it in range(7)]
    WQS = [int(c) for c in str(knob('wqs', 3)) if c != '0']
    WQE = knob('wqe', 7)
    early = {c - 1: wq[n] for n, c in enumerate(WQS)}
    rdy = 'global_load_dword v245, v219, s[100:101] sc1'
    def rdycheck(lab):
        e(f"""v_cmp_gt_u32 vcc, 32, v245
s_cbranch_vccnz {lab}p
{lab}d:""")
        slow.append(f"""{lab}p:
s_mov_b32 s26, {POLL_MAX}
{lab}l:
global_load_dword v245, v219, s[100:101] sc1
s_sub_u32 s26, s26, 1
s_cbranch_scc1 {lab}d
s_waitcnt vmcnt(0)
v_cmp_gt_u32 vcc, 32, v245
s_cbranch_vccnz {lab}l
s_branch {lab}d""")
    xm_frag = f"""v_cmp_gt_u32 vcc, 32, v1
v_sub_f32 v247, 0, v247
v_cndmask_b32 v247, 0, v247, vcc
v_and_b32 v26, 0xffff0000, v247
v_sub_f32 v27, v247, v26
v_cvt_pk_bf16_f32 v{XM}, v26, v26
v_cvt_pk_bf16_f32 v{XM+1}, v27, 0"""
    e('s_cmp_lt_u32 s30, 7\ns_cbranch_scc1 L_kk')
    vm0 = (list(vm.seq), vm.done); q0 = list(F.q)
    def variant(ty, lab):
        if lab: e(f'{lab}:')
        vm.seq, vm.done = list(vm0[0]), vm0[1]; F.q = list(q0)
        per = (len(F.q) + 5) // 6
        lt = wq[len(WQS):WQE]
        vm.wait(0); e('s_barrier')
        stamp(e, 'p1go')
        e('\n'.join(reads(0, ty) + reads(1, ty)))
        emit(wload(2), 2)
        for s in range(28):
            it, kk = divmod(s, 4); b = s % 3
            if kk == 0: stamp(e, f'c{it}')
            x = vr(XF+4*s, 4)
            mf = []
            for f in range(2):
                w = vr(WF+8*b+4*f, 4); a = vr(ACC+16*f, 16); c = a if s else '0'
                mf.append(f'{MF} {a}, {w}, {x}, {c}' if ty == 'k' else f'{MF} {a}, {x}, {w}, {c}')
            rd = reads(s+2, ty) if s < 26 else []
            if s < 18:
                if kk < 2: L = xload(it + 2); tag = it + 2; ld = {0: (L[:-3], L[-3:-2]), 1: (L[-2:-1], L[-1:])}[kk]
                else: L = wload(it + 3); tag = it + 3; ld = {2: ([], L[:-1]), 3: (L[-1:], [])}[kk]
            else:
                tag = 'wq'; F.need('wq')
                ld = ([], lt.pop(0) if lt else [])
            if s < 27: e(f's_waitcnt lgkmcnt({5 if s < 26 else 0})')
            if kk == 2:
                for r in range(4):
                    for f in range(2): e(f'v_dot2c_f32_bf16 v{28+f}, v{WF+8*b+4*f+r}, v25')
                for s2 in range(max(0, s-3), s + (2 if s == 26 else 1)): xdots(s2)
                if s < 26:
                    F.drain(per if s < 22 else 999)
                    vm.wait(it + 1); e('s_barrier')
                else:
                    for f in range(2): e(halves_sum(28+f, 246))
                    e('ds_write_b64 v243, v[28:29]')
            def spread(m, sal, rest):
                e(m)
                if sal and not sal[0].startswith('buffer'): e(sal[0]); sal = sal[1:]
                e('\n'.join(rest)); emit(sal, tag)
            spread(mf[0], ld[0], rd[:3])
            if s == 26: e(ln_stats(26, 27, 246, 247, 248))
            if s == 27: e(xm_frag)
            spread(mf[1], ld[1], rd[3:])
            if it in early and kk == 3: F.need('wq'); emit(early[it], 'wq')
            if s == 17: vm.op(rdy, 'rdy')
            if WT == 3 and s == knob('wts', 25): vm.op('global_load_dword v31, v249, s[82:83]', 'T')
            if s == 26:
                e('s_waitcnt lgkmcnt(0)\ns_barrier')
                for w in range(4): e(f'ds_read_b64 {vr(QA+2*w,2)}, v242 offset:{256*w}')
        assert not lt and not F.q
        stamp(e, 'p1end')
        if ty == 'v':
            e(f"""v_cndmask_b32 v246, 0, v248, vcc
v_and_b32 v26, 0xffff0000, v246
v_sub_f32 v27, v246, v26
v_cvt_pk_bf16_f32 v{RM}, v26, v27
{MF} v[88:103], {vr(RM,4)}, {vr(ON,4)}, 0""")
        e('s_waitcnt lgkmcnt(0)')
        for f in range(2):
            e(f"""v_add_f32 v{QA+f}, v{QA+f}, v{QA+2+f}
v_add_f32 v{QA+4+f}, v{QA+4+f}, v{QA+6+f}
v_add_f32 v{QA+f}, v{QA+f}, v{QA+4+f}
v_and_b32 v26, 0xffff0000, v{QA+f}
v_sub_f32 v27, v{QA+f}, v26
v_cvt_pk_bf16_f32 v{CF+4*f}, v26, v27
v_lshrrev_b32 v{CF+4*f+1}, 16, v{QA+f}""")
            a = vr(ACC+16*f, 16); w = vr(CF+4*f, 4)
            e(f'{MF} {a}, {w}, {vr(XM,4)}, {a}' if ty == 'k' else f'{MF} {a}, {vr(XM,4)}, {w}, {a}')
        vm.op(f'buffer_store_dwordx4 {vr(ON,4)}, v244, s[12:15], s58 offen sc1', 'kv')
        for f in range(2):
            A = ACC + 16*f
            for p in range(8):
                if ty == 'k': e(f'v_pk_mul_f32 {vr(A+2*p,2)}, {vr(A+2*p,2)}, v[248:249] op_sel_hi:[1,0]')
                else: e(f'v_pk_mul_f32 {vr(A+2*p,2)}, {vr(A+2*p,2)}, {vr(88+2*p,2)}')
                e(f'v_cvt_pk_bf16_f32 v{A+p}, v{A+2*p}, v{A+2*p+1}')
                if p % 4 == 3:
                    t = p // 4
                    if ty == 'k': vm.op(f'buffer_store_dwordx4 {vr(A+4*t,4)}, v254, s[12:15], s57 offen offset:{2048*f + 1024*t} sc1', 'kv')
                    else: vm.op(f'buffer_store_dwordx4 {vr(A+4*t,4)}, v{240+t}, s[12:15], s57 offen offset:{512*f} sc1', 'kv')
        stamp(e, 'kvst')
        if ty == 'v': e('s_branch L_q')
    hint = ['s_mov_b64 exec, 0xff', f's_mov_b32 m0, {HINT}', 'buffer_atomic_add v253, v255, s[12:15], m0 offen sc1', 's_mov_b64 exec, -1']
    def light():
        vm.seq, vm.done = [], 0; F.q = list(qall)
        e(f"""L_light:
s_mov_b32 s14, {WS_BYTES}
s_mov_b32 s15, 0x00020000
s_lshr_b32 s55, s18, 3
s_lshl1_add_u32 s55, s17, s55
s_lshl_b32 s77, s55, 12
s_add_u32 s77, s77, {WS_FL}
v_lshlrev_b32 v70, 4, v0
v_mov_b32 v216, 0
v_mov_b32 v217, 0
v_mov_b32 v218, 0
v_mov_b32 v219, 0""")
        vm.op('buffer_store_dwordx4 v[216:219], v70, s[12:15], s77 offen sc1', 'z')
        stamp(e, 'p1ld')
        assert TLB != 1
        touches()
        e('s_waitcnt lgkmcnt(0)')
        e(f"""s_lshl2_add_u32 s76, s55, s16
s_mul_i32 s77, s76, 147
s_lshr_b32 s77, s77, 10
s_mul_i32 s78, s77, 7
s_sub_u32 s78, s76, s78
s_mul_i32 s56, s78, {WFP}
s_lshl_b32 s76, s77, 14
s_add_u32 s56, s56, s76
s_add_u32 s56, s56, {WS_WF}
s_cmp_lt_u32 s77, 18
s_cselect_b32 s56, s56, {WS_BYTES}
s_sub_u32 s76, s77, 14
s_mov_b32 s34, {448*896}
s_mov_b32 s35, 0x00020000
s_mov_b32 s49, {28*896}
s_cmp_lt_u32 s77, 14
s_cselect_b32 s76, s77, s76
s_cselect_b32 s32, s42, s40
s_cselect_b32 s33, s43, s41
s_cselect_b32 s34, {1792*896}, s34
s_cselect_b32 s49, {32*896}, s49
s_mul_i32 s55, s76, s49
s_lshl_b32 s78, s78, 7
s_lshl2_add_u32 s55, s55, s78
s_lshl_b32 s26, s16, 14
v_lshl_add_u32 v32, v69, 4, v68
v_add_u32 v33, 6144, v32
v_add_u32 v34, 12288, v32
v_add_u32 v35, 18432, v32""")
        def udma(k):
            e(f's_add_u32 m0, s26, {k*4096}')
            if k: e('s_add_u32 s55, s55, s49')
            for i in range(4): vm.op(f'buffer_load_dwordx4 v{32+i}, s[32:35], s55 offen offset:{1024*i} lds', 'u')
        udma(0); udma(1)
        addrs(); F.drain(knob('lf', 150))
        vm.wait('z')
        e("""s_barrier
s_cmp_lg_u32 s16, 0
s_cbranch_scc1 L_light2
v_mov_b32 v38, 1
s_mov_b64 exec, 1
global_atomic_add v219, v38, s[100:101] sc1
s_mov_b64 exec, -1
L_light2:""")
        udma(2); udma(3)
        emit(xload(0), 0)
        F.drain(9999)
        if M16: e("""v_lshl_add_u32 v36, v65, 3, v76
v_lshlrev_b32 v36, 7, v36
v_lshl_add_u32 v36, v77, 4, v36
v_bfe_u32 v37, v1, 3, 1
v_lshl_add_u32 v36, v37, 6, v36
v_add_u32 v36, s26, v36""")
        else: e('v_subrev_u32 v36, s53, v13\nv_add_u32 v36, s26, v36')
        e('v_xor_b32 v37, 64, v36')
        emit(xload(1), 1)
        stamp(e, 'p1w'); stamp(e, 'p1go')
        for it in range(7):
            stamp(e, f'c{it}')
            vm.wait(it)
            for kk in range(4): e('\n'.join(reads(4*it + kk, 'l')))
            if it + 2 <= 6: emit(xload(it + 2), it + 2)
            if it == 5:
                for l in wq + [[rdy]]: emit(l, 'wq')
                if WT == 3: vm.op('global_load_dword v31, v249, s[82:83]', 'T')
            e('s_waitcnt lgkmcnt(0)')
            if it < 4:
                for n in range(4):
                    f, o = (n >> 1, (n & 1)*8) if M16 else (n & 1, (n >> 1)*2048)
                    for rd in range(2): e(f'ds_read_b64_tr_b16 {ar(64+16*it+4*n+2*rd,2)}, v{36+f} offset:{it*4096 + o + rd*512}')
            for kk in range(4): xdots(4*it + kk)
        e(ln_stats(26, 27, 246, 247, 248)); e(xm_frag)
        stamp(e, 'p1end')
        sts = []
        def ust(k, n):
            if n == 0: e(f's_add_u32 m0, s56, {k*4096}')
            vm.op(f'buffer_store_dwordx4 {ar(64+16*k+4*n,4)}, v254, s[12:15], m0 offen offset:{1024*n} sc1', 'ust')
        sts = [(lambda k=k, n=n: ust(k, n)) for k in range(4) for n in range(4)]
        for f in sts[:knob('ls', 4)]: f()
        vm.wait('wq'); rdycheck('L_rl')
        stamp(e, 'kvst'); stamp(e, 'p1st')
        e('s_barrier')
        rest = sts[knob('ls', 4):]
        qphase(True, rest)
        assert not rest
        stamp(e, 's1sig')
        poll2('L_t1', 'v169', None if NH & 1 else 's76 offen', 's51 offen', 14, kv_first, 'vmcnt(0)', 's1')
        e('buffer_atomic_add v253, v255, s[12:15], 0 offen sc1\ns_branch L_att')
    NH = knob('nh', 2); WT = knob('wt', 2)
    assert WQE == 7
    def qrd(s, dst=None):
        it, kk = divmod(s, 4)
        if dst is None: dst = ACC + 4*(s & 7)
        return [f'ds_read_b64_tr_b16 {vr(dst+2*rd,2)}, v{21+kk} offset:{it*4096 + rd*256}' for rd in range(2)]
    QS = knob('qs', 3)
    assert (3 <= WQE <= 4 and QS <= WQE) or WQE == 7
    def s1signal():
        stamp(e, 'q3'); vm.wait('kv'); stamp(e, 'q4')
        e('s_barrier')
        vm.op('buffer_atomic_add v253, v255, s[12:15], 0 offen sc1', 'sig')
        stamp(e, 's1sig')
    lateprk = [n for n, d in enumerate(park) if XF <= d < XF + 112]
    late_fill = '\n'.join(f'v_accvgpr_read_b32 v{park[n]}, a{n}' for n in lateprk) + '\n' + \
                '\n'.join(f'v_add_u32 v{165+i}, {i*(4*3584-1024)}, v165' for i in range(1, 4)) + '\n' + \
                '\n'.join(f'v_xor_b32 v{161+b}, {64*b}, v161' for b in range(1, 4))
    cs_fill = f"""v_add_f32 v96, v96, v97
v_add_f32 v98, v98, v99
v_add_f32 v30, v96, v98
v_and_b32 v28, 0xffff0000, v30
v_sub_f32 v29, v30, v28
v_cvt_pk_bf16_f32 v{CF+8}, v28, v29
v_lshrrev_b32 v{CF+9}, 16, v30"""
    def qcs(g0, g1, r0):
        n = g1 - g0
        for g in range(g0, g1): e('\n'.join(qrd(4*g, r0 + 4*(g - g0))))
        if n > 4:
            e(f's_waitcnt lgkmcnt({2*(n-4)})')
            for s in range(4*g0, 4*g0 + 4): e('\n'.join(qrd(s)))
            for r in range(16): e(f'v_dot2c_f32_bf16 v30, v{r0+r}, v25')
            e('s_waitcnt lgkmcnt(8)')
            for r in range(16, 4*n): e(f'v_dot2c_f32_bf16 v30, v{r0+r}, v25')
        else:
            for s in range(4*g0, 4*g0 + 3): e('\n'.join(qrd(s)))
            e('s_waitcnt lgkmcnt(6)')
            e('\n'.join(qrd(4*g0 + 3)))
            for r in range(4*n): e(f'v_dot2c_f32_bf16 v30, v{r0+r}, v25')
        if g1 == 7: e(halves_sum(30, 246) + '\nds_write_b32 v243, v30')
    w1n = [0]
    def w1set():
        it = w1n[0] // 4
        return [f's_add_u32 m0, s59, {it*16384}'] + ([f's_add_u32 s8, s8, {64*3584}\ns_addc_u32 s9, s9, 0'] if it else [])
    def w1l():
        i = w1n[0] % 4
        vm.op(f'buffer_load_dwordx4 v{165+i}, s[8:11], 0 offen offset:{1024*i} lds', 'W1'); w1n[0] += 1
    WB_ = knob('w1b', 0)
    assert WB_ == 0
    def poll2(lab, addr, so_hint, so, n, first, pre='', name=None):
        e(f's_cmp_lg_u32 s16, {knob("pw", 1)}\ns_cbranch_scc1 {lab}wait\ns_mov_b32 s26, {POLL_MAX}')
        for l, x in ((lab + 'hint', so_hint), (lab + 'poll', so)):
            if x: e(f"""{l}:
buffer_load_dword v15, {addr}, s[12:15], {x} sc1
s_sub_u32 s26, s26, 1
s_cbranch_scc1 {lab}done
s_waitcnt vmcnt(0)
v_cmp_gt_u32 vcc, {n}, v15
s_cbranch_vccnz {l}""")
        e(f'{lab}done:')
        k = knob('pp', 2)
        sv = list(vm.seq)
        for f in first[:k]: f()
        vm.seq = sv
        e(f's_waitcnt lgkmcnt(0)\ns_barrier\ns_branch {lab}go\n{lab}wait:\ns_waitcnt {pre} lgkmcnt(0)\ns_barrier')
        for f in first[:k]: f()
        e(f'{lab}go:')
        stamp(e, (name or lab[2:]) + 'done')
        for f in first[k:]: f()
    def kvset(j): return f's_add_u32 m0, s{46 + (j >> 3)}, {(j & 7)*TTP}'
    def kl(j, t): vm.op(f'buffer_load_dwordx4 {ar(16*j+4*t,4)}, v3, s[12:15], m0 offen offset:{1024*t} sc1', f'K{j}')
    def vl(j, t): vm.op(f'buffer_load_dwordx4 {ar(16*j+8+4*t,4)}, v{248 if t else 4}, s[12:15], m0 offen sc1', f'V{j}')
    KV0 = knob('kv0', 3)
    kv_first = [lambda: kl(0, 0), lambda: kl(0, 1), lambda: vl(0, 0), lambda: vl(0, 1)]
    def qphase(light_, lt):
        F.add(f'v_mul_f32 v26, {f32(QSCALE)}, v248\nv_mov_b32 v2, v254')
        for n, d in enumerate(park):
            if n not in lateprk: F.add(f'v_accvgpr_read_b32 v{d}, a{n}')
        F.add(f"""v_xor_b32 v249, {3*2048}, v15
v_xor_b32 v250, {2*2048}, v15
v_xor_b32 v251, {1*2048}, v15
v_mov_b32 v{RM}, 0
v_mov_b32 v7, 0xdddd
s_mov_b32 s8, s60
s_mov_b32 s9, s61
s_cmp_lt_u32 s20, 14
s_cselect_b32 s10, {16*3584}, 0
s_mov_b32 s30, 0
s_mov_b32 s34, 3584
s_mov_b32 s35, 0x00020000
s_mov_b32 s38, 896
s_mov_b32 s42, {2048*896}
s_mov_b32 s43, 0x00020000""")
        qcs(0, WQE, 76 if WQE == 7 else 80)
        for g in range(7):
            for k in range(4):
                s = 4*g + k
                e(f's_waitcnt lgkmcnt({2*min(3, 27-s, (4*WQE-1-s) if g < WQE else 3)})')
                e(f'{MF} {vr(QA,16)}, {vr(ACC+4*(s&7),4)}, {vr(XF+4*s,4)}, ' + (vr(QA, 16) if s else '0'))
                if lt and s % 2 == 0: lt.pop(0)()
                if s + 4 < 28 and g + 1 != WQE: e('\n'.join(qrd(s+4)))
                F.drain(3 if g < 6 else 5)
            if g + 1 == QS and not light_: s1signal()
            if g == (1 if WQE == 7 else WQE):
                e('s_barrier')
                for w in range(4): e(f'ds_read_b32 v{96+w}, v242 offset:{256*w}')
            if g == (3 if WQE == 7 else 5): F.add(cs_fill)
            if g == 4: F.add(late_fill)
        F.drain(999)
        e(f"""{MF} {vr(QA,16)}, {vr(CF+8,4)}, {vr(XM,4)}, {vr(QA,16)}
s_load_dwordx2 s[32:33], s[0:1], 40
s_load_dwordx2 s[36:37], s[0:1], 56
s_load_dwordx2 s[40:41], s[0:1], 64""")
        if not light_:
            e('s_getpc_b64 s[80:81]\nL_pc1:'); vm.op('global_load_dword v242, v170, s[80:81]', 'T')
        for s in (0, 2, 3): e(f'{MF} {vr(O+16*s,16)}, {vr(RM,4)}, {vr(RM,4)}, 0')
        for p in range(8):
            e(f'v_mul_f32 v{QA+2*p}, v26, v{QA+2*p}\nv_mul_f32 v{QA+2*p+1}, v26, v{QA+2*p+1}')
            e(f'v_cvt_pk_bf16_f32 v{Q+24+p}, v{QA+2*p}, v{QA+2*p+1}')
        e(f"""v_and_b32 v{Q+24}, v13, v{Q+24}
v_and_b32 v{Q+25}, v13, v{Q+25}
v_and_b32 v{Q+30}, v5, v{Q+30}
v_and_b32 v{Q+31}, v5, v{Q+31}
ds_write_b128 v15, {vr(Q+24,4)}
ds_write_b128 v15, {vr(Q+28,4)} offset:1024
{MF} {vr(O+16,16)}, {vr(RM,4)}, {vr(RM,4)}, 0
s_add_u32 s76, s51, {HINT}
s_mov_b32 m0, s46""")
        stamp(e, 's1win')
    variant('v', None); light(); variant('k', 'L_kk')
    e('L_q:')
    stamp(e, 'p1st')
    vm.wait('rdy'); rdycheck('L_rd')
    if not NH & 1: emit(hint, 'sig')
    stamp(e, 'q0'); vm.wait('wq')
    e('s_barrier'); stamp(e, 'q2')
    qphase(False, [])
    poll2('L_s1', 'v169', None if NH & 1 else 's76 offen', 's51 offen', 14, kv_first)
    e('L_att:')
    e(kvset(1))
    for s in range(3):
        for t in range(2): e(f'ds_read_b128 {vr(Q+8*s+4*t,4)}, v{249+s} offset:{1024*t}')
    for j in range(1, KV0):
        kl(j, 0); kl(j, 1); vl(j, 0); vl(j, 1); e(kvset(j + 1))
    steps = [(s, j) for j in range(16) for s in range(3)] + [(3, j) for j in range(16)]
    N = len(steps)
    def qk(i, t):
        s, j = steps[i]; d = vr(S + 16*(i % 3), 16)
        return f'{MF} {d}, {ar(16*j+4*t,4)}, {vr(Q+8*s+4*t,4)}, ' + ('0' if t == 0 else d)
    def pv(i, t):
        s, j = steps[i]
        return f'{SM} {vr(O+16*s,16)}, {ar(16*j+8+4*t,4)}, {vr(S+16*(i%3)+8*t,8)}, v7'
    free, post = {}, {}
    def P(d, q, f): d.setdefault(q, []).append(f)
    WX = 2048 if M16 else 1024
    def wfrag(kind, n):
        g, r = divmod(n, 4)
        if M16: f, off, reg = r >> 1, (r & 1)*1024, 16*g + 4*r
        else: f, off, reg = r & 1, (r >> 1)*2048, 16*g + 4*r
        dst = vr(WOF + reg, 4) if kind == 'Wo' else ar(reg, 4)
        return (f's_add_u32 m0, s{44 if kind == "Wo" else 45}, {g*4096}', f'buffer_load_dwordx4 {dst}, v{252+f}, s[12:15], m0 offen offset:{off} sc1')
    w2n = [0]
    def w2l(n=1, setm=False):
        for _ in range(n):
            if w2n[0] >= 56: return
            a, b = wfrag('W2', w2n[0])
            if setm or w2n[0] % 4 == 0: e(a); setm = False
            vm.op(b, 'W2'); w2n[0] += 1
    def wfcheck():
        e('v_cmp_gt_u32 vcc, 2, v243\ns_lshr_b32 s26, vcc_hi, 16\ns_cbranch_scc1 L_wf\nL_wfd:')
        slow.append(f"""L_wf:
s_mov_b32 s26, {POLL_MAX}
L_wfp:
buffer_load_dword v243, v241, s[12:15], 0 offen sc1
s_sub_u32 s26, s26, 1
s_cbranch_scc1 L_wfd
s_waitcnt vmcnt(0)
v_cmp_gt_u32 vcc, 2, v243
s_nop 1
s_lshr_b32 s78, vcc_hi, 16
s_cbranch_scc1 L_wfp
s_branch L_wfd""")
    vq = []
    for j in range(KV0, 16):
        for n, (f, t) in enumerate(((kl, 0), (kl, 1), (vl, 0), (vl, 1))):
            vq.append(([kvset(j)] if n == 0 and j > KV0 else [], (lambda f=f, j=j, t=t: f(j, t)), 1))
        if WT == 2 and j == knob('wj', 7): vq.append(([], lambda: vm.op('global_load_dword v242, v177, s[82:83]', 'T'), knob('wg', 3)))
    def t0f():
        if knob('t2', 1): e('s_mov_b32 exec_lo, 0xfff00000')
        vm.op('buffer_load_dword v243, v241, s[12:15], 0 offen sc1', 'T0')
        if knob('t2', 1): e('s_mov_b32 exec_lo, -1')
    t0 = ([], t0f, 1 if ST & 2 or knob('t2', 1) else 2)
    for t in range(2):
        if M16: vq.append(([f's_add_u32 m0, s27, {16*896*t}'], (lambda t=t: vm.op(f'buffer_load_dwordx4 {vr(224+4*t,4)}, v0, s[4:7], m0 offen', 'sm')), 1))
        else: vq.append((['s_mov_b32 m0, s27'] if t == 0 else [], (lambda t=t: vm.op(f'buffer_load_dwordx4 {vr(224+4*t,4)}, v0, s[4:7], m0 offen offset:{32*t}', 'sm')), 1))
    tiny = [(lambda t=t: vm.op(f'buffer_load_dwordx4 {vr(232+4*t,4)}, v160, s[36:39], 0 offen offset:{32*t}', 'sm')) for t in range(1 if M16 else 2)]
    tiny += [(lambda b=b: vm.op(f'buffer_load_ushort v{244+b}, v{161+b}, s[32:35], 0 offen', 'sm')) for b in range(4)]
    if knob('ty', 9):
        for n, f in enumerate(tiny): P(post, 4*knob('ty', 9) + 1 + 2*n, f)
    else: vq += [([], f, 1) for f in tiny]
    for n in range(WB_, 28):
        it = n // 4
        vq.append(((([f's_add_u32 s8, s8, {64*3584}\ns_addc_u32 s9, s9, 0'] if it else []) + [f's_add_u32 m0, s59, {it*16384}']) if n % 4 == 0 else [], w1l, 1))
    vq.insert(len(vq) - 12, t0)
    nchk = len(vq)
    for n in range(16):
        a, b = wfrag('Wo', n); vq.append(([a] if n % 4 == 0 else [], (lambda b=b: vm.op(b, 'Wo')), 1))
    SPR = knob('spr', 0)
    if knob('t2', 1) and not SPR & 1: vq.append(([], lambda: vm.op('buffer_load_dword v242, v241, s[12:15], 0 offen sc1', 'T'), 1))
    if H1M and not SPR & 2: vq.append((['s_mov_b32 m0, s28'], lambda: vm.op('buffer_load_dword v242, v240, s[12:15], m0 offen sc1', 'T'), knob('h1g', 8)))
    TL = knob('tl', 0 if SPR == 3 else 20); tail = []
    if TL: k = len(vq) - bool(H1M and not SPR & 2) - bool(knob('t2', 1) and not SPR & 1); tail = vq[k:]; vq = vq[:k]
    hs = 0
    def place(sal, f):
        if sal: P(free, 2*hs - 1, lambda x=sal[-1]: e(x))
        if len(sal) > 1: P(free, 2*hs, lambda x=sal[0]: e(x))
        P(post, 2*hs, f)
    for n, (sal, f, d) in enumerate(vq):
        if n == nchk: P(free, 2*hs - 3, lambda: vm.wait('T0')); P(post, 2*hs - 3, wfcheck)
        place(sal, f); hs += d
    hs = max(hs, 100)
    W2A = max(0, min(knob('w2a', 24), 126 - TL - hs)) // 4 * 4
    for n in range(W2A):
        a, b = wfrag('W2', n); place([a] if n % 4 == 0 else [], (lambda b=b: vm.op(b, 'W2'))); hs += 1
    for sal, f, d in tail: place(sal, f); hs += 1
    w2n[0] = W2A
    P(free, 2, lambda: vm.wait('V0'))
    for j in range(1, 16):
        if j < 6: P(free, 4*(3*j-1) - 2, (lambda j=j: vm.wait(f'V{j}')))
        elif j % 2 == 0: P(free, 4*(3*j-1) - 2, (lambda j=j: vm.wait(f'V{j+1}')))
    def pwr(s, q): return f'ds_write_b128 v{9+s}, {vr(O+16*s+4*q,4)} offset:{s*4096 + q*1024}'
    def prd(s, q): return f'ds_read_b128 {vr(O+16*s+4*q,4)}, v12 offset:{s*4096 + q*1024}'
    for k in range(12): P(post, 4*50 + 1 + 2*k, (lambda k=k: e(pwr(k//4, k % 4))))
    P(free, 4*59, lambda: vm.wait('W1', 'lgkmcnt(0)')); P(free, 4*59 + 2, lambda: e('s_barrier'))
    for k in range(12): P(post, 4*60 + k, (lambda k=k: e(prd(k//4, k % 4))))
    e('s_lshl_b32 s76, s24, 6\ns_waitcnt lgkmcnt(0)\ns_barrier')
    sq = []
    if ST & 1: sq += [f's_load_dword s77, s[82:83], {64*k}' for k in range(26)] + ['s_buffer_load_dword s77, s[32:35], s31', 's_buffer_load_dword s77, s[36:39], s76']
    q = 1
    for x in sq:
        while q in free: q += 1
        P(free, q, lambda x=x: e(x)); q += 2
    if ST & 2:
        q = max(q, 4*knob('hs', 26))
        for x in [f's_buffer_load_dword s77, s[12:15], s64 offset:{64*k}' for k in range(32)] + [f's_buffer_load_dword s77, s[12:15], s65 offset:{64*k}' for k in range(8)]:
            while q in free: q += 1
            P(free, q, lambda x=x: e(x)); q += 2
        assert q < 4*52
    e(f"""v_mov_b32 v249, v173
v_add_u32 v254, 0x10000, v173
v_mov_b32 v250, v174
v_mov_b32 v251, v175
v_mov_b32 v5, v176
v_mov_b32 v252, v171
v_xor_b32 v253, {WX}, v171
v_mov_b32 v255, v{172 if M16 else 2}
v_mov_b32 v8, 1
v_mov_b32 v14, 0x3f803f80""")
    vm.wait('K0')
    stamp(e, 'a0')
    e(qk(0, 0)); e(qk(0, 1))
    for i in range(N):
        if i == 48: stamp(e, 'aB')
        if i: stamp(e, f'a{i}')
        b = S + 16*(i % 3)
        mf = [qk(i+1, 0) if i+1 < N else None, qk(i+1, 1) if i+1 < N else None, pv(i-1, 1) if i > 0 else None, pv(i, 0)]
        for sl in range(4):
            if mf[sl]: e(mf[sl])
            for f in free.get(4*i + sl, []) + post.get(4*i + sl, []): f()
            for r in range(4): e(f'v_exp_f32 v{b+4*sl+r}, v{b+4*sl+r}')
    e(pv(N-1, 1))
    if not NH & 2: vm.op('buffer_atomic_add v8, v250, s[12:15], 0 offen offset:128 sc1', 'sig')
    assert w1n[0] == 28
    e('L_combine:')
    stamp(e, 'comb')
    e('s_waitcnt lgkmcnt(0)')
    for r in range(16): e(f'v_add_f32 v{O+r}, v{O+r}, v{O+16+r}')
    for p in range(8): e(f'v_pk_add_f32 {vr(O+2*p,2)}, {vr(O+2*p,2)}, {vr(O+32+2*p,2)}')
    for p in [6, 0, 1, 2, 3, 4, 5, 7]:
        e(f'v_pk_add_f32 {vr(O+2*p,2)}, {vr(O+2*p,2)}, {vr(O+48+2*p,2)}')
        if p == 6: e(f'v_mov_b32 v13, v{O+12}\nv_mov_b32 v15, v{O+12}')
        if p == 1: e('v_permlane32_swap_b32 v13, v15')
        if p == 2: e('v_rcp_f32 v158, v15')
    for p in range(8):
        e(f'v_pk_mul_f32 {vr(O+2*p,2)}, {vr(O+2*p,2)}, v[158:159] op_sel_hi:[1,0]')
        e(f'v_cvt_pk_bf16_f32 v{O+p}, v{O+2*p}, v{O+2*p+1}')
        if p == 3: vm.op(f'buffer_store_dwordx4 {vr(O,4)}, v255, s[12:15], s3 offen sc1', 'Ost')
        if p == 6: e(f'v_and_b32 v{O+6}, v6, v{O+6}')
    e(f'v_and_b32 v{O+7}, v6, v{O+7}')
    vm.op(f'buffer_store_dwordx4 {vr(O+4,4)}, v255, s[12:15], s3 offen offset:512 sc1', 'Ost')
    if knob('t1', 0): vm.op('buffer_load_dword v242, v241, s[12:15], 0 offen sc1', 'T')
    def csrd(dst, s):
        return [f'ds_read_b64_tr_b16 {vr(dst+2*rd,2)}, v{254 if s >= 16 else 249} offset:{(s & 15)*4096 + rd*1024}' for rd in range(2)]
    for k in range(4): e('\n'.join(csrd(S + 4*k, k)))
    e(f"""v_cmp_nle_f32 vcc, {f32(2.0**-40)}, v15
v_mov_b32 v156, 0
v_mov_b32 v157, 0
s_mov_b64 s[82:83], vcc
v_cmp_nge_f32 vcc, {f32(2.0**40)}, v15
v_add_u32 v15, v12, v5
s_or_b64 vcc, vcc, s[82:83]
s_cselect_b32 s26, 1, 0
s_andn2_b32 s26, s26, s30
v_mov_b32 v13, s26""")
    B0 = knob('b0', 8); CS = knob('cs', 4)
    def csgroup(g):
        if g < 7:
            for k in range(4): e('\n'.join(csrd(S + 16*(g & 1) + 4*k, 4*g + k)))
        if g <= CS: w2l(B0*g//CS - B0*(g-1)//CS)
        e(f's_waitcnt lgkmcnt({8 if g < 7 else 0})')
        for r in range(16): e(f'v_dot2c_f32_bf16 v{156 + (r & 1)}, v{S + 16*((g-1) & 1) + r}, v14')
    for g in range(1, CS + 1): csgroup(g)
    e('ds_write_b32 v12, v13')
    vm.wait('Ost', 'lgkmcnt(0)')
    e("""s_barrier
ds_read_b32 v13, v251
s_waitcnt lgkmcnt(0)
v_cmp_ne_u32 vcc, 0, v13
s_cbranch_vccnz L_fallback""")
    vm.op('buffer_atomic_add v8, v250, s[12:15], 0 offen sc1', 'sig2')
    stamp(e, 's2sig')
    e(f's_cmp_ge_u32 s20, 14\ns_cbranch_scc1 {"L_spare" if SPR else "L_end"}')
    assert M16
    ACC3, AF = 80, 16
    WA = 240
    w2l(knob('b1', 12))
    e("""v_readlane_b32 s31, v243, 20
v_mov_b32 v13, 0
v_mov_b32 v3, v15
s_mov_b32 m0, s63
s_cmp_eq_u32 s31, s29
s_cselect_b32 s31, 1, 0""")
    if knob('nolocal', 0): e('s_mov_b32 s31, 0')
    stamp(e, 's2win')
    def aoff(n): return ((n >> 1) & 3)*1024
    m0g = [None]
    o0 = [0, 2, 4, 6, 1, 3, 5, 7]
    def ol(a, n):
        if m0g[0] is not None and m0g[0] != (a, n & 1): e(f's_add_u32 m0, s{62+a}, {(n & 1)*16384}')
        m0g[0] = (a, n & 1)
        vm.op(f'buffer_load_dwordx4 {vr(AF+32*a+4*n,4)}, v2, s[12:15], m0 offen offset:{aoff(n)} sc1', f'O{a}{n}')
    poll2('L_s2', 'v13', None if NH & 2 else 's25 offen offset:128', 's25 offen', 16, [(lambda n=n: ol(1, n)) for n in o0])
    for n in o0[:4]: ol(0, n)
    for g in range(CS + 1, 8): csgroup(g)
    e('v_add_f32 v156, v156, v157')
    e(halves_sum(156, 157))
    for r in range(8): e(f'v_lshlrev_b32 v{ACC3+2*r}, 16, v{224+r}\nv_and_b32 v{ACC3+2*r+1}, 0xffff0000, v{224+r}')
    e(f"""v_add_u32 v157, v11, v5
v_add_u32 v158, v10, v5
v_add_u32 v159, v9, v5
s_and_b32 s76, s23, 3
s_lshl_b32 s77, s76, 5
s_add_u32 s77, s77, s24
s_lshl_b32 s77, s77, 2
v_mov_b32 v4, s77
v_min_u32 v5, 13, v1
v_lshlrev_b32 v5, 2, v5
v_and_b32 v15, 0x1f0, v2
v_and_b32 v7, 0x300, v2
v_add_u32 v7, v7, v2""")
    for n in o0[4:]: ol(0, n)
    def rwr(s, A, q): return f'ds_write_b128 v{12-s}, {vr(A+16*s+4*q,4)} offset:{(3-s)*4096 + q*1024}'
    def rrd(s, A, q): return f'ds_read_b128 {vr(A+16*s+4*q,4)}, v12 offset:{(3-s)*4096 + q*1024}'
    def mm(A, wk, wb, act, a, f, n, init):
        T = A + 16*(2*a + f)
        return [f'{MH} {vr(T+8*(n&1)+4*u,4)}, {vr(wb+16*(n>>1)+8*f+4*u,4,wk)}, {vr(act,4)}, ' + ('0' if n < 2 and init else vr(T+8*(n&1)+4*u, 4)) for u in range(2)]
    def m3(a, f, n): e('\n'.join(mm(ACC3, 'v', WOF, AF+32*a+4*n, a, f, n, (a, f) != (0, 0))))
    HN = ' nt' if knob('hn', 0) else ''
    def dual(lines, tag, lab, loc=''):
        e(f's_cmp_lg_u32 s31, 0\ns_cbranch_scc0 {lab}_s')
        for l in lines: vm.op(l + loc, tag)
        e(f'{lab}_d:')
        slow.append(f'{lab}_s:\ns_nop 1\n' + '\n'.join(l + ' sc1' for l in lines) + f'\ns_nop 1\ns_branch {lab}_d')
    B2 = knob('b2', 8)
    for k, n in enumerate(o0):
        vm.wait(f'O1{n}'); stamp(e, f'o{k}'); m3(1, 1, n)
        if k >= 8 - B2: w2l(1, k == 8 - B2)
        m3(1, 0, n)
        if k >= 4: e(rwr(3 - (k-4)//2, ACC3, k & 1))
    for k, n in enumerate(o0):
        vm.wait(f'O0{n}'); stamp(e, f'o{8+k}')
        m3(0, 1, n); m3(0, 0, n)
        if k < 4: e(rwr(3 - k//2, ACC3, 2 + (k & 1)))
        if k == 4: e(rwr(1, ACC3, 0) + '\n' + rwr(1, ACC3, 1))
        if k == 5:
            e('s_waitcnt lgkmcnt(0)\ns_barrier')
            for q in range(2): e(rrd(3, ACC3, q) + '\n' + rrd(2, ACC3, q) + '\n' + rrd(1, ACC3, q))
            for q in range(2, 4): e(rrd(3, ACC3, q) + '\n' + rrd(2, ACC3, q))
        if k == knob('p3o', 6):
            e('s_waitcnt lgkmcnt(4)')
            for r in range(8): e(f'v_add_f32 v{ACC3+r}, v{ACC3+r}, v{ACC3+48+r}\nv_add_f32 v{ACC3+16+r}, v{ACC3+16+r}, v{ACC3+32+r}')
    stamp(e, 'p3mf')
    def psum(d, p0, p1):
        A = ACC3 + 2*p0
        e(f'v_pk_mul_f32 {vr(d+2,2)}, {vr(A,2)}, {vr(A,2)}\nv_pk_add_f32 {vr(d,2)}, {vr(A,2)}, {vr(A+2,2)}\nv_pk_fma_f32 {vr(d+2,2)}, {vr(A+2,2)}, {vr(A+2,2)}, {vr(d+2,2)}')
        for p in range(p0 + 2, p1):
            e(f'v_pk_add_f32 {vr(d,2)}, {vr(d,2)}, {vr(ACC3+2*p,2)}\nv_pk_fma_f32 {vr(d+2,2)}, {vr(ACC3+2*p,2)}, {vr(ACC3+2*p,2)}, {vr(d+2,2)}')
        e(f'v_add_f32 v{d}, v{d}, v{d+1}\nv_add_f32 v{d+1}, v{d+2}, v{d+3}')
    for r in range(6): e(f'v_add_f32 v{ACC3+r}, v{ACC3+r}, v{ACC3+16+r}')
    e(rwr(1, ACC3, 2) + '\n' + rwr(1, ACC3, 3) + '\nds_write_b32 v3, v156')
    for r in range(6, 8): e(f'v_add_f32 v{ACC3+r}, v{ACC3+r}, v{ACC3+16+r}')
    for p in range(4): e(f'v_cvt_pk_bf16_f32 v{48+p}, v{ACC3+2*p}, v{ACC3+2*p+1}')
    dual([f'buffer_store_dwordx4 v[48:51], v7, s[12:15], s64 offen'], 'hst', 'L_h0', HN)
    e('s_waitcnt lgkmcnt(0)\ns_barrier')
    e(rrd(1, ACC3, 2) + '\n' + rrd(1, ACC3, 3) + '\nds_read_b32 v157, v157\nds_read_b32 v158, v158\nds_read_b32 v159, v159')
    for p in range(4, 8): e(f'v_pk_add_f32 {vr(ACC3+2*p,2)}, {vr(ACC3+2*p,2)}, {vr(ACC3+48+2*p,2)}\nv_pk_add_f32 {vr(ACC3+2*p,2)}, {vr(ACC3+2*p,2)}, {vr(ACC3+32+2*p,2)}')
    psum(56, 0, 4)
    e('s_waitcnt lgkmcnt(3)')
    for p in range(4, 8):
        e(f'v_pk_add_f32 {vr(ACC3+2*p,2)}, {vr(ACC3+2*p,2)}, {vr(ACC3+16+2*p,2)}')
        e(f'v_cvt_pk_bf16_f32 v{48+p}, v{ACC3+2*p}, v{ACC3+2*p+1}')
    dual([f'buffer_store_dwordx4 v[52:55], v7, s[12:15], s64 offen offset:256'], 'hst', 'L_h1', HN)
    psum(60, 4, 8)
    e("""v_permlane16_swap_b32 v56, v60
v_permlane16_swap_b32 v57, v61
v_pk_add_f32 v[56:57], v[56:57], v[60:61]
v_mov_b32 v58, v56
v_mov_b32 v59, v57
v_permlane32_swap_b32 v56, v58
v_permlane32_swap_b32 v57, v59
v_pk_add_f32 v[56:57], v[56:57], v[58:59]""")
    dual(['buffer_store_dwordx2 v[56:57], v15, s[12:15], s65 offen'], 'hst', 'L_s', HN)
    stamp(e, 'p3st')
    w2l(knob('b3', 0), True)
    e('s_waitcnt lgkmcnt(0)')
    for b in range(4):
        e(f"""v_and_b32 v13, 0xffff0000, v{156+b}
v_sub_f32 v3, v{156+b}, v13
v_cvt_pk_bf16_f32 v3, v13, v3
v_lshrrev_b32 v13, 16, v13
v_lshl_or_b32 v13, v{244+b}, 16, v13
v_accvgpr_write_b32 a{224+4*b}, v3
v_accvgpr_write_b32 a{225+4*b}, v13
v_accvgpr_write_b32 a{226+4*b}, v{244+b}
v_accvgpr_write_b32 a{227+4*b}, 0""")
    for b in range(4): e(f'v_xor_b32 v{WA+b}, {64*b}, v249\nv_xor_b32 v{WA+4+b}, {64*b}, v254')
    def s3fill():
        for r in range(4): e(f'v_lshlrev_b32 v{144+2*r}, 16, v{232+r}\nv_and_b32 v{145+2*r}, 0xffff0000, v{232+r}')
        for p in range(8): e(f'v_pk_add_f32 {vr(224+2*p,2)}, {vr(144+2*(p % 4),2)}, {vr(ACC3+2*p,2)}')
    F.add(f"""s_lshl_b32 s77, s16, 5
s_add_u32 s77, s77, s20
s_lshl_b32 s77, s77, 2
v_mov_b32 v14, s77
s_mul_i32 s77, s16, 7
s_lshr_b32 s77, s77, 1
v_and_b32 v7, 3, v1
v_add_u32 v7, s77, v7
v_bfe_u32 v13, v1, 2, 1
v_lshl_add_u32 v7, v13, 5, v7
v_lshlrev_b32 v7, 2, v7
v_lshrrev_b32 v250, 2, v2
s_lshl_b32 s77, s16, 8
v_add_u32 v251, s77, v250
v_and_b32 v250, 60, v250
s_lshl_b32 s76, s76, 8
v_add_u32 v250, s76, v250
v_and_b32 v13, 16, v1
v_mul_u32_u24 v13, {(57344 - 16384)//16}, v13
v_add_u32 v255, v255, v13""")
    HF, ACC4, WF, STT = 16, 128, 192, 208
    HP = knob('hp', 6); PER = knob('per', 68)
    SP = knob('sp', 7)
    order = list(range(SP + 1)) + ['s0', 's1', 's2', 's3'] + list(range(SP + 1, 28))
    arr = {x: n*PER for n, x in enumerate(order)}
    mlist = []; nxt = [0, 0, 0, 0]; t = 0
    while min(nxt) < 28:
        c = [b for b in range(4) if nxt[b] < 28 and arr[nxt[b]] <= t]
        if not c: t = min(arr[nxt[b]] for b in range(4) if nxt[b] < 28); continue
        b = min(c, key=lambda b: (b >> 1 and b, nxt[b], b))
        mlist.append((nxt[b], b)); nxt[b] += 1; t += 32
    M = len(mlist)
    last = [max(m for m, (s, b2) in enumerate(mlist) if b2 == b) for b in range(4)]
    firstm = [min(m for m, (s, b2) in enumerate(mlist) if b2 == b) for b in range(4)]
    def w1rd(dst, s, b, k='v'):
        base = WA + b + (4 if s >= 16 else 0); off = (s & 15)*4096
        return [f'ds_read_b64_tr_b16 {vr(dst+2*rd,2,k)}, v{base} offset:{off + rd*1024}' for rd in range(2)]
    def wreg(m): return ('v', WF + 4*(m & 7)) if (m & 7) < 4 else ('a', 240 + 4*((m & 7) - 4))
    def rds(m):
        s, b = mlist[m]; k, r = wreg(m)
        return w1rd(r, s, b, k)
    LD = 6
    vm.wait('hst')
    dual([f'buffer_store_dword v8, v4, s[12:15], s25 offen offset:{16*128}'], 'f3', 'L_f3')
    stamp(e, 'p3end')
    for m in range(LD): e('\n'.join(rds(m)))
    e('s_mov_b32 m0, s67')
    s3fill()
    def poll(lab, addr, so):
        e(f"""s_mov_b32 s26, {POLL_MAX}
{lab}:
buffer_load_dword v13, {addr}, s[12:15], {so} sc1
s_sub_u32 s26, s26, 1
s_cbranch_scc1 {lab}_x
s_waitcnt vmcnt(0)
v_cmp_ne_u32 vcc, 1, v13
s_cbranch_vccnz {lab}
{lab}_x:""")
    poll('L_p3', 'v5', f's66 offen offset:{16*128}')
    stamp(e, 's3done')
    hm = [0]
    def hset(x):
        if not isinstance(x, str) and x >> 2 != hm[0]: e(f's_add_u32 m0, s67, {(x >> 2)*4096}'); hm[0] = x >> 2
    def hl(x):
        if isinstance(x, str):
            p = int(x[1]); vm.op(f'buffer_load_dwordx4 {vr(STT+4*p,4)}, v2, s[12:15], s68 offen offset:{1024*p} sc1', 'st'); return
        hset(x)
        vm.op(f'buffer_load_dwordx4 {vr(HF+4*x,4)}, v2, s[12:15], m0 offen offset:{(x&3)*1024} sc1', f'h{x}')
    for x in order[:HP]: hl(x)
    hq = order[HP:]
    XB = STT + 8
    def add_stats():
        F.add(lambda: vm.wait('st'))
        F.add('\n'.join(f'v_and_b32 v{STT+12+r}, v6, v{STT+12+r}' for r in range(4)))
        for k in range(1, 8): F.add(f'v_add_f32 v{STT}, v{STT}, v{STT+2*k}\nv_add_f32 v{STT+1}, v{STT+1}, v{STT+2*k+1}')
        F.add(ln_stats(STT, STT+1, STT+2, STT+3, STT+4, STT+5))
        F.add(f"""v_sub_f32 v{STT+3}, 0, v{STT+3}
v_and_b32 v{STT+3}, v6, v{STT+3}
v_and_b32 v{STT+5}, v6, v{STT+5}
v_and_b32 v{STT+6}, 0xffff0000, v{STT+3}
v_sub_f32 v{STT+7}, v{STT+3}, v{STT+6}
v_cvt_pk_bf16_f32 v{XB}, v{STT+6}, v{STT+6}
v_and_b32 v{STT+6}, 0xffff0000, v{STT+5}
v_cvt_pk_bf16_f32 v{XB+1}, v{STT+7}, v{STT+6}
v_sub_f32 v{STT+7}, v{STT+5}, v{STT+6}
v_cvt_pk_bf16_f32 v{XB+2}, v{STT+7}, 0
v_mov_b32 v{XB+3}, 0
v_mul_f32 v248, v{STT+4}, v{STT+4}""")
        F.mark('st')
    def epi(b):
        A = ACC4 + 16*b
        for p in range(8):
            F.add(f"""v_mul_f32 v{A+2*p}, v{A+2*p}, abs(v{A+2*p})
v_mul_f32 v{A+2*p+1}, v{A+2*p+1}, abs(v{A+2*p+1})
v_cvt_pk_bf16_f32 v{A+p}, v{A+2*p}, v{A+2*p+1}
v_pk_max_i16 v{A+p}, v{A+p}, 0""")
            if p % 4 == 3:
                l = f'buffer_store_dwordx4 {vr(A+4*(p//4),4)}, v255, s[12:15], s{72+b} offen offset:{512*(p//4)}'
                if H1M == 0: F.add(lambda l=l: vm.op(l + ' sc1', 'h1st'))
                else: F.add(lambda l=l, n=2*b + p//4: dual([l], 'h1st', f'L_e{n}', ' nt' if H1M == 2 else ''))
    mst = min(m for m, (s, b) in enumerate(mlist) if s > SP) + 2
    XK = min(last[0], last[1]) - 1
    w2set = [True]
    for m, (s, b) in enumerate(mlist):
        if m == mst: add_stats()
        if m == last[1] + 1: stamp(e, 'p4a')
        for b2 in range(3):
            if m == last[b2] + 4: epi(b2)
        lg = f'lgkmcnt({2*max(0, min(LD-2, M-2-m))})' if m % 2 == 0 else ''
        vm.wait(f'h{s}', lg)
        if b == 0: stamp(e, f'h{s}')
        acc = vr(ACC4 + 16*b, 16); k, r = wreg(m)
        zero = s == 0
        if s == 0 and m > XK: e(f'{MF} {acc}, {ar(224+4*b,4)}, {vr(XB,4)}, 0'); zero = False
        e(f'{MF} {acc}, {vr(r,4,k)}, {vr(HF+4*s,4)}, ' + ('0' if zero else acc))
        if m % 2 == 0 and hq: hset(hq[0])
        if m % 2 == 0 and not hq and w2n[0] < 56 and (w2set[0] or w2n[0] % 4 == 0): e(wfrag('W2', w2n[0])[0]); w2set[0] = False
        if m % 2 == 1 and hq: hl(hq.pop(0)); n = 2
        elif m % 2 == 1 and w2n[0] < 56: vm.op(wfrag('W2', w2n[0])[1], 'W2'); w2n[0] += 1; n = 2
        else: n = 3 if m % 2 else 2
        if m + LD < M: e('\n'.join(rds(m + LD)))
        else: n += 2
        F.drain(n)
        if m == XK:
            F.need('st')
            for b2 in range(4):
                if firstm[b2] <= XK: e(f'{MF} {vr(ACC4+16*b2,16)}, {ar(224+4*b2,4)}, {vr(XB,4)}, {vr(ACC4+16*b2,16)}')
    stamp(e, 'p4mf')
    F.drain(999)
    w2l(56, w2set[0])
    epi(3); F.drain(999)
    e('s_barrier\nds_write_b32 v251, v248\ns_mov_b32 m0, s71')
    vm.wait('h1st')
    dual([f'buffer_store_dword v8, v14, s[12:15], s25 offen offset:{20*128}'], 'f4', 'L_f4')
    stamp(e, 'p4end')
    poll('L_p4', 'v7', f's69 offen offset:{20*128}')
    stamp(e, 's4done')
    GF, ACC5, RING = 16, 144, 32
    GP = knob('gp', 12)
    s5 = [(a, n) for a in (1, 0) for tb in range(2) for n in range(tb, 28, 2)]
    m0g[0] = (1, 0, 0)
    def gset(i):
        if i >= 56: return
        a, n = s5[i]
        if m0g[0] != (a, n & 1, n >> 3): e(f's_add_u32 m0, s{70+a}, {(n & 1)*57344 + (n >> 3)*4096}')
        m0g[0] = (a, n & 1, n >> 3)
    def gl(i):
        a, n = s5[i]; gset(i)
        vm.op(f'buffer_load_dwordx4 {vr(GF+4*(i%RING),4)}, v2, s[12:15], m0 offen offset:{aoff(n)} sc1', f'g{i}')
    ON_ = ' nt' if knob('on', 0) else ''
    G0 = knob('g0', 5); gi = [G0]
    for i in range(G0): gl(i)
    def gnext(i):
        if gi[0] < min(56, i + 1 + GP): gl(gi[0]); gi[0] += 1; return 1
        return 0
    for i, (a, n) in enumerate(s5):
        if i == 28: stamp(e, 'p5a')
        def rw(s_, q):
            if not knob('w64', 1): return rwr(s_, ACC5, q)
            return '\n'.join(f'ds_write_b64 v{12-s_}, {vr(ACC5+16*s_+4*q+2*h,2)} offset:{(3-s_)*4096 + q*1024 + 8*h}' for h in range(2))
        if i in (16, 30): F.add('\n'.join(rw(s_, q + (2 if i == 30 else 0)) for s_ in (3, 2) for q in range(2)))
        if i == 43: F.add(rw(1, 0) + '\n' + rw(1, 1))
        if i == 46:
            F.add(lambda: e('s_waitcnt lgkmcnt(0)\ns_barrier'))
            F.add('ds_read_b32 v248, v250\nds_read_b32 v250, v250 offset:64')
            for q in range(2): F.add(rrd(3, ACC5, q) + '\n' + rrd(2, ACC5, q) + '\n' + rrd(1, ACC5, q))
            for q in range(2, 4): F.add(rrd(3, ACC5, q) + '\n' + rrd(2, ACC5, q))
            F.add(f's_add_u32 s26, s27, {16*896}\ns_waitcnt lgkmcnt(4)')
            for r in range(8): F.add(f'v_add_f32 v{ACC5+r}, v{ACC5+r}, v{ACC5+48+r}\nv_add_f32 v{ACC5+16+r}, v{ACC5+16+r}, v{ACC5+32+r}\nv_add_f32 v{ACC5+r}, v{ACC5+r}, v{ACC5+16+r}\nv_fmac_f32 v{224+r}, v248, v{ACC5+r}')
            for p in range(4): F.add(f'v_cvt_pk_bf16_f32 v{208+p}, v{224+2*p}, v{225+2*p}')
            F.add(lambda: vm.op('buffer_store_dwordx4 v[208:211], v0, s[40:43], s27 offen' + ON_, 'out'))
            F.add('s_waitcnt lgkmcnt(0)')
            for r in range(8, 16): F.add(f'v_add_f32 v{ACC5+32+r}, v{ACC5+32+r}, v{ACC5+48+r}\nv_fmac_f32 v{224+r}, v250, v{ACC5+32+r}')
        if i == 0: vm.wait('g0')
        stamp(e, f'g{i}')
        act = GF + 4*(i % RING)
        L = mm(ACC5, 'a', 0, act, a, 1, n, True) + mm(ACC5, 'a', 0, act, a, 0, n, True)
        for k, l in enumerate(L):
            e(l)
            if k == 3 and i < 55: vm.wait(f'g{i+1}')
            if k & 1: gset(gi[0])
            if k == 0: gnext(i)
            if k == 2 and a == 1: gnext(i)
            if i < 46:
                if k == 2 or (k == 1 and knob('w64', 1)): F.drain(1)
            else: F.drain(2)
    stamp(e, 'p5mf')
    e(rwr(1, ACC5, 2) + '\n' + rwr(1, ACC5, 3))
    F.drain(999)
    for p in range(4, 8): e(f'v_pk_fma_f32 {vr(224+2*p,2)}, {vr(ACC5+2*p,2)}, v[250:251], {vr(224+2*p,2)} op_sel_hi:[1,0,1]')
    e('s_waitcnt lgkmcnt(0)\ns_barrier')
    e(rrd(1, ACC5, 2) + '\n' + rrd(1, ACC5, 3))
    for q in range(2):
        e(f's_waitcnt lgkmcnt({1-q})')
        for p in (4 + 2*q, 5 + 2*q):
            e(f'v_pk_fma_f32 {vr(224+2*p,2)}, {vr(ACC5+16+2*p,2)}, v[250:251], {vr(224+2*p,2)} op_sel_hi:[1,0,1]')
            e(f'v_cvt_pk_bf16_f32 v{208+p}, v{224+2*p}, v{225+2*p}')
    e('buffer_store_dwordx4 v[212:215], v0, s[40:43], s26 offen' + ON_)
    stamp(e, 'p5st')
    stamp_out(e)
    e('s_endpgm')
    for x in slow: e(x)
    if SPR:
        e(f"""L_spare:
s_lshl_b32 s76, s16, 13
v_add_u32 v16, s76, v240       ; thread*128
s_lshl1_add_u32 s77, s19, s21""")
        if SPR & 1:
            e(f"""s_mul_i32 s78, s77, {2*28672}
s_add_u32 s78, s78, {WS_H}
buffer_load_dword v17, v16, s[12:15], s78 offen sc1
s_add_u32 s78, s78, 32768
s_lshl_b32 s79, s77, 13
s_add_u32 s79, s79, {WS_S - 3*8192}
s_cmp_eq_u32 s16, 3
s_cselect_b32 s78, s79, s78
buffer_load_dword v17, v16, s[12:15], s78 offen sc1""")
        if SPR & 2:
            e(f"""v_lshrrev_b32 v18, 11, v16
v_min_u32 v18, 13, v18
v_and_b32 v19, 0x780, v16
v_lshl_add_u32 v18, v18, 13, v19
s_mul_i32 s78, s77, {2*114688}
s_add_u32 s78, s78, {WS_H1}
s_lshl_b32 s79, s21, 12""")
            for b in range(4):
                for r in range(2):
                    e(f's_xor_b32 s76, s79, {(b ^ r)*2048}\ns_add_u32 s76, s76, s78\ns_add_u32 s76, s76, {r*114688}\nbuffer_load_dword v17, v18, s[12:15], s76 offen sc1')
        e('s_endpgm')
    e('L_fallback:\ns_mov_b32 s30, 1\ns_waitcnt vmcnt(0) lgkmcnt(0)\ns_barrier')
    for j in range(16):
        e(kvset(j)); kl(j, 0); kl(j, 1); vl(j, 0); vl(j, 1)
        if j == 7: e('s_waitcnt vmcnt(0)')
    e('s_waitcnt vmcnt(0)')
    MXB = SCR
    d = vr(S, 16)
    for s in range(4):
        e(f'v_mov_b32 v{128+s}, 0xff800000')
        for j in range(16):
            e(f'{MF} {d}, {ar(16*j,4)}, {vr(Q+8*s,4)}, 0\n{MF} {d}, {ar(16*j+4,4)}, {vr(Q+8*s+4,4)}, {d}')
            for p in range(8): e(f'v_max3_f32 v{128+s}, v{S+2*p}, v{S+2*p+1}, v{128+s}')
        e(f"""v_mov_b32 v13, v{128+s}
v_permlane32_swap_b32 v{128+s}, v13
v_max_f32 v{128+s}, v{128+s}, v13
s_xor_b32 s76, s16, {3-s}
s_lshl_b32 s76, s76, 9
s_add_u32 s76, s76, {MXB}
v_and_b32 v13, 31, v1
v_lshlrev_b32 v13, 4, v13
v_add_u32 v{132+s}, s76, v13
s_lshl_b32 s76, s16, 2
v_add_u32 v13, s76, v{132+s}
ds_write_b32 v13, v{128+s}""")
    e('s_waitcnt lgkmcnt(0)\ns_barrier')
    for s in range(4): e(f'ds_read_b128 {vr(S+4*s,4)}, v{132+s}')
    e('s_waitcnt lgkmcnt(0)\ns_barrier')
    for s in range(4):
        e(f'v_max3_f32 v{128+s}, v{S+4*s}, v{S+1+4*s}, v{S+2+4*s}\nv_max_f32 v{128+s}, v{128+s}, v{S+3+4*s}')
    for s in range(4):
        for r in range(16): e(f'v_sub_f32 v{NM+r}, 0, v{128+s}\nv_mov_b32 v{O+16*s+r}, 0')
        for j in range(16):
            e(f'{MF} {d}, {ar(16*j,4)}, {vr(Q+8*s,4)}, {vr(NM,16)}\n{MF} {d}, {ar(16*j+4,4)}, {vr(Q+8*s+4,4)}, {d}')
            for r in range(16): e(f'v_exp_f32 v{S+r}, v{S+r}')
            for t in range(2): e(f'{SM} {vr(O+16*s,16)}, {ar(16*j+8+4*t,4)}, {vr(S+8*t,8)}, v7')
            e('s_nop 7')
        e('s_nop 7')
    for k in range(12): e(pwr(k//4, k % 4))
    for n in range(W2A):
        a, b = wfrag('W2', n); e(a + '\n' + b)
    e('s_waitcnt vmcnt(0) lgkmcnt(0)\ns_barrier')
    for k in range(12): e(prd(k//4, k % 4))
    e('s_branch L_combine')
    e('L_end:')

def build1(e, path):
    head = open(f'cdna_kernels/{NAME}.s.ref').read().split('\n')
    name = NAME + '_kernel'
    out = head[:12] + (['; stamps: ' + ' '.join(ST_NAMES)] if STAMP else []) + ['; @launch grid=(256,1,1) block=(256,1,1) lds=163840', '.amdgcn_target "amdgcn-amd-amdhsa--gfx950"\n.text']
    e.fix('-v' in sys.argv)
    out.append(f'.globl {name}\n' + ('.p2align 12\n' if knob('al', 1) else '') + f'.p2align 8\n.type {name},@function\n{name}:')
    out.append(e.text() + '    s_endpgm')
    out.append(f""".section .rodata,"a"
.p2align 6
.amdhsa_kernel {name}
  .amdhsa_next_free_vgpr 512
  .amdhsa_next_free_sgpr 102
  .amdhsa_accum_offset 256
  .amdhsa_group_segment_fixed_size 0
  .amdhsa_kernarg_size 88
  .amdhsa_user_sgpr_count 2
  .amdhsa_user_sgpr_kernarg_segment_ptr 1
  .amdhsa_system_sgpr_workgroup_id_x 1
.end_amdhsa_kernel""")
    open(path, 'w').write('\n'.join(out) + '\n')

if __name__ == '__main__':
    e = Asm(); kernel(e)
    outs = [a for a in sys.argv[1:] if a.endswith('.s')]
    build1(e, outs[0] if outs else 'v11.s')
```

```python
import sys
from mblib import *
R = 12
FL = 16*16*128
def kern(group, st_flags, ld_flags, sig, nst, nld, fl_st, fl_ld, sleep=0, pre=0, apoll=False):
    if group == 'same':
        g = """
    s_and_b32 s16, s2, 7
    s_lshl_b32 s16, s16, 1
    s_bfe_u32 s17, s2, 0x10003
    s_add_u32 s16, s16, s17       ; gid
    s_lshr_b32 s17, s2, 4         ; member
"""
    else:
        g = """
    s_lshr_b32 s16, s2, 4
    s_and_b32 s17, s2, 15
"""
    pretouch = ""
    if pre >= 2:
        step = 128 if pre == 2 else 64
        pretouch += "    s_lshl_b32 s31, s14, 10\n    s_add_u32 s31, s31, s18\n    s_add_u32 s44, s6, s31\n    s_addc_u32 s45, s7, 0\n"
        for i in range(nst):
            for k in range(1024 // step):
                pretouch += f"    s_load_dword s46, s[44:45], {4096*i + k*step}\n"
                if k % 8 == 7: pretouch += "    s_waitcnt lgkmcnt(0)\n"
    elif pre:
        for i in range(nst):
            pretouch += f"    s_add_u32 s31, s18, {4096*i}\n    buffer_load_dwordx4 v[24:27], v8, s[20:23], s31 offen sc1\n"
        pretouch += "    s_waitcnt vmcnt(0)\n"
    s = f"""
    s_load_dwordx4 s[4:7], s[0:1], 0
    s_load_dwordx2 s[8:9], s[0:1], 16     ; flags
    v_lshrrev_b32 v1, 6, v0
    s_nop 1
    v_readfirstlane_b32 s14, v1
    v_and_b32 v3, 63, v0
{g}
    s_waitcnt lgkmcnt(0)
    s_mov_b32 s20, s6
    s_mov_b32 s21, s7
    s_mov_b32 s22, {R*256*16384}
    s_mov_b32 s23, 0x00020000
    s_mov_b32 s24, s8
    s_mov_b32 s25, s9
    s_mov_b32 s26, {R*FL}
    s_mov_b32 s27, 0x00020000
    s_lshl_b32 s18, s16, 4
    s_lshl_b32 s30, s18, 14
    s_add_u32 s18, s18, s17
    s_lshl_b32 s18, s18, 14
    v_lshlrev_b32 v8, 4, v0            ; tid*16
    s_lshl_b32 s19, s16, 11            ; flag base: gid*2048
    v_lshlrev_b32 v9, 2, v3            ; lane*4
    v_mov_b32 v10, s17
    v_lshlrev_b32 v10, 2, v10          ; member*4
    v_lshlrev_b32 v14, 7, v3
    v_add_u32 v14, v14, v10
    v_mov_b32 v15, s17
    v_lshlrev_b32 v15, 7, v15
    v_add_u32 v22, v15, v9
    v_lshlrev_b32 v23, 7, v3
    v_mov_b32 v11, 1
    v_mov_b32 v12, 0
    v_mov_b32 v13, 0
    v_mov_b32 v4, 0
    v_mov_b32 v5, 0
    v_mov_b32 v6, 0
    s_mov_b32 s29, 0  ; round
L_round_{{u}}:
{pretouch}
    s_memtime s[32:33]
    s_add_u32 s31, s29, 0x1000
    v_mov_b32 v16, s31
    v_mov_b32 v17, s31
    v_mov_b32 v18, s31
    v_mov_b32 v19, s31
"""
    for i in range(nst):
        s += f"    s_add_u32 s31, s18, {4096*i}\n    buffer_store_dwordx4 v[16:19], v8, s[20:23], s31 offen {st_flags}\n"
    slp = f"    s_sleep {sleep}\n" if sleep else ""
    def pollins(addr):
        if apoll: return f"    v_mov_b32 v20, 0\n    buffer_atomic_add v20, {addr}, s[24:27], s19 offen sc0 {fl_st}"
        return f"    buffer_load_dword v20, {addr}, s[24:27], s19 offen {fl_ld}"
    def poll(addr, cmp, br):
        return f"""    s_mov_b32 s40, 20000
L_poll_{{u}}:
    s_sub_u32 s40, s40, 1
    s_cbranch_scc1 L_giveup_{{u}}
{slp}{pollins(addr)}
    s_waitcnt vmcnt(0)
    {cmp}
    {br} L_poll_{{u}}
L_giveup_{{u}}:
    s_mov_b64 exec, -1
"""
    if sig == 'tag':
        s += "    s_memtime s[34:35]\n    s_memtime s[36:37]\n    s_mov_b32 s40, 5000\nL_poll_{u}:\n    s_sub_u32 s40, s40, 1\n    s_cbranch_scc1 L_giveup_{u}\n"
        for i in range(nld):
            s += f"    s_add_u32 s31, s30, {(i%16)*16384 + (i//16)*4096}\n    buffer_load_dwordx4 v[{32+4*i}:{35+4*i}], v8, s[20:23], s31 offen {ld_flags}\n"
        s += "    s_mov_b64 s[42:43], 0\n"
        for i in range(nld):
            s += f"    s_waitcnt vmcnt({nld-1-i})\n    v_cmp_ne_u32 vcc, v{32+4*i}, v16\n    s_or_b64 s[42:43], s[42:43], vcc\n"
        s += "    s_cbranch_scc1 L_poll_{u}\nL_giveup_{u}:\n    s_memtime s[38:39]\n"
    else:
        if sig.endswith('W'):
            s += "    s_waitcnt vmcnt(0)\n    s_memtime s[34:35]\n"
            if sig == 'atomicW':
                s += f"    s_mov_b64 exec, 1\n    buffer_atomic_add v11, v12, s[24:27], s19 offen {fl_st}\n" + poll("v12", "v_cmp_eq_u32 vcc, 64, v20", "s_cbranch_vccz")
            s += "    s_memtime s[36:37]\n"
        else:
            s += "    s_waitcnt vmcnt(0)\n    s_barrier\n"
            s += "    s_memtime s[34:35]\n"
            s += "    s_cmp_lg_u32 s14, 0\n    s_cbranch_scc1 L_wait_{u}\n"
            if sig == 'atomic':
                s += f"    s_mov_b64 exec, 1\n    buffer_atomic_add v11, v12, s[24:27], s19 offen {fl_st}\n" + poll("v12", "v_cmp_eq_u32 vcc, 16, v20", "s_cbranch_vccz")
            elif sig == 'flag':
                s += f"    s_mov_b64 exec, 1\n    buffer_store_dword v11, v10, s[24:27], s19 offen {fl_st}\n    s_mov_b64 exec, 0xffff\n" + poll("v9", "v_cmp_ne_u32 vcc, 1, v20", "s_cbranch_vccnz")
            elif sig in ('sflag', 'satomic'):
                if sig == 'sflag': s += f"    s_mov_b64 exec, 1\n    buffer_store_dword v11, v10, s[24:27], s19 offen {fl_st}\n    s_mov_b64 exec, -1\n"
                else: s += f"    s_mov_b64 exec, 1\n    buffer_atomic_add v11, v12, s[24:27], s19 offen {fl_st}\n    s_mov_b64 exec, -1\n"
                s += "    s_mov_b32 s40, 20000\nL_poll_{u}:\n    s_sub_u32 s40, s40, 1\n    s_cbranch_scc1 L_giveup_{u}\n"
                if sig == 'sflag':
                    s += "    s_buffer_load_dwordx16 s[48:63], s[24:27], s19 glc\n    s_waitcnt lgkmcnt(0)\n"
                    s += "".join(f"    s_and_b64 s[48:49], s[48:49], s[{50+2*i}:{51+2*i}]\n" for i in range(7)) + "    s_and_b32 s48, s48, s49\n    s_cbranch_scc0 L_poll_{u}\nL_giveup_{u}:\n"
                else:
                    s += "    s_buffer_load_dword s48, s[24:27], s19 glc\n    s_waitcnt lgkmcnt(0)\n    s_cmp_lt_u32 s48, 16\n    s_cbranch_scc1 L_poll_{u}\nL_giveup_{u}:\n"
            elif sig == 'flagN':
                s += f"    s_mov_b64 exec, 0xffff\n    buffer_store_dword v11, v14, s[24:27], s19 offen {fl_st}\n" + poll("v22", "v_cmp_ne_u32 vcc, 1, v20", "s_cbranch_vccnz")
            elif sig == 'atomicN':
                s += f"    s_mov_b64 exec, 0xffff\n    buffer_atomic_add v11, v23, s[24:27], s19 offen {fl_st}\n    s_mov_b64 exec, 1\n" + poll("v15", "v_cmp_eq_u32 vcc, 16, v20", "s_cbranch_vccz")
            elif sig == 'flagP':
                s += f"    s_mov_b64 exec, 1\n    buffer_store_dword v11, v15, s[24:27], s19 offen {fl_st}\n    s_mov_b64 exec, 0xffff\n" + poll("v23", "v_cmp_ne_u32 vcc, 1, v20", "s_cbranch_vccnz")
            s += "L_wait_{u}:\n    s_barrier\n    s_memtime s[36:37]\n"
        for i in range(nld):
            s += f"    s_add_u32 s31, s30, {(i%16)*16384 + (i//16)*4096}\n    buffer_load_dwordx4 v[{32+4*i}:{35+4*i}], v8, s[20:23], s31 offen {ld_flags}\n"
        s += "    s_waitcnt vmcnt(0)\n    s_memtime s[38:39]\n"
    for i in range(nld):
        s += f"    v_cmp_ne_u32 vcc, v{35+4*i}, v16\n    v_addc_co_u32 v13, vcc, 0, v13, vcc\n"
    s += f"""
    s_waitcnt lgkmcnt(0)
    s_sub_u32 s38, s38, s36
    s_sub_u32 s36, s36, s34
    s_sub_u32 s34, s34, s32
    s_mov_b32 m0, s29
    v_writelane_b32 v4, s34, m0
    v_writelane_b32 v5, s36, m0
    v_writelane_b32 v6, s38, m0
    s_add_u32 s18, s18, {256*16384}
    s_add_u32 s30, s30, {256*16384}
    s_add_u32 s19, s19, {FL}
    s_add_u32 s29, s29, 1
    s_cmp_lt_u32 s29, {R}
    s_cbranch_scc1 L_round_{{u}}
    s_lshl_b32 s15, s2, 12
    v_add_u32 v2, s15, v8
    v_mov_b32 v7, v13
    global_store_dwordx4 v2, v[4:7], s[4:5]
"""
    return s
tests = {}
tests['same_flag_plain'] = kern('same', '', 'sc1', 'flag', 1, 4, '', 'sc1', pre=1)
tests['same_sflag_plain'] = kern('same', '', 'sc1', 'sflag', 1, 4, '', 'sc1', pre=1)
tests['cross_flag_sc1'] = kern('cross', 'sc1', 'sc1', 'flag', 1, 4, 'sc1', 'sc1')
tests['cross_sflag_sc1'] = kern('cross', 'sc1', 'sc1', 'sflag', 1, 4, 'sc1', 'sc1')
tests['cross_atomic'] = kern('cross', 'sc1', 'sc1', 'atomic', 1, 4, 'sc1', 'sc1')
tests['cross_satomic'] = kern('cross', 'sc1', 'sc1', 'satomic', 1, 4, 'sc1', 'sc1')
if __name__ == "__main__":
    ks = [dict(name=f"k_{n}", body=b.replace("{u}", str(i)), vgpr=512, accum=256) for i, (n, b) in enumerate(tests.items())]
    co = build("mb27", ks)
    if os.path.exists('/dev/kfd'):
        from cdna_launch import AsmKernel, DeviceBuffer, _hip, _check, _launch_function
        out = DeviceBuffer(256*4096)
        data = DeviceBuffer(R*256*16384)
        flags = DeviceBuffer(R*FL)
        k0 = AsmKernel(co, ks[0]['name'])
        for k in ks:
            f = k0.function(k['name'])
            for rep in range(2):
                _check(_hip.hipMemset(flags._ptr, 0, R*FL))
                _check(_hip.hipMemset(data._ptr, 0, R*256*16384))
                _check(_hip.hipDeviceSynchronize())
                ka = struct.pack("<4Q", out.ptr, data.ptr, flags.ptr, 0)
                _launch_function(f, (256,1,1), (256,1,1), ka, 0, None)
                _check(_hip.hipDeviceSynchronize())
                o = out.to_numpy(np.uint32, (256,4,64,4)).astype(np.int64)
            t = o[:, :, 3:R, :3].reshape(-1, 3)
            m = np.median(t, axis=0); mean = np.mean(t, axis=0)
            print(f"{k['name']:34s} med store+wait {m[0]:6.0f} signal {m[1]:6.0f} load {m[2]:6.0f} | mean {mean[0]:6.0f} {mean[1]:6.0f} {mean[2]:6.0f} sum {mean.sum():6.0f} | errs {o[:,:,:,3].sum()}")
```
